```python
import torch

def _softmax(x, axis=-1):
    return torch.softmax(x, dim=axis)
def _gelu(x):
    return torch.nn.functional.gelu(x, approximate="tanh")
def _silu(x):
    return torch.nn.functional.silu(x)
def _sigmoid(x):
    return torch.sigmoid(x)
def _layernorm(x, axis=-1, eps=1e-5):
    m = x.mean(dim=axis, keepdim=True)
    v = x.var(dim=axis, keepdim=True, unbiased=False)
    return (x - m) / torch.sqrt(v + eps)
def _scatter_add(tgt, idx, src, axis=0):
    return tgt.clone().index_add_(axis, idx, src)
def _segment_sum(src, seg, n):
    out = torch.zeros((n,) + src.shape[1:], dtype=src.dtype)
    return out.index_add_(0, seg, src)
def _pad(x, pw):
    flat = tuple(v for pair in reversed(pw) for v in pair)
    return torch.nn.functional.pad(x, flat)

kernel_name = 'concat_heads__spectral_gfnet__spectral_gfnet__prompt'

def setup_inputs():

    _w = (lambda a: (lambda t: t.to(torch.bfloat16) if t.is_floating_point() else t)(torch.as_tensor(a)))
    def _A_setup():
        B, S, D = 1, 2048, 1024
        Df = D // 2 + 1
        return {
            "x": _w((lambda *s: torch.randn(*s, dtype=torch.bfloat16) * 0.05)(B, S, D)),
            "w_r": _w((lambda *s: torch.randn(*s, dtype=torch.bfloat16) * 0.05)(S, Df) * 0.02),
            "w_i": _w((lambda *s: torch.randn(*s, dtype=torch.bfloat16) * 0.05)(S, Df) * 0.02),
        }
    _A_in = _A_setup()

    def _B_setup():
        B, S, D = 1, 2048, 1024
        Df = D // 2 + 1
        return {
            "x": _w((lambda *s: torch.randn(*s, dtype=torch.bfloat16) * 0.05)(B, S, D)),
            "w_r": _w((lambda *s: torch.randn(*s, dtype=torch.bfloat16) * 0.05)(S, Df) * 0.02),
            "w_i": _w((lambda *s: torch.randn(*s, dtype=torch.bfloat16) * 0.05)(S, Df) * 0.02),
        }
    _B_in = _B_setup()

    return {
        "A_x": _A_in["x"],
        "A_w_r": _A_in["w_r"],
        "A_w_i": _A_in["w_i"],
        "B_x": _B_in["x"],
        "B_w_r": _B_in["w_r"],
        "B_w_i": _B_in["w_i"],
    }

def reference(A_x, A_w_r, A_w_i, B_x, B_w_r, B_w_i):
    def _A_ref(x, w_r, w_i):
        B, S, D = x.shape
        X = (lambda x, axes=(-2,-1): torch.fft.rfft2(x.float(), dim=axes))(x, axes=(-2, -1))
        W = w_r + 1j * w_i
        X = X * W
        y = (lambda x, s, axes=(-2,-1): torch.fft.irfft2(x, s=s, dim=axes).to(torch.bfloat16))(X, (S, D), axes=(-2, -1))
        return y

    def _B_ref(x, w_r, w_i):
        B, S, D = x.shape
        X = (lambda x, axes=(-2,-1): torch.fft.rfft2(x.float(), dim=axes))(x, axes=(-2, -1))
        W = w_r + 1j * w_i
        X = X * W
        y = (lambda x, s, axes=(-2,-1): torch.fft.irfft2(x, s=s, dim=axes).to(torch.bfloat16))(X, (S, D), axes=(-2, -1))
        return y

    a = _A_ref(A_x, A_w_r, A_w_i)
    b = _B_ref(B_x, B_w_r, B_w_i)
    return torch.concatenate([a, b], axis=-1)
```

```python
import re

def v(i, n=1): return f"v{i}" if n == 1 else f"v[{i}:{i+n-1}]"
def s(i, n=1): return f"s{i}" if n == 1 else f"s[{i}:{i+n-1}]"

_REG = re.compile(r'(?<![\w.])(-|\|)?(v|s|a)(?:(\d+)|\[(\d+):(\d+)\])(?![\w])')
def regs_of(op):
    out = []
    op = op.strip()
    for m in _REG.finditer(op):
        k = m.group(2)
        if m.group(3) is not None: lo = hi = int(m.group(3))
        else: lo, hi = int(m.group(4)), int(m.group(5))
        out += [(k, i) for i in range(lo, hi + 1)]
    if re.search(r'\bvcc\b', op): out += [('s', 106), ('s', 107)]
    if re.search(r'\bvcc_lo\b', op): out += [('s', 106)]
    if re.search(r'\bvcc_hi\b', op): out += [('s', 107)]
    if re.search(r'\bexec\b', op): out += [('s', 126), ('s', 127)]
    if re.search(r'\bexec_lo\b', op): out += [('s', 126)]
    if re.search(r'\bexec_hi\b', op): out += [('s', 127)]
    if re.search(r'\bm0\b', op): out += [('s', 124)]
    return out

TRANS = ('v_exp_f32', 'v_log_f32', 'v_rcp_f32', 'v_rsq_f32', 'v_sqrt_f32', 'v_sin_f32', 'v_cos_f32')

class Ins:
    def __init__(self, text):
        self.text = text
        t = text.split(';')[0].strip()
        self.mn = t.split()[0] if t else ''
        rest = t[len(self.mn):].strip()
        ops, depth, cur = [], 0, ''
        for ch in rest:
            if ch == '[': depth += 1
            if ch == ']': depth -= 1
            if ch == ',' and depth == 0: ops.append(cur); cur = ''
            else: cur += ch
        if cur.strip(): ops.append(cur)
        self.mods = ''
        if ops:
            last = ops[-1].strip().split(None, 1)
            ops[-1] = last[0]
            if len(last) > 1: self.mods = last[1]
        self.ops = [o.strip() for o in ops]
        mn = self.mn
        self.kind = 'other'; self.w = []; self.r = []; self.passes = 0
        R = [regs_of(o) for o in self.ops]
        flat = lambda l: [x for y in l for x in y]
        if mn.startswith('v_mfma'):
            self.kind = 'mfma'; self.w = R[0]; self.ra = R[1] + R[2]; self.rc = R[3]; self.r = self.ra + self.rc
            self.passes = 8 if '32x32x16' in mn else 4 if ('16x16x32' in mn or '16x16x16' in mn) else None
            assert self.passes, mn
        elif mn.startswith('v_'):
            self.kind = 'valu'
            nd = 1
            if mn.startswith(('v_add_co', 'v_sub_co', 'v_addc_co', 'v_mad_u64')): nd = 2
            if mn.startswith(('v_swap', 'v_permlane32_swap', 'v_permlane16_swap')): nd = 2
            self.w = flat(R[:nd]); self.r = flat(R[nd:])
            if mn.startswith(('v_fmac', 'v_swap', 'v_permlane32_swap', 'v_permlane16_swap', 'v_writelane', 'v_pk_fmac')) or 'dpp' in mn or 'quad_perm' in self.mods or 'row_' in self.mods: self.r += flat(R[:nd])
            if mn.startswith('v_cmpx'): self.w += [('s', 126), ('s', 127)]
            self.trans = mn.replace('_e32', '').replace('_e64', '') in TRANS
            self.dpp = ('dpp' in mn) or ('quad_perm' in self.mods) or ('row_' in self.mods)
        elif mn.startswith('ds_'):
            self.kind = 'ds'
            if mn.startswith(('ds_read', 'ds_bpermute', 'ds_permute', 'ds_swizzle')) or '_rtn' in mn: self.w = R[0]; self.r = flat(R[1:])
            else: self.r = flat(R)
        elif mn.startswith(('buffer_', 'global_')):
            self.kind = 'vmem'
            self.lds = bool(re.search(r'\blds\b', self.mods)) or 'load_lds' in mn
            isld = '_load' in mn or ('atomic' in mn and re.search(r'\bsc0\b', self.mods))
            if self.lds: self.r = flat(R) + [('s', 124)]
            elif isld:
                self.w = R[0]; self.r = flat(R[1:])
                if 'd16' in mn or 'atomic' in mn: self.r += R[0]
            else: self.r = flat(R)
            self.wide = None
            if '_store' in mn and ('x3' in mn or 'x4' in mn): self.wide = R[0] if mn.startswith('buffer_') else R[1]
        elif mn.startswith('s_'):
            self.kind = 'salu'
            if mn.startswith(('s_cmp', 's_cbranch', 's_branch', 's_waitcnt', 's_barrier', 's_nop', 's_sleep', 's_endpgm', 's_setprio', 's_setpc', 's_bitcmp')): self.r = flat(R)
            else:
                self.w = R[0] if R else []; self.r = flat(R[1:])
                if 'saveexec' in mn: self.w += [('s', 126), ('s', 127)]
        self.states = 1
        if mn == 's_nop': self.states = int(self.ops[0], 0) + 1

def need(p, c):
    n = 0
    W = set(p.w)
    if p.kind == 'valu':
        vw = {x for x in W if x[0] != 's'}; sw = {x for x in W if x[0] == 's'}
        if c.kind == 'mfma' and vw & set(c.r): n = max(n, 2)
        if c.kind == 'mfma' and sw & {('s', 126), ('s', 127)}: n = max(n, 4)
        if c.kind == 'valu':
            if p.trans and not c.trans and vw & set(c.r): n = max(n, 1)
            if p.trans and c.trans and vw & set(c.r): n = max(n, 1)
            if c.mn.startswith(('v_readfirstlane', 'v_readlane')) and vw & set(c.r): n = max(n, 1)
            if (c.dpp or c.mn.startswith('v_permlane')) and vw & set(c.r): n = max(n, 2)
            if sw & set(c.r): n = max(n, 4 if c.mn.startswith(('v_readlane', 'v_writelane')) else 2)
            if sw & {('s', 126), ('s', 127)} and (c.dpp or c.mn.startswith(('v_read', 'v_permlane', 'v_writelane'))): n = max(n, 5)
        if c.kind == 'vmem' and sw & set(c.r): n = max(n, 5)
        if c.kind == 'salu' and sw & set(c.r): n = max(n, 2)
        if p.trans and c.kind in ('ds', 'vmem') and vw & set(c.r): n = max(n, 1)
    if p.kind == 'mfma':
        P = p.passes
        if c.kind == 'mfma':
            if W & set(c.ra): n = max(n, P + 4)
            if W & set(c.rc):
                if not (c.rc == p.w and c.passes == P): n = max(n, P + 2)
            elif W & set(c.w): n = max(n, P + 2)
        elif c.kind in ('valu', 'ds', 'vmem'):
            if W & (set(c.r) | set(c.w)): n = max(n, P + 4)
            if c.kind == 'valu' and set(p.rc) & set(c.w): n = max(n, P - 1)
    if p.kind == 'salu':
        if ('s', 124) in W and c.kind == 'vmem' and c.lds: n = max(n, 1)
    if p.kind == 'vmem' and p.wide:
        if set(p.wide) & set(c.w): n = max(n, 2 if c.kind in ('valu', 'mfma') else 1)
    return n

class Asm:
    def __init__(self):
        self.lines = []
        self.hist = []
        self.nops = 0
    def raw(self, t): self.lines.append(t)
    def label(self, name): self.lines.append(name + ':')
    def comment(self, t): self.lines.append('    ; ' + t)
    def fence(self, n=13):
        self.hist = []
    def __call__(self, text):
        for t in text.strip().split('\n'):
            t = t.strip()
            if not t or t.startswith(';'):
                continue
            if t.endswith(':'):
                self.label(t[:-1]); continue
            c = Ins(t)
            dist = 0; pad = 0
            for p in reversed(self.hist):
                n = need(p, c)
                if n - dist > pad: pad = n - dist
                dist += p.states
                if dist > 24: break
            while pad > 0:
                k = min(pad, 16)
                nop = Ins(f's_nop {k-1}')
                self.lines.append(f'    s_nop {k-1}')
                self.hist.append(nop); self.nops += k
                pad -= k
            self.lines.append('    ' + t)
            self.hist.append(c)
            if len(self.hist) > 40: self.hist = self.hist[-30:]
    def text(self): return '\n'.join(self.lines) + '\n'
```

```python
import sys, math, struct
import numpy as np
from asmlib import Asm, v, s

NAME = "concat_heads__spectral_gfnet__spectral_gfnet__prompt"
OPT = dict(stamp=0, special=1, fs1=32, fs2=4, sleep=1)
for a_ in sys.argv[2:]:
    k_, v_ = a_.split('='); OPT[k_] = int(v_)

def fbits(x): return "0x%08x" % struct.unpack('<I', struct.pack('<f', x))[0]
def bf16(x):
    u = np.asarray(x, dtype=np.float32).view(np.uint32)
    return ((u + 0x7FFF + ((u >> 16) & 1)) >> 16).astype(np.uint32)

T1 = 0
T2 = 8 << 20
AUX = 16 << 20
T1X = AUX
T2X = AUX + 0x4000
WX = AUX + 0x8000
FS1 = OPT['fs1']; FS2 = OPT['fs2']
F1 = AUX + 0x10000
F2 = AUX + 0x60000
FX1 = AUX + 0x70000
FX2 = AUX + 0x78000
EW = AUX + 0x7c000
STAMP = AUX + 0x100000
WSZ = 32 << 20
XOFF = 0
EXOFF = 32768
PS = 5184
OS = 8320
WOFF = EXOFF + 5 * OS
M2OFF = WOFF + 32768
X5OFF = M2OFF + 32768
LDSZ = X5OFF + 8192
EX2 = WOFF
PS2 = 4160
sW, sM, sRHO, sSB, sA, sGRP, sTAG = 3, 4, 5, 6, 7, 32, 33
X_, WR_, WI_, OUT_, WS_, TAB_ = 8, 12, 16, 20, 24, 28
sT = list(range(34, 50))
sRET = 50
sE = 52
sCNT = 53
sIMG, sOIMG, sFA, sFB, sFC = 54, 55, 56, 57, 58
sST = 60
srd = lambda b: s(b, 4)

A = Asm()
M32 = "v_mfma_f32_32x32x16_bf16"
M16 = "v_mfma_f32_16x16x32_bf16"
def m32(d, a, b, c): A(f"{M32} {v(d,16)}, {v(a,4)}, {v(b,4)}, {v(c,16) if c is not None else 0}")
def m16(d, a, b, c): A(f"{M16} {v(d,4)}, {v(a,4)}, {v(b,4)}, {v(c,4) if c is not None else 0}")
def cvt(d, a, b, na=False, nb=False): A(f"v_cvt_pk_bf16_f32 {v(d)}, {'-' if na else ''}{v(a)}, {'-' if nb else ''}{v(b)}")
nstamp = [0]
def stamp():
    if OPT['stamp']:
        i = nstamp[0]; nstamp[0] += 1
        A(f"s_memrealtime {s(sST + 2*i, 2)}")

vL = 1
vT = list(range(2, 16))
TC, TS = 16, 32
FC, FS, FN = 48, 56, 64
M3 = 72
GR, GI = 80, 96
XR, XI = 112, 120
D1R, D1I = 128, 144
D2R, D2I = 160, 176
TMP = 192
PH = 224
WRF, WIF = 16, 48
FR = 80
DRE, DIM, DNR = 144, 160, 176
ER, EI = 192, 224

def poll(label, addr_v, soff, nd, tagreg=sTAG, mask=None):
    t0, t1 = vT[12], vT[13]
    A(f"s_mov_b32 {s(sCNT)}, 0x8000")
    A.label(label)
    A(f"buffer_load_dword {v(t0)}, {v(addr_v)}, {srd(WS_)}, {s(soff)} offen sc1")
    if nd == 2:
        A(f"buffer_load_dword {v(t1)}, {v(addr_v)}, {srd(WS_)}, {s(soff)} offen offset:{FS1*64 if FS1*64 < 4096 else 0} sc1")
        assert FS1 * 64 < 4096
    A(f"s_sub_u32 {s(sCNT)}, {s(sCNT)}, 1")
    A(f"s_cbranch_scc1 {label}_out")
    A("s_waitcnt vmcnt(0)")
    A(f"v_cmp_ne_u32 vcc, {s(tagreg)}, {v(t0)}")
    if nd == 2:
        A(f"v_cmp_ne_u32 {s(sT[14],2)}, {s(tagreg)}, {v(t1)}")
        A(f"s_or_b64 vcc, vcc, {s(sT[14],2)}")
    else:
        A("s_nop 1")
        A("s_or_b64 vcc, vcc, vcc")
    A(f"s_cbranch_scc0 {label}_out")
    if OPT['sleep']: A(f"s_sleep {OPT['sleep']}")
    A(f"s_branch {label}")
    A.label(label + "_out")
    A("s_waitcnt vmcnt(0)")

def gen_tables(with_g):
    a_, b_ = vT[12], vT[13]
    A(f"v_and_b32 {v(a_)}, 31, {v(vL)}")
    A(f"v_cvt_f32_u32 {v(a_)}, {v(a_)}")
    A(f"v_lshrrev_b32 {v(b_)}, 5, {v(vL)}")
    A(f"v_cvt_f32_u32 {v(b_)}, {v(b_)}")
    A(f"v_mul_f32 {v(a_)}, {fbits(1/1024)}, {v(a_)}")
    A(f"v_mul_f32 {v(b_)}, 4.0, {v(b_)}")
    A(f"v_mul_f32 {v(b_)}, {v(a_)}, {v(b_)}")
    for i in range(16):
        A(f"v_fmamk_f32 {v(PH+i)}, {v(a_)}, {fbits(8*(i>>2)+(i&3))}, {v(b_)}")
    A(f"s_mov_b32 {s(sT[0])}, {fbits(32.0)}")
    for i in range(16):
        A(f"v_mul_f32 {v(PH+16+i)}, {s(sT[0])}, {v(PH+i)}")
        A(f"v_cos_f32 {v(TMP+i)}, {v(PH+16+i)}")
        A(f"v_sin_f32 {v(TMP+16+i)}, {v(PH+16+i)}")
    for i in range(8):
        A(f"v_cos_f32 {v(TC+2*i)}, {v(PH+2*i)}")
        cvt(FC+i, TMP+2*i, TMP+2*i+1)
        A(f"v_cos_f32 {v(TC+2*i+1)}, {v(PH+2*i+1)}")
        cvt(FS+i, TMP+16+2*i, TMP+16+2*i+1)
        A(f"v_sin_f32 {v(TS+2*i)}, {v(PH+2*i)}")
        cvt(FN+i, TMP+16+2*i, TMP+16+2*i+1, True, True)
        A(f"v_sin_f32 {v(TS+2*i+1)}, {v(PH+2*i+1)}")
    if with_g:
        for i in range(16):
            cvt(GR+i, TMP+i, TMP+16+i, False, True)
            cvt(GI+i, TMP+16+i, TMP+i)

def twiddle(dr, di, outr, outi, conj):
    for i in range(0, 16, 2):
        t = TMP + (i % 8) * 2
        for e in range(2):
            A(f"v_mul_f32 {v(t+e)}, {v(dr+i+e)}, {v(TC+i+e)}")
            A(f"v_mul_f32 {v(t+2+e)}, {v(di+i+e)}, {v(TC+i+e)}")
        for e in range(2):
            if not conj:
                A(f"v_fmac_f32 {v(t+e)}, {v(di+i+e)}, {v(TS+i+e)}")
                A(f"v_fma_f32 {v(t+2+e)}, -{v(dr+i+e)}, {v(TS+i+e)}, {v(t+2+e)}")
            else:
                A(f"v_fma_f32 {v(t+e)}, -{v(di+i+e)}, {v(TS+i+e)}, {v(t+e)}")
                A(f"v_fmac_f32 {v(t+2+e)}, {v(dr+i+e)}, {v(TS+i+e)}")
        cvt(outr + i//2, t, t+1)
        cvt(outi + i//2, t+2, t+3)

A.raw(f"; @launch grid=(256,1,1) block=(512,1,1) lds={LDSZ}")
A.raw('.amdgcn_target "amdgcn-amd-amdhsa--gfx950"\n.text')
A.raw(f".globl {NAME}_kernel\n.p2align 8\n.type {NAME}_kernel,@function")
A.label(f"{NAME}_kernel")
A(f"""
s_cmp_ge_u32 s2, 256
s_cbranch_scc1 L_end
s_bfe_u32 {s(sM)}, s2, 0x10003
s_mul_i32 {s(sT[0])}, {s(sM)}, 24
s_load_dwordx2 {s(X_,2)}, s[0:1], {s(sT[0])}
s_load_dwordx2 {s(WR_,2)}, s[0:1], {s(sT[0])} offset:8
s_load_dwordx2 {s(WI_,2)}, s[0:1], {s(sT[0])} offset:16
s_load_dwordx2 {s(OUT_,2)}, s[0:1], 48
s_load_dwordx2 {s(WS_,2)}, s[0:1], 64
v_lshrrev_b32 v2, 6, v0
v_and_b32 {v(vL)}, 63, v0
v_readfirstlane_b32 {s(sW)}, v2
s_and_b32 {s(sT[1])}, s2, 7
s_lshr_b32 {s(sT[2])}, s2, 4
s_lshl_b32 {s(sRHO)}, {s(sT[1])}, 4
s_add_u32 {s(sRHO)}, {s(sRHO)}, {s(sT[2])}
s_and_b32 {s(sSB)}, {s(sRHO)}, 31
s_lshl_b32 {s(sSB)}, {s(sSB)}, 2
s_lshr_b32 {s(sT[3])}, {s(sRHO)}, 5
s_add_u32 {s(sSB)}, {s(sSB)}, {s(sT[3])}
s_mov_b32 {s(X_+2)}, 4194304
s_mov_b32 {s(X_+3)}, 0x20000
v_lshlrev_b32 v2, 4, {v(vL)}
s_lshl_b32 {s(sT[3])}, {s(sW)}, 7
s_add_u32 {s(sT[3])}, {s(sT[3])}, {s(sSB)}
s_lshl_b32 {s(sT[3])}, {s(sT[3])}, 11
s_add_u32 {s(sT[4])}, {s(sT[3])}, 0x200000
s_lshl_b32 {s(sT[5])}, {s(sW)}, 12
s_mov_b32 m0, {s(sT[5])}
""")
stamp()
A(f"""
s_waitcnt lgkmcnt(0)
buffer_load_dwordx4 v2, {srd(X_)}, {s(sT[3])} offen lds
buffer_load_dwordx4 v2, {srd(X_)}, {s(sT[3])} offen offset:1024 lds
s_add_u32 m0, {s(sT[5])}, 2048
s_lshl_b32 {s(sA)}, {s(sT[1])}, 1
buffer_load_dwordx4 v2, {srd(X_)}, {s(sT[4])} offen lds
buffer_load_dwordx4 v2, {srd(X_)}, {s(sT[4])} offen offset:1024 lds
""")
A(f"""
s_getpc_b64 {s(TAB_,2)}
L_pc:
s_mov_b32 {s(TAB_+2)}, L_tab_end-L_pc
s_mov_b32 {s(TAB_+3)}, 0x20000
v_lshlrev_b32 v3, 5, v0
buffer_load_dword {v(GR)}, v3, {srd(TAB_)}, 0 offen
s_mov_b32 {s(WS_+2)}, {WSZ}
s_mov_b32 {s(WS_+3)}, 0x20000
s_lshl_b32 {s(sT[6])}, {s(sM)}, 8
s_add_u32 {s(sT[6])}, {s(sT[6])}, {EW}
s_load_dword {s(sE)}, {s(WS_,2)}, {s(sT[6])}
s_lshr_b32 {s(sT[6])}, {s(sT[2])}, 3
s_add_u32 {s(sA)}, {s(sA)}, {s(sT[6])}
s_and_b32 {s(sGRP)}, {s(sT[2])}, 7
s_mov_b32 {s(WR_+2)}, 2101248
s_mov_b32 {s(WR_+3)}, 0x20000
s_mov_b32 {s(WI_+2)}, 2101248
s_mov_b32 {s(WI_+3)}, 0x20000
s_mov_b32 {s(OUT_+2)}, 8388608
s_mov_b32 {s(OUT_+3)}, 0x20000
""")
A(f"""
v_lshrrev_b32 v5, 3, {v(vL)}
v_mul_u32_u24 v5, 16416, v5
v_lshrrev_b32 v6, 4, {v(vL)}
v_and_b32 v7, 7, {v(vL)}
v_xor_b32 v6, v6, v7
v_xor_b32 v7, 4, v6
v_lshl_add_u32 v6, v6, 4, v5
v_lshl_add_u32 v7, v7, 4, v5
s_lshl_b32 {s(sT[6])}, {s(sW)}, 8
s_add_u32 {s(sT[6])}, {s(sT[6])}, {s(sA)}
s_mul_i32 {s(sT[6])}, {s(sT[6])}, 1026
s_lshl_b32 {s(sT[7])}, {s(sGRP)}, 7
s_add_u32 {s(sT[6])}, {s(sT[6])}, {s(sT[7])}
s_add_u32 {s(sT[7])}, {s(sT[6])}, {128*1026}
s_lshl_b32 {s(sT[8])}, {s(sW)}, 11
s_add_u32 m0, {s(sT[8])}, {WOFF}
s_nop 0
buffer_load_dwordx4 v6, {srd(WR_)}, {s(sT[6])} offen lds
s_add_u32 m0, {s(sT[8])}, {WOFF+1024}
s_nop 0
buffer_load_dwordx4 v7, {srd(WR_)}, {s(sT[7])} offen lds
s_add_u32 m0, {s(sT[8])}, {WOFF+16384}
s_nop 0
buffer_load_dwordx4 v6, {srd(WI_)}, {s(sT[6])} offen lds
s_add_u32 m0, {s(sT[8])}, {WOFF+16384+1024}
s_nop 0
buffer_load_dwordx4 v7, {srd(WI_)}, {s(sT[7])} offen lds
s_add_u32 m0, {s(sT[5])}, {M2OFF}
s_add_u32 {s(sT[6])}, {s(sT[5])}, L_tab-L_pc
buffer_load_dwordx4 v2, {srd(TAB_)}, {s(sT[6])} offen lds
buffer_load_dwordx4 v2, {srd(TAB_)}, {s(sT[6])} offen offset:1024 lds
buffer_load_dwordx4 v2, {srd(TAB_)}, {s(sT[6])} offen offset:2048 lds
buffer_load_dwordx4 v2, {srd(TAB_)}, {s(sT[6])} offen offset:3072 lds
""")
NAFTERX = 9
SPW = 3
if OPT['special']:
    A(f"""
    v_and_b32 v8, 15, {v(vL)}
    v_lshrrev_b32 v9, 2, v8
    v_and_b32 v10, 1, v8
    v_lshl_add_u32 v9, v9, 1, v10
    v_and_b32 v10, 2, v8
    v_lshl_add_u32 v9, v10, 2, v9
    v_mul_u32_u24 v9, 1026, v9
    s_mul_i32 {s(sT[6])}, {s(sRHO)}, 16416
    s_cmp_lg_u32 {s(sW)}, {SPW}
    s_cbranch_scc1 L_nogather
    buffer_load_ushort v11, v9, {srd(WR_)}, {s(sT[6])} offen offset:1024
    buffer_load_ushort v12, v9, {srd(WI_)}, {s(sT[6])} offen offset:1024
    L_nogather:
    """)
gen_tables(False)
c_, g_ = vT[0], vT[1]
A(f"""
v_and_b32 {v(c_)}, 15, {v(vL)}
v_lshrrev_b32 {v(g_)}, 4, {v(vL)}
v_lshrrev_b32 {v(PH)}, 1, {v(c_)}
v_and_b32 {v(PH+1)}, 1, {v(PH)}
s_bfe_u32 {s(sT[0])}, {s(sRHO)}, 0x10002
v_and_b32 {v(PH+2)}, 1, {v(c_)}
v_xor_b32 {v(PH+2)}, {s(sT[0])}, {v(PH+2)}
v_sub_u32 {v(PH+2)}, {v(PH+2)}, {v(PH+1)}
v_cvt_f32_i32 {v(PH+2)}, {v(PH+2)}
v_mov_b32 {v(PH+3)}, {fbits(0.125)}
v_fmamk_f32 {v(PH+2)}, {v(PH+2)}, {fbits(0.25)}, {v(PH+3)}
v_mul_u32_u24 {v(PH+1)}, 0x8000, {v(PH+1)}
v_lshl_or_b32 {v(PH+1)}, {v(PH+1)}, 16, {v(PH+1)}
v_cvt_f32_u32 {v(PH)}, {v(PH)}
v_add_f32 {v(PH+3)}, {fbits(8.0)}, {v(PH)}
v_lshl_add_u32 {v(PH+4)}, {v(g_)}, 8, {s(sSB)}
v_cvt_f32_u32 {v(PH+4)}, {v(PH+4)}
v_mul_f32 {v(PH+4)}, {fbits(1/2048)}, {v(PH+4)}
v_add_f32 {v(PH+5)}, {fbits(1/16)}, {v(PH+4)}
""")
for mt in range(2):
    for e in range(2):
        t = PH + 8 + (mt*2+e)*3
        A(f"v_fma_f32 {v(t)}, {v(PH+4+e)}, {v(PH if mt == 0 else PH+3)}, {v(PH+2)}")
        A(f"v_cos_f32 {v(t+1)}, {v(t)}")
        A(f"v_sin_f32 {v(t+2)}, {v(t)}")
for mt in range(2):
    for e in range(2):
        t = PH + 8 + (mt*2+e)*3
        cvt(M3 + mt*4 + 2*e, t+1, t+2)
        cvt(M3 + mt*4 + 2*e + 1, t+2, t+1)
        A(f"v_xor_b32 {v(M3 + mt*4 + 2*e + 1)}, {v(PH+1)}, {v(M3 + mt*4 + 2*e + 1)}")
aTR, aP, aQe, aQo, aRD, aST = vT[2], vT[3], vT[4], vT[5], vT[6], vT[7]
A(f"""
v_bfe_u32 {v(PH)}, {v(vL)}, 2, 2
v_lshrrev_b32 {v(PH+1)}, 5, {v(vL)}
v_lshl_add_u32 {v(PH)}, {v(PH+1)}, 2, {v(PH)}
v_lshlrev_b32 {v(PH)}, 6, {v(PH)}
v_and_b32 {v(PH+2)}, 16, {v(vL)}
v_lshl_add_u32 {v(PH)}, {v(PH+2)}, 1, {v(PH)}
v_and_b32 {v(PH+2)}, 3, {v(vL)}
v_lshl_add_u32 {v(PH)}, {v(PH+2)}, 3, {v(PH)}
v_add_u32 {v(aTR)}, {s(sT[5])}, {v(PH)}
""")
A(f"""
s_mul_i32 {s(sT[0])}, {s(sW)}, {PS}
s_add_u32 {s(sT[0])}, {s(sT[0])}, {EXOFF}
v_and_b32 {v(PH+3)}, 31, {v(vL)}
v_mul_u32_u24 {v(PH+4)}, 20, {v(PH+2)}
v_lshrrev_b32 {v(PH+5)}, 2, {v(PH+3)}
v_mul_u32_u24 {v(PH+6)}, 160, {v(PH+1)}
v_add3_u32 {v(PH+4)}, {v(PH+4)}, {v(PH+5)}, {v(PH+6)}
v_lshl_add_u32 {v(aP)}, {v(PH+4)}, 3, {s(sT[0])}
v_sub_u32 {v(PH+3)}, 32, {v(PH+3)}
v_and_b32 {v(PH+4)}, 3, {v(PH+3)}
v_mul_u32_u24 {v(PH+4)}, 20, {v(PH+4)}
v_lshrrev_b32 {v(PH+5)}, 2, {v(PH+3)}
v_sub_u32 {v(PH+6)}, 160, {v(PH+6)}
v_add3_u32 {v(PH+4)}, {v(PH+4)}, {v(PH+5)}, {v(PH+6)}
v_lshl_add_u32 {v(aQe)}, {v(PH+4)}, 3, {s(sT[0])}
v_and_b32 {v(PH+3)}, 32, {v(PH+3)}
v_lshl_add_u32 {v(aQo)}, {v(PH+3)}, 4, {v(aQe)}
""")
A(f"""
s_mul_i32 {s(sT[0])}, {s(sW)}, 640
s_add_u32 {s(sT[0])}, {s(sT[0])}, {EXOFF}
v_mul_u32_u24 {v(PH)}, {2*PS}, {v(g_)}
v_lshl_add_u32 {v(PH)}, {v(c_)}, 3, {v(PH)}
v_add_u32 {v(aRD)}, {s(sT[0])}, {v(PH)}
v_lshlrev_b32 {v(PH)}, 19, {v(g_)}
v_lshl_add_u32 {v(aST)}, {v(c_)}, 4, {v(PH)}
""")
A(f"""
s_lshl_b32 {s(sT[8])}, {s(sM)}, 22
s_lshl_b32 {s(sT[0])}, {s(sW)}, 15
s_add_u32 {s(sT[8])}, {s(sT[8])}, {s(sT[0])}
s_lshl_b32 {s(sT[0])}, {s(sRHO)}, 8
s_add_u32 {s(sT[8])}, {s(sT[8])}, {s(sT[0])}
s_add_u32 {s(sT[9])}, {s(sT[8])}, {1<<18}
s_add_u32 {s(sT[10])}, {s(sT[8])}, {8<<18}
s_add_u32 {s(sT[11])}, {s(sT[8])}, {9<<18}
""")
stamp()
if OPT['special']:
    A(f"""
    s_cmp_lg_u32 {s(sW)}, {SPW}
    s_cbranch_scc1 L_xw0
    s_waitcnt vmcnt({NAFTERX+2})
    s_branch L_xw1
    L_xw0:
    s_waitcnt vmcnt({NAFTERX})
    L_xw1:
    """)
else:
    A(f"s_waitcnt vmcnt({NAFTERX})")
stamp()
for comp, dst in ((0, XR), (1, XI)):
    for t in range(2):
        for j in range(2):
            A(f"ds_read_b64_tr_b16 {v(dst+4*t+2*j,2)}, {v(aTR)} offset:{comp*2048+t*1024+j*512}")
A("s_waitcnt lgkmcnt(0)")
A(f"s_mul_i32 {s(sTAG)}, {s(sE)}, 0x9E3779B1")
A(f"s_add_u32 {s(sTAG)}, {s(sTAG)}, 0x7F4A7C15")
m32(D1R, XR, FC, None); m32(D1I, XR, FN, None)
m32(D1R, XR+4, FC+4, D1R); m32(D1I, XR+4, FN+4, D1I)
m32(D1R, XI, FS, D1R); m32(D1I, XI, FC, D1I)
m32(D1R, XI+4, FS+4, D1R); m32(D1I, XI+4, FC+4, D1I)
twiddle(D1R, D1I, XR, XI, False)
m32(D2R, FC, XR, None); m32(D2I, FN, XR, None)
m32(D2R, FS, XI, D2R); m32(D2I, FC, XI, D2I)
m32(D2R, FC+4, XR+4, D2R); m32(D2I, FN+4, XR+4, D2I)
m32(D2R, FS+4, XI+4, D2R); m32(D2I, FC+4, XI+4, D2I)
for i in range(16):
    cvt(TMP+i, D2R+i, D2I+i)
    kd2 = 8*(i >> 2) + (i & 3)
    if i < 8:
        A(f"ds_write_b32 {v(aP)}, {v(TMP+i)} offset:{(80*(kd2>>1)+8*(kd2&1))*8}")
    else:
        e = 31 - kd2 - 4
        A(f"ds_write_b32 {v(aQo if e & 1 else aQe)}, {v(TMP+i)} offset:{(80*(e>>1)+8*(e&1))*8+4}")
A(f"""
s_mov_b64 exec, 1
ds_write_b32 {v(aP)}, {v(TMP)} offset:4
ds_write_b32 {v(aP)}, {v(TMP+8)} offset:{640*8}
s_mov_b64 exec, -1
s_waitcnt lgkmcnt(0)
s_barrier
""")
stamp()
if OPT['special']:
    A(f"""
    s_cmp_lg_u32 {s(sW)}, {SPW}
    s_cbranch_scc1 L_nosp1
    v_mul_u32_u24 {v(PH)}, {2*PS}, {v(g_)}
    ds_read_b64 {v(XR,2)}, {v(PH)} offset:{EXOFF+640*8}
    ds_read_b64 {v(XR+2,2)}, {v(PH)} offset:{EXOFF+640*8+PS}
    s_lshl_b32 {s(sT[0])}, {s(sM)}, 13
    s_lshl_b32 {s(sT[1])}, {s(sRHO)}, 6
    s_add_u32 {s(sT[0])}, {s(sT[0])}, {s(sT[1])}
    s_add_u32 {s(sT[1])}, {s(sT[0])}, {WX}
    s_add_u32 {s(sT[0])}, {s(sT[0])}, {T1X}
    v_lshlrev_b32 {v(PH+1)}, 2, {v(vL)}
    v_lshlrev_b32 {v(PH+2)}, 4, {v(g_)}
    s_waitcnt vmcnt(0) lgkmcnt(0)
    """)
    m16(D1R, M3, XR, None); m16(D1R+4, M3+4, XR, None)
    A("v_lshl_or_b32 v11, v12, 16, v11")
    A(f"s_mov_b64 exec, 0xffff")
    A(f"buffer_store_dword v11, {v(PH+1)}, {srd(WS_)}, {s(sT[1])} offen sc1")
    A(f"s_mov_b64 exec, -1")
    cvt(TMP, D1R, D1R+2); cvt(TMP+1, D1R+4, D1R+6); cvt(TMP+2, D1R+1, D1R+3); cvt(TMP+3, D1R+5, D1R+7)
    A(f"""
    s_mov_b32 exec_lo, 0x00010001
    s_mov_b32 exec_hi, 0x00010001
    buffer_store_dwordx4 {v(TMP,4)}, {v(PH+2)}, {srd(WS_)}, {s(sT[0])} offen sc1
    s_mov_b64 exec, -1
    s_nop 1
    L_nosp1:
    """)
for t in range(4):
    for jj in range(2):
        A(f"ds_read_b64 {v(XR+4*t+2*jj,2)}, {v(aRD)} offset:{160*t+PS*jj}")
for t in range(4):
    A(f"s_waitcnt lgkmcnt({6-2*t})")
    m16(D1R+8*t, M3, XR+4*t, None); m16(D1R+8*t+4, M3+4, XR+4*t, None)
for mt in range(2):
    for al in range(2):
        o = TMP + 4 + (mt*2+al)*4
        d = D1R + 4*mt + 2*al
        cvt(o, d, d+8); cvt(o+1, d+16, d+24); cvt(o+2, d+1, d+9); cvt(o+3, d+17, d+25)
        A(f"buffer_store_dwordx4 {v(o,4)}, {v(aST)}, {srd(WS_)}, {s(sT[8+mt*2+al])} offen sc1")
stamp()
A(f"""
s_lshl_b32 {s(sT[0])}, {s(sM)}, 3
s_add_u32 {s(sT[1])}, {s(sT[0])}, {s(sW)}
s_lshl_b32 {s(sT[1])}, {s(sT[1])}, 7
s_add_u32 {s(sT[1])}, {s(sT[1])}, {s(sRHO)}
s_mul_i32 {s(sT[1])}, {s(sT[1])}, {FS1}
s_add_u32 {s(sT[1])}, {s(sT[1])}, {F1}
v_mov_b32 {v(PH)}, {s(sTAG)}
v_mov_b32 {v(PH+1)}, 0
s_waitcnt vmcnt(4)
""")
if OPT['special']:
    A(f"""
    s_cmp_lg_u32 {s(sW)}, {SPW}
    s_cbranch_scc1 L_nosp2
    s_lshl_b32 {s(sT[2])}, {s(sM)}, 7
    s_add_u32 {s(sT[2])}, {s(sT[2])}, {s(sRHO)}
    s_mul_i32 {s(sT[2])}, {s(sT[2])}, {FS1}
    s_add_u32 {s(sT[2])}, {s(sT[2])}, {FX1}
    s_mov_b64 exec, 1
    buffer_store_dword {v(PH)}, {v(PH+1)}, {srd(WS_)}, {s(sT[2])} offen sc1
    s_mov_b64 exec, -1
    L_nosp2:
    """)
A(f"""
s_barrier
s_waitcnt vmcnt(0)
s_mov_b64 exec, 1
buffer_store_dword {v(PH)}, {v(PH+1)}, {srd(WS_)}, {s(sT[1])} offen sc1
s_mov_b64 exec, -1
""")
stamp()
aW, aF, aRe, aIm, aO, aD, aPl = vT[2], vT[3], vT[4], vT[5], vT[6], vT[7], vT[8]
sSRC, sPL, sSTR = sT[2], sT[3], sT[4]
A(f"""
s_cmp_lt_u32 {s(sW)}, 4
s_cbranch_scc1 L_p2reg
""")
if OPT['special']:
    A(f"""
    s_cmp_lg_u32 {s(sW)}, 4
    s_cbranch_scc1 L_p2done
    s_cmp_lg_u32 {s(sRHO)}, 0
    s_cbranch_scc1 L_p2done
    """)
    A(f"""
    s_mov_b32 {s(sIMG)}, {X5OFF}
    s_mov_b32 {s(sFA)}, 1
    s_mov_b32 {s(sFB)}, 1
    s_lshl_b32 {s(sSRC)}, {s(sM)}, 13
    s_add_u32 {s(sT[5])}, {s(sSRC)}, {WX}
    s_add_u32 {s(sSRC)}, {s(sSRC)}, {T1X}
    s_mul_i32 {s(sPL)}, {s(sM)}, {128*FS1}
    s_add_u32 {s(sPL)}, {s(sPL)}, {FX1}
    s_mov_b32 {s(sSTR)}, 1024
    v_lshlrev_b32 {v(aD)}, 4, {v(vL)}
    v_mul_u32_u24 {v(aPl)}, {FS1}, {v(vL)}
    v_lshlrev_b32 {v(aW)}, 6, {v(c_)}
    v_lshl_add_u32 {v(aW)}, {v(g_)}, 4, {v(aW)}
    s_add_u32 {s(sT[6])}, {s(sT[5])}, 4096
    """)
    poll("L_pollx", aPl, sPL, 2)
    for t in range(8):
        A(f"buffer_load_dwordx4 {v(ER+4*t,4)}, {v(aW)}, {srd(WS_)}, {s(sT[5+(t>>2)])} offen offset:{(t&3)*1024} sc1")
    A("s_branch L_p2common")
else:
    A("s_branch L_p2done")
A.label("L_p2reg")
A(f"""
s_lshl_b32 {s(sIMG)}, {s(sW)}, 13
s_mov_b32 {s(sFA)}, 0
s_mov_b32 {s(sFB)}, 16
s_lshl_b32 {s(sSRC)}, {s(sM)}, 4
s_add_u32 {s(sSRC)}, {s(sSRC)}, {s(sA)}
s_lshl_b32 {s(sSRC)}, {s(sSRC)}, 3
s_add_u32 {s(sSRC)}, {s(sSRC)}, {s(sGRP)}
s_lshl_b32 {s(sSRC)}, {s(sSRC)}, 15
s_lshl_b32 {s(sT[5])}, {s(sW)}, 6
s_add_u32 {s(sSRC)}, {s(sSRC)}, {s(sT[5])}
s_add_u32 {s(sPL)}, {s(sT[0])}, {s(sGRP)}
s_mul_i32 {s(sPL)}, {s(sPL)}, {128*FS1}
s_add_u32 {s(sPL)}, {s(sPL)}, {F1}
s_mov_b32 {s(sSTR)}, 4096
v_lshrrev_b32 {v(aD)}, 2, {v(vL)}
v_and_b32 {v(aPl)}, 3, {v(vL)}
v_lshlrev_b32 {v(aPl)}, 4, {v(aPl)}
v_lshl_add_u32 {v(aD)}, {v(aD)}, 8, {v(aPl)}
v_mul_u32_u24 {v(aPl)}, {FS1}, {v(vL)}
""")
A(f"""
s_lshl_b32 {s(sT[5])}, {s(sW)}, 1
v_and_b32 {v(aW)}, 1, {v(g_)}
v_or_b32 {v(aW)}, {s(sT[5])}, {v(aW)}
v_lshrrev_b32 {v(aF)}, 1, {v(c_)}
v_xor_b32 {v(aW)}, {v(aW)}, {v(aF)}
v_lshlrev_b32 {v(aW)}, 4, {v(aW)}
v_lshl_add_u32 {v(aW)}, {v(c_)}, 7, {v(aW)}
v_lshrrev_b32 {v(aF)}, 1, {v(g_)}
v_lshl_add_u32 {v(aW)}, {v(aF)}, 14, {v(aW)}
v_add_u32 {v(aW)}, {WOFF}, {v(aW)}
""")
for t in range(8):
    A(f"ds_read_b128 {v(ER+4*t,4)}, {v(aW)} offset:{t*2048}")
A.label("L_p2common")
A(f"v_lshlrev_b32 {v(aF)}, 4, {v(vL)}")
A(f"v_add_u32 {v(aF)}, {M2OFF}, {v(aF)}")
A("s_waitcnt lgkmcnt(0)")
for f in range(16):
    A(f"ds_read_b128 {v(FR+4*f,4)}, {v(aF)} offset:{f*1024}")
A(f"""
v_lshlrev_b32 {v(DIM)}, {s(sFA)}, {v(c_)}
v_lshlrev_b32 {v(DIM+1)}, 3, {v(g_)}
v_sub_u32 {v(DIM)}, {v(DIM)}, {v(DIM+1)}
v_add_u32 {v(DIM+1)}, {s(sFB)}, {v(DIM)}
v_mov_b32 {v(DIM+4)}, 0x3500
""")
for q in range(2):
    A(f"v_and_b32 {v(DIM+2)}, 1, {v(DIM+q)}")
    A(f"v_lshlrev_b32 {v(DIM+2)}, 4, {v(DIM+2)}")
    A(f"v_lshlrev_b32 {v(DIM+2)}, {v(DIM+2)}, {v(DIM+4)}")
    A(f"v_ashrrev_i32 {v(DIM+3)}, 1, {v(DIM+q)}")
    for j in range(4):
        A(f"v_cmp_eq_u32 vcc, {j}, {v(DIM+3)}")
        A(f"v_cndmask_b32 {v(DRE+4*q+j)}, 0, {v(DIM+2)}, vcc")
A(f"""
v_and_b32 {v(aRe)}, 1, {v(g_)}
v_lshlrev_b32 {v(aRe)}, 3, {v(aRe)}
v_lshl_add_u32 {v(aRe)}, {v(vL)}, 4, {v(aRe)}
v_add_u32 {v(aRe)}, {s(sIMG)}, {v(aRe)}
v_xor_b32 {v(aIm)}, 8, {v(aRe)}
s_mul_i32 {s(sOIMG)}, {s(sW)}, {OS}
s_add_u32 {s(sOIMG)}, {s(sOIMG)}, {EXOFF}
v_bfe_u32 {v(aO)}, {v(vL)}, 1, 2
v_xor_b32 {v(aO)}, {v(aO)}, {v(g_)}
v_lshlrev_b32 {v(aO)}, 4, {v(aO)}
v_lshl_add_u32 {v(aO)}, {v(c_)}, 6, {v(aO)}
v_add_u32 {v(aO)}, {s(sOIMG)}, {v(aO)}
s_waitcnt vmcnt(0)
""")
for t in range(8):
    m16(WRF+4*t, ER+4*t, DRE, None); m16(WIF+4*t, ER+4*t, DRE+4, None)
stamp()
poll("L_poll1", aPl, sPL, 2)
stamp()
A(f"s_mov_b32 m0, {s(sIMG)}")
for n in range(8):
    A(f"buffer_load_dwordx4 {v(aD)}, {srd(WS_)}, {s(sSRC)} offen sc1 lds")
    if n < 7:
        A(f"s_add_u32 m0, m0, 1024")
        A(f"s_add_u32 {s(sSRC)}, {s(sSRC)}, {s(sSTR)}")
A(f"s_mov_b32 {s(sT[5])}, 0x80008000")
for u in range(4):
    A(f"s_waitcnt vmcnt({6-2*u})")
    if u == 3: stamp()
    for j in range(2): A(f"ds_read_b64_tr_b16 {v(DRE+4*u+2*j,2)}, {v(aRe)} offset:{u*2048+j*1024}")
    for j in range(2): A(f"ds_read_b64_tr_b16 {v(DIM+4*u+2*j,2)}, {v(aIm)} offset:{u*2048+j*1024}")
    A("s_waitcnt lgkmcnt(0)" if OPT['stamp'] and u == 3 else "s_waitcnt lgkmcnt(2)")
    fc = lambda mt: FR + (u*4 + mt*2) * 4
    fs = lambda mt: FR + (u*4 + mt*2 + 1) * 4
    e = lambda mt: (u*2 + mt) * 4
    m16(ER+e(0), fc(0), DRE+4*u, None)
    for j in range(2): A(f"v_xor_b32 {v(DNR+4*u+j)}, {s(sT[5])}, {v(DRE+4*u+j)}")
    m16(ER+e(1), fc(1), DRE+4*u, None)
    for j in range(2, 4): A(f"v_xor_b32 {v(DNR+4*u+j)}, {s(sT[5])}, {v(DRE+4*u+j)}")
    A("s_waitcnt lgkmcnt(0)")
    m16(EI+e(0), fc(0), DIM+4*u, None); m16(EI+e(1), fc(1), DIM+4*u, None)
    m16(ER+e(0), fs(0), DIM+4*u, ER+e(0)); m16(ER+e(1), fs(1), DIM+4*u, ER+e(1))
    m16(EI+e(0), fs(0), DNR+4*u, EI+e(0)); m16(EI+e(1), fs(1), DNR+4*u, EI+e(1))
for f in range(12):
    A(f"ds_read_b128 {v(FR+4*f,4)}, {v(aF)} offset:{16384+f*1024}")
TT = FR + 48
def pk(op, d, a, b, c=None, na=False, nb=False):
    ops = f"{v(d,2)}, {v(a,2)}, {v(b,2)}" + (f", {v(c,2)}" if c is not None else "")
    n = [int(na), int(nb)] + ([0] if c is not None else [])
    mod = f" neg_lo:{n} neg_hi:{n}".replace(", ", ",") if (na or nb) else ""
    A(f"v_pk_{op}_f32 {ops}{mod}")
add = lambda d, a, b: pk("add", d, a, b)
sub = lambda d, a, b: pk("add", d, a, b, nb=True)
for mt in range(2):
    for rp in range(2):
        er = lambda u: ER + (u*2+mt)*4 + 2*rp
        ei = lambda u: EI + (u*2+mt)*4 + 2*rp
        wr = lambda q: WRF + (q*2+mt)*4 + 2*rp
        wi = lambda q: WIF + (q*2+mt)*4 + 2*rp
        tr = lambda i: TT + 4*i
        ti = lambda i: TT + 4*i + 2
        add(tr(0), er(0), er(2)); add(ti(0), ei(0), ei(2)); sub(tr(1), er(0), er(2)); sub(ti(1), ei(0), ei(2))
        add(tr(2), er(1), er(3)); add(ti(2), ei(1), ei(3)); sub(tr(3), er(1), er(3)); sub(ti(3), ei(1), ei(3))
        add(er(0), tr(0), tr(2)); add(ei(0), ti(0), ti(2)); sub(er(2), tr(0), tr(2)); sub(ei(2), ti(0), ti(2))
        add(er(1), tr(1), ti(3)); sub(ei(1), ti(1), tr(3)); sub(er(3), tr(1), ti(3)); add(ei(3), ti(1), tr(3))
        for q in range(4):
            pk("mul", tr(q), er(q), wr(q)); pk("mul", ti(q), er(q), wi(q))
        for q in range(4):
            pk("fma", tr(q), ei(q), wi(q), tr(q), na=True); pk("fma", ti(q), ei(q), wr(q), ti(q))
        add(er(0), tr(0), tr(2)); add(ei(0), ti(0), ti(2)); sub(er(1), tr(0), tr(2)); sub(ei(1), ti(0), ti(2))
        add(er(2), tr(1), tr(3)); add(ei(2), ti(1), ti(3)); sub(er(3), tr(1), tr(3)); sub(ei(3), ti(1), ti(3))
        add(tr(0), er(0), er(2)); add(ti(0), ei(0), ei(2)); sub(tr(2), er(0), er(2)); sub(ti(2), ei(0), ei(2))
        sub(tr(1), er(1), ei(3)); add(ti(1), ei(1), er(3)); add(tr(3), er(1), ei(3)); sub(ti(3), ei(1), er(3))
        for u in range(4):
            cvt(DRE+4*u+2*mt+rp, tr(u), tr(u)+1)
            cvt(DIM+4*u+2*mt+rp, ti(u), ti(u)+1)
            cvt(DNR+4*u+2*mt+rp, ti(u), ti(u)+1, True, True)
A("s_waitcnt lgkmcnt(0)")
for f in range(12, 16):
    A(f"ds_read_b128 {v(FR+4*f,4)}, {v(aF)} offset:{16384+f*1024}")
def inv_out(u, nt):
    e = (u*2+nt)*4; o = WRF + e
    cvt(o, ER+e, ER+e+1); cvt(o+1, ER+e+2, ER+e+3); cvt(o+2, EI+e, EI+e+1); cvt(o+3, EI+e+2, EI+e+3)
    A(f"ds_write_b128 {v(aO)}, {v(o,4)} offset:{(u*2+nt)*1024}")
for u in range(4):
    if u == 3: A("s_waitcnt lgkmcnt(4)")
    fc = lambda nt: FR + (u*4 + nt*2) * 4
    fs = lambda nt: FR + (u*4 + nt*2 + 1) * 4
    e = lambda nt: (u*2 + nt) * 4
    m16(ER+e(0), DRE+4*u, fc(0), None); m16(EI+e(0), DIM+4*u, fc(0), None)
    m16(ER+e(1), DRE+4*u, fc(1), None); m16(EI+e(1), DIM+4*u, fc(1), None)
    if u: inv_out(u-1, 0)
    m16(ER+e(0), DNR+4*u, fs(0), ER+e(0)); m16(EI+e(0), DRE+4*u, fs(0), EI+e(0))
    m16(ER+e(1), DNR+4*u, fs(1), ER+e(1)); m16(EI+e(1), DRE+4*u, fs(1), EI+e(1))
    if u: inv_out(u-1, 1)
inv_out(3, 0); inv_out(3, 1)
A.label("L_p2done")
A.fence()
aR0, aR1, aS2 = vT[2], vT[3], vT[4]
A(f"""
v_bfe_u32 {v(aR0)}, {v(vL)}, 2, 2
v_mul_u32_u24 {v(aR0)}, {OS}, {v(aR0)}
v_lshl_add_u32 {v(aR0)}, {v(g_)}, 6, {v(aR0)}
v_and_b32 {v(aR1)}, 3, {v(vL)}
v_lshrrev_b32 {v(aS2)}, 5, {v(vL)}
v_xor_b32 {v(aR1)}, {v(aR1)}, {v(aS2)}
v_lshl_add_u32 {v(aR0)}, {v(aR1)}, 4, {v(aR0)}
s_lshl_b32 {s(sT[0])}, {s(sW)}, 10
s_add_u32 {s(sT[0])}, {s(sT[0])}, {EXOFF}
v_add_u32 {v(aR0)}, {s(sT[0])}, {v(aR0)}
v_xor_b32 {v(aR1)}, 32, {v(aR0)}
v_lshlrev_b32 {v(aS2)}, 15, {v(g_)}
v_lshl_add_u32 {v(aS2)}, {v(c_)}, 4, {v(aS2)}
s_lshl_b32 {s(sT[1])}, {s(sM)}, 22
s_lshl_b32 {s(sT[2])}, {s(sW)}, 19
s_add_u32 {s(sT[1])}, {s(sT[1])}, {s(sT[2])}
s_lshl_b32 {s(sT[2])}, {s(sGRP)}, 12
s_add_u32 {s(sT[1])}, {s(sT[1])}, {s(sT[2])}
s_lshl_b32 {s(sT[2])}, {s(sA)}, 8
s_add_u32 {s(sT[1])}, {s(sT[1])}, {s(sT[2])}
s_add_u32 {s(sT[1])}, {s(sT[1])}, {T2}
s_add_u32 {s(sT[2])}, {s(sT[1])}, {4<<15}
s_add_u32 {s(sT[3])}, {s(sT[1])}, {8<<15}
s_add_u32 {s(sT[4])}, {s(sT[1])}, {12<<15}
s_waitcnt lgkmcnt(0)
""")
stamp()
A("s_barrier")
for j in range(4):
    A(f"ds_read_b128 {v(D1R+4*j,4)}, {v(aR1 if j & 1 else aR0)} offset:{j*256}")
if OPT['stamp']: A("s_waitcnt lgkmcnt(0)")
for j in range(4):
    A(f"s_waitcnt lgkmcnt({3-j})")
    A(f"buffer_store_dwordx4 {v(D1R+4*j,4)}, {v(aS2)}, {srd(WS_)}, {s(sT[1+j])} offen sc1")
if OPT['special']:
    A(f"""
    s_cmp_lg_u32 {s(sRHO)}, 0
    s_cbranch_scc1 L_nox2
    v_bfe_u32 {v(PH)}, {v(vL)}, 3, 2
    v_xor_b32 {v(PH)}, {v(PH)}, {v(vL)}
    v_lshl_add_u32 {v(PH)}, {v(PH)}, 4, {s(sT[0])}
    ds_read_b128 {v(D1I,4)}, {v(PH)} offset:{4*OS}
    s_lshl_b32 {s(sT[5])}, {s(sM)}, 13
    s_lshl_b32 {s(sT[6])}, {s(sW)}, 10
    s_add_u32 {s(sT[5])}, {s(sT[5])}, {s(sT[6])}
    s_add_u32 {s(sT[5])}, {s(sT[5])}, {T2X}
    v_lshlrev_b32 {v(PH)}, 4, {v(vL)}
    s_waitcnt lgkmcnt(0)
    buffer_store_dwordx4 {v(D1I,4)}, {v(PH)}, {srd(WS_)}, {s(sT[5])} offen sc1
    L_nox2:
    """)
A(f"""
s_lshl_b32 {s(sT[0])}, {s(sM)}, 3
s_add_u32 {s(sT[1])}, {s(sT[0])}, {s(sGRP)}
s_lshl_b32 {s(sT[1])}, {s(sT[1])}, 3
s_add_u32 {s(sT[1])}, {s(sT[1])}, {s(sW)}
s_lshl_b32 {s(sT[1])}, {s(sT[1])}, 8
s_mul_i32 {s(sT[2])}, {s(sA)}, {FS2}
s_add_u32 {s(sT[1])}, {s(sT[1])}, {s(sT[2])}
s_add_u32 {s(sT[1])}, {s(sT[1])}, {F2}
v_mov_b32 {v(vT[5])}, {s(sTAG)}
v_mov_b32 {v(vT[6])}, 0
""")
stamp()
A(f"""
s_waitcnt vmcnt(0)
s_mov_b64 exec, 1
buffer_store_dword {v(vT[5])}, {v(vT[6])}, {srd(WS_)}, {s(sT[1])} offen sc1
""")
A(f"""
s_or_b32 {s(sT[2])}, {s(sRHO)}, {s(sW)}
s_cbranch_scc1 L_noep
s_lshl_b32 {s(sT[2])}, {s(sM)}, 8
s_add_u32 {s(sT[2])}, {s(sT[2])}, {EW}
buffer_store_dword {v(vT[5])}, {v(vT[6])}, {srd(WS_)}, {s(sT[2])} offen sc1
L_noep:
s_mov_b64 exec, -1
""")
stamp()
gen_tables(True)
A(f"""
v_lshrrev_b32 {v(PH)}, 2, {v(c_)}
v_lshl_add_u32 {v(PH)}, {v(PH)}, 7, {s(sSB)}
v_cvt_f32_u32 {v(PH)}, {v(PH)}
v_mul_f32 {v(PH)}, {fbits(1/2048)}, {v(PH)}
v_add_f32 {v(PH+1)}, {fbits(0.25)}, {v(PH)}
v_and_b32 {v(PH+2)}, 1, {v(c_)}
v_cvt_f32_u32 {v(PH+2)}, {v(PH+2)}
v_mul_f32 {v(PH+2)}, {fbits(-0.25)}, {v(PH+2)}
v_add_f32 {v(PH+3)}, {fbits(-0.125)}, {v(PH+2)}
v_add_f32 {v(PH+2)}, {fbits(0.125)}, {v(PH+2)}
v_and_b32 {v(PH+4)}, 2, {v(c_)}
v_lshlrev_b32 {v(PH+4)}, 30, {v(PH+4)}
v_xor_b32 {v(PH+2)}, {v(PH+4)}, {v(PH+2)}
v_xor_b32 {v(PH+3)}, {v(PH+4)}, {v(PH+3)}
v_lshlrev_b32 {v(PH+4)}, 1, {v(g_)}
v_cvt_f32_u32 {v(PH+4)}, {v(PH+4)}
v_add_f32 {v(PH+5)}, 1.0, {v(PH+4)}
v_add_f32 {v(PH+6)}, {fbits(8.0)}, {v(PH+4)}
v_add_f32 {v(PH+7)}, {fbits(9.0)}, {v(PH+4)}
""")
for mt in range(2):
    for j in range(4):
        t = TMP + (mt*4+j)*3
        A(f"v_fma_f32 {v(t)}, {v(PH+mt)}, {v(PH+4+j)}, {v(PH+2+(j&1))}")
        A(f"v_cos_f32 {v(t+1)}, {v(t)}")
        A(f"v_sin_f32 {v(t+2)}, {v(t)}")
for mt in range(2):
    for j in range(4):
        t = TMP + (mt*4+j)*3
        cvt(M3+mt*4+j, t+1, t+2, False, True)
aD3, aT0, aPw, aQ1, aQ0, aRd3, aPl3 = vT[2], vT[3], vT[7], vT[8], vT[9], vT[10], vT[11]
aT = [vT[3], vT[4], vT[5], vT[6]]
A(f"""
v_lshlrev_b32 {v(PH)}, 2, {v(g_)}
v_xor_b32 {v(PH)}, {v(PH)}, {v(c_)}
v_lshlrev_b32 {v(PH)}, 4, {v(PH)}
v_lshl_add_u32 {v(aD3)}, {v(g_)}, 8, {v(PH)}
s_lshl_b32 {s(sT[5])}, {s(sW)}, 12
v_lshrrev_b32 {v(PH)}, 3, {v(vL)}
v_and_b32 {v(PH+1)}, 3, {v(PH)}
v_lshlrev_b32 {v(PH+1)}, 6, {v(PH+1)}
v_lshl_add_u32 {v(PH)}, {v(PH)}, 8, {v(PH+1)}
v_and_b32 {v(PH+1)}, 3, {v(vL)}
v_lshl_add_u32 {v(PH)}, {v(PH+1)}, 4, {v(PH)}
v_and_b32 {v(PH+1)}, 4, {v(vL)}
v_lshl_add_u32 {v(PH)}, {v(PH+1)}, 1, {v(PH)}
v_add_u32 {v(aT[0])}, {s(sT[5])}, {v(PH)}
v_xor_b32 {v(aT[1])}, 64, {v(aT[0])}
v_xor_b32 {v(aT[2])}, 128, {v(aT[0])}
v_xor_b32 {v(aT[3])}, 192, {v(aT[0])}
""")
A(f"""
v_mul_u32_u24 {v(PH)}, {PS2}, {v(g_)}
s_lshl_b32 {s(sT[0])}, {s(sW)}, 8
s_add_u32 {s(sT[1])}, {s(sT[0])}, {EX2}
s_sub_u32 {s(sT[0])}, {EX2+15*256}, {s(sT[0])}
v_lshl_add_u32 {v(aPw)}, {v(c_)}, 3, {v(PH)}
v_add_u32 {v(aPw)}, {s(sT[1])}, {v(aPw)}
v_sub_u32 {v(PH+1)}, 16, {v(c_)}
v_lshl_add_u32 {v(PH+1)}, {v(PH+1)}, 3, {v(PH)}
v_add_u32 {v(PH+8)}, {s(sT[0])}, {v(PH+1)}
v_cmp_eq_u32 vcc, 0, {v(c_)}
v_mov_b32 {v(PH+2)}, 128
v_mov_b32 {v(PH+3)}, 132
v_mov_b32 {v(PH+4)}, -124
v_cndmask_b32 {v(PH+4)}, {v(PH+2)}, {v(PH+4)}, vcc
v_cndmask_b32 {v(PH+3)}, {v(PH+3)}, {v(PH+2)}, vcc
v_add_u32 {v(aQ1)}, {v(PH+8)}, {v(PH+4)}
v_add_u32 {v(aQ0)}, {v(PH+8)}, {v(PH+3)}
s_mul_i32 {s(sT[0])}, {s(sW)}, {PS2}
s_add_u32 {s(sT[0])}, {s(sT[0])}, {EX2}
v_and_b32 {v(PH+1)}, 31, {v(vL)}
v_lshrrev_b32 {v(PH+2)}, 5, {v(vL)}
v_lshlrev_b32 {v(PH+2)}, 9, {v(PH+2)}
v_lshl_add_u32 {v(PH+1)}, {v(PH+1)}, 3, {v(PH+2)}
v_add_u32 {v(aRd3)}, {s(sT[0])}, {v(PH+1)}
v_mul_u32_u24 {v(aPl3)}, {FS2}, {v(c_)}
s_lshl_b32 {s(sT[0])}, {s(sM)}, 3
s_add_u32 {s(sT[1])}, {s(sT[0])}, {s(sW)}
s_lshl_b32 {s(sT[1])}, {s(sT[1])}, 3
s_lshr_b32 {s(sT[2])}, {s(sRHO)}, 4
s_add_u32 {s(sT[1])}, {s(sT[1])}, {s(sT[2])}
s_lshl_b32 {s(sT[1])}, {s(sT[1])}, 8
s_add_u32 {s(sT[1])}, {s(sT[1])}, {F2}
s_lshl_b32 {s(sT[2])}, {s(sM)}, 7
s_add_u32 {s(sT[2])}, {s(sT[2])}, {s(sRHO)}
s_lshl_b32 {s(sT[3])}, {s(sT[2])}, 15
s_add_u32 {s(sT[3])}, {s(sT[3])}, {s(sT[5])}
s_add_u32 {s(sT[3])}, {s(sT[3])}, {T2}
s_mov_b32 m0, {s(sT[5])}
""")
aQp = PH + 8
stamp()
poll("L_poll2", aPl3, sT[1], 1)
stamp()
for j in range(4):
    A(f"buffer_load_dwordx4 {v(aD3)}, {srd(WS_)}, {s(sT[3])} offen offset:{j*1024} sc1 lds")
if OPT['special']:
    A(f"""
    s_cmp_lg_u32 {s(sW)}, 0
    s_cbranch_scc1 L_nosp3
    s_lshl_b32 {s(sT[4])}, {s(sT[2])}, 6
    s_add_u32 {s(sT[4])}, {s(sT[4])}, {T2X}
    v_lshlrev_b32 {v(PH+1)}, 4, {v(g_)}
    buffer_load_dwordx4 {v(TMP,4)}, {v(PH+1)}, {srd(WS_)}, {s(sT[4])} offen sc1
    s_mov_b32 {s(sT[6])}, 0x05040100
    s_mov_b32 {s(sT[7])}, 0x07060302
    s_waitcnt vmcnt(0)
    v_perm_b32 {v(XR)}, {v(TMP+2)}, {v(TMP)}, {s(sT[6])}
    v_perm_b32 {v(XR+1)}, {v(TMP+2)}, {v(TMP)}, {s(sT[7])}
    v_perm_b32 {v(XR+2)}, {v(TMP+3)}, {v(TMP+1)}, {s(sT[6])}
    v_perm_b32 {v(XR+3)}, {v(TMP+3)}, {v(TMP+1)}, {s(sT[7])}
    """)
    m16(D2R, M3, XR, None); m16(D2R+4, M3+4, XR, None)
    for mt in range(2):
        A(f"v_add_f32 {v(TMP+2*mt)}, {v(D2R+4*mt)}, {v(D2R+4*mt+2)}")
        A(f"v_add_f32 {v(TMP+2*mt+1)}, {v(D2R+4*mt+1)}, {v(D2R+4*mt+3)}")
        A(f"v_mul_f32 {v(TMP+2*mt)}, 0.5, {v(TMP+2*mt)}")
        A(f"v_mul_f32 {v(TMP+2*mt+1)}, 0.5, {v(TMP+2*mt+1)}")
        cvt(TMP+4+mt, TMP+2*mt, TMP+2*mt+1)
    A(f"""
    s_mov_b32 exec_lo, 0x00010001
    s_mov_b32 exec_hi, 0x00010001
    ds_write_b32 {v(aPw)}, {v(TMP+4)} offset:{8*256}
    ds_write_b32 {v(aPw)}, {v(TMP+5)} offset:{8*256+4*PS2}
    s_mov_b64 exec, -1
    L_nosp3:
    """)
A("s_waitcnt vmcnt(0)")
stamp()
for t in (0, 2, 1, 3):
    for jj in range(2):
        A(f"ds_read_b64_tr_b16 {v(XR+4*t+2*jj,2)}, {v(aT[t])} offset:{jj*2048}")
if OPT['stamp'] or OPT['special']: A("s_waitcnt lgkmcnt(0)")
for i, t in enumerate((0, 2, 1, 3)):
    A(f"s_waitcnt lgkmcnt({6-2*i})")
    m16(D1R+8*t, M3, XR+4*t, None); m16(D1R+8*t+4, M3+4, XR+4*t, None)
A(f"""
s_cmp_lg_u32 {s(sW)}, 0
s_cbranch_scc1 L_nofix
s_mov_b32 exec_lo, 0x00010001
s_mov_b32 exec_hi, 0x00010001
""")
for mt in range(2):
    for i in range(2):
        A(f"v_add_f32 {v(D1R+4*mt+i)}, {v(D1R+4*mt+i)}, {v(D1R+4*mt+2+i)}")
        A(f"v_mul_f32 {v(D1R+4*mt+i)}, 0.5, {v(D1R+4*mt+i)}")
A("s_mov_b64 exec, -1")
A.label("L_nofix")
A("s_nop 7")
for tp in range(2):
    for mt in range(2):
        d0 = D1R + 8*tp + 4*mt; d1 = d0 + 16
        o = TMP + 8 + (tp*2+mt)*4
        cvt(o, d0, d0+1); cvt(o+1, d1, d1+1)
        A(f"ds_write_b64 {v(aPw)}, {v(o,2)} offset:{mt*4*PS2+tp*128}")
        cvt(o+2, d1+2, d1+3); cvt(o+3, d0+2, d0+3)
        if tp == 1:
            A(f"ds_write_b64 {v(aQp)}, {v(o+2,2)} offset:{mt*4*PS2}")
        else:
            A(f"ds_write_b32 {v(aQ1)}, {v(o+2)} offset:{mt*4*PS2}")
            A(f"ds_write_b32 {v(aQ0)}, {v(o+3)} offset:{mt*4*PS2}")
aB = [vT[3], vT[4], vT[5], vT[6]]
aBr, aSo = vT[2], vT[11]
A(f"""
v_and_b32 {v(PH)}, 31, {v(vL)}
v_bfe_u32 {v(PH+1)}, {v(vL)}, 1, 2
v_lshlrev_b32 {v(PH+1)}, 4, {v(PH+1)}
v_lshl_add_u32 {v(PH)}, {v(PH)}, 6, {v(PH+1)}
v_lshrrev_b32 {v(PH+1)}, 5, {v(vL)}
v_lshl_add_u32 {v(PH)}, {v(PH+1)}, 3, {v(PH)}
v_add_u32 {v(aB[0])}, {s(sT[5])}, {v(PH)}
v_xor_b32 {v(aB[1])}, 16, {v(aB[0])}
v_xor_b32 {v(aB[2])}, 32, {v(aB[0])}
v_xor_b32 {v(aB[3])}, 48, {v(aB[0])}
v_bfe_u32 {v(PH)}, {v(vL)}, 3, 2
v_xor_b32 {v(PH)}, {v(PH)}, {v(vL)}
v_lshl_add_u32 {v(aBr)}, {v(PH)}, 4, {s(sT[5])}
v_lshlrev_b32 {v(aSo)}, 4, {v(vL)}
s_lshl_b32 {s(sT[0])}, {s(sW)}, 7
s_add_u32 {s(sT[0])}, {s(sT[0])}, {s(sSB)}
s_lshl_b32 {s(sT[0])}, {s(sT[0])}, 12
s_lshl_b32 {s(sT[1])}, {s(sM)}, 11
s_add_u32 {s(sT[0])}, {s(sT[0])}, {s(sT[1])}
s_add_u32 {s(sT[1])}, {s(sT[0])}, {1024*4096}
s_waitcnt lgkmcnt(0)
s_barrier
""")
stamp()
for t in range(4):
    for j in range(2):
        A(f"ds_read_b64 {v(XR+4*t+2*j,2)}, {v(aRd3)} offset:{t*1024+j*256}")
if OPT['stamp']: A("s_waitcnt lgkmcnt(0)")
for t in range(4):
    A(f"s_waitcnt lgkmcnt({6-2*t})")
    m32(D1R, XR+4*t, GR+4*t, D1R if t else None); m32(D1I, XR+4*t, GI+4*t, D1I if t else None)
twiddle(D1R, D1I, XR, XI, True)
m32(D2R, XR, FC, None); m32(D2R, XI, FN, D2R); m32(D2R, XR+4, FC+4, D2R); m32(D2R, XI+4, FN+4, D2R)
m32(D2I, XR, FS, None); m32(D2I, XI, FC, D2I); m32(D2I, XR+4, FS+4, D2I); m32(D2I, XI+4, FC+4, D2I)
for comp, d in ((0, D2R), (1, D2I)):
    for q in range(4):
        o = TMP + comp*8 + 2*q
        cvt(o, d+4*q, d+4*q+1); cvt(o+1, d+4*q+2, d+4*q+3)
        A(f"ds_write_b64 {v(aB[q])}, {v(o,2)} offset:{comp*2048}")
    for j in range(2):
        A(f"ds_read_b128 {v(D1R+comp*8+4*j,4)}, {v(aBr)} offset:{comp*2048+j*1024}")
for comp in range(2):
    for j in range(2):
        A(f"s_waitcnt lgkmcnt({(7 if comp == 0 else 1) - j})")
        A(f"buffer_store_dwordx4 {v(D1R+comp*8+4*j,4)}, {v(aSo)}, {srd(OUT_)}, {s(sT[comp])} offen offset:{j*1024} nt")
if OPT['stamp']:
    stamp()
    A("s_waitcnt vmcnt(0)")
    stamp()
    A("s_waitcnt lgkmcnt(0)")
    n = nstamp[0]
    assert sST + 2*n <= 102, n
    A(f"s_lshl_b32 {s(sT[0])}, s2, 3")
    A(f"s_add_u32 {s(sT[0])}, {s(sT[0])}, {s(sW)}")
    A(f"s_lshl_b32 {s(sT[0])}, {s(sT[0])}, 7")
    A(f"s_add_u32 {s(sT[0])}, {s(sT[0])}, {STAMP}")
    A("v_mov_b32 v3, 0")
    A("s_mov_b64 exec, 1")
    for i in range(n):
        A(f"v_mov_b32 v2, {s(sST+2*i)}")
        A(f"buffer_store_dword v2, v3, {srd(WS_)}, {s(sT[0])} offen offset:{i*4}")
A.label("L_end")
A("s_endpgm")
tab = np.zeros((32, 64, 8), dtype=np.float64)
lane = np.arange(64); row = lane & 15; g = lane >> 4
for u in range(4):
    for t in range(2):
        for i in range(8):
            sl = 16*(i >> 2) + 4*g + (i & 3)
            phf = ((4*sl + u) * (16*t + row)) % 128
            phi = ((4*(16*t + row) + u) * sl) % 128
            tab[u*4+t*2, :, i] = np.cos(2*np.pi*phf/128); tab[u*4+t*2+1, :, i] = np.sin(2*np.pi*phf/128)
            tab[16+u*4+t*2, :, i] = np.cos(2*np.pi*phi/128); tab[16+u*4+t*2+1, :, i] = np.sin(2*np.pi*phi/128)
tab[np.abs(tab) < 1e-9] = 0
tb = bf16(tab).reshape(-1, 2)
dw = tb[:, 0] | (tb[:, 1] << 16)
A.raw(".p2align 8\n.type L_tab,@object\nL_tab:")
for i in range(0, len(dw), 8):
    A.raw(".long " + ",".join("0x%x" % x for x in dw[i:i+8]))
A.raw("L_tab_end:\n.size L_tab, L_tab_end-L_tab")
A.raw(f""".section .rodata,"a"
.p2align 6
.amdhsa_kernel {NAME}_kernel
  .amdhsa_next_free_vgpr 256
  .amdhsa_next_free_sgpr 102
  .amdhsa_accum_offset 256
  .amdhsa_group_segment_fixed_size 0
  .amdhsa_kernarg_size 72
  .amdhsa_user_sgpr_count 2
  .amdhsa_user_sgpr_kernarg_segment_ptr 1
  .amdhsa_system_sgpr_workgroup_id_x 1
  .amdhsa_float_denorm_mode_32 3
.end_amdhsa_kernel""")
open(sys.argv[1], "w").write(A.text())
print("nops inserted:", A.nops, "stamps:", nstamp[0], file=sys.stderr)
```

```python
import sys, math, struct
import numpy as np
from asmlib import Asm, v, s

NAME = "concat_heads__spectral_gfnet__spectral_gfnet__prompt"
OPT = dict(xnt=0, wnt=0, lst=0, amp=0, ampw=0, stamp=0, special=1, fs1=32, fs2=4, sleep=1)
for a_ in sys.argv[2:]:
    k_, v_ = a_.split('='); OPT[k_] = int(v_)

def fbits(x): return "0x%08x" % struct.unpack('<I', struct.pack('<f', x))[0]
def bf16(x):
    u = np.asarray(x, dtype=np.float32).view(np.uint32)
    return ((u + 0x7FFF + ((u >> 16) & 1)) >> 16).astype(np.uint32)

T1 = 0
T2 = 8 << 20
AUX = 16 << 20
T1X = AUX
T2X = AUX + 0x4000
WX = AUX + 0x8000
FS1 = OPT['fs1']; FS2 = OPT['fs2']
F1 = AUX + 0x10000
F2 = AUX + 0x60000
FX1 = AUX + 0x70000
FX2 = AUX + 0x78000
EW = AUX + 0x7c000
STAMP = AUX + 0x100000
WSZ = 32 << 20
XOFF = 0
EXOFF = 32768
PS = 5184
OS = 8320
WOFF = EXOFF + 5 * OS
M2OFF = WOFF + 32768
X5OFF = M2OFF + 32768
LDSZ = X5OFF + 8192
EX2 = WOFF
PS2 = 4160
sW, sM, sRHO, sSB, sA, sGRP, sTAG = 3, 4, 5, 6, 7, 32, 33
X_, WR_, WI_, OUT_, WS_, TAB_ = 8, 12, 16, 20, 24, 28
sT = list(range(34, 50))
sRET = 50
sE = 52
sCNT = 53
sIMG, sOIMG, sFA, sFB, sFC = 54, 55, 56, 57, 58
sST = 60
srd = lambda b: s(b, 4)

A = Asm()
XNT = ' nt' if OPT['xnt'] else ''
WNT = ' nt' if OPT['wnt'] else ''
M32 = "v_mfma_f32_32x32x16_bf16"
M16 = "v_mfma_f32_16x16x32_bf16"
def m32(d, a, b, c): A(f"{M32} {v(d,16)}, {v(a,4)}, {v(b,4)}, {v(c,16) if c is not None else 0}")
def m16(d, a, b, c): A(f"{M16} {v(d,4)}, {v(a,4)}, {v(b,4)}, {v(c,4) if c is not None else 0}")
def cvt(d, a, b, na=False, nb=False): A(f"v_cvt_pk_bf16_f32 {v(d)}, {'-' if na else ''}{v(a)}, {'-' if nb else ''}{v(b)}")
nstamp = [0]
def stamp():
    if OPT['stamp']:
        i = nstamp[0]; nstamp[0] += 1
        A(f"s_memrealtime {s(sST + 2*i, 2)}")

vL = 1
vT = list(range(2, 16))
TC, TS = 16, 32
FC, FS, FN = 48, 56, 64
M3 = 72
GR, GI = 80, 96
XR, XI = 112, 120
D1R, D1I = 128, 144
D2R, D2I = 160, 176
TMP = 192
PH = 224
WRF, WIF = 16, 48
FR = 80
DRE, DIM, DNR = 144, 160, 176
ER, EI = 192, 224

def poll(label, addr_v, soff, nd, tagreg=sTAG, mask=None):
    t0, t1 = vT[12], vT[13]
    A(f"s_mov_b32 {s(sCNT)}, 0x8000")
    A.label(label)
    A(f"buffer_load_dword {v(t0)}, {v(addr_v)}, {srd(WS_)}, {s(soff)} offen sc1")
    if nd == 2:
        A(f"buffer_load_dword {v(t1)}, {v(addr_v)}, {srd(WS_)}, {s(soff)} offen offset:{FS1*64 if FS1*64 < 4096 else 0} sc1")
        assert FS1 * 64 < 4096
    A(f"s_sub_u32 {s(sCNT)}, {s(sCNT)}, 1")
    A(f"s_cbranch_scc1 {label}_out")
    A("s_waitcnt vmcnt(0)")
    A(f"v_cmp_ne_u32 vcc, {s(tagreg)}, {v(t0)}")
    if nd == 2:
        A(f"v_cmp_ne_u32 {s(sT[14],2)}, {s(tagreg)}, {v(t1)}")
        A(f"s_or_b64 vcc, vcc, {s(sT[14],2)}")
    else:
        A("s_nop 1")
        A("s_or_b64 vcc, vcc, vcc")
    A(f"s_cbranch_scc0 {label}_out")
    if OPT['sleep']: A(f"s_sleep {OPT['sleep']}")
    A(f"s_branch {label}")
    A.label(label + "_out")
    A("s_waitcnt vmcnt(0)")

def gen_tables(with_g):
    a_, b_ = vT[12], vT[13]
    A(f"v_and_b32 {v(a_)}, 31, {v(vL)}")
    A(f"v_cvt_f32_u32 {v(a_)}, {v(a_)}")
    A(f"v_lshrrev_b32 {v(b_)}, 5, {v(vL)}")
    A(f"v_cvt_f32_u32 {v(b_)}, {v(b_)}")
    A(f"v_mul_f32 {v(a_)}, {fbits(1/1024)}, {v(a_)}")
    A(f"v_mul_f32 {v(b_)}, 4.0, {v(b_)}")
    A(f"v_mul_f32 {v(b_)}, {v(a_)}, {v(b_)}")
    for i in range(16):
        A(f"v_fmamk_f32 {v(PH+i)}, {v(a_)}, {fbits(8*(i>>2)+(i&3))}, {v(b_)}")
    A(f"s_mov_b32 {s(sT[0])}, {fbits(32.0)}")
    for i in range(16):
        A(f"v_mul_f32 {v(PH+16+i)}, {s(sT[0])}, {v(PH+i)}")
        A(f"v_cos_f32 {v(TMP+i)}, {v(PH+16+i)}")
        A(f"v_sin_f32 {v(TMP+16+i)}, {v(PH+16+i)}")
    for i in range(8):
        A(f"v_cos_f32 {v(TC+2*i)}, {v(PH+2*i)}")
        cvt(FC+i, TMP+2*i, TMP+2*i+1)
        A(f"v_cos_f32 {v(TC+2*i+1)}, {v(PH+2*i+1)}")
        cvt(FS+i, TMP+16+2*i, TMP+16+2*i+1)
        A(f"v_sin_f32 {v(TS+2*i)}, {v(PH+2*i)}")
        cvt(FN+i, TMP+16+2*i, TMP+16+2*i+1, True, True)
        A(f"v_sin_f32 {v(TS+2*i+1)}, {v(PH+2*i+1)}")
    if with_g:
        for i in range(16):
            cvt(GR+i, TMP+i, TMP+16+i, False, True)
            cvt(GI+i, TMP+16+i, TMP+i)

def twiddle(dr, di, outr, outi, conj):
    for i in range(0, 16, 2):
        t = TMP + (i % 8) * 2
        for e in range(2):
            A(f"v_mul_f32 {v(t+e)}, {v(dr+i+e)}, {v(TC+i+e)}")
            A(f"v_mul_f32 {v(t+2+e)}, {v(di+i+e)}, {v(TC+i+e)}")
        for e in range(2):
            if not conj:
                A(f"v_fmac_f32 {v(t+e)}, {v(di+i+e)}, {v(TS+i+e)}")
                A(f"v_fma_f32 {v(t+2+e)}, -{v(dr+i+e)}, {v(TS+i+e)}, {v(t+2+e)}")
            else:
                A(f"v_fma_f32 {v(t+e)}, -{v(di+i+e)}, {v(TS+i+e)}, {v(t+e)}")
                A(f"v_fmac_f32 {v(t+2+e)}, {v(dr+i+e)}, {v(TS+i+e)}")
        cvt(outr + i//2, t, t+1)
        cvt(outi + i//2, t+2, t+3)

if OPT['lst'] == 0: A.raw(f"; @launch grid=(256,1,1) block=(512,1,1) lds={LDSZ}")
else:
    if OPT['lst'] == 1: A.raw(f"; @launch kernel=empty_kernel grid=(1,1,1) block=(64,1,1) lds=0")
    A.raw(f"; @launch kernel={NAME}_kernel grid=(256,1,1) block=(512,1,1) lds={LDSZ}")
    if OPT['lst'] == 2: A.raw(f"; @launch kernel=empty_kernel grid=(1,1,1) block=(64,1,1) lds=0")
    if OPT['lst'] == 3: A.raw(f"; @launch kernel={NAME}_kernel grid=(256,1,1) block=(512,1,1) lds={LDSZ}")
A.raw('.amdgcn_target "amdgcn-amd-amdhsa--gfx950"\n.text')
if OPT['lst'] in (1, 2): A.raw(".globl empty_kernel\n.p2align 8\n.type empty_kernel,@function\nempty_kernel:\n s_endpgm")
A.raw(f".globl {NAME}_kernel\n.p2align 8\n.type {NAME}_kernel,@function")
A.label(f"{NAME}_kernel")
A(f"""
s_cmp_ge_u32 s2, 256
s_cbranch_scc1 L_end
s_bfe_u32 {s(sM)}, s2, 0x10003
s_mul_i32 {s(sT[0])}, {s(sM)}, 24
s_load_dwordx2 {s(X_,2)}, s[0:1], {s(sT[0])}
s_load_dwordx2 {s(WR_,2)}, s[0:1], {s(sT[0])} offset:8
s_load_dwordx2 {s(WI_,2)}, s[0:1], {s(sT[0])} offset:16
s_load_dwordx2 {s(OUT_,2)}, s[0:1], 48
s_load_dwordx2 {s(WS_,2)}, s[0:1], 64
v_lshrrev_b32 v2, 6, v0
v_and_b32 {v(vL)}, 63, v0
v_readfirstlane_b32 {s(sW)}, v2
s_and_b32 {s(sT[1])}, s2, 7
s_lshr_b32 {s(sT[2])}, s2, 4
s_lshl_b32 {s(sRHO)}, {s(sT[1])}, 4
s_add_u32 {s(sRHO)}, {s(sRHO)}, {s(sT[2])}
s_and_b32 {s(sSB)}, {s(sRHO)}, 31
s_lshl_b32 {s(sSB)}, {s(sSB)}, 2
s_lshr_b32 {s(sT[3])}, {s(sRHO)}, 5
s_add_u32 {s(sSB)}, {s(sSB)}, {s(sT[3])}
s_mov_b32 {s(X_+2)}, 4194304
s_mov_b32 {s(X_+3)}, 0x20000
v_lshlrev_b32 v2, 4, {v(vL)}
s_lshl_b32 {s(sT[3])}, {s(sW)}, 7
s_add_u32 {s(sT[3])}, {s(sT[3])}, {s(sSB)}
s_lshl_b32 {s(sT[3])}, {s(sT[3])}, 11
s_add_u32 {s(sT[4])}, {s(sT[3])}, 0x200000
s_lshl_b32 {s(sT[5])}, {s(sW)}, 12
s_mov_b32 m0, {s(sT[5])}
""")
stamp()
A(f"""
s_waitcnt lgkmcnt(0)
buffer_load_dwordx4 v2, {srd(X_)}, {s(sT[3])} offen{XNT} lds
buffer_load_dwordx4 v2, {srd(X_)}, {s(sT[3])} offen offset:1024{XNT} lds
s_add_u32 m0, {s(sT[5])}, 2048
s_lshl_b32 {s(sA)}, {s(sT[1])}, 1
buffer_load_dwordx4 v2, {srd(X_)}, {s(sT[4])} offen{XNT} lds
buffer_load_dwordx4 v2, {srd(X_)}, {s(sT[4])} offen offset:1024{XNT} lds
""")
A(f"""
s_getpc_b64 {s(TAB_,2)}
L_pc:
s_mov_b32 {s(TAB_+2)}, L_tab_end-L_pc
s_mov_b32 {s(TAB_+3)}, 0x20000
v_lshlrev_b32 v3, 5, v0
buffer_load_dword {v(GR)}, v3, {srd(TAB_)}, 0 offen
s_mov_b32 {s(WS_+2)}, {WSZ}
s_mov_b32 {s(WS_+3)}, 0x20000
s_lshl_b32 {s(sT[6])}, {s(sM)}, 8
s_add_u32 {s(sT[6])}, {s(sT[6])}, {EW}
s_load_dword {s(sE)}, {s(WS_,2)}, {s(sT[6])}
s_lshr_b32 {s(sT[6])}, {s(sT[2])}, 3
s_add_u32 {s(sA)}, {s(sA)}, {s(sT[6])}
s_and_b32 {s(sGRP)}, {s(sT[2])}, 7
s_mov_b32 {s(WR_+2)}, 2101248
s_mov_b32 {s(WR_+3)}, 0x20000
s_mov_b32 {s(WI_+2)}, 2101248
s_mov_b32 {s(WI_+3)}, 0x20000
s_mov_b32 {s(OUT_+2)}, 8388608
s_mov_b32 {s(OUT_+3)}, 0x20000
""")
A(f"""
v_lshrrev_b32 v5, 3, {v(vL)}
v_mul_u32_u24 v5, 16416, v5
v_lshrrev_b32 v6, 4, {v(vL)}
v_and_b32 v7, 7, {v(vL)}
v_xor_b32 v6, v6, v7
v_xor_b32 v7, 4, v6
v_lshl_add_u32 v6, v6, 4, v5
v_lshl_add_u32 v7, v7, 4, v5
s_lshl_b32 {s(sT[6])}, {s(sW)}, 8
s_add_u32 {s(sT[6])}, {s(sT[6])}, {s(sA)}
s_mul_i32 {s(sT[6])}, {s(sT[6])}, 1026
s_lshl_b32 {s(sT[7])}, {s(sGRP)}, 7
s_add_u32 {s(sT[6])}, {s(sT[6])}, {s(sT[7])}
s_add_u32 {s(sT[7])}, {s(sT[6])}, {128*1026}
s_lshl_b32 {s(sT[8])}, {s(sW)}, 11
s_add_u32 m0, {s(sT[8])}, {WOFF}
s_nop 0
buffer_load_dwordx4 v6, {srd(WR_)}, {s(sT[6])} offen{WNT} lds
s_add_u32 m0, {s(sT[8])}, {WOFF+1024}
s_nop 0
buffer_load_dwordx4 v7, {srd(WR_)}, {s(sT[7])} offen{WNT} lds
s_add_u32 m0, {s(sT[8])}, {WOFF+16384}
s_nop 0
buffer_load_dwordx4 v6, {srd(WI_)}, {s(sT[6])} offen{WNT} lds
s_add_u32 m0, {s(sT[8])}, {WOFF+16384+1024}
s_nop 0
buffer_load_dwordx4 v7, {srd(WI_)}, {s(sT[7])} offen{WNT} lds
s_add_u32 m0, {s(sT[5])}, {M2OFF}
s_add_u32 {s(sT[6])}, {s(sT[5])}, L_tab-L_pc
buffer_load_dwordx4 v2, {srd(TAB_)}, {s(sT[6])} offen lds
buffer_load_dwordx4 v2, {srd(TAB_)}, {s(sT[6])} offen offset:1024 lds
buffer_load_dwordx4 v2, {srd(TAB_)}, {s(sT[6])} offen offset:2048 lds
buffer_load_dwordx4 v2, {srd(TAB_)}, {s(sT[6])} offen offset:3072 lds
""")
NAFTERX = 9
SPW = 3
if OPT['special']:
    A(f"""
    v_and_b32 v8, 15, {v(vL)}
    v_lshrrev_b32 v9, 2, v8
    v_and_b32 v10, 1, v8
    v_lshl_add_u32 v9, v9, 1, v10
    v_and_b32 v10, 2, v8
    v_lshl_add_u32 v9, v10, 2, v9
    v_mul_u32_u24 v9, 1026, v9
    s_mul_i32 {s(sT[6])}, {s(sRHO)}, 16416
    s_cmp_lg_u32 {s(sW)}, {SPW}
    s_cbranch_scc1 L_nogather
    buffer_load_ushort v11, v9, {srd(WR_)}, {s(sT[6])} offen offset:1024
    buffer_load_ushort v12, v9, {srd(WI_)}, {s(sT[6])} offen offset:1024
    L_nogather:
    """)
gen_tables(False)
c_, g_ = vT[0], vT[1]
A(f"""
v_and_b32 {v(c_)}, 15, {v(vL)}
v_lshrrev_b32 {v(g_)}, 4, {v(vL)}
v_lshrrev_b32 {v(PH)}, 1, {v(c_)}
v_and_b32 {v(PH+1)}, 1, {v(PH)}
s_bfe_u32 {s(sT[0])}, {s(sRHO)}, 0x10002
v_and_b32 {v(PH+2)}, 1, {v(c_)}
v_xor_b32 {v(PH+2)}, {s(sT[0])}, {v(PH+2)}
v_sub_u32 {v(PH+2)}, {v(PH+2)}, {v(PH+1)}
v_cvt_f32_i32 {v(PH+2)}, {v(PH+2)}
v_mov_b32 {v(PH+3)}, {fbits(0.125)}
v_fmamk_f32 {v(PH+2)}, {v(PH+2)}, {fbits(0.25)}, {v(PH+3)}
v_mul_u32_u24 {v(PH+1)}, 0x8000, {v(PH+1)}
v_lshl_or_b32 {v(PH+1)}, {v(PH+1)}, 16, {v(PH+1)}
v_cvt_f32_u32 {v(PH)}, {v(PH)}
v_add_f32 {v(PH+3)}, {fbits(8.0)}, {v(PH)}
v_lshl_add_u32 {v(PH+4)}, {v(g_)}, 8, {s(sSB)}
v_cvt_f32_u32 {v(PH+4)}, {v(PH+4)}
v_mul_f32 {v(PH+4)}, {fbits(1/2048)}, {v(PH+4)}
v_add_f32 {v(PH+5)}, {fbits(1/16)}, {v(PH+4)}
""")
for mt in range(2):
    for e in range(2):
        t = PH + 8 + (mt*2+e)*3
        A(f"v_fma_f32 {v(t)}, {v(PH+4+e)}, {v(PH if mt == 0 else PH+3)}, {v(PH+2)}")
        A(f"v_cos_f32 {v(t+1)}, {v(t)}")
        A(f"v_sin_f32 {v(t+2)}, {v(t)}")
for mt in range(2):
    for e in range(2):
        t = PH + 8 + (mt*2+e)*3
        cvt(M3 + mt*4 + 2*e, t+1, t+2)
        cvt(M3 + mt*4 + 2*e + 1, t+2, t+1)
        A(f"v_xor_b32 {v(M3 + mt*4 + 2*e + 1)}, {v(PH+1)}, {v(M3 + mt*4 + 2*e + 1)}")
aTR, aP, aQe, aQo, aRD, aST = vT[2], vT[3], vT[4], vT[5], vT[6], vT[7]
A(f"""
v_bfe_u32 {v(PH)}, {v(vL)}, 2, 2
v_lshrrev_b32 {v(PH+1)}, 5, {v(vL)}
v_lshl_add_u32 {v(PH)}, {v(PH+1)}, 2, {v(PH)}
v_lshlrev_b32 {v(PH)}, 6, {v(PH)}
v_and_b32 {v(PH+2)}, 16, {v(vL)}
v_lshl_add_u32 {v(PH)}, {v(PH+2)}, 1, {v(PH)}
v_and_b32 {v(PH+2)}, 3, {v(vL)}
v_lshl_add_u32 {v(PH)}, {v(PH+2)}, 3, {v(PH)}
v_add_u32 {v(aTR)}, {s(sT[5])}, {v(PH)}
""")
A(f"""
s_mul_i32 {s(sT[0])}, {s(sW)}, {PS}
s_add_u32 {s(sT[0])}, {s(sT[0])}, {EXOFF}
v_and_b32 {v(PH+3)}, 31, {v(vL)}
v_mul_u32_u24 {v(PH+4)}, 20, {v(PH+2)}
v_lshrrev_b32 {v(PH+5)}, 2, {v(PH+3)}
v_mul_u32_u24 {v(PH+6)}, 160, {v(PH+1)}
v_add3_u32 {v(PH+4)}, {v(PH+4)}, {v(PH+5)}, {v(PH+6)}
v_lshl_add_u32 {v(aP)}, {v(PH+4)}, 3, {s(sT[0])}
v_sub_u32 {v(PH+3)}, 32, {v(PH+3)}
v_and_b32 {v(PH+4)}, 3, {v(PH+3)}
v_mul_u32_u24 {v(PH+4)}, 20, {v(PH+4)}
v_lshrrev_b32 {v(PH+5)}, 2, {v(PH+3)}
v_sub_u32 {v(PH+6)}, 160, {v(PH+6)}
v_add3_u32 {v(PH+4)}, {v(PH+4)}, {v(PH+5)}, {v(PH+6)}
v_lshl_add_u32 {v(aQe)}, {v(PH+4)}, 3, {s(sT[0])}
v_and_b32 {v(PH+3)}, 32, {v(PH+3)}
v_lshl_add_u32 {v(aQo)}, {v(PH+3)}, 4, {v(aQe)}
""")
A(f"""
s_mul_i32 {s(sT[0])}, {s(sW)}, 640
s_add_u32 {s(sT[0])}, {s(sT[0])}, {EXOFF}
v_mul_u32_u24 {v(PH)}, {2*PS}, {v(g_)}
v_lshl_add_u32 {v(PH)}, {v(c_)}, 3, {v(PH)}
v_add_u32 {v(aRD)}, {s(sT[0])}, {v(PH)}
v_lshlrev_b32 {v(PH)}, 19, {v(g_)}
v_lshl_add_u32 {v(aST)}, {v(c_)}, 4, {v(PH)}
""")
A(f"""
s_lshl_b32 {s(sT[8])}, {s(sM)}, 22
s_lshl_b32 {s(sT[0])}, {s(sW)}, 15
s_add_u32 {s(sT[8])}, {s(sT[8])}, {s(sT[0])}
s_lshl_b32 {s(sT[0])}, {s(sRHO)}, 8
s_add_u32 {s(sT[8])}, {s(sT[8])}, {s(sT[0])}
s_add_u32 {s(sT[9])}, {s(sT[8])}, {1<<18}
s_add_u32 {s(sT[10])}, {s(sT[8])}, {8<<18}
s_add_u32 {s(sT[11])}, {s(sT[8])}, {9<<18}
""")
stamp()
if OPT['special']:
    A(f"""
    s_cmp_lg_u32 {s(sW)}, {SPW}
    s_cbranch_scc1 L_xw0
    s_waitcnt vmcnt({NAFTERX+2})
    s_branch L_xw1
    L_xw0:
    s_waitcnt vmcnt({NAFTERX})
    L_xw1:
    """)
else:
    A(f"s_waitcnt vmcnt({NAFTERX})")
stamp()
for comp, dst in ((0, XR), (1, XI)):
    for t in range(2):
        for j in range(2):
            A(f"ds_read_b64_tr_b16 {v(dst+4*t+2*j,2)}, {v(aTR)} offset:{comp*2048+t*1024+j*512}")
A("s_waitcnt lgkmcnt(0)")
A(f"s_mul_i32 {s(sTAG)}, {s(sE)}, 0x9E3779B1")
A(f"s_add_u32 {s(sTAG)}, {s(sTAG)}, 0x7F4A7C15")
m32(D1R, XR, FC, None); m32(D1I, XR, FN, None)
m32(D1R, XR+4, FC+4, D1R); m32(D1I, XR+4, FN+4, D1I)
m32(D1R, XI, FS, D1R); m32(D1I, XI, FC, D1I)
m32(D1R, XI+4, FS+4, D1R); m32(D1I, XI+4, FC+4, D1I)
twiddle(D1R, D1I, XR, XI, False)
m32(D2R, FC, XR, None); m32(D2I, FN, XR, None)
m32(D2R, FS, XI, D2R); m32(D2I, FC, XI, D2I)
m32(D2R, FC+4, XR+4, D2R); m32(D2I, FN+4, XR+4, D2I)
m32(D2R, FS+4, XI+4, D2R); m32(D2I, FC+4, XI+4, D2I)
for i in range(16):
    cvt(TMP+i, D2R+i, D2I+i)
    kd2 = 8*(i >> 2) + (i & 3)
    if i < 8:
        A(f"ds_write_b32 {v(aP)}, {v(TMP+i)} offset:{(80*(kd2>>1)+8*(kd2&1))*8}")
    else:
        e = 31 - kd2 - 4
        A(f"ds_write_b32 {v(aQo if e & 1 else aQe)}, {v(TMP+i)} offset:{(80*(e>>1)+8*(e&1))*8+4}")
A(f"""
s_mov_b64 exec, 1
ds_write_b32 {v(aP)}, {v(TMP)} offset:4
ds_write_b32 {v(aP)}, {v(TMP+8)} offset:{640*8}
s_mov_b64 exec, -1
s_waitcnt lgkmcnt(0)
s_barrier
""")
stamp()
if OPT['special']:
    A(f"""
    s_cmp_lg_u32 {s(sW)}, {SPW}
    s_cbranch_scc1 L_nosp1
    v_mul_u32_u24 {v(PH)}, {2*PS}, {v(g_)}
    ds_read_b64 {v(XR,2)}, {v(PH)} offset:{EXOFF+640*8}
    ds_read_b64 {v(XR+2,2)}, {v(PH)} offset:{EXOFF+640*8+PS}
    s_lshl_b32 {s(sT[0])}, {s(sM)}, 13
    s_lshl_b32 {s(sT[1])}, {s(sRHO)}, 6
    s_add_u32 {s(sT[0])}, {s(sT[0])}, {s(sT[1])}
    s_add_u32 {s(sT[1])}, {s(sT[0])}, {WX}
    s_add_u32 {s(sT[0])}, {s(sT[0])}, {T1X}
    v_lshlrev_b32 {v(PH+1)}, 2, {v(vL)}
    v_lshlrev_b32 {v(PH+2)}, 4, {v(g_)}
    s_waitcnt vmcnt(0) lgkmcnt(0)
    """)
    m16(D1R, M3, XR, None); m16(D1R+4, M3+4, XR, None)
    A("v_lshl_or_b32 v11, v12, 16, v11")
    A(f"s_mov_b64 exec, 0xffff")
    A(f"buffer_store_dword v11, {v(PH+1)}, {srd(WS_)}, {s(sT[1])} offen sc1")
    A(f"s_mov_b64 exec, -1")
    cvt(TMP, D1R, D1R+2); cvt(TMP+1, D1R+4, D1R+6); cvt(TMP+2, D1R+1, D1R+3); cvt(TMP+3, D1R+5, D1R+7)
    A(f"""
    s_mov_b32 exec_lo, 0x00010001
    s_mov_b32 exec_hi, 0x00010001
    buffer_store_dwordx4 {v(TMP,4)}, {v(PH+2)}, {srd(WS_)}, {s(sT[0])} offen sc1
    s_mov_b64 exec, -1
    s_nop 1
    L_nosp1:
    """)
for t in range(4):
    for jj in range(2):
        A(f"ds_read_b64 {v(XR+4*t+2*jj,2)}, {v(aRD)} offset:{160*t+PS*jj}")
for t in range(4):
    A(f"s_waitcnt lgkmcnt({6-2*t})")
    m16(D1R+8*t, M3, XR+4*t, None); m16(D1R+8*t+4, M3+4, XR+4*t, None)
for mt in range(2):
    for al in range(2):
        o = TMP + 4 + (mt*2+al)*4
        d = D1R + 4*mt + 2*al
        cvt(o, d, d+8); cvt(o+1, d+16, d+24); cvt(o+2, d+1, d+9); cvt(o+3, d+17, d+25)
        A(f"buffer_store_dwordx4 {v(o,4)}, {v(aST)}, {srd(WS_)}, {s(sT[8+mt*2+al])} offen sc1")
stamp()
A(f"""
s_lshl_b32 {s(sT[0])}, {s(sM)}, 3
s_add_u32 {s(sT[1])}, {s(sT[0])}, {s(sW)}
s_lshl_b32 {s(sT[1])}, {s(sT[1])}, 7
s_add_u32 {s(sT[1])}, {s(sT[1])}, {s(sRHO)}
s_mul_i32 {s(sT[1])}, {s(sT[1])}, {FS1}
s_add_u32 {s(sT[1])}, {s(sT[1])}, {F1}
v_mov_b32 {v(PH)}, {s(sTAG)}
v_mov_b32 {v(PH+1)}, 0
s_waitcnt vmcnt(4)
""")
if OPT['special']:
    A(f"""
    s_cmp_lg_u32 {s(sW)}, {SPW}
    s_cbranch_scc1 L_nosp2
    s_lshl_b32 {s(sT[2])}, {s(sM)}, 7
    s_add_u32 {s(sT[2])}, {s(sT[2])}, {s(sRHO)}
    s_mul_i32 {s(sT[2])}, {s(sT[2])}, {FS1}
    s_add_u32 {s(sT[2])}, {s(sT[2])}, {FX1}
    s_mov_b64 exec, 1
    buffer_store_dword {v(PH)}, {v(PH+1)}, {srd(WS_)}, {s(sT[2])} offen sc1
    s_mov_b64 exec, -1
    L_nosp2:
    """)
A(f"""
s_barrier
s_waitcnt vmcnt(0)
s_mov_b64 exec, 1
buffer_store_dword {v(PH)}, {v(PH+1)}, {srd(WS_)}, {s(sT[1])} offen sc1
s_mov_b64 exec, -1
""")
stamp()
aW, aF, aRe, aIm, aO, aD, aPl = vT[2], vT[3], vT[4], vT[5], vT[6], vT[7], vT[8]
sSRC, sPL, sSTR = sT[2], sT[3], sT[4]
A(f"""
s_cmp_lt_u32 {s(sW)}, 4
s_cbranch_scc1 L_p2reg
""")
if OPT['special']:
    A(f"""
    s_cmp_lg_u32 {s(sW)}, 4
    s_cbranch_scc1 L_p2done
    s_cmp_lg_u32 {s(sRHO)}, 0
    s_cbranch_scc1 L_p2done
    """)
    A(f"""
    s_mov_b32 {s(sIMG)}, {X5OFF}
    s_mov_b32 {s(sFA)}, 1
    s_mov_b32 {s(sFB)}, 1
    s_lshl_b32 {s(sSRC)}, {s(sM)}, 13
    s_add_u32 {s(sT[5])}, {s(sSRC)}, {WX}
    s_add_u32 {s(sSRC)}, {s(sSRC)}, {T1X}
    s_mul_i32 {s(sPL)}, {s(sM)}, {128*FS1}
    s_add_u32 {s(sPL)}, {s(sPL)}, {FX1}
    s_mov_b32 {s(sSTR)}, 1024
    v_lshlrev_b32 {v(aD)}, 4, {v(vL)}
    v_mul_u32_u24 {v(aPl)}, {FS1}, {v(vL)}
    v_lshlrev_b32 {v(aW)}, 6, {v(c_)}
    v_lshl_add_u32 {v(aW)}, {v(g_)}, 4, {v(aW)}
    s_add_u32 {s(sT[6])}, {s(sT[5])}, 4096
    """)
    poll("L_pollx", aPl, sPL, 2)
    for t in range(8):
        A(f"buffer_load_dwordx4 {v(ER+4*t,4)}, {v(aW)}, {srd(WS_)}, {s(sT[5+(t>>2)])} offen offset:{(t&3)*1024} sc1")
    A("s_branch L_p2common")
else:
    A("s_branch L_p2done")
A.label("L_p2reg")
A(f"""
s_lshl_b32 {s(sIMG)}, {s(sW)}, 13
s_mov_b32 {s(sFA)}, 0
s_mov_b32 {s(sFB)}, 16
s_lshl_b32 {s(sSRC)}, {s(sM)}, 4
s_add_u32 {s(sSRC)}, {s(sSRC)}, {s(sA)}
s_lshl_b32 {s(sSRC)}, {s(sSRC)}, 3
s_add_u32 {s(sSRC)}, {s(sSRC)}, {s(sGRP)}
s_lshl_b32 {s(sSRC)}, {s(sSRC)}, 15
s_lshl_b32 {s(sT[5])}, {s(sW)}, 6
s_add_u32 {s(sSRC)}, {s(sSRC)}, {s(sT[5])}
s_add_u32 {s(sPL)}, {s(sT[0])}, {s(sGRP)}
s_mul_i32 {s(sPL)}, {s(sPL)}, {128*FS1}
s_add_u32 {s(sPL)}, {s(sPL)}, {F1}
s_mov_b32 {s(sSTR)}, 4096
v_lshrrev_b32 {v(aD)}, 2, {v(vL)}
v_and_b32 {v(aPl)}, 3, {v(vL)}
v_lshlrev_b32 {v(aPl)}, 4, {v(aPl)}
v_lshl_add_u32 {v(aD)}, {v(aD)}, 8, {v(aPl)}
v_mul_u32_u24 {v(aPl)}, {FS1}, {v(vL)}
""")
A(f"""
s_lshl_b32 {s(sT[5])}, {s(sW)}, 1
v_and_b32 {v(aW)}, 1, {v(g_)}
v_or_b32 {v(aW)}, {s(sT[5])}, {v(aW)}
v_lshrrev_b32 {v(aF)}, 1, {v(c_)}
v_xor_b32 {v(aW)}, {v(aW)}, {v(aF)}
v_lshlrev_b32 {v(aW)}, 4, {v(aW)}
v_lshl_add_u32 {v(aW)}, {v(c_)}, 7, {v(aW)}
v_lshrrev_b32 {v(aF)}, 1, {v(g_)}
v_lshl_add_u32 {v(aW)}, {v(aF)}, 14, {v(aW)}
v_add_u32 {v(aW)}, {WOFF}, {v(aW)}
""")
for t in range(8):
    A(f"ds_read_b128 {v(ER+4*t,4)}, {v(aW)} offset:{t*2048}")
A.label("L_p2common")
A(f"v_lshlrev_b32 {v(aF)}, 4, {v(vL)}")
A(f"v_add_u32 {v(aF)}, {M2OFF}, {v(aF)}")
A("s_waitcnt lgkmcnt(0)")
for f in range(16):
    A(f"ds_read_b128 {v(FR+4*f,4)}, {v(aF)} offset:{f*1024}")
A(f"""
v_lshlrev_b32 {v(DIM)}, {s(sFA)}, {v(c_)}
v_lshlrev_b32 {v(DIM+1)}, 3, {v(g_)}
v_sub_u32 {v(DIM)}, {v(DIM)}, {v(DIM+1)}
v_add_u32 {v(DIM+1)}, {s(sFB)}, {v(DIM)}
v_mov_b32 {v(DIM+4)}, 0x3500
""")
for q in range(2):
    A(f"v_and_b32 {v(DIM+2)}, 1, {v(DIM+q)}")
    A(f"v_lshlrev_b32 {v(DIM+2)}, 4, {v(DIM+2)}")
    A(f"v_lshlrev_b32 {v(DIM+2)}, {v(DIM+2)}, {v(DIM+4)}")
    A(f"v_ashrrev_i32 {v(DIM+3)}, 1, {v(DIM+q)}")
    for j in range(4):
        A(f"v_cmp_eq_u32 vcc, {j}, {v(DIM+3)}")
        A(f"v_cndmask_b32 {v(DRE+4*q+j)}, 0, {v(DIM+2)}, vcc")
A(f"""
v_and_b32 {v(aRe)}, 1, {v(g_)}
v_lshlrev_b32 {v(aRe)}, 3, {v(aRe)}
v_lshl_add_u32 {v(aRe)}, {v(vL)}, 4, {v(aRe)}
v_add_u32 {v(aRe)}, {s(sIMG)}, {v(aRe)}
v_xor_b32 {v(aIm)}, 8, {v(aRe)}
s_mul_i32 {s(sOIMG)}, {s(sW)}, {OS}
s_add_u32 {s(sOIMG)}, {s(sOIMG)}, {EXOFF}
v_bfe_u32 {v(aO)}, {v(vL)}, 1, 2
v_xor_b32 {v(aO)}, {v(aO)}, {v(g_)}
v_lshlrev_b32 {v(aO)}, 4, {v(aO)}
v_lshl_add_u32 {v(aO)}, {v(c_)}, 6, {v(aO)}
v_add_u32 {v(aO)}, {s(sOIMG)}, {v(aO)}
s_waitcnt vmcnt(0)
""")
for t in range(8):
    m16(WRF+4*t, ER+4*t, DRE, None); m16(WIF+4*t, ER+4*t, DRE+4, None)
stamp()
poll("L_poll1", aPl, sPL, 2)
stamp()
A(f"s_mov_b32 m0, {s(sIMG)}")
for n in range(8):
    A(f"buffer_load_dwordx4 {v(aD)}, {srd(WS_)}, {s(sSRC)} offen sc1 lds")
    if n < 7:
        A(f"s_add_u32 m0, m0, 1024")
        A(f"s_add_u32 {s(sSRC)}, {s(sSRC)}, {s(sSTR)}")
A(f"s_mov_b32 {s(sT[5])}, 0x80008000")
for u in range(4):
    A(f"s_waitcnt vmcnt({6-2*u})")
    if u == 3: stamp()
    for j in range(2): A(f"ds_read_b64_tr_b16 {v(DRE+4*u+2*j,2)}, {v(aRe)} offset:{u*2048+j*1024}")
    for j in range(2): A(f"ds_read_b64_tr_b16 {v(DIM+4*u+2*j,2)}, {v(aIm)} offset:{u*2048+j*1024}")
    A("s_waitcnt lgkmcnt(0)" if OPT['stamp'] and u == 3 else "s_waitcnt lgkmcnt(2)")
    fc = lambda mt: FR + (u*4 + mt*2) * 4
    fs = lambda mt: FR + (u*4 + mt*2 + 1) * 4
    e = lambda mt: (u*2 + mt) * 4
    m16(ER+e(0), fc(0), DRE+4*u, None)
    for j in range(2): A(f"v_xor_b32 {v(DNR+4*u+j)}, {s(sT[5])}, {v(DRE+4*u+j)}")
    m16(ER+e(1), fc(1), DRE+4*u, None)
    for j in range(2, 4): A(f"v_xor_b32 {v(DNR+4*u+j)}, {s(sT[5])}, {v(DRE+4*u+j)}")
    A("s_waitcnt lgkmcnt(0)")
    m16(EI+e(0), fc(0), DIM+4*u, None); m16(EI+e(1), fc(1), DIM+4*u, None)
    m16(ER+e(0), fs(0), DIM+4*u, ER+e(0)); m16(ER+e(1), fs(1), DIM+4*u, ER+e(1))
    m16(EI+e(0), fs(0), DNR+4*u, EI+e(0)); m16(EI+e(1), fs(1), DNR+4*u, EI+e(1))
for f in range(12):
    A(f"ds_read_b128 {v(FR+4*f,4)}, {v(aF)} offset:{16384+f*1024}")
TT = FR + 48
def pk(op, d, a, b, c=None, na=False, nb=False):
    ops = f"{v(d,2)}, {v(a,2)}, {v(b,2)}" + (f", {v(c,2)}" if c is not None else "")
    n = [int(na), int(nb)] + ([0] if c is not None else [])
    mod = f" neg_lo:{n} neg_hi:{n}".replace(", ", ",") if (na or nb) else ""
    A(f"v_pk_{op}_f32 {ops}{mod}")
add = lambda d, a, b: pk("add", d, a, b)
sub = lambda d, a, b: pk("add", d, a, b, nb=True)
for mt in range(2):
    for rp in range(2):
        er = lambda u: ER + (u*2+mt)*4 + 2*rp
        ei = lambda u: EI + (u*2+mt)*4 + 2*rp
        wr = lambda q: WRF + (q*2+mt)*4 + 2*rp
        wi = lambda q: WIF + (q*2+mt)*4 + 2*rp
        tr = lambda i: TT + 4*i
        ti = lambda i: TT + 4*i + 2
        add(tr(0), er(0), er(2)); add(ti(0), ei(0), ei(2)); sub(tr(1), er(0), er(2)); sub(ti(1), ei(0), ei(2))
        add(tr(2), er(1), er(3)); add(ti(2), ei(1), ei(3)); sub(tr(3), er(1), er(3)); sub(ti(3), ei(1), ei(3))
        add(er(0), tr(0), tr(2)); add(ei(0), ti(0), ti(2)); sub(er(2), tr(0), tr(2)); sub(ei(2), ti(0), ti(2))
        add(er(1), tr(1), ti(3)); sub(ei(1), ti(1), tr(3)); sub(er(3), tr(1), ti(3)); add(ei(3), ti(1), tr(3))
        for q in range(4):
            pk("mul", tr(q), er(q), wr(q)); pk("mul", ti(q), er(q), wi(q))
        for q in range(4):
            pk("fma", tr(q), ei(q), wi(q), tr(q), na=True); pk("fma", ti(q), ei(q), wr(q), ti(q))
        add(er(0), tr(0), tr(2)); add(ei(0), ti(0), ti(2)); sub(er(1), tr(0), tr(2)); sub(ei(1), ti(0), ti(2))
        add(er(2), tr(1), tr(3)); add(ei(2), ti(1), ti(3)); sub(er(3), tr(1), tr(3)); sub(ei(3), ti(1), ti(3))
        add(tr(0), er(0), er(2)); add(ti(0), ei(0), ei(2)); sub(tr(2), er(0), er(2)); sub(ti(2), ei(0), ei(2))
        sub(tr(1), er(1), ei(3)); add(ti(1), ei(1), er(3)); add(tr(3), er(1), ei(3)); sub(ti(3), ei(1), er(3))
        for u in range(4):
            cvt(DRE+4*u+2*mt+rp, tr(u), tr(u)+1)
            cvt(DIM+4*u+2*mt+rp, ti(u), ti(u)+1)
            cvt(DNR+4*u+2*mt+rp, ti(u), ti(u)+1, True, True)
A("s_waitcnt lgkmcnt(0)")
for f in range(12, 16):
    A(f"ds_read_b128 {v(FR+4*f,4)}, {v(aF)} offset:{16384+f*1024}")
def inv_out(u, nt):
    e = (u*2+nt)*4; o = WRF + e
    cvt(o, ER+e, ER+e+1); cvt(o+1, ER+e+2, ER+e+3); cvt(o+2, EI+e, EI+e+1); cvt(o+3, EI+e+2, EI+e+3)
    A(f"ds_write_b128 {v(aO)}, {v(o,4)} offset:{(u*2+nt)*1024}")
for u in range(4):
    if u == 3: A("s_waitcnt lgkmcnt(4)")
    fc = lambda nt: FR + (u*4 + nt*2) * 4
    fs = lambda nt: FR + (u*4 + nt*2 + 1) * 4
    e = lambda nt: (u*2 + nt) * 4
    m16(ER+e(0), DRE+4*u, fc(0), None); m16(EI+e(0), DIM+4*u, fc(0), None)
    m16(ER+e(1), DRE+4*u, fc(1), None); m16(EI+e(1), DIM+4*u, fc(1), None)
    if u: inv_out(u-1, 0)
    m16(ER+e(0), DNR+4*u, fs(0), ER+e(0)); m16(EI+e(0), DRE+4*u, fs(0), EI+e(0))
    m16(ER+e(1), DNR+4*u, fs(1), ER+e(1)); m16(EI+e(1), DRE+4*u, fs(1), EI+e(1))
    if u: inv_out(u-1, 1)
inv_out(3, 0); inv_out(3, 1)
A.label("L_p2done")
A.fence()
aR0, aR1, aS2 = vT[2], vT[3], vT[4]
A(f"""
v_bfe_u32 {v(aR0)}, {v(vL)}, 2, 2
v_mul_u32_u24 {v(aR0)}, {OS}, {v(aR0)}
v_lshl_add_u32 {v(aR0)}, {v(g_)}, 6, {v(aR0)}
v_and_b32 {v(aR1)}, 3, {v(vL)}
v_lshrrev_b32 {v(aS2)}, 5, {v(vL)}
v_xor_b32 {v(aR1)}, {v(aR1)}, {v(aS2)}
v_lshl_add_u32 {v(aR0)}, {v(aR1)}, 4, {v(aR0)}
s_lshl_b32 {s(sT[0])}, {s(sW)}, 10
s_add_u32 {s(sT[0])}, {s(sT[0])}, {EXOFF}
v_add_u32 {v(aR0)}, {s(sT[0])}, {v(aR0)}
v_xor_b32 {v(aR1)}, 32, {v(aR0)}
v_lshlrev_b32 {v(aS2)}, 15, {v(g_)}
v_lshl_add_u32 {v(aS2)}, {v(c_)}, 4, {v(aS2)}
s_lshl_b32 {s(sT[1])}, {s(sM)}, 22
s_lshl_b32 {s(sT[2])}, {s(sW)}, 19
s_add_u32 {s(sT[1])}, {s(sT[1])}, {s(sT[2])}
s_lshl_b32 {s(sT[2])}, {s(sGRP)}, 12
s_add_u32 {s(sT[1])}, {s(sT[1])}, {s(sT[2])}
s_lshl_b32 {s(sT[2])}, {s(sA)}, 8
s_add_u32 {s(sT[1])}, {s(sT[1])}, {s(sT[2])}
s_add_u32 {s(sT[1])}, {s(sT[1])}, {T2}
s_add_u32 {s(sT[2])}, {s(sT[1])}, {4<<15}
s_add_u32 {s(sT[3])}, {s(sT[1])}, {8<<15}
s_add_u32 {s(sT[4])}, {s(sT[1])}, {12<<15}
s_waitcnt lgkmcnt(0)
""")
stamp()
A("s_barrier")
for j in range(4):
    A(f"ds_read_b128 {v(D1R+4*j,4)}, {v(aR1 if j & 1 else aR0)} offset:{j*256}")
if OPT['stamp']: A("s_waitcnt lgkmcnt(0)")
for j in range(4):
    A(f"s_waitcnt lgkmcnt({3-j})")
    A(f"buffer_store_dwordx4 {v(D1R+4*j,4)}, {v(aS2)}, {srd(WS_)}, {s(sT[1+j])} offen sc1")
if OPT['special']:
    A(f"""
    s_cmp_lg_u32 {s(sRHO)}, 0
    s_cbranch_scc1 L_nox2
    v_bfe_u32 {v(PH)}, {v(vL)}, 3, 2
    v_xor_b32 {v(PH)}, {v(PH)}, {v(vL)}
    v_lshl_add_u32 {v(PH)}, {v(PH)}, 4, {s(sT[0])}
    ds_read_b128 {v(D1I,4)}, {v(PH)} offset:{4*OS}
    s_lshl_b32 {s(sT[5])}, {s(sM)}, 13
    s_lshl_b32 {s(sT[6])}, {s(sW)}, 10
    s_add_u32 {s(sT[5])}, {s(sT[5])}, {s(sT[6])}
    s_add_u32 {s(sT[5])}, {s(sT[5])}, {T2X}
    v_lshlrev_b32 {v(PH)}, 4, {v(vL)}
    s_waitcnt lgkmcnt(0)
    buffer_store_dwordx4 {v(D1I,4)}, {v(PH)}, {srd(WS_)}, {s(sT[5])} offen sc1
    L_nox2:
    """)
A(f"""
s_lshl_b32 {s(sT[0])}, {s(sM)}, 3
s_add_u32 {s(sT[1])}, {s(sT[0])}, {s(sGRP)}
s_lshl_b32 {s(sT[1])}, {s(sT[1])}, 3
s_add_u32 {s(sT[1])}, {s(sT[1])}, {s(sW)}
s_lshl_b32 {s(sT[1])}, {s(sT[1])}, 8
s_mul_i32 {s(sT[2])}, {s(sA)}, {FS2}
s_add_u32 {s(sT[1])}, {s(sT[1])}, {s(sT[2])}
s_add_u32 {s(sT[1])}, {s(sT[1])}, {F2}
v_mov_b32 {v(vT[5])}, {s(sTAG)}
v_mov_b32 {v(vT[6])}, 0
""")
stamp()
A(f"""
s_waitcnt vmcnt(0)
s_mov_b64 exec, 1
buffer_store_dword {v(vT[5])}, {v(vT[6])}, {srd(WS_)}, {s(sT[1])} offen sc1
""")
A(f"""
s_or_b32 {s(sT[2])}, {s(sRHO)}, {s(sW)}
s_cbranch_scc1 L_noep
s_lshl_b32 {s(sT[2])}, {s(sM)}, 8
s_add_u32 {s(sT[2])}, {s(sT[2])}, {EW}
buffer_store_dword {v(vT[5])}, {v(vT[6])}, {srd(WS_)}, {s(sT[2])} offen sc1
L_noep:
s_mov_b64 exec, -1
""")
stamp()
gen_tables(True)
A(f"""
v_lshrrev_b32 {v(PH)}, 2, {v(c_)}
v_lshl_add_u32 {v(PH)}, {v(PH)}, 7, {s(sSB)}
v_cvt_f32_u32 {v(PH)}, {v(PH)}
v_mul_f32 {v(PH)}, {fbits(1/2048)}, {v(PH)}
v_add_f32 {v(PH+1)}, {fbits(0.25)}, {v(PH)}
v_and_b32 {v(PH+2)}, 1, {v(c_)}
v_cvt_f32_u32 {v(PH+2)}, {v(PH+2)}
v_mul_f32 {v(PH+2)}, {fbits(-0.25)}, {v(PH+2)}
v_add_f32 {v(PH+3)}, {fbits(-0.125)}, {v(PH+2)}
v_add_f32 {v(PH+2)}, {fbits(0.125)}, {v(PH+2)}
v_and_b32 {v(PH+4)}, 2, {v(c_)}
v_lshlrev_b32 {v(PH+4)}, 30, {v(PH+4)}
v_xor_b32 {v(PH+2)}, {v(PH+4)}, {v(PH+2)}
v_xor_b32 {v(PH+3)}, {v(PH+4)}, {v(PH+3)}
v_lshlrev_b32 {v(PH+4)}, 1, {v(g_)}
v_cvt_f32_u32 {v(PH+4)}, {v(PH+4)}
v_add_f32 {v(PH+5)}, 1.0, {v(PH+4)}
v_add_f32 {v(PH+6)}, {fbits(8.0)}, {v(PH+4)}
v_add_f32 {v(PH+7)}, {fbits(9.0)}, {v(PH+4)}
""")
for mt in range(2):
    for j in range(4):
        t = TMP + (mt*4+j)*3
        A(f"v_fma_f32 {v(t)}, {v(PH+mt)}, {v(PH+4+j)}, {v(PH+2+(j&1))}")
        A(f"v_cos_f32 {v(t+1)}, {v(t)}")
        A(f"v_sin_f32 {v(t+2)}, {v(t)}")
for mt in range(2):
    for j in range(4):
        t = TMP + (mt*4+j)*3
        cvt(M3+mt*4+j, t+1, t+2, False, True)
aD3, aT0, aPw, aQ1, aQ0, aRd3, aPl3 = vT[2], vT[3], vT[7], vT[8], vT[9], vT[10], vT[11]
aT = [vT[3], vT[4], vT[5], vT[6]]
A(f"""
v_lshlrev_b32 {v(PH)}, 2, {v(g_)}
v_xor_b32 {v(PH)}, {v(PH)}, {v(c_)}
v_lshlrev_b32 {v(PH)}, 4, {v(PH)}
v_lshl_add_u32 {v(aD3)}, {v(g_)}, 8, {v(PH)}
s_lshl_b32 {s(sT[5])}, {s(sW)}, 12
v_lshrrev_b32 {v(PH)}, 3, {v(vL)}
v_and_b32 {v(PH+1)}, 3, {v(PH)}
v_lshlrev_b32 {v(PH+1)}, 6, {v(PH+1)}
v_lshl_add_u32 {v(PH)}, {v(PH)}, 8, {v(PH+1)}
v_and_b32 {v(PH+1)}, 3, {v(vL)}
v_lshl_add_u32 {v(PH)}, {v(PH+1)}, 4, {v(PH)}
v_and_b32 {v(PH+1)}, 4, {v(vL)}
v_lshl_add_u32 {v(PH)}, {v(PH+1)}, 1, {v(PH)}
v_add_u32 {v(aT[0])}, {s(sT[5])}, {v(PH)}
v_xor_b32 {v(aT[1])}, 64, {v(aT[0])}
v_xor_b32 {v(aT[2])}, 128, {v(aT[0])}
v_xor_b32 {v(aT[3])}, 192, {v(aT[0])}
""")
A(f"""
v_mul_u32_u24 {v(PH)}, {PS2}, {v(g_)}
s_lshl_b32 {s(sT[0])}, {s(sW)}, 8
s_add_u32 {s(sT[1])}, {s(sT[0])}, {EX2}
s_sub_u32 {s(sT[0])}, {EX2+15*256}, {s(sT[0])}
v_lshl_add_u32 {v(aPw)}, {v(c_)}, 3, {v(PH)}
v_add_u32 {v(aPw)}, {s(sT[1])}, {v(aPw)}
v_sub_u32 {v(PH+1)}, 16, {v(c_)}
v_lshl_add_u32 {v(PH+1)}, {v(PH+1)}, 3, {v(PH)}
v_add_u32 {v(PH+8)}, {s(sT[0])}, {v(PH+1)}
v_cmp_eq_u32 vcc, 0, {v(c_)}
v_mov_b32 {v(PH+2)}, 128
v_mov_b32 {v(PH+3)}, 132
v_mov_b32 {v(PH+4)}, -124
v_cndmask_b32 {v(PH+4)}, {v(PH+2)}, {v(PH+4)}, vcc
v_cndmask_b32 {v(PH+3)}, {v(PH+3)}, {v(PH+2)}, vcc
v_add_u32 {v(aQ1)}, {v(PH+8)}, {v(PH+4)}
v_add_u32 {v(aQ0)}, {v(PH+8)}, {v(PH+3)}
s_mul_i32 {s(sT[0])}, {s(sW)}, {PS2}
s_add_u32 {s(sT[0])}, {s(sT[0])}, {EX2}
v_and_b32 {v(PH+1)}, 31, {v(vL)}
v_lshrrev_b32 {v(PH+2)}, 5, {v(vL)}
v_lshlrev_b32 {v(PH+2)}, 9, {v(PH+2)}
v_lshl_add_u32 {v(PH+1)}, {v(PH+1)}, 3, {v(PH+2)}
v_add_u32 {v(aRd3)}, {s(sT[0])}, {v(PH+1)}
v_mul_u32_u24 {v(aPl3)}, {FS2}, {v(c_)}
s_lshl_b32 {s(sT[0])}, {s(sM)}, 3
s_add_u32 {s(sT[1])}, {s(sT[0])}, {s(sW)}
s_lshl_b32 {s(sT[1])}, {s(sT[1])}, 3
s_lshr_b32 {s(sT[2])}, {s(sRHO)}, 4
s_add_u32 {s(sT[1])}, {s(sT[1])}, {s(sT[2])}
s_lshl_b32 {s(sT[1])}, {s(sT[1])}, 8
s_add_u32 {s(sT[1])}, {s(sT[1])}, {F2}
s_lshl_b32 {s(sT[2])}, {s(sM)}, 7
s_add_u32 {s(sT[2])}, {s(sT[2])}, {s(sRHO)}
s_lshl_b32 {s(sT[3])}, {s(sT[2])}, 15
s_add_u32 {s(sT[3])}, {s(sT[3])}, {s(sT[5])}
s_add_u32 {s(sT[3])}, {s(sT[3])}, {T2}
s_mov_b32 m0, {s(sT[5])}
""")
aQp = PH + 8
stamp()
poll("L_poll2", aPl3, sT[1], 1)
stamp()
for j in range(4):
    A(f"buffer_load_dwordx4 {v(aD3)}, {srd(WS_)}, {s(sT[3])} offen offset:{j*1024} sc1 lds")
if OPT['special']:
    A(f"""
    s_cmp_lg_u32 {s(sW)}, 0
    s_cbranch_scc1 L_nosp3
    s_lshl_b32 {s(sT[4])}, {s(sT[2])}, 6
    s_add_u32 {s(sT[4])}, {s(sT[4])}, {T2X}
    v_lshlrev_b32 {v(PH+1)}, 4, {v(g_)}
    buffer_load_dwordx4 {v(TMP,4)}, {v(PH+1)}, {srd(WS_)}, {s(sT[4])} offen sc1
    s_mov_b32 {s(sT[6])}, 0x05040100
    s_mov_b32 {s(sT[7])}, 0x07060302
    s_waitcnt vmcnt(0)
    v_perm_b32 {v(XR)}, {v(TMP+2)}, {v(TMP)}, {s(sT[6])}
    v_perm_b32 {v(XR+1)}, {v(TMP+2)}, {v(TMP)}, {s(sT[7])}
    v_perm_b32 {v(XR+2)}, {v(TMP+3)}, {v(TMP+1)}, {s(sT[6])}
    v_perm_b32 {v(XR+3)}, {v(TMP+3)}, {v(TMP+1)}, {s(sT[7])}
    """)
    m16(D2R, M3, XR, None); m16(D2R+4, M3+4, XR, None)
    for mt in range(2):
        A(f"v_add_f32 {v(TMP+2*mt)}, {v(D2R+4*mt)}, {v(D2R+4*mt+2)}")
        A(f"v_add_f32 {v(TMP+2*mt+1)}, {v(D2R+4*mt+1)}, {v(D2R+4*mt+3)}")
        A(f"v_mul_f32 {v(TMP+2*mt)}, 0.5, {v(TMP+2*mt)}")
        A(f"v_mul_f32 {v(TMP+2*mt+1)}, 0.5, {v(TMP+2*mt+1)}")
        cvt(TMP+4+mt, TMP+2*mt, TMP+2*mt+1)
    A(f"""
    s_mov_b32 exec_lo, 0x00010001
    s_mov_b32 exec_hi, 0x00010001
    ds_write_b32 {v(aPw)}, {v(TMP+4)} offset:{8*256}
    ds_write_b32 {v(aPw)}, {v(TMP+5)} offset:{8*256+4*PS2}
    s_mov_b64 exec, -1
    L_nosp3:
    """)
A("s_waitcnt vmcnt(0)")
stamp()
for t in (0, 2, 1, 3):
    for jj in range(2):
        A(f"ds_read_b64_tr_b16 {v(XR+4*t+2*jj,2)}, {v(aT[t])} offset:{jj*2048}")
if OPT['stamp'] or OPT['special']: A("s_waitcnt lgkmcnt(0)")
for i, t in enumerate((0, 2, 1, 3)):
    A(f"s_waitcnt lgkmcnt({6-2*i})")
    m16(D1R+8*t, M3, XR+4*t, None); m16(D1R+8*t+4, M3+4, XR+4*t, None)
A(f"""
s_cmp_lg_u32 {s(sW)}, 0
s_cbranch_scc1 L_nofix
s_mov_b32 exec_lo, 0x00010001
s_mov_b32 exec_hi, 0x00010001
""")
for mt in range(2):
    for i in range(2):
        A(f"v_add_f32 {v(D1R+4*mt+i)}, {v(D1R+4*mt+i)}, {v(D1R+4*mt+2+i)}")
        A(f"v_mul_f32 {v(D1R+4*mt+i)}, 0.5, {v(D1R+4*mt+i)}")
A("s_mov_b64 exec, -1")
A.label("L_nofix")
A("s_nop 7")
for tp in range(2):
    for mt in range(2):
        d0 = D1R + 8*tp + 4*mt; d1 = d0 + 16
        o = TMP + 8 + (tp*2+mt)*4
        cvt(o, d0, d0+1); cvt(o+1, d1, d1+1)
        A(f"ds_write_b64 {v(aPw)}, {v(o,2)} offset:{mt*4*PS2+tp*128}")
        cvt(o+2, d1+2, d1+3); cvt(o+3, d0+2, d0+3)
        if tp == 1:
            A(f"ds_write_b64 {v(aQp)}, {v(o+2,2)} offset:{mt*4*PS2}")
        else:
            A(f"ds_write_b32 {v(aQ1)}, {v(o+2)} offset:{mt*4*PS2}")
            A(f"ds_write_b32 {v(aQ0)}, {v(o+3)} offset:{mt*4*PS2}")
aB = [vT[3], vT[4], vT[5], vT[6]]
aBr, aSo = vT[2], vT[11]
A(f"""
v_and_b32 {v(PH)}, 31, {v(vL)}
v_bfe_u32 {v(PH+1)}, {v(vL)}, 1, 2
v_lshlrev_b32 {v(PH+1)}, 4, {v(PH+1)}
v_lshl_add_u32 {v(PH)}, {v(PH)}, 6, {v(PH+1)}
v_lshrrev_b32 {v(PH+1)}, 5, {v(vL)}
v_lshl_add_u32 {v(PH)}, {v(PH+1)}, 3, {v(PH)}
v_add_u32 {v(aB[0])}, {s(sT[5])}, {v(PH)}
v_xor_b32 {v(aB[1])}, 16, {v(aB[0])}
v_xor_b32 {v(aB[2])}, 32, {v(aB[0])}
v_xor_b32 {v(aB[3])}, 48, {v(aB[0])}
v_bfe_u32 {v(PH)}, {v(vL)}, 3, 2
v_xor_b32 {v(PH)}, {v(PH)}, {v(vL)}
v_lshl_add_u32 {v(aBr)}, {v(PH)}, 4, {s(sT[5])}
v_lshlrev_b32 {v(aSo)}, 4, {v(vL)}
s_lshl_b32 {s(sT[0])}, {s(sW)}, 7
s_add_u32 {s(sT[0])}, {s(sT[0])}, {s(sSB)}
s_lshl_b32 {s(sT[0])}, {s(sT[0])}, 12
s_lshl_b32 {s(sT[1])}, {s(sM)}, 11
s_add_u32 {s(sT[0])}, {s(sT[0])}, {s(sT[1])}
s_add_u32 {s(sT[1])}, {s(sT[0])}, {1024*4096}
s_waitcnt lgkmcnt(0)
s_barrier
""")
stamp()
for t in range(4):
    for j in range(2):
        A(f"ds_read_b64 {v(XR+4*t+2*j,2)}, {v(aRd3)} offset:{t*1024+j*256}")
if OPT['stamp']: A("s_waitcnt lgkmcnt(0)")
for t in range(4):
    A(f"s_waitcnt lgkmcnt({6-2*t})")
    m32(D1R, XR+4*t, GR+4*t, D1R if t else None); m32(D1I, XR+4*t, GI+4*t, D1I if t else None)
twiddle(D1R, D1I, XR, XI, True)
m32(D2R, XR, FC, None); m32(D2R, XI, FN, D2R); m32(D2R, XR+4, FC+4, D2R); m32(D2R, XI+4, FN+4, D2R)
m32(D2I, XR, FS, None); m32(D2I, XI, FC, D2I); m32(D2I, XR+4, FS+4, D2I); m32(D2I, XI+4, FC+4, D2I)
for comp, d in ((0, D2R), (1, D2I)):
    for q in range(4):
        o = TMP + comp*8 + 2*q
        cvt(o, d+4*q, d+4*q+1); cvt(o+1, d+4*q+2, d+4*q+3)
        A(f"ds_write_b64 {v(aB[q])}, {v(o,2)} offset:{comp*2048}")
    for j in range(2):
        A(f"ds_read_b128 {v(D1R+comp*8+4*j,4)}, {v(aBr)} offset:{comp*2048+j*1024}")
for comp in range(2):
    for j in range(2):
        A(f"s_waitcnt lgkmcnt({(7 if comp == 0 else 1) - j})")
        A(f"buffer_store_dwordx4 {v(D1R+comp*8+4*j,4)}, {v(aSo)}, {srd(OUT_)}, {s(sT[comp])} offen offset:{j*1024} nt")
if OPT['stamp']:
    stamp()
    A("s_waitcnt vmcnt(0)")
    stamp()
    A("s_waitcnt lgkmcnt(0)")
    n = nstamp[0]
    assert sST + 2*n <= 102, n
    if OPT['amp']:
        j = OPT['amp']
        A(f'''
        s_cmp_lg_u32 {s(sW)}, {OPT['ampw']}
        s_cbranch_scc1 L_end
        s_cmp_lg_u32 s2, 100
        s_cbranch_scc1 L_end
        s_sub_u32 {s(sT[0])}, {s(sST+2*j)}, {s(sST)}
        s_lshl_b32 {s(sT[0])}, {s(sT[0])}, 2
        s_min_u32 {s(sT[0])}, {s(sT[0])}, 20000
        s_add_u32 {s(sT[0])}, {s(sT[0])}, {s(sST+2*(n-1))}
        L_amp:
        s_memrealtime {s(sT[2],2)}
        s_waitcnt lgkmcnt(0)
        s_sub_u32 {s(sT[1])}, {s(sT[0])}, {s(sT[2])}
        s_cmp_gt_i32 {s(sT[1])}, 0
        s_cbranch_scc1 L_amp
        s_branch L_end
        ''')
    A(f"s_lshl_b32 {s(sT[0])}, s2, 3")
    A(f"s_add_u32 {s(sT[0])}, {s(sT[0])}, {s(sW)}")
    A(f"s_lshl_b32 {s(sT[0])}, {s(sT[0])}, 7")
    A(f"s_add_u32 {s(sT[0])}, {s(sT[0])}, {STAMP}")
    A("v_mov_b32 v3, 0")
    A("s_mov_b64 exec, 1")
    for i in range(n):
        A(f"v_mov_b32 v2, {s(sST+2*i)}")
        A(f"buffer_store_dword v2, v3, {srd(WS_)}, {s(sT[0])} offen offset:{i*4}")
A.label("L_end")
A("s_endpgm")
tab = np.zeros((32, 64, 8), dtype=np.float64)
lane = np.arange(64); row = lane & 15; g = lane >> 4
for u in range(4):
    for t in range(2):
        for i in range(8):
            sl = 16*(i >> 2) + 4*g + (i & 3)
            phf = ((4*sl + u) * (16*t + row)) % 128
            phi = ((4*(16*t + row) + u) * sl) % 128
            tab[u*4+t*2, :, i] = np.cos(2*np.pi*phf/128); tab[u*4+t*2+1, :, i] = np.sin(2*np.pi*phf/128)
            tab[16+u*4+t*2, :, i] = np.cos(2*np.pi*phi/128); tab[16+u*4+t*2+1, :, i] = np.sin(2*np.pi*phi/128)
tab[np.abs(tab) < 1e-9] = 0
tb = bf16(tab).reshape(-1, 2)
dw = tb[:, 0] | (tb[:, 1] << 16)
A.raw(".p2align 8\n.type L_tab,@object\nL_tab:")
for i in range(0, len(dw), 8):
    A.raw(".long " + ",".join("0x%x" % x for x in dw[i:i+8]))
A.raw("L_tab_end:\n.size L_tab, L_tab_end-L_tab")
A.raw(f""".section .rodata,"a"
.p2align 6
.amdhsa_kernel {NAME}_kernel
  .amdhsa_next_free_vgpr 256
  .amdhsa_next_free_sgpr 102
  .amdhsa_accum_offset 256
  .amdhsa_group_segment_fixed_size 0
  .amdhsa_kernarg_size 72
  .amdhsa_user_sgpr_count 2
  .amdhsa_user_sgpr_kernarg_segment_ptr 1
  .amdhsa_system_sgpr_workgroup_id_x 1
  .amdhsa_float_denorm_mode_32 3
.end_amdhsa_kernel""")
if OPT['lst'] in (1, 2): A.raw('''.p2align 6
.amdhsa_kernel empty_kernel
  .amdhsa_next_free_vgpr 8
  .amdhsa_next_free_sgpr 16
  .amdhsa_accum_offset 8
  .amdhsa_group_segment_fixed_size 0
  .amdhsa_kernarg_size 72
  .amdhsa_user_sgpr_count 2
  .amdhsa_user_sgpr_kernarg_segment_ptr 1
  .amdhsa_system_sgpr_workgroup_id_x 1
.end_amdhsa_kernel''')
open(sys.argv[1], "w").write(A.text())
print("nops inserted:", A.nops, "stamps:", nstamp[0], file=sys.stderr)
```

```python
import sys, struct
import numpy as np
from asmlib import Asm, v, s

NAME = "concat_heads__spectral_gfnet__spectral_gfnet__prompt"
OPT = dict(outm=1, xnt=0, wnt=0, wpf=1, amp=0, ampw=0, stamp=0, fs1=4, fs2=4, sl1=4, sl2=4, at1=1, at2=1, p1=1, lst=0, atw=1, p2p=256)
for a_ in sys.argv[2:]:
    k_, v_ = a_.split('='); assert k_ in OPT, k_; OPT[k_] = int(v_)

def fbits(x): return "0x%08x" % struct.unpack('<I', struct.pack('<f', x))[0]
def bf16(x):
    u = np.asarray(x, dtype=np.float32).view(np.uint32)
    return ((u + 0x7FFF + ((u >> 16) & 1)) >> 16).astype(np.uint32)

T1 = 0
T2 = 8 << 20
AUX = 16 << 20
T1X = AUX
T2X = AUX + 0x4000
WX = AUX + 0x8000
FS1 = OPT['fs1']; FS2 = OPT['fs2']
P2 = max(OPT['p2p'], 16 * FS2)
F1 = AUX + 0x10000
F2 = AUX + 0x50000
FX1 = AUX + 0x90000
EW = AUX + 0xa0000
STAMP = AUX + 0x100000
WSZ = 32 << 20
XOFF = 0
EXOFF = 32768
PS = 5184
OS = 8320
WOFF = EXOFF + 5 * OS
M2OFF = WOFF + 32768
X5OFF = M2OFF + 32768
SYOFF = X5OFF + 8192
T1OFF = SYOFF + 64
LDSZ = T1OFF + 14336
EX2 = WOFF
PS2 = 4160
sW, sM, sRHO, sSB, sA, sGRP, sTAG = 3, 4, 5, 6, 7, 32, 33
X_, WR_, WI_, OUT_, WS_, TAB_ = 8, 12, 16, 20, 24, 28
sT = list(range(34, 50))
sW12 = 50
sM8 = 51
sE, sCNT, sIMG, sFA, sFB, sROLE = 52, 53, 54, 55, 56, 57
sPM = 58
sST = 60
sO = [96, 97]
sU = [98, 99, 100, 101]
srd = lambda b: s(b, 4)

A = Asm()
XNT = ' nt' if OPT['xnt'] else ''
WNT = ' nt' if OPT['wnt'] else ''
FST = 'buffer_atomic_swap' if OPT['atw'] else 'buffer_store_dword'
OUTM = ['', ' sc1', ' nt', ' sc0 sc1', ' sc1 nt', ' sc0 sc1 nt'][OPT['outm']]
def m32(d, a, b, c): A(f"v_mfma_f32_32x32x16_bf16 {v(d,16)}, {v(a,4)}, {v(b,4)}, {v(c,16) if c is not None else 0}")
def m16(d, a, b, c): A(f"v_mfma_f32_16x16x32_bf16 {v(d,4)}, {v(a,4)}, {v(b,4)}, {v(c,4) if c is not None else 0}")
def cvt(d, a, b, na=False, nb=False): A(f"v_cvt_pk_bf16_f32 {v(d)}, {'-' if na else ''}{v(a)}, {'-' if nb else ''}{v(b)}")
stamps = []
def stamp(name):
    if OPT['stamp']:
        A(f"s_memrealtime {s(sST + 2*len(stamps), 2)}"); stamps.append(name)

vL, c_, g_ = 1, 2, 3
vT = list(range(2, 16))
TC, TS = 16, 32
FC, FS, FN = 48, 56, 64
M3 = 72
GR, GI = 80, 96
XR, XI = 112, 120
D1R, D1I = 128, 144
D2R, D2I = 160, 176
TMP = 192
PH = 224
WRF, WIF = 16, 48
FR = 80
DRE, DIM, DNR = 144, 160, 176
ER, EI = 192, 224

def poll(label, addr_v, soffs, sleep, atomic):
    t = [vT[12], vT[13]]
    A(f"s_mov_b32 {s(sCNT)}, 0x8000")
    A.label(label)
    for i, so in enumerate(soffs):
        if atomic:
            A(f"v_mov_b32 {v(t[i])}, 0")
            A(f"buffer_atomic_or {v(t[i])}, {v(addr_v)}, {srd(WS_)}, {s(so)} offen sc0 sc1")
        else:
            A(f"buffer_load_dword {v(t[i])}, {v(addr_v)}, {srd(WS_)}, {s(so)} offen sc1")
    A(f"s_sub_u32 {s(sCNT)}, {s(sCNT)}, 1")
    A(f"s_cbranch_scc1 {label}_out")
    A("s_waitcnt vmcnt(0)")
    A(f"v_cmp_ne_u32 vcc, {s(sTAG)}, {v(t[0])}")
    if len(soffs) == 2:
        A(f"v_cmp_ne_u32 {s(sT[14],2)}, {s(sTAG)}, {v(t[1])}")
        A(f"s_or_b64 exec, vcc, {s(sT[14],2)}")
    else:
        A("s_or_b64 exec, vcc, vcc")
    A(f"s_cbranch_scc0 {label}_out")
    if sleep: A(f"s_sleep {sleep}")
    A(f"s_branch {label}")
    A.label(label + "_out")
    A("s_mov_b64 exec, -1")
    A("s_waitcnt vmcnt(0)")

def lds_wait(label, off, val):
    A(f"v_mov_b32 {v(vT[12])}, {SYOFF}")
    A(f"s_mov_b32 {s(sCNT)}, 0x40000")
    A.label(label)
    A(f"ds_read_b32 {v(vT[13])}, {v(vT[12])} offset:{off}")
    A(f"s_sub_u32 {s(sCNT)}, {s(sCNT)}, 1")
    A(f"s_cbranch_scc1 {label}_out")
    A("s_waitcnt lgkmcnt(0)")
    A(f"v_cmp_gt_u32 vcc, {val}, {v(vT[13])}")
    A("s_nop 4")
    A(f"s_cbranch_vccnz {label}")
    A.label(label + "_out")
def lds_post(off):
    A(f"v_mov_b32 {v(vT[12])}, {SYOFF}")
    A(f"v_mov_b32 {v(vT[13])}, 1")
    A("s_mov_b64 exec, 1")
    A(f"ds_add_u32 {v(vT[12])}, {v(vT[13])} offset:{off}")
    A("s_mov_b64 exec, -1")

def load_tables():
    A(f"v_lshlrev_b32 {v(vT[12])}, 4, {v(vL)}")
    A(f"v_add_u32 {v(vT[12])}, {T1OFF}, {v(vT[12])}")
    for i in (8, 9, 10, 11, 12, 13, 0, 4, 1, 5, 2, 6, 3, 7):
        A(f"ds_read_b128 {v(TC+4*i,4)}, {v(vT[12])} offset:{i*1024}")

def twiddle(dr, di, outr, outi, conj, lo=0, hi=16):
    for i in range(lo, hi, 2):
        t = TMP + (i % 8) * 2
        for e in range(2):
            A(f"v_mul_f32 {v(t+e)}, {v(dr+i+e)}, {v(TC+i+e)}")
            A(f"v_mul_f32 {v(t+2+e)}, {v(di+i+e)}, {v(TC+i+e)}")
        for e in range(2):
            if not conj:
                A(f"v_fmac_f32 {v(t+e)}, {v(di+i+e)}, {v(TS+i+e)}")
                A(f"v_fma_f32 {v(t+2+e)}, -{v(dr+i+e)}, {v(TS+i+e)}, {v(t+2+e)}")
            else:
                A(f"v_fma_f32 {v(t+e)}, -{v(di+i+e)}, {v(TS+i+e)}, {v(t+e)}")
                A(f"v_fmac_f32 {v(t+2+e)}, {v(dr+i+e)}, {v(TS+i+e)}")
        cvt(outr + i//2, t, t+1)
        cvt(outi + i//2, t+2, t+3)

if OPT['lst'] == 0: A.raw(f"; @launch grid=(256,1,1) block=(512,1,1) lds={LDSZ}")
else:
    A.raw(f"; @launch kernel={NAME}_kernel grid=(256,1,1) block=(512,1,1) lds={LDSZ}")
    A.raw(f"; @launch kernel=empty_kernel grid=(1,1,1) block=(64,1,1) lds=0")
A.raw('.amdgcn_target "amdgcn-amd-amdhsa--gfx950"\n.text')
if OPT['lst']: A.raw(".globl empty_kernel\n.p2align 8\n.type empty_kernel,@function\nempty_kernel:\n s_endpgm")
A.raw(f".globl {NAME}_kernel\n.p2align 8\n.type {NAME}_kernel,@function")
A.label(f"{NAME}_kernel")
aL16 = GR + 1
A(f"""
s_cmp_ge_u32 s2, 256
s_cbranch_scc1 L_end
s_bfe_u32 {s(sM)}, s2, 0x10003
s_mul_i32 {s(sT[0])}, {s(sM)}, 24
s_load_dwordx2 {s(X_,2)}, s[0:1], {s(sT[0])}
s_load_dwordx2 {s(WR_,2)}, s[0:1], {s(sT[0])} offset:8
s_load_dwordx2 {s(WI_,2)}, s[0:1], {s(sT[0])} offset:16
s_load_dwordx2 {s(OUT_,2)}, s[0:1], 48
s_load_dwordx2 {s(WS_,2)}, s[0:1], 64
""")
stamp("start")
A(f"""
s_getpc_b64 {s(TAB_,2)}
L_pc:
v_lshrrev_b32 v2, 6, v0
v_lshlrev_b32 v3, 5, v0
s_mov_b32 {s(TAB_+2)}, L_tab_end-L_pc
s_mov_b32 {s(TAB_+3)}, 0x20000
v_readfirstlane_b32 {s(sW)}, v2
buffer_load_dword {v(GR)}, v3, {srd(TAB_)}, 0 offen
v_and_b32 {v(vL)}, 63, v0
v_lshlrev_b32 {v(aL16)}, 4, {v(vL)}
s_lshl_b32 {s(sT[8])}, {s(sW)}, 11
s_add_u32 m0, {s(sT[8])}, {T1OFF}
s_add_u32 {s(sT[6])}, {s(sT[8])}, L_tab1-L_pc
buffer_load_dwordx4 {v(aL16)}, {srd(TAB_)}, {s(sT[6])} offen lds
buffer_load_dwordx4 {v(aL16)}, {srd(TAB_)}, {s(sT[6])} offen offset:1024 lds
s_and_b32 {s(sT[1])}, s2, 7
s_lshr_b32 {s(sT[2])}, s2, 4
s_lshl_b32 {s(sRHO)}, {s(sT[1])}, 4
s_add_u32 {s(sRHO)}, {s(sRHO)}, {s(sT[2])}
s_and_b32 {s(sSB)}, {s(sRHO)}, 31
s_lshl_b32 {s(sSB)}, {s(sSB)}, 2
s_lshr_b32 {s(sT[3])}, {s(sRHO)}, 5
s_add_u32 {s(sSB)}, {s(sSB)}, {s(sT[3])}
s_mov_b32 {s(X_+2)}, 4194304
s_mov_b32 {s(X_+3)}, 0x20000
s_lshl_b32 {s(sT[3])}, {s(sW)}, 7
s_add_u32 {s(sT[3])}, {s(sT[3])}, {s(sSB)}
s_lshl_b32 {s(sT[3])}, {s(sT[3])}, 11
s_add_u32 {s(sT[4])}, {s(sT[3])}, 0x200000
s_lshl_b32 {s(sW12)}, {s(sW)}, 12
s_mov_b32 m0, {s(sW12)}
s_waitcnt lgkmcnt(0)
buffer_load_dwordx4 {v(aL16)}, {srd(X_)}, {s(sT[3])} offen{XNT} lds
buffer_load_dwordx4 {v(aL16)}, {srd(X_)}, {s(sT[3])} offen offset:1024{XNT} lds
s_add_u32 m0, {s(sW12)}, 2048
s_lshl_b32 {s(sA)}, {s(sT[1])}, 1
buffer_load_dwordx4 {v(aL16)}, {srd(X_)}, {s(sT[4])} offen{XNT} lds
buffer_load_dwordx4 {v(aL16)}, {srd(X_)}, {s(sT[4])} offen offset:1024{XNT} lds
s_mov_b32 {s(WS_+2)}, {WSZ}
s_mov_b32 {s(WS_+3)}, 0x20000
s_lshl_b32 {s(sT[6])}, {s(sM)}, 8
s_add_u32 {s(sT[6])}, {s(sT[6])}, {EW}
s_load_dword {s(sE)}, {s(WS_,2)}, {s(sT[6])}
s_mov_b32 {s(WR_+2)}, 2101248
s_mov_b32 {s(WR_+3)}, 0x20000
s_mov_b32 {s(WI_+2)}, 2101248
s_mov_b32 {s(WI_+3)}, 0x20000
s_mov_b32 {s(OUT_+2)}, 8388608
s_mov_b32 {s(OUT_+3)}, 0x20000
s_lshl_b32 {s(sM8)}, {s(sM)}, 3
""")
aPF, aG = GR + 2, GR + 3
sPF, sG = sU[0], sU[1]
SPW = 3
A(f"""
s_lshl_b32 {s(sPF)}, {s(sT[2])}, 3
s_add_u32 {s(sPF)}, {s(sPF)}, {s(sW)}
s_lshl_b32 {s(sPF)}, {s(sPF)}, 4
s_add_u32 {s(sPF)}, {s(sPF)}, {s(sA)}
s_mul_i32 {s(sPF)}, {s(sPF)}, 1026
s_andn2_b32 {s(sPF)}, {s(sPF)}, 127
v_min_u32 {v(aPF)}, 17, {v(vL)}
v_lshlrev_b32 {v(aPF)}, 7, {v(aPF)}
s_lshr_b32 {s(sT[6])}, {s(sT[2])}, 3
s_add_u32 {s(sA)}, {s(sA)}, {s(sT[6])}
s_and_b32 {s(sGRP)}, {s(sT[2])}, 7
v_and_b32 {v(c_)}, 15, {v(vL)}
v_lshrrev_b32 {v(g_)}, 4, {v(vL)}
v_lshrrev_b32 v9, 2, {v(c_)}
v_and_b32 v10, 1, {v(c_)}
v_lshl_add_u32 v9, v9, 1, v10
v_and_b32 v10, 2, {v(c_)}
v_lshl_add_u32 v9, v10, 2, v9
v_mul_u32_u24 {v(aG)}, 1026, v9
s_mul_i32 {s(sG)}, {s(sRHO)}, 16416
v_mov_b32 v9, {SYOFF}
v_mov_b32 v10, 0
v_mov_b32 v11, 0
ds_write_b64 v9, v[10:11]
""")
A(f"""
v_lshrrev_b32 {v(PH)}, 1, {v(c_)}
v_and_b32 {v(PH+1)}, 1, {v(PH)}
s_bfe_u32 {s(sT[0])}, {s(sRHO)}, 0x10002
v_and_b32 {v(PH+2)}, 1, {v(c_)}
v_xor_b32 {v(PH+2)}, {s(sT[0])}, {v(PH+2)}
v_sub_u32 {v(PH+2)}, {v(PH+2)}, {v(PH+1)}
v_cvt_f32_i32 {v(PH+2)}, {v(PH+2)}
v_mov_b32 {v(PH+3)}, {fbits(0.125)}
v_fmamk_f32 {v(PH+2)}, {v(PH+2)}, {fbits(0.25)}, {v(PH+3)}
v_mul_u32_u24 {v(PH+1)}, 0x8000, {v(PH+1)}
v_lshl_or_b32 {v(PH+1)}, {v(PH+1)}, 16, {v(PH+1)}
v_cvt_f32_u32 {v(PH)}, {v(PH)}
v_add_f32 {v(PH+3)}, {fbits(8.0)}, {v(PH)}
v_lshl_add_u32 {v(PH+4)}, {v(g_)}, 8, {s(sSB)}
v_cvt_f32_u32 {v(PH+4)}, {v(PH+4)}
v_mul_f32 {v(PH+4)}, {fbits(1/2048)}, {v(PH+4)}
v_add_f32 {v(PH+5)}, {fbits(1/16)}, {v(PH+4)}
""")
for mt in range(2):
    for e in range(2):
        t = PH + 8 + (mt*2+e)*3
        A(f"v_fma_f32 {v(t)}, {v(PH+4+e)}, {v(PH if mt == 0 else PH+3)}, {v(PH+2)}")
        A(f"v_cos_f32 {v(t+1)}, {v(t)}")
        A(f"v_sin_f32 {v(t+2)}, {v(t)}")
for mt in range(2):
    for e in range(2):
        t = PH + 8 + (mt*2+e)*3
        cvt(M3 + mt*4 + 2*e, t+1, t+2)
        cvt(M3 + mt*4 + 2*e + 1, t+2, t+1)
        A(f"v_xor_b32 {v(M3 + mt*4 + 2*e + 1)}, {v(PH+1)}, {v(M3 + mt*4 + 2*e + 1)}")
aTR, aP, aQe, aQo, aRD, aST = vT[2:8]
sS1 = sT[8:12]; sF1 = sT[12]
A(f"""
v_bfe_u32 {v(PH)}, {v(vL)}, 2, 2
v_lshrrev_b32 {v(PH+1)}, 5, {v(vL)}
v_lshl_add_u32 {v(PH)}, {v(PH+1)}, 2, {v(PH)}
v_lshlrev_b32 {v(PH)}, 6, {v(PH)}
v_and_b32 {v(PH+2)}, 16, {v(vL)}
v_lshl_add_u32 {v(PH)}, {v(PH+2)}, 1, {v(PH)}
v_and_b32 {v(PH+2)}, 3, {v(vL)}
v_lshl_add_u32 {v(PH)}, {v(PH+2)}, 3, {v(PH)}
v_add_u32 {v(aTR)}, {s(sW12)}, {v(PH)}
s_mul_i32 {s(sT[0])}, {s(sW)}, {PS}
s_add_u32 {s(sT[0])}, {s(sT[0])}, {EXOFF}
v_and_b32 {v(PH+3)}, 31, {v(vL)}
v_mul_u32_u24 {v(PH+4)}, 20, {v(PH+2)}
v_lshrrev_b32 {v(PH+5)}, 2, {v(PH+3)}
v_mul_u32_u24 {v(PH+6)}, 160, {v(PH+1)}
v_add3_u32 {v(PH+4)}, {v(PH+4)}, {v(PH+5)}, {v(PH+6)}
v_lshl_add_u32 {v(aP)}, {v(PH+4)}, 3, {s(sT[0])}
v_sub_u32 {v(PH+3)}, 32, {v(PH+3)}
v_and_b32 {v(PH+4)}, 3, {v(PH+3)}
v_mul_u32_u24 {v(PH+4)}, 20, {v(PH+4)}
v_lshrrev_b32 {v(PH+5)}, 2, {v(PH+3)}
v_sub_u32 {v(PH+6)}, 160, {v(PH+6)}
v_add3_u32 {v(PH+4)}, {v(PH+4)}, {v(PH+5)}, {v(PH+6)}
v_lshl_add_u32 {v(aQe)}, {v(PH+4)}, 3, {s(sT[0])}
v_and_b32 {v(PH+3)}, 32, {v(PH+3)}
v_lshl_add_u32 {v(aQo)}, {v(PH+3)}, 4, {v(aQe)}
s_mul_i32 {s(sT[0])}, {s(sW)}, 640
s_add_u32 {s(sT[0])}, {s(sT[0])}, {EXOFF}
v_mul_u32_u24 {v(PH)}, {2*PS}, {v(g_)}
v_lshl_add_u32 {v(PH)}, {v(c_)}, 3, {v(PH)}
v_add_u32 {v(aRD)}, {s(sT[0])}, {v(PH)}
v_lshlrev_b32 {v(PH)}, 19, {v(g_)}
v_lshl_add_u32 {v(aST)}, {v(c_)}, 4, {v(PH)}
s_lshl_b32 {s(sS1[0])}, {s(sM)}, 22
s_lshl_b32 {s(sT[0])}, {s(sW)}, 15
s_add_u32 {s(sS1[0])}, {s(sS1[0])}, {s(sT[0])}
s_lshl_b32 {s(sT[0])}, {s(sRHO)}, 8
s_add_u32 {s(sS1[0])}, {s(sS1[0])}, {s(sT[0])}
s_add_u32 {s(sS1[1])}, {s(sS1[0])}, {1<<18}
s_add_u32 {s(sS1[2])}, {s(sS1[0])}, {8<<18}
s_add_u32 {s(sS1[3])}, {s(sS1[0])}, {9<<18}
s_add_u32 {s(sF1)}, {s(sM8)}, {s(sW)}
s_lshl_b32 {s(sF1)}, {s(sF1)}, 7
s_add_u32 {s(sF1)}, {s(sF1)}, {s(sRHO)}
s_mul_i32 {s(sF1)}, {s(sF1)}, {FS1}
s_add_u32 {s(sF1)}, {s(sF1)}, {F1}
s_add_u32 m0, {s(sW12)}, {M2OFF}
s_add_u32 {s(sT[0])}, {s(sW12)}, L_tab-L_pc
s_waitcnt vmcnt(4)
s_barrier
""")
load_tables()
for j in range(4):
    A(f"buffer_load_dwordx4 {v(aL16)}, {srd(TAB_)}, {s(sT[0])} offen offset:{j*1024} lds")
stamp("tabs")
A(f"""
s_cmp_lg_u32 {s(sW)}, {SPW}
s_cbranch_scc1 L_xw0
buffer_load_ushort v11, {v(aG)}, {srd(WR_)}, {s(sG)} offen offset:1024
buffer_load_ushort v12, {v(aG)}, {srd(WI_)}, {s(sG)} offen offset:1024
s_waitcnt vmcnt(6)
s_branch L_xw1
L_xw0:
s_waitcnt vmcnt(4)
L_xw1:
""")
stamp("x")
for comp, dst in ((0, XR), (1, XI)):
    for t in range(2):
        for j in range(2):
            A(f"ds_read_b64_tr_b16 {v(dst+4*t+2*j,2)}, {v(aTR)} offset:{comp*2048+t*1024+j*512}")
NPF = 0
if OPT['wpf']:
    NPF = 2
    A(f"buffer_load_dword {v(GR)}, {v(aPF)}, {srd(WR_)}, {s(sPF)} offen{WNT}")
    A(f"buffer_load_dword {v(GR)}, {v(aPF)}, {srd(WI_)}, {s(sPF)} offen{WNT}")
A("s_waitcnt lgkmcnt(0)")
m32(D1R, XR, FC, None); m32(D1I, XR, FN, None)
A(f"s_mul_i32 {s(sTAG)}, {s(sE)}, 0x9E3779B1")
A(f"s_add_u32 {s(sTAG)}, {s(sTAG)}, 0x7F4A7C15")
m32(D1R, XR+4, FC+4, D1R); m32(D1I, XR+4, FN+4, D1I)
m32(D1R, XI, FS, D1R); m32(D1I, XI, FC, D1I)
m32(D1R, XI+4, FS+4, D1R); m32(D1I, XI+4, FC+4, D1I)
twiddle(D1R, D1I, XR, XI, False)
m32(D2R, FC, XR, None); m32(D2I, FN, XR, None)
m32(D2R, FS, XI, D2R); m32(D2I, FC, XI, D2I)
m32(D2R, FC+4, XR+4, D2R); m32(D2I, FN+4, XR+4, D2I)
m32(D2R, FS+4, XI+4, D2R); m32(D2I, FC+4, XI+4, D2I)
for i in range(16):
    cvt(TMP+i, D2R+i, D2I+i)
    kd2 = 8*(i >> 2) + (i & 3)
    if i < 8:
        A(f"ds_write_b32 {v(aP)}, {v(TMP+i)} offset:{(80*(kd2>>1)+8*(kd2&1))*8}")
    else:
        e = 31 - kd2 - 4
        A(f"ds_write_b32 {v(aQo if e & 1 else aQe)}, {v(TMP+i)} offset:{(80*(e>>1)+8*(e&1))*8+4}")
A(f"""
s_mov_b64 exec, 1
ds_write_b32 {v(aP)}, {v(TMP)} offset:4
ds_write_b32 {v(aP)}, {v(TMP+8)} offset:{640*8}
s_mov_b64 exec, -1
s_waitcnt vmcnt({NPF}) lgkmcnt(0)
s_barrier
""")
stamp("bar1")
A(f"""
s_cmp_lg_u32 {s(sW)}, {SPW}
s_cbranch_scc1 L_nosp1
v_mul_u32_u24 {v(PH)}, {2*PS}, {v(g_)}
ds_read_b64 {v(XR,2)}, {v(PH)} offset:{EXOFF+640*8}
ds_read_b64 {v(XR+2,2)}, {v(PH)} offset:{EXOFF+640*8+PS}
s_lshl_b32 {s(sT[0])}, {s(sM)}, 13
s_lshl_b32 {s(sT[1])}, {s(sRHO)}, 6
s_add_u32 {s(sT[0])}, {s(sT[0])}, {s(sT[1])}
s_add_u32 {s(sT[1])}, {s(sT[0])}, {WX}
s_add_u32 {s(sT[0])}, {s(sT[0])}, {T1X}
v_lshlrev_b32 {v(PH+1)}, 2, {v(vL)}
v_lshlrev_b32 {v(PH+2)}, 4, {v(g_)}
v_lshl_or_b32 v11, v12, 16, v11
s_mov_b64 exec, 0xffff
buffer_store_dword v11, {v(PH+1)}, {srd(WS_)}, {s(sT[1])} offen sc1
s_mov_b64 exec, -1
s_waitcnt lgkmcnt(0)
""")
m16(D1R, M3, XR, None); m16(D1R+4, M3+4, XR, None)
cvt(TMP, D1R, D1R+2); cvt(TMP+1, D1R+4, D1R+6); cvt(TMP+2, D1R+1, D1R+3); cvt(TMP+3, D1R+5, D1R+7)
A(f"""
s_mov_b32 exec_lo, 0x00010001
s_mov_b32 exec_hi, 0x00010001
buffer_store_dwordx4 {v(TMP,4)}, {v(PH+2)}, {srd(WS_)}, {s(sT[0])} offen sc1
s_mov_b64 exec, -1
L_nosp1:
""")
for t in range(4):
    for jj in range(2):
        A(f"ds_read_b64 {v(XR+4*t+2*jj,2)}, {v(aRD)} offset:{160*t+PS*jj}")
for t in range(4):
    A(f"s_waitcnt lgkmcnt({6-2*t})")
    m16(D1R+8*t, M3, XR+4*t, None); m16(D1R+8*t+4, M3+4, XR+4*t, None)
for mt in range(2):
    for al in range(2):
        o = TMP + 4 + (mt*2+al)*4
        d = D1R + 4*mt + 2*al
        cvt(o, d, d+8); cvt(o+1, d+16, d+24); cvt(o+2, d+1, d+9); cvt(o+3, d+17, d+25)
        A(f"buffer_store_dwordx4 {v(o,4)}, {v(aST)}, {srd(WS_)}, {s(sS1[mt*2+al])} offen sc1")
stamp("st1")
vTAG, vZ = vT[2], vT[3]
A(f"""
v_mov_b32 {v(vTAG)}, {s(sTAG)}
v_mov_b32 {v(vZ)}, 0
s_cmp_lg_u32 {s(sW)}, {SPW}
s_cbranch_scc1 L_nosp2
s_lshl_b32 {s(sT[2])}, {s(sM)}, 7
s_add_u32 {s(sT[2])}, {s(sT[2])}, {s(sRHO)}
s_mul_i32 {s(sT[2])}, {s(sT[2])}, {FS1}
s_add_u32 {s(sT[2])}, {s(sT[2])}, {FX1}
s_waitcnt vmcnt(4)
s_mov_b64 exec, 1
buffer_store_dword {v(vTAG)}, {v(vZ)}, {srd(WS_)}, {s(sT[2])} offen sc1
s_mov_b64 exec, -1
L_nosp2:
""")
aR0, aR1, aS2 = vT[9], vT[10], vT[11]
sD = sT[7:11]; sF2 = sT[11]; sX2 = sT[13]
A(f"""
v_bfe_u32 {v(aR0)}, {v(vL)}, 2, 2
v_mul_u32_u24 {v(aR0)}, {OS}, {v(aR0)}
v_lshl_add_u32 {v(aR0)}, {v(g_)}, 6, {v(aR0)}
v_and_b32 {v(aR1)}, 3, {v(vL)}
v_lshrrev_b32 {v(aS2)}, 5, {v(vL)}
v_xor_b32 {v(aR1)}, {v(aR1)}, {v(aS2)}
v_lshl_add_u32 {v(aR0)}, {v(aR1)}, 4, {v(aR0)}
s_lshl_b32 {s(sX2)}, {s(sW)}, 10
s_add_u32 {s(sT[1])}, {s(sX2)}, {EXOFF}
v_add_u32 {v(aR0)}, {s(sT[1])}, {v(aR0)}
v_xor_b32 {v(aR1)}, 32, {v(aR0)}
v_lshlrev_b32 {v(aS2)}, 15, {v(g_)}
v_lshl_add_u32 {v(aS2)}, {v(c_)}, 4, {v(aS2)}
s_lshl_b32 {s(sD[0])}, {s(sM)}, 22
s_lshl_b32 {s(sT[2])}, {s(sW)}, 19
s_add_u32 {s(sD[0])}, {s(sD[0])}, {s(sT[2])}
s_lshl_b32 {s(sT[2])}, {s(sGRP)}, 12
s_add_u32 {s(sD[0])}, {s(sD[0])}, {s(sT[2])}
s_lshl_b32 {s(sT[2])}, {s(sA)}, 8
s_add_u32 {s(sD[0])}, {s(sD[0])}, {s(sT[2])}
s_add_u32 {s(sD[0])}, {s(sD[0])}, {T2}
s_add_u32 {s(sD[1])}, {s(sD[0])}, {4<<15}
s_add_u32 {s(sD[2])}, {s(sD[0])}, {8<<15}
s_add_u32 {s(sD[3])}, {s(sD[0])}, {12<<15}
s_add_u32 {s(sF2)}, {s(sM8)}, {s(sGRP)}
s_lshl_b32 {s(sF2)}, {s(sF2)}, 3
s_add_u32 {s(sF2)}, {s(sF2)}, {s(sW)}
s_mul_i32 {s(sF2)}, {s(sF2)}, {P2}
s_mul_i32 {s(sT[2])}, {s(sA)}, {FS2}
s_add_u32 {s(sF2)}, {s(sF2)}, {s(sT[2])}
s_add_u32 {s(sF2)}, {s(sF2)}, {F2}
s_mov_b32 {s(sROLE)}, 0
""")
aW, aF, aRe, aIm, aO, aD, aPl = vT[2], vT[3], vT[4], vT[5], vT[6], vT[7], vT[8]
sSRC, sPL, sPL2, sSTR = sT[2], sT[3], sT[4], sT[5]
def flag1():
    A(f"""
    s_waitcnt vmcnt(0)
    s_mov_b64 exec, 1
    {FST} {v(vTAG)}, {v(vZ)}, {srd(WS_)}, {s(sF1)} offen sc1
    s_mov_b64 exec, -1
    """)
A(f"""
s_add_u32 {s(sPL)}, {s(sM8)}, {s(sGRP)}
s_mul_i32 {s(sPL)}, {s(sPL)}, {128*FS1}
s_add_u32 {s(sPL)}, {s(sPL)}, {F1}
s_add_u32 {s(sPL2)}, {s(sPL)}, {64*FS1}
v_mul_u32_u24 {v(aPl)}, {FS1}, {v(vL)}
s_cmp_lt_u32 {s(sW)}, 4
s_cbranch_scc1 L_p2reg
""")
aW0, aW1 = vT[4], vT[5]
A(f"""
v_lshrrev_b32 {v(PH)}, 3, {v(vL)}
v_mul_u32_u24 {v(PH)}, 16416, {v(PH)}
v_and_b32 {v(PH+1)}, 7, {v(vL)}
v_xor_b32 {v(PH+1)}, {v(g_)}, {v(PH+1)}
v_xor_b32 {v(PH+2)}, 4, {v(PH+1)}
v_lshl_add_u32 {v(aW0)}, {v(PH+1)}, 4, {v(PH)}
v_lshl_add_u32 {v(aW1)}, {v(PH+2)}, 4, {v(PH)}
s_sub_u32 {s(sT[0])}, {s(sW)}, 4
s_lshl_b32 {s(sT[1])}, {s(sT[0])}, 9
s_add_u32 {s(sT[1])}, {s(sT[1])}, {s(sA)}
s_mul_i32 {s(sT[1])}, {s(sT[1])}, 1026
s_lshl_b32 {s(sT[6])}, {s(sGRP)}, 7
s_add_u32 {s(sT[1])}, {s(sT[1])}, {s(sT[6])}
s_add_u32 m0, {s(sW12)}, {WOFF-16384}
""")
flag1()
stamp("fl1")
for j in range(4):
    A(f"buffer_load_dwordx4 {v(aW1 if j & 1 else aW0)}, {srd(WR_)}, {s(sT[1])} offen lds")
    A(f"s_add_u32 m0, m0, 16384")
    A(f"buffer_load_dwordx4 {v(aW1 if j & 1 else aW0)}, {srd(WI_)}, {s(sT[1])} offen lds")
    if j < 3:
        A(f"s_sub_u32 m0, m0, {16384-1024}")
        A(f"s_add_u32 {s(sT[1])}, {s(sT[1])}, {128*1026}")
A(f"""
s_cmp_lg_u32 {s(sW)}, 4
s_cbranch_scc1 L_idle
s_cmp_lg_u32 {s(sRHO)}, 0
s_cbranch_scc1 L_idle
""")
A(f"""
s_mov_b32 {s(sIMG)}, {X5OFF}
s_mov_b32 {s(sFA)}, 1
s_mov_b32 {s(sFB)}, 1
s_lshl_b32 {s(sSRC)}, {s(sM)}, 13
s_add_u32 {s(sT[0])}, {s(sSRC)}, {WX}
s_add_u32 {s(sT[1])}, {s(sT[0])}, 4096
s_add_u32 {s(sSRC)}, {s(sSRC)}, {T1X}
s_mul_i32 {s(sPL)}, {s(sM)}, {128*FS1}
s_add_u32 {s(sPL)}, {s(sPL)}, {FX1}
s_add_u32 {s(sPL2)}, {s(sPL)}, {64*FS1}
s_mov_b32 {s(sSTR)}, 1024
v_lshlrev_b32 {v(aD)}, 4, {v(vL)}
v_lshlrev_b32 {v(aW)}, 6, {v(c_)}
v_lshl_add_u32 {v(aW)}, {v(g_)}, 4, {v(aW)}
s_branch L_p2common
""")
A.label("L_p2reg")
A(f"""
s_lshl_b32 {s(sIMG)}, {s(sW)}, 13
s_mov_b32 {s(sFA)}, 0
s_mov_b32 {s(sFB)}, 16
s_lshl_b32 {s(sSRC)}, {s(sM)}, 4
s_add_u32 {s(sSRC)}, {s(sSRC)}, {s(sA)}
s_lshl_b32 {s(sSRC)}, {s(sSRC)}, 3
s_add_u32 {s(sSRC)}, {s(sSRC)}, {s(sGRP)}
s_lshl_b32 {s(sSRC)}, {s(sSRC)}, 15
s_lshl_b32 {s(sT[0])}, {s(sW)}, 6
s_add_u32 {s(sSRC)}, {s(sSRC)}, {s(sT[0])}
s_mov_b32 {s(sSTR)}, 4096
v_lshrrev_b32 {v(aD)}, 2, {v(vL)}
v_and_b32 {v(aRe)}, 3, {v(vL)}
v_lshlrev_b32 {v(aRe)}, 4, {v(aRe)}
v_lshl_add_u32 {v(aD)}, {v(aD)}, 8, {v(aRe)}
""")
lds_post(0)
flag1()
if OPT['stamp']: A(f"s_memrealtime {s(sST + 2*stamps.index('fl1'), 2)}")
A(f"""
s_lshl_b32 {s(sT[0])}, {s(sW)}, 1
v_and_b32 {v(aW)}, 1, {v(g_)}
v_or_b32 {v(aW)}, {s(sT[0])}, {v(aW)}
v_lshrrev_b32 {v(aF)}, 1, {v(c_)}
v_xor_b32 {v(aW)}, {v(aW)}, {v(aF)}
v_lshlrev_b32 {v(aW)}, 4, {v(aW)}
v_lshl_add_u32 {v(aW)}, {v(c_)}, 7, {v(aW)}
v_lshrrev_b32 {v(aF)}, 1, {v(g_)}
v_lshl_add_u32 {v(aW)}, {v(aF)}, 14, {v(aW)}
v_add_u32 {v(aW)}, {WOFF}, {v(aW)}
""")
A.label("L_p2common")
A(f"v_lshlrev_b32 {v(aF)}, 4, {v(vL)}")
A(f"v_add_u32 {v(aF)}, {M2OFF}, {v(aF)}")
for f in range(16):
    A(f"ds_read_b128 {v(FR+4*f,4)}, {v(aF)} offset:{f*1024}")
SEL = DNR
A(f"""
v_lshlrev_b32 {v(DIM)}, {s(sFA)}, {v(c_)}
v_lshlrev_b32 {v(DIM+1)}, 3, {v(g_)}
v_sub_u32 {v(DIM)}, {v(DIM)}, {v(DIM+1)}
v_add_u32 {v(DIM+1)}, {s(sFB)}, {v(DIM)}
v_mov_b32 {v(DIM+4)}, 0x3500
""")
for q in range(2):
    A(f"v_and_b32 {v(DIM+2)}, 1, {v(DIM+q)}")
    A(f"v_lshlrev_b32 {v(DIM+2)}, 4, {v(DIM+2)}")
    A(f"v_lshlrev_b32 {v(DIM+2)}, {v(DIM+2)}, {v(DIM+4)}")
    A(f"v_ashrrev_i32 {v(DIM+3)}, 1, {v(DIM+q)}")
    for j in range(4):
        A(f"v_cmp_eq_u32 vcc, {j}, {v(DIM+3)}")
        A(f"v_cndmask_b32 {v(SEL+4*q+j)}, 0, {v(DIM+2)}, vcc")
A(f"""
v_and_b32 {v(aRe)}, 1, {v(g_)}
v_lshlrev_b32 {v(aRe)}, 3, {v(aRe)}
v_lshl_add_u32 {v(aRe)}, {v(vL)}, 4, {v(aRe)}
v_add_u32 {v(aRe)}, {s(sIMG)}, {v(aRe)}
v_xor_b32 {v(aIm)}, 8, {v(aRe)}
s_mul_i32 {s(sT[6])}, {s(sW)}, {OS}
s_add_u32 {s(sT[6])}, {s(sT[6])}, {EXOFF}
v_bfe_u32 {v(aO)}, {v(vL)}, 1, 2
v_xor_b32 {v(aO)}, {v(aO)}, {v(g_)}
v_lshlrev_b32 {v(aO)}, 4, {v(aO)}
v_lshl_add_u32 {v(aO)}, {v(c_)}, 6, {v(aO)}
v_add_u32 {v(aO)}, {s(sT[6])}, {v(aO)}
s_mov_b32 m0, {s(sIMG)}
""")
stamp("pre1")
if OPT['p1'] == 1:
    A(f"s_cmp_lt_u32 {s(sW)}, 4")
    A(f"s_cbranch_scc0 L_selfpoll")
    lds_wait("L_go1", 4, 1)
    A("s_branch L_polled")
    A.label("L_selfpoll")
poll("L_poll1", aPl, [sPL, sPL2], OPT['sl1'], OPT['at1'])
A.label("L_polled")
stamp("pol1")
for n in range(8):
    A(f"buffer_load_dwordx4 {v(aD)}, {srd(WS_)}, {s(sSRC)} offen sc1 lds")
    if n < 7:
        A(f"s_add_u32 m0, m0, 1024")
        A(f"s_add_u32 {s(sSRC)}, {s(sSRC)}, {s(sSTR)}")
A(f"""
s_cmp_lt_u32 {s(sW)}, 4
s_cbranch_scc1 L_wreg
""")
lds_post(0)
for t in range(8):
    A(f"buffer_load_dwordx4 {v(ER+4*t,4)}, {v(aW)}, {srd(WS_)}, {s(sT[t>>2])} offen offset:{(t&3)*1024} sc1")
A("s_waitcnt vmcnt(0)")
lds_wait("L_wx", 0, 8)
A("s_branch L_wcv")
A.label("L_wreg")
lds_wait("L_wr", 0, 8)
for t in range(8):
    A(f"ds_read_b128 {v(ER+4*t,4)}, {v(aW)} offset:{t*2048}")
A.label("L_wcv")
for t in range(8):
    A(f"s_waitcnt lgkmcnt({7-t})")
    m16(WRF+4*t, ER+4*t, SEL, None); m16(WIF+4*t, ER+4*t, SEL+4, None)
A(f"s_mov_b32 {s(sT[6])}, 0x80008000")
stamp("wcv")
def rd2(u):
    A(f"s_waitcnt vmcnt({6-2*u})")
    for j in range(2): A(f"ds_read_b64_tr_b16 {v(DRE+4*u+2*j,2)}, {v(aRe)} offset:{u*2048+j*1024}")
    for j in range(2): A(f"ds_read_b64_tr_b16 {v(DIM+4*u+2*j,2)}, {v(aIm)} offset:{u*2048+j*1024}")
rd2(0)
for u in range(4):
    if u < 3: rd2(u+1)
    if u == 2: stamp("dat1")
    n = 4 if u < 3 else 0
    A(f"s_waitcnt lgkmcnt({n+2})")
    fc = lambda mt: FR + (u*4 + mt*2) * 4
    fs = lambda mt: FR + (u*4 + mt*2 + 1) * 4
    e = lambda mt: (u*2 + mt) * 4
    m16(ER+e(0), fc(0), DRE+4*u, None)
    for j in range(2): A(f"v_xor_b32 {v(DNR+4*u+j)}, {s(sT[6])}, {v(DRE+4*u+j)}")
    m16(ER+e(1), fc(1), DRE+4*u, None)
    for j in range(2, 4): A(f"v_xor_b32 {v(DNR+4*u+j)}, {s(sT[6])}, {v(DRE+4*u+j)}")
    A(f"s_waitcnt lgkmcnt({n})")
    m16(EI+e(0), fc(0), DIM+4*u, None); m16(EI+e(1), fc(1), DIM+4*u, None)
    m16(ER+e(0), fs(0), DIM+4*u, ER+e(0)); m16(ER+e(1), fs(1), DIM+4*u, ER+e(1))
    m16(EI+e(0), fs(0), DNR+4*u, EI+e(0)); m16(EI+e(1), fs(1), DNR+4*u, EI+e(1))
for f in range(12):
    A(f"ds_read_b128 {v(FR+4*f,4)}, {v(aF)} offset:{16384+f*1024}")
TT = FR + 48
def pk(op, d, a, b, c=None, na=False, nb=False):
    ops = f"{v(d,2)}, {v(a,2)}, {v(b,2)}" + (f", {v(c,2)}" if c is not None else "")
    n = [int(na), int(nb)] + ([0] if c is not None else [])
    mod = f" neg_lo:{n} neg_hi:{n}".replace(", ", ",") if (na or nb) else ""
    A(f"v_pk_{op}_f32 {ops}{mod}")
add = lambda d, a, b: pk("add", d, a, b)
sub = lambda d, a, b: pk("add", d, a, b, nb=True)
A.raw(".p2align 3")
for mt in range(2):
    for rp in range(2):
        er = lambda u: ER + (u*2+mt)*4 + 2*rp
        ei = lambda u: EI + (u*2+mt)*4 + 2*rp
        wr = lambda q: WRF + (q*2+mt)*4 + 2*rp
        wi = lambda q: WIF + (q*2+mt)*4 + 2*rp
        tr = lambda i: TT + 4*i
        ti = lambda i: TT + 4*i + 2
        add(tr(0), er(0), er(2)); add(ti(0), ei(0), ei(2)); sub(tr(1), er(0), er(2)); sub(ti(1), ei(0), ei(2))
        add(tr(2), er(1), er(3)); add(ti(2), ei(1), ei(3)); sub(tr(3), er(1), er(3)); sub(ti(3), ei(1), ei(3))
        add(er(0), tr(0), tr(2)); add(ei(0), ti(0), ti(2)); sub(er(2), tr(0), tr(2)); sub(ei(2), ti(0), ti(2))
        add(er(1), tr(1), ti(3)); sub(ei(1), ti(1), tr(3)); sub(er(3), tr(1), ti(3)); add(ei(3), ti(1), tr(3))
        for q in range(4):
            pk("mul", tr(q), er(q), wr(q)); pk("mul", ti(q), er(q), wi(q))
        for q in range(4):
            pk("fma", tr(q), ei(q), wi(q), tr(q), na=True); pk("fma", ti(q), ei(q), wr(q), ti(q))
        add(er(0), tr(0), tr(2)); add(ei(0), ti(0), ti(2)); sub(er(1), tr(0), tr(2)); sub(ei(1), ti(0), ti(2))
        add(er(2), tr(1), tr(3)); add(ei(2), ti(1), ti(3)); sub(er(3), tr(1), tr(3)); sub(ei(3), ti(1), ti(3))
        add(tr(0), er(0), er(2)); add(ti(0), ei(0), ei(2)); sub(tr(2), er(0), er(2)); sub(ti(2), ei(0), ei(2))
        sub(tr(1), er(1), ei(3)); add(ti(1), ei(1), er(3)); add(tr(3), er(1), ei(3)); sub(ti(3), ei(1), er(3))
        for u in range(4):
            cvt(DRE+4*u+2*mt+rp, tr(u), tr(u)+1)
            cvt(DIM+4*u+2*mt+rp, ti(u), ti(u)+1)
            cvt(DNR+4*u+2*mt+rp, ti(u), ti(u)+1, True, True)
A("s_waitcnt lgkmcnt(0)")
for f in range(12, 16):
    A(f"ds_read_b128 {v(FR+4*f,4)}, {v(aF)} offset:{16384+f*1024}")
def inv_out(u, nt):
    e = (u*2+nt)*4; o = WRF + e
    cvt(o, ER+e, ER+e+1); cvt(o+1, ER+e+2, ER+e+3); cvt(o+2, EI+e, EI+e+1); cvt(o+3, EI+e+2, EI+e+3)
    A(f"ds_write_b128 {v(aO)}, {v(o,4)} offset:{(u*2+nt)*1024}")
for u in range(4):
    if u == 3: A("s_waitcnt lgkmcnt(4)")
    fc = lambda nt: FR + (u*4 + nt*2) * 4
    fs = lambda nt: FR + (u*4 + nt*2 + 1) * 4
    e = lambda nt: (u*2 + nt) * 4
    m16(ER+e(0), DRE+4*u, fc(0), None); m16(EI+e(0), DIM+4*u, fc(0), None)
    m16(ER+e(1), DRE+4*u, fc(1), None); m16(EI+e(1), DIM+4*u, fc(1), None)
    if u: inv_out(u-1, 0)
    m16(ER+e(0), DNR+4*u, fs(0), ER+e(0)); m16(EI+e(0), DRE+4*u, fs(0), EI+e(0))
    m16(ER+e(1), DNR+4*u, fs(1), ER+e(1)); m16(EI+e(1), DRE+4*u, fs(1), EI+e(1))
    if u: inv_out(u-1, 1)
inv_out(3, 0); inv_out(3, 1)
A("s_waitcnt lgkmcnt(0)")
A.label("L_p2done")
A.fence()
stamp("cmp2")
A("s_barrier")
for j in range(4):
    A(f"ds_read_b128 {v(D1R+4*j,4)}, {v(aR1 if j & 1 else aR0)} offset:{j*256}")
for j in range(4):
    A(f"s_waitcnt lgkmcnt({3-j})")
    A(f"buffer_store_dwordx4 {v(D1R+4*j,4)}, {v(aS2)}, {srd(WS_)}, {s(sD[j])} offen sc1")
A(f"""
s_cmp_lg_u32 {s(sRHO)}, 0
s_cbranch_scc1 L_nox2
v_bfe_u32 {v(aR0)}, {v(vL)}, 3, 2
v_xor_b32 {v(aR0)}, {v(aR0)}, {v(vL)}
v_lshl_add_u32 {v(aR0)}, {v(aR0)}, 4, {s(sX2)}
v_add_u32 {v(aR0)}, {EXOFF+4*OS}, {v(aR0)}
ds_read_b128 {v(D1I,4)}, {v(aR0)}
s_lshl_b32 {s(sD[0])}, {s(sM)}, 13
s_add_u32 {s(sX2)}, {s(sX2)}, {s(sD[0])}
s_add_u32 {s(sX2)}, {s(sX2)}, {T2X}
v_lshlrev_b32 {v(aR1)}, 4, {v(vL)}
s_waitcnt lgkmcnt(0)
buffer_store_dwordx4 {v(D1I,4)}, {v(aR1)}, {srd(WS_)}, {s(sX2)} offen sc1
L_nox2:
""")
stamp("st2")
A(f"""
s_cmp_lg_u32 {s(sROLE)}, 0
s_cbranch_scc1 L_setup3_done
""")
load_tables()
A("s_branch L_setup3")
A.label("L_idle")
A(f"s_mov_b32 {s(sROLE)}, 1")
A("s_waitcnt vmcnt(0)")
lds_post(0)
if OPT['p1'] == 1:
    A(f"s_cmp_lg_u32 {s(sW)}, 5")
    A(f"s_cbranch_scc1 L_setup3")
    poll("L_poll1b", aPl, [sPL, sPL2], OPT['sl1'], OPT['at1'])
    lds_post(4)
A.label("L_setup3")
A(f"""
v_lshrrev_b32 {v(PH)}, 2, {v(c_)}
v_lshl_add_u32 {v(PH)}, {v(PH)}, 7, {s(sSB)}
v_cvt_f32_u32 {v(PH)}, {v(PH)}
v_mul_f32 {v(PH)}, {fbits(1/2048)}, {v(PH)}
v_add_f32 {v(PH+1)}, {fbits(0.25)}, {v(PH)}
v_and_b32 {v(PH+2)}, 1, {v(c_)}
v_cvt_f32_u32 {v(PH+2)}, {v(PH+2)}
v_mul_f32 {v(PH+2)}, {fbits(-0.25)}, {v(PH+2)}
v_add_f32 {v(PH+3)}, {fbits(-0.125)}, {v(PH+2)}
v_add_f32 {v(PH+2)}, {fbits(0.125)}, {v(PH+2)}
v_and_b32 {v(PH+4)}, 2, {v(c_)}
v_lshlrev_b32 {v(PH+4)}, 30, {v(PH+4)}
v_xor_b32 {v(PH+2)}, {v(PH+4)}, {v(PH+2)}
v_xor_b32 {v(PH+3)}, {v(PH+4)}, {v(PH+3)}
v_lshlrev_b32 {v(PH+4)}, 1, {v(g_)}
v_cvt_f32_u32 {v(PH+4)}, {v(PH+4)}
v_add_f32 {v(PH+5)}, 1.0, {v(PH+4)}
v_add_f32 {v(PH+6)}, {fbits(8.0)}, {v(PH+4)}
v_add_f32 {v(PH+7)}, {fbits(9.0)}, {v(PH+4)}
""")
for mt in range(2):
    for j in range(4):
        t = TMP + (mt*4+j)*3
        A(f"v_fma_f32 {v(t)}, {v(PH+mt)}, {v(PH+4+j)}, {v(PH+2+(j&1))}")
        A(f"v_cos_f32 {v(t+1)}, {v(t)}")
        A(f"v_sin_f32 {v(t+2)}, {v(t)}")
for mt in range(2):
    for j in range(4):
        t = TMP + (mt*4+j)*3
        cvt(M3+mt*4+j, t+1, t+2, False, True)
A3 = 237
aD3, aPw, aQ1, aQ0, aRd3, aPl3, aBr, aSo, aQp = range(A3, A3+9)
aT = list(range(A3+9, A3+13))
aB = list(range(A3+13, A3+17))
sP3, sMR, sS3 = sT[1], sT[2], sT[3]
A(f"""
v_lshlrev_b32 {v(PH)}, 2, {v(g_)}
v_xor_b32 {v(PH)}, {v(PH)}, {v(c_)}
v_lshlrev_b32 {v(PH)}, 4, {v(PH)}
v_lshl_add_u32 {v(aD3)}, {v(g_)}, 8, {v(PH)}
v_lshrrev_b32 {v(PH)}, 3, {v(vL)}
v_and_b32 {v(PH+1)}, 3, {v(PH)}
v_lshlrev_b32 {v(PH+1)}, 6, {v(PH+1)}
v_lshl_add_u32 {v(PH)}, {v(PH)}, 8, {v(PH+1)}
v_and_b32 {v(PH+1)}, 3, {v(vL)}
v_lshl_add_u32 {v(PH)}, {v(PH+1)}, 4, {v(PH)}
v_and_b32 {v(PH+1)}, 4, {v(vL)}
v_lshl_add_u32 {v(PH)}, {v(PH+1)}, 1, {v(PH)}
v_add_u32 {v(aT[0])}, {s(sW12)}, {v(PH)}
v_xor_b32 {v(aT[1])}, 64, {v(aT[0])}
v_xor_b32 {v(aT[2])}, 128, {v(aT[0])}
v_xor_b32 {v(aT[3])}, 192, {v(aT[0])}
v_mul_u32_u24 {v(PH)}, {PS2}, {v(g_)}
s_lshl_b32 {s(sT[0])}, {s(sW)}, 8
s_add_u32 {s(sT[1])}, {s(sT[0])}, {EX2}
s_sub_u32 {s(sT[0])}, {EX2+15*256}, {s(sT[0])}
v_lshl_add_u32 {v(aPw)}, {v(c_)}, 3, {v(PH)}
v_add_u32 {v(aPw)}, {s(sT[1])}, {v(aPw)}
v_sub_u32 {v(PH+1)}, 16, {v(c_)}
v_lshl_add_u32 {v(PH+1)}, {v(PH+1)}, 3, {v(PH)}
v_add_u32 {v(aQp)}, {s(sT[0])}, {v(PH+1)}
v_cmp_eq_u32 vcc, 0, {v(c_)}
v_mov_b32 {v(PH+2)}, 128
v_mov_b32 {v(PH+3)}, 132
v_mov_b32 {v(PH+4)}, -124
v_cndmask_b32 {v(PH+4)}, {v(PH+2)}, {v(PH+4)}, vcc
v_cndmask_b32 {v(PH+3)}, {v(PH+3)}, {v(PH+2)}, vcc
v_add_u32 {v(aQ1)}, {v(aQp)}, {v(PH+4)}
v_add_u32 {v(aQ0)}, {v(aQp)}, {v(PH+3)}
s_mul_i32 {s(sT[0])}, {s(sW)}, {PS2}
s_add_u32 {s(sT[0])}, {s(sT[0])}, {EX2}
v_and_b32 {v(PH+1)}, 31, {v(vL)}
v_lshrrev_b32 {v(PH+2)}, 5, {v(vL)}
v_lshlrev_b32 {v(PH+3)}, 9, {v(PH+2)}
v_lshl_add_u32 {v(PH+3)}, {v(PH+1)}, 3, {v(PH+3)}
v_add_u32 {v(aRd3)}, {s(sT[0])}, {v(PH+3)}
v_mul_u32_u24 {v(aPl3)}, {FS2}, {v(c_)}
s_add_u32 {s(sP3)}, {s(sM8)}, {s(sW)}
s_lshl_b32 {s(sP3)}, {s(sP3)}, 3
s_lshr_b32 {s(sT[0])}, {s(sRHO)}, 4
s_add_u32 {s(sP3)}, {s(sP3)}, {s(sT[0])}
s_mul_i32 {s(sP3)}, {s(sP3)}, {P2}
s_add_u32 {s(sP3)}, {s(sP3)}, {F2}
s_lshl_b32 {s(sMR)}, {s(sM)}, 7
s_add_u32 {s(sMR)}, {s(sMR)}, {s(sRHO)}
s_lshl_b32 {s(sS3)}, {s(sMR)}, 15
s_add_u32 {s(sS3)}, {s(sS3)}, {s(sW12)}
s_add_u32 {s(sS3)}, {s(sS3)}, {T2}
v_bfe_u32 {v(PH+3)}, {v(vL)}, 1, 2
v_lshlrev_b32 {v(PH+3)}, 4, {v(PH+3)}
v_lshl_add_u32 {v(PH)}, {v(PH+1)}, 6, {v(PH+3)}
v_lshl_add_u32 {v(PH)}, {v(PH+2)}, 3, {v(PH)}
v_add_u32 {v(aB[0])}, {s(sW12)}, {v(PH)}
v_xor_b32 {v(aB[1])}, 16, {v(aB[0])}
v_xor_b32 {v(aB[2])}, 32, {v(aB[0])}
v_xor_b32 {v(aB[3])}, 48, {v(aB[0])}
v_bfe_u32 {v(PH)}, {v(vL)}, 3, 2
v_xor_b32 {v(PH)}, {v(PH)}, {v(vL)}
v_lshl_add_u32 {v(aBr)}, {v(PH)}, 4, {s(sW12)}
v_lshlrev_b32 {v(aSo)}, 4, {v(vL)}
s_lshl_b32 {s(sO[0])}, {s(sW)}, 7
s_add_u32 {s(sO[0])}, {s(sO[0])}, {s(sSB)}
s_lshl_b32 {s(sO[0])}, {s(sO[0])}, 12
s_lshl_b32 {s(sO[1])}, {s(sM)}, 11
s_add_u32 {s(sO[0])}, {s(sO[0])}, {s(sO[1])}
s_add_u32 {s(sO[1])}, {s(sO[0])}, {1024*4096}
s_mov_b32 {s(sPM)}, 0x05040100
s_mov_b32 {s(sPM+1)}, 0x07060302
s_waitcnt lgkmcnt(0)
""")
for i in range(16):
    A(f"v_perm_b32 {v(GR+i)}, {v(FN+i//2)}, {v(FC+i//2)}, {s(sPM+(i&1))}")
    A(f"v_perm_b32 {v(GI+i)}, {v(FC+i//2)}, {v(FS+i//2)}, {s(sPM+(i&1))}")
A(f"""
s_cmp_lg_u32 {s(sROLE)}, 0
s_cbranch_scc1 L_p2done
L_setup3_done:
v_mov_b32 {v(vTAG)}, {s(sTAG)}
v_mov_b32 {v(vZ)}, 0
s_mov_b32 m0, {s(sW12)}
s_waitcnt vmcnt(0)
s_mov_b64 exec, 1
{FST} {v(vTAG)}, {v(vZ)}, {srd(WS_)}, {s(sF2)} offen sc1
s_or_b32 {s(sT[0])}, {s(sRHO)}, {s(sW)}
s_cbranch_scc1 L_noep
s_lshl_b32 {s(sT[0])}, {s(sM)}, 8
s_add_u32 {s(sT[0])}, {s(sT[0])}, {EW}
buffer_store_dword {v(vTAG)}, {v(vZ)}, {srd(WS_)}, {s(sT[0])} offen sc1
L_noep:
s_mov_b64 exec, 0xffff
""")
stamp("fl2")
poll("L_poll2", aPl3, [sP3], OPT['sl2'], OPT['at2'])
stamp("pol2")
for j in range(4):
    A(f"buffer_load_dwordx4 {v(aD3)}, {srd(WS_)}, {s(sS3)} offen offset:{j*1024} sc1 lds")
A(f"""
s_cmp_lg_u32 {s(sW)}, 0
s_cbranch_scc1 L_nosp3
s_lshl_b32 {s(sT[4])}, {s(sMR)}, 6
s_add_u32 {s(sT[4])}, {s(sT[4])}, {T2X}
v_lshlrev_b32 {v(PH+1)}, 4, {v(g_)}
buffer_load_dwordx4 {v(TMP,4)}, {v(PH+1)}, {srd(WS_)}, {s(sT[4])} offen sc1
s_waitcnt vmcnt(0)
v_perm_b32 {v(XR)}, {v(TMP+2)}, {v(TMP)}, {s(sPM)}
v_perm_b32 {v(XR+1)}, {v(TMP+2)}, {v(TMP)}, {s(sPM+1)}
v_perm_b32 {v(XR+2)}, {v(TMP+3)}, {v(TMP+1)}, {s(sPM)}
v_perm_b32 {v(XR+3)}, {v(TMP+3)}, {v(TMP+1)}, {s(sPM+1)}
""")
m16(D2R, M3, XR, None); m16(D2R+4, M3+4, XR, None)
for mt in range(2):
    A(f"v_add_f32 {v(TMP+2*mt)}, {v(D2R+4*mt)}, {v(D2R+4*mt+2)}")
    A(f"v_add_f32 {v(TMP+2*mt+1)}, {v(D2R+4*mt+1)}, {v(D2R+4*mt+3)}")
    A(f"v_mul_f32 {v(TMP+2*mt)}, 0.5, {v(TMP+2*mt)}")
    A(f"v_mul_f32 {v(TMP+2*mt+1)}, 0.5, {v(TMP+2*mt+1)}")
    cvt(TMP+4+mt, TMP+2*mt, TMP+2*mt+1)
A(f"""
s_mov_b32 exec_lo, 0x00010001
s_mov_b32 exec_hi, 0x00010001
ds_write_b32 {v(aPw)}, {v(TMP+4)} offset:{8*256}
ds_write_b32 {v(aPw)}, {v(TMP+5)} offset:{8*256+4*PS2}
s_mov_b64 exec, -1
L_nosp3:
s_waitcnt vmcnt(0)
""")
stamp("dat2")
for t in (0, 2, 1, 3):
    for jj in range(2):
        A(f"ds_read_b64_tr_b16 {v(XR+4*t+2*jj,2)}, {v(aT[t])} offset:{jj*2048}")
for i, t in enumerate((0, 2, 1, 3)):
    A(f"s_waitcnt lgkmcnt({6-2*i})")
    m16(D1R+8*t, M3, XR+4*t, None); m16(D1R+8*t+4, M3+4, XR+4*t, None)
A(f"""
s_cmp_lg_u32 {s(sW)}, 0
s_cbranch_scc1 L_nofix
s_mov_b32 exec_lo, 0x00010001
s_mov_b32 exec_hi, 0x00010001
""")
for mt in range(2):
    for i in range(2):
        A(f"v_add_f32 {v(D1R+4*mt+i)}, {v(D1R+4*mt+i)}, {v(D1R+4*mt+2+i)}")
        A(f"v_mul_f32 {v(D1R+4*mt+i)}, 0.5, {v(D1R+4*mt+i)}")
A("s_mov_b64 exec, -1")
A.label("L_nofix")
A("s_nop 1")
for tp in range(2):
    for mt in range(2):
        d0 = D1R + 8*tp + 4*mt; d1 = d0 + 16
        o = TMP + 8 + (tp*2+mt)*4
        cvt(o, d0, d0+1); cvt(o+1, d1, d1+1)
        A(f"ds_write_b64 {v(aPw)}, {v(o,2)} offset:{mt*4*PS2+tp*128}")
        cvt(o+2, d1+2, d1+3); cvt(o+3, d0+2, d0+3)
        if tp == 1:
            A(f"ds_write_b64 {v(aQp)}, {v(o+2,2)} offset:{mt*4*PS2}")
        else:
            A(f"ds_write_b32 {v(aQ1)}, {v(o+2)} offset:{mt*4*PS2}")
            A(f"ds_write_b32 {v(aQ0)}, {v(o+3)} offset:{mt*4*PS2}")
A("s_waitcnt lgkmcnt(0)")
A("s_barrier")
stamp("bar3")
for t in range(4):
    for j in range(2):
        A(f"ds_read_b64 {v(XR+4*t+2*j,2)}, {v(aRd3)} offset:{t*1024+j*256}")
for t in range(4):
    A(f"s_waitcnt lgkmcnt({6-2*t})")
    m32(D1R, XR+4*t, GR+4*t, D1R if t else None); m32(D1I, XR+4*t, GI+4*t, D1I if t else None)
twiddle(D1R, D1I, XR, XI, True)
m32(D2R, XR, FC, None); m32(D2R, XI, FN, D2R); m32(D2R, XR+4, FC+4, D2R); m32(D2R, XI+4, FN+4, D2R)
m32(D2I, XR, FS, None); m32(D2I, XI, FC, D2I); m32(D2I, XR+4, FS+4, D2I); m32(D2I, XI+4, FC+4, D2I)
for comp, d in ((0, D2R), (1, D2I)):
    for q in range(4):
        o = TMP + comp*8 + 2*q
        cvt(o, d+4*q, d+4*q+1); cvt(o+1, d+4*q+2, d+4*q+3)
        A(f"ds_write_b64 {v(aB[q])}, {v(o,2)} offset:{comp*2048}")
    for j in range(2):
        A(f"ds_read_b128 {v(D1R+comp*8+4*j,4)}, {v(aBr)} offset:{comp*2048+j*1024}")
for comp in range(2):
    for j in range(2):
        A(f"s_waitcnt lgkmcnt({(7 if comp == 0 else 1) - j})")
        A(f"buffer_store_dwordx4 {v(D1R+comp*8+4*j,4)}, {v(aSo)}, {srd(OUT_)}, {s(sO[comp])} offen offset:{j*1024}{OUTM}")
if OPT['stamp']:
    stamp("st3")
    A("s_waitcnt vmcnt(0)")
    stamp("end")
    A("s_waitcnt lgkmcnt(0)")
    n = len(stamps)
    assert sST + 2*n <= 96, n
    if OPT['amp']:
        j = OPT['amp']
        A(f'''
        s_cmp_lg_u32 {s(sW)}, {OPT['ampw']}
        s_cbranch_scc1 L_end
        s_cmp_lg_u32 s2, 100
        s_cbranch_scc1 L_end
        s_sub_u32 {s(sT[0])}, {s(sST+2*j)}, {s(sST)}
        s_lshl_b32 {s(sT[0])}, {s(sT[0])}, 2
        s_min_u32 {s(sT[0])}, {s(sT[0])}, 20000
        s_add_u32 {s(sT[0])}, {s(sT[0])}, {s(sST+2*(n-1))}
        L_amp:
        s_memrealtime {s(sT[2],2)}
        s_waitcnt lgkmcnt(0)
        s_sub_u32 {s(sT[1])}, {s(sT[0])}, {s(sT[2])}
        s_cmp_gt_i32 {s(sT[1])}, 0
        s_cbranch_scc1 L_amp
        s_branch L_end
        ''')
    A(f"s_lshl_b32 {s(sT[0])}, s2, 3")
    A(f"s_add_u32 {s(sT[0])}, {s(sT[0])}, {s(sW)}")
    A(f"s_lshl_b32 {s(sT[0])}, {s(sT[0])}, 7")
    A(f"s_add_u32 {s(sT[0])}, {s(sT[0])}, {STAMP}")
    A("v_mov_b32 v3, 0")
    A("s_mov_b64 exec, 1")
    for i in range(n):
        A(f"v_mov_b32 v2, {s(sST+2*i)}")
        A(f"buffer_store_dword v2, v3, {srd(WS_)}, {s(sT[0])} offen offset:{i*4}")
    A.raw("; stamps: " + " ".join(stamps))
A.label("L_end")
A("s_endpgm")
tab = np.zeros((32, 64, 8), dtype=np.float64)
lane = np.arange(64); row = lane & 15; g = lane >> 4
for u in range(4):
    for t in range(2):
        for i in range(8):
            sl = 16*(i >> 2) + 4*g + (i & 3)
            phf = ((4*sl + u) * (16*t + row)) % 128
            phi = ((4*(16*t + row) + u) * sl) % 128
            tab[u*4+t*2, :, i] = np.cos(2*np.pi*phf/128); tab[u*4+t*2+1, :, i] = np.sin(2*np.pi*phf/128)
            tab[16+u*4+t*2, :, i] = np.cos(2*np.pi*phi/128); tab[16+u*4+t*2+1, :, i] = np.sin(2*np.pi*phi/128)
cz = lambda x: np.where(np.abs(x) < 1e-9, 0.0, x)
tb = bf16(cz(tab)).reshape(-1, 2)
dw = tb[:, 0] | (tb[:, 1] << 16)
def emit(words):
    for i in range(0, len(words), 8): A.raw(".long " + ",".join("0x%x" % x for x in words[i:i+8]))
A.raw(".p2align 8\n.type L_tab,@object\nL_tab:")
emit(dw)
idx = lambda i: 8*(i >> 2) + 4*(lane >> 5) + (i & 3)
f32b = lambda x: np.asarray(x, dtype=np.float32).view(np.uint32)
ph = np.stack([(lane & 31) * idx(i) for i in range(16)])
regs = list(f32b(cz(np.cos(2*np.pi*ph/1024)))) + list(f32b(cz(np.sin(2*np.pi*ph/1024))))
for fn in (lambda p: np.cos(p), lambda p: np.sin(p), lambda p: -np.sin(p)):
    h = bf16(cz(fn(2*np.pi*(ph % 32)/32)))
    regs += [h[2*i] | (h[2*i+1] << 16) for i in range(8)]
A.raw("L_tab1:")
emit(np.stack(regs).reshape(14, 4, 64).transpose(0, 2, 1).reshape(-1))
A.raw("L_tab_end:\n.size L_tab, L_tab_end-L_tab")
def kd(name, nv, ns):
    A.raw(f""".p2align 6
.amdhsa_kernel {name}
  .amdhsa_next_free_vgpr {nv}
  .amdhsa_next_free_sgpr {ns}
  .amdhsa_accum_offset {nv}
  .amdhsa_group_segment_fixed_size 0
  .amdhsa_kernarg_size 72
  .amdhsa_user_sgpr_count 2
  .amdhsa_user_sgpr_kernarg_segment_ptr 1
  .amdhsa_system_sgpr_workgroup_id_x 1
  .amdhsa_float_denorm_mode_32 3
.end_amdhsa_kernel""")
A.raw('.section .rodata,"a"')
kd(NAME + "_kernel", 256, 102)
if OPT['lst']: kd("empty_kernel", 8, 16)
open(sys.argv[1], "w").write(A.text())
print(sys.argv[1], "nops:", A.nops, "stamps:", len(stamps), file=sys.stderr)
```

```python
import sys, struct
import numpy as np
from asmlib import Asm, v, s

NAME = "concat_heads__spectral_gfnet__spectral_gfnet__prompt"
OPT = dict(outm=1, xnt=0, wnt=0, ne=3, xprio=1, lw=1, gpos=1, amp=0, ampw=0, stamp=0, sl1=0, sl2=0, lst=0, half=0)
for a_ in sys.argv[2:]:
    k_, v_ = a_.split('='); assert k_ in OPT, k_; OPT[k_] = int(v_)

def fbits(x): return "0x%08x" % struct.unpack('<I', struct.pack('<f', x))[0]
def bf16(x):
    u = np.asarray(x, dtype=np.float32).view(np.uint32)
    return ((u + 0x7FFF + ((u >> 16) & 1)) >> 16).astype(np.uint32)

T1 = 0
T2 = 8 << 20
AUX = 16 << 20
T1X = AUX
T2X = AUX + 0x4000
WX = AUX + 0x8000
CP = 256
C1 = AUX + 0x10000
C2 = AUX + 0x20000
EW = AUX + 0xa0000
STAMP = AUX + 0x100000
WSZ = 32 << 20
EXOFF = 32768
PS = 5184
WOFF = EXOFF + 8 * PS
WA = 128 * 144
M2OFF = WOFF + 2 * WA
SYOFF = M2OFF + 32768
PGOFF = SYOFF + 64
T1OFF = PGOFF + 2048
LDSZ = T1OFF + 14336
EX2 = EXOFF
OS = 8320
XOUT = EXOFF + 32768
PS2 = 4160
sW, sM, sRHO, sSB, sA, sGRP = 3, 4, 5, 6, 7, 32
X_, WR_, WI_, OUT_, WS_, TAB_ = 8, 12, 16, 20, 24, 28
sCNT = 33
sT = list(range(34, 48))
sV = 48
sEXP = 50
sTAG = 51
sW12, sM8, sE, sROLE, sC1, sC2 = 52, 53, 54, 55, 56, 57
sPM = 58
sST = 60
sO = [96, 97]
sU = [98, 99, 100, 101]
sONE = sU[2]
srd = lambda b: s(b, 4)

A = Asm()
XNT = ' nt' if OPT['xnt'] else ''
WNT = ' nt' if OPT['wnt'] else ''
OUTM = ['', ' sc1', ' nt', ' sc0 sc1', ' sc1 nt', ' sc0 sc1 nt'][OPT['outm']]
def M32(d, a, b, c): return f"v_mfma_f32_32x32x16_bf16 {v(d,16)}, {v(a,4)}, {v(b,4)}, {v(c,16) if c is not None else 0}"
def M16(d, a, b, c): return f"v_mfma_f32_16x16x32_bf16 {v(d,4)}, {v(a,4)}, {v(b,4)}, {v(c,4) if c is not None else 0}"
def CVT(d, a, b, na=False, nb=False): return f"v_cvt_pk_bf16_f32 {v(d)}, {'-' if na else ''}{v(a)}, {'-' if nb else ''}{v(b)}"
def m32(*a): A(M32(*a))
def m16(*a): A(M16(*a))
def cvt(*a): A(CVT(*a))
def weave(mf, fill, per):
    fill = list(fill)
    for i, m in enumerate(mf):
        A(m)
        n = per[i] if isinstance(per, (list, tuple)) else per
        for _ in range(n):
            if fill: A(fill.pop(0))
    for f in fill: A(f)
stamps = []
def stamp(name, sets=(1,)):
    st = OPT['stamp']
    if name in ("start", "end"):
        if st: A(f"s_memrealtime {s(sST + 2*len(stamps), 2)}"); stamps.append(name)
        if st > 1: A(f"s_memtime {s(sST + 2*len(stamps), 2)}"); stamps.append("c" + name)
    elif st in sets:
        if name not in stamps: stamps.append(name)
        A(f"{'s_memrealtime' if st == 1 else 's_memtime'} {s(sST + 2*stamps.index(name), 2)}")

vL, c_, g_ = 1, 2, 3
vT = list(range(2, 16))
TC, TS = 16, 32
FC, FS, FN = 48, 56, 64
M3 = 72
GR, GI = 80, 96
XR, XI = 112, 120
D1R, D1I = 128, 144
D2R, D2I = 160, 176
TMP = 192
PH = 224
WRF, WIF = 16, 48
FR = 80
DRE, DIM, DNR = 144, 160, 176
ER, EI = 192, 224

def peek(off, imm=0):
    A(f"s_mov_b64 {s(sV,2)}, 0")
    A(f"s_atomic_or_x2 {s(sV,2)}, {s(WS_,2)}, {s(off)} glc" if not imm else f"s_atomic_or_x2 {s(sV,2)}, {s(WS_,2)}, {s(off)} offset:{imm} glc")
def poll(label, off, count, sleep, imm=0):
    A(f"s_mov_b32 {s(sEXP)}, {count}")
    A(f"s_mov_b32 {s(sCNT)}, 0x8000")
    A.label(label)
    peek(off, imm)
    A(f"s_sub_u32 {s(sCNT)}, {s(sCNT)}, 1")
    A(f"s_cbranch_scc1 {label}_out")
    if sleep: A(f"s_sleep {sleep}")
    A("s_waitcnt lgkmcnt(0)")
    A(f"s_cmp_eq_u64 {s(sV,2)}, {s(sEXP,2)}")
    A(f"s_cbranch_scc0 {label}")
    A.label(label + "_out")
def validate(label, off, imm=0):
    A(f"s_mov_b32 {s(sCNT)}, 0x8000")
    A.label(label)
    A("s_waitcnt lgkmcnt(0)")
    A(f"s_cmp_eq_u32 {s(sV+1)}, {s(sTAG)}")
    A(f"s_cbranch_scc1 {label}_out")
    peek(off, imm)
    A(f"s_sub_u32 {s(sCNT)}, {s(sCNT)}, 1")
    A(f"s_cbranch_scc0 {label}")
    A("s_waitcnt lgkmcnt(0)")
    A.label(label + "_out")
def signal(off, imm=0):
    A(f"s_atomic_add {s(sONE)}, {s(WS_,2)}, {s(off)}" + (f" offset:{imm}" if imm else ""))

vSY, vS1, vPG = vT[12], vT[13], vT[11]
def lds_wait(label, off, val):
    A(f"s_mov_b32 {s(sCNT)}, 0x40000")
    A.label(label)
    A(f"ds_read_b32 {v(vS1)}, {v(vSY)} offset:{off}")
    A(f"s_sub_u32 {s(sCNT)}, {s(sCNT)}, 1")
    A(f"s_cbranch_scc1 {label}_out")
    A("s_waitcnt lgkmcnt(0)")
    A(f"v_cmp_gt_u32 vcc, {val}, {v(vS1)}")
    A("s_and_b64 vcc, vcc, vcc")
    A(f"s_cbranch_scc1 {label}")
    A.label(label + "_out")
def lds_post(off, rtn=False):
    A(f"v_mov_b32 {v(vS1)}, 1")
    A("s_mov_b64 exec, 1")
    if rtn: A(f"ds_add_rtn_u32 {v(vS1)}, {v(vSY)}, {v(vS1)} offset:{off}")
    else: A(f"ds_add_u32 {v(vSY)}, {v(vS1)} offset:{off}")
    A("s_mov_b64 exec, -1")

WD_ = X_
sWB, sI = sU[0], sU[3]
def w_loop(label, stride, end):
    A(f"""
    {label}:
    s_mul_i32 {s(sT[12])}, {s(sI)}, 57
    s_lshr_b32 {s(sT[12])}, {s(sT[12])}, 9
    s_mul_i32 {s(sT[13])}, {s(sT[12])}, 9
    s_sub_u32 {s(sT[13])}, {s(sI)}, {s(sT[13])}
    v_add_u32 {v(PH+30)}, {s(sT[13])}, {v(vL)}
    s_cmp_lt_u32 {s(sI)}, 18
    s_cselect_b32 {s(WD_)}, {s(WR_)}, {s(WI_)}
    s_cselect_b32 {s(WD_+1)}, {s(WR_+1)}, {s(WI_+1)}
    v_mul_u32_u24 {v(PH+31)}, 57, {v(PH+30)}
    s_and_b32 {s(sT[12])}, {s(sT[12])}, 1
    s_lshl_b32 {s(sT[12])}, {s(sT[12])}, 6
    v_lshrrev_b32 {v(PH+31)}, 9, {v(PH+31)}
    s_mul_i32 {s(sT[13])}, {s(sT[13])}, 7
    s_add_u32 {s(sT[12])}, {s(sT[12])}, {s(sT[13])}
    v_mul_u32_u24 {v(PH+31)}, {16416-144}, {v(PH+31)}
    s_mul_i32 {s(sT[12])}, {s(sT[12])}, 16416
    s_add_u32 {s(sT[12])}, {s(sT[12])}, {s(sWB)}
    v_lshl_add_u32 {v(PH+30)}, {v(PH+30)}, 4, {v(PH+31)}
    s_lshl_b32 {s(sT[13])}, {s(sI)}, 10
    s_add_u32 m0, {s(sT[13])}, {WOFF}
    s_add_u32 {s(sI)}, {s(sI)}, {stride}
    buffer_load_dwordx4 {v(PH+30)}, {srd(WD_)}, {s(sT[12])} offen{WNT} lds
    s_cmp_lt_u32 {s(sI)}, {end}
    s_cbranch_scc1 {label}
    """)

def gen_m2():
    G = D2R
    kf, s0, af, bf, ai, bi, ad = G, G+1, G+2, G+3, G+4, G+5, G+6
    P, C_, S_ = D1R, D1R+16, G+8
    A(f"""
    s_and_b32 {s(sT[12])}, {s(sW)}, 1
    s_lshl_b32 {s(sT[12])}, {s(sT[12])}, 4
    s_lshr_b32 {s(sT[13])}, {s(sW)}, 1
    v_add_u32 {v(kf)}, {s(sT[12])}, {v(c_)}
    v_lshl_add_u32 {v(ai)}, {v(kf)}, 2, {s(sT[13])}
    v_lshl_add_u32 {v(s0)}, {v(g_)}, 4, {s(sT[13])}
    v_mul_u32_u24 {v(bf)}, {v(s0)}, {v(kf)}
    v_mul_u32_u24 {v(bi)}, {v(g_)}, {v(ai)}
    v_cvt_f32_u32 {v(af)}, {v(kf)}
    v_cvt_f32_u32 {v(ai)}, {v(ai)}
    v_cvt_f32_u32 {v(bf)}, {v(bf)}
    v_cvt_f32_u32 {v(bi)}, {v(bi)}
    v_mul_f32 {v(bf)}, {fbits(1/128)}, {v(bf)}
    v_mul_f32 {v(bi)}, {fbits(1/32)}, {v(bi)}
    s_lshl_b32 {s(sT[12])}, {s(sW)}, 11
    s_add_u32 {s(sT[12])}, {s(sT[12])}, {M2OFF}
    v_lshl_add_u32 {v(ad)}, {v(vL)}, 4, {s(sT[12])}
    """)
    for d in range(2):
        for i in range(8):
            c = 16*(i >> 2) + (i & 3)
            A(f"v_fmamk_f32 {v(P+8*d+i)}, {v(ai if d else af)}, {fbits(c/128 if d else c/32)}, {v(bi if d else bf)}")
    for i in range(16):
        A(f"v_cos_f32 {v(C_+i)}, {v(P+i)}")
        A(f"v_sin_f32 {v(S_+i)}, {v(P+i)}")
    for d in range(2):
        for j in range(4):
            cvt(P+8*d+j, C_+8*d+2*j, C_+8*d+2*j+1)
            cvt(P+8*d+4+j, S_+8*d+2*j, S_+8*d+2*j+1)
    for d in range(2):
        for cs in range(2):
            A(f"ds_write_b128 {v(ad)}, {v(P+8*d+4*cs,4)} offset:{d*16384+cs*1024}")

def load_tables(addr):
    for i in (8, 9, 10, 11, 12, 13, 0, 4, 1, 5, 2, 6, 3, 7):
        A(f"ds_read_b128 {v(TC+4*i,4)}, {v(addr)} offset:{i*1024}")

def TW(dr, di, outr, outi, conj, lo, hi):
    L = []
    for i in range(lo, hi, 2):
        t = TMP + (i % 8) * 2
        for e in range(2):
            L.append(f"v_mul_f32 {v(t+e)}, {v(dr+i+e)}, {v(TC+i+e)}")
            L.append(f"v_mul_f32 {v(t+2+e)}, {v(di+i+e)}, {v(TC+i+e)}")
        for e in range(2):
            if not conj:
                L.append(f"v_fmac_f32 {v(t+e)}, {v(di+i+e)}, {v(TS+i+e)}")
                L.append(f"v_fma_f32 {v(t+2+e)}, -{v(dr+i+e)}, {v(TS+i+e)}, {v(t+2+e)}")
            else:
                L.append(f"v_fma_f32 {v(t+e)}, -{v(di+i+e)}, {v(TS+i+e)}, {v(t+e)}")
                L.append(f"v_fmac_f32 {v(t+2+e)}, {v(dr+i+e)}, {v(TS+i+e)}")
        L.append(CVT(outr + i//2, t, t+1))
        L.append(CVT(outi + i//2, t+2, t+3))
    return L

if OPT['lst'] == 0: A.raw(f"; @launch grid=(256,1,1) block=(512,1,1) lds={LDSZ}")
else:
    A.raw(f"; @launch kernel={NAME}_kernel grid=(256,1,1) block=(512,1,1) lds={LDSZ}")
    A.raw(f"; @launch kernel=empty_kernel grid=(1,1,1) block=(64,1,1) lds=0")
A.raw('.amdgcn_target "amdgcn-amd-amdhsa--gfx950"\n.text')
if OPT['lst']: A.raw(".globl empty_kernel\n.p2align 8\n.type empty_kernel,@function\nempty_kernel:\n s_endpgm")
A.raw(f".globl {NAME}_kernel\n.p2align 8\n.type {NAME}_kernel,@function")
A.label(f"{NAME}_kernel")
aL16 = GR + 1
A(f"""
s_cmp_ge_u32 s2, 256
s_cbranch_scc1 L_end
s_bfe_u32 {s(sM)}, s2, 0x10003
s_mul_i32 {s(sT[0])}, {s(sM)}, 24
s_load_dwordx2 {s(X_,2)}, s[0:1], {s(sT[0])}
s_load_dwordx2 {s(WS_,2)}, s[0:1], 64
s_load_dwordx2 {s(WR_,2)}, s[0:1], {s(sT[0])} offset:8
s_load_dwordx2 {s(WI_,2)}, s[0:1], {s(sT[0])} offset:16
s_load_dwordx2 {s(OUT_,2)}, s[0:1], 48
""")
stamp("start")
A(f"""
s_getpc_b64 {s(TAB_,2)}
L_pc:
v_lshrrev_b32 v2, 6, v0
s_mov_b32 {s(TAB_+2)}, L_tab_end-L_pc
s_mov_b32 {s(TAB_+3)}, 0x20000
v_readfirstlane_b32 {s(sW)}, v2
v_lshlrev_b32 v3, 11, v2
s_lshr_b32 {s(sT[6])}, s2, 4
s_lshl_b32 {s(sT[6])}, {s(sT[6])}, 7
buffer_load_dword {v(GR)}, v3, {srd(TAB_)}, {s(sT[6])} offen
v_and_b32 {v(vL)}, 63, v0
v_lshlrev_b32 {v(aL16)}, 4, {v(vL)}
s_lshl_b32 {s(sT[8])}, {s(sW)}, 11
s_add_u32 m0, {s(sT[8])}, {T1OFF}
s_add_u32 {s(sT[6])}, {s(sT[8])}, L_tab1-L_pc
buffer_load_dwordx4 {v(aL16)}, {srd(TAB_)}, {s(sT[6])} offen lds
buffer_load_dwordx4 {v(aL16)}, {srd(TAB_)}, {s(sT[6])} offen offset:1024 lds
s_and_b32 {s(sT[1])}, s2, 7
s_lshr_b32 {s(sT[2])}, s2, 4
s_lshl_b32 {s(sRHO)}, {s(sT[1])}, 4
s_add_u32 {s(sRHO)}, {s(sRHO)}, {s(sT[2])}
s_and_b32 {s(sSB)}, {s(sRHO)}, 31
s_lshl_b32 {s(sSB)}, {s(sSB)}, 2
s_lshr_b32 {s(sT[5])}, {s(sRHO)}, 5
s_add_u32 {s(sSB)}, {s(sSB)}, {s(sT[5])}
s_mov_b32 {s(X_+2)}, 4194304
s_mov_b32 {s(X_+3)}, 0x20000
s_lshl_b32 {s(sT[3])}, {s(sW)}, 7
s_add_u32 {s(sT[3])}, {s(sT[3])}, {s(sSB)}
s_lshl_b32 {s(sT[3])}, {s(sT[3])}, 11
s_add_u32 {s(sT[4])}, {s(sT[3])}, 0x200000
s_lshl_b32 {s(sW12)}, {s(sW)}, 12
s_mov_b32 m0, {s(sW12)}
s_lshl_b32 {s(sT[6])}, {s(sM)}, 8
s_add_u32 {s(sT[6])}, {s(sT[6])}, {EW}
s_waitcnt lgkmcnt(0)
""")
A(f"""
buffer_load_dwordx4 {v(aL16)}, {srd(X_)}, {s(sT[3])} offen{XNT} lds
s_load_dword {s(sE)}, {s(WS_,2)}, {s(sT[6])} glc
buffer_load_dwordx4 {v(aL16)}, {srd(X_)}, {s(sT[3])} offen offset:1024{XNT} lds
s_add_u32 m0, {s(sW12)}, 2048
s_lshl_b32 {s(sA)}, {s(sT[1])}, 1
buffer_load_dwordx4 {v(aL16)}, {srd(X_)}, {s(sT[4])} offen{XNT} lds
buffer_load_dwordx4 {v(aL16)}, {srd(X_)}, {s(sT[4])} offen offset:1024{XNT} lds
s_mov_b32 {s(WS_+2)}, {WSZ}
s_mov_b32 {s(WS_+3)}, 0x20000
s_mov_b32 {s(WR_+2)}, 2101248
s_mov_b32 {s(WR_+3)}, 0x20000
s_mov_b32 {s(WI_+2)}, 2101248
s_mov_b32 {s(WI_+3)}, 0x20000
s_mov_b32 {s(OUT_+2)}, 8388608
s_mov_b32 {s(OUT_+3)}, 0x20000
s_lshl_b32 {s(sM8)}, {s(sM)}, 3
""".replace(" glc", ""))
aPF, aG = GR + 2, GR + 3
sPF, sG = sU[0], sU[1]
SPW = 3
XIMM = (8 - SPW) * 4 * CP
A(f"""
s_lshl_b32 {s(sC1)}, {s(sM)}, 4
s_add_u32 {s(sC1)}, {s(sC1)}, {s(sW)}
s_lshl_b32 {s(sC1)}, {s(sC1)}, 2
s_add_u32 {s(sC1)}, {s(sC1)}, {s(sT[5])}
s_mul_i32 {s(sC1)}, {s(sC1)}, {CP}
s_add_u32 {s(sC1)}, {s(sC1)}, {C1}
s_add_u32 {s(sC2)}, {s(sM8)}, {s(sW)}
s_lshl_b32 {s(sC2)}, {s(sC2)}, 3
s_add_u32 {s(sC2)}, {s(sC2)}, {s(sT[1])}
s_mul_i32 {s(sC2)}, {s(sC2)}, {CP}
s_add_u32 {s(sC2)}, {s(sC2)}, {C2}
""")
A(f"""
s_lshr_b32 {s(sT[6])}, {s(sT[2])}, 3
s_add_u32 {s(sA)}, {s(sA)}, {s(sT[6])}
s_and_b32 {s(sGRP)}, {s(sT[2])}, 7
v_and_b32 {v(c_)}, 15, {v(vL)}
v_lshrrev_b32 {v(g_)}, 4, {v(vL)}
v_lshrrev_b32 v9, 2, {v(c_)}
v_and_b32 v10, 1, {v(c_)}
v_lshl_add_u32 v9, v9, 1, v10
v_and_b32 v10, 2, {v(c_)}
v_lshl_add_u32 v9, v10, 2, v9
v_mul_u32_u24 {v(aG)}, 1026, v9
s_mul_i32 {s(sG)}, {s(sRHO)}, 16416
v_mov_b32 {v(vSY)}, {SYOFF}
v_mov_b32 v8, 0
v_mov_b32 v9, 0
v_mov_b32 v10, 0
v_mov_b32 v11, 0
ds_write_b128 {v(vSY)}, v[8:11]
v_lshlrev_b32 {v(vPG)}, 2, v0
v_add_u32 {v(vPG)}, {PGOFF}, {v(vPG)}
ds_write_b32 {v(vPG)}, v8
""")
A(f"""
v_lshrrev_b32 {v(PH)}, 1, {v(c_)}
v_and_b32 {v(PH+1)}, 1, {v(PH)}
s_bfe_u32 {s(sT[0])}, {s(sRHO)}, 0x10002
v_and_b32 {v(PH+2)}, 1, {v(c_)}
v_xor_b32 {v(PH+2)}, {s(sT[0])}, {v(PH+2)}
v_sub_u32 {v(PH+2)}, {v(PH+2)}, {v(PH+1)}
v_cvt_f32_i32 {v(PH+2)}, {v(PH+2)}
v_mov_b32 {v(PH+3)}, {fbits(0.125)}
v_fmamk_f32 {v(PH+2)}, {v(PH+2)}, {fbits(0.25)}, {v(PH+3)}
v_mul_u32_u24 {v(PH+1)}, 0x8000, {v(PH+1)}
v_lshl_or_b32 {v(PH+1)}, {v(PH+1)}, 16, {v(PH+1)}
v_cvt_f32_u32 {v(PH)}, {v(PH)}
v_add_f32 {v(PH+3)}, {fbits(8.0)}, {v(PH)}
v_lshl_add_u32 {v(PH+4)}, {v(g_)}, 8, {s(sSB)}
v_cvt_f32_u32 {v(PH+4)}, {v(PH+4)}
v_mul_f32 {v(PH+4)}, {fbits(1/2048)}, {v(PH+4)}
v_add_f32 {v(PH+5)}, {fbits(1/16)}, {v(PH+4)}
""")
for mt in range(2):
    for e in range(2):
        t = PH + 8 + (mt*2+e)*3
        A(f"v_fma_f32 {v(t)}, {v(PH+4+e)}, {v(PH if mt == 0 else PH+3)}, {v(PH+2)}")
        A(f"v_cos_f32 {v(t+1)}, {v(t)}")
        A(f"v_sin_f32 {v(t+2)}, {v(t)}")
for mt in range(2):
    for e in range(2):
        t = PH + 8 + (mt*2+e)*3
        cvt(M3 + mt*4 + 2*e, t+1, t+2)
        cvt(M3 + mt*4 + 2*e + 1, t+2, t+1)
        A(f"v_xor_b32 {v(M3 + mt*4 + 2*e + 1)}, {v(PH+1)}, {v(M3 + mt*4 + 2*e + 1)}")
aTR, aP, aQe, aQo, aRD, aST = vT[2:8]
sS1 = sT[8:12]
A(f"""
v_bfe_u32 {v(PH)}, {v(vL)}, 2, 2
v_lshrrev_b32 {v(PH+1)}, 5, {v(vL)}
v_lshl_add_u32 {v(PH)}, {v(PH+1)}, 2, {v(PH)}
v_lshlrev_b32 {v(PH)}, 6, {v(PH)}
v_and_b32 {v(PH+2)}, 16, {v(vL)}
v_lshl_add_u32 {v(PH)}, {v(PH+2)}, 1, {v(PH)}
v_and_b32 {v(PH+2)}, 3, {v(vL)}
v_lshl_add_u32 {v(PH)}, {v(PH+2)}, 3, {v(PH)}
v_add_u32 {v(aTR)}, {s(sW12)}, {v(PH)}
s_mul_i32 {s(sT[0])}, {s(sW)}, {PS}
s_add_u32 {s(sT[0])}, {s(sT[0])}, {EXOFF}
v_and_b32 {v(PH+3)}, 31, {v(vL)}
v_mul_u32_u24 {v(PH+4)}, 20, {v(PH+2)}
v_lshrrev_b32 {v(PH+5)}, 2, {v(PH+3)}
v_mul_u32_u24 {v(PH+6)}, 160, {v(PH+1)}
v_add3_u32 {v(PH+4)}, {v(PH+4)}, {v(PH+5)}, {v(PH+6)}
v_lshl_add_u32 {v(aP)}, {v(PH+4)}, 3, {s(sT[0])}
v_sub_u32 {v(PH+3)}, 32, {v(PH+3)}
v_and_b32 {v(PH+4)}, 3, {v(PH+3)}
v_mul_u32_u24 {v(PH+4)}, 20, {v(PH+4)}
v_lshrrev_b32 {v(PH+5)}, 2, {v(PH+3)}
v_sub_u32 {v(PH+6)}, 160, {v(PH+6)}
v_add3_u32 {v(PH+4)}, {v(PH+4)}, {v(PH+5)}, {v(PH+6)}
v_lshl_add_u32 {v(aQe)}, {v(PH+4)}, 3, {s(sT[0])}
v_and_b32 {v(PH+3)}, 32, {v(PH+3)}
v_lshl_add_u32 {v(aQo)}, {v(PH+3)}, 4, {v(aQe)}
s_mul_i32 {s(sT[0])}, {s(sW)}, 640
s_add_u32 {s(sT[0])}, {s(sT[0])}, {EXOFF}
v_mul_u32_u24 {v(PH)}, {2*PS}, {v(g_)}
v_lshl_add_u32 {v(PH)}, {v(c_)}, 3, {v(PH)}
v_add_u32 {v(aRD)}, {s(sT[0])}, {v(PH)}
v_lshlrev_b32 {v(PH)}, 19, {v(g_)}
v_lshl_add_u32 {v(aST)}, {v(c_)}, 4, {v(PH)}
v_add_u32 {v(vS1)}, {T1OFF}, {v(aL16)}
s_lshl_b32 {s(sS1[0])}, {s(sM)}, 22
s_lshl_b32 {s(sT[0])}, {s(sW)}, 15
s_add_u32 {s(sS1[0])}, {s(sS1[0])}, {s(sT[0])}
s_lshl_b32 {s(sT[0])}, {s(sRHO)}, 8
s_add_u32 {s(sS1[0])}, {s(sS1[0])}, {s(sT[0])}
s_add_u32 {s(sS1[1])}, {s(sS1[0])}, {1<<18}
s_add_u32 {s(sS1[2])}, {s(sS1[0])}, {8<<18}
s_add_u32 {s(sS1[3])}, {s(sS1[0])}, {9<<18}
s_mul_i32 {s(sWB)}, {s(sA)}, 1026
s_lshl_b32 {s(sT[0])}, {s(sGRP)}, 7
s_add_u32 {s(sWB)}, {s(sWB)}, {s(sT[0])}
s_andn2_b32 {s(sWB)}, {s(sWB)}, 15
s_mov_b32 {s(WD_+2)}, 2101248
s_mov_b32 {s(sI)}, {s(sW)}
s_waitcnt lgkmcnt(0)
s_mul_i32 {s(sTAG)}, {s(sE)}, 0x9E3779B1
s_add_u32 {s(sTAG)}, {s(sTAG)}, 0x7F4A7C15
s_mov_b32 {s(sEXP)}, 0
s_mov_b32 {s(sONE)}, 1
s_and_b32 {s(sT[1])}, {s(sRHO)}, 15
s_cbranch_scc1 L_noinit
s_atomic_swap_x2 {s(sEXP,2)}, {s(WS_,2)}, {s(sC2)}
s_and_b32 {s(sT[1])}, {s(sRHO)}, 31
s_cbranch_scc1 L_noinit
s_atomic_swap_x2 {s(sEXP,2)}, {s(WS_,2)}, {s(sC1)}
s_cmp_lg_u32 {s(sW)}, {SPW}
s_cbranch_scc1 L_noinit
s_atomic_swap_x2 {s(sEXP,2)}, {s(WS_,2)}, {s(sC1)} offset:{XIMM}
L_noinit:
""")
if OPT['gpos'] == 0: gen_m2()
A("s_waitcnt vmcnt(4)")
A("s_barrier")
load_tables(vS1)
NE = OPT['ne']
A(f"""
s_cmp_lg_u32 {s(sW)}, {SPW}
s_cbranch_scc1 L_nogather
buffer_load_ushort v11, {v(aG)}, {srd(WR_)}, {s(sG)} offen offset:1024
buffer_load_ushort v12, {v(aG)}, {srd(WI_)}, {s(sG)} offen offset:1024
L_nogather:
""")
if NE: w_loop("L_wearly", 8, 8*NE)
A(f"""
s_waitcnt vmcnt({NE+2})
s_cmp_eq_u32 {s(sW)}, {SPW}
s_cbranch_scc1 L_xw1
s_waitcnt vmcnt({NE})
L_xw1:
""")
stamp("x", (1, 2))
for comp, dst in ((0, XR), (1, XI)):
    for t in range(2):
        for j in range(2):
            A(f"ds_read_b64_tr_b16 {v(dst+4*t+2*j,2)}, {v(aTR)} offset:{comp*2048+t*1024+j*512}")
A("s_waitcnt lgkmcnt(0)")
stamp("tr", (2,))
weave([M32(D1R, XR, FC, None), M32(D1I, XR, FN, None), M32(D1R, XR+4, FC+4, D1R), M32(D1I, XR+4, FN+4, D1I),
       M32(D1R, XI, FS, D1R), M32(D1I, XI, FC, D1I), M32(D1R, XI+4, FS+4, D1R), M32(D1I, XI+4, FC+4, D1I)], [], 0)
stamp("m1", (2,))
tw2 = TW(D1R, D1I, XR, XI, False, 8, 16)
for t_ in TW(D1R, D1I, XR, XI, False, 0, 8) + tw2[:16]: A(t_)
stamp("tw", (2,))
weave([M32(D2R, FC, XR, None), M32(D2I, FN, XR, None), M32(D2R, FS, XI, D2R), M32(D2I, FC, XI, D2I)], tw2[16:], 6)
weave([M32(D2R, FC+4, XR+4, D2R), M32(D2I, FN+4, XR+4, D2I), M32(D2R, FS+4, XI+4, D2R), M32(D2I, FC+4, XI+4, D2I)], [], 0)
stamp("m2", (2,))
for i in range(16):
    cvt(TMP+i, D2R+i, D2I+i)
stamp("cv", (2,))
for i in range(16):
    kd2 = 8*(i >> 2) + (i & 3)
    if i < 8:
        A(f"ds_write_b32 {v(aP)}, {v(TMP+i)} offset:{(80*(kd2>>1)+8*(kd2&1))*8}")
    else:
        e = 31 - kd2 - 4
        A(f"ds_write_b32 {v(aQo if e & 1 else aQe)}, {v(TMP+i)} offset:{(80*(e>>1)+8*(e&1))*8+4}")
A(f"""
s_mov_b64 exec, 1
ds_write_b32 {v(aP)}, {v(TMP)} offset:4
ds_write_b32 {v(aP)}, {v(TMP+8)} offset:{640*8}
s_mov_b64 exec, -1
""")
stamp("wr", (2,))
A("s_waitcnt lgkmcnt(0)")
stamp("wrd", (2,))
A("s_barrier")
stamp("bar1", (1, 2))
A(f"""
s_cmp_lg_u32 {s(sW)}, {SPW}
s_cbranch_scc1 L_nosp1
v_mul_u32_u24 {v(PH)}, {2*PS}, {v(g_)}
ds_read_b64 {v(XR,2)}, {v(PH)} offset:{EXOFF+640*8}
ds_read_b64 {v(XR+2,2)}, {v(PH)} offset:{EXOFF+640*8+PS}
s_lshl_b32 {s(sT[0])}, {s(sM)}, 13
s_lshl_b32 {s(sT[1])}, {s(sRHO)}, 6
s_add_u32 {s(sT[0])}, {s(sT[0])}, {s(sT[1])}
s_add_u32 {s(sT[1])}, {s(sT[0])}, {WX}
s_add_u32 {s(sT[0])}, {s(sT[0])}, {T1X}
v_lshlrev_b32 {v(PH+1)}, 2, {v(vL)}
v_lshlrev_b32 {v(PH+2)}, 4, {v(g_)}
s_waitcnt vmcnt({NE})
v_lshl_or_b32 v11, v12, 16, v11
s_mov_b64 exec, 0xffff
buffer_store_dword v11, {v(PH+1)}, {srd(WS_)}, {s(sT[1])} offen sc1
s_mov_b64 exec, -1
s_waitcnt lgkmcnt(0)
""")
m16(D1R, M3, XR, None); m16(D1R+4, M3+4, XR, None)
cvt(TMP, D1R, D1R+2); cvt(TMP+1, D1R+4, D1R+6); cvt(TMP+2, D1R+1, D1R+3); cvt(TMP+3, D1R+5, D1R+7)
A(f"""
s_mov_b32 exec_lo, 0x00010001
s_mov_b32 exec_hi, 0x00010001
buffer_store_dwordx4 {v(TMP,4)}, {v(PH+2)}, {srd(WS_)}, {s(sT[0])} offen sc1
s_mov_b64 exec, -1
L_nosp1:
""")
for t in range(4):
    for jj in range(2):
        A(f"ds_read_b64 {v(XR+4*t+2*jj,2)}, {v(aRD)} offset:{160*t+PS*jj}")
for t in range(4):
    A(f"s_waitcnt lgkmcnt({6-2*t})")
    m16(D1R+8*t, M3, XR+4*t, None)
peek(sC1)
for t in range(4):
    m16(D1R+8*t+4, M3+4, XR+4*t, None)
for mt in range(2):
    for al in range(2):
        o = TMP + 4 + (mt*2+al)*4
        d = D1R + 4*mt + 2*al
        cvt(o, d, d+8); cvt(o+2, d+1, d+9); cvt(o+1, d+16, d+24); cvt(o+3, d+17, d+25)
    for al in range(2):
        o = TMP + 4 + (mt*2+al)*4
        A(f"buffer_store_dwordx4 {v(o,4)}, {v(aST)}, {srd(WS_)}, {s(sS1[mt*2+al])} offen sc1")
stamp("st1", (1, 2))
A("s_barrier")
if OPT['lw'] == 1:
    A(f"""
    s_cmp_lt_u32 {s(sW)}, 5
    s_cbranch_scc1 L_nolw1
    s_add_u32 {s(sI)}, {s(sW)}, {8*NE-5}
    """)
    w_loop("L_wlate", 3, 36)
    A.label("L_nolw1")
if OPT['gpos'] == 1: gen_m2()
validate("L_val1", sC1)
if OPT['gpos'] == 1: lds_post(12)
A(f"""
s_cmp_lg_u32 {s(sW)}, {SPW}
s_cbranch_scc1 L_nosp2
""")
peek(sC1, XIMM)
validate("L_valx", sC1, XIMM)
A("s_waitcnt vmcnt(4)")
signal(sC1, XIMM)
A.label("L_nosp2")
aW, aF, aRe, aIm, aO, aD = vT[2:8]
sSRC, sPL, sMS, sIMG, sFA, sFB, sDST, sOI, sSG, sFC = sT[2:12]
def flag1(n=0):
    A(f"s_waitcnt vmcnt({n})")
    signal(sC1)
    stamp("fl1")
A(f"""
s_cmp_lt_u32 {s(sW)}, 4
s_cbranch_scc1 L_p2reg
""")
A(f"""
s_cmp_eq_u32 {s(sW)}, 4
s_cbranch_scc1 L_w4
""")
flag1((36 - 8*NE) // 3 if OPT['lw'] == 1 else 0)
if OPT['lw'] == 0:
    A(f"s_add_u32 {s(sI)}, {s(sW)}, {8*NE-5}")
    w_loop("L_wlate", 3, 36)
A("s_waitcnt vmcnt(0)")
lds_post(0)
stamp("wld")
A("s_branch L_idle")
A.label("L_w4")
flag1()
lds_post(0)
A(f"""
s_cmp_lg_u32 {s(sRHO)}, 0
s_cbranch_scc1 L_idle
""")
if OPT['xprio']: A("s_setprio 3")
A(f"""
s_mov_b32 {s(sIMG)}, {EXOFF}
s_mov_b32 {s(sFA)}, 1
s_mov_b32 {s(sFC)}, 0
s_mov_b32 {s(sFB)}, 1
s_lshl_b32 {s(sSRC)}, {s(sM)}, 13
s_add_u32 {s(sT[0])}, {s(sSRC)}, {WX}
s_add_u32 {s(sT[1])}, {s(sT[0])}, 4096
s_add_u32 {s(sDST)}, {s(sSRC)}, {T2X}
s_add_u32 {s(sSRC)}, {s(sSRC)}, {T1X}
s_add_u32 {s(sPL)}, {s(sC1)}, {(4*4+3)*CP}
s_mov_b32 {s(sMS)}, 4096
v_lshlrev_b32 {v(aD)}, 4, {v(vL)}
v_lshlrev_b32 {v(aW)}, 6, {v(c_)}
v_lshl_add_u32 {v(aW)}, {v(g_)}, 4, {v(aW)}
s_mov_b32 {s(sOI)}, {XOUT}
v_add_u32 {v(aRe)}, {EXOFF}, {v(aD)}
""")
for i in range(3): poll(f"L_pollx{i}", sC1, 32, OPT['sl1'], (4*4+i)*CP)
A("s_branch L_p2common")
A.label("L_p2reg")
flag1()
if OPT['lw'] == 2:
    A(f"s_add_u32 {s(sI)}, {s(sW)}, {8*NE}")
    w_loop("L_wlate", 4, 36)
else: lds_post(0)
A(f"""
s_lshl_b32 {s(sIMG)}, {s(sW)}, 13
s_mov_b32 {s(sFA)}, 0
s_and_b32 {s(sFC)}, {s(sA)}, 7
s_mov_b32 {s(sFB)}, 0
s_lshl_b32 {s(sT[0])}, {s(sM)}, 4
s_add_u32 {s(sSRC)}, {s(sT[0])}, {s(sA)}
s_lshl_b32 {s(sSRC)}, {s(sSRC)}, 3
s_add_u32 {s(sSRC)}, {s(sSRC)}, {s(sGRP)}
s_lshl_b32 {s(sSRC)}, {s(sSRC)}, 15
s_add_u32 {s(sSRC)}, {s(sSRC)}, {s(sIMG)}
s_add_u32 {s(sPL)}, {s(sT[0])}, {s(sGRP)}
s_lshl_b32 {s(sPL)}, {s(sPL)}, 2
s_add_u32 {s(sPL)}, {s(sPL)}, {s(sW)}
s_mul_i32 {s(sPL)}, {s(sPL)}, {CP}
s_add_u32 {s(sPL)}, {s(sPL)}, {C1}
s_mov_b32 {s(sMS)}, 1024
s_mul_i32 {s(sOI)}, {s(sW)}, {OS}
s_add_u32 {s(sOI)}, {s(sOI)}, {WOFF}
v_lshlrev_b32 {v(aD)}, 2, {v(g_)}
v_xor_b32 {v(aD)}, {v(aD)}, {v(c_)}
v_lshlrev_b32 {v(aD)}, 4, {v(aD)}
v_lshl_add_u32 {v(aD)}, {v(g_)}, 8, {v(aD)}
v_lshrrev_b32 {v(aRe)}, 2, {v(vL)}
v_and_b32 {v(aF)}, 3, {v(aRe)}
v_xor_b32 {v(aF)}, {s(sW)}, {v(aF)}
v_lshlrev_b32 {v(aRe)}, 8, {v(aRe)}
v_lshl_add_u32 {v(aRe)}, {v(aF)}, 6, {v(aRe)}
v_and_b32 {v(aF)}, 3, {v(vL)}
v_lshl_add_u32 {v(aRe)}, {v(aF)}, 4, {v(aRe)}
s_lshl_b32 {s(sT[0])}, {s(sW)}, 5
s_add_u32 {s(sT[0])}, {s(sT[0])}, {WOFF}
v_min_u32 {v(aW)}, 2, {v(g_)}
v_mul_u32_u24 {v(aF)}, 144, {v(c_)}
v_lshl_add_u32 {v(aW)}, {v(aW)}, 4, {v(aF)}
v_add_u32 {v(aW)}, {s(sT[0])}, {v(aW)}
""")
A.label("L_p2common")
A(f"v_lshlrev_b32 {v(aF)}, 4, {v(vL)}")
A(f"v_add_u32 {v(aF)}, {M2OFF}, {v(aF)}")
SEL = DNR
A(f"""
v_lshlrev_b32 {v(DIM)}, {s(sFA)}, {v(c_)}
v_lshlrev_b32 {v(DIM+1)}, 3, {v(g_)}
v_sub_u32 {v(DIM)}, {v(DIM)}, {v(DIM+1)}
v_add_u32 {v(DIM)}, {s(sFC)}, {v(DIM)}
v_add_u32 {v(DIM+1)}, {s(sFB)}, {v(DIM)}
v_mov_b32 {v(DIM+4)}, 0x3500
""")
for q in range(2):
    A(f"v_and_b32 {v(DIM+2)}, 1, {v(DIM+q)}")
    A(f"v_lshlrev_b32 {v(DIM+2)}, 4, {v(DIM+2)}")
    A(f"v_lshlrev_b32 {v(DIM+2)}, {v(DIM+2)}, {v(DIM+4)}")
    A(f"v_ashrrev_i32 {v(DIM+3)}, 1, {v(DIM+q)}")
    for j in range(4):
        A(f"v_cmp_eq_u32 vcc, {j}, {v(DIM+3)}")
        A(f"v_cndmask_b32 {v(SEL+4*q+j)}, 0, {v(DIM+2)}, vcc")
A(f"""
v_and_b32 {v(aIm)}, 1, {v(g_)}
v_lshl_add_u32 {v(aRe)}, {v(aIm)}, 3, {v(aRe)}
v_xor_b32 {v(aIm)}, 8, {v(aRe)}
v_bfe_u32 {v(aO)}, {v(vL)}, 1, 2
v_xor_b32 {v(aO)}, {v(aO)}, {v(g_)}
v_lshlrev_b32 {v(aO)}, 4, {v(aO)}
v_lshl_add_u32 {v(aO)}, {v(c_)}, 6, {v(aO)}
v_add_u32 {v(aO)}, {s(sOI)}, {v(aO)}
v_mov_b32 {v(vT[9])}, 1
s_mov_b32 m0, {s(sIMG)}
""")
if OPT['gpos'] == 1: lds_wait("L_fr", 12, 8)
for f in range(16):
    A(f"ds_read_b128 {v(FR+4*f,4)}, {v(aF)} offset:{f*1024}")
poll("L_poll1", sPL, 32, OPT['sl1'])
stamp("pol1")
for n in range(8):
    A(f"buffer_load_dwordx4 {v(aD)}, {srd(WS_)}, {s(sSRC)} offen sc1 lds")
    if n < 7:
        A(f"s_add_u32 m0, m0, {s(sMS)}")
        A(f"s_add_u32 {s(sSRC)}, {s(sSRC)}, 1024")
A(f"""
s_cmp_lt_u32 {s(sW)}, 4
s_cbranch_scc1 L_wreg
""")
for t in range(8):
    A(f"buffer_load_dwordx4 {v(ER+4*t,4)}, {v(aW)}, {srd(WS_)}, {s(sT[t>>2])} offen offset:{(t&3)*1024} sc1")
A("s_waitcnt vmcnt(0) lgkmcnt(0)")
for t in range(8):
    m16(WRF+4*t, ER+4*t, SEL, None); m16(WIF+4*t, ER+4*t, SEL+4, None)
A("s_branch L_wcv")
A.label("L_wreg")
if OPT['lw'] == 2:
    A("s_waitcnt vmcnt(8)")
    lds_post(0)
lds_wait("L_wr", 0, 8)
for t in range(16):
    if t == 12: A("s_waitcnt lgkmcnt(8)")
    A(f"ds_read_b128 {v(ER+4*t,4)}, {v(aW)} offset:{t*2304}")
for t in range(16):
    if t >= 4: A(f"s_waitcnt lgkmcnt({15-t})")
    m16(WRF+4*t, ER+4*t, SEL, None)
A.label("L_wcv")
A(f"s_mov_b32 {s(sT[0])}, 0x80008000")
stamp("wcv", (1, 3))
A(f"""
s_cmp_ge_u32 {s(sW)}, 4
s_cbranch_scc1 L_go2_out
s_waitcnt vmcnt(0)
""")
lds_post(4)
lds_wait("L_go2", 4, 4)
stamp("dat1", (1, 3))
for u in range(4):
    for j in range(2): A(f"ds_read_b64_tr_b16 {v(DRE+4*u+2*j,2)}, {v(aRe)} offset:{u*8192+j*4096}")
    if u == 3: A("s_waitcnt lgkmcnt(12)")
    for j in range(2): A(f"ds_read_b64_tr_b16 {v(DIM+4*u+2*j,2)}, {v(aIm)} offset:{u*8192+j*4096}")
for u in range(4):
    n = 12 - 4*u
    if u: A(f"s_waitcnt lgkmcnt({n+2})")
    fc = lambda mt: FR + (u*4 + mt*2) * 4
    fs = lambda mt: FR + (u*4 + mt*2 + 1) * 4
    e = lambda mt: (u*2 + mt) * 4
    m16(ER+e(0), fc(0), DRE+4*u, None)
    for j in range(2): A(f"v_xor_b32 {v(DNR+4*u+j)}, {s(sT[0])}, {v(DRE+4*u+j)}")
    m16(ER+e(1), fc(1), DRE+4*u, None)
    for j in range(2, 4): A(f"v_xor_b32 {v(DNR+4*u+j)}, {s(sT[0])}, {v(DRE+4*u+j)}")
    A(f"s_waitcnt lgkmcnt({n})")
    m16(EI+e(0), fc(0), DIM+4*u, None); m16(EI+e(1), fc(1), DIM+4*u, None)
    m16(ER+e(0), fs(0), DIM+4*u, ER+e(0)); m16(ER+e(1), fs(1), DIM+4*u, ER+e(1))
    m16(EI+e(0), fs(0), DNR+4*u, EI+e(0)); m16(EI+e(1), fs(1), DNR+4*u, EI+e(1))
stamp("fwd", (3,))
for f in range(12):
    A(f"ds_read_b128 {v(FR+4*f,4)}, {v(aF)} offset:{16384+f*1024}")
TT = FR + 48
def pk(op, d, a, b, c=None, na=False, nb=False):
    ops = f"{v(d,2)}, {v(a,2)}, {v(b,2)}" + (f", {v(c,2)}" if c is not None else "")
    n = [int(na), int(nb)] + ([0] if c is not None else [])
    mod = f" neg_lo:{n} neg_hi:{n}".replace(", ", ",") if (na or nb) else ""
    A(f"v_pk_{op}_f32 {ops}{mod}")
add = lambda d, a, b: pk("add", d, a, b)
sub = lambda d, a, b: pk("add", d, a, b, nb=True)
A.raw(".p2align 3")
for mt in range(2):
    for rp in range(2):
        er = lambda u: ER + (u*2+mt)*4 + 2*rp
        ei = lambda u: EI + (u*2+mt)*4 + 2*rp
        wr = lambda q: WRF + (q*2+mt)*4 + 2*rp
        wi = lambda q: WIF + (q*2+mt)*4 + 2*rp
        tr = lambda i: TT + 4*i
        ti = lambda i: TT + 4*i + 2
        add(tr(0), er(0), er(2)); add(ti(0), ei(0), ei(2)); sub(tr(1), er(0), er(2)); sub(ti(1), ei(0), ei(2))
        add(tr(2), er(1), er(3)); add(ti(2), ei(1), ei(3)); sub(tr(3), er(1), er(3)); sub(ti(3), ei(1), ei(3))
        add(er(0), tr(0), tr(2)); add(ei(0), ti(0), ti(2)); sub(er(2), tr(0), tr(2)); sub(ei(2), ti(0), ti(2))
        add(er(1), tr(1), ti(3)); sub(ei(1), ti(1), tr(3)); sub(er(3), tr(1), ti(3)); add(ei(3), ti(1), tr(3))
        for q in range(4):
            pk("mul", tr(q), er(q), wr(q)); pk("mul", ti(q), er(q), wi(q))
        for q in range(4):
            pk("fma", tr(q), ei(q), wi(q), tr(q), na=True); pk("fma", ti(q), ei(q), wr(q), ti(q))
        add(er(0), tr(0), tr(2)); add(ei(0), ti(0), ti(2)); sub(er(1), tr(0), tr(2)); sub(ei(1), ti(0), ti(2))
        add(er(2), tr(1), tr(3)); add(ei(2), ti(1), ti(3)); sub(er(3), tr(1), tr(3)); sub(ei(3), ti(1), ti(3))
        add(tr(0), er(0), er(2)); add(ti(0), ei(0), ei(2)); sub(tr(2), er(0), er(2)); sub(ti(2), ei(0), ei(2))
        sub(tr(1), er(1), ei(3)); add(ti(1), ei(1), er(3)); add(tr(3), er(1), ei(3)); sub(ti(3), ei(1), er(3))
        for u in range(4):
            cvt(DRE+4*u+2*mt+rp, tr(u), tr(u)+1)
            cvt(DIM+4*u+2*mt+rp, ti(u), ti(u)+1)
            cvt(DNR+4*u+2*mt+rp, ti(u), ti(u)+1, True, True)
stamp("mid", (3,))
A("s_waitcnt lgkmcnt(0)")
for f in range(12, 16):
    A(f"ds_read_b128 {v(FR+4*f,4)}, {v(aF)} offset:{16384+f*1024}")
def INV(u, nt):
    e = (u*2+nt)*4; o = WRF + e
    return [CVT(o, ER+e, ER+e+1), CVT(o+1, ER+e+2, ER+e+3), CVT(o+2, EI+e, EI+e+1), CVT(o+3, EI+e+2, EI+e+3),
            f"ds_write_b128 {v(aO)}, {v(o,4)} offset:{(u*2+nt)*1024}", f"ds_add_u32 {v(vPG)}, {v(vT[9])}"]
for u in range(4):
    if u == 3: A("s_waitcnt lgkmcnt(8)")
    for nt in range(2):
        fc, fs, e = FR + (u*4 + nt*2) * 4, FR + (u*4 + nt*2 + 1) * 4, (u*2 + nt) * 4
        k = u*2 + nt - 2
        fill = INV(k >> 1, k & 1) if k >= 0 else []
        weave([M16(ER+e, DRE+4*u, fc, None), M16(EI+e, DIM+4*u, fc, None), M16(ER+e, DNR+4*u, fs, ER+e), M16(EI+e, DRE+4*u, fs, EI+e)], fill, [2, 2, 1, 1])
stamp("inv", (3,))
l0, l1 = INV(3, 0), INV(3, 1)
for t_ in l0[:4] + l1[:4] + l0[4:] + l1[4:]: A(t_)
stamp("cmp2", (1, 3))
A(f"""
s_cmp_lt_u32 {s(sW)}, 4
s_cbranch_scc1 L_setup3
""")
A(f"""
v_bfe_u32 {v(aO)}, {v(vL)}, 3, 2
v_xor_b32 {v(aO)}, {v(aO)}, {v(vL)}
v_lshlrev_b32 {v(aO)}, 4, {v(aO)}
v_add_u32 {v(aO)}, {XOUT}, {v(aO)}
s_add_u32 {s(sT[1])}, {s(sDST)}, 4096
s_mul_i32 {s(sT[0])}, {s(sM8)}, {8*CP}
s_add_u32 {s(sT[0])}, {s(sT[0])}, {C2}
""")
for t in range(8): A(f"ds_read_b128 {v(ER+4*t,4)}, {v(aO)} offset:{t*1024}")
A("s_waitcnt lgkmcnt(0)")
for t in range(8): A(f"buffer_store_dwordx4 {v(ER+4*t,4)}, {v(aD)}, {srd(WS_)}, {s(sDST if t < 4 else sT[1])} offen offset:{(t&3)*1024} sc1")
A("s_waitcnt vmcnt(0)")
for n in range(8): signal(sT[0], n*CP)
A(f"""
s_lshl_b32 {s(sT[0])}, {s(sM)}, 8
s_add_u32 {s(sT[0])}, {s(sT[0])}, {EW}
s_atomic_swap {s(sTAG)}, {s(WS_,2)}, {s(sT[0])}
s_setprio 0
L_idle:
""")
A.label("L_setup3")
A3 = 237
aD3, aPw, aQ1, aQ0, aRd3, aSo, aQp = range(A3, A3+7)
aT = list(range(A3+9, A3+13))
sMR, sS3 = sT[2], sT[3]
A(f"""
v_lshrrev_b32 {v(PH)}, 1, {v(vL)}
v_xor_b32 {v(PH)}, {v(PH)}, {v(vL)}
v_and_b32 {v(PH)}, 4, {v(PH)}
v_mul_u32_u24 {v(PH)}, 3, {v(PH)}
v_xor_b32 {v(PH)}, {v(PH)}, {v(vL)}
v_lshlrev_b32 {v(vS1)}, 4, {v(PH)}
v_add_u32 {v(vS1)}, {T1OFF}, {v(vS1)}
v_and_b32 {v(aSo)}, 15, {v(PH)}
v_lshlrev_b32 {v(aSo)}, 6, {v(aSo)}
v_and_b32 {v(PH)}, 1, {v(g_)}
v_lshl_add_u32 {v(aSo)}, {v(PH)}, 5, {v(aSo)}
v_lshrrev_b32 {v(PH)}, 1, {v(g_)}
v_lshl_add_u32 {v(aSo)}, {v(PH)}, 4, {v(aSo)}
""")
load_tables(vS1)
A(f"""
v_lshrrev_b32 {v(PH)}, 2, {v(c_)}
v_lshl_add_u32 {v(PH)}, {v(PH)}, 7, {s(sSB)}
v_cvt_f32_u32 {v(PH)}, {v(PH)}
v_mul_f32 {v(PH)}, {fbits(1/2048)}, {v(PH)}
v_add_f32 {v(PH+1)}, {fbits(0.25)}, {v(PH)}
v_and_b32 {v(PH+2)}, 1, {v(c_)}
v_cvt_f32_u32 {v(PH+2)}, {v(PH+2)}
v_mul_f32 {v(PH+2)}, {fbits(-0.25)}, {v(PH+2)}
v_add_f32 {v(PH+3)}, {fbits(-0.125)}, {v(PH+2)}
v_add_f32 {v(PH+2)}, {fbits(0.125)}, {v(PH+2)}
v_and_b32 {v(PH+4)}, 2, {v(c_)}
v_lshlrev_b32 {v(PH+4)}, 30, {v(PH+4)}
v_xor_b32 {v(PH+2)}, {v(PH+4)}, {v(PH+2)}
v_xor_b32 {v(PH+3)}, {v(PH+4)}, {v(PH+3)}
v_lshlrev_b32 {v(PH+4)}, 1, {v(g_)}
v_cvt_f32_u32 {v(PH+4)}, {v(PH+4)}
v_add_f32 {v(PH+5)}, 1.0, {v(PH+4)}
v_add_f32 {v(PH+6)}, {fbits(8.0)}, {v(PH+4)}
v_add_f32 {v(PH+7)}, {fbits(9.0)}, {v(PH+4)}
""")
for mt in range(2):
    for j in range(4):
        t = TMP + (mt*4+j)*3
        A(f"v_fma_f32 {v(t)}, {v(PH+mt)}, {v(PH+4+j)}, {v(PH+2+(j&1))}")
        A(f"v_cos_f32 {v(t+1)}, {v(t)}")
        A(f"v_sin_f32 {v(t+2)}, {v(t)}")
for mt in range(2):
    for j in range(4):
        t = TMP + (mt*4+j)*3
        cvt(M3+mt*4+j, t+1, t+2, False, True)
A(f"""
v_lshlrev_b32 {v(PH)}, 2, {v(g_)}
v_xor_b32 {v(PH)}, {v(PH)}, {v(c_)}
v_lshlrev_b32 {v(PH)}, 4, {v(PH)}
v_lshl_add_u32 {v(aD3)}, {v(g_)}, 8, {v(PH)}
s_lshl_b32 {s(sMR)}, {s(sM)}, 7
s_add_u32 {s(sMR)}, {s(sMR)}, {s(sRHO)}
s_lshl_b32 {s(sS3)}, {s(sMR)}, 15
s_add_u32 {s(sS3)}, {s(sS3)}, {s(sW12)}
s_add_u32 {s(sS3)}, {s(sS3)}, {T2}
s_mov_b32 m0, {s(sW12)}
s_cmp_lt_u32 {s(sW)}, 6
s_cbranch_scc1 L_nosig2
""")
aR0, aR1, aS2, aPr = vT[2], vT[3], vT[4], vT[5]
sD = sT[4:8]
A(f"""
v_bfe_u32 {v(aR0)}, {v(vL)}, 2, 2
v_mul_u32_u24 {v(aR0)}, {OS}, {v(aR0)}
v_lshl_add_u32 {v(aR0)}, {v(g_)}, 6, {v(aR0)}
v_and_b32 {v(aR1)}, 3, {v(vL)}
v_mul_u32_u24 {v(aPr)}, 260, {v(aR1)}
v_add_u32 {v(aPr)}, {PGOFF}, {v(aPr)}
v_lshrrev_b32 {v(aS2)}, 5, {v(vL)}
v_xor_b32 {v(aR1)}, {v(aR1)}, {v(aS2)}
v_lshl_add_u32 {v(aR0)}, {v(aR1)}, 4, {v(aR0)}
s_and_b32 {s(sT[8])}, {s(sW)}, 1
s_lshl_b32 {s(sT[0])}, {s(sT[8])}, 10
s_add_u32 {s(sT[0])}, {s(sT[0])}, {WOFF}
v_add_u32 {v(aR0)}, {s(sT[0])}, {v(aR0)}
v_xor_b32 {v(aR1)}, 32, {v(aR0)}
v_lshlrev_b32 {v(aS2)}, 15, {v(g_)}
v_lshl_add_u32 {v(aS2)}, {v(c_)}, 4, {v(aS2)}
s_lshl_b32 {s(sD[0])}, {s(sM)}, 22
s_lshl_b32 {s(sT[0])}, {s(sT[8])}, 19
s_add_u32 {s(sD[0])}, {s(sD[0])}, {s(sT[0])}
s_lshl_b32 {s(sT[0])}, {s(sGRP)}, 12
s_add_u32 {s(sD[0])}, {s(sD[0])}, {s(sT[0])}
s_lshl_b32 {s(sT[0])}, {s(sA)}, 8
s_add_u32 {s(sD[0])}, {s(sD[0])}, {s(sT[0])}
s_add_u32 {s(sD[0])}, {s(sD[0])}, {T2}
s_add_u32 {s(sT[0])}, {s(sM8)}, {s(sGRP)}
s_lshl_b32 {s(sT[0])}, {s(sT[0])}, 3
s_add_u32 {s(sT[0])}, {s(sT[0])}, {s(sT[8])}
s_mul_i32 {s(sT[0])}, {s(sT[0])}, {CP}
s_add_u32 {s(sT[0])}, {s(sT[0])}, {C2}
""")
for i in range(4):
    A(f"""
    s_mov_b32 {s(sCNT)}, 0x40000
    L_pg{i}:
    ds_read_b32 {v(vS1)}, {v(aPr)}
    s_sub_u32 {s(sCNT)}, {s(sCNT)}, 1
    s_cbranch_scc1 L_pg{i}_out
    {'s_sleep 1' if i == 0 else ''}
    s_waitcnt lgkmcnt(0)
    v_cmp_ge_u32 vcc, {s(sT[8])}, {v(vS1)}
    s_and_b64 vcc, vcc, vcc
    s_cbranch_scc1 L_pg{i}
    L_pg{i}_out:
    """)
    d = D1R + 16*i
    for j in range(4): A(f"ds_read_b128 {v(d+4*j,4)}, {v(aR1 if j & 1 else aR0)} offset:{i*2048+j*256}")
    A(f"s_add_u32 {s(sT[8])}, {s(sT[8])}, 2")
    for j in range(4):
        A(f"s_waitcnt lgkmcnt({3-j})")
        A(f"buffer_store_dwordx4 {v(d+4*j,4)}, {v(aS2)}, {srd(WS_)}, {s(sD[0])} offen sc1")
        A(f"s_add_u32 {s(sD[0])}, {s(sD[0])}, {(4 if j < 3 else 20) << 15}")
stamp("st2", (1,))
for i in range(4):
    A(f"s_waitcnt vmcnt({12-4*i})")
    signal(sT[0], 2*i*CP)
A.label("L_nosig2")
stamp("fl2")
A("s_barrier")
A(f"""
v_lshrrev_b32 {v(PH)}, 3, {v(vL)}
v_and_b32 {v(PH+1)}, 3, {v(PH)}
v_lshlrev_b32 {v(PH+1)}, 6, {v(PH+1)}
v_lshl_add_u32 {v(PH)}, {v(PH)}, 8, {v(PH+1)}
v_and_b32 {v(PH+1)}, 3, {v(vL)}
v_lshl_add_u32 {v(PH)}, {v(PH+1)}, 4, {v(PH)}
v_and_b32 {v(PH+1)}, 4, {v(vL)}
v_lshl_add_u32 {v(PH)}, {v(PH+1)}, 1, {v(PH)}
v_add_u32 {v(aT[0])}, {s(sW12)}, {v(PH)}
v_xor_b32 {v(aT[1])}, 64, {v(aT[0])}
v_xor_b32 {v(aT[2])}, 128, {v(aT[0])}
v_xor_b32 {v(aT[3])}, 192, {v(aT[0])}
v_mul_u32_u24 {v(PH)}, {PS2}, {v(g_)}
s_lshl_b32 {s(sT[0])}, {s(sW)}, 8
s_add_u32 {s(sT[1])}, {s(sT[0])}, {EX2}
s_sub_u32 {s(sT[0])}, {EX2+15*256}, {s(sT[0])}
v_lshl_add_u32 {v(aPw)}, {v(c_)}, 3, {v(PH)}
v_add_u32 {v(aPw)}, {s(sT[1])}, {v(aPw)}
v_sub_u32 {v(PH+1)}, 16, {v(c_)}
v_lshl_add_u32 {v(PH+1)}, {v(PH+1)}, 3, {v(PH)}
v_add_u32 {v(aQp)}, {s(sT[0])}, {v(PH+1)}
v_cmp_eq_u32 vcc, 0, {v(c_)}
v_mov_b32 {v(PH+2)}, 128
v_mov_b32 {v(PH+3)}, 132
v_mov_b32 {v(PH+4)}, -124
v_cndmask_b32 {v(PH+4)}, {v(PH+2)}, {v(PH+4)}, vcc
v_cndmask_b32 {v(PH+3)}, {v(PH+3)}, {v(PH+2)}, vcc
v_add_u32 {v(aQ1)}, {v(aQp)}, {v(PH+4)}
v_add_u32 {v(aQ0)}, {v(aQp)}, {v(PH+3)}
s_mul_i32 {s(sT[0])}, {s(sW)}, {PS2}
s_add_u32 {s(sT[0])}, {s(sT[0])}, {EX2}
v_and_b32 {v(PH+1)}, 31, {v(vL)}
v_lshrrev_b32 {v(PH+2)}, 5, {v(vL)}
v_lshlrev_b32 {v(PH+3)}, 9, {v(PH+2)}
v_lshl_add_u32 {v(PH+3)}, {v(PH+1)}, 3, {v(PH+3)}
v_add_u32 {v(aRd3)}, {s(sT[0])}, {v(PH+3)}
s_lshl_b32 {s(sO[0])}, {s(sW)}, 7
s_add_u32 {s(sO[0])}, {s(sO[0])}, {s(sSB)}
s_lshl_b32 {s(sO[0])}, {s(sO[0])}, 12
s_lshl_b32 {s(sO[1])}, {s(sM)}, 11
s_add_u32 {s(sO[0])}, {s(sO[0])}, {s(sO[1])}
s_add_u32 {s(sO[1])}, {s(sO[0])}, {1024*4096}
s_mov_b32 {s(sPM)}, 0x05040100
s_mov_b32 {s(sPM+1)}, 0x07060302
""")
A(f"s_cmp_eq_u32 {s(sW)}, 0")
A(f"s_cselect_b32 {s(sT[0])}, 17, 16")
poll("L_poll2", sC2, s(sT[0]), OPT['sl2'])
stamp("pol2")
for j in range(4):
    A(f"buffer_load_dwordx4 {v(aD3)}, {srd(WS_)}, {s(sS3)} offen offset:{j*1024} sc1 lds")
A(f"""
s_cmp_lg_u32 {s(sW)}, 0
s_cbranch_scc1 L_nosp3a
s_lshl_b32 {s(sT[4])}, {s(sMR)}, 6
s_add_u32 {s(sT[4])}, {s(sT[4])}, {T2X}
v_lshlrev_b32 {v(PH+1)}, 4, {v(g_)}
buffer_load_dwordx4 {v(TMP,4)}, {v(PH+1)}, {srd(WS_)}, {s(sT[4])} offen sc1
L_nosp3a:
""")
for i in range(16):
    A(f"v_perm_b32 {v(GR+i)}, {v(FN+i//2)}, {v(FC+i//2)}, {s(sPM+(i&1))}")
    A(f"v_perm_b32 {v(GI+i)}, {v(FC+i//2)}, {v(FS+i//2)}, {s(sPM+(i&1))}")
A("s_waitcnt vmcnt(0)")
stamp("dat2", (1, 3))
for t in (0, 2, 1, 3):
    for jj in range(2):
        A(f"ds_read_b64_tr_b16 {v(XR+4*t+2*jj,2)}, {v(aT[t])} offset:{jj*2048}")
A(f"""
s_cmp_lg_u32 {s(sW)}, 0
s_cbranch_scc1 L_nosp3
v_perm_b32 {v(TMP+4)}, {v(TMP+2)}, {v(TMP)}, {s(sPM)}
v_perm_b32 {v(TMP+5)}, {v(TMP+2)}, {v(TMP)}, {s(sPM+1)}
v_perm_b32 {v(TMP+6)}, {v(TMP+3)}, {v(TMP+1)}, {s(sPM)}
v_perm_b32 {v(TMP+7)}, {v(TMP+3)}, {v(TMP+1)}, {s(sPM+1)}
""")
m16(D2R, M3, TMP+4, None); m16(D2R+4, M3+4, TMP+4, None)
A.label("L_nosp3")
for i, t in enumerate((0, 2, 1, 3)):
    A(f"s_waitcnt lgkmcnt({6-2*i})")
    m16(D1R+8*t, M3, XR+4*t, None); m16(D1R+8*t+4, M3+4, XR+4*t, None)
A(f"""
s_cmp_lg_u32 {s(sW)}, 0
s_cbranch_scc1 L_nofix
s_mov_b32 exec_lo, 0x00010001
s_mov_b32 exec_hi, 0x00010001
""")
for d in (D2R, D1R):
    for mt in range(2):
        for i in range(2):
            A(f"v_add_f32 {v(d+4*mt+i)}, {v(d+4*mt+i)}, {v(d+4*mt+2+i)}")
            A(f"v_mul_f32 {v(d+4*mt+i)}, 0.5, {v(d+4*mt+i)}")
cvt(TMP, D2R, D2R+1); cvt(TMP+1, D2R+4, D2R+5)
A(f"""
ds_write_b32 {v(aPw)}, {v(TMP)} offset:{8*256}
ds_write_b32 {v(aPw)}, {v(TMP+1)} offset:{8*256+4*PS2}
s_mov_b64 exec, -1
L_nofix:
s_nop 1
""")
for tp in range(2):
    for mt in range(2):
        d0 = D1R + 8*tp + 4*mt; d1 = d0 + 16
        o = TMP + 8 + (tp*2+mt)*4
        cvt(o, d0, d0+1); cvt(o+1, d1, d1+1); cvt(o+2, d1+2, d1+3); cvt(o+3, d0+2, d0+3)
for tp in range(2):
    for mt in range(2):
        o = TMP + 8 + (tp*2+mt)*4
        A(f"ds_write_b64 {v(aPw)}, {v(o,2)} offset:{mt*4*PS2+tp*128}")
        if tp == 1:
            A(f"ds_write_b64 {v(aQp)}, {v(o+2,2)} offset:{mt*4*PS2}")
        else:
            A(f"ds_write_b32 {v(aQ1)}, {v(o+2)} offset:{mt*4*PS2}")
            A(f"ds_write_b32 {v(aQ0)}, {v(o+3)} offset:{mt*4*PS2}")
A("s_waitcnt lgkmcnt(0)")
A("s_barrier")
stamp("bar3", (1, 3))
for t in range(4):
    for j in range(2):
        A(f"ds_read_b64 {v(XR+4*t+2*j,2)}, {v(aRd3)} offset:{t*1024+j*256}")
for t in range(4):
    A(f"s_waitcnt lgkmcnt({6-2*t})")
    m32(D1R, XR+4*t, GR+4*t, D1R if t else None); m32(D1I, XR+4*t, GI+4*t, D1I if t else None)
stamp("m3", (3,))
tw2 = TW(D1R, D1I, XR, XI, True, 8, 16)
for t_ in TW(D1R, D1I, XR, XI, True, 0, 8) + tw2[:16]: A(t_)
stamp("tw3", (3,))
weave([M32(D2R, XR, FC, None), M32(D2R, XI, FN, D2R), M32(D2I, XR, FS, None), M32(D2I, XI, FC, D2I)], tw2[16:], 6)
weave([M32(D2R, XR+4, FC+4, D2R), M32(D2R, XI+4, FN+4, D2R), M32(D2I, XR+4, FS+4, D2I), M32(D2I, XI+4, FC+4, D2I)], [], 0)
stamp("m4", (3,))
for comp, d in ((0, D2R), (1, D2I)):
    o = TMP + comp*8
    for q in (0, 4, 1, 5, 2, 6, 3, 7): cvt(o+q, d+2*q, d+2*q+1)
    for q in range(4): A(f"v_permlane16_swap_b32 {v(o+q)}, {v(o+4+q)}")
    for j in range(2):
        A(f"buffer_store_dwordx4 {v(o+4*j,4)}, {v(aSo)}, {srd(OUT_)}, {s(sO[comp])} offen offset:{j*1024}{OUTM}")
if OPT['stamp']:
    stamp("st3", (1, 3))
    A("s_waitcnt vmcnt(0)")
    stamp("end")
    A("s_waitcnt lgkmcnt(0)")
    n = len(stamps)
    assert sST + 2*n <= 96, n
    if OPT['amp']:
        j = OPT['amp'] if OPT['amp'] < 99 else n - 1
        A(f'''
        s_cmp_lg_u32 {s(sW)}, {OPT['ampw']}
        s_cbranch_scc1 L_end
        s_cmp_lg_u32 s2, 100
        s_cbranch_scc1 L_end
        s_sub_u32 {s(sT[0])}, {s(sST+2*j)}, {s(sST)}
        s_lshl_b32 {s(sT[0])}, {s(sT[0])}, 4
        s_min_u32 {s(sT[0])}, {s(sT[0])}, 60000
        s_add_u32 {s(sT[0])}, {s(sT[0])}, {s(sST+2*(n-1))}
        L_amp:
        s_memrealtime {s(sT[2],2)}
        s_waitcnt lgkmcnt(0)
        s_sub_u32 {s(sT[1])}, {s(sT[0])}, {s(sT[2])}
        s_cmp_gt_i32 {s(sT[1])}, 0
        s_cbranch_scc1 L_amp
        s_branch L_end
        ''')
    A(f"s_lshl_b32 {s(sT[0])}, s2, 3")
    A(f"s_add_u32 {s(sT[0])}, {s(sT[0])}, {s(sW)}")
    A(f"s_lshl_b32 {s(sT[0])}, {s(sT[0])}, 7")
    A(f"s_add_u32 {s(sT[0])}, {s(sT[0])}, {STAMP}")
    A("v_mov_b32 v3, 0")
    A("s_mov_b64 exec, 1")
    for i in range(n):
        A(f"v_mov_b32 v2, {s(sST+2*i)}")
        A(f"buffer_store_dword v2, v3, {srd(WS_)}, {s(sT[0])} offen offset:{i*4}")
    A.raw("; stamps: " + " ".join(stamps))
A.label("L_end")
A("s_endpgm")
lane = np.arange(64)
cz = lambda x: np.where(np.abs(x) < 1e-9, 0.0, x)
def emit(words):
    for i in range(0, len(words), 8): A.raw(".long " + ",".join("0x%x" % x for x in words[i:i+8]))
A.raw(".p2align 8\n.type L_tab,@object\nL_tab:")
idx = lambda i: 8*(i >> 2) + 4*(lane >> 5) + (i & 3)
f32b = lambda x: np.asarray(x, dtype=np.float32).view(np.uint32)
ph = np.stack([(lane & 31) * idx(i) for i in range(16)])
regs = list(f32b(cz(np.cos(2*np.pi*ph/1024)))) + list(f32b(cz(np.sin(2*np.pi*ph/1024))))
for fn in (lambda p: np.cos(p), lambda p: np.sin(p), lambda p: -np.sin(p)):
    h = bf16(cz(fn(2*np.pi*(ph % 32)/32)))
    regs += [h[2*i] | (h[2*i+1] << 16) for i in range(8)]
A.raw("L_tab1:")
emit(np.stack(regs).reshape(14, 4, 64).transpose(0, 2, 1).reshape(-1))
A.raw("L_tab_end:\n.size L_tab, L_tab_end-L_tab")
def kd(name, nv, ns):
    A.raw(f""".p2align 6
.amdhsa_kernel {name}
  .amdhsa_next_free_vgpr {nv}
  .amdhsa_next_free_sgpr {ns}
  .amdhsa_accum_offset {nv}
  .amdhsa_group_segment_fixed_size 0
  .amdhsa_kernarg_size 72
  .amdhsa_user_sgpr_count 2
  .amdhsa_user_sgpr_kernarg_segment_ptr 1
  .amdhsa_system_sgpr_workgroup_id_x 1
  .amdhsa_float_denorm_mode_32 3
.end_amdhsa_kernel""")
A.raw('.section .rodata,"a"')
kd(NAME + "_kernel", 256, 102)
if OPT['lst']: kd("empty_kernel", 8, 16)
open(sys.argv[1], "w").write(A.text())
print(sys.argv[1], "nops:", A.nops, "stamps:", len(stamps), file=sys.stderr)
```

```python
import sys, struct
import numpy as np
from asmlib import Asm, v, s

NAME = "concat_heads__spectral_gfnet__spectral_gfnet__prompt"
OPT = dict(outm=1, xnt=0, wnt=0, diag=0, dst=0, ne=3, xprio=1, lw=1, gpos=1, amp=0, ampw=0, stamp=0, sl1=0, sl2=0, lst=0, half=0)
for a_ in sys.argv[2:]:
    k_, v_ = a_.split('='); assert k_ in OPT, k_; OPT[k_] = int(v_)

def fbits(x): return "0x%08x" % struct.unpack('<I', struct.pack('<f', x))[0]
def bf16(x):
    u = np.asarray(x, dtype=np.float32).view(np.uint32)
    return ((u + 0x7FFF + ((u >> 16) & 1)) >> 16).astype(np.uint32)

T1 = 0
T2 = 8 << 20
AUX = 16 << 20
T1X = AUX
T2X = AUX + 0x4000
WX = AUX + 0x8000
CP = 256
C1 = AUX + 0x10000
C2 = AUX + 0x20000
EW = AUX + 0xa0000
STAMP = AUX + 0x100000
WSZ = 32 << 20
EXOFF = 32768
PS = 5184
WOFF = EXOFF + 8 * PS
WA = 128 * 144
M2OFF = WOFF + 2 * WA
SYOFF = M2OFF + 32768
PGOFF = SYOFF + 64
T1OFF = PGOFF + 2048
LDSZ = T1OFF + 14336
EX2 = EXOFF
OS = 8320
XOUT = EXOFF + 32768
PS2 = 4160
sW, sM, sRHO, sSB, sA, sGRP = 3, 4, 5, 6, 7, 32
X_, WR_, WI_, OUT_, WS_, TAB_ = 8, 12, 16, 20, 24, 28
sCNT = 33
sT = list(range(34, 48))
sV = 48
sEXP = 50
sTAG = 51
sW12, sM8, sE, sROLE, sC1, sC2 = 52, 53, 54, 55, 56, 57
sPM = 58
sST = 60
sO = [96, 97]
sU = [98, 99, 100, 101]
sONE = sU[2]
srd = lambda b: s(b, 4)

A = Asm()
XNT = ' nt' if OPT['xnt'] else ''
WNT = ' nt' if OPT['wnt'] else ''
OUTM = ['', ' sc1', ' nt', ' sc0 sc1', ' sc1 nt', ' sc0 sc1 nt'][OPT['outm']]
def M32(d, a, b, c): return f"v_mfma_f32_32x32x16_bf16 {v(d,16)}, {v(a,4)}, {v(b,4)}, {v(c,16) if c is not None else 0}"
def M16(d, a, b, c): return f"v_mfma_f32_16x16x32_bf16 {v(d,4)}, {v(a,4)}, {v(b,4)}, {v(c,4) if c is not None else 0}"
def CVT(d, a, b, na=False, nb=False): return f"v_cvt_pk_bf16_f32 {v(d)}, {'-' if na else ''}{v(a)}, {'-' if nb else ''}{v(b)}"
def m32(*a): A(M32(*a))
def m16(*a): A(M16(*a))
def cvt(*a): A(CVT(*a))
def weave(mf, fill, per):
    fill = list(fill)
    for i, m in enumerate(mf):
        A(m)
        n = per[i] if isinstance(per, (list, tuple)) else per
        for _ in range(n):
            if fill: A(fill.pop(0))
    for f in fill: A(f)
stamps = []
def stamp(name, sets=(1,)):
    st = OPT['stamp']
    if name in ("start", "end"):
        if st: A(f"s_memrealtime {s(sST + 2*len(stamps), 2)}"); stamps.append(name)
        if st > 1: A(f"s_memtime {s(sST + 2*len(stamps), 2)}"); stamps.append("c" + name)
    elif st in sets:
        if name not in stamps: stamps.append(name)
        A(f"{'s_memrealtime' if st == 1 else 's_memtime'} {s(sST + 2*stamps.index(name), 2)}")

vL, c_, g_ = 1, 2, 3
vT = list(range(2, 16))
TC, TS = 16, 32
FC, FS, FN = 48, 56, 64
M3 = 72
GR, GI = 80, 96
XR, XI = 112, 120
D1R, D1I = 128, 144
D2R, D2I = 160, 176
TMP = 192
PH = 224
WRF, WIF = 16, 48
FR = 80
DRE, DIM, DNR = 144, 160, 176
ER, EI = 192, 224

def peek(off, imm=0):
    A(f"s_mov_b64 {s(sV,2)}, 0")
    A(f"s_atomic_or_x2 {s(sV,2)}, {s(WS_,2)}, {s(off)} glc" if not imm else f"s_atomic_or_x2 {s(sV,2)}, {s(WS_,2)}, {s(off)} offset:{imm} glc")
def poll(label, off, count, sleep, imm=0):
    A(f"s_mov_b32 {s(sEXP)}, {count}")
    A(f"s_mov_b32 {s(sCNT)}, 0x8000")
    A.label(label)
    peek(off, imm)
    A(f"s_sub_u32 {s(sCNT)}, {s(sCNT)}, 1")
    A(f"s_cbranch_scc1 {label}_out")
    if sleep: A(f"s_sleep {sleep}")
    A("s_waitcnt lgkmcnt(0)")
    A(f"s_cmp_eq_u64 {s(sV,2)}, {s(sEXP,2)}")
    A(f"s_cbranch_scc0 {label}")
    A.label(label + "_out")
def validate(label, off, imm=0):
    A(f"s_mov_b32 {s(sCNT)}, 0x8000")
    A.label(label)
    A("s_waitcnt lgkmcnt(0)")
    A(f"s_cmp_eq_u32 {s(sV+1)}, {s(sTAG)}")
    A(f"s_cbranch_scc1 {label}_out")
    peek(off, imm)
    A(f"s_sub_u32 {s(sCNT)}, {s(sCNT)}, 1")
    A(f"s_cbranch_scc0 {label}")
    A("s_waitcnt lgkmcnt(0)")
    A.label(label + "_out")
def signal(off, imm=0):
    A(f"s_atomic_add {s(sONE)}, {s(WS_,2)}, {s(off)}" + (f" offset:{imm}" if imm else ""))

vSY, vS1, vPG = vT[12], vT[13], vT[11]
def lds_wait(label, off, val):
    A(f"s_mov_b32 {s(sCNT)}, 0x40000")
    A.label(label)
    A(f"ds_read_b32 {v(vS1)}, {v(vSY)} offset:{off}")
    A(f"s_sub_u32 {s(sCNT)}, {s(sCNT)}, 1")
    A(f"s_cbranch_scc1 {label}_out")
    A("s_waitcnt lgkmcnt(0)")
    A(f"v_cmp_gt_u32 vcc, {val}, {v(vS1)}")
    A("s_and_b64 vcc, vcc, vcc")
    A(f"s_cbranch_scc1 {label}")
    A.label(label + "_out")
def lds_post(off, rtn=False):
    A(f"v_mov_b32 {v(vS1)}, 1")
    A("s_mov_b64 exec, 1")
    if rtn: A(f"ds_add_rtn_u32 {v(vS1)}, {v(vSY)}, {v(vS1)} offset:{off}")
    else: A(f"ds_add_u32 {v(vSY)}, {v(vS1)} offset:{off}")
    A("s_mov_b64 exec, -1")

WD_ = X_
sWB, sI = sU[0], sU[3]
def w_loop(label, stride, end):
    A(f"""
    {label}:
    s_mul_i32 {s(sT[12])}, {s(sI)}, 57
    s_lshr_b32 {s(sT[12])}, {s(sT[12])}, 9
    s_mul_i32 {s(sT[13])}, {s(sT[12])}, 9
    s_sub_u32 {s(sT[13])}, {s(sI)}, {s(sT[13])}
    v_add_u32 {v(PH+30)}, {s(sT[13])}, {v(vL)}
    s_cmp_lt_u32 {s(sI)}, 18
    s_cselect_b32 {s(WD_)}, {s(WR_)}, {s(WI_)}
    s_cselect_b32 {s(WD_+1)}, {s(WR_+1)}, {s(WI_+1)}
    v_mul_u32_u24 {v(PH+31)}, 57, {v(PH+30)}
    s_and_b32 {s(sT[12])}, {s(sT[12])}, 1
    s_lshl_b32 {s(sT[12])}, {s(sT[12])}, 6
    v_lshrrev_b32 {v(PH+31)}, 9, {v(PH+31)}
    s_mul_i32 {s(sT[13])}, {s(sT[13])}, 7
    s_add_u32 {s(sT[12])}, {s(sT[12])}, {s(sT[13])}
    v_mul_u32_u24 {v(PH+31)}, {16416-144}, {v(PH+31)}
    s_mul_i32 {s(sT[12])}, {s(sT[12])}, 16416
    s_add_u32 {s(sT[12])}, {s(sT[12])}, {s(sWB)}
    v_lshl_add_u32 {v(PH+30)}, {v(PH+30)}, 4, {v(PH+31)}
    s_lshl_b32 {s(sT[13])}, {s(sI)}, 10
    s_add_u32 m0, {s(sT[13])}, {WOFF}
    s_add_u32 {s(sI)}, {s(sI)}, {stride}
    buffer_load_dwordx4 {v(PH+30)}, {srd(WD_)}, {s(sT[12])} offen{WNT} lds
    s_cmp_lt_u32 {s(sI)}, {end}
    s_cbranch_scc1 {label}
    """)

def gen_m2():
    G = D2R
    kf, s0, af, bf, ai, bi, ad = G, G+1, G+2, G+3, G+4, G+5, G+6
    P, C_, S_ = D1R, D1R+16, G+8
    A(f"""
    s_and_b32 {s(sT[12])}, {s(sW)}, 1
    s_lshl_b32 {s(sT[12])}, {s(sT[12])}, 4
    s_lshr_b32 {s(sT[13])}, {s(sW)}, 1
    v_add_u32 {v(kf)}, {s(sT[12])}, {v(c_)}
    v_lshl_add_u32 {v(ai)}, {v(kf)}, 2, {s(sT[13])}
    v_lshl_add_u32 {v(s0)}, {v(g_)}, 4, {s(sT[13])}
    v_mul_u32_u24 {v(bf)}, {v(s0)}, {v(kf)}
    v_mul_u32_u24 {v(bi)}, {v(g_)}, {v(ai)}
    v_cvt_f32_u32 {v(af)}, {v(kf)}
    v_cvt_f32_u32 {v(ai)}, {v(ai)}
    v_cvt_f32_u32 {v(bf)}, {v(bf)}
    v_cvt_f32_u32 {v(bi)}, {v(bi)}
    v_mul_f32 {v(bf)}, {fbits(1/128)}, {v(bf)}
    v_mul_f32 {v(bi)}, {fbits(1/32)}, {v(bi)}
    s_lshl_b32 {s(sT[12])}, {s(sW)}, 11
    s_add_u32 {s(sT[12])}, {s(sT[12])}, {M2OFF}
    v_lshl_add_u32 {v(ad)}, {v(vL)}, 4, {s(sT[12])}
    """)
    for d in range(2):
        for i in range(8):
            c = 16*(i >> 2) + (i & 3)
            A(f"v_fmamk_f32 {v(P+8*d+i)}, {v(ai if d else af)}, {fbits(c/128 if d else c/32)}, {v(bi if d else bf)}")
    for i in range(16):
        A(f"v_cos_f32 {v(C_+i)}, {v(P+i)}")
        A(f"v_sin_f32 {v(S_+i)}, {v(P+i)}")
    for d in range(2):
        for j in range(4):
            cvt(P+8*d+j, C_+8*d+2*j, C_+8*d+2*j+1)
            cvt(P+8*d+4+j, S_+8*d+2*j, S_+8*d+2*j+1)
    for d in range(2):
        for cs in range(2):
            A(f"ds_write_b128 {v(ad)}, {v(P+8*d+4*cs,4)} offset:{d*16384+cs*1024}")

def load_tables(addr):
    for i in (8, 9, 10, 11, 12, 13, 0, 4, 1, 5, 2, 6, 3, 7):
        A(f"ds_read_b128 {v(TC+4*i,4)}, {v(addr)} offset:{i*1024}")

def TW(dr, di, outr, outi, conj, lo, hi):
    L = []
    for i in range(lo, hi, 2):
        t = TMP + (i % 8) * 2
        for e in range(2):
            L.append(f"v_mul_f32 {v(t+e)}, {v(dr+i+e)}, {v(TC+i+e)}")
            L.append(f"v_mul_f32 {v(t+2+e)}, {v(di+i+e)}, {v(TC+i+e)}")
        for e in range(2):
            if not conj:
                L.append(f"v_fmac_f32 {v(t+e)}, {v(di+i+e)}, {v(TS+i+e)}")
                L.append(f"v_fma_f32 {v(t+2+e)}, -{v(dr+i+e)}, {v(TS+i+e)}, {v(t+2+e)}")
            else:
                L.append(f"v_fma_f32 {v(t+e)}, -{v(di+i+e)}, {v(TS+i+e)}, {v(t+e)}")
                L.append(f"v_fmac_f32 {v(t+2+e)}, {v(dr+i+e)}, {v(TS+i+e)}")
        L.append(CVT(outr + i//2, t, t+1))
        L.append(CVT(outi + i//2, t+2, t+3))
    return L

if OPT['lst'] == 0: A.raw(f"; @launch grid=(256,1,1) block=(512,1,1) lds={LDSZ}")
else:
    A.raw(f"; @launch kernel={NAME}_kernel grid=(256,1,1) block=(512,1,1) lds={LDSZ}")
    A.raw(f"; @launch kernel=empty_kernel grid=(1,1,1) block=(64,1,1) lds=0")
A.raw('.amdgcn_target "amdgcn-amd-amdhsa--gfx950"\n.text')
if OPT['lst']: A.raw(".globl empty_kernel\n.p2align 8\n.type empty_kernel,@function\nempty_kernel:\n s_endpgm")
A.raw(f".globl {NAME}_kernel\n.p2align 8\n.type {NAME}_kernel,@function")
A.label(f"{NAME}_kernel")
aL16 = GR + 1
A(f"""
s_cmp_ge_u32 s2, 256
s_cbranch_scc1 L_end
s_bfe_u32 {s(sM)}, s2, 0x10003
s_mul_i32 {s(sT[0])}, {s(sM)}, 24
s_load_dwordx2 {s(X_,2)}, s[0:1], {s(sT[0])}
s_load_dwordx2 {s(WS_,2)}, s[0:1], 64
s_load_dwordx2 {s(WR_,2)}, s[0:1], {s(sT[0])} offset:8
s_load_dwordx2 {s(WI_,2)}, s[0:1], {s(sT[0])} offset:16
s_load_dwordx2 {s(OUT_,2)}, s[0:1], 48
""")
stamp("start")
A(f"""
s_getpc_b64 {s(TAB_,2)}
L_pc:
v_lshrrev_b32 v2, 6, v0
s_mov_b32 {s(TAB_+2)}, L_tab_end-L_pc
s_mov_b32 {s(TAB_+3)}, 0x20000
v_readfirstlane_b32 {s(sW)}, v2
v_lshlrev_b32 v3, 11, v2
s_lshr_b32 {s(sT[6])}, s2, 4
s_lshl_b32 {s(sT[6])}, {s(sT[6])}, 7
buffer_load_dword {v(GR)}, v3, {srd(TAB_)}, {s(sT[6])} offen
v_and_b32 {v(vL)}, 63, v0
v_lshlrev_b32 {v(aL16)}, 4, {v(vL)}
s_lshl_b32 {s(sT[8])}, {s(sW)}, 11
s_add_u32 m0, {s(sT[8])}, {T1OFF}
s_add_u32 {s(sT[6])}, {s(sT[8])}, L_tab1-L_pc
buffer_load_dwordx4 {v(aL16)}, {srd(TAB_)}, {s(sT[6])} offen lds
buffer_load_dwordx4 {v(aL16)}, {srd(TAB_)}, {s(sT[6])} offen offset:1024 lds
s_and_b32 {s(sT[1])}, s2, 7
s_lshr_b32 {s(sT[2])}, s2, 4
s_lshl_b32 {s(sRHO)}, {s(sT[1])}, 4
s_add_u32 {s(sRHO)}, {s(sRHO)}, {s(sT[2])}
s_and_b32 {s(sSB)}, {s(sRHO)}, 31
s_lshl_b32 {s(sSB)}, {s(sSB)}, 2
s_lshr_b32 {s(sT[5])}, {s(sRHO)}, 5
s_add_u32 {s(sSB)}, {s(sSB)}, {s(sT[5])}
s_mov_b32 {s(X_+2)}, 4194304
s_mov_b32 {s(X_+3)}, 0x20000
s_lshl_b32 {s(sT[3])}, {s(sW)}, 7
s_add_u32 {s(sT[3])}, {s(sT[3])}, {s(sSB)}
s_lshl_b32 {s(sT[3])}, {s(sT[3])}, 11
s_add_u32 {s(sT[4])}, {s(sT[3])}, 0x200000
s_lshl_b32 {s(sW12)}, {s(sW)}, 12
s_mov_b32 m0, {s(sW12)}
s_lshl_b32 {s(sT[6])}, {s(sM)}, 8
s_add_u32 {s(sT[6])}, {s(sT[6])}, {EW}
s_waitcnt lgkmcnt(0)
""")
A(f"""
buffer_load_dwordx4 {v(aL16)}, {srd(X_)}, {s(sT[3])} offen{XNT} lds
s_load_dword {s(sE)}, {s(WS_,2)}, {s(sT[6])} glc
buffer_load_dwordx4 {v(aL16)}, {srd(X_)}, {s(sT[3])} offen offset:1024{XNT} lds
s_add_u32 m0, {s(sW12)}, 2048
s_lshl_b32 {s(sA)}, {s(sT[1])}, 1
buffer_load_dwordx4 {v(aL16)}, {srd(X_)}, {s(sT[4])} offen{XNT} lds
buffer_load_dwordx4 {v(aL16)}, {srd(X_)}, {s(sT[4])} offen offset:1024{XNT} lds
s_mov_b32 {s(WS_+2)}, {WSZ}
s_mov_b32 {s(WS_+3)}, 0x20000
s_mov_b32 {s(WR_+2)}, 2101248
s_mov_b32 {s(WR_+3)}, 0x20000
s_mov_b32 {s(WI_+2)}, 2101248
s_mov_b32 {s(WI_+3)}, 0x20000
s_mov_b32 {s(OUT_+2)}, 8388608
s_mov_b32 {s(OUT_+3)}, 0x20000
s_lshl_b32 {s(sM8)}, {s(sM)}, 3
""".replace(" glc", ""))
aPF, aG = GR + 2, GR + 3
sPF, sG = sU[0], sU[1]
SPW = 3
XIMM = (8 - SPW) * 4 * CP
A(f"""
s_lshl_b32 {s(sC1)}, {s(sM)}, 4
s_add_u32 {s(sC1)}, {s(sC1)}, {s(sW)}
s_lshl_b32 {s(sC1)}, {s(sC1)}, 2
s_add_u32 {s(sC1)}, {s(sC1)}, {s(sT[5])}
s_mul_i32 {s(sC1)}, {s(sC1)}, {CP}
s_add_u32 {s(sC1)}, {s(sC1)}, {C1}
s_add_u32 {s(sC2)}, {s(sM8)}, {s(sW)}
s_lshl_b32 {s(sC2)}, {s(sC2)}, 3
s_add_u32 {s(sC2)}, {s(sC2)}, {s(sT[1])}
s_mul_i32 {s(sC2)}, {s(sC2)}, {CP}
s_add_u32 {s(sC2)}, {s(sC2)}, {C2}
""")
A(f"""
s_lshr_b32 {s(sT[6])}, {s(sT[2])}, 3
s_add_u32 {s(sA)}, {s(sA)}, {s(sT[6])}
s_and_b32 {s(sGRP)}, {s(sT[2])}, 7
v_and_b32 {v(c_)}, 15, {v(vL)}
v_lshrrev_b32 {v(g_)}, 4, {v(vL)}
v_lshrrev_b32 v9, 2, {v(c_)}
v_and_b32 v10, 1, {v(c_)}
v_lshl_add_u32 v9, v9, 1, v10
v_and_b32 v10, 2, {v(c_)}
v_lshl_add_u32 v9, v10, 2, v9
v_mul_u32_u24 {v(aG)}, 1026, v9
s_mul_i32 {s(sG)}, {s(sRHO)}, 16416
v_mov_b32 {v(vSY)}, {SYOFF}
v_mov_b32 v8, 0
v_mov_b32 v9, 0
v_mov_b32 v10, 0
v_mov_b32 v11, 0
ds_write_b128 {v(vSY)}, v[8:11]
v_lshlrev_b32 {v(vPG)}, 2, v0
v_add_u32 {v(vPG)}, {PGOFF}, {v(vPG)}
ds_write_b32 {v(vPG)}, v8
""")
A(f"""
v_lshrrev_b32 {v(PH)}, 1, {v(c_)}
v_and_b32 {v(PH+1)}, 1, {v(PH)}
s_bfe_u32 {s(sT[0])}, {s(sRHO)}, 0x10002
v_and_b32 {v(PH+2)}, 1, {v(c_)}
v_xor_b32 {v(PH+2)}, {s(sT[0])}, {v(PH+2)}
v_sub_u32 {v(PH+2)}, {v(PH+2)}, {v(PH+1)}
v_cvt_f32_i32 {v(PH+2)}, {v(PH+2)}
v_mov_b32 {v(PH+3)}, {fbits(0.125)}
v_fmamk_f32 {v(PH+2)}, {v(PH+2)}, {fbits(0.25)}, {v(PH+3)}
v_mul_u32_u24 {v(PH+1)}, 0x8000, {v(PH+1)}
v_lshl_or_b32 {v(PH+1)}, {v(PH+1)}, 16, {v(PH+1)}
v_cvt_f32_u32 {v(PH)}, {v(PH)}
v_add_f32 {v(PH+3)}, {fbits(8.0)}, {v(PH)}
v_lshl_add_u32 {v(PH+4)}, {v(g_)}, 8, {s(sSB)}
v_cvt_f32_u32 {v(PH+4)}, {v(PH+4)}
v_mul_f32 {v(PH+4)}, {fbits(1/2048)}, {v(PH+4)}
v_add_f32 {v(PH+5)}, {fbits(1/16)}, {v(PH+4)}
""")
for mt in range(2):
    for e in range(2):
        t = PH + 8 + (mt*2+e)*3
        A(f"v_fma_f32 {v(t)}, {v(PH+4+e)}, {v(PH if mt == 0 else PH+3)}, {v(PH+2)}")
        A(f"v_cos_f32 {v(t+1)}, {v(t)}")
        A(f"v_sin_f32 {v(t+2)}, {v(t)}")
for mt in range(2):
    for e in range(2):
        t = PH + 8 + (mt*2+e)*3
        cvt(M3 + mt*4 + 2*e, t+1, t+2)
        cvt(M3 + mt*4 + 2*e + 1, t+2, t+1)
        A(f"v_xor_b32 {v(M3 + mt*4 + 2*e + 1)}, {v(PH+1)}, {v(M3 + mt*4 + 2*e + 1)}")
aTR, aP, aQe, aQo, aRD, aST = vT[2:8]
sS1 = sT[8:12]
A(f"""
v_bfe_u32 {v(PH)}, {v(vL)}, 2, 2
v_lshrrev_b32 {v(PH+1)}, 5, {v(vL)}
v_lshl_add_u32 {v(PH)}, {v(PH+1)}, 2, {v(PH)}
v_lshlrev_b32 {v(PH)}, 6, {v(PH)}
v_and_b32 {v(PH+2)}, 16, {v(vL)}
v_lshl_add_u32 {v(PH)}, {v(PH+2)}, 1, {v(PH)}
v_and_b32 {v(PH+2)}, 3, {v(vL)}
v_lshl_add_u32 {v(PH)}, {v(PH+2)}, 3, {v(PH)}
v_add_u32 {v(aTR)}, {s(sW12)}, {v(PH)}
s_mul_i32 {s(sT[0])}, {s(sW)}, {PS}
s_add_u32 {s(sT[0])}, {s(sT[0])}, {EXOFF}
v_and_b32 {v(PH+3)}, 31, {v(vL)}
v_mul_u32_u24 {v(PH+4)}, 20, {v(PH+2)}
v_lshrrev_b32 {v(PH+5)}, 2, {v(PH+3)}
v_mul_u32_u24 {v(PH+6)}, 160, {v(PH+1)}
v_add3_u32 {v(PH+4)}, {v(PH+4)}, {v(PH+5)}, {v(PH+6)}
v_lshl_add_u32 {v(aP)}, {v(PH+4)}, 3, {s(sT[0])}
v_sub_u32 {v(PH+3)}, 32, {v(PH+3)}
v_and_b32 {v(PH+4)}, 3, {v(PH+3)}
v_mul_u32_u24 {v(PH+4)}, 20, {v(PH+4)}
v_lshrrev_b32 {v(PH+5)}, 2, {v(PH+3)}
v_sub_u32 {v(PH+6)}, 160, {v(PH+6)}
v_add3_u32 {v(PH+4)}, {v(PH+4)}, {v(PH+5)}, {v(PH+6)}
v_lshl_add_u32 {v(aQe)}, {v(PH+4)}, 3, {s(sT[0])}
v_and_b32 {v(PH+3)}, 32, {v(PH+3)}
v_lshl_add_u32 {v(aQo)}, {v(PH+3)}, 4, {v(aQe)}
s_mul_i32 {s(sT[0])}, {s(sW)}, 640
s_add_u32 {s(sT[0])}, {s(sT[0])}, {EXOFF}
v_mul_u32_u24 {v(PH)}, {2*PS}, {v(g_)}
v_lshl_add_u32 {v(PH)}, {v(c_)}, 3, {v(PH)}
v_add_u32 {v(aRD)}, {s(sT[0])}, {v(PH)}
v_lshlrev_b32 {v(PH)}, 19, {v(g_)}
v_lshl_add_u32 {v(aST)}, {v(c_)}, 4, {v(PH)}
v_add_u32 {v(vS1)}, {T1OFF}, {v(aL16)}
s_lshl_b32 {s(sS1[0])}, {s(sM)}, 22
s_lshl_b32 {s(sT[0])}, {s(sW)}, 15
s_add_u32 {s(sS1[0])}, {s(sS1[0])}, {s(sT[0])}
s_lshl_b32 {s(sT[0])}, {s(sRHO)}, 8
s_add_u32 {s(sS1[0])}, {s(sS1[0])}, {s(sT[0])}
s_add_u32 {s(sS1[1])}, {s(sS1[0])}, {1<<18}
s_add_u32 {s(sS1[2])}, {s(sS1[0])}, {8<<18}
s_add_u32 {s(sS1[3])}, {s(sS1[0])}, {9<<18}
s_mul_i32 {s(sWB)}, {s(sA)}, 1026
s_lshl_b32 {s(sT[0])}, {s(sGRP)}, 7
s_add_u32 {s(sWB)}, {s(sWB)}, {s(sT[0])}
s_andn2_b32 {s(sWB)}, {s(sWB)}, 15
s_mov_b32 {s(WD_+2)}, 2101248
s_mov_b32 {s(sI)}, {s(sW)}
s_waitcnt lgkmcnt(0)
s_mul_i32 {s(sTAG)}, {s(sE)}, 0x9E3779B1
s_add_u32 {s(sTAG)}, {s(sTAG)}, 0x7F4A7C15
s_mov_b32 {s(sEXP)}, 0
s_mov_b32 {s(sONE)}, 1
s_and_b32 {s(sT[1])}, {s(sRHO)}, 15
s_cbranch_scc1 L_noinit
s_atomic_swap_x2 {s(sEXP,2)}, {s(WS_,2)}, {s(sC2)}
s_and_b32 {s(sT[1])}, {s(sRHO)}, 31
s_cbranch_scc1 L_noinit
s_atomic_swap_x2 {s(sEXP,2)}, {s(WS_,2)}, {s(sC1)}
s_cmp_lg_u32 {s(sW)}, {SPW}
s_cbranch_scc1 L_noinit
s_atomic_swap_x2 {s(sEXP,2)}, {s(WS_,2)}, {s(sC1)} offset:{XIMM}
L_noinit:
""")
if OPT['gpos'] == 0: gen_m2()
A("s_waitcnt vmcnt(4)")
A("s_barrier")
load_tables(vS1)
NE = OPT['ne']
A(f"""
s_cmp_lg_u32 {s(sW)}, {SPW}
s_cbranch_scc1 L_nogather
buffer_load_ushort v11, {v(aG)}, {srd(WR_)}, {s(sG)} offen offset:1024
buffer_load_ushort v12, {v(aG)}, {srd(WI_)}, {s(sG)} offen offset:1024
L_nogather:
""")
if NE: w_loop("L_wearly", 8, 8*NE)
A(f"""
s_waitcnt vmcnt({NE+2})
s_cmp_eq_u32 {s(sW)}, {SPW}
s_cbranch_scc1 L_xw1
s_waitcnt vmcnt({NE})
L_xw1:
""")
stamp("x", (1, 2))
for comp, dst in ((0, XR), (1, XI)):
    for t in range(2):
        for j in range(2):
            A(f"ds_read_b64_tr_b16 {v(dst+4*t+2*j,2)}, {v(aTR)} offset:{comp*2048+t*1024+j*512}")
A("s_waitcnt lgkmcnt(0)")
stamp("tr", (2,))
weave([M32(D1R, XR, FC, None), M32(D1I, XR, FN, None), M32(D1R, XR+4, FC+4, D1R), M32(D1I, XR+4, FN+4, D1I),
       M32(D1R, XI, FS, D1R), M32(D1I, XI, FC, D1I), M32(D1R, XI+4, FS+4, D1R), M32(D1I, XI+4, FC+4, D1I)], [], 0)
stamp("m1", (2,))
tw2 = TW(D1R, D1I, XR, XI, False, 8, 16)
for t_ in TW(D1R, D1I, XR, XI, False, 0, 8) + tw2[:16]: A(t_)
stamp("tw", (2,))
weave([M32(D2R, FC, XR, None), M32(D2I, FN, XR, None), M32(D2R, FS, XI, D2R), M32(D2I, FC, XI, D2I)], tw2[16:], 6)
weave([M32(D2R, FC+4, XR+4, D2R), M32(D2I, FN+4, XR+4, D2I), M32(D2R, FS+4, XI+4, D2R), M32(D2I, FC+4, XI+4, D2I)], [], 0)
stamp("m2", (2,))
for i in range(16):
    cvt(TMP+i, D2R+i, D2I+i)
stamp("cv", (2,))
for i in range(16):
    kd2 = 8*(i >> 2) + (i & 3)
    if i < 8:
        A(f"ds_write_b32 {v(aP)}, {v(TMP+i)} offset:{(80*(kd2>>1)+8*(kd2&1))*8}")
    else:
        e = 31 - kd2 - 4
        A(f"ds_write_b32 {v(aQo if e & 1 else aQe)}, {v(TMP+i)} offset:{(80*(e>>1)+8*(e&1))*8+4}")
A(f"""
s_mov_b64 exec, 1
ds_write_b32 {v(aP)}, {v(TMP)} offset:4
ds_write_b32 {v(aP)}, {v(TMP+8)} offset:{640*8}
s_mov_b64 exec, -1
""")
stamp("wr", (2,))
A("s_waitcnt lgkmcnt(0)")
stamp("wrd", (2,))
A("s_barrier")
stamp("bar1", (1, 2))
A(f"""
s_cmp_lg_u32 {s(sW)}, {SPW}
s_cbranch_scc1 L_nosp1
v_mul_u32_u24 {v(PH)}, {2*PS}, {v(g_)}
ds_read_b64 {v(XR,2)}, {v(PH)} offset:{EXOFF+640*8}
ds_read_b64 {v(XR+2,2)}, {v(PH)} offset:{EXOFF+640*8+PS}
s_lshl_b32 {s(sT[0])}, {s(sM)}, 13
s_lshl_b32 {s(sT[1])}, {s(sRHO)}, 6
s_add_u32 {s(sT[0])}, {s(sT[0])}, {s(sT[1])}
s_add_u32 {s(sT[1])}, {s(sT[0])}, {WX}
s_add_u32 {s(sT[0])}, {s(sT[0])}, {T1X}
v_lshlrev_b32 {v(PH+1)}, 2, {v(vL)}
v_lshlrev_b32 {v(PH+2)}, 4, {v(g_)}
s_waitcnt vmcnt({NE})
v_lshl_or_b32 v11, v12, 16, v11
s_mov_b64 exec, 0xffff
buffer_store_dword v11, {v(PH+1)}, {srd(WS_)}, {s(sT[1])} offen sc1
s_mov_b64 exec, -1
s_waitcnt lgkmcnt(0)
""")
m16(D1R, M3, XR, None); m16(D1R+4, M3+4, XR, None)
cvt(TMP, D1R, D1R+2); cvt(TMP+1, D1R+4, D1R+6); cvt(TMP+2, D1R+1, D1R+3); cvt(TMP+3, D1R+5, D1R+7)
A(f"""
s_mov_b32 exec_lo, 0x00010001
s_mov_b32 exec_hi, 0x00010001
buffer_store_dwordx4 {v(TMP,4)}, {v(PH+2)}, {srd(WS_)}, {s(sT[0])} offen sc1
s_mov_b64 exec, -1
L_nosp1:
""")
for t in range(4):
    for jj in range(2):
        A(f"ds_read_b64 {v(XR+4*t+2*jj,2)}, {v(aRD)} offset:{160*t+PS*jj}")
for t in range(4):
    A(f"s_waitcnt lgkmcnt({6-2*t})")
    m16(D1R+8*t, M3, XR+4*t, None)
peek(sC1)
for t in range(4):
    m16(D1R+8*t+4, M3+4, XR+4*t, None)
for mt in range(2):
    for al in range(2):
        o = TMP + 4 + (mt*2+al)*4
        d = D1R + 4*mt + 2*al
        cvt(o, d, d+8); cvt(o+2, d+1, d+9); cvt(o+1, d+16, d+24); cvt(o+3, d+17, d+25)
    for al in range(2):
        o = TMP + 4 + (mt*2+al)*4
        A(f"buffer_store_dwordx4 {v(o,4)}, {v(aST)}, {srd(WS_)}, {s(sS1[mt*2+al])} offen sc1")
stamp("st1", (1, 2))
A("s_barrier")
if OPT['lw'] == 1:
    A(f"""
    s_cmp_lt_u32 {s(sW)}, 5
    s_cbranch_scc1 L_nolw1
    s_add_u32 {s(sI)}, {s(sW)}, {8*NE-5}
    """)
    w_loop("L_wlate", 3, 36)
    A.label("L_nolw1")
if OPT['gpos'] == 1: gen_m2()
validate("L_val1", sC1)
if OPT['gpos'] == 1: lds_post(12)
A(f"""
s_cmp_lg_u32 {s(sW)}, {SPW}
s_cbranch_scc1 L_nosp2
""")
peek(sC1, XIMM)
validate("L_valx", sC1, XIMM)
A("s_waitcnt vmcnt(4)")
signal(sC1, XIMM)
A.label("L_nosp2")
aW, aF, aRe, aIm, aO, aD = vT[2:8]
sSRC, sPL, sMS, sIMG, sFA, sFB, sDST, sOI, sSG, sFC = sT[2:12]
def flag1(n=0):
    A(f"s_waitcnt vmcnt({n})")
    signal(sC1)
    stamp("fl1")
A(f"""
s_cmp_lt_u32 {s(sW)}, 4
s_cbranch_scc1 L_p2reg
""")
A(f"""
s_cmp_eq_u32 {s(sW)}, 4
s_cbranch_scc1 L_w4
""")
flag1((36 - 8*NE) // 3 if OPT['lw'] == 1 else 0)
if OPT['lw'] == 0:
    A(f"s_add_u32 {s(sI)}, {s(sW)}, {8*NE-5}")
    w_loop("L_wlate", 3, 36)
A("s_waitcnt vmcnt(0)")
lds_post(0)
stamp("wld")
A("s_branch L_idle")
A.label("L_w4")
flag1()
lds_post(0)
A(f"""
s_cmp_lg_u32 {s(sRHO)}, 0
s_cbranch_scc1 L_idle
""")
if OPT['xprio']: A("s_setprio 3")
A(f"""
s_mov_b32 {s(sIMG)}, {EXOFF}
s_mov_b32 {s(sFA)}, 1
s_mov_b32 {s(sFC)}, 0
s_mov_b32 {s(sFB)}, 1
s_lshl_b32 {s(sSRC)}, {s(sM)}, 13
s_add_u32 {s(sT[0])}, {s(sSRC)}, {WX}
s_add_u32 {s(sT[1])}, {s(sT[0])}, 4096
s_add_u32 {s(sDST)}, {s(sSRC)}, {T2X}
s_add_u32 {s(sSRC)}, {s(sSRC)}, {T1X}
s_add_u32 {s(sPL)}, {s(sC1)}, {(4*4+3)*CP}
s_mov_b32 {s(sMS)}, 4096
v_lshlrev_b32 {v(aD)}, 4, {v(vL)}
v_lshlrev_b32 {v(aW)}, 6, {v(c_)}
v_lshl_add_u32 {v(aW)}, {v(g_)}, 4, {v(aW)}
s_mov_b32 {s(sOI)}, {XOUT}
v_add_u32 {v(aRe)}, {EXOFF}, {v(aD)}
""")
for i in range(3): poll(f"L_pollx{i}", sC1, 32, OPT['sl1'], (4*4+i)*CP)
A("s_branch L_p2common")
A.label("L_p2reg")
flag1()
if OPT['lw'] == 2:
    A(f"s_add_u32 {s(sI)}, {s(sW)}, {8*NE}")
    w_loop("L_wlate", 4, 36)
else: lds_post(0)
A(f"""
s_lshl_b32 {s(sIMG)}, {s(sW)}, 13
s_mov_b32 {s(sFA)}, 0
s_and_b32 {s(sFC)}, {s(sA)}, 7
s_mov_b32 {s(sFB)}, 0
s_lshl_b32 {s(sT[0])}, {s(sM)}, 4
s_add_u32 {s(sSRC)}, {s(sT[0])}, {s(sA)}
s_lshl_b32 {s(sSRC)}, {s(sSRC)}, 3
s_add_u32 {s(sSRC)}, {s(sSRC)}, {s(sGRP)}
s_lshl_b32 {s(sSRC)}, {s(sSRC)}, 15
s_add_u32 {s(sSRC)}, {s(sSRC)}, {s(sIMG)}
s_add_u32 {s(sPL)}, {s(sT[0])}, {s(sGRP)}
s_lshl_b32 {s(sPL)}, {s(sPL)}, 2
s_add_u32 {s(sPL)}, {s(sPL)}, {s(sW)}
s_mul_i32 {s(sPL)}, {s(sPL)}, {CP}
s_add_u32 {s(sPL)}, {s(sPL)}, {C1}
s_mov_b32 {s(sMS)}, 1024
s_mul_i32 {s(sOI)}, {s(sW)}, {OS}
s_add_u32 {s(sOI)}, {s(sOI)}, {WOFF}
v_lshlrev_b32 {v(aD)}, 2, {v(g_)}
v_xor_b32 {v(aD)}, {v(aD)}, {v(c_)}
v_lshlrev_b32 {v(aD)}, 4, {v(aD)}
v_lshl_add_u32 {v(aD)}, {v(g_)}, 8, {v(aD)}
v_lshrrev_b32 {v(aRe)}, 2, {v(vL)}
v_and_b32 {v(aF)}, 3, {v(aRe)}
v_xor_b32 {v(aF)}, {s(sW)}, {v(aF)}
v_lshlrev_b32 {v(aRe)}, 8, {v(aRe)}
v_lshl_add_u32 {v(aRe)}, {v(aF)}, 6, {v(aRe)}
v_and_b32 {v(aF)}, 3, {v(vL)}
v_lshl_add_u32 {v(aRe)}, {v(aF)}, 4, {v(aRe)}
s_lshl_b32 {s(sT[0])}, {s(sW)}, 5
s_add_u32 {s(sT[0])}, {s(sT[0])}, {WOFF}
v_min_u32 {v(aW)}, 2, {v(g_)}
v_mul_u32_u24 {v(aF)}, 144, {v(c_)}
v_lshl_add_u32 {v(aW)}, {v(aW)}, 4, {v(aF)}
v_add_u32 {v(aW)}, {s(sT[0])}, {v(aW)}
""")
A.label("L_p2common")
A(f"v_lshlrev_b32 {v(aF)}, 4, {v(vL)}")
A(f"v_add_u32 {v(aF)}, {M2OFF}, {v(aF)}")
SEL = DNR
A(f"""
v_lshlrev_b32 {v(DIM)}, {s(sFA)}, {v(c_)}
v_lshlrev_b32 {v(DIM+1)}, 3, {v(g_)}
v_sub_u32 {v(DIM)}, {v(DIM)}, {v(DIM+1)}
v_add_u32 {v(DIM)}, {s(sFC)}, {v(DIM)}
v_add_u32 {v(DIM+1)}, {s(sFB)}, {v(DIM)}
v_mov_b32 {v(DIM+4)}, 0x3500
""")
for q in range(2):
    A(f"v_and_b32 {v(DIM+2)}, 1, {v(DIM+q)}")
    A(f"v_lshlrev_b32 {v(DIM+2)}, 4, {v(DIM+2)}")
    A(f"v_lshlrev_b32 {v(DIM+2)}, {v(DIM+2)}, {v(DIM+4)}")
    A(f"v_ashrrev_i32 {v(DIM+3)}, 1, {v(DIM+q)}")
    for j in range(4):
        A(f"v_cmp_eq_u32 vcc, {j}, {v(DIM+3)}")
        A(f"v_cndmask_b32 {v(SEL+4*q+j)}, 0, {v(DIM+2)}, vcc")
A(f"""
v_and_b32 {v(aIm)}, 1, {v(g_)}
v_lshl_add_u32 {v(aRe)}, {v(aIm)}, 3, {v(aRe)}
v_xor_b32 {v(aIm)}, 8, {v(aRe)}
v_bfe_u32 {v(aO)}, {v(vL)}, 1, 2
v_xor_b32 {v(aO)}, {v(aO)}, {v(g_)}
v_lshlrev_b32 {v(aO)}, 4, {v(aO)}
v_lshl_add_u32 {v(aO)}, {v(c_)}, 6, {v(aO)}
v_add_u32 {v(aO)}, {s(sOI)}, {v(aO)}
v_mov_b32 {v(vT[9])}, 1
s_mov_b32 m0, {s(sIMG)}
""")
if OPT['gpos'] == 1: lds_wait("L_fr", 12, 8)
for f in range(16):
    A(f"ds_read_b128 {v(FR+4*f,4)}, {v(aF)} offset:{f*1024}")
poll("L_poll1", sPL, 32, OPT['sl1'])
stamp("pol1")
for n in range(8):
    A(f"buffer_load_dwordx4 {v(aD)}, {srd(WS_)}, {s(sSRC)} offen sc1 lds")
    if n < 7:
        A(f"s_add_u32 m0, m0, {s(sMS)}")
        A(f"s_add_u32 {s(sSRC)}, {s(sSRC)}, 1024")
A(f"""
s_cmp_lt_u32 {s(sW)}, 4
s_cbranch_scc1 L_wreg
""")
for t in range(8):
    A(f"buffer_load_dwordx4 {v(ER+4*t,4)}, {v(aW)}, {srd(WS_)}, {s(sT[t>>2])} offen offset:{(t&3)*1024} sc1")
A("s_waitcnt vmcnt(0) lgkmcnt(0)")
for t in range(8):
    m16(WRF+4*t, ER+4*t, SEL, None); m16(WIF+4*t, ER+4*t, SEL+4, None)
A("s_branch L_wcv")
A.label("L_wreg")
if OPT['lw'] == 2:
    A("s_waitcnt vmcnt(8)")
    lds_post(0)
lds_wait("L_wr", 0, 8)
for t in range(16):
    if t == 12: A("s_waitcnt lgkmcnt(8)")
    A(f"ds_read_b128 {v(ER+4*t,4)}, {v(aW)} offset:{t*2304}")
for t in range(16):
    if t >= 4: A(f"s_waitcnt lgkmcnt({15-t})")
    m16(WRF+4*t, ER+4*t, SEL, None)
A.label("L_wcv")
A(f"s_mov_b32 {s(sT[0])}, 0x80008000")
stamp("wcv", (1, 3))
A(f"""
s_cmp_ge_u32 {s(sW)}, 4
s_cbranch_scc1 L_go2_out
s_waitcnt vmcnt(0)
""")
lds_post(4)
lds_wait("L_go2", 4, 4)
stamp("dat1", (1, 3))
for u in range(4):
    for j in range(2): A(f"ds_read_b64_tr_b16 {v(DRE+4*u+2*j,2)}, {v(aRe)} offset:{u*8192+j*4096}")
    if u == 3: A("s_waitcnt lgkmcnt(12)")
    for j in range(2): A(f"ds_read_b64_tr_b16 {v(DIM+4*u+2*j,2)}, {v(aIm)} offset:{u*8192+j*4096}")
for u in range(4):
    n = 12 - 4*u
    if u: A(f"s_waitcnt lgkmcnt({n+2})")
    fc = lambda mt: FR + (u*4 + mt*2) * 4
    fs = lambda mt: FR + (u*4 + mt*2 + 1) * 4
    e = lambda mt: (u*2 + mt) * 4
    m16(ER+e(0), fc(0), DRE+4*u, None)
    for j in range(2): A(f"v_xor_b32 {v(DNR+4*u+j)}, {s(sT[0])}, {v(DRE+4*u+j)}")
    m16(ER+e(1), fc(1), DRE+4*u, None)
    for j in range(2, 4): A(f"v_xor_b32 {v(DNR+4*u+j)}, {s(sT[0])}, {v(DRE+4*u+j)}")
    A(f"s_waitcnt lgkmcnt({n})")
    m16(EI+e(0), fc(0), DIM+4*u, None); m16(EI+e(1), fc(1), DIM+4*u, None)
    m16(ER+e(0), fs(0), DIM+4*u, ER+e(0)); m16(ER+e(1), fs(1), DIM+4*u, ER+e(1))
    m16(EI+e(0), fs(0), DNR+4*u, EI+e(0)); m16(EI+e(1), fs(1), DNR+4*u, EI+e(1))
stamp("fwd", (3,))
for f in range(12):
    A(f"ds_read_b128 {v(FR+4*f,4)}, {v(aF)} offset:{16384+f*1024}")
TT = FR + 48
def pk(op, d, a, b, c=None, na=False, nb=False):
    ops = f"{v(d,2)}, {v(a,2)}, {v(b,2)}" + (f", {v(c,2)}" if c is not None else "")
    n = [int(na), int(nb)] + ([0] if c is not None else [])
    mod = f" neg_lo:{n} neg_hi:{n}".replace(", ", ",") if (na or nb) else ""
    A(f"v_pk_{op}_f32 {ops}{mod}")
add = lambda d, a, b: pk("add", d, a, b)
sub = lambda d, a, b: pk("add", d, a, b, nb=True)
A.raw(".p2align 3")
for mt in range(2):
    for rp in range(2):
        er = lambda u: ER + (u*2+mt)*4 + 2*rp
        ei = lambda u: EI + (u*2+mt)*4 + 2*rp
        wr = lambda q: WRF + (q*2+mt)*4 + 2*rp
        wi = lambda q: WIF + (q*2+mt)*4 + 2*rp
        tr = lambda i: TT + 4*i
        ti = lambda i: TT + 4*i + 2
        add(tr(0), er(0), er(2)); add(ti(0), ei(0), ei(2)); sub(tr(1), er(0), er(2)); sub(ti(1), ei(0), ei(2))
        add(tr(2), er(1), er(3)); add(ti(2), ei(1), ei(3)); sub(tr(3), er(1), er(3)); sub(ti(3), ei(1), ei(3))
        add(er(0), tr(0), tr(2)); add(ei(0), ti(0), ti(2)); sub(er(2), tr(0), tr(2)); sub(ei(2), ti(0), ti(2))
        add(er(1), tr(1), ti(3)); sub(ei(1), ti(1), tr(3)); sub(er(3), tr(1), ti(3)); add(ei(3), ti(1), tr(3))
        for q in range(4):
            pk("mul", tr(q), er(q), wr(q)); pk("mul", ti(q), er(q), wi(q))
        for q in range(4):
            pk("fma", tr(q), ei(q), wi(q), tr(q), na=True); pk("fma", ti(q), ei(q), wr(q), ti(q))
        add(er(0), tr(0), tr(2)); add(ei(0), ti(0), ti(2)); sub(er(1), tr(0), tr(2)); sub(ei(1), ti(0), ti(2))
        add(er(2), tr(1), tr(3)); add(ei(2), ti(1), ti(3)); sub(er(3), tr(1), tr(3)); sub(ei(3), ti(1), ti(3))
        add(tr(0), er(0), er(2)); add(ti(0), ei(0), ei(2)); sub(tr(2), er(0), er(2)); sub(ti(2), ei(0), ei(2))
        sub(tr(1), er(1), ei(3)); add(ti(1), ei(1), er(3)); add(tr(3), er(1), ei(3)); sub(ti(3), ei(1), er(3))
        for u in range(4):
            cvt(DRE+4*u+2*mt+rp, tr(u), tr(u)+1)
            cvt(DIM+4*u+2*mt+rp, ti(u), ti(u)+1)
            cvt(DNR+4*u+2*mt+rp, ti(u), ti(u)+1, True, True)
stamp("mid", (3,))
A("s_waitcnt lgkmcnt(0)")
for f in range(12, 16):
    A(f"ds_read_b128 {v(FR+4*f,4)}, {v(aF)} offset:{16384+f*1024}")
def INV(u, nt):
    e = (u*2+nt)*4; o = WRF + e
    return [CVT(o, ER+e, ER+e+1), CVT(o+1, ER+e+2, ER+e+3), CVT(o+2, EI+e, EI+e+1), CVT(o+3, EI+e+2, EI+e+3),
            f"ds_write_b128 {v(aO)}, {v(o,4)} offset:{(u*2+nt)*1024}", f"ds_add_u32 {v(vPG)}, {v(vT[9])}"]
for u in range(4):
    if u == 3: A("s_waitcnt lgkmcnt(8)")
    for nt in range(2):
        fc, fs, e = FR + (u*4 + nt*2) * 4, FR + (u*4 + nt*2 + 1) * 4, (u*2 + nt) * 4
        k = u*2 + nt - 2
        fill = INV(k >> 1, k & 1) if k >= 0 else []
        weave([M16(ER+e, DRE+4*u, fc, None), M16(EI+e, DIM+4*u, fc, None), M16(ER+e, DNR+4*u, fs, ER+e), M16(EI+e, DRE+4*u, fs, EI+e)], fill, [2, 2, 1, 1])
stamp("inv", (3,))
l0, l1 = INV(3, 0), INV(3, 1)
for t_ in l0[:4] + l1[:4] + l0[4:] + l1[4:]: A(t_)
stamp("cmp2", (1, 3))
A(f"""
s_cmp_lt_u32 {s(sW)}, 4
s_cbranch_scc1 L_setup3
""")
A(f"""
v_bfe_u32 {v(aO)}, {v(vL)}, 3, 2
v_xor_b32 {v(aO)}, {v(aO)}, {v(vL)}
v_lshlrev_b32 {v(aO)}, 4, {v(aO)}
v_add_u32 {v(aO)}, {XOUT}, {v(aO)}
s_add_u32 {s(sT[1])}, {s(sDST)}, 4096
s_mul_i32 {s(sT[0])}, {s(sM8)}, {8*CP}
s_add_u32 {s(sT[0])}, {s(sT[0])}, {C2}
""")
for t in range(8): A(f"ds_read_b128 {v(ER+4*t,4)}, {v(aO)} offset:{t*1024}")
A("s_waitcnt lgkmcnt(0)")
for t in range(8): A(f"buffer_store_dwordx4 {v(ER+4*t,4)}, {v(aD)}, {srd(WS_)}, {s(sDST if t < 4 else sT[1])} offen offset:{(t&3)*1024} sc1")
A("s_waitcnt vmcnt(0)")
for n in range(8): signal(sT[0], n*CP)
A(f"""
s_lshl_b32 {s(sT[0])}, {s(sM)}, 8
s_add_u32 {s(sT[0])}, {s(sT[0])}, {EW}
s_atomic_swap {s(sTAG)}, {s(WS_,2)}, {s(sT[0])}
s_setprio 0
L_idle:
""")
A.label("L_setup3")
A3 = 237
aD3, aPw, aQ1, aQ0, aRd3, aSo, aQp = range(A3, A3+7)
aT = list(range(A3+9, A3+13))
sMR, sS3 = sT[2], sT[3]
A(f"""
v_lshrrev_b32 {v(PH)}, 1, {v(vL)}
v_xor_b32 {v(PH)}, {v(PH)}, {v(vL)}
v_and_b32 {v(PH)}, 4, {v(PH)}
v_mul_u32_u24 {v(PH)}, 3, {v(PH)}
v_xor_b32 {v(PH)}, {v(PH)}, {v(vL)}
v_lshlrev_b32 {v(vS1)}, 4, {v(PH)}
v_add_u32 {v(vS1)}, {T1OFF}, {v(vS1)}
v_and_b32 {v(aSo)}, 15, {v(PH)}
v_lshlrev_b32 {v(aSo)}, 6, {v(aSo)}
v_and_b32 {v(PH)}, 1, {v(g_)}
v_lshl_add_u32 {v(aSo)}, {v(PH)}, 5, {v(aSo)}
v_lshrrev_b32 {v(PH)}, 1, {v(g_)}
v_lshl_add_u32 {v(aSo)}, {v(PH)}, 4, {v(aSo)}
""")
load_tables(vS1)
A(f"""
v_lshrrev_b32 {v(PH)}, 2, {v(c_)}
v_lshl_add_u32 {v(PH)}, {v(PH)}, 7, {s(sSB)}
v_cvt_f32_u32 {v(PH)}, {v(PH)}
v_mul_f32 {v(PH)}, {fbits(1/2048)}, {v(PH)}
v_add_f32 {v(PH+1)}, {fbits(0.25)}, {v(PH)}
v_and_b32 {v(PH+2)}, 1, {v(c_)}
v_cvt_f32_u32 {v(PH+2)}, {v(PH+2)}
v_mul_f32 {v(PH+2)}, {fbits(-0.25)}, {v(PH+2)}
v_add_f32 {v(PH+3)}, {fbits(-0.125)}, {v(PH+2)}
v_add_f32 {v(PH+2)}, {fbits(0.125)}, {v(PH+2)}
v_and_b32 {v(PH+4)}, 2, {v(c_)}
v_lshlrev_b32 {v(PH+4)}, 30, {v(PH+4)}
v_xor_b32 {v(PH+2)}, {v(PH+4)}, {v(PH+2)}
v_xor_b32 {v(PH+3)}, {v(PH+4)}, {v(PH+3)}
v_lshlrev_b32 {v(PH+4)}, 1, {v(g_)}
v_cvt_f32_u32 {v(PH+4)}, {v(PH+4)}
v_add_f32 {v(PH+5)}, 1.0, {v(PH+4)}
v_add_f32 {v(PH+6)}, {fbits(8.0)}, {v(PH+4)}
v_add_f32 {v(PH+7)}, {fbits(9.0)}, {v(PH+4)}
""")
for mt in range(2):
    for j in range(4):
        t = TMP + (mt*4+j)*3
        A(f"v_fma_f32 {v(t)}, {v(PH+mt)}, {v(PH+4+j)}, {v(PH+2+(j&1))}")
        A(f"v_cos_f32 {v(t+1)}, {v(t)}")
        A(f"v_sin_f32 {v(t+2)}, {v(t)}")
for mt in range(2):
    for j in range(4):
        t = TMP + (mt*4+j)*3
        cvt(M3+mt*4+j, t+1, t+2, False, True)
A(f"""
v_lshlrev_b32 {v(PH)}, 2, {v(g_)}
v_xor_b32 {v(PH)}, {v(PH)}, {v(c_)}
v_lshlrev_b32 {v(PH)}, 4, {v(PH)}
v_lshl_add_u32 {v(aD3)}, {v(g_)}, 8, {v(PH)}
s_lshl_b32 {s(sMR)}, {s(sM)}, 7
s_add_u32 {s(sMR)}, {s(sMR)}, {s(sRHO)}
s_lshl_b32 {s(sS3)}, {s(sMR)}, 15
s_add_u32 {s(sS3)}, {s(sS3)}, {s(sW12)}
s_add_u32 {s(sS3)}, {s(sS3)}, {T2}
s_mov_b32 m0, {s(sW12)}
s_cmp_lt_u32 {s(sW)}, 6
s_cbranch_scc1 L_nosig2
""")
aR0, aR1, aS2, aPr = vT[2], vT[3], vT[4], vT[5]
sD = sT[4:8]
A(f"""
v_bfe_u32 {v(aR0)}, {v(vL)}, 2, 2
v_mul_u32_u24 {v(aR0)}, {OS}, {v(aR0)}
v_lshl_add_u32 {v(aR0)}, {v(g_)}, 6, {v(aR0)}
v_and_b32 {v(aR1)}, 3, {v(vL)}
v_mul_u32_u24 {v(aPr)}, 260, {v(aR1)}
v_add_u32 {v(aPr)}, {PGOFF}, {v(aPr)}
v_lshrrev_b32 {v(aS2)}, 5, {v(vL)}
v_xor_b32 {v(aR1)}, {v(aR1)}, {v(aS2)}
v_lshl_add_u32 {v(aR0)}, {v(aR1)}, 4, {v(aR0)}
s_and_b32 {s(sT[8])}, {s(sW)}, 1
s_lshl_b32 {s(sT[0])}, {s(sT[8])}, 10
s_add_u32 {s(sT[0])}, {s(sT[0])}, {WOFF}
v_add_u32 {v(aR0)}, {s(sT[0])}, {v(aR0)}
v_xor_b32 {v(aR1)}, 32, {v(aR0)}
v_lshlrev_b32 {v(aS2)}, 15, {v(g_)}
v_lshl_add_u32 {v(aS2)}, {v(c_)}, 4, {v(aS2)}
s_lshl_b32 {s(sD[0])}, {s(sM)}, 22
s_lshl_b32 {s(sT[0])}, {s(sT[8])}, 19
s_add_u32 {s(sD[0])}, {s(sD[0])}, {s(sT[0])}
s_lshl_b32 {s(sT[0])}, {s(sGRP)}, 12
s_add_u32 {s(sD[0])}, {s(sD[0])}, {s(sT[0])}
s_lshl_b32 {s(sT[0])}, {s(sA)}, 8
s_add_u32 {s(sD[0])}, {s(sD[0])}, {s(sT[0])}
s_add_u32 {s(sD[0])}, {s(sD[0])}, {T2}
s_add_u32 {s(sT[0])}, {s(sM8)}, {s(sGRP)}
s_lshl_b32 {s(sT[0])}, {s(sT[0])}, 3
s_add_u32 {s(sT[0])}, {s(sT[0])}, {s(sT[8])}
s_mul_i32 {s(sT[0])}, {s(sT[0])}, {CP}
s_add_u32 {s(sT[0])}, {s(sT[0])}, {C2}
""")
for i in range(4):
    A(f"""
    s_mov_b32 {s(sCNT)}, 0x40000
    L_pg{i}:
    ds_read_b32 {v(vS1)}, {v(aPr)}
    s_sub_u32 {s(sCNT)}, {s(sCNT)}, 1
    s_cbranch_scc1 L_pg{i}_out
    {'s_sleep 1' if i == 0 else ''}
    s_waitcnt lgkmcnt(0)
    v_cmp_ge_u32 vcc, {s(sT[8])}, {v(vS1)}
    s_and_b64 vcc, vcc, vcc
    s_cbranch_scc1 L_pg{i}
    L_pg{i}_out:
    """)
    d = D1R + 16*i
    for j in range(4): A(f"ds_read_b128 {v(d+4*j,4)}, {v(aR1 if j & 1 else aR0)} offset:{i*2048+j*256}")
    A(f"s_add_u32 {s(sT[8])}, {s(sT[8])}, 2")
    for j in range(4):
        A(f"s_waitcnt lgkmcnt({3-j})")
        A(f"buffer_store_dwordx4 {v(d+4*j,4)}, {v(aS2)}, {srd(WS_)}, {s(sD[0])} offen sc1")
        A(f"s_add_u32 {s(sD[0])}, {s(sD[0])}, {(4 if j < 3 else 20) << 15}")
stamp("st2", (1,))
for i in range(4):
    A(f"s_waitcnt vmcnt({12-4*i})")
    signal(sT[0], 2*i*CP)
A.label("L_nosig2")
stamp("fl2")
if OPT['diag']:
    j = OPT['dst']
    A(f"""
    s_load_dwordx2 s[94:95], s[0:1], 56
    s_getreg_b32 {s(sT[12])}, hwreg(HW_REG_XCC_ID, 0, 4)
    s_lshl_b32 {s(sT[12])}, 1, {s(sT[12])}
    s_and_b32 {s(sT[13])}, s2, 7
    s_lshl_b32 {s(sT[13])}, {s(sT[13])}, 2
    s_waitcnt lgkmcnt(0)
    s_cmp_lg_u32 {s(sW)}, {OPT['ampw']}
    s_cbranch_scc1 L_nodiag
    s_atomic_or {s(sT[12])}, s[94:95], {s(sT[13])}
    s_not_b32 {s(sT[11])}, {s(sST)}
    s_atomic_umax {s(sT[11])}, s[94:95], 64
    s_atomic_umax {s(sST+2*j)}, s[94:95], 68
    s_waitcnt lgkmcnt(0)
    L_nodiag:
    """)
A("s_barrier")
A(f"""
v_lshrrev_b32 {v(PH)}, 3, {v(vL)}
v_and_b32 {v(PH+1)}, 3, {v(PH)}
v_lshlrev_b32 {v(PH+1)}, 6, {v(PH+1)}
v_lshl_add_u32 {v(PH)}, {v(PH)}, 8, {v(PH+1)}
v_and_b32 {v(PH+1)}, 3, {v(vL)}
v_lshl_add_u32 {v(PH)}, {v(PH+1)}, 4, {v(PH)}
v_and_b32 {v(PH+1)}, 4, {v(vL)}
v_lshl_add_u32 {v(PH)}, {v(PH+1)}, 1, {v(PH)}
v_add_u32 {v(aT[0])}, {s(sW12)}, {v(PH)}
v_xor_b32 {v(aT[1])}, 64, {v(aT[0])}
v_xor_b32 {v(aT[2])}, 128, {v(aT[0])}
v_xor_b32 {v(aT[3])}, 192, {v(aT[0])}
v_mul_u32_u24 {v(PH)}, {PS2}, {v(g_)}
s_lshl_b32 {s(sT[0])}, {s(sW)}, 8
s_add_u32 {s(sT[1])}, {s(sT[0])}, {EX2}
s_sub_u32 {s(sT[0])}, {EX2+15*256}, {s(sT[0])}
v_lshl_add_u32 {v(aPw)}, {v(c_)}, 3, {v(PH)}
v_add_u32 {v(aPw)}, {s(sT[1])}, {v(aPw)}
v_sub_u32 {v(PH+1)}, 16, {v(c_)}
v_lshl_add_u32 {v(PH+1)}, {v(PH+1)}, 3, {v(PH)}
v_add_u32 {v(aQp)}, {s(sT[0])}, {v(PH+1)}
v_cmp_eq_u32 vcc, 0, {v(c_)}
v_mov_b32 {v(PH+2)}, 128
v_mov_b32 {v(PH+3)}, 132
v_mov_b32 {v(PH+4)}, -124
v_cndmask_b32 {v(PH+4)}, {v(PH+2)}, {v(PH+4)}, vcc
v_cndmask_b32 {v(PH+3)}, {v(PH+3)}, {v(PH+2)}, vcc
v_add_u32 {v(aQ1)}, {v(aQp)}, {v(PH+4)}
v_add_u32 {v(aQ0)}, {v(aQp)}, {v(PH+3)}
s_mul_i32 {s(sT[0])}, {s(sW)}, {PS2}
s_add_u32 {s(sT[0])}, {s(sT[0])}, {EX2}
v_and_b32 {v(PH+1)}, 31, {v(vL)}
v_lshrrev_b32 {v(PH+2)}, 5, {v(vL)}
v_lshlrev_b32 {v(PH+3)}, 9, {v(PH+2)}
v_lshl_add_u32 {v(PH+3)}, {v(PH+1)}, 3, {v(PH+3)}
v_add_u32 {v(aRd3)}, {s(sT[0])}, {v(PH+3)}
s_lshl_b32 {s(sO[0])}, {s(sW)}, 7
s_add_u32 {s(sO[0])}, {s(sO[0])}, {s(sSB)}
s_lshl_b32 {s(sO[0])}, {s(sO[0])}, 12
s_lshl_b32 {s(sO[1])}, {s(sM)}, 11
s_add_u32 {s(sO[0])}, {s(sO[0])}, {s(sO[1])}
s_add_u32 {s(sO[1])}, {s(sO[0])}, {1024*4096}
s_mov_b32 {s(sPM)}, 0x05040100
s_mov_b32 {s(sPM+1)}, 0x07060302
""")
A(f"s_cmp_eq_u32 {s(sW)}, 0")
A(f"s_cselect_b32 {s(sT[0])}, 17, 16")
poll("L_poll2", sC2, s(sT[0]), OPT['sl2'])
stamp("pol2")
for j in range(4):
    A(f"buffer_load_dwordx4 {v(aD3)}, {srd(WS_)}, {s(sS3)} offen offset:{j*1024} sc1 lds")
A(f"""
s_cmp_lg_u32 {s(sW)}, 0
s_cbranch_scc1 L_nosp3a
s_lshl_b32 {s(sT[4])}, {s(sMR)}, 6
s_add_u32 {s(sT[4])}, {s(sT[4])}, {T2X}
v_lshlrev_b32 {v(PH+1)}, 4, {v(g_)}
buffer_load_dwordx4 {v(TMP,4)}, {v(PH+1)}, {srd(WS_)}, {s(sT[4])} offen sc1
L_nosp3a:
""")
for i in range(16):
    A(f"v_perm_b32 {v(GR+i)}, {v(FN+i//2)}, {v(FC+i//2)}, {s(sPM+(i&1))}")
    A(f"v_perm_b32 {v(GI+i)}, {v(FC+i//2)}, {v(FS+i//2)}, {s(sPM+(i&1))}")
A("s_waitcnt vmcnt(0)")
stamp("dat2", (1, 3))
for t in (0, 2, 1, 3):
    for jj in range(2):
        A(f"ds_read_b64_tr_b16 {v(XR+4*t+2*jj,2)}, {v(aT[t])} offset:{jj*2048}")
A(f"""
s_cmp_lg_u32 {s(sW)}, 0
s_cbranch_scc1 L_nosp3
v_perm_b32 {v(TMP+4)}, {v(TMP+2)}, {v(TMP)}, {s(sPM)}
v_perm_b32 {v(TMP+5)}, {v(TMP+2)}, {v(TMP)}, {s(sPM+1)}
v_perm_b32 {v(TMP+6)}, {v(TMP+3)}, {v(TMP+1)}, {s(sPM)}
v_perm_b32 {v(TMP+7)}, {v(TMP+3)}, {v(TMP+1)}, {s(sPM+1)}
""")
m16(D2R, M3, TMP+4, None); m16(D2R+4, M3+4, TMP+4, None)
A.label("L_nosp3")
for i, t in enumerate((0, 2, 1, 3)):
    A(f"s_waitcnt lgkmcnt({6-2*i})")
    m16(D1R+8*t, M3, XR+4*t, None); m16(D1R+8*t+4, M3+4, XR+4*t, None)
A(f"""
s_cmp_lg_u32 {s(sW)}, 0
s_cbranch_scc1 L_nofix
s_mov_b32 exec_lo, 0x00010001
s_mov_b32 exec_hi, 0x00010001
""")
for d in (D2R, D1R):
    for mt in range(2):
        for i in range(2):
            A(f"v_add_f32 {v(d+4*mt+i)}, {v(d+4*mt+i)}, {v(d+4*mt+2+i)}")
            A(f"v_mul_f32 {v(d+4*mt+i)}, 0.5, {v(d+4*mt+i)}")
cvt(TMP, D2R, D2R+1); cvt(TMP+1, D2R+4, D2R+5)
A(f"""
ds_write_b32 {v(aPw)}, {v(TMP)} offset:{8*256}
ds_write_b32 {v(aPw)}, {v(TMP+1)} offset:{8*256+4*PS2}
s_mov_b64 exec, -1
L_nofix:
s_nop 1
""")
for tp in range(2):
    for mt in range(2):
        d0 = D1R + 8*tp + 4*mt; d1 = d0 + 16
        o = TMP + 8 + (tp*2+mt)*4
        cvt(o, d0, d0+1); cvt(o+1, d1, d1+1); cvt(o+2, d1+2, d1+3); cvt(o+3, d0+2, d0+3)
for tp in range(2):
    for mt in range(2):
        o = TMP + 8 + (tp*2+mt)*4
        A(f"ds_write_b64 {v(aPw)}, {v(o,2)} offset:{mt*4*PS2+tp*128}")
        if tp == 1:
            A(f"ds_write_b64 {v(aQp)}, {v(o+2,2)} offset:{mt*4*PS2}")
        else:
            A(f"ds_write_b32 {v(aQ1)}, {v(o+2)} offset:{mt*4*PS2}")
            A(f"ds_write_b32 {v(aQ0)}, {v(o+3)} offset:{mt*4*PS2}")
A("s_waitcnt lgkmcnt(0)")
A("s_barrier")
stamp("bar3", (1, 3))
for t in range(4):
    for j in range(2):
        A(f"ds_read_b64 {v(XR+4*t+2*j,2)}, {v(aRd3)} offset:{t*1024+j*256}")
for t in range(4):
    A(f"s_waitcnt lgkmcnt({6-2*t})")
    m32(D1R, XR+4*t, GR+4*t, D1R if t else None); m32(D1I, XR+4*t, GI+4*t, D1I if t else None)
stamp("m3", (3,))
tw2 = TW(D1R, D1I, XR, XI, True, 8, 16)
for t_ in TW(D1R, D1I, XR, XI, True, 0, 8) + tw2[:16]: A(t_)
stamp("tw3", (3,))
weave([M32(D2R, XR, FC, None), M32(D2R, XI, FN, D2R), M32(D2I, XR, FS, None), M32(D2I, XI, FC, D2I)], tw2[16:], 6)
weave([M32(D2R, XR+4, FC+4, D2R), M32(D2R, XI+4, FN+4, D2R), M32(D2I, XR+4, FS+4, D2I), M32(D2I, XI+4, FC+4, D2I)], [], 0)
stamp("m4", (3,))
for comp, d in ((0, D2R), (1, D2I)):
    o = TMP + comp*8
    for q in (0, 4, 1, 5, 2, 6, 3, 7): cvt(o+q, d+2*q, d+2*q+1)
    for q in range(4): A(f"v_permlane16_swap_b32 {v(o+q)}, {v(o+4+q)}")
    for j in range(2):
        A(f"buffer_store_dwordx4 {v(o+4*j,4)}, {v(aSo)}, {srd(OUT_)}, {s(sO[comp])} offen offset:{j*1024}{OUTM}")
if OPT['stamp']:
    stamp("st3", (1, 3))
    A("s_waitcnt vmcnt(0)")
    stamp("end")
    A("s_waitcnt lgkmcnt(0)")
    n = len(stamps)
    assert sST + 2*n <= 96, n
    if OPT['amp']:
        j = OPT['amp'] if OPT['amp'] < 99 else n - 1
        A(f'''
        s_cmp_lg_u32 {s(sW)}, {OPT['ampw']}
        s_cbranch_scc1 L_end
        s_cmp_lg_u32 s2, 100
        s_cbranch_scc1 L_end
        s_sub_u32 {s(sT[0])}, {s(sST+2*j)}, {s(sST)}
        ''')
        if OPT['diag'] == 1:
            A(f"""
            s_load_dword {s(sT[0])}, s[94:95], 16 glc
            s_waitcnt lgkmcnt(0)
            s_bcnt1_i32_b32 {s(sT[0])}, {s(sT[0])}
            s_mul_i32 {s(sT[0])}, {s(sT[0])}, 125
            """)
        if OPT['diag'] == 2:
            A(f"""
            s_load_dwordx2 {s(sT[2],2)}, s[94:95], 64 glc
            s_waitcnt lgkmcnt(0)
            s_not_b32 {s(sT[2])}, {s(sT[2])}
            s_sub_u32 {s(sT[0])}, {s(sT[3])}, {s(sT[2])}
            """)
        A(f'''
        s_lshl_b32 {s(sT[0])}, {s(sT[0])}, 4
        s_min_u32 {s(sT[0])}, {s(sT[0])}, 60000
        s_add_u32 {s(sT[0])}, {s(sT[0])}, {s(sST+2*(n-1))}
        L_amp:
        s_memrealtime {s(sT[2],2)}
        s_waitcnt lgkmcnt(0)
        s_sub_u32 {s(sT[1])}, {s(sT[0])}, {s(sT[2])}
        s_cmp_gt_i32 {s(sT[1])}, 0
        s_cbranch_scc1 L_amp
        s_branch L_end
        ''')
    A(f"s_lshl_b32 {s(sT[0])}, s2, 3")
    A(f"s_add_u32 {s(sT[0])}, {s(sT[0])}, {s(sW)}")
    A(f"s_lshl_b32 {s(sT[0])}, {s(sT[0])}, 7")
    A(f"s_add_u32 {s(sT[0])}, {s(sT[0])}, {STAMP}")
    A("v_mov_b32 v3, 0")
    A("s_mov_b64 exec, 1")
    for i in range(n):
        A(f"v_mov_b32 v2, {s(sST+2*i)}")
        A(f"buffer_store_dword v2, v3, {srd(WS_)}, {s(sT[0])} offen offset:{i*4}")
    A.raw("; stamps: " + " ".join(stamps))
A.label("L_end")
A("s_endpgm")
lane = np.arange(64)
cz = lambda x: np.where(np.abs(x) < 1e-9, 0.0, x)
def emit(words):
    for i in range(0, len(words), 8): A.raw(".long " + ",".join("0x%x" % x for x in words[i:i+8]))
A.raw(".p2align 8\n.type L_tab,@object\nL_tab:")
idx = lambda i: 8*(i >> 2) + 4*(lane >> 5) + (i & 3)
f32b = lambda x: np.asarray(x, dtype=np.float32).view(np.uint32)
ph = np.stack([(lane & 31) * idx(i) for i in range(16)])
regs = list(f32b(cz(np.cos(2*np.pi*ph/1024)))) + list(f32b(cz(np.sin(2*np.pi*ph/1024))))
for fn in (lambda p: np.cos(p), lambda p: np.sin(p), lambda p: -np.sin(p)):
    h = bf16(cz(fn(2*np.pi*(ph % 32)/32)))
    regs += [h[2*i] | (h[2*i+1] << 16) for i in range(8)]
A.raw("L_tab1:")
emit(np.stack(regs).reshape(14, 4, 64).transpose(0, 2, 1).reshape(-1))
A.raw("L_tab_end:\n.size L_tab, L_tab_end-L_tab")
def kd(name, nv, ns):
    A.raw(f""".p2align 6
.amdhsa_kernel {name}
  .amdhsa_next_free_vgpr {nv}
  .amdhsa_next_free_sgpr {ns}
  .amdhsa_accum_offset {nv}
  .amdhsa_group_segment_fixed_size 0
  .amdhsa_kernarg_size 72
  .amdhsa_user_sgpr_count 2
  .amdhsa_user_sgpr_kernarg_segment_ptr 1
  .amdhsa_system_sgpr_workgroup_id_x 1
  .amdhsa_float_denorm_mode_32 3
.end_amdhsa_kernel""")
A.raw('.section .rodata,"a"')
kd(NAME + "_kernel", 256, 102)
if OPT['lst']: kd("empty_kernel", 8, 16)
open(sys.argv[1], "w").write(A.text())
print(sys.argv[1], "nops:", A.nops, "stamps:", len(stamps), file=sys.stderr)
```

```python
import sys, struct
import numpy as np
from asmlib import Asm, v, s

NAME = "concat_heads__spectral_gfnet__spectral_gfnet__prompt"
OPT = dict(outm=1, xnt=0, wnt=0, diag=0, dst=0, ne=3, xpf=0, gh=1, xprio=0, slp=2, nst=3, gpos=1, xl=8, stag=2, neb=3, amp=0, ampw=0, stamp=0, sl1=0, sl2=0, lst=0, half=0)
for a_ in sys.argv[2:]:
    k_, v_ = a_.split('='); assert k_ in OPT, k_; OPT[k_] = int(v_)

def fbits(x): return "0x%08x" % struct.unpack('<I', struct.pack('<f', x))[0]
def bf16(x):
    u = np.asarray(x, dtype=np.float32).view(np.uint32)
    return ((u + 0x7FFF + ((u >> 16) & 1)) >> 16).astype(np.uint32)

T1 = 0
T2 = 8 << 20
AUX = 16 << 20
T1X = AUX
T2X = AUX + 0x30000
WX = AUX + 0x8000
CP = 256
C1 = AUX + 0x10000
C2 = AUX + 0x20000
EW = AUX + 0xa0000
STAMP = AUX + 0x100000
WSZ = 32 << 20
EXOFF = 32768
PS = 5184
WOFF = EXOFF + 8 * PS
M2OFF = WOFF + 36864
SYOFF = M2OFF + 32768
PGOFF = SYOFF + 64
T1OFF = PGOFF + 2048
LDSZ = T1OFF + 14336
EX2 = EXOFF
OS = 8320
XOUT = EXOFF + 32768
PS2 = 4160
sW, sM, sRHO, sSB, sA, sGRP = 3, 4, 5, 6, 7, 32
X_, WR_, WI_, OUT_, WS_, TAB_ = 8, 12, 16, 20, 24, 28
sCNT = 33
sT = list(range(34, 48))
sV = 48
sEXP = 50
sTAG = 51
sW12, sM8, sE, sROLE, sC1, sC2 = 52, 53, 54, 55, 56, 57
sPM = 58
sST = 60
sO = [96, 97]
sU = [98, 99, 100, 101]
sONE = sU[2]
srd = lambda b: s(b, 4)

A = Asm()
HOST = 128
NST = OPT['nst']
XNT = ' nt' if OPT['xnt'] else ''
WNT = ' nt' if OPT['wnt'] else ''
OUTM = ['', ' sc1', ' nt', ' sc0 sc1', ' sc1 nt', ' sc0 sc1 nt'][OPT['outm']]
def M32(d, a, b, c): return f"v_mfma_f32_32x32x16_bf16 {v(d,16)}, {v(a,4)}, {v(b,4)}, {v(c,16) if c is not None else 0}"
def M16(d, a, b, c): return f"v_mfma_f32_16x16x32_bf16 {v(d,4)}, {v(a,4)}, {v(b,4)}, {v(c,4) if c is not None else 0}"
def CVT(d, a, b, na=False, nb=False): return f"v_cvt_pk_bf16_f32 {v(d)}, {'-' if na else ''}{v(a)}, {'-' if nb else ''}{v(b)}"
def m32(*a): A(M32(*a))
def m16(*a): A(M16(*a))
def cvt(*a): A(CVT(*a))
def weave(mf, fill, per):
    fill = list(fill)
    for i, m in enumerate(mf):
        A(m)
        n = per[i] if isinstance(per, (list, tuple)) else per
        for _ in range(n):
            if fill: A(fill.pop(0))
    for f in fill: A(f)
stamps = []
def stamp(name, sets=(1,)):
    st = OPT['stamp']
    if name in ("start", "end"):
        if st: A(f"s_memrealtime {s(sST + 2*len(stamps), 2)}"); stamps.append(name)
        if st > 1: A(f"s_memtime {s(sST + 2*len(stamps), 2)}"); stamps.append("c" + name)
    elif st in sets:
        if name not in stamps: stamps.append(name)
        A(f"{'s_memrealtime' if st == 1 else 's_memtime'} {s(sST + 2*stamps.index(name), 2)}")

vL, c_, g_ = 1, 2, 3
vT = list(range(2, 16))
TC, TS = 16, 32
FC, FS, FN = 48, 56, 64
M3 = 72
GR, GI = 80, 96
XR, XI = 112, 120
D1R, D1I = 128, 144
D2R, D2I = 160, 176
TMP = 192
PH = 224
WRF, WIF = 16, 48
FR = 80
DRE, DIM, DNR = 144, 160, 176
ER, EI = 192, 224

def peek(off, imm=0):
    A(f"s_mov_b64 {s(sV,2)}, 0")
    A(f"s_atomic_or_x2 {s(sV,2)}, {s(WS_,2)}, {s(off)} glc" if not imm else f"s_atomic_or_x2 {s(sV,2)}, {s(WS_,2)}, {s(off)} offset:{imm} glc")
def poll(label, off, count, sleep, imm=0, keep=None):
    A(f"s_mov_b32 {s(sEXP)}, {count}")
    A(f"s_mov_b32 {s(sCNT)}, 0x8000")
    A.label(label)
    peek(off, imm)
    A(f"s_sub_u32 {s(sCNT)}, {s(sCNT)}, 1")
    A(f"s_cbranch_scc1 {label}_out")
    if sleep: A(f"s_sleep {sleep}")
    A("s_waitcnt lgkmcnt(0)")
    if keep is not None:
        A(f"s_mov_b32 {s(keep)}, {s(sV)}")
        A(f"s_and_b32 {s(sV)}, {s(sV)}, 0xffff")
    A(f"s_cmp_eq_u64 {s(sV,2)}, {s(sEXP,2)}")
    A(f"s_cbranch_scc0 {label}")
    A.label(label + "_out")
def validate(label, off, imm=0):
    A(f"s_mov_b32 {s(sCNT)}, 0x8000")
    A.label(label)
    A("s_waitcnt lgkmcnt(0)")
    A(f"s_cmp_eq_u32 {s(sV+1)}, {s(sTAG)}")
    A(f"s_cbranch_scc1 {label}_out")
    peek(off, imm)
    A(f"s_sub_u32 {s(sCNT)}, {s(sCNT)}, 1")
    A(f"s_cbranch_scc0 {label}")
    A("s_waitcnt lgkmcnt(0)")
    A.label(label + "_out")
def signal(off, imm=0):
    A(f"s_atomic_add {s(sONE)}, {s(WS_,2)}, {s(off)}" + (f" offset:{imm}" if imm else ""))

vSY, vS1, vPG = vT[12], vT[13], vT[11]
def lds_wait(label, off, val):
    A(f"s_mov_b32 {s(sCNT)}, 0x40000")
    A.label(label)
    A(f"ds_read_b32 {v(vS1)}, {v(vSY)} offset:{off}")
    A(f"s_sub_u32 {s(sCNT)}, {s(sCNT)}, 1")
    A(f"s_cbranch_scc1 {label}_out")
    A("s_waitcnt lgkmcnt(0)")
    A(f"v_cmp_gt_u32 vcc, {val}, {v(vS1)}")
    A("s_and_b64 vcc, vcc, vcc")
    A(f"s_cbranch_scc1 {label}")
    A.label(label + "_out")
def lds_bit(off, sbit):
    A(f"v_mov_b32 {v(vS1)}, {s(sbit)}")
    A("s_mov_b64 exec, 1")
    A(f"ds_or_b32 {v(vSY)}, {v(vS1)} offset:{off}")
    A("s_mov_b64 exec, -1")
def lds_post(off, rtn=False):
    A(f"v_mov_b32 {v(vS1)}, 1")
    A("s_mov_b64 exec, 1")
    if rtn: A(f"ds_add_rtn_u32 {v(vS1)}, {v(vSY)}, {v(vS1)} offset:{off}")
    else: A(f"ds_add_u32 {v(vSY)}, {v(vS1)} offset:{off}")
    A("s_mov_b64 exec, -1")

sWB, sI = sU[0], sU[3]
aWM, aWT = GR + 4, GR + 5
nlab = [0]
def w_piece(e):
    if e < 4:
        A(f"s_add_u32 m0, {s(sT[13])}, {WOFF + e*9216}")
        if e & 1: A(f"s_add_u32 {s(sI)}, {s(sT[12])}, {64*16416}")
        A(f"buffer_load_dwordx4 {v(aWM)}, {srd(WI_ if e >> 1 else WR_)}, {s(sI if e & 1 else sT[12])} offen{WNT} lds")
    else:
        n = nlab[0]; nlab[0] += 1
        A(f"""
        s_mul_i32 {s(sI)}, {s(sW)}, 9216
        s_add_u32 m0, {s(sI)}, {WOFF + 8192}
        s_and_b32 {s(sI)}, {s(sW)}, 1
        s_mul_i32 {s(sI)}, {s(sI)}, {64*16416}
        s_add_u32 {s(sI)}, {s(sI)}, {s(sWB)}
        s_bitcmp1_b32 {s(sW)}, 1
        s_cbranch_scc1 L_t1_{n}
        buffer_load_dwordx4 {v(aWT)}, {srd(WR_)}, {s(sI)} offen{WNT} lds
        s_branch L_t2_{n}
        L_t1_{n}:
        buffer_load_dwordx4 {v(aWT)}, {srd(WI_)}, {s(sI)} offen{WNT} lds
        L_t2_{n}:
        """)
def w_base(sw):
    A(f"s_mul_i32 {s(sT[12])}, {s(sw)}, {7*16416}")
    A(f"s_add_u32 {s(sT[12])}, {s(sT[12])}, {s(sWB)}")
    A(f"s_lshl_b32 {s(sT[13])}, {s(sw)}, 10")

def gen_m2(sW):
    G = D2R
    kf, s0, af, bf, ai, bi, ad = G, G+1, G+2, G+3, G+4, G+5, G+6
    P, C_, S_ = D1R, D1R+16, G+8
    A(f"""
    s_and_b32 {s(sT[12])}, {s(sW)}, 1
    s_lshl_b32 {s(sT[12])}, {s(sT[12])}, 4
    s_lshr_b32 {s(sT[13])}, {s(sW)}, 1
    v_add_u32 {v(kf)}, {s(sT[12])}, {v(c_)}
    v_lshl_add_u32 {v(ai)}, {v(kf)}, 2, {s(sT[13])}
    v_lshl_add_u32 {v(s0)}, {v(g_)}, 4, {s(sT[13])}
    v_mul_u32_u24 {v(bf)}, {v(s0)}, {v(kf)}
    v_mul_u32_u24 {v(bi)}, {v(g_)}, {v(ai)}
    v_cvt_f32_u32 {v(af)}, {v(kf)}
    v_cvt_f32_u32 {v(ai)}, {v(ai)}
    v_cvt_f32_u32 {v(bf)}, {v(bf)}
    v_cvt_f32_u32 {v(bi)}, {v(bi)}
    v_mul_f32 {v(bf)}, {fbits(1/128)}, {v(bf)}
    v_mul_f32 {v(bi)}, {fbits(1/32)}, {v(bi)}
    s_lshl_b32 {s(sT[12])}, {s(sW)}, 11
    s_add_u32 {s(sT[12])}, {s(sT[12])}, {M2OFF}
    v_lshl_add_u32 {v(ad)}, {v(vL)}, 4, {s(sT[12])}
    """)
    for d in range(2):
        for i in range(8):
            c = 16*(i >> 2) + (i & 3)
            A(f"v_fmamk_f32 {v(P+8*d+i)}, {v(ai if d else af)}, {fbits(c/128 if d else c/32)}, {v(bi if d else bf)}")
    for i in range(16):
        A(f"v_cos_f32 {v(C_+i)}, {v(P+i)}")
        A(f"v_sin_f32 {v(S_+i)}, {v(P+i)}")
    for d in range(2):
        for j in range(4):
            cvt(P+8*d+j, C_+8*d+2*j, C_+8*d+2*j+1)
            cvt(P+8*d+4+j, S_+8*d+2*j, S_+8*d+2*j+1)
    for d in range(2):
        for cs in range(2):
            A(f"ds_write_b128 {v(ad)}, {v(P+8*d+4*cs,4)} offset:{d*16384+cs*1024}")

def load_tables(addr):
    for i in (8, 9, 10, 11, 12, 13, 0, 4, 1, 5, 2, 6, 3, 7):
        A(f"ds_read_b128 {v(TC+4*i,4)}, {v(addr)} offset:{i*1024}")

def TW1(dr, conj):
    L = []
    for i in range(16):
        L.append(f"v_mul_f32 {v(TMP+i)}, {v(dr+i)}, {v(TC+i)}")
        L.append(f"v_mul_f32 {v(TMP+16+i)}, {v(dr+i)}, {v(TS+i)}" if conj else f"v_mul_f32_e64 {v(TMP+16+i)}, -{v(dr+i)}, {v(TS+i)}")
    return L
def TW2(di, outr, outi, conj, lo, hi):
    L = []
    for i in range(lo, hi, 2):
        for e in range(2):
            L.append(f"v_fma_f32 {v(TMP+i+e)}, -{v(di+i+e)}, {v(TS+i+e)}, {v(TMP+i+e)}" if conj else f"v_fmac_f32 {v(TMP+i+e)}, {v(di+i+e)}, {v(TS+i+e)}")
            L.append(f"v_fmac_f32 {v(TMP+16+i+e)}, {v(di+i+e)}, {v(TC+i+e)}")
        L.append(CVT(outr + i//2, TMP+i, TMP+i+1))
        L.append(CVT(outi + i//2, TMP+16+i, TMP+16+i+1))
    return L

if OPT['lst'] == 0: A.raw(f"; @launch grid=(256,1,1) block=(512,1,1) lds={LDSZ}")
else:
    A.raw(f"; @launch kernel={NAME}_kernel grid=(256,1,1) block=(512,1,1) lds={LDSZ}")
    A.raw(f"; @launch kernel=empty_kernel grid=(1,1,1) block=(64,1,1) lds=0")
A.raw('.amdgcn_target "amdgcn-amd-amdhsa--gfx950"\n.text')
if OPT['lst']: A.raw(".globl empty_kernel\n.p2align 8\n.type empty_kernel,@function\nempty_kernel:\n s_endpgm")
A.raw(f".globl {NAME}_kernel\n.p2align 8\n.type {NAME}_kernel,@function")
A.label(f"{NAME}_kernel")
aL16 = GR + 1
A(f"""
s_cmp_ge_u32 s2, 256
s_cbranch_scc1 L_end
s_bfe_u32 {s(sM)}, s2, 0x10003
s_mul_i32 {s(sT[0])}, {s(sM)}, 24
s_load_dwordx2 {s(X_,2)}, s[0:1], {s(sT[0])}
s_load_dwordx2 {s(WS_,2)}, s[0:1], 64
s_load_dwordx2 {s(WR_,2)}, s[0:1], {s(sT[0])} offset:8
s_load_dwordx2 {s(WI_,2)}, s[0:1], {s(sT[0])} offset:16
s_load_dwordx2 {s(OUT_,2)}, s[0:1], 48
""")
PF_ = 40
if OPT['xpf']:
    A(f"""
    s_sub_u32 {s(sT[0])}, 24, {s(sT[0])}
    s_load_dwordx2 {s(88,2)}, s[0:1], {s(sT[0])} offset:8
    s_load_dwordx2 {s(92,2)}, s[0:1], {s(sT[0])} offset:16
    """)
stamp("start")
A(f"""
v_lshrrev_b32 v2, 6, v0
v_and_b32 {v(vL)}, 63, v0
s_and_b32 {s(sT[1])}, s2, 7
v_readfirstlane_b32 {s(sW)}, v2
s_lshr_b32 {s(sT[2])}, s2, 4
s_lshl_b32 {s(sRHO)}, {s(sT[1])}, 4
s_add_u32 {s(sRHO)}, {s(sRHO)}, {s(sT[2])}
s_and_b32 {s(sSB)}, {s(sRHO)}, 31
s_lshr_b32 {s(sT[5])}, {s(sRHO)}, 5
s_lshl2_add_u32 {s(sSB)}, {s(sSB)}, {s(sT[5])}
v_lshlrev_b32 {v(aL16)}, 4, {v(vL)}
s_mov_b32 {s(X_+2)}, 4194304
s_mov_b32 {s(X_+3)}, 0x20000
s_lshl_b32 {s(sO[0])}, {s(sW)}, 7
s_add_u32 {s(sO[0])}, {s(sO[0])}, {s(sSB)}
s_lshl_b32 {s(sO[0])}, {s(sO[0])}, 11
s_add_u32 {s(sO[1])}, {s(sO[0])}, 0x200000
s_lshl_b32 {s(sW12)}, {s(sW)}, 12
s_mov_b32 m0, {s(sW12)}
s_getpc_b64 {s(TAB_,2)}
L_pc:
s_mov_b32 {s(TAB_+2)}, L_end-L_pc
s_mov_b32 {s(TAB_+3)}, 0x20000
v_lshlrev_b32 v3, 11, v2
s_lshl_b32 {s(sT[6])}, {s(sT[2])}, 7
buffer_load_dword {v(GR)}, v3, {srd(TAB_)}, {s(sT[6])} offen
s_lshl_b32 {s(sA)}, {s(sT[1])}, 1
""")
if OPT['xpf']:
    A(f"""
    s_lshl3_add_u32 {s(sPM)}, {s(sT[2])}, {s(sW)}
    s_lshl4_add_u32 {s(sPM)}, {s(sPM)}, {s(sA)}
    s_mul_i32 {s(sPM)}, {s(sPM)}, 1026
    v_lshlrev_b32 {v(GR+2)}, 7, {v(vL)}
    v_min_u32 {v(GR+2)}, 2048, {v(GR+2)}
    s_mov_b32 s90, 2101248
    s_mov_b32 s91, 0x20000
    s_mov_b32 s94, 2101248
    s_mov_b32 s95, 0x20000
    """)
A("s_waitcnt lgkmcnt(0)")
stamp("karg", (4,))
sX0, sX1 = sO
XISS = f"""
buffer_load_dwordx4 {v(aL16)}, {srd(X_)}, {s(sX0)} offen{XNT} lds
buffer_load_dwordx4 {v(aL16)}, {srd(X_)}, {s(sX0)} offen offset:1024{XNT} lds
s_add_u32 m0, {s(sW12)}, 2048
buffer_load_dwordx4 {v(aL16)}, {srd(X_)}, {s(sX1)} offen{XNT} lds
buffer_load_dwordx4 {v(aL16)}, {srd(X_)}, {s(sX1)} offen offset:1024{XNT} lds
"""
aPF = GR + 2
sPF = sPM
XPF = f"""
buffer_load_dword {v(GR)}, {v(aPF)}, s[88:91], {s(sPF)} offen
buffer_load_dword {v(GR)}, {v(aPF)}, s[92:95], {s(sPF)} offen
"""
if OPT['xpf']:
    A(f"""
    s_cmp_eq_u32 {s(sM)}, 0
    s_cbranch_scc1 L_nopf
    {XPF}
    s_barrier
    L_nopf:
    """)
if OPT['stag']:
    A(f"s_cmp_lg_u32 {s(sM)}, 0")
    A("s_cbranch_scc1 L_xlate")
A(XISS)
A.label("L_xlate")
stamp("xiss", (4,))
A(f"""
s_lshr_b32 {s(sT[3])}, {s(sW)}, 1
s_and_b32 {s(sT[4])}, {s(sW)}, 1
s_lshl_b32 {s(sT[6])}, {s(sT[3])}, 2
s_add_u32 {s(sT[6])}, {s(sT[6])}, {s(sT[4])}
s_lshl_b32 {s(sT[6])}, {s(sT[6])}, 1
v_lshrrev_b32 {v(PH)}, 5, {v(vL)}
v_and_b32 {v(PH+1)}, 31, {v(vL)}
v_lshl_add_u32 {v(PH)}, {v(PH)}, 2, {s(sT[6])}
v_mul_u32_u24 {v(PH)}, {v(PH)}, {v(PH+1)}
v_add_u32 {v(PH+1)}, {v(PH)}, {v(PH+1)}
v_cvt_f32_u32 {v(PH)}, {v(PH)}
v_cvt_f32_u32 {v(PH+1)}, {v(PH+1)}
v_mul_f32 {v(PH+2)}, {fbits(1/32)}, {v(PH)}
v_mul_f32 {v(PH+3)}, {fbits(1/32)}, {v(PH+1)}
v_cos_f32 {v(PH+8)}, {v(PH+2)}
v_cos_f32 {v(PH+9)}, {v(PH+3)}
v_sin_f32 {v(PH+10)}, {v(PH+2)}
v_sin_f32 {v(PH+11)}, {v(PH+3)}
v_mul_f32 {v(PH)}, {fbits(1/32)}, {v(PH+2)}
v_mul_f32 {v(PH+1)}, {fbits(1/32)}, {v(PH+3)}
v_cos_f32 {v(PH+4)}, {v(PH)}
v_cos_f32 {v(PH+5)}, {v(PH+1)}
v_sin_f32 {v(PH+6)}, {v(PH)}
v_sin_f32 {v(PH+7)}, {v(PH+1)}
{CVT(PH+12, PH+8, PH+9)}
{CVT(PH+13, PH+10, PH+11)}
{CVT(PH+14, PH+10, PH+11, True, True)}
v_add_u32 {v(vS1)}, {T1OFF}, {v(aL16)}
s_lshl_b32 {s(sT[3])}, {s(sT[3])}, 10
s_lshl3_add_u32 {s(sT[3])}, {s(sT[4])}, {s(sT[3])}
v_add_u32 {v(PH)}, {s(sT[3])}, {v(vS1)}
s_lshr_b32 {s(sT[3])}, {s(sW)}, 2
s_lshl_b32 {s(sT[3])}, {s(sT[3])}, 10
s_and_b32 {s(sT[4])}, {s(sW)}, 3
s_lshl2_add_u32 {s(sT[3])}, {s(sT[4])}, {s(sT[3])}
v_add_u32 {v(PH+1)}, {s(sT[3])}, {v(vS1)}
v_mov_b32 {v(vSY)}, {SYOFF}
v_mov_b32 v8, 0
v_mov_b32 v9, 0
v_mov_b32 v10, 0
v_mov_b32 v11, 0
v_lshlrev_b32 {v(vPG)}, 2, v0
v_add_u32 {v(vPG)}, {PGOFF}, {v(vPG)}
ds_write_b64 {v(PH)}, {v(PH+4,2)}
ds_write_b64 {v(PH)}, {v(PH+6,2)} offset:4096
ds_write_b32 {v(PH+1)}, {v(PH+12)} offset:8192
ds_write_b32 {v(PH+1)}, {v(PH+13)} offset:10240
ds_write_b32 {v(PH+1)}, {v(PH+14)} offset:12288
ds_write_b128 {v(vSY)}, v[8:11]
ds_write_b128 {v(vSY)}, v[8:11] offset:16
ds_write_b32 {v(vPG)}, v8
s_mov_b32 {s(WS_+2)}, {WSZ}
s_mov_b32 {s(WS_+3)}, 0x20000
s_mov_b32 {s(WR_+2)}, 2101248
s_mov_b32 {s(WR_+3)}, 0x20000
s_mov_b32 {s(WI_+2)}, 2101248
s_mov_b32 {s(WI_+3)}, 0x20000
s_mov_b32 {s(OUT_+2)}, 8388608
s_mov_b32 {s(OUT_+3)}, 0x20000
s_lshl_b32 {s(sM8)}, {s(sM)}, 3
s_mov_b32 {s(sT[6])}, {EW}
s_waitcnt lgkmcnt(0)
s_load_dword {s(sE)}, {s(WS_,2)}, {s(sT[6])}
""")
stamp("tgen", (4,))
A("s_barrier")
stamp("tbar", (4,))
load_tables(vS1)
def late_x():
    A(f"s_cmp_eq_u32 {s(sM)}, 0")
    A("s_cbranch_scc1 L_xdone")
    A(XISS)
    A.label("L_xdone")
if OPT['stag'] == 1: late_x()
stamp("xis2", (4,))
aG = GR + 3
sG = sU[1]
SPW = 3
sX16 = sROLE
A(f"""
s_lshl_b32 {s(sC1)}, {s(sM)}, 4
s_add_u32 {s(sC1)}, {s(sC1)}, {s(sW)}
s_lshl_b32 {s(sC1)}, {s(sC1)}, 2
s_add_u32 {s(sC1)}, {s(sC1)}, {s(sT[5])}
s_mul_i32 {s(sC1)}, {s(sC1)}, {CP}
s_add_u32 {s(sC1)}, {s(sC1)}, {C1}
s_mov_b32 {s(sX16)}, 0x10000
s_add_u32 {s(sC2)}, {s(sM8)}, {s(sW)}
s_lshl_b32 {s(sC2)}, {s(sC2)}, 3
s_add_u32 {s(sC2)}, {s(sC2)}, {s(sT[1])}
s_mul_i32 {s(sC2)}, {s(sC2)}, {CP}
s_add_u32 {s(sC2)}, {s(sC2)}, {C2}
""")
A(f"""
s_lshr_b32 {s(sT[6])}, {s(sT[2])}, 3
s_add_u32 {s(sA)}, {s(sA)}, {s(sT[6])}
s_and_b32 {s(sGRP)}, {s(sT[2])}, 7
v_and_b32 {v(c_)}, 15, {v(vL)}
v_lshrrev_b32 {v(g_)}, 4, {v(vL)}
v_lshrrev_b32 v9, 2, {v(c_)}
v_and_b32 v10, 1, {v(c_)}
v_lshl_add_u32 v9, v9, 1, v10
v_and_b32 v10, 2, {v(c_)}
v_lshl_add_u32 v9, v10, 2, v9
v_mul_u32_u24 {v(aG)}, 1026, v9
s_mul_i32 {s(sG)}, {s(sRHO)}, 16416
""")
A(f"""
v_lshrrev_b32 {v(PH)}, 1, {v(c_)}
v_and_b32 {v(PH+1)}, 1, {v(PH)}
s_bfe_u32 {s(sT[0])}, {s(sRHO)}, 0x10002
v_and_b32 {v(PH+2)}, 1, {v(c_)}
v_xor_b32 {v(PH+2)}, {s(sT[0])}, {v(PH+2)}
v_sub_u32 {v(PH+2)}, {v(PH+2)}, {v(PH+1)}
v_cvt_f32_i32 {v(PH+2)}, {v(PH+2)}
v_mov_b32 {v(PH+3)}, {fbits(0.125)}
v_fmamk_f32 {v(PH+2)}, {v(PH+2)}, {fbits(0.25)}, {v(PH+3)}
v_mul_u32_u24 {v(PH+1)}, 0x8000, {v(PH+1)}
v_lshl_or_b32 {v(PH+1)}, {v(PH+1)}, 16, {v(PH+1)}
v_cvt_f32_u32 {v(PH)}, {v(PH)}
v_add_f32 {v(PH+3)}, {fbits(8.0)}, {v(PH)}
v_lshl_add_u32 {v(PH+4)}, {v(g_)}, 8, {s(sSB)}
v_cvt_f32_u32 {v(PH+4)}, {v(PH+4)}
v_mul_f32 {v(PH+4)}, {fbits(1/2048)}, {v(PH+4)}
v_add_f32 {v(PH+5)}, {fbits(1/16)}, {v(PH+4)}
""")
for mt in range(2):
    for e in range(2):
        t = PH + 8 + (mt*2+e)*3
        A(f"v_fma_f32 {v(t)}, {v(PH+4+e)}, {v(PH if mt == 0 else PH+3)}, {v(PH+2)}")
        A(f"v_cos_f32 {v(t+1)}, {v(t)}")
        A(f"v_sin_f32 {v(t+2)}, {v(t)}")
for mt in range(2):
    for e in range(2):
        t = PH + 8 + (mt*2+e)*3
        cvt(M3 + mt*4 + 2*e, t+1, t+2)
        cvt(M3 + mt*4 + 2*e + 1, t+2, t+1)
        A(f"v_xor_b32 {v(M3 + mt*4 + 2*e + 1)}, {v(PH+1)}, {v(M3 + mt*4 + 2*e + 1)}")
if OPT['stag'] == 2: late_x()
aTR, aP, aQe, aQo, aRD, aST = vT[2:8]
sS1 = sT[8:12]
A(f"""
v_bfe_u32 {v(PH)}, {v(vL)}, 2, 2
v_lshrrev_b32 {v(PH+1)}, 5, {v(vL)}
v_lshl_add_u32 {v(PH)}, {v(PH+1)}, 2, {v(PH)}
v_lshlrev_b32 {v(PH)}, 6, {v(PH)}
v_and_b32 {v(PH+2)}, 16, {v(vL)}
v_lshl_add_u32 {v(PH)}, {v(PH+2)}, 1, {v(PH)}
v_and_b32 {v(PH+2)}, 3, {v(vL)}
v_lshl_add_u32 {v(PH)}, {v(PH+2)}, 3, {v(PH)}
v_add_u32 {v(aTR)}, {s(sW12)}, {v(PH)}
s_mul_i32 {s(sT[0])}, {s(sW)}, {PS}
s_add_u32 {s(sT[0])}, {s(sT[0])}, {EXOFF}
v_and_b32 {v(PH+3)}, 31, {v(vL)}
v_mul_u32_u24 {v(PH+4)}, 20, {v(PH+2)}
v_lshrrev_b32 {v(PH+5)}, 2, {v(PH+3)}
v_mul_u32_u24 {v(PH+6)}, 160, {v(PH+1)}
v_add3_u32 {v(PH+4)}, {v(PH+4)}, {v(PH+5)}, {v(PH+6)}
v_lshl_add_u32 {v(aP)}, {v(PH+4)}, 3, {s(sT[0])}
v_sub_u32 {v(PH+3)}, 32, {v(PH+3)}
v_and_b32 {v(PH+4)}, 3, {v(PH+3)}
v_mul_u32_u24 {v(PH+4)}, 20, {v(PH+4)}
v_lshrrev_b32 {v(PH+5)}, 2, {v(PH+3)}
v_sub_u32 {v(PH+6)}, 160, {v(PH+6)}
v_add3_u32 {v(PH+4)}, {v(PH+4)}, {v(PH+5)}, {v(PH+6)}
v_lshl_add_u32 {v(aQe)}, {v(PH+4)}, 3, {s(sT[0])}
v_and_b32 {v(PH+3)}, 32, {v(PH+3)}
v_lshl_add_u32 {v(aQo)}, {v(PH+3)}, 4, {v(aQe)}
s_mul_i32 {s(sT[0])}, {s(sW)}, 640
s_add_u32 {s(sT[0])}, {s(sT[0])}, {EXOFF}
v_mul_u32_u24 {v(PH)}, {2*PS}, {v(g_)}
v_lshl_add_u32 {v(PH)}, {v(c_)}, 3, {v(PH)}
v_add_u32 {v(aRD)}, {s(sT[0])}, {v(PH)}
v_lshlrev_b32 {v(PH)}, 19, {v(g_)}
v_lshl_add_u32 {v(aST)}, {v(c_)}, 4, {v(PH)}
s_lshl_b32 {s(sS1[0])}, {s(sM)}, 22
s_lshl_b32 {s(sT[0])}, {s(sW)}, 15
s_add_u32 {s(sS1[0])}, {s(sS1[0])}, {s(sT[0])}
s_lshl_b32 {s(sT[0])}, {s(sRHO)}, 8
s_add_u32 {s(sS1[0])}, {s(sS1[0])}, {s(sT[0])}
s_add_u32 {s(sS1[1])}, {s(sS1[0])}, {1<<18}
s_add_u32 {s(sS1[2])}, {s(sS1[0])}, {8<<18}
s_add_u32 {s(sS1[3])}, {s(sS1[0])}, {9<<18}
s_mul_i32 {s(sWB)}, {s(sA)}, 1026
s_lshl_b32 {s(sT[0])}, {s(sGRP)}, 7
s_add_u32 {s(sWB)}, {s(sWB)}, {s(sT[0])}
s_andn2_b32 {s(sWB)}, {s(sWB)}, 15
""")
if OPT['stag'] == 3: late_x()
A(f"""
v_add_u32 {v(PH)}, {s(sW)}, {v(vL)}
v_mul_u32_u24 {v(PH+1)}, 57, {v(PH)}
v_lshrrev_b32 {v(PH+1)}, 9, {v(PH+1)}
v_mul_u32_u24 {v(PH+1)}, {16416-144}, {v(PH+1)}
v_lshl_add_u32 {v(aWM)}, {v(PH)}, 4, {v(PH+1)}
v_add_u32 {v(PH)}, 8, {v(vL)}
v_mul_u32_u24 {v(PH+1)}, 57, {v(PH)}
v_lshrrev_b32 {v(PH+1)}, 9, {v(PH+1)}
v_mul_u32_u24 {v(PH+1)}, {16416-144}, {v(PH+1)}
v_lshl_add_u32 {v(aWT)}, {v(PH)}, 4, {v(PH+1)}
v_add_u32 {v(aWT)}, {56*16416}, {v(aWT)}
s_mov_b32 {s(sEXP)}, 0
s_mov_b32 {s(sONE)}, 1
s_and_b32 {s(sT[1])}, {s(sRHO)}, 15
s_cbranch_scc1 L_noinit
s_waitcnt lgkmcnt(0)
s_mul_i32 {s(sTAG)}, {s(sE)}, 0x9E3779B1
s_add_u32 {s(sTAG)}, {s(sTAG)}, 0x7F4A7C15
s_atomic_swap_x2 {s(sEXP,2)}, {s(WS_,2)}, {s(sC2)}
s_and_b32 {s(sT[1])}, {s(sRHO)}, 31
s_cbranch_scc1 L_noinit
s_atomic_swap_x2 {s(sEXP,2)}, {s(WS_,2)}, {s(sC1)}
L_noinit:
""")
NE = OPT['ne']
A(f"""
s_cmp_lg_u32 {s(sW)}, {SPW}
s_cbranch_scc1 L_nogather
buffer_load_ushort v11, {v(aG)}, {srd(WR_)}, {s(sG)} offen offset:1024
buffer_load_ushort v12, {v(aG)}, {srd(WI_)}, {s(sG)} offen offset:1024
L_nogather:
""")
stamp('setup', (4,))
NEB = OPT['neb']
if OPT['stag'] in (2, 3): A("s_barrier")
w_base(sW)
for e in range(max(NE, NEB)):
    if e == min(NE, NEB):
        A(f"s_cmp_eq_u32 {s(sM)}, {0 if NE < NEB else 1}")
        A("s_cbranch_scc1 L_noearly")
    w_piece(e)
A.label("L_noearly")
NEA = NE
if OPT['xpf'] == 2:
    NEA = NE + 2
    A(f"""
    s_cmp_lg_u32 {s(sM)}, 0
    s_cbranch_scc1 L_nopf2
    {XPF}
    L_nopf2:
    """)
def wait_m(lbl, add):
    lo, hi = min(NEA, NEB), max(NEA, NEB)
    A(f"s_waitcnt vmcnt({hi+add})")
    if lo != hi:
        A(f"s_cmp_eq_u32 {s(sM)}, {0 if NEA > NEB else 1}")
        A(f"s_cbranch_scc1 {lbl}")
        A(f"s_waitcnt vmcnt({lo+add})")
        A.label(lbl)
stamp("wiss", (4,))
wait_m("L_wm0", 2)
A(f"""
s_cmp_eq_u32 {s(sW)}, {SPW}
s_cbranch_scc1 L_xw1
""")
wait_m("L_wm1", 0)
A.label("L_xw1")
stamp("x", (1, 2, 4))
for comp, dst in ((0, XR), (1, XI)):
    for t in range(2):
        for j in range(2):
            A(f"ds_read_b64_tr_b16 {v(dst+4*t+2*j,2)}, {v(aTR)} offset:{comp*2048+t*1024+j*512}")
A("s_waitcnt lgkmcnt(0)")
stamp("tr", (2, 4))
weave([M32(D1R, XR, FC, None), M32(D1R, XR+4, FC+4, D1R), M32(D1R, XI, FS, D1R), M32(D1R, XI+4, FS+4, D1R), M32(D1I, XR, FN, None)],
      [f"s_mul_i32 {s(sTAG)}, {s(sE)}, 0x9E3779B1", f"s_add_u32 {s(sTAG)}, {s(sTAG)}, 0x7F4A7C15", "s_nop 4", "s_nop 4"], [2, 0, 0, 1, 1])
weave([M32(D1I, XR+4, FN+4, D1I), M32(D1I, XI, FC, D1I), M32(D1I, XI+4, FC+4, D1I)], TW1(D1R, False), [6, 6, 99])
stamp("m1", (2,))
for t_ in TW2(D1I, XR, XI, False, 0, 8): A(t_)
stamp("tw", (2,))
weave([M32(D2R, FC, XR, None), M32(D2I, FN, XR, None), M32(D2R, FS, XI, D2R), M32(D2I, FC, XI, D2I)], TW2(D1I, XR, XI, False, 8, 16), 6)
weave([M32(D2R, FC+4, XR+4, D2R), M32(D2I, FN+4, XR+4, D2I), M32(D2R, FS+4, XI+4, D2R), M32(D2I, FC+4, XI+4, D2I)], [], 0)
stamp("m2", (2,))
for i in range(16):
    cvt(TMP+i, D2R+i, D2I+i)
stamp("cv", (2,))
for i in range(16):
    kd2 = 8*(i >> 2) + (i & 3)
    if i < 8:
        A(f"ds_write_b32 {v(aP)}, {v(TMP+i)} offset:{(80*(kd2>>1)+8*(kd2&1))*8}")
    else:
        e = 31 - kd2 - 4
        A(f"ds_write_b32 {v(aQo if e & 1 else aQe)}, {v(TMP+i)} offset:{(80*(e>>1)+8*(e&1))*8+4}")
A(f"""
s_mov_b64 exec, 1
ds_write_b32 {v(aP)}, {v(TMP)} offset:4
ds_write_b32 {v(aP)}, {v(TMP+8)} offset:{640*8}
s_mov_b64 exec, -1
""")
stamp("wr", (2,))
A("s_waitcnt lgkmcnt(0)")
stamp("wrd", (2,))
A("s_barrier")
stamp("bar1", (1, 2, 4))
A(f"""
s_cmp_lg_u32 {s(sW)}, {SPW}
s_cbranch_scc1 L_nosp1
v_mul_u32_u24 {v(PH)}, {2*PS}, {v(g_)}
ds_read_b64 {v(XR,2)}, {v(PH)} offset:{EXOFF+640*8}
ds_read_b64 {v(XR+2,2)}, {v(PH)} offset:{EXOFF+640*8+PS}
s_lshl_b32 {s(sT[0])}, {s(sM)}, 13
s_lshl_b32 {s(sT[1])}, {s(sRHO)}, 6
s_add_u32 {s(sT[0])}, {s(sT[0])}, {s(sT[1])}
s_add_u32 {s(sT[1])}, {s(sT[0])}, {WX}
s_add_u32 {s(sT[0])}, {s(sT[0])}, {T1X}
v_lshlrev_b32 {v(PH+1)}, 2, {v(vL)}
v_lshlrev_b32 {v(PH+2)}, 4, {v(g_)}
""")
wait_m("L_wm2", 0)
A(f"""
v_lshl_or_b32 v11, v12, 16, v11
s_mov_b64 exec, 0xffff
buffer_store_dword v11, {v(PH+1)}, {srd(WS_)}, {s(sT[1])} offen sc1
s_mov_b64 exec, -1
s_waitcnt lgkmcnt(0)
""")
m16(D1R, M3, XR, None); m16(D1R+4, M3+4, XR, None)
cvt(TMP, D1R, D1R+2); cvt(TMP+1, D1R+4, D1R+6); cvt(TMP+2, D1R+1, D1R+3); cvt(TMP+3, D1R+5, D1R+7)
A(f"""
s_mov_b32 exec_lo, 0x00010001
s_mov_b32 exec_hi, 0x00010001
buffer_store_dwordx4 {v(TMP,4)}, {v(PH+2)}, {srd(WS_)}, {s(sT[0])} offen sc1
s_mov_b64 exec, -1
L_nosp1:
""")
for t in range(4):
    for jj in range(2):
        A(f"ds_read_b64 {v(XR+4*t+2*jj,2)}, {v(aRD)} offset:{160*t+PS*jj}")
for t in range(4):
    A(f"s_waitcnt lgkmcnt({6-2*t})")
    m16(D1R+8*t, M3, XR+4*t, None)
peek(sC1)
for t in range(4):
    m16(D1R+8*t+4, M3+4, XR+4*t, None)
for mt in range(2):
    for al in range(2):
        o = TMP + 4 + (mt*2+al)*4
        d = D1R + 4*mt + 2*al
        cvt(o, d, d+8); cvt(o+2, d+1, d+9); cvt(o+1, d+16, d+24); cvt(o+3, d+17, d+25)
    for al in range(2):
        o = TMP + 4 + (mt*2+al)*4
        A(f"buffer_store_dwordx4 {v(o,4)}, {v(aST)}, {srd(WS_)}, {s(sS1[mt*2+al])} offen sc1")
stamp("st1", (2,))
sPH = sE
A(f"""
s_barrier
""")
A(f"s_mov_b32 {s(sPH)}, 1")
GH = OPT['gh']
if GH:
    A(f"""
    s_cmp_lt_u32 {s(sW)}, 4
    s_cbranch_scc1 L_nogen
    s_sub_u32 {s(sI)}, {s(sW)}, {4 if GH == 2 else 0}
    L_gen:
    """)
    gen_m2(sI)
    if GH == 2:
        A(f"""
        s_add_u32 {s(sI)}, {s(sI)}, 4
        s_cmp_lt_u32 {s(sI)}, 8
        s_cbranch_scc1 L_gen
        """)
    lds_post(12)
    if GH == 1:
        A(f"s_cmp_lt_u32 {s(sW)}, 4")
        A("s_cbranch_scc1 L_genret")
    A.label("L_nogen")
validate("L_val1", sC1)
A(f"""
s_cmp_lg_u32 {s(sW)}, {SPW}
s_cbranch_scc1 L_nosp2
s_waitcnt vmcnt(4)
s_atomic_add {s(sX16)}, {s(WS_,2)}, {s(sC1)}
L_nosp2:
s_waitcnt vmcnt(0)
""")
signal(sC1)
stamp("fl1")
aW, aF, aRe, aIm, aO, aD = vT[2:8]
sFA, sFB, sFC, sDST, sOI, sDONE, sNEW, sMK = sT[4:12]
A(f"""
s_cmp_ge_u32 {s(sW)}, 4
s_cbranch_scc1 L_helper
""")
assert max(NE, NEB) < 5
w_piece(4)
w_base(sW)
for hh in range(2):
    for e in range(3, min(NE, NEB) - 1, -1):
        if e == max(NE, NEB) - 1:
            A(f"s_cmp_eq_u32 {s(sM)}, {1 if NE < NEB else 0}")
            A(f"s_cbranch_scc1 L_nolate{hh}")
        w_piece(e)
    A.label(f"L_nolate{hh}")
    if hh == 0:
        A(f"""
        v_add_u32 {v(PH)}, {s(sW)}, {v(vL)}
        v_add_u32 {v(PH)}, 4, {v(PH)}
        v_mul_u32_u24 {v(PH+1)}, 57, {v(PH)}
        v_lshrrev_b32 {v(PH+1)}, 9, {v(PH+1)}
        v_mul_u32_u24 {v(PH+1)}, {16416-144}, {v(PH+1)}
        v_lshl_add_u32 {v(aWM)}, {v(PH)}, 4, {v(PH+1)}
        s_add_u32 {s(sT[12])}, {s(sT[12])}, {28*16416}
        s_add_u32 {s(sT[13])}, {s(sT[13])}, 4096
        """)
if GH == 1:
    A(f"s_mov_b32 {s(sI)}, {s(sW)}")
    A("s_branch L_gen")
    A.label("L_genret")
if GH == 0:
    A(f"s_mov_b32 {s(sI)}, {s(sW)}")
    A.label("L_gen")
    gen_m2(sI)
    A(f"""
    s_add_u32 {s(sI)}, {s(sI)}, 4
    s_cmp_lt_u32 {s(sI)}, 8
    s_cbranch_scc1 L_gen
    """)
    lds_post(12)
A(f"""
s_mov_b32 {s(sFA)}, 0
s_and_b32 {s(sFC)}, {s(sA)}, 7
s_mov_b32 {s(sFB)}, 0
s_mul_i32 {s(sOI)}, {s(sW)}, {OS}
s_add_u32 {s(sOI)}, {s(sOI)}, {WOFF}
v_lshrrev_b32 {v(aRe)}, 2, {v(vL)}
v_and_b32 {v(aF)}, 3, {v(aRe)}
v_xor_b32 {v(aF)}, {s(sW)}, {v(aF)}
v_lshlrev_b32 {v(aRe)}, 8, {v(aRe)}
v_lshl_add_u32 {v(aRe)}, {v(aF)}, 6, {v(aRe)}
v_and_b32 {v(aF)}, 3, {v(vL)}
v_lshl_add_u32 {v(aRe)}, {v(aF)}, 4, {v(aRe)}
s_lshl_b32 {s(sT[0])}, {s(sW)}, 5
s_add_u32 {s(sT[0])}, {s(sT[0])}, {WOFF}
v_min_u32 {v(aW)}, 2, {v(g_)}
v_mul_u32_u24 {v(aF)}, 144, {v(c_)}
v_lshl_add_u32 {v(aW)}, {v(aW)}, 4, {v(aF)}
v_add_u32 {v(aW)}, {s(sT[0])}, {v(aW)}
""")
A.label("L_p2common")
A(f"v_lshlrev_b32 {v(aF)}, 4, {v(vL)}")
A(f"v_add_u32 {v(aF)}, {M2OFF}, {v(aF)}")
SEL = DNR
A(f"""
v_lshlrev_b32 {v(DIM)}, {s(sFA)}, {v(c_)}
v_lshlrev_b32 {v(DIM+1)}, 3, {v(g_)}
v_sub_u32 {v(DIM)}, {v(DIM)}, {v(DIM+1)}
v_add_u32 {v(DIM)}, {s(sFC)}, {v(DIM)}
v_add_u32 {v(DIM+1)}, {s(sFB)}, {v(DIM)}
v_mov_b32 {v(DIM+4)}, 0x3500
""")
for q in range(2):
    A(f"v_and_b32 {v(DIM+2)}, 1, {v(DIM+q)}")
    A(f"v_lshlrev_b32 {v(DIM+2)}, 4, {v(DIM+2)}")
    A(f"v_lshlrev_b32 {v(DIM+2)}, {v(DIM+2)}, {v(DIM+4)}")
    A(f"v_ashrrev_i32 {v(DIM+3)}, 1, {v(DIM+q)}")
    for j in range(4):
        A(f"v_cmp_eq_u32 vcc, {j}, {v(DIM+3)}")
        A(f"v_cndmask_b32 {v(SEL+4*q+j)}, 0, {v(DIM+2)}, vcc")
A(f"""
v_and_b32 {v(aIm)}, 1, {v(g_)}
v_lshl_add_u32 {v(aRe)}, {v(aIm)}, 3, {v(aRe)}
v_xor_b32 {v(aIm)}, 8, {v(aRe)}
v_bfe_u32 {v(aO)}, {v(vL)}, 1, 2
v_xor_b32 {v(aO)}, {v(aO)}, {v(g_)}
v_lshlrev_b32 {v(aO)}, 4, {v(aO)}
v_lshl_add_u32 {v(aO)}, {v(c_)}, 6, {v(aO)}
v_add_u32 {v(aO)}, {s(sOI)}, {v(aO)}
v_mov_b32 {v(vT[9])}, 1
s_mov_b32 {s(sT[0])}, 0x80008000
s_mov_b32 {s(sDONE)}, 0
""")
if OPT['gpos'] == 1: lds_wait("L_fr", 12, 8 if GH == 1 else 4)
for f in range(16):
    A(f"ds_read_b128 {v(FR+4*f,4)}, {v(aF)} offset:{f*1024}")
A(f"""
s_waitcnt vmcnt(0)
s_cmp_lt_u32 {s(sW)}, 4
s_cbranch_scc1 L_wreg
""")
for t in range(8):
    m16(WRF+4*t, ER+4*t, SEL, None); m16(WIF+4*t, ER+4*t, SEL+4, None)
A(f"s_movk_i32 {s(sMK)}, 0xff")
A("s_branch L_dspx")
A.label("L_wreg")
lds_post(0)

lds_wait("L_wr", 0, 8)
for t in range(16):
    if t == 12: A("s_waitcnt lgkmcnt(8)")
    A(f"ds_read_b128 {v(ER+4*t,4)}, {v(aW)} offset:{t*2304}")
A(f"s_lshl_b32 {s(sMK)}, 16, {s(sW)}")
lds_bit(4, sMK)
for t in range(16):
    if t >= 4: A(f"s_waitcnt lgkmcnt({16-t})")
    m16(WRF+4*t, ER+4*t, SEL, None)
stamp("wcv", (1,))
A(f"""
s_mov_b32 {s(sCNT)}, 0x40000
L_dsp:
ds_read_b32 {v(vS1)}, {v(vSY)} offset:4
s_sub_u32 {s(sCNT)}, {s(sCNT)}, 1
s_cbranch_scc1 L_fwd_done
s_waitcnt lgkmcnt(0)
v_readfirstlane_b32 {s(sMK)}, {v(vS1)}
L_dspx:
s_andn2_b32 {s(sNEW)}, {s(sMK)}, {s(sDONE)}
s_cbranch_scc0 L_dsp
""")
stamp("dat1", (1, 3))
for u in range(4):
    A(f"s_bitcmp1_b32 {s(sNEW)}, {u}")
    A(f"s_cbranch_scc0 L_nr{u}")
    for j in range(2): A(f"ds_read_b64_tr_b16 {v(DRE+4*u+2*j,2)}, {v(aRe)} offset:{u*8192+j*4096}")
    for j in range(2): A(f"ds_read_b64_tr_b16 {v(DIM+4*u+2*j,2)}, {v(aIm)} offset:{u*8192+j*4096}")
    A.label(f"L_nr{u}")
A(f"s_or_b32 {s(sDONE)}, {s(sDONE)}, {s(sNEW)}")
A("s_waitcnt lgkmcnt(0)")
for u in range(4):
    A(f"s_bitcmp1_b32 {s(sNEW)}, {u}")
    A(f"s_cbranch_scc0 L_nm{u}")
    fc = lambda mt: FR + (u*4 + mt*2) * 4
    fs = lambda mt: FR + (u*4 + mt*2 + 1) * 4
    e = lambda mt: (u*2 + mt) * 4
    weave([M16(ER+e(0), fc(0), DRE+4*u, None), M16(ER+e(1), fc(1), DRE+4*u, None),
           M16(EI+e(0), fc(0), DIM+4*u, None), M16(EI+e(1), fc(1), DIM+4*u, None),
           M16(ER+e(0), fs(0), DIM+4*u, ER+e(0)), M16(ER+e(1), fs(1), DIM+4*u, ER+e(1)),
           M16(EI+e(0), fs(0), DNR+4*u, EI+e(0)), M16(EI+e(1), fs(1), DNR+4*u, EI+e(1))],
          [f"v_xor_b32 {v(DNR+4*u+j)}, {s(sT[0])}, {v(DRE+4*u+j)}" for j in range(4)], 2)
    for f in range(4*u, 4*u+4): A(f"ds_read_b128 {v(FR+4*f,4)}, {v(aF)} offset:{16384+f*1024}")
    A.label(f"L_nm{u}")
A(f"""
s_cmp_lg_u32 {s(sDONE)}, 0xff
s_cbranch_scc1 L_dsp
L_fwd_done:
""")
stamp("fwd", (3,))
A("s_nop 1")
TT = DNR
def pk(op, d, a, b, c=None, na=False, nb=False):
    ops = f"{v(d,2)}, {v(a,2)}, {v(b,2)}" + (f", {v(c,2)}" if c is not None else "")
    n = [int(na), int(nb)] + ([0] if c is not None else [])
    mod = f" neg_lo:{n} neg_hi:{n}".replace(", ", ",") if (na or nb) else ""
    A(f"v_pk_{op}_f32 {ops}{mod}")
add = lambda d, a, b: pk("add", d, a, b)
sub = lambda d, a, b: pk("add", d, a, b, nb=True)
A.raw(".p2align 3")
for mt in range(2):
    for rp in range(2):
        er = lambda u: ER + (u*2+mt)*4 + 2*rp
        ei = lambda u: EI + (u*2+mt)*4 + 2*rp
        wr = lambda q: WRF + (q*2+mt)*4 + 2*rp
        wi = lambda q: WIF + (q*2+mt)*4 + 2*rp
        tr = lambda i: TT + 4*i
        ti = lambda i: TT + 4*i + 2
        add(tr(0), er(0), er(2)); add(ti(0), ei(0), ei(2)); sub(tr(1), er(0), er(2)); sub(ti(1), ei(0), ei(2))
        add(tr(2), er(1), er(3)); add(ti(2), ei(1), ei(3)); sub(tr(3), er(1), er(3)); sub(ti(3), ei(1), ei(3))
        add(er(0), tr(0), tr(2)); add(ei(0), ti(0), ti(2)); sub(er(2), tr(0), tr(2)); sub(ei(2), ti(0), ti(2))
        add(er(1), tr(1), ti(3)); sub(ei(1), ti(1), tr(3)); sub(er(3), tr(1), ti(3)); add(ei(3), ti(1), tr(3))
        for q in range(4):
            pk("mul", tr(q), er(q), wr(q)); pk("mul", ti(q), er(q), wi(q))
        for q in range(4):
            pk("fma", tr(q), ei(q), wi(q), tr(q), na=True); pk("fma", ti(q), ei(q), wr(q), ti(q))
        add(wr(0), tr(0), tr(2)); add(wi(0), ti(0), ti(2)); sub(wr(1), tr(0), tr(2)); sub(wi(1), ti(0), ti(2))
        add(wr(2), tr(1), tr(3)); add(wi(2), ti(1), ti(3)); sub(wr(3), tr(1), tr(3)); sub(wi(3), ti(1), ti(3))
        add(er(0), wr(0), wr(2)); add(ei(0), wi(0), wi(2)); sub(er(2), wr(0), wr(2)); sub(ei(2), wi(0), wi(2))
        sub(er(1), wr(1), wi(3)); add(ei(1), wi(1), wr(3)); add(er(3), wr(1), wi(3)); sub(ei(3), wi(1), wr(3))
def OPS(u):
    L = [CVT(DRE+4*u+j, ER+8*u+2*j, ER+8*u+2*j+1) for j in range(4)]
    L += [CVT(DIM+4*u+j, EI+8*u+2*j, EI+8*u+2*j+1) for j in range(4)]
    L += [CVT(DNR+4*u+j, EI+8*u+2*j, EI+8*u+2*j+1, True, True) for j in range(4)]
    return L
def INV(k):
    e = k*4; o = WRF + e
    return [CVT(o, ER+e, ER+e+1), CVT(o+1, ER+e+2, ER+e+3), CVT(o+2, EI+e, EI+e+1), CVT(o+3, EI+e+2, EI+e+3),
            f"ds_write_b128 {v(aO)}, {v(o,4)} offset:{k*1024}", f"ds_add_u32 {v(vPG)}, {v(vT[9])}"]
for t_ in OPS(0): A(t_)
A("s_waitcnt lgkmcnt(0)")
stamp("mid", (3,))
for k in range(8):
    u, nt = k >> 1, k & 1
    fc, fs, e = FR + (u*4 + nt*2) * 4, FR + (u*4 + nt*2 + 1) * 4, k * 4
    ops = OPS(u+1)[6*nt:6*nt+6] if u < 3 else []
    out = INV(k-1) if k >= 1 else []
    fill = ops + out
    weave([M16(ER+e, DRE+4*u, fc, None), M16(EI+e, DIM+4*u, fc, None), M16(ER+e, DNR+4*u, fs, ER+e), M16(EI+e, DRE+4*u, fs, EI+e)],
          fill, [3, 3, 2, 4] if ops and out else ([2, 2, 2, 0] if ops else [0, 0, 0, 6]))
stamp("inv", (3,))
for t_ in INV(7): A(t_)
stamp("cmp2", (1, 3))
A(f"""
s_cmp_lt_u32 {s(sW)}, 4
s_cbranch_scc1 L_setup3
""")
A(f"""
v_lshlrev_b32 {v(aO)}, 7, {v(c_)}
v_lshl_add_u32 {v(aO)}, {v(g_)}, 4, {v(aO)}
""")
for i in range(8): A(f"v_mov_b32 {v(WIF+2*i+1)}, {s(sTAG)}")
for k in range(8):
    o = WIF + 8*(k & 1)
    for e in range(4): cvt(o+2*e, ER+4*k+e, EI+4*k+e)
    for h in range(2): A(f"buffer_store_dwordx4 {v(o+4*h,4)}, {v(aO)}, {srd(WS_)}, {s(sDST)} offen offset:{(k&1)*2048+h*64} sc1")
    if k & 1: A(f"s_add_u32 {s(sDST)}, {s(sDST)}, 4096")
A(f"""
s_setprio 0
s_branch L_setup3
L_helper:
""")
lds_post(0)
sSRC, sPL, sSG, sBIT = sT[4:8]
A(f"""
s_lshl_b32 {s(sT[0])}, {s(sM)}, 4
s_add_u32 {s(sSRC)}, {s(sT[0])}, {s(sA)}
s_lshl3_add_u32 {s(sSRC)}, {s(sSRC)}, {s(sGRP)}
s_sub_u32 {s(sT[1])}, {s(sW)}, 4
s_lshl2_add_u32 {s(sSRC)}, {s(sSRC)}, {s(sT[1])}
s_lshl_b32 {s(sSRC)}, {s(sSRC)}, 13
s_add_u32 {s(sPL)}, {s(sT[0])}, {s(sGRP)}
s_lshl2_add_u32 {s(sPL)}, {s(sPL)}, {s(sT[1])}
s_mul_i32 {s(sPL)}, {s(sPL)}, {CP}
s_add_u32 {s(sPL)}, {s(sPL)}, {C1}
s_cmp_eq_u32 {s(sGRP)}, {SPW}
s_cselect_b32 {s(sSG)}, 0x200020, 32
s_lshl_b32 m0, {s(sT[1])}, 13
s_lshl_b32 {s(sBIT)}, 1, {s(sT[1])}
v_lshlrev_b32 {v(aD)}, 2, {v(g_)}
v_xor_b32 {v(aD)}, {v(aD)}, {v(c_)}
v_lshlrev_b32 {v(aD)}, 4, {v(aD)}
v_lshl_add_u32 {v(aD)}, {v(g_)}, 8, {v(aD)}
""")
poll("L_poll1", sPL, s(sSG), OPT['sl1'])
stamp("pol1")
for n in range(8):
    A(f"buffer_load_dwordx4 {v(aD)}, {srd(WS_)}, {s(sSRC)} offen offset:{(n&3)*1024} sc1 lds")
    if n == 3:
        A(f"s_add_u32 m0, m0, 4096")
        A(f"s_add_u32 {s(sSRC)}, {s(sSRC)}, 4096")
XP = [WR_, WR_+2, WI_, WI_+2]
A(f"""
s_cmp_lg_u32 {s(sW)}, 4
s_cbranch_scc1 L_posted
s_sub_u32 {s(sT[3])}, s2, {HOST}
s_cmp_ge_u32 {s(sT[3])}, 2
s_cbranch_scc1 L_posted
s_cmp_eq_u32 {s(sT[3])}, 0
s_cbranch_scc1 L_xa
s_waitcnt vmcnt(0)
""")
lds_bit(4, sONE)
A(f"""
L_xa:
s_mul_i32 {s(sT[2])}, {s(sT[3])}, {64*CP}
s_add_u32 {s(sT[2])}, {s(sT[2])}, {C1+SPW*4*CP}
s_mov_b32 {s(sCNT)}, 0x8000
L_pollx:
""")
for i in range(4):
    A(f"s_mov_b64 {s(XP[i],2)}, 0")
    A(f"s_atomic_or_x2 {s(XP[i],2)}, {s(WS_,2)}, {s(sT[2])} offset:{i*CP} glc")
A(f"""
s_sub_u32 {s(sCNT)}, {s(sCNT)}, 1
s_cbranch_scc1 L_pollx_out
s_waitcnt lgkmcnt(0)
""")
for i in range(4):
    A(f"s_cmp_lg_u32 {s(XP[i]+1)}, {s(sTAG)}")
    A("s_cbranch_scc1 L_pollx")
A(f"""
s_and_b32 {s(XP[0])}, {s(XP[0])}, {s(XP[1])}
s_and_b32 {s(XP[2])}, {s(XP[2])}, {s(XP[3])}
s_and_b32 {s(XP[0])}, {s(XP[0])}, {s(XP[2])}
s_bitcmp1_b32 {s(XP[0])}, 21
s_cbranch_scc0 L_pollx
L_pollx_out:
""")
if OPT['xprio']: A("s_setprio 3")
A(f"""
s_mov_b32 {s(sFA)}, 1
s_mov_b32 {s(sFC)}, 0
s_mov_b32 {s(sFB)}, 1
s_lshl_b32 {s(sT[2])}, {s(sT[3])}, 13
s_add_u32 {s(sT[0])}, {s(sT[2])}, {WX}
s_add_u32 {s(sT[1])}, {s(sT[0])}, 4096
s_lshl_b32 {s(sDST)}, {s(sT[3])}, 14
s_add_u32 {s(sDST)}, {s(sDST)}, {T2X}
s_add_u32 {s(sT[2])}, {s(sT[2])}, {T1X}
v_lshlrev_b32 {v(aD)}, 4, {v(vL)}
v_lshlrev_b32 {v(aW)}, 6, {v(c_)}
v_lshl_add_u32 {v(aW)}, {v(g_)}, 4, {v(aW)}
s_mov_b32 {s(sOI)}, {XOUT}
v_add_u32 {v(aRe)}, {EXOFF}, {v(aD)}
s_mov_b32 m0, {EXOFF}
""")
for n in range(8):
    A(f"buffer_load_dwordx4 {v(aD)}, {srd(WS_)}, {s(sT[2])} offen sc1 lds")
    if n < 7:
        A(f"s_add_u32 m0, m0, 4096")
        A(f"s_add_u32 {s(sT[2])}, {s(sT[2])}, 1024")
for t in range(8):
    A(f"buffer_load_dwordx4 {v(ER+4*t,4)}, {v(aW)}, {srd(WS_)}, {s(sT[t>>2])} offen offset:{(t&3)*1024} sc1")
A("s_waitcnt vmcnt(16)")
lds_bit(4, sONE)
A("s_branch L_p2common")
A.label("L_posted")
A(f"""
s_cmp_lt_u32 {s(sW)}, {8-NST}
s_cselect_b32 {s(sPH)}, 1, 0
s_waitcnt vmcnt(0)
""")
lds_bit(4, sBIT)
A.label("L_setup3")
A3 = 237
aD3, aPw, aQ1, aQ0, aRd3, aSo, aQp = range(A3, A3+7)
aT = list(range(A3+9, A3+13))
sMR, sS3 = sT[2], sT[3]
A(f"""
v_lshrrev_b32 {v(PH)}, 1, {v(vL)}
v_xor_b32 {v(PH)}, {v(PH)}, {v(vL)}
v_and_b32 {v(PH)}, 4, {v(PH)}
v_mul_u32_u24 {v(PH)}, 3, {v(PH)}
v_xor_b32 {v(PH)}, {v(PH)}, {v(vL)}
v_lshlrev_b32 {v(vS1)}, 4, {v(PH)}
v_add_u32 {v(vS1)}, {T1OFF}, {v(vS1)}
v_and_b32 {v(aSo)}, 15, {v(PH)}
v_lshlrev_b32 {v(aSo)}, 6, {v(aSo)}
v_and_b32 {v(PH)}, 1, {v(g_)}
v_lshl_add_u32 {v(aSo)}, {v(PH)}, 5, {v(aSo)}
v_lshrrev_b32 {v(PH)}, 1, {v(g_)}
v_lshl_add_u32 {v(aSo)}, {v(PH)}, 4, {v(aSo)}
""")
load_tables(vS1)
A(f"""
v_lshrrev_b32 {v(PH)}, 2, {v(c_)}
v_lshl_add_u32 {v(PH)}, {v(PH)}, 7, {s(sSB)}
v_cvt_f32_u32 {v(PH)}, {v(PH)}
v_mul_f32 {v(PH)}, {fbits(1/2048)}, {v(PH)}
v_add_f32 {v(PH+1)}, {fbits(0.25)}, {v(PH)}
v_and_b32 {v(PH+2)}, 1, {v(c_)}
v_cvt_f32_u32 {v(PH+2)}, {v(PH+2)}
v_mul_f32 {v(PH+2)}, {fbits(-0.25)}, {v(PH+2)}
v_add_f32 {v(PH+3)}, {fbits(-0.125)}, {v(PH+2)}
v_add_f32 {v(PH+2)}, {fbits(0.125)}, {v(PH+2)}
v_and_b32 {v(PH+4)}, 2, {v(c_)}
v_lshlrev_b32 {v(PH+4)}, 30, {v(PH+4)}
v_xor_b32 {v(PH+2)}, {v(PH+4)}, {v(PH+2)}
v_xor_b32 {v(PH+3)}, {v(PH+4)}, {v(PH+3)}
v_lshlrev_b32 {v(PH+4)}, 1, {v(g_)}
v_cvt_f32_u32 {v(PH+4)}, {v(PH+4)}
v_add_f32 {v(PH+5)}, 1.0, {v(PH+4)}
v_add_f32 {v(PH+6)}, {fbits(8.0)}, {v(PH+4)}
v_add_f32 {v(PH+7)}, {fbits(9.0)}, {v(PH+4)}
""")
for mt in range(2):
    for j in range(4):
        t = TMP + (mt*4+j)*3
        A(f"v_fma_f32 {v(t)}, {v(PH+mt)}, {v(PH+4+j)}, {v(PH+2+(j&1))}")
        A(f"v_cos_f32 {v(t+1)}, {v(t)}")
        A(f"v_sin_f32 {v(t+2)}, {v(t)}")
for mt in range(2):
    for j in range(4):
        t = TMP + (mt*4+j)*3
        cvt(M3+mt*4+j, t+1, t+2, False, True)
A(f"""
v_lshrrev_b32 {v(PH)}, 3, {v(vL)}
v_and_b32 {v(PH+1)}, 3, {v(PH)}
v_lshlrev_b32 {v(PH+1)}, 6, {v(PH+1)}
v_lshl_add_u32 {v(PH)}, {v(PH)}, 8, {v(PH+1)}
v_and_b32 {v(PH+1)}, 3, {v(vL)}
v_lshl_add_u32 {v(PH)}, {v(PH+1)}, 4, {v(PH)}
v_and_b32 {v(PH+1)}, 4, {v(vL)}
v_lshl_add_u32 {v(PH)}, {v(PH+1)}, 1, {v(PH)}
v_add_u32 {v(aT[0])}, {s(sW12)}, {v(PH)}
v_xor_b32 {v(aT[1])}, 64, {v(aT[0])}
v_xor_b32 {v(aT[2])}, 128, {v(aT[0])}
v_xor_b32 {v(aT[3])}, 192, {v(aT[0])}
v_mul_u32_u24 {v(PH)}, {PS2}, {v(g_)}
s_lshl_b32 {s(sT[0])}, {s(sW)}, 8
s_add_u32 {s(sT[1])}, {s(sT[0])}, {EX2}
s_sub_u32 {s(sT[0])}, {EX2+15*256}, {s(sT[0])}
v_lshl_add_u32 {v(aPw)}, {v(c_)}, 3, {v(PH)}
v_add_u32 {v(aPw)}, {s(sT[1])}, {v(aPw)}
v_sub_u32 {v(PH+1)}, 16, {v(c_)}
v_lshl_add_u32 {v(PH+1)}, {v(PH+1)}, 3, {v(PH)}
v_add_u32 {v(aQp)}, {s(sT[0])}, {v(PH+1)}
v_cmp_eq_u32 vcc, 0, {v(c_)}
v_mov_b32 {v(PH+2)}, 128
v_mov_b32 {v(PH+3)}, 132
v_mov_b32 {v(PH+4)}, -124
v_cndmask_b32 {v(PH+4)}, {v(PH+2)}, {v(PH+4)}, vcc
v_cndmask_b32 {v(PH+3)}, {v(PH+3)}, {v(PH+2)}, vcc
v_add_u32 {v(aQ1)}, {v(aQp)}, {v(PH+4)}
v_add_u32 {v(aQ0)}, {v(aQp)}, {v(PH+3)}
s_mul_i32 {s(sT[0])}, {s(sW)}, {PS2}
s_add_u32 {s(sT[0])}, {s(sT[0])}, {EX2}
v_and_b32 {v(PH+1)}, 31, {v(vL)}
v_lshrrev_b32 {v(PH+2)}, 5, {v(vL)}
v_lshlrev_b32 {v(PH+3)}, 9, {v(PH+2)}
v_lshl_add_u32 {v(PH+3)}, {v(PH+1)}, 3, {v(PH+3)}
v_add_u32 {v(aRd3)}, {s(sT[0])}, {v(PH+3)}
s_lshl_b32 {s(sO[0])}, {s(sW)}, 7
s_add_u32 {s(sO[0])}, {s(sO[0])}, {s(sSB)}
s_lshl_b32 {s(sO[0])}, {s(sO[0])}, 12
s_lshl_b32 {s(sO[1])}, {s(sM)}, 11
s_add_u32 {s(sO[0])}, {s(sO[0])}, {s(sO[1])}
s_add_u32 {s(sO[1])}, {s(sO[0])}, {1024*4096}
s_mov_b32 {s(sPM)}, 0x05040100
s_mov_b32 {s(sPM+1)}, 0x07060302
""")
A(f"""
v_lshlrev_b32 {v(PH)}, 2, {v(g_)}
v_xor_b32 {v(PH)}, {v(PH)}, {v(c_)}
v_lshlrev_b32 {v(PH)}, 4, {v(PH)}
v_lshl_add_u32 {v(aD3)}, {v(g_)}, 8, {v(PH)}
s_lshl_b32 {s(sMR)}, {s(sM)}, 7
s_add_u32 {s(sMR)}, {s(sMR)}, {s(sRHO)}
s_lshl_b32 {s(sS3)}, {s(sMR)}, 15
s_add_u32 {s(sS3)}, {s(sS3)}, {s(sW12)}
s_add_u32 {s(sS3)}, {s(sS3)}, {T2}
s_cmp_lg_u32 {s(sPH)}, 0
s_cbranch_scc1 L_nosig2
""")
aR0, aR1, aS2, aPr = vT[2], vT[3], vT[4], vT[5]
sD = sT[4:5]
A(f"""
v_bfe_u32 {v(aR0)}, {v(vL)}, 2, 2
v_mul_u32_u24 {v(aR0)}, {OS}, {v(aR0)}
v_lshl_add_u32 {v(aR0)}, {v(g_)}, 6, {v(aR0)}
v_and_b32 {v(aR1)}, 3, {v(vL)}
v_mul_u32_u24 {v(aPr)}, 260, {v(aR1)}
v_add_u32 {v(aPr)}, {PGOFF}, {v(aPr)}
v_lshrrev_b32 {v(aS2)}, 5, {v(vL)}
v_xor_b32 {v(aR1)}, {v(aR1)}, {v(aS2)}
v_lshl_add_u32 {v(aR0)}, {v(aR1)}, 4, {v(aR0)}
s_sub_u32 {s(sT[8])}, 7, {s(sW)}
s_lshl_b32 {s(sT[0])}, {s(sT[8])}, 10
s_add_u32 {s(sT[0])}, {s(sT[0])}, {WOFF}
v_add_u32 {v(aR0)}, {s(sT[0])}, {v(aR0)}
v_xor_b32 {v(aR1)}, 32, {v(aR0)}
v_lshlrev_b32 {v(aS2)}, 15, {v(g_)}
v_lshl_add_u32 {v(aS2)}, {v(c_)}, 4, {v(aS2)}
s_lshl_b32 {s(sD[0])}, {s(sM)}, 22
s_lshl_b32 {s(sT[0])}, {s(sT[8])}, 19
s_add_u32 {s(sD[0])}, {s(sD[0])}, {s(sT[0])}
s_lshl_b32 {s(sT[0])}, {s(sGRP)}, 12
s_add_u32 {s(sD[0])}, {s(sD[0])}, {s(sT[0])}
s_lshl_b32 {s(sT[0])}, {s(sA)}, 8
s_add_u32 {s(sD[0])}, {s(sD[0])}, {s(sT[0])}
s_add_u32 {s(sD[0])}, {s(sD[0])}, {T2}
s_add_u32 {s(sT[0])}, {s(sM8)}, {s(sGRP)}
s_lshl_b32 {s(sT[0])}, {s(sT[0])}, 3
s_add_u32 {s(sT[0])}, {s(sT[0])}, {s(sT[8])}
s_mul_i32 {s(sT[0])}, {s(sT[0])}, {CP}
s_add_u32 {s(sT[0])}, {s(sT[0])}, {C2}
""")
NR = -(-8 // NST)
for i in range(NR):
    if NST*i + NST > 8:
        A(f"s_cmp_ge_u32 {s(sT[8])}, 8")
        A("s_cbranch_scc1 L_short")
    A(f"""
    s_mov_b32 {s(sCNT)}, 0x40000
    L_pg{i}:
    ds_read_b32 {v(vS1)}, {v(aPr)}
    s_sub_u32 {s(sCNT)}, {s(sCNT)}, 1
    s_cbranch_scc1 L_pg{i}_out
    {('s_sleep %d' % OPT['slp']) if i == 0 and OPT['slp'] else ''}
    s_waitcnt lgkmcnt(0)
    v_cmp_ge_u32 vcc, {s(sT[8])}, {v(vS1)}
    s_and_b64 vcc, vcc, vcc
    s_cbranch_scc1 L_pg{i}
    L_pg{i}_out:
    """)
    d = D1R + 16*i
    for j in range(4): A(f"ds_read_b128 {v(d+4*j,4)}, {v(aR1 if j & 1 else aR0)} offset:{i*NST*1024+j*256}")
    A(f"s_add_u32 {s(sT[8])}, {s(sT[8])}, {NST}")
    for j in range(4):
        A(f"s_waitcnt lgkmcnt({3-j})")
        A(f"buffer_store_dwordx4 {v(d+4*j,4)}, {v(aS2)}, {srd(WS_)}, {s(sD[0])} offen sc1")
        A(f"s_add_u32 {s(sD[0])}, {s(sD[0])}, {(4 if j < 3 else 16*NST-12) << 15}")
for i in range(NR):
    A(f"s_waitcnt vmcnt({4*(NR-1-i)})")
    signal(sT[0], NST*i*CP)
if 8 % NST:
    A("s_branch L_nosig2")
    A.label("L_short")
    for i in range(NR-1):
        A(f"s_waitcnt vmcnt({4*(NR-2-i)})")
        signal(sT[0], NST*i*CP)
A.label("L_nosig2")
stamp("fl2")
if OPT['diag']:
    j = OPT['dst']
    A(f"""
    s_load_dwordx2 s[94:95], s[0:1], 56
    s_getreg_b32 {s(sT[12])}, hwreg(HW_REG_XCC_ID, 0, 4)
    s_lshl_b32 {s(sT[12])}, 1, {s(sT[12])}
    s_and_b32 {s(sT[13])}, s2, 7
    s_lshl_b32 {s(sT[13])}, {s(sT[13])}, 2
    s_waitcnt lgkmcnt(0)
    s_cmp_lg_u32 {s(sW)}, {OPT['ampw']}
    s_cbranch_scc1 L_nodiag
    s_atomic_or {s(sT[12])}, s[94:95], {s(sT[13])}
    s_not_b32 {s(sT[11])}, {s(sST)}
    s_atomic_umax {s(sT[11])}, s[94:95], 64
    s_atomic_umax {s(sST+2*j)}, s[94:95], 68
    s_waitcnt lgkmcnt(0)
    L_nodiag:
    """)
A("s_barrier")
A(f"s_mov_b32 m0, {s(sW12)}")
poll("L_poll2", sC2, 16, OPT['sl2'])
stamp("pol2")
for j in range(4):
    A(f"buffer_load_dwordx4 {v(aD3)}, {srd(WS_)}, {s(sS3)} offen offset:{j*1024} sc1 lds")
A(f"""
s_cmp_lg_u32 {s(sW)}, 4
s_cbranch_scc1 L_noep
s_cmp_lg_u32 s2, {HOST+1}
s_cbranch_scc1 L_noep
s_mov_b32 {s(sT[4])}, {EW}
s_atomic_swap {s(sTAG)}, {s(WS_,2)}, {s(sT[4])}
s_waitcnt lgkmcnt(0)
L_noep:
""")
GB = [(8, 8), (40, 8), (88, 8), (16, 4), (28, 4)]
GS = [r + i for r, n in GB for i in range(n)]
def granule_loads():
    off = 0
    for r, n in GB:
        A(f"s_load_dwordx{n} {s(r,n)}, {s(WS_,2)}, {s(sT[4])} offset:{off} glc"); off += 4*n
A(f"""
s_cmp_lg_u32 {s(sW)}, 0
s_cbranch_scc1 L_nosp3a
s_lshl_b32 {s(sT[4])}, {s(sMR)}, 7
s_add_u32 {s(sT[4])}, {s(sT[4])}, {T2X}
""")
granule_loads()
A.label("L_nosp3a")
for i in range(16):
    A(f"v_perm_b32 {v(GR+i)}, {v(FN+i//2)}, {v(FC+i//2)}, {s(sPM+(i&1))}")
    A(f"v_perm_b32 {v(GI+i)}, {v(FC+i//2)}, {v(FS+i//2)}, {s(sPM+(i&1))}")
A(f"""
s_cmp_lg_u32 {s(sW)}, 0
s_cbranch_scc1 L_nosp3b
s_mov_b32 {s(sCNT)}, 0x8000
s_branch L_gchk
L_gagain:
s_sub_u32 {s(sCNT)}, {s(sCNT)}, 1
s_cbranch_scc1 L_gok
""")
granule_loads()
A.label("L_gchk")
A("s_waitcnt lgkmcnt(0)")
for i in range(16):
    A(f"s_cmp_lg_u32 {s(GS[2*i+1])}, {s(sTAG)}")
    A("s_cbranch_scc1 L_gagain")
A.label("L_gok")
for h in range(2):
    for g in range(4):
        for q in range(2):
            A(f"v_writelane_b32 {v(TMP+4+2*h+q)}, {s(GS[h*16+g*4+2*q])}, {16*g}")
m16(D2R, M3, TMP+4, None); m16(D2R+4, M3+4, TMP+4, None)
A.label("L_nosp3b")
A("s_waitcnt vmcnt(0)")
stamp("dat2", (1, 3))
for t in (0, 2, 1, 3):
    for jj in range(2):
        A(f"ds_read_b64_tr_b16 {v(XR+4*t+2*jj,2)}, {v(aT[t])} offset:{jj*2048}")
for i, t in enumerate((0, 2, 1, 3)):
    A(f"s_waitcnt lgkmcnt({6-2*i})")
    m16(D1R+8*t, M3, XR+4*t, None); m16(D1R+8*t+4, M3+4, XR+4*t, None)
A(f"""
s_cmp_lg_u32 {s(sW)}, 0
s_cbranch_scc1 L_nofix
s_mov_b32 exec_lo, 0x00010001
s_mov_b32 exec_hi, 0x00010001
""")
for d in (D2R, D1R):
    for mt in range(2):
        for i in range(2):
            A(f"v_add_f32 {v(d+4*mt+i)}, {v(d+4*mt+i)}, {v(d+4*mt+2+i)}")
            A(f"v_mul_f32 {v(d+4*mt+i)}, 0.5, {v(d+4*mt+i)}")
cvt(TMP, D2R, D2R+1); cvt(TMP+1, D2R+4, D2R+5)
A(f"""
ds_write_b32 {v(aPw)}, {v(TMP)} offset:{8*256}
ds_write_b32 {v(aPw)}, {v(TMP+1)} offset:{8*256+4*PS2}
s_mov_b64 exec, -1
L_nofix:
s_nop 1
""")
for tp in range(2):
    for mt in range(2):
        d0 = D1R + 8*tp + 4*mt; d1 = d0 + 16
        o = TMP + 8 + (tp*2+mt)*4
        cvt(o, d0, d0+1); cvt(o+1, d1, d1+1); cvt(o+2, d1+2, d1+3); cvt(o+3, d0+2, d0+3)
for tp in range(2):
    for mt in range(2):
        o = TMP + 8 + (tp*2+mt)*4
        A(f"ds_write_b64 {v(aPw)}, {v(o,2)} offset:{mt*4*PS2+tp*128}")
        if tp == 1:
            A(f"ds_write_b64 {v(aQp)}, {v(o+2,2)} offset:{mt*4*PS2}")
        else:
            A(f"ds_write_b32 {v(aQ1)}, {v(o+2)} offset:{mt*4*PS2}")
            A(f"ds_write_b32 {v(aQ0)}, {v(o+3)} offset:{mt*4*PS2}")
A("s_waitcnt lgkmcnt(0)")
A("s_barrier")
stamp("bar3", (1, 3))
for t in range(4):
    for j in range(2):
        A(f"ds_read_b64 {v(XR+4*t+2*j,2)}, {v(aRd3)} offset:{t*1024+j*256}")
for t in range(4):
    A(f"s_waitcnt lgkmcnt({6-2*t})")
    m32(D1R, XR+4*t, GR+4*t, D1R if t else None)
A("s_nop 4")
weave([M32(D1I, XR+4*t, GI+4*t, D1I if t else None) for t in range(4)], ["s_nop 4"] + TW1(D1R, True), [1, 6, 6, 99])
stamp("m3", (3,))
for t_ in TW2(D1I, XR, XI, True, 0, 8): A(t_)
weave([M32(D2R, XR, FC, None), M32(D2R, XI, FN, D2R), M32(D2I, XR, FS, None), M32(D2I, XI, FC, D2I)], TW2(D1I, XR, XI, True, 8, 16), 6)
weave([M32(D2R, XR+4, FC+4, D2R), M32(D2R, XI+4, FN+4, D2R), M32(D2I, XR+4, FS+4, D2I), M32(D2I, XI+4, FC+4, D2I)], [], 0)
stamp("m4", (3,))
for comp, d in ((0, D2R), (1, D2I)):
    o = TMP + comp*8
    for q in (0, 4, 1, 5, 2, 6, 3, 7): cvt(o+q, d+2*q, d+2*q+1)
    for q in range(4): A(f"v_permlane16_swap_b32 {v(o+q)}, {v(o+4+q)}")
    for j in range(2):
        A(f"buffer_store_dwordx4 {v(o+4*j,4)}, {v(aSo)}, {srd(OUT_)}, {s(sO[comp])} offen offset:{j*1024}{OUTM}")
if OPT['stamp']:
    stamp("st3", (1, 3))
    A("s_waitcnt vmcnt(0)")
    stamp("end")
    A("s_waitcnt lgkmcnt(0)")
    n = len(stamps)
    assert sST + 2*n <= 88, n
    if OPT['amp']:
        j = OPT['amp'] if OPT['amp'] < 99 else n - 1
        A(f'''
        s_cmp_lg_u32 {s(sW)}, {OPT['ampw']}
        s_cbranch_scc1 L_end
        s_cmp_lg_u32 s2, 100
        s_cbranch_scc1 L_end
        s_sub_u32 {s(sT[0])}, {s(sST+2*j)}, {s(sST)}
        ''')
        if OPT['diag'] == 1:
            A(f"""
            s_load_dword {s(sT[0])}, s[94:95], 16 glc
            s_waitcnt lgkmcnt(0)
            s_bcnt1_i32_b32 {s(sT[0])}, {s(sT[0])}
            s_mul_i32 {s(sT[0])}, {s(sT[0])}, 125
            """)
        if OPT['diag'] == 2:
            A(f"""
            s_load_dwordx2 {s(sT[2],2)}, s[94:95], 64 glc
            s_waitcnt lgkmcnt(0)
            s_not_b32 {s(sT[2])}, {s(sT[2])}
            s_sub_u32 {s(sT[0])}, {s(sT[3])}, {s(sT[2])}
            """)
        A(f'''
        s_lshl_b32 {s(sT[0])}, {s(sT[0])}, 4
        s_min_u32 {s(sT[0])}, {s(sT[0])}, 60000
        s_add_u32 {s(sT[0])}, {s(sT[0])}, {s(sST+2*(n-1))}
        L_amp:
        s_memrealtime {s(sT[2],2)}
        s_waitcnt lgkmcnt(0)
        s_sub_u32 {s(sT[1])}, {s(sT[0])}, {s(sT[2])}
        s_cmp_gt_i32 {s(sT[1])}, 0
        s_cbranch_scc1 L_amp
        s_branch L_end
        ''')
    A(f"s_lshl_b32 {s(sT[0])}, s2, 3")
    A(f"s_add_u32 {s(sT[0])}, {s(sT[0])}, {s(sW)}")
    A(f"s_lshl_b32 {s(sT[0])}, {s(sT[0])}, 7")
    A(f"s_add_u32 {s(sT[0])}, {s(sT[0])}, {STAMP}")
    A("v_mov_b32 v3, 0")
    A("s_mov_b64 exec, 1")
    for i in range(n):
        A(f"v_mov_b32 v2, {s(sST+2*i)}")
        A(f"buffer_store_dword v2, v3, {srd(WS_)}, {s(sT[0])} offen offset:{i*4}")
    A.raw("; stamps: " + " ".join(stamps))
A.label("L_end")
A("s_endpgm")
def kd(name, nv, ns):
    A.raw(f""".p2align 6
.amdhsa_kernel {name}
  .amdhsa_next_free_vgpr {nv}
  .amdhsa_next_free_sgpr {ns}
  .amdhsa_accum_offset {nv}
  .amdhsa_group_segment_fixed_size 0
  .amdhsa_kernarg_size 72
  .amdhsa_user_sgpr_count 2
  .amdhsa_user_sgpr_kernarg_segment_ptr 1
  .amdhsa_system_sgpr_workgroup_id_x 1
  .amdhsa_float_denorm_mode_32 3
.end_amdhsa_kernel""")
A.raw('.section .rodata,"a"')
kd(NAME + "_kernel", 256, 102)
if OPT['lst']: kd("empty_kernel", 8, 16)
open(sys.argv[1], "w").write(A.text())
print(sys.argv[1], "nops:", A.nops, "stamps:", len(stamps), file=sys.stderr)
```

```python
import sys, struct
import numpy as np
from asmlib import Asm, v, s

NAME = "concat_heads__spectral_gfnet__spectral_gfnet__prompt"
OPT = dict(outm=1, xnt=0, wnt=0, wsoff=0, diag=0, da=0, db=0, wa=0, wb=0, ne=3, xpf=0, gh=1, xprio=0, slp=2, nst=3, gpos=1, xl=8, stag=2, neb=3, amp=0, ampw=0, stamp=0, sl1=0, sl2=0, lst=0, half=0)
for a_ in sys.argv[2:]:
    k_, v_ = a_.split('='); assert k_ in OPT, k_; OPT[k_] = int(v_)

def fbits(x): return "0x%08x" % struct.unpack('<I', struct.pack('<f', x))[0]
def bf16(x):
    u = np.asarray(x, dtype=np.float32).view(np.uint32)
    return ((u + 0x7FFF + ((u >> 16) & 1)) >> 16).astype(np.uint32)

T1 = 0
T2 = 8 << 20
AUX = 16 << 20
T1X = AUX
T2X = AUX + 0x30000
WX = AUX + 0x8000
CP = 256
C1 = AUX + 0x10000
C2 = AUX + 0x20000
EW = AUX + 0xa0000
STAMP = AUX + 0x100000
WSZ = 18 << 20
EXOFF = 32768
PS = 5184
WOFF = EXOFF + 8 * PS
M2OFF = WOFF + 36864
SYOFF = M2OFF + 32768
PGOFF = SYOFF + 64
T1OFF = PGOFF + 2048
LDSZ = T1OFF + 14336
EX2 = EXOFF
OS = 8320
XOUT = EXOFF + 32768
PS2 = 4160
sW, sM, sRHO, sSB, sA, sGRP = 3, 4, 5, 6, 7, 32
X_, WR_, WI_, OUT_, WS_, TAB_ = 8, 12, 16, 20, 24, 28
sCNT = 33
sT = list(range(34, 48))
sV = 48
sEXP = 50
sTAG = 51
sW12, sM8, sE, sROLE, sC1, sC2 = 52, 53, 54, 55, 56, 57
sPM = 58
sST = 60
sO = [96, 97]
sU = [98, 99, 100, 101]
sONE = sU[2]
srd = lambda b: s(b, 4)

A = Asm()
HOST = 128
NST = OPT['nst']
XNT = ' nt' if OPT['xnt'] else ''
WNT = ' nt' if OPT['wnt'] else ''
OUTM = ['', ' sc1', ' nt', ' sc0 sc1', ' sc1 nt', ' sc0 sc1 nt'][OPT['outm']]
def M32(d, a, b, c): return f"v_mfma_f32_32x32x16_bf16 {v(d,16)}, {v(a,4)}, {v(b,4)}, {v(c,16) if c is not None else 0}"
def M16(d, a, b, c): return f"v_mfma_f32_16x16x32_bf16 {v(d,4)}, {v(a,4)}, {v(b,4)}, {v(c,4) if c is not None else 0}"
def CVT(d, a, b, na=False, nb=False): return f"v_cvt_pk_bf16_f32 {v(d)}, {'-' if na else ''}{v(a)}, {'-' if nb else ''}{v(b)}"
def m32(*a): A(M32(*a))
def m16(*a): A(M16(*a))
def cvt(*a): A(CVT(*a))
def weave(mf, fill, per):
    fill = list(fill)
    for i, m in enumerate(mf):
        A(m)
        n = per[i] if isinstance(per, (list, tuple)) else per
        for _ in range(n):
            if fill: A(fill.pop(0))
    for f in fill: A(f)
stamps = []
def stamp(name, sets=(1,)):
    st = OPT['stamp']
    if name in ("start", "end"):
        if st: A(f"s_memrealtime {s(sST + 2*len(stamps), 2)}"); stamps.append(name)
        if st > 1: A(f"s_memtime {s(sST + 2*len(stamps), 2)}"); stamps.append("c" + name)
    elif st in sets:
        if name not in stamps: stamps.append(name)
        A(f"{'s_memrealtime' if st == 1 else 's_memtime'} {s(sST + 2*stamps.index(name), 2)}")

vL, c_, g_ = 1, 2, 3
vT = list(range(2, 16))
TC, TS = 16, 32
FC, FS, FN = 48, 56, 64
M3 = 72
GR, GI = 80, 96
XR, XI = 112, 120
D1R, D1I = 128, 144
D2R, D2I = 160, 176
TMP = 192
PH = 224
WRF, WIF = 16, 48
FR = 80
DRE, DIM, DNR = 144, 160, 176
ER, EI = 192, 224

def peek(off, imm=0):
    A(f"s_mov_b64 {s(sV,2)}, 0")
    A(f"s_atomic_or_x2 {s(sV,2)}, {s(WS_,2)}, {s(off)} glc" if not imm else f"s_atomic_or_x2 {s(sV,2)}, {s(WS_,2)}, {s(off)} offset:{imm} glc")
def poll(label, off, count, sleep, imm=0, keep=None):
    A(f"s_mov_b32 {s(sEXP)}, {count}")
    A(f"s_mov_b32 {s(sCNT)}, 0x8000")
    A.label(label)
    peek(off, imm)
    A(f"s_sub_u32 {s(sCNT)}, {s(sCNT)}, 1")
    A(f"s_cbranch_scc1 {label}_out")
    if sleep: A(f"s_sleep {sleep}")
    A("s_waitcnt lgkmcnt(0)")
    if keep is not None:
        A(f"s_mov_b32 {s(keep)}, {s(sV)}")
        A(f"s_and_b32 {s(sV)}, {s(sV)}, 0xffff")
    A(f"s_cmp_eq_u64 {s(sV,2)}, {s(sEXP,2)}")
    A(f"s_cbranch_scc0 {label}")
    A.label(label + "_out")
def validate(label, off, imm=0):
    A(f"s_mov_b32 {s(sCNT)}, 0x8000")
    A.label(label)
    A("s_waitcnt lgkmcnt(0)")
    A(f"s_cmp_eq_u32 {s(sV+1)}, {s(sTAG)}")
    A(f"s_cbranch_scc1 {label}_out")
    peek(off, imm)
    A(f"s_sub_u32 {s(sCNT)}, {s(sCNT)}, 1")
    A(f"s_cbranch_scc0 {label}")
    A("s_waitcnt lgkmcnt(0)")
    A.label(label + "_out")
def signal(off, imm=0):
    A(f"s_atomic_add {s(sONE)}, {s(WS_,2)}, {s(off)}" + (f" offset:{imm}" if imm else ""))

vSY, vS1, vPG = vT[12], vT[13], vT[11]
def lds_wait(label, off, val):
    A(f"s_mov_b32 {s(sCNT)}, 0x40000")
    A.label(label)
    A(f"ds_read_b32 {v(vS1)}, {v(vSY)} offset:{off}")
    A(f"s_sub_u32 {s(sCNT)}, {s(sCNT)}, 1")
    A(f"s_cbranch_scc1 {label}_out")
    A("s_waitcnt lgkmcnt(0)")
    A(f"v_cmp_gt_u32 vcc, {val}, {v(vS1)}")
    A("s_and_b64 vcc, vcc, vcc")
    A(f"s_cbranch_scc1 {label}")
    A.label(label + "_out")
def lds_bit(off, sbit):
    A(f"v_mov_b32 {v(vS1)}, {s(sbit)}")
    A("s_mov_b64 exec, 1")
    A(f"ds_or_b32 {v(vSY)}, {v(vS1)} offset:{off}")
    A("s_mov_b64 exec, -1")
def lds_post(off, rtn=False):
    A(f"v_mov_b32 {v(vS1)}, 1")
    A("s_mov_b64 exec, 1")
    if rtn: A(f"ds_add_rtn_u32 {v(vS1)}, {v(vSY)}, {v(vS1)} offset:{off}")
    else: A(f"ds_add_u32 {v(vSY)}, {v(vS1)} offset:{off}")
    A("s_mov_b64 exec, -1")

sWB, sI = sU[0], sU[3]
aWM, aWT = GR + 4, GR + 5
nlab = [0]
def w_piece(e):
    if e < 4:
        A(f"s_add_u32 m0, {s(sT[13])}, {WOFF + e*9216}")
        if e & 1: A(f"s_add_u32 {s(sI)}, {s(sT[12])}, {64*16416}")
        A(f"buffer_load_dwordx4 {v(aWM)}, {srd(WI_ if e >> 1 else WR_)}, {s(sI if e & 1 else sT[12])} offen{WNT} lds")
    else:
        n = nlab[0]; nlab[0] += 1
        A(f"""
        s_mul_i32 {s(sI)}, {s(sW)}, 9216
        s_add_u32 m0, {s(sI)}, {WOFF + 8192}
        s_and_b32 {s(sI)}, {s(sW)}, 1
        s_mul_i32 {s(sI)}, {s(sI)}, {64*16416}
        s_add_u32 {s(sI)}, {s(sI)}, {s(sWB)}
        s_bitcmp1_b32 {s(sW)}, 1
        s_cbranch_scc1 L_t1_{n}
        buffer_load_dwordx4 {v(aWT)}, {srd(WR_)}, {s(sI)} offen{WNT} lds
        s_branch L_t2_{n}
        L_t1_{n}:
        buffer_load_dwordx4 {v(aWT)}, {srd(WI_)}, {s(sI)} offen{WNT} lds
        L_t2_{n}:
        """)
def w_base(sw):
    A(f"s_mul_i32 {s(sT[12])}, {s(sw)}, {7*16416}")
    A(f"s_add_u32 {s(sT[12])}, {s(sT[12])}, {s(sWB)}")
    A(f"s_lshl_b32 {s(sT[13])}, {s(sw)}, 10")

def gen_m2(sW):
    G = D2R
    kf, s0, af, bf, ai, bi, ad = G, G+1, G+2, G+3, G+4, G+5, G+6
    P, C_, S_ = D1R, D1R+16, G+8
    A(f"""
    s_and_b32 {s(sT[12])}, {s(sW)}, 1
    s_lshl_b32 {s(sT[12])}, {s(sT[12])}, 4
    s_lshr_b32 {s(sT[13])}, {s(sW)}, 1
    v_add_u32 {v(kf)}, {s(sT[12])}, {v(c_)}
    v_lshl_add_u32 {v(ai)}, {v(kf)}, 2, {s(sT[13])}
    v_lshl_add_u32 {v(s0)}, {v(g_)}, 4, {s(sT[13])}
    v_mul_u32_u24 {v(bf)}, {v(s0)}, {v(kf)}
    v_mul_u32_u24 {v(bi)}, {v(g_)}, {v(ai)}
    v_cvt_f32_u32 {v(af)}, {v(kf)}
    v_cvt_f32_u32 {v(ai)}, {v(ai)}
    v_cvt_f32_u32 {v(bf)}, {v(bf)}
    v_cvt_f32_u32 {v(bi)}, {v(bi)}
    v_mul_f32 {v(bf)}, {fbits(1/128)}, {v(bf)}
    v_mul_f32 {v(bi)}, {fbits(1/32)}, {v(bi)}
    s_lshl_b32 {s(sT[12])}, {s(sW)}, 11
    s_add_u32 {s(sT[12])}, {s(sT[12])}, {M2OFF}
    v_lshl_add_u32 {v(ad)}, {v(vL)}, 4, {s(sT[12])}
    """)
    for d in range(2):
        for i in range(8):
            c = 16*(i >> 2) + (i & 3)
            A(f"v_fmamk_f32 {v(P+8*d+i)}, {v(ai if d else af)}, {fbits(c/128 if d else c/32)}, {v(bi if d else bf)}")
    for i in range(16):
        A(f"v_cos_f32 {v(C_+i)}, {v(P+i)}")
        A(f"v_sin_f32 {v(S_+i)}, {v(P+i)}")
    for d in range(2):
        for j in range(4):
            cvt(P+8*d+j, C_+8*d+2*j, C_+8*d+2*j+1)
            cvt(P+8*d+4+j, S_+8*d+2*j, S_+8*d+2*j+1)
    for d in range(2):
        for cs in range(2):
            A(f"ds_write_b128 {v(ad)}, {v(P+8*d+4*cs,4)} offset:{d*16384+cs*1024}")

def load_tables(addr):
    for i in (8, 9, 10, 11, 12, 13, 0, 4, 1, 5, 2, 6, 3, 7):
        A(f"ds_read_b128 {v(TC+4*i,4)}, {v(addr)} offset:{i*1024}")

def TW1(dr, conj):
    L = []
    for i in range(16):
        L.append(f"v_mul_f32 {v(TMP+i)}, {v(dr+i)}, {v(TC+i)}")
        L.append(f"v_mul_f32 {v(TMP+16+i)}, {v(dr+i)}, {v(TS+i)}" if conj else f"v_mul_f32_e64 {v(TMP+16+i)}, -{v(dr+i)}, {v(TS+i)}")
    return L
def TW2(di, outr, outi, conj, lo, hi):
    L = []
    for i in range(lo, hi, 2):
        for e in range(2):
            L.append(f"v_fma_f32 {v(TMP+i+e)}, -{v(di+i+e)}, {v(TS+i+e)}, {v(TMP+i+e)}" if conj else f"v_fmac_f32 {v(TMP+i+e)}, {v(di+i+e)}, {v(TS+i+e)}")
            L.append(f"v_fmac_f32 {v(TMP+16+i+e)}, {v(di+i+e)}, {v(TC+i+e)}")
        L.append(CVT(outr + i//2, TMP+i, TMP+i+1))
        L.append(CVT(outi + i//2, TMP+16+i, TMP+16+i+1))
    return L

if OPT['lst'] == 0: A.raw(f"; @launch grid=(256,1,1) block=(512,1,1) lds={LDSZ}")
else:
    A.raw(f"; @launch kernel={NAME}_kernel grid=(256,1,1) block=(512,1,1) lds={LDSZ}")
    A.raw(f"; @launch kernel=empty_kernel grid=(1,1,1) block=(64,1,1) lds=0")
A.raw('.amdgcn_target "amdgcn-amd-amdhsa--gfx950"\n.text')
if OPT['lst']: A.raw(".globl empty_kernel\n.p2align 8\n.type empty_kernel,@function\nempty_kernel:\n s_endpgm")
A.raw(f".globl {NAME}_kernel\n.p2align 8\n.type {NAME}_kernel,@function")
A.label(f"{NAME}_kernel")
aL16 = GR + 1
A(f"""
s_cmp_ge_u32 s2, 256
s_cbranch_scc1 L_end
s_bfe_u32 {s(sM)}, s2, 0x10003
s_mul_i32 {s(sT[0])}, {s(sM)}, 24
s_load_dwordx2 {s(X_,2)}, s[0:1], {s(sT[0])}
s_load_dwordx2 {s(WS_,2)}, s[0:1], 64
s_load_dwordx2 {s(WR_,2)}, s[0:1], {s(sT[0])} offset:8
s_load_dwordx2 {s(WI_,2)}, s[0:1], {s(sT[0])} offset:16
s_load_dwordx2 {s(OUT_,2)}, s[0:1], 48
""")
PF_ = 40
if OPT['xpf']:
    A(f"""
    s_sub_u32 {s(sT[0])}, 24, {s(sT[0])}
    s_load_dwordx2 {s(88,2)}, s[0:1], {s(sT[0])} offset:8
    s_load_dwordx2 {s(92,2)}, s[0:1], {s(sT[0])} offset:16
    """)
stamp("start")
A(f"""
v_lshrrev_b32 v2, 6, v0
v_and_b32 {v(vL)}, 63, v0
s_and_b32 {s(sT[1])}, s2, 7
v_readfirstlane_b32 {s(sW)}, v2
s_lshr_b32 {s(sT[2])}, s2, 4
s_lshl_b32 {s(sRHO)}, {s(sT[1])}, 4
s_add_u32 {s(sRHO)}, {s(sRHO)}, {s(sT[2])}
s_and_b32 {s(sSB)}, {s(sRHO)}, 31
s_lshr_b32 {s(sT[5])}, {s(sRHO)}, 5
s_lshl2_add_u32 {s(sSB)}, {s(sSB)}, {s(sT[5])}
v_lshlrev_b32 {v(aL16)}, 4, {v(vL)}
s_mov_b32 {s(X_+2)}, 4194304
s_mov_b32 {s(X_+3)}, 0x20000
s_lshl_b32 {s(sO[0])}, {s(sW)}, 7
s_add_u32 {s(sO[0])}, {s(sO[0])}, {s(sSB)}
s_lshl_b32 {s(sO[0])}, {s(sO[0])}, 11
s_add_u32 {s(sO[1])}, {s(sO[0])}, 0x200000
s_lshl_b32 {s(sW12)}, {s(sW)}, 12
s_mov_b32 m0, {s(sW12)}
s_getpc_b64 {s(TAB_,2)}
L_pc:
s_mov_b32 {s(TAB_+2)}, L_end-L_pc
s_mov_b32 {s(TAB_+3)}, 0x20000
v_lshlrev_b32 v3, 11, v2
s_lshl_b32 {s(sT[6])}, {s(sT[2])}, 7
buffer_load_dword {v(GR)}, v3, {srd(TAB_)}, {s(sT[6])} offen
s_lshl_b32 {s(sA)}, {s(sT[1])}, 1
""")
if OPT['xpf']:
    A(f"""
    s_lshl3_add_u32 {s(sPM)}, {s(sT[2])}, {s(sW)}
    s_lshl4_add_u32 {s(sPM)}, {s(sPM)}, {s(sA)}
    s_mul_i32 {s(sPM)}, {s(sPM)}, 1026
    v_lshlrev_b32 {v(GR+2)}, 7, {v(vL)}
    v_min_u32 {v(GR+2)}, 2048, {v(GR+2)}
    s_mov_b32 s90, 2101248
    s_mov_b32 s91, 0x20000
    s_mov_b32 s94, 2101248
    s_mov_b32 s95, 0x20000
    """)
A("s_waitcnt lgkmcnt(0)")
stamp("karg", (4,))
sX0, sX1 = sO
XISS = f"""
buffer_load_dwordx4 {v(aL16)}, {srd(X_)}, {s(sX0)} offen{XNT} lds
buffer_load_dwordx4 {v(aL16)}, {srd(X_)}, {s(sX0)} offen offset:1024{XNT} lds
s_add_u32 m0, {s(sW12)}, 2048
buffer_load_dwordx4 {v(aL16)}, {srd(X_)}, {s(sX1)} offen{XNT} lds
buffer_load_dwordx4 {v(aL16)}, {srd(X_)}, {s(sX1)} offen offset:1024{XNT} lds
"""
aPF = GR + 2
sPF = sPM
XPF = f"""
buffer_load_dword {v(GR)}, {v(aPF)}, s[88:91], {s(sPF)} offen
buffer_load_dword {v(GR)}, {v(aPF)}, s[92:95], {s(sPF)} offen
"""
if OPT['xpf']:
    A(f"""
    s_cmp_eq_u32 {s(sM)}, 0
    s_cbranch_scc1 L_nopf
    {XPF}
    s_barrier
    L_nopf:
    """)
if OPT['stag']:
    A(f"s_cmp_lg_u32 {s(sM)}, 0")
    A("s_cbranch_scc1 L_xlate")
A(XISS)
A.label("L_xlate")
stamp("xiss", (4,))
A(f"""
s_lshr_b32 {s(sT[3])}, {s(sW)}, 1
s_and_b32 {s(sT[4])}, {s(sW)}, 1
s_lshl_b32 {s(sT[6])}, {s(sT[3])}, 2
s_add_u32 {s(sT[6])}, {s(sT[6])}, {s(sT[4])}
s_lshl_b32 {s(sT[6])}, {s(sT[6])}, 1
v_lshrrev_b32 {v(PH)}, 5, {v(vL)}
v_and_b32 {v(PH+1)}, 31, {v(vL)}
v_lshl_add_u32 {v(PH)}, {v(PH)}, 2, {s(sT[6])}
v_mul_u32_u24 {v(PH)}, {v(PH)}, {v(PH+1)}
v_add_u32 {v(PH+1)}, {v(PH)}, {v(PH+1)}
v_cvt_f32_u32 {v(PH)}, {v(PH)}
v_cvt_f32_u32 {v(PH+1)}, {v(PH+1)}
v_mul_f32 {v(PH+2)}, {fbits(1/32)}, {v(PH)}
v_mul_f32 {v(PH+3)}, {fbits(1/32)}, {v(PH+1)}
v_cos_f32 {v(PH+8)}, {v(PH+2)}
v_cos_f32 {v(PH+9)}, {v(PH+3)}
v_sin_f32 {v(PH+10)}, {v(PH+2)}
v_sin_f32 {v(PH+11)}, {v(PH+3)}
v_mul_f32 {v(PH)}, {fbits(1/32)}, {v(PH+2)}
v_mul_f32 {v(PH+1)}, {fbits(1/32)}, {v(PH+3)}
v_cos_f32 {v(PH+4)}, {v(PH)}
v_cos_f32 {v(PH+5)}, {v(PH+1)}
v_sin_f32 {v(PH+6)}, {v(PH)}
v_sin_f32 {v(PH+7)}, {v(PH+1)}
{CVT(PH+12, PH+8, PH+9)}
{CVT(PH+13, PH+10, PH+11)}
{CVT(PH+14, PH+10, PH+11, True, True)}
v_add_u32 {v(vS1)}, {T1OFF}, {v(aL16)}
s_lshl_b32 {s(sT[3])}, {s(sT[3])}, 10
s_lshl3_add_u32 {s(sT[3])}, {s(sT[4])}, {s(sT[3])}
v_add_u32 {v(PH)}, {s(sT[3])}, {v(vS1)}
s_lshr_b32 {s(sT[3])}, {s(sW)}, 2
s_lshl_b32 {s(sT[3])}, {s(sT[3])}, 10
s_and_b32 {s(sT[4])}, {s(sW)}, 3
s_lshl2_add_u32 {s(sT[3])}, {s(sT[4])}, {s(sT[3])}
v_add_u32 {v(PH+1)}, {s(sT[3])}, {v(vS1)}
v_mov_b32 {v(vSY)}, {SYOFF}
v_mov_b32 v8, 0
v_mov_b32 v9, 0
v_mov_b32 v10, 0
v_mov_b32 v11, 0
v_lshlrev_b32 {v(vPG)}, 2, v0
v_add_u32 {v(vPG)}, {PGOFF}, {v(vPG)}
ds_write_b64 {v(PH)}, {v(PH+4,2)}
ds_write_b64 {v(PH)}, {v(PH+6,2)} offset:4096
ds_write_b32 {v(PH+1)}, {v(PH+12)} offset:8192
ds_write_b32 {v(PH+1)}, {v(PH+13)} offset:10240
ds_write_b32 {v(PH+1)}, {v(PH+14)} offset:12288
ds_write_b128 {v(vSY)}, v[8:11]
ds_write_b128 {v(vSY)}, v[8:11] offset:16
ds_write_b32 {v(vPG)}, v8
s_add_u32 {s(WS_)}, {s(WS_)}, {OPT['wsoff'] << 20}
s_addc_u32 {s(WS_+1)}, {s(WS_+1)}, 0
s_mov_b32 {s(WS_+2)}, {WSZ}
s_mov_b32 {s(WS_+3)}, 0x20000
s_mov_b32 {s(WR_+2)}, 2101248
s_mov_b32 {s(WR_+3)}, 0x20000
s_mov_b32 {s(WI_+2)}, 2101248
s_mov_b32 {s(WI_+3)}, 0x20000
s_mov_b32 {s(OUT_+2)}, 8388608
s_mov_b32 {s(OUT_+3)}, 0x20000
s_lshl_b32 {s(sM8)}, {s(sM)}, 3
s_mov_b32 {s(sT[6])}, {EW}
s_waitcnt lgkmcnt(0)
s_load_dword {s(sE)}, {s(WS_,2)}, {s(sT[6])}
""")
stamp("tgen", (4,))
A("s_barrier")
stamp("tbar", (4,))
load_tables(vS1)
def late_x():
    A(f"s_cmp_eq_u32 {s(sM)}, 0")
    A("s_cbranch_scc1 L_xdone")
    A(XISS)
    A.label("L_xdone")
if OPT['stag'] == 1: late_x()
stamp("xis2", (4,))
aG = GR + 3
sG = sU[1]
SPW = 3
sX16 = sROLE
A(f"""
s_lshl_b32 {s(sC1)}, {s(sM)}, 4
s_add_u32 {s(sC1)}, {s(sC1)}, {s(sW)}
s_lshl_b32 {s(sC1)}, {s(sC1)}, 2
s_add_u32 {s(sC1)}, {s(sC1)}, {s(sT[5])}
s_mul_i32 {s(sC1)}, {s(sC1)}, {CP}
s_add_u32 {s(sC1)}, {s(sC1)}, {C1}
s_mov_b32 {s(sX16)}, 0x10000
s_add_u32 {s(sC2)}, {s(sM8)}, {s(sW)}
s_lshl_b32 {s(sC2)}, {s(sC2)}, 3
s_add_u32 {s(sC2)}, {s(sC2)}, {s(sT[1])}
s_mul_i32 {s(sC2)}, {s(sC2)}, {CP}
s_add_u32 {s(sC2)}, {s(sC2)}, {C2}
""")
A(f"""
s_lshr_b32 {s(sT[6])}, {s(sT[2])}, 3
s_add_u32 {s(sA)}, {s(sA)}, {s(sT[6])}
s_and_b32 {s(sGRP)}, {s(sT[2])}, 7
v_and_b32 {v(c_)}, 15, {v(vL)}
v_lshrrev_b32 {v(g_)}, 4, {v(vL)}
v_lshrrev_b32 v9, 2, {v(c_)}
v_and_b32 v10, 1, {v(c_)}
v_lshl_add_u32 v9, v9, 1, v10
v_and_b32 v10, 2, {v(c_)}
v_lshl_add_u32 v9, v10, 2, v9
v_mul_u32_u24 {v(aG)}, 1026, v9
s_mul_i32 {s(sG)}, {s(sRHO)}, 16416
""")
A(f"""
v_lshrrev_b32 {v(PH)}, 1, {v(c_)}
v_and_b32 {v(PH+1)}, 1, {v(PH)}
s_bfe_u32 {s(sT[0])}, {s(sRHO)}, 0x10002
v_and_b32 {v(PH+2)}, 1, {v(c_)}
v_xor_b32 {v(PH+2)}, {s(sT[0])}, {v(PH+2)}
v_sub_u32 {v(PH+2)}, {v(PH+2)}, {v(PH+1)}
v_cvt_f32_i32 {v(PH+2)}, {v(PH+2)}
v_mov_b32 {v(PH+3)}, {fbits(0.125)}
v_fmamk_f32 {v(PH+2)}, {v(PH+2)}, {fbits(0.25)}, {v(PH+3)}
v_mul_u32_u24 {v(PH+1)}, 0x8000, {v(PH+1)}
v_lshl_or_b32 {v(PH+1)}, {v(PH+1)}, 16, {v(PH+1)}
v_cvt_f32_u32 {v(PH)}, {v(PH)}
v_add_f32 {v(PH+3)}, {fbits(8.0)}, {v(PH)}
v_lshl_add_u32 {v(PH+4)}, {v(g_)}, 8, {s(sSB)}
v_cvt_f32_u32 {v(PH+4)}, {v(PH+4)}
v_mul_f32 {v(PH+4)}, {fbits(1/2048)}, {v(PH+4)}
v_add_f32 {v(PH+5)}, {fbits(1/16)}, {v(PH+4)}
""")
for mt in range(2):
    for e in range(2):
        t = PH + 8 + (mt*2+e)*3
        A(f"v_fma_f32 {v(t)}, {v(PH+4+e)}, {v(PH if mt == 0 else PH+3)}, {v(PH+2)}")
        A(f"v_cos_f32 {v(t+1)}, {v(t)}")
        A(f"v_sin_f32 {v(t+2)}, {v(t)}")
for mt in range(2):
    for e in range(2):
        t = PH + 8 + (mt*2+e)*3
        cvt(M3 + mt*4 + 2*e, t+1, t+2)
        cvt(M3 + mt*4 + 2*e + 1, t+2, t+1)
        A(f"v_xor_b32 {v(M3 + mt*4 + 2*e + 1)}, {v(PH+1)}, {v(M3 + mt*4 + 2*e + 1)}")
if OPT['stag'] == 2: late_x()
aTR, aP, aQe, aQo, aRD, aST = vT[2:8]
sS1 = sT[8:12]
A(f"""
v_bfe_u32 {v(PH)}, {v(vL)}, 2, 2
v_lshrrev_b32 {v(PH+1)}, 5, {v(vL)}
v_lshl_add_u32 {v(PH)}, {v(PH+1)}, 2, {v(PH)}
v_lshlrev_b32 {v(PH)}, 6, {v(PH)}
v_and_b32 {v(PH+2)}, 16, {v(vL)}
v_lshl_add_u32 {v(PH)}, {v(PH+2)}, 1, {v(PH)}
v_and_b32 {v(PH+2)}, 3, {v(vL)}
v_lshl_add_u32 {v(PH)}, {v(PH+2)}, 3, {v(PH)}
v_add_u32 {v(aTR)}, {s(sW12)}, {v(PH)}
s_mul_i32 {s(sT[0])}, {s(sW)}, {PS}
s_add_u32 {s(sT[0])}, {s(sT[0])}, {EXOFF}
v_and_b32 {v(PH+3)}, 31, {v(vL)}
v_mul_u32_u24 {v(PH+4)}, 20, {v(PH+2)}
v_lshrrev_b32 {v(PH+5)}, 2, {v(PH+3)}
v_mul_u32_u24 {v(PH+6)}, 160, {v(PH+1)}
v_add3_u32 {v(PH+4)}, {v(PH+4)}, {v(PH+5)}, {v(PH+6)}
v_lshl_add_u32 {v(aP)}, {v(PH+4)}, 3, {s(sT[0])}
v_sub_u32 {v(PH+3)}, 32, {v(PH+3)}
v_and_b32 {v(PH+4)}, 3, {v(PH+3)}
v_mul_u32_u24 {v(PH+4)}, 20, {v(PH+4)}
v_lshrrev_b32 {v(PH+5)}, 2, {v(PH+3)}
v_sub_u32 {v(PH+6)}, 160, {v(PH+6)}
v_add3_u32 {v(PH+4)}, {v(PH+4)}, {v(PH+5)}, {v(PH+6)}
v_lshl_add_u32 {v(aQe)}, {v(PH+4)}, 3, {s(sT[0])}
v_and_b32 {v(PH+3)}, 32, {v(PH+3)}
v_lshl_add_u32 {v(aQo)}, {v(PH+3)}, 4, {v(aQe)}
s_mul_i32 {s(sT[0])}, {s(sW)}, 640
s_add_u32 {s(sT[0])}, {s(sT[0])}, {EXOFF}
v_mul_u32_u24 {v(PH)}, {2*PS}, {v(g_)}
v_lshl_add_u32 {v(PH)}, {v(c_)}, 3, {v(PH)}
v_add_u32 {v(aRD)}, {s(sT[0])}, {v(PH)}
v_lshlrev_b32 {v(PH)}, 19, {v(g_)}
v_lshl_add_u32 {v(aST)}, {v(c_)}, 4, {v(PH)}
s_lshl_b32 {s(sS1[0])}, {s(sM)}, 22
s_lshl_b32 {s(sT[0])}, {s(sW)}, 15
s_add_u32 {s(sS1[0])}, {s(sS1[0])}, {s(sT[0])}
s_lshl_b32 {s(sT[0])}, {s(sRHO)}, 8
s_add_u32 {s(sS1[0])}, {s(sS1[0])}, {s(sT[0])}
s_add_u32 {s(sS1[1])}, {s(sS1[0])}, {1<<18}
s_add_u32 {s(sS1[2])}, {s(sS1[0])}, {8<<18}
s_add_u32 {s(sS1[3])}, {s(sS1[0])}, {9<<18}
s_mul_i32 {s(sWB)}, {s(sA)}, 1026
s_lshl_b32 {s(sT[0])}, {s(sGRP)}, 7
s_add_u32 {s(sWB)}, {s(sWB)}, {s(sT[0])}
s_andn2_b32 {s(sWB)}, {s(sWB)}, 15
""")
if OPT['stag'] == 3: late_x()
A(f"""
v_add_u32 {v(PH)}, {s(sW)}, {v(vL)}
v_mul_u32_u24 {v(PH+1)}, 57, {v(PH)}
v_lshrrev_b32 {v(PH+1)}, 9, {v(PH+1)}
v_mul_u32_u24 {v(PH+1)}, {16416-144}, {v(PH+1)}
v_lshl_add_u32 {v(aWM)}, {v(PH)}, 4, {v(PH+1)}
v_add_u32 {v(PH)}, 8, {v(vL)}
v_mul_u32_u24 {v(PH+1)}, 57, {v(PH)}
v_lshrrev_b32 {v(PH+1)}, 9, {v(PH+1)}
v_mul_u32_u24 {v(PH+1)}, {16416-144}, {v(PH+1)}
v_lshl_add_u32 {v(aWT)}, {v(PH)}, 4, {v(PH+1)}
v_add_u32 {v(aWT)}, {56*16416}, {v(aWT)}
s_mov_b32 {s(sEXP)}, 0
s_mov_b32 {s(sONE)}, 1
s_and_b32 {s(sT[1])}, {s(sRHO)}, 15
s_cbranch_scc1 L_noinit
s_waitcnt lgkmcnt(0)
s_mul_i32 {s(sTAG)}, {s(sE)}, 0x9E3779B1
s_add_u32 {s(sTAG)}, {s(sTAG)}, 0x7F4A7C15
s_atomic_swap_x2 {s(sEXP,2)}, {s(WS_,2)}, {s(sC2)}
s_and_b32 {s(sT[1])}, {s(sRHO)}, 31
s_cbranch_scc1 L_noinit
s_atomic_swap_x2 {s(sEXP,2)}, {s(WS_,2)}, {s(sC1)}
L_noinit:
""")
NE = OPT['ne']
A(f"""
s_cmp_lg_u32 {s(sW)}, {SPW}
s_cbranch_scc1 L_nogather
buffer_load_ushort v11, {v(aG)}, {srd(WR_)}, {s(sG)} offen offset:1024
buffer_load_ushort v12, {v(aG)}, {srd(WI_)}, {s(sG)} offen offset:1024
L_nogather:
""")
stamp('setup', (4,))
NEB = OPT['neb']
if OPT['stag'] in (2, 3): A("s_barrier")
w_base(sW)
for e in range(max(NE, NEB)):
    if e == min(NE, NEB):
        A(f"s_cmp_eq_u32 {s(sM)}, {0 if NE < NEB else 1}")
        A("s_cbranch_scc1 L_noearly")
    w_piece(e)
A.label("L_noearly")
NEA = NE
if OPT['xpf'] == 2:
    NEA = NE + 2
    A(f"""
    s_cmp_lg_u32 {s(sM)}, 0
    s_cbranch_scc1 L_nopf2
    {XPF}
    L_nopf2:
    """)
def wait_m(lbl, add):
    lo, hi = min(NEA, NEB), max(NEA, NEB)
    A(f"s_waitcnt vmcnt({hi+add})")
    if lo != hi:
        A(f"s_cmp_eq_u32 {s(sM)}, {0 if NEA > NEB else 1}")
        A(f"s_cbranch_scc1 {lbl}")
        A(f"s_waitcnt vmcnt({lo+add})")
        A.label(lbl)
stamp("wiss", (4,))
wait_m("L_wm0", 2)
A(f"""
s_cmp_eq_u32 {s(sW)}, {SPW}
s_cbranch_scc1 L_xw1
""")
wait_m("L_wm1", 0)
A.label("L_xw1")
stamp("x", (1, 2, 4))
for comp, dst in ((0, XR), (1, XI)):
    for t in range(2):
        for j in range(2):
            A(f"ds_read_b64_tr_b16 {v(dst+4*t+2*j,2)}, {v(aTR)} offset:{comp*2048+t*1024+j*512}")
A("s_waitcnt lgkmcnt(0)")
stamp("tr", (2, 4))
weave([M32(D1R, XR, FC, None), M32(D1R, XR+4, FC+4, D1R), M32(D1R, XI, FS, D1R), M32(D1R, XI+4, FS+4, D1R), M32(D1I, XR, FN, None)],
      [f"s_mul_i32 {s(sTAG)}, {s(sE)}, 0x9E3779B1", f"s_add_u32 {s(sTAG)}, {s(sTAG)}, 0x7F4A7C15", "s_nop 4", "s_nop 4"], [2, 0, 0, 1, 1])
weave([M32(D1I, XR+4, FN+4, D1I), M32(D1I, XI, FC, D1I), M32(D1I, XI+4, FC+4, D1I)], TW1(D1R, False), [6, 6, 99])
stamp("m1", (2,))
for t_ in TW2(D1I, XR, XI, False, 0, 8): A(t_)
stamp("tw", (2,))
weave([M32(D2R, FC, XR, None), M32(D2I, FN, XR, None), M32(D2R, FS, XI, D2R), M32(D2I, FC, XI, D2I)], TW2(D1I, XR, XI, False, 8, 16), 6)
weave([M32(D2R, FC+4, XR+4, D2R), M32(D2I, FN+4, XR+4, D2I), M32(D2R, FS+4, XI+4, D2R), M32(D2I, FC+4, XI+4, D2I)], [], 0)
stamp("m2", (2,))
for i in range(16):
    cvt(TMP+i, D2R+i, D2I+i)
stamp("cv", (2,))
for i in range(16):
    kd2 = 8*(i >> 2) + (i & 3)
    if i < 8:
        A(f"ds_write_b32 {v(aP)}, {v(TMP+i)} offset:{(80*(kd2>>1)+8*(kd2&1))*8}")
    else:
        e = 31 - kd2 - 4
        A(f"ds_write_b32 {v(aQo if e & 1 else aQe)}, {v(TMP+i)} offset:{(80*(e>>1)+8*(e&1))*8+4}")
A(f"""
s_mov_b64 exec, 1
ds_write_b32 {v(aP)}, {v(TMP)} offset:4
ds_write_b32 {v(aP)}, {v(TMP+8)} offset:{640*8}
s_mov_b64 exec, -1
""")
stamp("wr", (2,))
A("s_waitcnt lgkmcnt(0)")
stamp("wrd", (2,))
A("s_barrier")
stamp("bar1", (1, 2, 4))
A(f"""
s_cmp_lg_u32 {s(sW)}, {SPW}
s_cbranch_scc1 L_nosp1
v_mul_u32_u24 {v(PH)}, {2*PS}, {v(g_)}
ds_read_b64 {v(XR,2)}, {v(PH)} offset:{EXOFF+640*8}
ds_read_b64 {v(XR+2,2)}, {v(PH)} offset:{EXOFF+640*8+PS}
s_lshl_b32 {s(sT[0])}, {s(sM)}, 13
s_lshl_b32 {s(sT[1])}, {s(sRHO)}, 6
s_add_u32 {s(sT[0])}, {s(sT[0])}, {s(sT[1])}
s_add_u32 {s(sT[1])}, {s(sT[0])}, {WX}
s_add_u32 {s(sT[0])}, {s(sT[0])}, {T1X}
v_lshlrev_b32 {v(PH+1)}, 2, {v(vL)}
v_lshlrev_b32 {v(PH+2)}, 4, {v(g_)}
""")
wait_m("L_wm2", 0)
A(f"""
v_lshl_or_b32 v11, v12, 16, v11
s_mov_b64 exec, 0xffff
buffer_store_dword v11, {v(PH+1)}, {srd(WS_)}, {s(sT[1])} offen sc1
s_mov_b64 exec, -1
s_waitcnt lgkmcnt(0)
""")
m16(D1R, M3, XR, None); m16(D1R+4, M3+4, XR, None)
cvt(TMP, D1R, D1R+2); cvt(TMP+1, D1R+4, D1R+6); cvt(TMP+2, D1R+1, D1R+3); cvt(TMP+3, D1R+5, D1R+7)
A(f"""
s_mov_b32 exec_lo, 0x00010001
s_mov_b32 exec_hi, 0x00010001
buffer_store_dwordx4 {v(TMP,4)}, {v(PH+2)}, {srd(WS_)}, {s(sT[0])} offen sc1
s_mov_b64 exec, -1
L_nosp1:
""")
for t in range(4):
    for jj in range(2):
        A(f"ds_read_b64 {v(XR+4*t+2*jj,2)}, {v(aRD)} offset:{160*t+PS*jj}")
for t in range(4):
    A(f"s_waitcnt lgkmcnt({6-2*t})")
    m16(D1R+8*t, M3, XR+4*t, None)
peek(sC1)
for t in range(4):
    m16(D1R+8*t+4, M3+4, XR+4*t, None)
for mt in range(2):
    for al in range(2):
        o = TMP + 4 + (mt*2+al)*4
        d = D1R + 4*mt + 2*al
        cvt(o, d, d+8); cvt(o+2, d+1, d+9); cvt(o+1, d+16, d+24); cvt(o+3, d+17, d+25)
    for al in range(2):
        o = TMP + 4 + (mt*2+al)*4
        A(f"buffer_store_dwordx4 {v(o,4)}, {v(aST)}, {srd(WS_)}, {s(sS1[mt*2+al])} offen sc1")
stamp("st1", (2,))
sPH = sE
A(f"""
s_barrier
""")
A(f"s_mov_b32 {s(sPH)}, 1")
GH = OPT['gh']
if GH:
    A(f"""
    s_cmp_lt_u32 {s(sW)}, 4
    s_cbranch_scc1 L_nogen
    s_sub_u32 {s(sI)}, {s(sW)}, {4 if GH == 2 else 0}
    L_gen:
    """)
    gen_m2(sI)
    if GH == 2:
        A(f"""
        s_add_u32 {s(sI)}, {s(sI)}, 4
        s_cmp_lt_u32 {s(sI)}, 8
        s_cbranch_scc1 L_gen
        """)
    lds_post(12)
    if GH == 1:
        A(f"s_cmp_lt_u32 {s(sW)}, 4")
        A("s_cbranch_scc1 L_genret")
    A.label("L_nogen")
validate("L_val1", sC1)
A(f"""
s_cmp_lg_u32 {s(sW)}, {SPW}
s_cbranch_scc1 L_nosp2
s_waitcnt vmcnt(4)
s_atomic_add {s(sX16)}, {s(WS_,2)}, {s(sC1)}
L_nosp2:
s_waitcnt vmcnt(0)
""")
signal(sC1)
stamp("fl1")
aW, aF, aRe, aIm, aO, aD = vT[2:8]
sFA, sFB, sFC, sDST, sOI, sDONE, sNEW, sMK = sT[4:12]
A(f"""
s_cmp_ge_u32 {s(sW)}, 4
s_cbranch_scc1 L_helper
""")
assert max(NE, NEB) < 5
w_piece(4)
w_base(sW)
for hh in range(2):
    for e in range(3, min(NE, NEB) - 1, -1):
        if e == max(NE, NEB) - 1:
            A(f"s_cmp_eq_u32 {s(sM)}, {1 if NE < NEB else 0}")
            A(f"s_cbranch_scc1 L_nolate{hh}")
        w_piece(e)
    A.label(f"L_nolate{hh}")
    if hh == 0:
        A(f"""
        v_add_u32 {v(PH)}, {s(sW)}, {v(vL)}
        v_add_u32 {v(PH)}, 4, {v(PH)}
        v_mul_u32_u24 {v(PH+1)}, 57, {v(PH)}
        v_lshrrev_b32 {v(PH+1)}, 9, {v(PH+1)}
        v_mul_u32_u24 {v(PH+1)}, {16416-144}, {v(PH+1)}
        v_lshl_add_u32 {v(aWM)}, {v(PH)}, 4, {v(PH+1)}
        s_add_u32 {s(sT[12])}, {s(sT[12])}, {28*16416}
        s_add_u32 {s(sT[13])}, {s(sT[13])}, 4096
        """)
if GH == 1:
    A(f"s_mov_b32 {s(sI)}, {s(sW)}")
    A("s_branch L_gen")
    A.label("L_genret")
if GH == 0:
    A(f"s_mov_b32 {s(sI)}, {s(sW)}")
    A.label("L_gen")
    gen_m2(sI)
    A(f"""
    s_add_u32 {s(sI)}, {s(sI)}, 4
    s_cmp_lt_u32 {s(sI)}, 8
    s_cbranch_scc1 L_gen
    """)
    lds_post(12)
A(f"""
s_mov_b32 {s(sFA)}, 0
s_and_b32 {s(sFC)}, {s(sA)}, 7
s_mov_b32 {s(sFB)}, 0
s_mul_i32 {s(sOI)}, {s(sW)}, {OS}
s_add_u32 {s(sOI)}, {s(sOI)}, {WOFF}
v_lshrrev_b32 {v(aRe)}, 2, {v(vL)}
v_and_b32 {v(aF)}, 3, {v(aRe)}
v_xor_b32 {v(aF)}, {s(sW)}, {v(aF)}
v_lshlrev_b32 {v(aRe)}, 8, {v(aRe)}
v_lshl_add_u32 {v(aRe)}, {v(aF)}, 6, {v(aRe)}
v_and_b32 {v(aF)}, 3, {v(vL)}
v_lshl_add_u32 {v(aRe)}, {v(aF)}, 4, {v(aRe)}
s_lshl_b32 {s(sT[0])}, {s(sW)}, 5
s_add_u32 {s(sT[0])}, {s(sT[0])}, {WOFF}
v_min_u32 {v(aW)}, 2, {v(g_)}
v_mul_u32_u24 {v(aF)}, 144, {v(c_)}
v_lshl_add_u32 {v(aW)}, {v(aW)}, 4, {v(aF)}
v_add_u32 {v(aW)}, {s(sT[0])}, {v(aW)}
""")
A.label("L_p2common")
A(f"v_lshlrev_b32 {v(aF)}, 4, {v(vL)}")
A(f"v_add_u32 {v(aF)}, {M2OFF}, {v(aF)}")
SEL = DNR
A(f"""
v_lshlrev_b32 {v(DIM)}, {s(sFA)}, {v(c_)}
v_lshlrev_b32 {v(DIM+1)}, 3, {v(g_)}
v_sub_u32 {v(DIM)}, {v(DIM)}, {v(DIM+1)}
v_add_u32 {v(DIM)}, {s(sFC)}, {v(DIM)}
v_add_u32 {v(DIM+1)}, {s(sFB)}, {v(DIM)}
v_mov_b32 {v(DIM+4)}, 0x3500
""")
for q in range(2):
    A(f"v_and_b32 {v(DIM+2)}, 1, {v(DIM+q)}")
    A(f"v_lshlrev_b32 {v(DIM+2)}, 4, {v(DIM+2)}")
    A(f"v_lshlrev_b32 {v(DIM+2)}, {v(DIM+2)}, {v(DIM+4)}")
    A(f"v_ashrrev_i32 {v(DIM+3)}, 1, {v(DIM+q)}")
    for j in range(4):
        A(f"v_cmp_eq_u32 vcc, {j}, {v(DIM+3)}")
        A(f"v_cndmask_b32 {v(SEL+4*q+j)}, 0, {v(DIM+2)}, vcc")
A(f"""
v_and_b32 {v(aIm)}, 1, {v(g_)}
v_lshl_add_u32 {v(aRe)}, {v(aIm)}, 3, {v(aRe)}
v_xor_b32 {v(aIm)}, 8, {v(aRe)}
v_bfe_u32 {v(aO)}, {v(vL)}, 1, 2
v_xor_b32 {v(aO)}, {v(aO)}, {v(g_)}
v_lshlrev_b32 {v(aO)}, 4, {v(aO)}
v_lshl_add_u32 {v(aO)}, {v(c_)}, 6, {v(aO)}
v_add_u32 {v(aO)}, {s(sOI)}, {v(aO)}
v_mov_b32 {v(vT[9])}, 1
s_mov_b32 {s(sT[0])}, 0x80008000
s_mov_b32 {s(sDONE)}, 0
""")
if OPT['gpos'] == 1: lds_wait("L_fr", 12, 8 if GH == 1 else 4)
for f in range(16):
    A(f"ds_read_b128 {v(FR+4*f,4)}, {v(aF)} offset:{f*1024}")
A(f"""
s_waitcnt vmcnt(0)
s_cmp_lt_u32 {s(sW)}, 4
s_cbranch_scc1 L_wreg
""")
for t in range(8):
    m16(WRF+4*t, ER+4*t, SEL, None); m16(WIF+4*t, ER+4*t, SEL+4, None)
A(f"s_movk_i32 {s(sMK)}, 0xff")
A("s_branch L_dspx")
A.label("L_wreg")
lds_post(0)

lds_wait("L_wr", 0, 8)
for t in range(16):
    if t == 12: A("s_waitcnt lgkmcnt(8)")
    A(f"ds_read_b128 {v(ER+4*t,4)}, {v(aW)} offset:{t*2304}")
A(f"s_lshl_b32 {s(sMK)}, 16, {s(sW)}")
lds_bit(4, sMK)
for t in range(16):
    if t >= 4: A(f"s_waitcnt lgkmcnt({16-t})")
    m16(WRF+4*t, ER+4*t, SEL, None)
stamp("wcv", (1,))
A(f"""
s_mov_b32 {s(sCNT)}, 0x40000
L_dsp:
ds_read_b32 {v(vS1)}, {v(vSY)} offset:4
s_sub_u32 {s(sCNT)}, {s(sCNT)}, 1
s_cbranch_scc1 L_fwd_done
s_waitcnt lgkmcnt(0)
v_readfirstlane_b32 {s(sMK)}, {v(vS1)}
L_dspx:
s_andn2_b32 {s(sNEW)}, {s(sMK)}, {s(sDONE)}
s_cbranch_scc0 L_dsp
""")
stamp("dat1", (1, 3))
for u in range(4):
    A(f"s_bitcmp1_b32 {s(sNEW)}, {u}")
    A(f"s_cbranch_scc0 L_nr{u}")
    for j in range(2): A(f"ds_read_b64_tr_b16 {v(DRE+4*u+2*j,2)}, {v(aRe)} offset:{u*8192+j*4096}")
    for j in range(2): A(f"ds_read_b64_tr_b16 {v(DIM+4*u+2*j,2)}, {v(aIm)} offset:{u*8192+j*4096}")
    A.label(f"L_nr{u}")
A(f"s_or_b32 {s(sDONE)}, {s(sDONE)}, {s(sNEW)}")
A("s_waitcnt lgkmcnt(0)")
for u in range(4):
    A(f"s_bitcmp1_b32 {s(sNEW)}, {u}")
    A(f"s_cbranch_scc0 L_nm{u}")
    fc = lambda mt: FR + (u*4 + mt*2) * 4
    fs = lambda mt: FR + (u*4 + mt*2 + 1) * 4
    e = lambda mt: (u*2 + mt) * 4
    weave([M16(ER+e(0), fc(0), DRE+4*u, None), M16(ER+e(1), fc(1), DRE+4*u, None),
           M16(EI+e(0), fc(0), DIM+4*u, None), M16(EI+e(1), fc(1), DIM+4*u, None),
           M16(ER+e(0), fs(0), DIM+4*u, ER+e(0)), M16(ER+e(1), fs(1), DIM+4*u, ER+e(1)),
           M16(EI+e(0), fs(0), DNR+4*u, EI+e(0)), M16(EI+e(1), fs(1), DNR+4*u, EI+e(1))],
          [f"v_xor_b32 {v(DNR+4*u+j)}, {s(sT[0])}, {v(DRE+4*u+j)}" for j in range(4)], 2)
    for f in range(4*u, 4*u+4): A(f"ds_read_b128 {v(FR+4*f,4)}, {v(aF)} offset:{16384+f*1024}")
    A.label(f"L_nm{u}")
A(f"""
s_cmp_lg_u32 {s(sDONE)}, 0xff
s_cbranch_scc1 L_dsp
L_fwd_done:
""")
stamp("fwd", (3,))
A("s_nop 1")
TT = DNR
def pk(op, d, a, b, c=None, na=False, nb=False):
    ops = f"{v(d,2)}, {v(a,2)}, {v(b,2)}" + (f", {v(c,2)}" if c is not None else "")
    n = [int(na), int(nb)] + ([0] if c is not None else [])
    mod = f" neg_lo:{n} neg_hi:{n}".replace(", ", ",") if (na or nb) else ""
    A(f"v_pk_{op}_f32 {ops}{mod}")
add = lambda d, a, b: pk("add", d, a, b)
sub = lambda d, a, b: pk("add", d, a, b, nb=True)
A.raw(".p2align 3")
for mt in range(2):
    for rp in range(2):
        er = lambda u: ER + (u*2+mt)*4 + 2*rp
        ei = lambda u: EI + (u*2+mt)*4 + 2*rp
        wr = lambda q: WRF + (q*2+mt)*4 + 2*rp
        wi = lambda q: WIF + (q*2+mt)*4 + 2*rp
        tr = lambda i: TT + 4*i
        ti = lambda i: TT + 4*i + 2
        add(tr(0), er(0), er(2)); add(ti(0), ei(0), ei(2)); sub(tr(1), er(0), er(2)); sub(ti(1), ei(0), ei(2))
        add(tr(2), er(1), er(3)); add(ti(2), ei(1), ei(3)); sub(tr(3), er(1), er(3)); sub(ti(3), ei(1), ei(3))
        add(er(0), tr(0), tr(2)); add(ei(0), ti(0), ti(2)); sub(er(2), tr(0), tr(2)); sub(ei(2), ti(0), ti(2))
        add(er(1), tr(1), ti(3)); sub(ei(1), ti(1), tr(3)); sub(er(3), tr(1), ti(3)); add(ei(3), ti(1), tr(3))
        for q in range(4):
            pk("mul", tr(q), er(q), wr(q)); pk("mul", ti(q), er(q), wi(q))
        for q in range(4):
            pk("fma", tr(q), ei(q), wi(q), tr(q), na=True); pk("fma", ti(q), ei(q), wr(q), ti(q))
        add(wr(0), tr(0), tr(2)); add(wi(0), ti(0), ti(2)); sub(wr(1), tr(0), tr(2)); sub(wi(1), ti(0), ti(2))
        add(wr(2), tr(1), tr(3)); add(wi(2), ti(1), ti(3)); sub(wr(3), tr(1), tr(3)); sub(wi(3), ti(1), ti(3))
        add(er(0), wr(0), wr(2)); add(ei(0), wi(0), wi(2)); sub(er(2), wr(0), wr(2)); sub(ei(2), wi(0), wi(2))
        sub(er(1), wr(1), wi(3)); add(ei(1), wi(1), wr(3)); add(er(3), wr(1), wi(3)); sub(ei(3), wi(1), wr(3))
def OPS(u):
    L = [CVT(DRE+4*u+j, ER+8*u+2*j, ER+8*u+2*j+1) for j in range(4)]
    L += [CVT(DIM+4*u+j, EI+8*u+2*j, EI+8*u+2*j+1) for j in range(4)]
    L += [CVT(DNR+4*u+j, EI+8*u+2*j, EI+8*u+2*j+1, True, True) for j in range(4)]
    return L
def INV(k):
    e = k*4; o = WRF + e
    return [CVT(o, ER+e, ER+e+1), CVT(o+1, ER+e+2, ER+e+3), CVT(o+2, EI+e, EI+e+1), CVT(o+3, EI+e+2, EI+e+3),
            f"ds_write_b128 {v(aO)}, {v(o,4)} offset:{k*1024}", f"ds_add_u32 {v(vPG)}, {v(vT[9])}"]
for t_ in OPS(0): A(t_)
A("s_waitcnt lgkmcnt(0)")
stamp("mid", (3,))
for k in range(8):
    u, nt = k >> 1, k & 1
    fc, fs, e = FR + (u*4 + nt*2) * 4, FR + (u*4 + nt*2 + 1) * 4, k * 4
    ops = OPS(u+1)[6*nt:6*nt+6] if u < 3 else []
    out = INV(k-1) if k >= 1 else []
    fill = ops + out
    weave([M16(ER+e, DRE+4*u, fc, None), M16(EI+e, DIM+4*u, fc, None), M16(ER+e, DNR+4*u, fs, ER+e), M16(EI+e, DRE+4*u, fs, EI+e)],
          fill, [3, 3, 2, 4] if ops and out else ([2, 2, 2, 0] if ops else [0, 0, 0, 6]))
stamp("inv", (3,))
for t_ in INV(7): A(t_)
stamp("cmp2", (1, 3))
A(f"""
s_cmp_lt_u32 {s(sW)}, 4
s_cbranch_scc1 L_setup3
""")
A(f"""
v_lshlrev_b32 {v(aO)}, 7, {v(c_)}
v_lshl_add_u32 {v(aO)}, {v(g_)}, 4, {v(aO)}
""")
for i in range(8): A(f"v_mov_b32 {v(WIF+2*i+1)}, {s(sTAG)}")
for k in range(8):
    o = WIF + 8*(k & 1)
    for e in range(4): cvt(o+2*e, ER+4*k+e, EI+4*k+e)
    for h in range(2): A(f"buffer_store_dwordx4 {v(o+4*h,4)}, {v(aO)}, {srd(WS_)}, {s(sDST)} offen offset:{(k&1)*2048+h*64} sc1")
    if k & 1: A(f"s_add_u32 {s(sDST)}, {s(sDST)}, 4096")
A(f"""
s_setprio 0
s_branch L_setup3
L_helper:
""")
lds_post(0)
sSRC, sPL, sSG, sBIT = sT[4:8]
A(f"""
s_lshl_b32 {s(sT[0])}, {s(sM)}, 4
s_add_u32 {s(sSRC)}, {s(sT[0])}, {s(sA)}
s_lshl3_add_u32 {s(sSRC)}, {s(sSRC)}, {s(sGRP)}
s_sub_u32 {s(sT[1])}, {s(sW)}, 4
s_lshl2_add_u32 {s(sSRC)}, {s(sSRC)}, {s(sT[1])}
s_lshl_b32 {s(sSRC)}, {s(sSRC)}, 13
s_add_u32 {s(sPL)}, {s(sT[0])}, {s(sGRP)}
s_lshl2_add_u32 {s(sPL)}, {s(sPL)}, {s(sT[1])}
s_mul_i32 {s(sPL)}, {s(sPL)}, {CP}
s_add_u32 {s(sPL)}, {s(sPL)}, {C1}
s_cmp_eq_u32 {s(sGRP)}, {SPW}
s_cselect_b32 {s(sSG)}, 0x200020, 32
s_lshl_b32 m0, {s(sT[1])}, 13
s_lshl_b32 {s(sBIT)}, 1, {s(sT[1])}
v_lshlrev_b32 {v(aD)}, 2, {v(g_)}
v_xor_b32 {v(aD)}, {v(aD)}, {v(c_)}
v_lshlrev_b32 {v(aD)}, 4, {v(aD)}
v_lshl_add_u32 {v(aD)}, {v(g_)}, 8, {v(aD)}
""")
poll("L_poll1", sPL, s(sSG), OPT['sl1'])
stamp("pol1")
for n in range(8):
    A(f"buffer_load_dwordx4 {v(aD)}, {srd(WS_)}, {s(sSRC)} offen offset:{(n&3)*1024} sc1 lds")
    if n == 3:
        A(f"s_add_u32 m0, m0, 4096")
        A(f"s_add_u32 {s(sSRC)}, {s(sSRC)}, 4096")
XP = [WR_, WR_+2, WI_, WI_+2]
A(f"""
s_cmp_lg_u32 {s(sW)}, 4
s_cbranch_scc1 L_posted
s_sub_u32 {s(sT[3])}, s2, {HOST}
s_cmp_ge_u32 {s(sT[3])}, 2
s_cbranch_scc1 L_posted
s_cmp_eq_u32 {s(sT[3])}, 0
s_cbranch_scc1 L_xa
s_waitcnt vmcnt(0)
""")
lds_bit(4, sONE)
A(f"""
L_xa:
s_mul_i32 {s(sT[2])}, {s(sT[3])}, {64*CP}
s_add_u32 {s(sT[2])}, {s(sT[2])}, {C1+SPW*4*CP}
s_mov_b32 {s(sCNT)}, 0x8000
L_pollx:
""")
for i in range(4):
    A(f"s_mov_b64 {s(XP[i],2)}, 0")
    A(f"s_atomic_or_x2 {s(XP[i],2)}, {s(WS_,2)}, {s(sT[2])} offset:{i*CP} glc")
A(f"""
s_sub_u32 {s(sCNT)}, {s(sCNT)}, 1
s_cbranch_scc1 L_pollx_out
s_waitcnt lgkmcnt(0)
""")
for i in range(4):
    A(f"s_cmp_lg_u32 {s(XP[i]+1)}, {s(sTAG)}")
    A("s_cbranch_scc1 L_pollx")
A(f"""
s_and_b32 {s(XP[0])}, {s(XP[0])}, {s(XP[1])}
s_and_b32 {s(XP[2])}, {s(XP[2])}, {s(XP[3])}
s_and_b32 {s(XP[0])}, {s(XP[0])}, {s(XP[2])}
s_bitcmp1_b32 {s(XP[0])}, 21
s_cbranch_scc0 L_pollx
L_pollx_out:
""")
if OPT['xprio']: A("s_setprio 3")
A(f"""
s_mov_b32 {s(sFA)}, 1
s_mov_b32 {s(sFC)}, 0
s_mov_b32 {s(sFB)}, 1
s_lshl_b32 {s(sT[2])}, {s(sT[3])}, 13
s_add_u32 {s(sT[0])}, {s(sT[2])}, {WX}
s_add_u32 {s(sT[1])}, {s(sT[0])}, 4096
s_lshl_b32 {s(sDST)}, {s(sT[3])}, 14
s_add_u32 {s(sDST)}, {s(sDST)}, {T2X}
s_add_u32 {s(sT[2])}, {s(sT[2])}, {T1X}
v_lshlrev_b32 {v(aD)}, 4, {v(vL)}
v_lshlrev_b32 {v(aW)}, 6, {v(c_)}
v_lshl_add_u32 {v(aW)}, {v(g_)}, 4, {v(aW)}
s_mov_b32 {s(sOI)}, {XOUT}
v_add_u32 {v(aRe)}, {EXOFF}, {v(aD)}
s_mov_b32 m0, {EXOFF}
""")
for n in range(8):
    A(f"buffer_load_dwordx4 {v(aD)}, {srd(WS_)}, {s(sT[2])} offen sc1 lds")
    if n < 7:
        A(f"s_add_u32 m0, m0, 4096")
        A(f"s_add_u32 {s(sT[2])}, {s(sT[2])}, 1024")
for t in range(8):
    A(f"buffer_load_dwordx4 {v(ER+4*t,4)}, {v(aW)}, {srd(WS_)}, {s(sT[t>>2])} offen offset:{(t&3)*1024} sc1")
A("s_waitcnt vmcnt(16)")
lds_bit(4, sONE)
A("s_branch L_p2common")
A.label("L_posted")
A(f"""
s_cmp_lt_u32 {s(sW)}, {8-NST}
s_cselect_b32 {s(sPH)}, 1, 0
s_waitcnt vmcnt(0)
""")
lds_bit(4, sBIT)
A.label("L_setup3")
A3 = 237
aD3, aPw, aQ1, aQ0, aRd3, aSo, aQp = range(A3, A3+7)
aT = list(range(A3+9, A3+13))
sMR, sS3 = sT[2], sT[3]
A(f"""
v_lshrrev_b32 {v(PH)}, 1, {v(vL)}
v_xor_b32 {v(PH)}, {v(PH)}, {v(vL)}
v_and_b32 {v(PH)}, 4, {v(PH)}
v_mul_u32_u24 {v(PH)}, 3, {v(PH)}
v_xor_b32 {v(PH)}, {v(PH)}, {v(vL)}
v_lshlrev_b32 {v(vS1)}, 4, {v(PH)}
v_add_u32 {v(vS1)}, {T1OFF}, {v(vS1)}
v_and_b32 {v(aSo)}, 15, {v(PH)}
v_lshlrev_b32 {v(aSo)}, 6, {v(aSo)}
v_and_b32 {v(PH)}, 1, {v(g_)}
v_lshl_add_u32 {v(aSo)}, {v(PH)}, 5, {v(aSo)}
v_lshrrev_b32 {v(PH)}, 1, {v(g_)}
v_lshl_add_u32 {v(aSo)}, {v(PH)}, 4, {v(aSo)}
""")
load_tables(vS1)
A(f"""
v_lshrrev_b32 {v(PH)}, 2, {v(c_)}
v_lshl_add_u32 {v(PH)}, {v(PH)}, 7, {s(sSB)}
v_cvt_f32_u32 {v(PH)}, {v(PH)}
v_mul_f32 {v(PH)}, {fbits(1/2048)}, {v(PH)}
v_add_f32 {v(PH+1)}, {fbits(0.25)}, {v(PH)}
v_and_b32 {v(PH+2)}, 1, {v(c_)}
v_cvt_f32_u32 {v(PH+2)}, {v(PH+2)}
v_mul_f32 {v(PH+2)}, {fbits(-0.25)}, {v(PH+2)}
v_add_f32 {v(PH+3)}, {fbits(-0.125)}, {v(PH+2)}
v_add_f32 {v(PH+2)}, {fbits(0.125)}, {v(PH+2)}
v_and_b32 {v(PH+4)}, 2, {v(c_)}
v_lshlrev_b32 {v(PH+4)}, 30, {v(PH+4)}
v_xor_b32 {v(PH+2)}, {v(PH+4)}, {v(PH+2)}
v_xor_b32 {v(PH+3)}, {v(PH+4)}, {v(PH+3)}
v_lshlrev_b32 {v(PH+4)}, 1, {v(g_)}
v_cvt_f32_u32 {v(PH+4)}, {v(PH+4)}
v_add_f32 {v(PH+5)}, 1.0, {v(PH+4)}
v_add_f32 {v(PH+6)}, {fbits(8.0)}, {v(PH+4)}
v_add_f32 {v(PH+7)}, {fbits(9.0)}, {v(PH+4)}
""")
for mt in range(2):
    for j in range(4):
        t = TMP + (mt*4+j)*3
        A(f"v_fma_f32 {v(t)}, {v(PH+mt)}, {v(PH+4+j)}, {v(PH+2+(j&1))}")
        A(f"v_cos_f32 {v(t+1)}, {v(t)}")
        A(f"v_sin_f32 {v(t+2)}, {v(t)}")
for mt in range(2):
    for j in range(4):
        t = TMP + (mt*4+j)*3
        cvt(M3+mt*4+j, t+1, t+2, False, True)
A(f"""
v_lshrrev_b32 {v(PH)}, 3, {v(vL)}
v_and_b32 {v(PH+1)}, 3, {v(PH)}
v_lshlrev_b32 {v(PH+1)}, 6, {v(PH+1)}
v_lshl_add_u32 {v(PH)}, {v(PH)}, 8, {v(PH+1)}
v_and_b32 {v(PH+1)}, 3, {v(vL)}
v_lshl_add_u32 {v(PH)}, {v(PH+1)}, 4, {v(PH)}
v_and_b32 {v(PH+1)}, 4, {v(vL)}
v_lshl_add_u32 {v(PH)}, {v(PH+1)}, 1, {v(PH)}
v_add_u32 {v(aT[0])}, {s(sW12)}, {v(PH)}
v_xor_b32 {v(aT[1])}, 64, {v(aT[0])}
v_xor_b32 {v(aT[2])}, 128, {v(aT[0])}
v_xor_b32 {v(aT[3])}, 192, {v(aT[0])}
v_mul_u32_u24 {v(PH)}, {PS2}, {v(g_)}
s_lshl_b32 {s(sT[0])}, {s(sW)}, 8
s_add_u32 {s(sT[1])}, {s(sT[0])}, {EX2}
s_sub_u32 {s(sT[0])}, {EX2+15*256}, {s(sT[0])}
v_lshl_add_u32 {v(aPw)}, {v(c_)}, 3, {v(PH)}
v_add_u32 {v(aPw)}, {s(sT[1])}, {v(aPw)}
v_sub_u32 {v(PH+1)}, 16, {v(c_)}
v_lshl_add_u32 {v(PH+1)}, {v(PH+1)}, 3, {v(PH)}
v_add_u32 {v(aQp)}, {s(sT[0])}, {v(PH+1)}
v_cmp_eq_u32 vcc, 0, {v(c_)}
v_mov_b32 {v(PH+2)}, 128
v_mov_b32 {v(PH+3)}, 132
v_mov_b32 {v(PH+4)}, -124
v_cndmask_b32 {v(PH+4)}, {v(PH+2)}, {v(PH+4)}, vcc
v_cndmask_b32 {v(PH+3)}, {v(PH+3)}, {v(PH+2)}, vcc
v_add_u32 {v(aQ1)}, {v(aQp)}, {v(PH+4)}
v_add_u32 {v(aQ0)}, {v(aQp)}, {v(PH+3)}
s_mul_i32 {s(sT[0])}, {s(sW)}, {PS2}
s_add_u32 {s(sT[0])}, {s(sT[0])}, {EX2}
v_and_b32 {v(PH+1)}, 31, {v(vL)}
v_lshrrev_b32 {v(PH+2)}, 5, {v(vL)}
v_lshlrev_b32 {v(PH+3)}, 9, {v(PH+2)}
v_lshl_add_u32 {v(PH+3)}, {v(PH+1)}, 3, {v(PH+3)}
v_add_u32 {v(aRd3)}, {s(sT[0])}, {v(PH+3)}
s_lshl_b32 {s(sO[0])}, {s(sW)}, 7
s_add_u32 {s(sO[0])}, {s(sO[0])}, {s(sSB)}
s_lshl_b32 {s(sO[0])}, {s(sO[0])}, 12
s_lshl_b32 {s(sO[1])}, {s(sM)}, 11
s_add_u32 {s(sO[0])}, {s(sO[0])}, {s(sO[1])}
s_add_u32 {s(sO[1])}, {s(sO[0])}, {1024*4096}
s_mov_b32 {s(sPM)}, 0x05040100
s_mov_b32 {s(sPM+1)}, 0x07060302
""")
A(f"""
v_lshlrev_b32 {v(PH)}, 2, {v(g_)}
v_xor_b32 {v(PH)}, {v(PH)}, {v(c_)}
v_lshlrev_b32 {v(PH)}, 4, {v(PH)}
v_lshl_add_u32 {v(aD3)}, {v(g_)}, 8, {v(PH)}
s_lshl_b32 {s(sMR)}, {s(sM)}, 7
s_add_u32 {s(sMR)}, {s(sMR)}, {s(sRHO)}
s_lshl_b32 {s(sS3)}, {s(sMR)}, 15
s_add_u32 {s(sS3)}, {s(sS3)}, {s(sW12)}
s_add_u32 {s(sS3)}, {s(sS3)}, {T2}
s_cmp_lg_u32 {s(sPH)}, 0
s_cbranch_scc1 L_nosig2
""")
aR0, aR1, aS2, aPr = vT[2], vT[3], vT[4], vT[5]
sD = sT[4:5]
A(f"""
v_bfe_u32 {v(aR0)}, {v(vL)}, 2, 2
v_mul_u32_u24 {v(aR0)}, {OS}, {v(aR0)}
v_lshl_add_u32 {v(aR0)}, {v(g_)}, 6, {v(aR0)}
v_and_b32 {v(aR1)}, 3, {v(vL)}
v_mul_u32_u24 {v(aPr)}, 260, {v(aR1)}
v_add_u32 {v(aPr)}, {PGOFF}, {v(aPr)}
v_lshrrev_b32 {v(aS2)}, 5, {v(vL)}
v_xor_b32 {v(aR1)}, {v(aR1)}, {v(aS2)}
v_lshl_add_u32 {v(aR0)}, {v(aR1)}, 4, {v(aR0)}
s_sub_u32 {s(sT[8])}, 7, {s(sW)}
s_lshl_b32 {s(sT[0])}, {s(sT[8])}, 10
s_add_u32 {s(sT[0])}, {s(sT[0])}, {WOFF}
v_add_u32 {v(aR0)}, {s(sT[0])}, {v(aR0)}
v_xor_b32 {v(aR1)}, 32, {v(aR0)}
v_lshlrev_b32 {v(aS2)}, 15, {v(g_)}
v_lshl_add_u32 {v(aS2)}, {v(c_)}, 4, {v(aS2)}
s_lshl_b32 {s(sD[0])}, {s(sM)}, 22
s_lshl_b32 {s(sT[0])}, {s(sT[8])}, 19
s_add_u32 {s(sD[0])}, {s(sD[0])}, {s(sT[0])}
s_lshl_b32 {s(sT[0])}, {s(sGRP)}, 12
s_add_u32 {s(sD[0])}, {s(sD[0])}, {s(sT[0])}
s_lshl_b32 {s(sT[0])}, {s(sA)}, 8
s_add_u32 {s(sD[0])}, {s(sD[0])}, {s(sT[0])}
s_add_u32 {s(sD[0])}, {s(sD[0])}, {T2}
s_add_u32 {s(sT[0])}, {s(sM8)}, {s(sGRP)}
s_lshl_b32 {s(sT[0])}, {s(sT[0])}, 3
s_add_u32 {s(sT[0])}, {s(sT[0])}, {s(sT[8])}
s_mul_i32 {s(sT[0])}, {s(sT[0])}, {CP}
s_add_u32 {s(sT[0])}, {s(sT[0])}, {C2}
""")
NR = -(-8 // NST)
for i in range(NR):
    if NST*i + NST > 8:
        A(f"s_cmp_ge_u32 {s(sT[8])}, 8")
        A("s_cbranch_scc1 L_short")
    A(f"""
    s_mov_b32 {s(sCNT)}, 0x40000
    L_pg{i}:
    ds_read_b32 {v(vS1)}, {v(aPr)}
    s_sub_u32 {s(sCNT)}, {s(sCNT)}, 1
    s_cbranch_scc1 L_pg{i}_out
    {('s_sleep %d' % OPT['slp']) if i == 0 and OPT['slp'] else ''}
    s_waitcnt lgkmcnt(0)
    v_cmp_ge_u32 vcc, {s(sT[8])}, {v(vS1)}
    s_and_b64 vcc, vcc, vcc
    s_cbranch_scc1 L_pg{i}
    L_pg{i}_out:
    """)
    d = D1R + 16*i
    for j in range(4): A(f"ds_read_b128 {v(d+4*j,4)}, {v(aR1 if j & 1 else aR0)} offset:{i*NST*1024+j*256}")
    A(f"s_add_u32 {s(sT[8])}, {s(sT[8])}, {NST}")
    for j in range(4):
        A(f"s_waitcnt lgkmcnt({3-j})")
        A(f"buffer_store_dwordx4 {v(d+4*j,4)}, {v(aS2)}, {srd(WS_)}, {s(sD[0])} offen sc1")
        A(f"s_add_u32 {s(sD[0])}, {s(sD[0])}, {(4 if j < 3 else 16*NST-12) << 15}")
for i in range(NR):
    A(f"s_waitcnt vmcnt({4*(NR-1-i)})")
    signal(sT[0], NST*i*CP)
if 8 % NST:
    A("s_branch L_nosig2")
    A.label("L_short")
    for i in range(NR-1):
        A(f"s_waitcnt vmcnt({4*(NR-2-i)})")
        signal(sT[0], NST*i*CP)
A.label("L_nosig2")
stamp("fl2")
A("s_barrier")
A(f"s_mov_b32 m0, {s(sW12)}")
poll("L_poll2", sC2, 16, OPT['sl2'])
stamp("pol2")
for j in range(4):
    A(f"buffer_load_dwordx4 {v(aD3)}, {srd(WS_)}, {s(sS3)} offen offset:{j*1024} sc1 lds")
A(f"""
s_cmp_lg_u32 {s(sW)}, 4
s_cbranch_scc1 L_noep
s_cmp_lg_u32 s2, {HOST+1}
s_cbranch_scc1 L_noep
s_mov_b32 {s(sT[4])}, {EW}
s_atomic_swap {s(sTAG)}, {s(WS_,2)}, {s(sT[4])}
s_waitcnt lgkmcnt(0)
L_noep:
""")
GB = [(8, 8), (40, 8), (88, 8), (16, 4), (28, 4)]
GS = [r + i for r, n in GB for i in range(n)]
def granule_loads():
    off = 0
    for r, n in GB:
        A(f"s_load_dwordx{n} {s(r,n)}, {s(WS_,2)}, {s(sT[4])} offset:{off} glc"); off += 4*n
A(f"""
s_cmp_lg_u32 {s(sW)}, 0
s_cbranch_scc1 L_nosp3a
s_lshl_b32 {s(sT[4])}, {s(sMR)}, 7
s_add_u32 {s(sT[4])}, {s(sT[4])}, {T2X}
""")
granule_loads()
A.label("L_nosp3a")
for i in range(16):
    A(f"v_perm_b32 {v(GR+i)}, {v(FN+i//2)}, {v(FC+i//2)}, {s(sPM+(i&1))}")
    A(f"v_perm_b32 {v(GI+i)}, {v(FC+i//2)}, {v(FS+i//2)}, {s(sPM+(i&1))}")
A(f"""
s_cmp_lg_u32 {s(sW)}, 0
s_cbranch_scc1 L_nosp3b
s_mov_b32 {s(sCNT)}, 0x8000
s_branch L_gchk
L_gagain:
s_sub_u32 {s(sCNT)}, {s(sCNT)}, 1
s_cbranch_scc1 L_gok
""")
granule_loads()
A.label("L_gchk")
A("s_waitcnt lgkmcnt(0)")
for i in range(16):
    A(f"s_cmp_lg_u32 {s(GS[2*i+1])}, {s(sTAG)}")
    A("s_cbranch_scc1 L_gagain")
A.label("L_gok")
for h in range(2):
    for g in range(4):
        for q in range(2):
            A(f"v_writelane_b32 {v(TMP+4+2*h+q)}, {s(GS[h*16+g*4+2*q])}, {16*g}")
m16(D2R, M3, TMP+4, None); m16(D2R+4, M3+4, TMP+4, None)
A.label("L_nosp3b")
A("s_waitcnt vmcnt(0)")
stamp("dat2", (1, 3))
for t in (0, 2, 1, 3):
    for jj in range(2):
        A(f"ds_read_b64_tr_b16 {v(XR+4*t+2*jj,2)}, {v(aT[t])} offset:{jj*2048}")
for i, t in enumerate((0, 2, 1, 3)):
    A(f"s_waitcnt lgkmcnt({6-2*i})")
    m16(D1R+8*t, M3, XR+4*t, None); m16(D1R+8*t+4, M3+4, XR+4*t, None)
A(f"""
s_cmp_lg_u32 {s(sW)}, 0
s_cbranch_scc1 L_nofix
s_mov_b32 exec_lo, 0x00010001
s_mov_b32 exec_hi, 0x00010001
""")
for d in (D2R, D1R):
    for mt in range(2):
        for i in range(2):
            A(f"v_add_f32 {v(d+4*mt+i)}, {v(d+4*mt+i)}, {v(d+4*mt+2+i)}")
            A(f"v_mul_f32 {v(d+4*mt+i)}, 0.5, {v(d+4*mt+i)}")
cvt(TMP, D2R, D2R+1); cvt(TMP+1, D2R+4, D2R+5)
A(f"""
ds_write_b32 {v(aPw)}, {v(TMP)} offset:{8*256}
ds_write_b32 {v(aPw)}, {v(TMP+1)} offset:{8*256+4*PS2}
s_mov_b64 exec, -1
L_nofix:
s_nop 1
""")
for tp in range(2):
    for mt in range(2):
        d0 = D1R + 8*tp + 4*mt; d1 = d0 + 16
        o = TMP + 8 + (tp*2+mt)*4
        cvt(o, d0, d0+1); cvt(o+1, d1, d1+1); cvt(o+2, d1+2, d1+3); cvt(o+3, d0+2, d0+3)
for tp in range(2):
    for mt in range(2):
        o = TMP + 8 + (tp*2+mt)*4
        A(f"ds_write_b64 {v(aPw)}, {v(o,2)} offset:{mt*4*PS2+tp*128}")
        if tp == 1:
            A(f"ds_write_b64 {v(aQp)}, {v(o+2,2)} offset:{mt*4*PS2}")
        else:
            A(f"ds_write_b32 {v(aQ1)}, {v(o+2)} offset:{mt*4*PS2}")
            A(f"ds_write_b32 {v(aQ0)}, {v(o+3)} offset:{mt*4*PS2}")
A("s_waitcnt lgkmcnt(0)")
A("s_barrier")
stamp("bar3", (1, 3))
for t in range(4):
    for j in range(2):
        A(f"ds_read_b64 {v(XR+4*t+2*j,2)}, {v(aRd3)} offset:{t*1024+j*256}")
for t in range(4):
    A(f"s_waitcnt lgkmcnt({6-2*t})")
    m32(D1R, XR+4*t, GR+4*t, D1R if t else None)
A("s_nop 4")
weave([M32(D1I, XR+4*t, GI+4*t, D1I if t else None) for t in range(4)], ["s_nop 4"] + TW1(D1R, True), [1, 6, 6, 99])
stamp("m3", (3,))
for t_ in TW2(D1I, XR, XI, True, 0, 8): A(t_)
weave([M32(D2R, XR, FC, None), M32(D2R, XI, FN, D2R), M32(D2I, XR, FS, None), M32(D2I, XI, FC, D2I)], TW2(D1I, XR, XI, True, 8, 16), 6)
weave([M32(D2R, XR+4, FC+4, D2R), M32(D2R, XI+4, FN+4, D2R), M32(D2I, XR+4, FS+4, D2I), M32(D2I, XI+4, FC+4, D2I)], [], 0)
stamp("m4", (3,))
for comp, d in ((0, D2R), (1, D2I)):
    o = TMP + comp*8
    for q in (0, 4, 1, 5, 2, 6, 3, 7): cvt(o+q, d+2*q, d+2*q+1)
    for q in range(4): A(f"v_permlane16_swap_b32 {v(o+q)}, {v(o+4+q)}")
    for j in range(2):
        A(f"buffer_store_dwordx4 {v(o+4*j,4)}, {v(aSo)}, {srd(OUT_)}, {s(sO[comp])} offen offset:{j*1024}{OUTM}")
if OPT['stamp']:
    stamp("st3", (1, 3))
    A("s_waitcnt vmcnt(0)")
    stamp("end")
    A("s_waitcnt lgkmcnt(0)")
    n = len(stamps)
    assert sST + 2*n <= 88, n
    if OPT['diag']:
        da, db = OPT['da'], OPT['db']
        A(f"""
        s_load_dwordx2 s[94:95], s[0:1], 56
        s_and_b32 {s(sT[4])}, s2, 7
        s_lshl_b32 {s(sT[4])}, {s(sT[4])}, 3
        s_not_b32 {s(sT[11])}, {s(sST)}
        s_waitcnt lgkmcnt(0)
        s_cmp_lg_u32 {s(sW)}, {OPT['wa']}
        s_cbranch_scc1 L_dg1
        s_atomic_umax {s(sST+2*da) if da else s(sT[11])}, s[94:95], {s(sT[4])}
        L_dg1:
        s_cmp_lg_u32 {s(sW)}, {OPT['wb']}
        s_cbranch_scc1 L_end
        s_atomic_umax {s(sST+2*db)}, s[94:95], {s(sT[4])} offset:4
        s_cmp_lg_u32 s2, 100
        s_cbranch_scc1 L_end
        s_add_u32 {s(sT[0])}, {s(sST+2*(n-1))}, 500
        L_amp0:
        s_memrealtime {s(sT[2],2)}
        s_waitcnt lgkmcnt(0)
        s_sub_u32 {s(sT[1])}, {s(sT[0])}, {s(sT[2])}
        s_cmp_gt_i32 {s(sT[1])}, 0
        s_cbranch_scc1 L_amp0
        s_load_dwordx16 s[60:75], s[94:95], 0 glc
        s_waitcnt lgkmcnt(0)
        """)
        for i in range(1, 8):
            A(f"s_max_u32 s60, s60, s{60+2*i}")
            A(f"s_max_u32 s61, s61, s{61+2*i}")
        if not da: A("s_not_b32 s60, s60")
        A(f"""
        s_sub_u32 {s(sT[1])}, s61, s60
        s_lshl_b32 {s(sT[1])}, {s(sT[1])}, 4
        s_min_u32 {s(sT[1])}, {s(sT[1])}, 60000
        s_add_u32 {s(sT[0])}, {s(sT[0])}, {s(sT[1])}
        L_amp:
        s_memrealtime {s(sT[2],2)}
        s_waitcnt lgkmcnt(0)
        s_sub_u32 {s(sT[1])}, {s(sT[0])}, {s(sT[2])}
        s_cmp_gt_i32 {s(sT[1])}, 0
        s_cbranch_scc1 L_amp
        s_branch L_end
        """)
    A(f"s_lshl_b32 {s(sT[0])}, s2, 3")
    A(f"s_add_u32 {s(sT[0])}, {s(sT[0])}, {s(sW)}")
    A(f"s_lshl_b32 {s(sT[0])}, {s(sT[0])}, 7")
    A(f"s_add_u32 {s(sT[0])}, {s(sT[0])}, {STAMP}")
    A("v_mov_b32 v3, 0")
    A("s_mov_b64 exec, 1")
    for i in range(n):
        A(f"v_mov_b32 v2, {s(sST+2*i)}")
        A(f"buffer_store_dword v2, v3, {srd(WS_)}, {s(sT[0])} offen offset:{i*4}")
    A.raw("; stamps: " + " ".join(stamps))
A.label("L_end")
A("s_endpgm")
def kd(name, nv, ns):
    A.raw(f""".p2align 6
.amdhsa_kernel {name}
  .amdhsa_next_free_vgpr {nv}
  .amdhsa_next_free_sgpr {ns}
  .amdhsa_accum_offset {nv}
  .amdhsa_group_segment_fixed_size 0
  .amdhsa_kernarg_size 72
  .amdhsa_user_sgpr_count 2
  .amdhsa_user_sgpr_kernarg_segment_ptr 1
  .amdhsa_system_sgpr_workgroup_id_x 1
  .amdhsa_float_denorm_mode_32 3
.end_amdhsa_kernel""")
A.raw('.section .rodata,"a"')
kd(NAME + "_kernel", 256, 102)
if OPT['lst']: kd("empty_kernel", 8, 16)
open(sys.argv[1], "w").write(A.text())
print(sys.argv[1], "nops:", A.nops, "stamps:", len(stamps), file=sys.stderr)
```

```python
import sys, struct
import numpy as np
from asmlib import Asm, v, s

NAME = "concat_heads__spectral_gfnet__spectral_gfnet__prompt"
OPT = dict(outm=1, xnt=0, wnt=0, wsoff=0, tlb=0, diag=0, da=0, db=0, wa=0, wb=0, ne=3, xpf=0, gh=1, xprio=0, slp=2, nst=3, gpos=1, xl=8, stag=2, neb=3, amp=0, ampw=0, stamp=0, sl1=0, sl2=0, lst=0, half=0)
for a_ in sys.argv[2:]:
    k_, v_ = a_.split('='); assert k_ in OPT, k_; OPT[k_] = int(v_)

def fbits(x): return "0x%08x" % struct.unpack('<I', struct.pack('<f', x))[0]
def bf16(x):
    u = np.asarray(x, dtype=np.float32).view(np.uint32)
    return ((u + 0x7FFF + ((u >> 16) & 1)) >> 16).astype(np.uint32)

T1 = 0
T2 = 8 << 20
AUX = 16 << 20
T1X = AUX
T2X = AUX + 0x30000
WX = AUX + 0x8000
CP = 256
C1 = AUX + 0x10000
C2 = AUX + 0x20000
EW = AUX + 0xa0000
STAMP = AUX + 0x100000
WSZ = 18 << 20
EXOFF = 32768
PS = 5184
WOFF = EXOFF + 8 * PS
M2OFF = WOFF + 36864
SYOFF = M2OFF + 32768
PGOFF = SYOFF + 64
T1OFF = PGOFF + 2048
LDSZ = T1OFF + 14336
EX2 = EXOFF
OS = 8320
XOUT = EXOFF + 32768
PS2 = 4160
sW, sM, sRHO, sSB, sA, sGRP = 3, 4, 5, 6, 7, 32
X_, WR_, WI_, OUT_, WS_, TAB_ = 8, 12, 16, 20, 24, 28
sCNT = 33
sT = list(range(34, 48))
sV = 48
sEXP = 50
sTAG = 51
sW12, sM8, sE, sROLE, sC1, sC2 = 52, 53, 54, 55, 56, 57
sPM = 58
sST = 60
sO = [96, 97]
sU = [98, 99, 100, 101]
sONE = sU[2]
srd = lambda b: s(b, 4)

A = Asm()
HOST = 128
NST = OPT['nst']
XNT = ' nt' if OPT['xnt'] else ''
WNT = ' nt' if OPT['wnt'] else ''
OUTM = ['', ' sc1', ' nt', ' sc0 sc1', ' sc1 nt', ' sc0 sc1 nt'][OPT['outm']]
def M32(d, a, b, c): return f"v_mfma_f32_32x32x16_bf16 {v(d,16)}, {v(a,4)}, {v(b,4)}, {v(c,16) if c is not None else 0}"
def M16(d, a, b, c): return f"v_mfma_f32_16x16x32_bf16 {v(d,4)}, {v(a,4)}, {v(b,4)}, {v(c,4) if c is not None else 0}"
def CVT(d, a, b, na=False, nb=False): return f"v_cvt_pk_bf16_f32 {v(d)}, {'-' if na else ''}{v(a)}, {'-' if nb else ''}{v(b)}"
def m32(*a): A(M32(*a))
def m16(*a): A(M16(*a))
def cvt(*a): A(CVT(*a))
def weave(mf, fill, per):
    fill = list(fill)
    for i, m in enumerate(mf):
        A(m)
        n = per[i] if isinstance(per, (list, tuple)) else per
        for _ in range(n):
            if fill: A(fill.pop(0))
    for f in fill: A(f)
stamps = []
def stamp(name, sets=(1,)):
    st = OPT['stamp']
    if name in ("start", "end"):
        if st: A(f"s_memrealtime {s(sST + 2*len(stamps), 2)}"); stamps.append(name)
        if st > 1: A(f"s_memtime {s(sST + 2*len(stamps), 2)}"); stamps.append("c" + name)
    elif st in sets:
        if name not in stamps: stamps.append(name)
        A(f"{'s_memrealtime' if st == 1 else 's_memtime'} {s(sST + 2*stamps.index(name), 2)}")

vL, c_, g_ = 1, 2, 3
vT = list(range(2, 16))
TC, TS = 16, 32
FC, FS, FN = 48, 56, 64
M3 = 72
GR, GI = 80, 96
XR, XI = 112, 120
D1R, D1I = 128, 144
D2R, D2I = 160, 176
TMP = 192
PH = 224
WRF, WIF = 16, 48
FR = 80
DRE, DIM, DNR = 144, 160, 176
ER, EI = 192, 224

def peek(off, imm=0):
    A(f"s_mov_b64 {s(sV,2)}, 0")
    A(f"s_atomic_or_x2 {s(sV,2)}, {s(WS_,2)}, {s(off)} glc" if not imm else f"s_atomic_or_x2 {s(sV,2)}, {s(WS_,2)}, {s(off)} offset:{imm} glc")
def poll(label, off, count, sleep, imm=0, keep=None):
    A(f"s_mov_b32 {s(sEXP)}, {count}")
    A(f"s_mov_b32 {s(sCNT)}, 0x8000")
    A.label(label)
    peek(off, imm)
    A(f"s_sub_u32 {s(sCNT)}, {s(sCNT)}, 1")
    A(f"s_cbranch_scc1 {label}_out")
    if sleep: A(f"s_sleep {sleep}")
    A("s_waitcnt lgkmcnt(0)")
    if keep is not None:
        A(f"s_mov_b32 {s(keep)}, {s(sV)}")
        A(f"s_and_b32 {s(sV)}, {s(sV)}, 0xffff")
    A(f"s_cmp_eq_u64 {s(sV,2)}, {s(sEXP,2)}")
    A(f"s_cbranch_scc0 {label}")
    A.label(label + "_out")
def validate(label, off, imm=0):
    A(f"s_mov_b32 {s(sCNT)}, 0x8000")
    A.label(label)
    A("s_waitcnt lgkmcnt(0)")
    A(f"s_cmp_eq_u32 {s(sV+1)}, {s(sTAG)}")
    A(f"s_cbranch_scc1 {label}_out")
    peek(off, imm)
    A(f"s_sub_u32 {s(sCNT)}, {s(sCNT)}, 1")
    A(f"s_cbranch_scc0 {label}")
    A("s_waitcnt lgkmcnt(0)")
    A.label(label + "_out")
def signal(off, imm=0):
    A(f"s_atomic_add {s(sONE)}, {s(WS_,2)}, {s(off)}" + (f" offset:{imm}" if imm else ""))

vSY, vS1, vPG = vT[12], vT[13], vT[11]
def lds_wait(label, off, val):
    A(f"s_mov_b32 {s(sCNT)}, 0x40000")
    A.label(label)
    A(f"ds_read_b32 {v(vS1)}, {v(vSY)} offset:{off}")
    A(f"s_sub_u32 {s(sCNT)}, {s(sCNT)}, 1")
    A(f"s_cbranch_scc1 {label}_out")
    A("s_waitcnt lgkmcnt(0)")
    A(f"v_cmp_gt_u32 vcc, {val}, {v(vS1)}")
    A("s_and_b64 vcc, vcc, vcc")
    A(f"s_cbranch_scc1 {label}")
    A.label(label + "_out")
def lds_bit(off, sbit):
    A(f"v_mov_b32 {v(vS1)}, {s(sbit)}")
    A("s_mov_b64 exec, 1")
    A(f"ds_or_b32 {v(vSY)}, {v(vS1)} offset:{off}")
    A("s_mov_b64 exec, -1")
def lds_post(off, rtn=False):
    A(f"v_mov_b32 {v(vS1)}, 1")
    A("s_mov_b64 exec, 1")
    if rtn: A(f"ds_add_rtn_u32 {v(vS1)}, {v(vSY)}, {v(vS1)} offset:{off}")
    else: A(f"ds_add_u32 {v(vSY)}, {v(vS1)} offset:{off}")
    A("s_mov_b64 exec, -1")

sWB, sI = sU[0], sU[3]
aWM, aWT = GR + 4, GR + 5
nlab = [0]
def w_piece(e):
    if e < 4:
        A(f"s_add_u32 m0, {s(sT[13])}, {WOFF + e*9216}")
        if e & 1: A(f"s_add_u32 {s(sI)}, {s(sT[12])}, {64*16416}")
        A(f"buffer_load_dwordx4 {v(aWM)}, {srd(WI_ if e >> 1 else WR_)}, {s(sI if e & 1 else sT[12])} offen{WNT} lds")
    else:
        n = nlab[0]; nlab[0] += 1
        A(f"""
        s_mul_i32 {s(sI)}, {s(sW)}, 9216
        s_add_u32 m0, {s(sI)}, {WOFF + 8192}
        s_and_b32 {s(sI)}, {s(sW)}, 1
        s_mul_i32 {s(sI)}, {s(sI)}, {64*16416}
        s_add_u32 {s(sI)}, {s(sI)}, {s(sWB)}
        s_bitcmp1_b32 {s(sW)}, 1
        s_cbranch_scc1 L_t1_{n}
        buffer_load_dwordx4 {v(aWT)}, {srd(WR_)}, {s(sI)} offen{WNT} lds
        s_branch L_t2_{n}
        L_t1_{n}:
        buffer_load_dwordx4 {v(aWT)}, {srd(WI_)}, {s(sI)} offen{WNT} lds
        L_t2_{n}:
        """)
def w_base(sw):
    A(f"s_mul_i32 {s(sT[12])}, {s(sw)}, {7*16416}")
    A(f"s_add_u32 {s(sT[12])}, {s(sT[12])}, {s(sWB)}")
    A(f"s_lshl_b32 {s(sT[13])}, {s(sw)}, 10")

def gen_m2(sW):
    G = D2R
    kf, s0, af, bf, ai, bi, ad = G, G+1, G+2, G+3, G+4, G+5, G+6
    P, C_, S_ = D1R, D1R+16, G+8
    A(f"""
    s_and_b32 {s(sT[12])}, {s(sW)}, 1
    s_lshl_b32 {s(sT[12])}, {s(sT[12])}, 4
    s_lshr_b32 {s(sT[13])}, {s(sW)}, 1
    v_add_u32 {v(kf)}, {s(sT[12])}, {v(c_)}
    v_lshl_add_u32 {v(ai)}, {v(kf)}, 2, {s(sT[13])}
    v_lshl_add_u32 {v(s0)}, {v(g_)}, 4, {s(sT[13])}
    v_mul_u32_u24 {v(bf)}, {v(s0)}, {v(kf)}
    v_mul_u32_u24 {v(bi)}, {v(g_)}, {v(ai)}
    v_cvt_f32_u32 {v(af)}, {v(kf)}
    v_cvt_f32_u32 {v(ai)}, {v(ai)}
    v_cvt_f32_u32 {v(bf)}, {v(bf)}
    v_cvt_f32_u32 {v(bi)}, {v(bi)}
    v_mul_f32 {v(bf)}, {fbits(1/128)}, {v(bf)}
    v_mul_f32 {v(bi)}, {fbits(1/32)}, {v(bi)}
    s_lshl_b32 {s(sT[12])}, {s(sW)}, 11
    s_add_u32 {s(sT[12])}, {s(sT[12])}, {M2OFF}
    v_lshl_add_u32 {v(ad)}, {v(vL)}, 4, {s(sT[12])}
    """)
    for d in range(2):
        for i in range(8):
            c = 16*(i >> 2) + (i & 3)
            A(f"v_fmamk_f32 {v(P+8*d+i)}, {v(ai if d else af)}, {fbits(c/128 if d else c/32)}, {v(bi if d else bf)}")
    for i in range(16):
        A(f"v_cos_f32 {v(C_+i)}, {v(P+i)}")
        A(f"v_sin_f32 {v(S_+i)}, {v(P+i)}")
    for d in range(2):
        for j in range(4):
            cvt(P+8*d+j, C_+8*d+2*j, C_+8*d+2*j+1)
            cvt(P+8*d+4+j, S_+8*d+2*j, S_+8*d+2*j+1)
    for d in range(2):
        for cs in range(2):
            A(f"ds_write_b128 {v(ad)}, {v(P+8*d+4*cs,4)} offset:{d*16384+cs*1024}")

def load_tables(addr):
    for i in (8, 9, 10, 11, 12, 13, 0, 4, 1, 5, 2, 6, 3, 7):
        A(f"ds_read_b128 {v(TC+4*i,4)}, {v(addr)} offset:{i*1024}")

def TW1(dr, conj):
    L = []
    for i in range(16):
        L.append(f"v_mul_f32 {v(TMP+i)}, {v(dr+i)}, {v(TC+i)}")
        L.append(f"v_mul_f32 {v(TMP+16+i)}, {v(dr+i)}, {v(TS+i)}" if conj else f"v_mul_f32_e64 {v(TMP+16+i)}, -{v(dr+i)}, {v(TS+i)}")
    return L
def TW2(di, outr, outi, conj, lo, hi):
    L = []
    for i in range(lo, hi, 2):
        for e in range(2):
            L.append(f"v_fma_f32 {v(TMP+i+e)}, -{v(di+i+e)}, {v(TS+i+e)}, {v(TMP+i+e)}" if conj else f"v_fmac_f32 {v(TMP+i+e)}, {v(di+i+e)}, {v(TS+i+e)}")
            L.append(f"v_fmac_f32 {v(TMP+16+i+e)}, {v(di+i+e)}, {v(TC+i+e)}")
        L.append(CVT(outr + i//2, TMP+i, TMP+i+1))
        L.append(CVT(outi + i//2, TMP+16+i, TMP+16+i+1))
    return L

if OPT['lst'] == 0: A.raw(f"; @launch grid=(256,1,1) block=(512,1,1) lds={LDSZ}")
else:
    A.raw(f"; @launch kernel={NAME}_kernel grid=(256,1,1) block=(512,1,1) lds={LDSZ}")
    A.raw(f"; @launch kernel=empty_kernel grid=(1,1,1) block=(64,1,1) lds=0")
A.raw('.amdgcn_target "amdgcn-amd-amdhsa--gfx950"\n.text')
if OPT['lst']: A.raw(".globl empty_kernel\n.p2align 8\n.type empty_kernel,@function\nempty_kernel:\n s_endpgm")
A.raw(f".globl {NAME}_kernel\n.p2align 8\n.type {NAME}_kernel,@function")
A.label(f"{NAME}_kernel")
aL16 = GR + 1
A(f"""
s_cmp_ge_u32 s2, 256
s_cbranch_scc1 L_end
s_bfe_u32 {s(sM)}, s2, 0x10003
s_mul_i32 {s(sT[0])}, {s(sM)}, 24
s_load_dwordx2 {s(X_,2)}, s[0:1], {s(sT[0])}
s_load_dwordx2 {s(WS_,2)}, s[0:1], 64
s_load_dwordx2 {s(WR_,2)}, s[0:1], {s(sT[0])} offset:8
s_load_dwordx2 {s(WI_,2)}, s[0:1], {s(sT[0])} offset:16
s_load_dwordx2 {s(OUT_,2)}, s[0:1], 48
""")
PF_ = 40
if OPT['xpf']:
    A(f"""
    s_sub_u32 {s(sT[0])}, 24, {s(sT[0])}
    s_load_dwordx2 {s(88,2)}, s[0:1], {s(sT[0])} offset:8
    s_load_dwordx2 {s(92,2)}, s[0:1], {s(sT[0])} offset:16
    """)
stamp("start")
A(f"""
v_lshrrev_b32 v2, 6, v0
v_and_b32 {v(vL)}, 63, v0
s_and_b32 {s(sT[1])}, s2, 7
v_readfirstlane_b32 {s(sW)}, v2
s_lshr_b32 {s(sT[2])}, s2, 4
s_lshl_b32 {s(sRHO)}, {s(sT[1])}, 4
s_add_u32 {s(sRHO)}, {s(sRHO)}, {s(sT[2])}
s_and_b32 {s(sSB)}, {s(sRHO)}, 31
s_lshr_b32 {s(sT[5])}, {s(sRHO)}, 5
s_lshl2_add_u32 {s(sSB)}, {s(sSB)}, {s(sT[5])}
v_lshlrev_b32 {v(aL16)}, 4, {v(vL)}
s_mov_b32 {s(X_+2)}, 4194304
s_mov_b32 {s(X_+3)}, 0x20000
s_lshl_b32 {s(sO[0])}, {s(sW)}, 7
s_add_u32 {s(sO[0])}, {s(sO[0])}, {s(sSB)}
s_lshl_b32 {s(sO[0])}, {s(sO[0])}, 11
s_add_u32 {s(sO[1])}, {s(sO[0])}, 0x200000
s_lshl_b32 {s(sW12)}, {s(sW)}, 12
s_mov_b32 m0, {s(sW12)}
s_getpc_b64 {s(TAB_,2)}
L_pc:
s_mov_b32 {s(TAB_+2)}, L_end-L_pc
s_mov_b32 {s(TAB_+3)}, 0x20000
v_lshlrev_b32 v3, 11, v2
s_lshl_b32 {s(sT[6])}, {s(sT[2])}, 7
buffer_load_dword {v(GR)}, v3, {srd(TAB_)}, {s(sT[6])} offen
s_lshl_b32 {s(sA)}, {s(sT[1])}, 1
""")
if OPT['xpf']:
    A(f"""
    s_lshl3_add_u32 {s(sPM)}, {s(sT[2])}, {s(sW)}
    s_lshl4_add_u32 {s(sPM)}, {s(sPM)}, {s(sA)}
    s_mul_i32 {s(sPM)}, {s(sPM)}, 1026
    v_lshlrev_b32 {v(GR+2)}, 7, {v(vL)}
    v_min_u32 {v(GR+2)}, 2048, {v(GR+2)}
    s_mov_b32 s90, 2101248
    s_mov_b32 s91, 0x20000
    s_mov_b32 s94, 2101248
    s_mov_b32 s95, 0x20000
    """)
A("s_waitcnt lgkmcnt(0)")
stamp("karg", (4,))
sX0, sX1 = sO
XISS = f"""
buffer_load_dwordx4 {v(aL16)}, {srd(X_)}, {s(sX0)} offen{XNT} lds
buffer_load_dwordx4 {v(aL16)}, {srd(X_)}, {s(sX0)} offen offset:1024{XNT} lds
s_add_u32 m0, {s(sW12)}, 2048
buffer_load_dwordx4 {v(aL16)}, {srd(X_)}, {s(sX1)} offen{XNT} lds
buffer_load_dwordx4 {v(aL16)}, {srd(X_)}, {s(sX1)} offen offset:1024{XNT} lds
"""
aPF = GR + 2
sPF = sPM
XPF = f"""
buffer_load_dword {v(GR)}, {v(aPF)}, s[88:91], {s(sPF)} offen
buffer_load_dword {v(GR)}, {v(aPF)}, s[92:95], {s(sPF)} offen
"""
if OPT['xpf']:
    A(f"""
    s_cmp_eq_u32 {s(sM)}, 0
    s_cbranch_scc1 L_nopf
    {XPF}
    s_barrier
    L_nopf:
    """)
if OPT['stag']:
    A(f"s_cmp_lg_u32 {s(sM)}, 0")
    A("s_cbranch_scc1 L_xlate")
A(XISS)
A.label("L_xlate")
stamp("xiss", (4,))
A(f"""
s_lshr_b32 {s(sT[3])}, {s(sW)}, 1
s_and_b32 {s(sT[4])}, {s(sW)}, 1
s_lshl_b32 {s(sT[6])}, {s(sT[3])}, 2
s_add_u32 {s(sT[6])}, {s(sT[6])}, {s(sT[4])}
s_lshl_b32 {s(sT[6])}, {s(sT[6])}, 1
v_lshrrev_b32 {v(PH)}, 5, {v(vL)}
v_and_b32 {v(PH+1)}, 31, {v(vL)}
v_lshl_add_u32 {v(PH)}, {v(PH)}, 2, {s(sT[6])}
v_mul_u32_u24 {v(PH)}, {v(PH)}, {v(PH+1)}
v_add_u32 {v(PH+1)}, {v(PH)}, {v(PH+1)}
v_cvt_f32_u32 {v(PH)}, {v(PH)}
v_cvt_f32_u32 {v(PH+1)}, {v(PH+1)}
v_mul_f32 {v(PH+2)}, {fbits(1/32)}, {v(PH)}
v_mul_f32 {v(PH+3)}, {fbits(1/32)}, {v(PH+1)}
v_cos_f32 {v(PH+8)}, {v(PH+2)}
v_cos_f32 {v(PH+9)}, {v(PH+3)}
v_sin_f32 {v(PH+10)}, {v(PH+2)}
v_sin_f32 {v(PH+11)}, {v(PH+3)}
v_mul_f32 {v(PH)}, {fbits(1/32)}, {v(PH+2)}
v_mul_f32 {v(PH+1)}, {fbits(1/32)}, {v(PH+3)}
v_cos_f32 {v(PH+4)}, {v(PH)}
v_cos_f32 {v(PH+5)}, {v(PH+1)}
v_sin_f32 {v(PH+6)}, {v(PH)}
v_sin_f32 {v(PH+7)}, {v(PH+1)}
{CVT(PH+12, PH+8, PH+9)}
{CVT(PH+13, PH+10, PH+11)}
{CVT(PH+14, PH+10, PH+11, True, True)}
v_add_u32 {v(vS1)}, {T1OFF}, {v(aL16)}
s_lshl_b32 {s(sT[3])}, {s(sT[3])}, 10
s_lshl3_add_u32 {s(sT[3])}, {s(sT[4])}, {s(sT[3])}
v_add_u32 {v(PH)}, {s(sT[3])}, {v(vS1)}
s_lshr_b32 {s(sT[3])}, {s(sW)}, 2
s_lshl_b32 {s(sT[3])}, {s(sT[3])}, 10
s_and_b32 {s(sT[4])}, {s(sW)}, 3
s_lshl2_add_u32 {s(sT[3])}, {s(sT[4])}, {s(sT[3])}
v_add_u32 {v(PH+1)}, {s(sT[3])}, {v(vS1)}
v_mov_b32 {v(vSY)}, {SYOFF}
v_mov_b32 v8, 0
v_mov_b32 v9, 0
v_mov_b32 v10, 0
v_mov_b32 v11, 0
v_lshlrev_b32 {v(vPG)}, 2, v0
v_add_u32 {v(vPG)}, {PGOFF}, {v(vPG)}
ds_write_b64 {v(PH)}, {v(PH+4,2)}
ds_write_b64 {v(PH)}, {v(PH+6,2)} offset:4096
ds_write_b32 {v(PH+1)}, {v(PH+12)} offset:8192
ds_write_b32 {v(PH+1)}, {v(PH+13)} offset:10240
ds_write_b32 {v(PH+1)}, {v(PH+14)} offset:12288
ds_write_b128 {v(vSY)}, v[8:11]
ds_write_b128 {v(vSY)}, v[8:11] offset:16
ds_write_b32 {v(vPG)}, v8
s_add_u32 {s(WS_)}, {s(WS_)}, {OPT['wsoff'] << 20}
s_addc_u32 {s(WS_+1)}, {s(WS_+1)}, 0
s_mov_b32 {s(WS_+2)}, {WSZ}
s_mov_b32 {s(WS_+3)}, 0x20000
s_mov_b32 {s(WR_+2)}, 2101248
s_mov_b32 {s(WR_+3)}, 0x20000
s_mov_b32 {s(WI_+2)}, 2101248
s_mov_b32 {s(WI_+3)}, 0x20000
s_mov_b32 {s(OUT_+2)}, 8388608
s_mov_b32 {s(OUT_+3)}, 0x20000
s_lshl_b32 {s(sM8)}, {s(sM)}, 3
s_mov_b32 {s(sT[6])}, {EW}
s_waitcnt lgkmcnt(0)
s_load_dword {s(sE)}, {s(WS_,2)}, {s(sT[6])}
""")
stamp("tgen", (4,))
A("s_barrier")
stamp("tbar", (4,))
load_tables(vS1)
def late_x():
    A(f"s_cmp_eq_u32 {s(sM)}, 0")
    A("s_cbranch_scc1 L_xdone")
    A(XISS)
    A.label("L_xdone")
if OPT['stag'] == 1: late_x()
stamp("xis2", (4,))
aG = GR + 3
sG = sU[1]
SPW = 3
sX16 = sROLE
A(f"""
s_lshl_b32 {s(sC1)}, {s(sM)}, 4
s_add_u32 {s(sC1)}, {s(sC1)}, {s(sW)}
s_lshl_b32 {s(sC1)}, {s(sC1)}, 2
s_add_u32 {s(sC1)}, {s(sC1)}, {s(sT[5])}
s_mul_i32 {s(sC1)}, {s(sC1)}, {CP}
s_add_u32 {s(sC1)}, {s(sC1)}, {C1}
s_mov_b32 {s(sX16)}, 0x10000
s_add_u32 {s(sC2)}, {s(sM8)}, {s(sW)}
s_lshl_b32 {s(sC2)}, {s(sC2)}, 3
s_add_u32 {s(sC2)}, {s(sC2)}, {s(sT[1])}
s_mul_i32 {s(sC2)}, {s(sC2)}, {CP}
s_add_u32 {s(sC2)}, {s(sC2)}, {C2}
""")
A(f"""
s_lshr_b32 {s(sT[6])}, {s(sT[2])}, 3
s_add_u32 {s(sA)}, {s(sA)}, {s(sT[6])}
s_and_b32 {s(sGRP)}, {s(sT[2])}, 7
v_and_b32 {v(c_)}, 15, {v(vL)}
v_lshrrev_b32 {v(g_)}, 4, {v(vL)}
v_lshrrev_b32 v9, 2, {v(c_)}
v_and_b32 v10, 1, {v(c_)}
v_lshl_add_u32 v9, v9, 1, v10
v_and_b32 v10, 2, {v(c_)}
v_lshl_add_u32 v9, v10, 2, v9
v_mul_u32_u24 {v(aG)}, 1026, v9
s_mul_i32 {s(sG)}, {s(sRHO)}, 16416
""")
A(f"""
v_lshrrev_b32 {v(PH)}, 1, {v(c_)}
v_and_b32 {v(PH+1)}, 1, {v(PH)}
s_bfe_u32 {s(sT[0])}, {s(sRHO)}, 0x10002
v_and_b32 {v(PH+2)}, 1, {v(c_)}
v_xor_b32 {v(PH+2)}, {s(sT[0])}, {v(PH+2)}
v_sub_u32 {v(PH+2)}, {v(PH+2)}, {v(PH+1)}
v_cvt_f32_i32 {v(PH+2)}, {v(PH+2)}
v_mov_b32 {v(PH+3)}, {fbits(0.125)}
v_fmamk_f32 {v(PH+2)}, {v(PH+2)}, {fbits(0.25)}, {v(PH+3)}
v_mul_u32_u24 {v(PH+1)}, 0x8000, {v(PH+1)}
v_lshl_or_b32 {v(PH+1)}, {v(PH+1)}, 16, {v(PH+1)}
v_cvt_f32_u32 {v(PH)}, {v(PH)}
v_add_f32 {v(PH+3)}, {fbits(8.0)}, {v(PH)}
v_lshl_add_u32 {v(PH+4)}, {v(g_)}, 8, {s(sSB)}
v_cvt_f32_u32 {v(PH+4)}, {v(PH+4)}
v_mul_f32 {v(PH+4)}, {fbits(1/2048)}, {v(PH+4)}
v_add_f32 {v(PH+5)}, {fbits(1/16)}, {v(PH+4)}
""")
for mt in range(2):
    for e in range(2):
        t = PH + 8 + (mt*2+e)*3
        A(f"v_fma_f32 {v(t)}, {v(PH+4+e)}, {v(PH if mt == 0 else PH+3)}, {v(PH+2)}")
        A(f"v_cos_f32 {v(t+1)}, {v(t)}")
        A(f"v_sin_f32 {v(t+2)}, {v(t)}")
for mt in range(2):
    for e in range(2):
        t = PH + 8 + (mt*2+e)*3
        cvt(M3 + mt*4 + 2*e, t+1, t+2)
        cvt(M3 + mt*4 + 2*e + 1, t+2, t+1)
        A(f"v_xor_b32 {v(M3 + mt*4 + 2*e + 1)}, {v(PH+1)}, {v(M3 + mt*4 + 2*e + 1)}")
if OPT['stag'] == 2: late_x()
aTR, aP, aQe, aQo, aRD, aST = vT[2:8]
sS1 = sT[8:12]
A(f"""
v_bfe_u32 {v(PH)}, {v(vL)}, 2, 2
v_lshrrev_b32 {v(PH+1)}, 5, {v(vL)}
v_lshl_add_u32 {v(PH)}, {v(PH+1)}, 2, {v(PH)}
v_lshlrev_b32 {v(PH)}, 6, {v(PH)}
v_and_b32 {v(PH+2)}, 16, {v(vL)}
v_lshl_add_u32 {v(PH)}, {v(PH+2)}, 1, {v(PH)}
v_and_b32 {v(PH+2)}, 3, {v(vL)}
v_lshl_add_u32 {v(PH)}, {v(PH+2)}, 3, {v(PH)}
v_add_u32 {v(aTR)}, {s(sW12)}, {v(PH)}
s_mul_i32 {s(sT[0])}, {s(sW)}, {PS}
s_add_u32 {s(sT[0])}, {s(sT[0])}, {EXOFF}
v_and_b32 {v(PH+3)}, 31, {v(vL)}
v_mul_u32_u24 {v(PH+4)}, 20, {v(PH+2)}
v_lshrrev_b32 {v(PH+5)}, 2, {v(PH+3)}
v_mul_u32_u24 {v(PH+6)}, 160, {v(PH+1)}
v_add3_u32 {v(PH+4)}, {v(PH+4)}, {v(PH+5)}, {v(PH+6)}
v_lshl_add_u32 {v(aP)}, {v(PH+4)}, 3, {s(sT[0])}
v_sub_u32 {v(PH+3)}, 32, {v(PH+3)}
v_and_b32 {v(PH+4)}, 3, {v(PH+3)}
v_mul_u32_u24 {v(PH+4)}, 20, {v(PH+4)}
v_lshrrev_b32 {v(PH+5)}, 2, {v(PH+3)}
v_sub_u32 {v(PH+6)}, 160, {v(PH+6)}
v_add3_u32 {v(PH+4)}, {v(PH+4)}, {v(PH+5)}, {v(PH+6)}
v_lshl_add_u32 {v(aQe)}, {v(PH+4)}, 3, {s(sT[0])}
v_and_b32 {v(PH+3)}, 32, {v(PH+3)}
v_lshl_add_u32 {v(aQo)}, {v(PH+3)}, 4, {v(aQe)}
s_mul_i32 {s(sT[0])}, {s(sW)}, 640
s_add_u32 {s(sT[0])}, {s(sT[0])}, {EXOFF}
v_mul_u32_u24 {v(PH)}, {2*PS}, {v(g_)}
v_lshl_add_u32 {v(PH)}, {v(c_)}, 3, {v(PH)}
v_add_u32 {v(aRD)}, {s(sT[0])}, {v(PH)}
v_lshlrev_b32 {v(PH)}, 19, {v(g_)}
v_lshl_add_u32 {v(aST)}, {v(c_)}, 4, {v(PH)}
s_lshl_b32 {s(sS1[0])}, {s(sM)}, 22
s_lshl_b32 {s(sT[0])}, {s(sW)}, 15
s_add_u32 {s(sS1[0])}, {s(sS1[0])}, {s(sT[0])}
s_lshl_b32 {s(sT[0])}, {s(sRHO)}, 8
s_add_u32 {s(sS1[0])}, {s(sS1[0])}, {s(sT[0])}
s_add_u32 {s(sS1[1])}, {s(sS1[0])}, {1<<18}
s_add_u32 {s(sS1[2])}, {s(sS1[0])}, {8<<18}
s_add_u32 {s(sS1[3])}, {s(sS1[0])}, {9<<18}
s_mul_i32 {s(sWB)}, {s(sA)}, 1026
s_lshl_b32 {s(sT[0])}, {s(sGRP)}, 7
s_add_u32 {s(sWB)}, {s(sWB)}, {s(sT[0])}
s_andn2_b32 {s(sWB)}, {s(sWB)}, 15
""")
if OPT['stag'] == 3: late_x()
A(f"""
v_add_u32 {v(PH)}, {s(sW)}, {v(vL)}
v_mul_u32_u24 {v(PH+1)}, 57, {v(PH)}
v_lshrrev_b32 {v(PH+1)}, 9, {v(PH+1)}
v_mul_u32_u24 {v(PH+1)}, {16416-144}, {v(PH+1)}
v_lshl_add_u32 {v(aWM)}, {v(PH)}, 4, {v(PH+1)}
v_add_u32 {v(PH)}, 8, {v(vL)}
v_mul_u32_u24 {v(PH+1)}, 57, {v(PH)}
v_lshrrev_b32 {v(PH+1)}, 9, {v(PH+1)}
v_mul_u32_u24 {v(PH+1)}, {16416-144}, {v(PH+1)}
v_lshl_add_u32 {v(aWT)}, {v(PH)}, 4, {v(PH+1)}
v_add_u32 {v(aWT)}, {56*16416}, {v(aWT)}
s_mov_b32 {s(sEXP)}, 0
s_mov_b32 {s(sONE)}, 1
s_and_b32 {s(sT[1])}, {s(sRHO)}, 15
s_cbranch_scc1 L_noinit
s_waitcnt lgkmcnt(0)
s_mul_i32 {s(sTAG)}, {s(sE)}, 0x9E3779B1
s_add_u32 {s(sTAG)}, {s(sTAG)}, 0x7F4A7C15
s_atomic_swap_x2 {s(sEXP,2)}, {s(WS_,2)}, {s(sC2)}
s_and_b32 {s(sT[1])}, {s(sRHO)}, 31
s_cbranch_scc1 L_noinit
s_atomic_swap_x2 {s(sEXP,2)}, {s(WS_,2)}, {s(sC1)}
L_noinit:
""")
NE = OPT['ne']
A(f"""
s_cmp_lg_u32 {s(sW)}, {SPW}
s_cbranch_scc1 L_nogather
buffer_load_ushort v11, {v(aG)}, {srd(WR_)}, {s(sG)} offen offset:1024
buffer_load_ushort v12, {v(aG)}, {srd(WI_)}, {s(sG)} offen offset:1024
L_nogather:
""")
stamp('setup', (4,))
NEB = OPT['neb']
if OPT['stag'] in (2, 3): A("s_barrier")
NTL = 0
if OPT['tlb']:
    NTL = 2
    if OPT['tlb'] == 1:
        A(f"""
        v_mul_u32_u24 {v(PH)}, {18*16384}, {v(vL)}
        v_lshlrev_b32 {v(PH+1)}, 17, {v(vL)}
        s_lshr_b32 {s(sT[0])}, s2, 4
        s_lshl4_add_u32 {s(sT[0])}, {s(sW)}, {s(sT[0])}
        s_cmp_eq_u32 {s(sT[0])}, 1
        s_cselect_b64 exec, -1, 1
        """)
    else:
        A(f"""
        v_lshlrev_b32 {v(PH)}, 21, {v(vL)}
        v_mov_b32 {v(PH+1)}, {v(PH)}
        s_cmp_eq_u32 {s(sW)}, 0
        s_cselect_b64 exec, 0x1ff, 1
        """)
    A(f"""
    buffer_load_dword {v(GR)}, {v(PH)}, {srd(WS_)}, 0 offen
    buffer_load_dword {v(GR)}, {v(PH+1)}, {srd(OUT_)}, 0 offen
    s_mov_b64 exec, -1
    """)
w_base(sW)
for e in range(max(NE, NEB)):
    if e == min(NE, NEB):
        A(f"s_cmp_eq_u32 {s(sM)}, {0 if NE < NEB else 1}")
        A("s_cbranch_scc1 L_noearly")
    w_piece(e)
A.label("L_noearly")
NEA = NE
if OPT['xpf'] == 2:
    NEA = NE + 2
    A(f"""
    s_cmp_lg_u32 {s(sM)}, 0
    s_cbranch_scc1 L_nopf2
    {XPF}
    L_nopf2:
    """)
def wait_m(lbl, add):
    lo, hi = min(NEA, NEB) + NTL, max(NEA, NEB) + NTL
    A(f"s_waitcnt vmcnt({hi+add})")
    if lo != hi:
        A(f"s_cmp_eq_u32 {s(sM)}, {0 if NEA > NEB else 1}")
        A(f"s_cbranch_scc1 {lbl}")
        A(f"s_waitcnt vmcnt({lo+add})")
        A.label(lbl)
stamp("wiss", (4,))
wait_m("L_wm0", 2)
A(f"""
s_cmp_eq_u32 {s(sW)}, {SPW}
s_cbranch_scc1 L_xw1
""")
wait_m("L_wm1", 0)
A.label("L_xw1")
stamp("x", (1, 2, 4))
for comp, dst in ((0, XR), (1, XI)):
    for t in range(2):
        for j in range(2):
            A(f"ds_read_b64_tr_b16 {v(dst+4*t+2*j,2)}, {v(aTR)} offset:{comp*2048+t*1024+j*512}")
A("s_waitcnt lgkmcnt(0)")
stamp("tr", (2, 4))
weave([M32(D1R, XR, FC, None), M32(D1R, XR+4, FC+4, D1R), M32(D1R, XI, FS, D1R), M32(D1R, XI+4, FS+4, D1R), M32(D1I, XR, FN, None)],
      [f"s_mul_i32 {s(sTAG)}, {s(sE)}, 0x9E3779B1", f"s_add_u32 {s(sTAG)}, {s(sTAG)}, 0x7F4A7C15", "s_nop 4", "s_nop 4"], [2, 0, 0, 1, 1])
weave([M32(D1I, XR+4, FN+4, D1I), M32(D1I, XI, FC, D1I), M32(D1I, XI+4, FC+4, D1I)], TW1(D1R, False), [6, 6, 99])
stamp("m1", (2,))
for t_ in TW2(D1I, XR, XI, False, 0, 8): A(t_)
stamp("tw", (2,))
weave([M32(D2R, FC, XR, None), M32(D2I, FN, XR, None), M32(D2R, FS, XI, D2R), M32(D2I, FC, XI, D2I)], TW2(D1I, XR, XI, False, 8, 16), 6)
weave([M32(D2R, FC+4, XR+4, D2R), M32(D2I, FN+4, XR+4, D2I), M32(D2R, FS+4, XI+4, D2R), M32(D2I, FC+4, XI+4, D2I)], [], 0)
stamp("m2", (2,))
for i in range(16):
    cvt(TMP+i, D2R+i, D2I+i)
stamp("cv", (2,))
for i in range(16):
    kd2 = 8*(i >> 2) + (i & 3)
    if i < 8:
        A(f"ds_write_b32 {v(aP)}, {v(TMP+i)} offset:{(80*(kd2>>1)+8*(kd2&1))*8}")
    else:
        e = 31 - kd2 - 4
        A(f"ds_write_b32 {v(aQo if e & 1 else aQe)}, {v(TMP+i)} offset:{(80*(e>>1)+8*(e&1))*8+4}")
A(f"""
s_mov_b64 exec, 1
ds_write_b32 {v(aP)}, {v(TMP)} offset:4
ds_write_b32 {v(aP)}, {v(TMP+8)} offset:{640*8}
s_mov_b64 exec, -1
""")
stamp("wr", (2,))
A("s_waitcnt lgkmcnt(0)")
stamp("wrd", (2,))
A("s_barrier")
stamp("bar1", (1, 2, 4))
A(f"""
s_cmp_lg_u32 {s(sW)}, {SPW}
s_cbranch_scc1 L_nosp1
v_mul_u32_u24 {v(PH)}, {2*PS}, {v(g_)}
ds_read_b64 {v(XR,2)}, {v(PH)} offset:{EXOFF+640*8}
ds_read_b64 {v(XR+2,2)}, {v(PH)} offset:{EXOFF+640*8+PS}
s_lshl_b32 {s(sT[0])}, {s(sM)}, 13
s_lshl_b32 {s(sT[1])}, {s(sRHO)}, 6
s_add_u32 {s(sT[0])}, {s(sT[0])}, {s(sT[1])}
s_add_u32 {s(sT[1])}, {s(sT[0])}, {WX}
s_add_u32 {s(sT[0])}, {s(sT[0])}, {T1X}
v_lshlrev_b32 {v(PH+1)}, 2, {v(vL)}
v_lshlrev_b32 {v(PH+2)}, 4, {v(g_)}
""")
wait_m("L_wm2", 0)
A(f"""
v_lshl_or_b32 v11, v12, 16, v11
s_mov_b64 exec, 0xffff
buffer_store_dword v11, {v(PH+1)}, {srd(WS_)}, {s(sT[1])} offen sc1
s_mov_b64 exec, -1
s_waitcnt lgkmcnt(0)
""")
m16(D1R, M3, XR, None); m16(D1R+4, M3+4, XR, None)
cvt(TMP, D1R, D1R+2); cvt(TMP+1, D1R+4, D1R+6); cvt(TMP+2, D1R+1, D1R+3); cvt(TMP+3, D1R+5, D1R+7)
A(f"""
s_mov_b32 exec_lo, 0x00010001
s_mov_b32 exec_hi, 0x00010001
buffer_store_dwordx4 {v(TMP,4)}, {v(PH+2)}, {srd(WS_)}, {s(sT[0])} offen sc1
s_mov_b64 exec, -1
L_nosp1:
""")
for t in range(4):
    for jj in range(2):
        A(f"ds_read_b64 {v(XR+4*t+2*jj,2)}, {v(aRD)} offset:{160*t+PS*jj}")
for t in range(4):
    A(f"s_waitcnt lgkmcnt({6-2*t})")
    m16(D1R+8*t, M3, XR+4*t, None)
peek(sC1)
for t in range(4):
    m16(D1R+8*t+4, M3+4, XR+4*t, None)
for mt in range(2):
    for al in range(2):
        o = TMP + 4 + (mt*2+al)*4
        d = D1R + 4*mt + 2*al
        cvt(o, d, d+8); cvt(o+2, d+1, d+9); cvt(o+1, d+16, d+24); cvt(o+3, d+17, d+25)
    for al in range(2):
        o = TMP + 4 + (mt*2+al)*4
        A(f"buffer_store_dwordx4 {v(o,4)}, {v(aST)}, {srd(WS_)}, {s(sS1[mt*2+al])} offen sc1")
stamp("st1", (2,))
sPH = sE
A(f"""
s_barrier
""")
A(f"s_mov_b32 {s(sPH)}, 1")
GH = OPT['gh']
if GH:
    A(f"""
    s_cmp_lt_u32 {s(sW)}, 4
    s_cbranch_scc1 L_nogen
    s_sub_u32 {s(sI)}, {s(sW)}, {4 if GH == 2 else 0}
    L_gen:
    """)
    gen_m2(sI)
    if GH == 2:
        A(f"""
        s_add_u32 {s(sI)}, {s(sI)}, 4
        s_cmp_lt_u32 {s(sI)}, 8
        s_cbranch_scc1 L_gen
        """)
    lds_post(12)
    if GH == 1:
        A(f"s_cmp_lt_u32 {s(sW)}, 4")
        A("s_cbranch_scc1 L_genret")
    A.label("L_nogen")
validate("L_val1", sC1)
A(f"""
s_cmp_lg_u32 {s(sW)}, {SPW}
s_cbranch_scc1 L_nosp2
s_waitcnt vmcnt(4)
s_atomic_add {s(sX16)}, {s(WS_,2)}, {s(sC1)}
L_nosp2:
s_waitcnt vmcnt(0)
""")
signal(sC1)
stamp("fl1")
aW, aF, aRe, aIm, aO, aD = vT[2:8]
sFA, sFB, sFC, sDST, sOI, sDONE, sNEW, sMK = sT[4:12]
A(f"""
s_cmp_ge_u32 {s(sW)}, 4
s_cbranch_scc1 L_helper
""")
assert max(NE, NEB) < 5
w_piece(4)
w_base(sW)
for hh in range(2):
    for e in range(3, min(NE, NEB) - 1, -1):
        if e == max(NE, NEB) - 1:
            A(f"s_cmp_eq_u32 {s(sM)}, {1 if NE < NEB else 0}")
            A(f"s_cbranch_scc1 L_nolate{hh}")
        w_piece(e)
    A.label(f"L_nolate{hh}")
    if hh == 0:
        A(f"""
        v_add_u32 {v(PH)}, {s(sW)}, {v(vL)}
        v_add_u32 {v(PH)}, 4, {v(PH)}
        v_mul_u32_u24 {v(PH+1)}, 57, {v(PH)}
        v_lshrrev_b32 {v(PH+1)}, 9, {v(PH+1)}
        v_mul_u32_u24 {v(PH+1)}, {16416-144}, {v(PH+1)}
        v_lshl_add_u32 {v(aWM)}, {v(PH)}, 4, {v(PH+1)}
        s_add_u32 {s(sT[12])}, {s(sT[12])}, {28*16416}
        s_add_u32 {s(sT[13])}, {s(sT[13])}, 4096
        """)
if GH == 1:
    A(f"s_mov_b32 {s(sI)}, {s(sW)}")
    A("s_branch L_gen")
    A.label("L_genret")
if GH == 0:
    A(f"s_mov_b32 {s(sI)}, {s(sW)}")
    A.label("L_gen")
    gen_m2(sI)
    A(f"""
    s_add_u32 {s(sI)}, {s(sI)}, 4
    s_cmp_lt_u32 {s(sI)}, 8
    s_cbranch_scc1 L_gen
    """)
    lds_post(12)
A(f"""
s_mov_b32 {s(sFA)}, 0
s_and_b32 {s(sFC)}, {s(sA)}, 7
s_mov_b32 {s(sFB)}, 0
s_mul_i32 {s(sOI)}, {s(sW)}, {OS}
s_add_u32 {s(sOI)}, {s(sOI)}, {WOFF}
v_lshrrev_b32 {v(aRe)}, 2, {v(vL)}
v_and_b32 {v(aF)}, 3, {v(aRe)}
v_xor_b32 {v(aF)}, {s(sW)}, {v(aF)}
v_lshlrev_b32 {v(aRe)}, 8, {v(aRe)}
v_lshl_add_u32 {v(aRe)}, {v(aF)}, 6, {v(aRe)}
v_and_b32 {v(aF)}, 3, {v(vL)}
v_lshl_add_u32 {v(aRe)}, {v(aF)}, 4, {v(aRe)}
s_lshl_b32 {s(sT[0])}, {s(sW)}, 5
s_add_u32 {s(sT[0])}, {s(sT[0])}, {WOFF}
v_min_u32 {v(aW)}, 2, {v(g_)}
v_mul_u32_u24 {v(aF)}, 144, {v(c_)}
v_lshl_add_u32 {v(aW)}, {v(aW)}, 4, {v(aF)}
v_add_u32 {v(aW)}, {s(sT[0])}, {v(aW)}
""")
A.label("L_p2common")
A(f"v_lshlrev_b32 {v(aF)}, 4, {v(vL)}")
A(f"v_add_u32 {v(aF)}, {M2OFF}, {v(aF)}")
SEL = DNR
A(f"""
v_lshlrev_b32 {v(DIM)}, {s(sFA)}, {v(c_)}
v_lshlrev_b32 {v(DIM+1)}, 3, {v(g_)}
v_sub_u32 {v(DIM)}, {v(DIM)}, {v(DIM+1)}
v_add_u32 {v(DIM)}, {s(sFC)}, {v(DIM)}
v_add_u32 {v(DIM+1)}, {s(sFB)}, {v(DIM)}
v_mov_b32 {v(DIM+4)}, 0x3500
""")
for q in range(2):
    A(f"v_and_b32 {v(DIM+2)}, 1, {v(DIM+q)}")
    A(f"v_lshlrev_b32 {v(DIM+2)}, 4, {v(DIM+2)}")
    A(f"v_lshlrev_b32 {v(DIM+2)}, {v(DIM+2)}, {v(DIM+4)}")
    A(f"v_ashrrev_i32 {v(DIM+3)}, 1, {v(DIM+q)}")
    for j in range(4):
        A(f"v_cmp_eq_u32 vcc, {j}, {v(DIM+3)}")
        A(f"v_cndmask_b32 {v(SEL+4*q+j)}, 0, {v(DIM+2)}, vcc")
A(f"""
v_and_b32 {v(aIm)}, 1, {v(g_)}
v_lshl_add_u32 {v(aRe)}, {v(aIm)}, 3, {v(aRe)}
v_xor_b32 {v(aIm)}, 8, {v(aRe)}
v_bfe_u32 {v(aO)}, {v(vL)}, 1, 2
v_xor_b32 {v(aO)}, {v(aO)}, {v(g_)}
v_lshlrev_b32 {v(aO)}, 4, {v(aO)}
v_lshl_add_u32 {v(aO)}, {v(c_)}, 6, {v(aO)}
v_add_u32 {v(aO)}, {s(sOI)}, {v(aO)}
v_mov_b32 {v(vT[9])}, 1
s_mov_b32 {s(sT[0])}, 0x80008000
s_mov_b32 {s(sDONE)}, 0
""")
if OPT['gpos'] == 1: lds_wait("L_fr", 12, 8 if GH == 1 else 4)
for f in range(16):
    A(f"ds_read_b128 {v(FR+4*f,4)}, {v(aF)} offset:{f*1024}")
A(f"""
s_waitcnt vmcnt(0)
s_cmp_lt_u32 {s(sW)}, 4
s_cbranch_scc1 L_wreg
""")
for t in range(8):
    m16(WRF+4*t, ER+4*t, SEL, None); m16(WIF+4*t, ER+4*t, SEL+4, None)
A(f"s_movk_i32 {s(sMK)}, 0xff")
A("s_branch L_dspx")
A.label("L_wreg")
lds_post(0)

lds_wait("L_wr", 0, 8)
for t in range(16):
    if t == 12: A("s_waitcnt lgkmcnt(8)")
    A(f"ds_read_b128 {v(ER+4*t,4)}, {v(aW)} offset:{t*2304}")
A(f"s_lshl_b32 {s(sMK)}, 16, {s(sW)}")
lds_bit(4, sMK)
for t in range(16):
    if t >= 4: A(f"s_waitcnt lgkmcnt({16-t})")
    m16(WRF+4*t, ER+4*t, SEL, None)
stamp("wcv", (1,))
A(f"""
s_mov_b32 {s(sCNT)}, 0x40000
L_dsp:
ds_read_b32 {v(vS1)}, {v(vSY)} offset:4
s_sub_u32 {s(sCNT)}, {s(sCNT)}, 1
s_cbranch_scc1 L_fwd_done
s_waitcnt lgkmcnt(0)
v_readfirstlane_b32 {s(sMK)}, {v(vS1)}
L_dspx:
s_andn2_b32 {s(sNEW)}, {s(sMK)}, {s(sDONE)}
s_cbranch_scc0 L_dsp
""")
stamp("dat1", (1, 3))
for u in range(4):
    A(f"s_bitcmp1_b32 {s(sNEW)}, {u}")
    A(f"s_cbranch_scc0 L_nr{u}")
    for j in range(2): A(f"ds_read_b64_tr_b16 {v(DRE+4*u+2*j,2)}, {v(aRe)} offset:{u*8192+j*4096}")
    for j in range(2): A(f"ds_read_b64_tr_b16 {v(DIM+4*u+2*j,2)}, {v(aIm)} offset:{u*8192+j*4096}")
    A.label(f"L_nr{u}")
A(f"s_or_b32 {s(sDONE)}, {s(sDONE)}, {s(sNEW)}")
A("s_waitcnt lgkmcnt(0)")
for u in range(4):
    A(f"s_bitcmp1_b32 {s(sNEW)}, {u}")
    A(f"s_cbranch_scc0 L_nm{u}")
    fc = lambda mt: FR + (u*4 + mt*2) * 4
    fs = lambda mt: FR + (u*4 + mt*2 + 1) * 4
    e = lambda mt: (u*2 + mt) * 4
    weave([M16(ER+e(0), fc(0), DRE+4*u, None), M16(ER+e(1), fc(1), DRE+4*u, None),
           M16(EI+e(0), fc(0), DIM+4*u, None), M16(EI+e(1), fc(1), DIM+4*u, None),
           M16(ER+e(0), fs(0), DIM+4*u, ER+e(0)), M16(ER+e(1), fs(1), DIM+4*u, ER+e(1)),
           M16(EI+e(0), fs(0), DNR+4*u, EI+e(0)), M16(EI+e(1), fs(1), DNR+4*u, EI+e(1))],
          [f"v_xor_b32 {v(DNR+4*u+j)}, {s(sT[0])}, {v(DRE+4*u+j)}" for j in range(4)], 2)
    for f in range(4*u, 4*u+4): A(f"ds_read_b128 {v(FR+4*f,4)}, {v(aF)} offset:{16384+f*1024}")
    A.label(f"L_nm{u}")
A(f"""
s_cmp_lg_u32 {s(sDONE)}, 0xff
s_cbranch_scc1 L_dsp
L_fwd_done:
""")
stamp("fwd", (3,))
A("s_nop 1")
TT = DNR
def pk(op, d, a, b, c=None, na=False, nb=False):
    ops = f"{v(d,2)}, {v(a,2)}, {v(b,2)}" + (f", {v(c,2)}" if c is not None else "")
    n = [int(na), int(nb)] + ([0] if c is not None else [])
    mod = f" neg_lo:{n} neg_hi:{n}".replace(", ", ",") if (na or nb) else ""
    A(f"v_pk_{op}_f32 {ops}{mod}")
add = lambda d, a, b: pk("add", d, a, b)
sub = lambda d, a, b: pk("add", d, a, b, nb=True)
A.raw(".p2align 3")
for mt in range(2):
    for rp in range(2):
        er = lambda u: ER + (u*2+mt)*4 + 2*rp
        ei = lambda u: EI + (u*2+mt)*4 + 2*rp
        wr = lambda q: WRF + (q*2+mt)*4 + 2*rp
        wi = lambda q: WIF + (q*2+mt)*4 + 2*rp
        tr = lambda i: TT + 4*i
        ti = lambda i: TT + 4*i + 2
        add(tr(0), er(0), er(2)); add(ti(0), ei(0), ei(2)); sub(tr(1), er(0), er(2)); sub(ti(1), ei(0), ei(2))
        add(tr(2), er(1), er(3)); add(ti(2), ei(1), ei(3)); sub(tr(3), er(1), er(3)); sub(ti(3), ei(1), ei(3))
        add(er(0), tr(0), tr(2)); add(ei(0), ti(0), ti(2)); sub(er(2), tr(0), tr(2)); sub(ei(2), ti(0), ti(2))
        add(er(1), tr(1), ti(3)); sub(ei(1), ti(1), tr(3)); sub(er(3), tr(1), ti(3)); add(ei(3), ti(1), tr(3))
        for q in range(4):
            pk("mul", tr(q), er(q), wr(q)); pk("mul", ti(q), er(q), wi(q))
        for q in range(4):
            pk("fma", tr(q), ei(q), wi(q), tr(q), na=True); pk("fma", ti(q), ei(q), wr(q), ti(q))
        add(wr(0), tr(0), tr(2)); add(wi(0), ti(0), ti(2)); sub(wr(1), tr(0), tr(2)); sub(wi(1), ti(0), ti(2))
        add(wr(2), tr(1), tr(3)); add(wi(2), ti(1), ti(3)); sub(wr(3), tr(1), tr(3)); sub(wi(3), ti(1), ti(3))
        add(er(0), wr(0), wr(2)); add(ei(0), wi(0), wi(2)); sub(er(2), wr(0), wr(2)); sub(ei(2), wi(0), wi(2))
        sub(er(1), wr(1), wi(3)); add(ei(1), wi(1), wr(3)); add(er(3), wr(1), wi(3)); sub(ei(3), wi(1), wr(3))
def OPS(u):
    L = [CVT(DRE+4*u+j, ER+8*u+2*j, ER+8*u+2*j+1) for j in range(4)]
    L += [CVT(DIM+4*u+j, EI+8*u+2*j, EI+8*u+2*j+1) for j in range(4)]
    L += [CVT(DNR+4*u+j, EI+8*u+2*j, EI+8*u+2*j+1, True, True) for j in range(4)]
    return L
def INV(k):
    e = k*4; o = WRF + e
    return [CVT(o, ER+e, ER+e+1), CVT(o+1, ER+e+2, ER+e+3), CVT(o+2, EI+e, EI+e+1), CVT(o+3, EI+e+2, EI+e+3),
            f"ds_write_b128 {v(aO)}, {v(o,4)} offset:{k*1024}", f"ds_add_u32 {v(vPG)}, {v(vT[9])}"]
for t_ in OPS(0): A(t_)
A("s_waitcnt lgkmcnt(0)")
stamp("mid", (3,))
for k in range(8):
    u, nt = k >> 1, k & 1
    fc, fs, e = FR + (u*4 + nt*2) * 4, FR + (u*4 + nt*2 + 1) * 4, k * 4
    ops = OPS(u+1)[6*nt:6*nt+6] if u < 3 else []
    out = INV(k-1) if k >= 1 else []
    fill = ops + out
    weave([M16(ER+e, DRE+4*u, fc, None), M16(EI+e, DIM+4*u, fc, None), M16(ER+e, DNR+4*u, fs, ER+e), M16(EI+e, DRE+4*u, fs, EI+e)],
          fill, [3, 3, 2, 4] if ops and out else ([2, 2, 2, 0] if ops else [0, 0, 0, 6]))
stamp("inv", (3,))
for t_ in INV(7): A(t_)
stamp("cmp2", (1, 3))
A(f"""
s_cmp_lt_u32 {s(sW)}, 4
s_cbranch_scc1 L_setup3
""")
A(f"""
v_lshlrev_b32 {v(aO)}, 7, {v(c_)}
v_lshl_add_u32 {v(aO)}, {v(g_)}, 4, {v(aO)}
""")
for i in range(8): A(f"v_mov_b32 {v(WIF+2*i+1)}, {s(sTAG)}")
for k in range(8):
    o = WIF + 8*(k & 1)
    for e in range(4): cvt(o+2*e, ER+4*k+e, EI+4*k+e)
    for h in range(2): A(f"buffer_store_dwordx4 {v(o+4*h,4)}, {v(aO)}, {srd(WS_)}, {s(sDST)} offen offset:{(k&1)*2048+h*64} sc1")
    if k & 1: A(f"s_add_u32 {s(sDST)}, {s(sDST)}, 4096")
A(f"""
s_setprio 0
s_branch L_setup3
L_helper:
""")
lds_post(0)
sSRC, sPL, sSG, sBIT = sT[4:8]
A(f"""
s_lshl_b32 {s(sT[0])}, {s(sM)}, 4
s_add_u32 {s(sSRC)}, {s(sT[0])}, {s(sA)}
s_lshl3_add_u32 {s(sSRC)}, {s(sSRC)}, {s(sGRP)}
s_sub_u32 {s(sT[1])}, {s(sW)}, 4
s_lshl2_add_u32 {s(sSRC)}, {s(sSRC)}, {s(sT[1])}
s_lshl_b32 {s(sSRC)}, {s(sSRC)}, 13
s_add_u32 {s(sPL)}, {s(sT[0])}, {s(sGRP)}
s_lshl2_add_u32 {s(sPL)}, {s(sPL)}, {s(sT[1])}
s_mul_i32 {s(sPL)}, {s(sPL)}, {CP}
s_add_u32 {s(sPL)}, {s(sPL)}, {C1}
s_cmp_eq_u32 {s(sGRP)}, {SPW}
s_cselect_b32 {s(sSG)}, 0x200020, 32
s_lshl_b32 m0, {s(sT[1])}, 13
s_lshl_b32 {s(sBIT)}, 1, {s(sT[1])}
v_lshlrev_b32 {v(aD)}, 2, {v(g_)}
v_xor_b32 {v(aD)}, {v(aD)}, {v(c_)}
v_lshlrev_b32 {v(aD)}, 4, {v(aD)}
v_lshl_add_u32 {v(aD)}, {v(g_)}, 8, {v(aD)}
""")
poll("L_poll1", sPL, s(sSG), OPT['sl1'])
stamp("pol1")
for n in range(8):
    A(f"buffer_load_dwordx4 {v(aD)}, {srd(WS_)}, {s(sSRC)} offen offset:{(n&3)*1024} sc1 lds")
    if n == 3:
        A(f"s_add_u32 m0, m0, 4096")
        A(f"s_add_u32 {s(sSRC)}, {s(sSRC)}, 4096")
XP = [WR_, WR_+2, WI_, WI_+2]
A(f"""
s_cmp_lg_u32 {s(sW)}, 4
s_cbranch_scc1 L_posted
s_sub_u32 {s(sT[3])}, s2, {HOST}
s_cmp_ge_u32 {s(sT[3])}, 2
s_cbranch_scc1 L_posted
s_cmp_eq_u32 {s(sT[3])}, 0
s_cbranch_scc1 L_xa
s_waitcnt vmcnt(0)
""")
lds_bit(4, sONE)
A(f"""
L_xa:
s_mul_i32 {s(sT[2])}, {s(sT[3])}, {64*CP}
s_add_u32 {s(sT[2])}, {s(sT[2])}, {C1+SPW*4*CP}
s_mov_b32 {s(sCNT)}, 0x8000
L_pollx:
""")
for i in range(4):
    A(f"s_mov_b64 {s(XP[i],2)}, 0")
    A(f"s_atomic_or_x2 {s(XP[i],2)}, {s(WS_,2)}, {s(sT[2])} offset:{i*CP} glc")
A(f"""
s_sub_u32 {s(sCNT)}, {s(sCNT)}, 1
s_cbranch_scc1 L_pollx_out
s_waitcnt lgkmcnt(0)
""")
for i in range(4):
    A(f"s_cmp_lg_u32 {s(XP[i]+1)}, {s(sTAG)}")
    A("s_cbranch_scc1 L_pollx")
A(f"""
s_and_b32 {s(XP[0])}, {s(XP[0])}, {s(XP[1])}
s_and_b32 {s(XP[2])}, {s(XP[2])}, {s(XP[3])}
s_and_b32 {s(XP[0])}, {s(XP[0])}, {s(XP[2])}
s_bitcmp1_b32 {s(XP[0])}, 21
s_cbranch_scc0 L_pollx
L_pollx_out:
""")
if OPT['xprio']: A("s_setprio 3")
A(f"""
s_mov_b32 {s(sFA)}, 1
s_mov_b32 {s(sFC)}, 0
s_mov_b32 {s(sFB)}, 1
s_lshl_b32 {s(sT[2])}, {s(sT[3])}, 13
s_add_u32 {s(sT[0])}, {s(sT[2])}, {WX}
s_add_u32 {s(sT[1])}, {s(sT[0])}, 4096
s_lshl_b32 {s(sDST)}, {s(sT[3])}, 14
s_add_u32 {s(sDST)}, {s(sDST)}, {T2X}
s_add_u32 {s(sT[2])}, {s(sT[2])}, {T1X}
v_lshlrev_b32 {v(aD)}, 4, {v(vL)}
v_lshlrev_b32 {v(aW)}, 6, {v(c_)}
v_lshl_add_u32 {v(aW)}, {v(g_)}, 4, {v(aW)}
s_mov_b32 {s(sOI)}, {XOUT}
v_add_u32 {v(aRe)}, {EXOFF}, {v(aD)}
s_mov_b32 m0, {EXOFF}
""")
for n in range(8):
    A(f"buffer_load_dwordx4 {v(aD)}, {srd(WS_)}, {s(sT[2])} offen sc1 lds")
    if n < 7:
        A(f"s_add_u32 m0, m0, 4096")
        A(f"s_add_u32 {s(sT[2])}, {s(sT[2])}, 1024")
for t in range(8):
    A(f"buffer_load_dwordx4 {v(ER+4*t,4)}, {v(aW)}, {srd(WS_)}, {s(sT[t>>2])} offen offset:{(t&3)*1024} sc1")
A("s_waitcnt vmcnt(16)")
lds_bit(4, sONE)
A("s_branch L_p2common")
A.label("L_posted")
A(f"""
s_cmp_lt_u32 {s(sW)}, {8-NST}
s_cselect_b32 {s(sPH)}, 1, 0
s_waitcnt vmcnt(0)
""")
lds_bit(4, sBIT)
A.label("L_setup3")
A3 = 237
aD3, aPw, aQ1, aQ0, aRd3, aSo, aQp = range(A3, A3+7)
aT = list(range(A3+9, A3+13))
sMR, sS3 = sT[2], sT[3]
A(f"""
v_lshrrev_b32 {v(PH)}, 1, {v(vL)}
v_xor_b32 {v(PH)}, {v(PH)}, {v(vL)}
v_and_b32 {v(PH)}, 4, {v(PH)}
v_mul_u32_u24 {v(PH)}, 3, {v(PH)}
v_xor_b32 {v(PH)}, {v(PH)}, {v(vL)}
v_lshlrev_b32 {v(vS1)}, 4, {v(PH)}
v_add_u32 {v(vS1)}, {T1OFF}, {v(vS1)}
v_and_b32 {v(aSo)}, 15, {v(PH)}
v_lshlrev_b32 {v(aSo)}, 6, {v(aSo)}
v_and_b32 {v(PH)}, 1, {v(g_)}
v_lshl_add_u32 {v(aSo)}, {v(PH)}, 5, {v(aSo)}
v_lshrrev_b32 {v(PH)}, 1, {v(g_)}
v_lshl_add_u32 {v(aSo)}, {v(PH)}, 4, {v(aSo)}
""")
load_tables(vS1)
A(f"""
v_lshrrev_b32 {v(PH)}, 2, {v(c_)}
v_lshl_add_u32 {v(PH)}, {v(PH)}, 7, {s(sSB)}
v_cvt_f32_u32 {v(PH)}, {v(PH)}
v_mul_f32 {v(PH)}, {fbits(1/2048)}, {v(PH)}
v_add_f32 {v(PH+1)}, {fbits(0.25)}, {v(PH)}
v_and_b32 {v(PH+2)}, 1, {v(c_)}
v_cvt_f32_u32 {v(PH+2)}, {v(PH+2)}
v_mul_f32 {v(PH+2)}, {fbits(-0.25)}, {v(PH+2)}
v_add_f32 {v(PH+3)}, {fbits(-0.125)}, {v(PH+2)}
v_add_f32 {v(PH+2)}, {fbits(0.125)}, {v(PH+2)}
v_and_b32 {v(PH+4)}, 2, {v(c_)}
v_lshlrev_b32 {v(PH+4)}, 30, {v(PH+4)}
v_xor_b32 {v(PH+2)}, {v(PH+4)}, {v(PH+2)}
v_xor_b32 {v(PH+3)}, {v(PH+4)}, {v(PH+3)}
v_lshlrev_b32 {v(PH+4)}, 1, {v(g_)}
v_cvt_f32_u32 {v(PH+4)}, {v(PH+4)}
v_add_f32 {v(PH+5)}, 1.0, {v(PH+4)}
v_add_f32 {v(PH+6)}, {fbits(8.0)}, {v(PH+4)}
v_add_f32 {v(PH+7)}, {fbits(9.0)}, {v(PH+4)}
""")
for mt in range(2):
    for j in range(4):
        t = TMP + (mt*4+j)*3
        A(f"v_fma_f32 {v(t)}, {v(PH+mt)}, {v(PH+4+j)}, {v(PH+2+(j&1))}")
        A(f"v_cos_f32 {v(t+1)}, {v(t)}")
        A(f"v_sin_f32 {v(t+2)}, {v(t)}")
for mt in range(2):
    for j in range(4):
        t = TMP + (mt*4+j)*3
        cvt(M3+mt*4+j, t+1, t+2, False, True)
A(f"""
v_lshrrev_b32 {v(PH)}, 3, {v(vL)}
v_and_b32 {v(PH+1)}, 3, {v(PH)}
v_lshlrev_b32 {v(PH+1)}, 6, {v(PH+1)}
v_lshl_add_u32 {v(PH)}, {v(PH)}, 8, {v(PH+1)}
v_and_b32 {v(PH+1)}, 3, {v(vL)}
v_lshl_add_u32 {v(PH)}, {v(PH+1)}, 4, {v(PH)}
v_and_b32 {v(PH+1)}, 4, {v(vL)}
v_lshl_add_u32 {v(PH)}, {v(PH+1)}, 1, {v(PH)}
v_add_u32 {v(aT[0])}, {s(sW12)}, {v(PH)}
v_xor_b32 {v(aT[1])}, 64, {v(aT[0])}
v_xor_b32 {v(aT[2])}, 128, {v(aT[0])}
v_xor_b32 {v(aT[3])}, 192, {v(aT[0])}
v_mul_u32_u24 {v(PH)}, {PS2}, {v(g_)}
s_lshl_b32 {s(sT[0])}, {s(sW)}, 8
s_add_u32 {s(sT[1])}, {s(sT[0])}, {EX2}
s_sub_u32 {s(sT[0])}, {EX2+15*256}, {s(sT[0])}
v_lshl_add_u32 {v(aPw)}, {v(c_)}, 3, {v(PH)}
v_add_u32 {v(aPw)}, {s(sT[1])}, {v(aPw)}
v_sub_u32 {v(PH+1)}, 16, {v(c_)}
v_lshl_add_u32 {v(PH+1)}, {v(PH+1)}, 3, {v(PH)}
v_add_u32 {v(aQp)}, {s(sT[0])}, {v(PH+1)}
v_cmp_eq_u32 vcc, 0, {v(c_)}
v_mov_b32 {v(PH+2)}, 128
v_mov_b32 {v(PH+3)}, 132
v_mov_b32 {v(PH+4)}, -124
v_cndmask_b32 {v(PH+4)}, {v(PH+2)}, {v(PH+4)}, vcc
v_cndmask_b32 {v(PH+3)}, {v(PH+3)}, {v(PH+2)}, vcc
v_add_u32 {v(aQ1)}, {v(aQp)}, {v(PH+4)}
v_add_u32 {v(aQ0)}, {v(aQp)}, {v(PH+3)}
s_mul_i32 {s(sT[0])}, {s(sW)}, {PS2}
s_add_u32 {s(sT[0])}, {s(sT[0])}, {EX2}
v_and_b32 {v(PH+1)}, 31, {v(vL)}
v_lshrrev_b32 {v(PH+2)}, 5, {v(vL)}
v_lshlrev_b32 {v(PH+3)}, 9, {v(PH+2)}
v_lshl_add_u32 {v(PH+3)}, {v(PH+1)}, 3, {v(PH+3)}
v_add_u32 {v(aRd3)}, {s(sT[0])}, {v(PH+3)}
s_lshl_b32 {s(sO[0])}, {s(sW)}, 7
s_add_u32 {s(sO[0])}, {s(sO[0])}, {s(sSB)}
s_lshl_b32 {s(sO[0])}, {s(sO[0])}, 12
s_lshl_b32 {s(sO[1])}, {s(sM)}, 11
s_add_u32 {s(sO[0])}, {s(sO[0])}, {s(sO[1])}
s_add_u32 {s(sO[1])}, {s(sO[0])}, {1024*4096}
s_mov_b32 {s(sPM)}, 0x05040100
s_mov_b32 {s(sPM+1)}, 0x07060302
""")
A(f"""
v_lshlrev_b32 {v(PH)}, 2, {v(g_)}
v_xor_b32 {v(PH)}, {v(PH)}, {v(c_)}
v_lshlrev_b32 {v(PH)}, 4, {v(PH)}
v_lshl_add_u32 {v(aD3)}, {v(g_)}, 8, {v(PH)}
s_lshl_b32 {s(sMR)}, {s(sM)}, 7
s_add_u32 {s(sMR)}, {s(sMR)}, {s(sRHO)}
s_lshl_b32 {s(sS3)}, {s(sMR)}, 15
s_add_u32 {s(sS3)}, {s(sS3)}, {s(sW12)}
s_add_u32 {s(sS3)}, {s(sS3)}, {T2}
s_cmp_lg_u32 {s(sPH)}, 0
s_cbranch_scc1 L_nosig2
""")
aR0, aR1, aS2, aPr = vT[2], vT[3], vT[4], vT[5]
sD = sT[4:5]
A(f"""
v_bfe_u32 {v(aR0)}, {v(vL)}, 2, 2
v_mul_u32_u24 {v(aR0)}, {OS}, {v(aR0)}
v_lshl_add_u32 {v(aR0)}, {v(g_)}, 6, {v(aR0)}
v_and_b32 {v(aR1)}, 3, {v(vL)}
v_mul_u32_u24 {v(aPr)}, 260, {v(aR1)}
v_add_u32 {v(aPr)}, {PGOFF}, {v(aPr)}
v_lshrrev_b32 {v(aS2)}, 5, {v(vL)}
v_xor_b32 {v(aR1)}, {v(aR1)}, {v(aS2)}
v_lshl_add_u32 {v(aR0)}, {v(aR1)}, 4, {v(aR0)}
s_sub_u32 {s(sT[8])}, 7, {s(sW)}
s_lshl_b32 {s(sT[0])}, {s(sT[8])}, 10
s_add_u32 {s(sT[0])}, {s(sT[0])}, {WOFF}
v_add_u32 {v(aR0)}, {s(sT[0])}, {v(aR0)}
v_xor_b32 {v(aR1)}, 32, {v(aR0)}
v_lshlrev_b32 {v(aS2)}, 15, {v(g_)}
v_lshl_add_u32 {v(aS2)}, {v(c_)}, 4, {v(aS2)}
s_lshl_b32 {s(sD[0])}, {s(sM)}, 22
s_lshl_b32 {s(sT[0])}, {s(sT[8])}, 19
s_add_u32 {s(sD[0])}, {s(sD[0])}, {s(sT[0])}
s_lshl_b32 {s(sT[0])}, {s(sGRP)}, 12
s_add_u32 {s(sD[0])}, {s(sD[0])}, {s(sT[0])}
s_lshl_b32 {s(sT[0])}, {s(sA)}, 8
s_add_u32 {s(sD[0])}, {s(sD[0])}, {s(sT[0])}
s_add_u32 {s(sD[0])}, {s(sD[0])}, {T2}
s_add_u32 {s(sT[0])}, {s(sM8)}, {s(sGRP)}
s_lshl_b32 {s(sT[0])}, {s(sT[0])}, 3
s_add_u32 {s(sT[0])}, {s(sT[0])}, {s(sT[8])}
s_mul_i32 {s(sT[0])}, {s(sT[0])}, {CP}
s_add_u32 {s(sT[0])}, {s(sT[0])}, {C2}
""")
NR = -(-8 // NST)
for i in range(NR):
    if NST*i + NST > 8:
        A(f"s_cmp_ge_u32 {s(sT[8])}, 8")
        A("s_cbranch_scc1 L_short")
    A(f"""
    s_mov_b32 {s(sCNT)}, 0x40000
    L_pg{i}:
    ds_read_b32 {v(vS1)}, {v(aPr)}
    s_sub_u32 {s(sCNT)}, {s(sCNT)}, 1
    s_cbranch_scc1 L_pg{i}_out
    {('s_sleep %d' % OPT['slp']) if i == 0 and OPT['slp'] else ''}
    s_waitcnt lgkmcnt(0)
    v_cmp_ge_u32 vcc, {s(sT[8])}, {v(vS1)}
    s_and_b64 vcc, vcc, vcc
    s_cbranch_scc1 L_pg{i}
    L_pg{i}_out:
    """)
    d = D1R + 16*i
    for j in range(4): A(f"ds_read_b128 {v(d+4*j,4)}, {v(aR1 if j & 1 else aR0)} offset:{i*NST*1024+j*256}")
    A(f"s_add_u32 {s(sT[8])}, {s(sT[8])}, {NST}")
    for j in range(4):
        A(f"s_waitcnt lgkmcnt({3-j})")
        A(f"buffer_store_dwordx4 {v(d+4*j,4)}, {v(aS2)}, {srd(WS_)}, {s(sD[0])} offen sc1")
        A(f"s_add_u32 {s(sD[0])}, {s(sD[0])}, {(4 if j < 3 else 16*NST-12) << 15}")
for i in range(NR):
    A(f"s_waitcnt vmcnt({4*(NR-1-i)})")
    signal(sT[0], NST*i*CP)
if 8 % NST:
    A("s_branch L_nosig2")
    A.label("L_short")
    for i in range(NR-1):
        A(f"s_waitcnt vmcnt({4*(NR-2-i)})")
        signal(sT[0], NST*i*CP)
A.label("L_nosig2")
stamp("fl2")
A("s_barrier")
A(f"s_mov_b32 m0, {s(sW12)}")
poll("L_poll2", sC2, 16, OPT['sl2'])
stamp("pol2")
for j in range(4):
    A(f"buffer_load_dwordx4 {v(aD3)}, {srd(WS_)}, {s(sS3)} offen offset:{j*1024} sc1 lds")
A(f"""
s_cmp_lg_u32 {s(sW)}, 4
s_cbranch_scc1 L_noep
s_cmp_lg_u32 s2, {HOST+1}
s_cbranch_scc1 L_noep
s_mov_b32 {s(sT[4])}, {EW}
s_atomic_swap {s(sTAG)}, {s(WS_,2)}, {s(sT[4])}
s_waitcnt lgkmcnt(0)
L_noep:
""")
GB = [(8, 8), (40, 8), (88, 8), (16, 4), (28, 4)]
GS = [r + i for r, n in GB for i in range(n)]
def granule_loads():
    off = 0
    for r, n in GB:
        A(f"s_load_dwordx{n} {s(r,n)}, {s(WS_,2)}, {s(sT[4])} offset:{off} glc"); off += 4*n
A(f"""
s_cmp_lg_u32 {s(sW)}, 0
s_cbranch_scc1 L_nosp3a
s_lshl_b32 {s(sT[4])}, {s(sMR)}, 7
s_add_u32 {s(sT[4])}, {s(sT[4])}, {T2X}
""")
granule_loads()
A.label("L_nosp3a")
for i in range(16):
    A(f"v_perm_b32 {v(GR+i)}, {v(FN+i//2)}, {v(FC+i//2)}, {s(sPM+(i&1))}")
    A(f"v_perm_b32 {v(GI+i)}, {v(FC+i//2)}, {v(FS+i//2)}, {s(sPM+(i&1))}")
A(f"""
s_cmp_lg_u32 {s(sW)}, 0
s_cbranch_scc1 L_nosp3b
s_mov_b32 {s(sCNT)}, 0x8000
s_branch L_gchk
L_gagain:
s_sub_u32 {s(sCNT)}, {s(sCNT)}, 1
s_cbranch_scc1 L_gok
""")
granule_loads()
A.label("L_gchk")
A("s_waitcnt lgkmcnt(0)")
for i in range(16):
    A(f"s_cmp_lg_u32 {s(GS[2*i+1])}, {s(sTAG)}")
    A("s_cbranch_scc1 L_gagain")
A.label("L_gok")
for h in range(2):
    for g in range(4):
        for q in range(2):
            A(f"v_writelane_b32 {v(TMP+4+2*h+q)}, {s(GS[h*16+g*4+2*q])}, {16*g}")
m16(D2R, M3, TMP+4, None); m16(D2R+4, M3+4, TMP+4, None)
A.label("L_nosp3b")
A("s_waitcnt vmcnt(0)")
stamp("dat2", (1, 3))
for t in (0, 2, 1, 3):
    for jj in range(2):
        A(f"ds_read_b64_tr_b16 {v(XR+4*t+2*jj,2)}, {v(aT[t])} offset:{jj*2048}")
for i, t in enumerate((0, 2, 1, 3)):
    A(f"s_waitcnt lgkmcnt({6-2*i})")
    m16(D1R+8*t, M3, XR+4*t, None); m16(D1R+8*t+4, M3+4, XR+4*t, None)
A(f"""
s_cmp_lg_u32 {s(sW)}, 0
s_cbranch_scc1 L_nofix
s_mov_b32 exec_lo, 0x00010001
s_mov_b32 exec_hi, 0x00010001
""")
for d in (D2R, D1R):
    for mt in range(2):
        for i in range(2):
            A(f"v_add_f32 {v(d+4*mt+i)}, {v(d+4*mt+i)}, {v(d+4*mt+2+i)}")
            A(f"v_mul_f32 {v(d+4*mt+i)}, 0.5, {v(d+4*mt+i)}")
cvt(TMP, D2R, D2R+1); cvt(TMP+1, D2R+4, D2R+5)
A(f"""
ds_write_b32 {v(aPw)}, {v(TMP)} offset:{8*256}
ds_write_b32 {v(aPw)}, {v(TMP+1)} offset:{8*256+4*PS2}
s_mov_b64 exec, -1
L_nofix:
s_nop 1
""")
for tp in range(2):
    for mt in range(2):
        d0 = D1R + 8*tp + 4*mt; d1 = d0 + 16
        o = TMP + 8 + (tp*2+mt)*4
        cvt(o, d0, d0+1); cvt(o+1, d1, d1+1); cvt(o+2, d1+2, d1+3); cvt(o+3, d0+2, d0+3)
for tp in range(2):
    for mt in range(2):
        o = TMP + 8 + (tp*2+mt)*4
        A(f"ds_write_b64 {v(aPw)}, {v(o,2)} offset:{mt*4*PS2+tp*128}")
        if tp == 1:
            A(f"ds_write_b64 {v(aQp)}, {v(o+2,2)} offset:{mt*4*PS2}")
        else:
            A(f"ds_write_b32 {v(aQ1)}, {v(o+2)} offset:{mt*4*PS2}")
            A(f"ds_write_b32 {v(aQ0)}, {v(o+3)} offset:{mt*4*PS2}")
A("s_waitcnt lgkmcnt(0)")
A("s_barrier")
stamp("bar3", (1, 3))
for t in range(4):
    for j in range(2):
        A(f"ds_read_b64 {v(XR+4*t+2*j,2)}, {v(aRd3)} offset:{t*1024+j*256}")
for t in range(4):
    A(f"s_waitcnt lgkmcnt({6-2*t})")
    m32(D1R, XR+4*t, GR+4*t, D1R if t else None)
A("s_nop 4")
weave([M32(D1I, XR+4*t, GI+4*t, D1I if t else None) for t in range(4)], ["s_nop 4"] + TW1(D1R, True), [1, 6, 6, 99])
stamp("m3", (3,))
for t_ in TW2(D1I, XR, XI, True, 0, 8): A(t_)
weave([M32(D2R, XR, FC, None), M32(D2R, XI, FN, D2R), M32(D2I, XR, FS, None), M32(D2I, XI, FC, D2I)], TW2(D1I, XR, XI, True, 8, 16), 6)
weave([M32(D2R, XR+4, FC+4, D2R), M32(D2R, XI+4, FN+4, D2R), M32(D2I, XR+4, FS+4, D2I), M32(D2I, XI+4, FC+4, D2I)], [], 0)
stamp("m4", (3,))
for comp, d in ((0, D2R), (1, D2I)):
    o = TMP + comp*8
    for q in (0, 4, 1, 5, 2, 6, 3, 7): cvt(o+q, d+2*q, d+2*q+1)
    for q in range(4): A(f"v_permlane16_swap_b32 {v(o+q)}, {v(o+4+q)}")
    for j in range(2):
        A(f"buffer_store_dwordx4 {v(o+4*j,4)}, {v(aSo)}, {srd(OUT_)}, {s(sO[comp])} offen offset:{j*1024}{OUTM}")
if OPT['stamp']:
    stamp("st3", (1, 3))
    A("s_waitcnt vmcnt(0)")
    stamp("end")
    A("s_waitcnt lgkmcnt(0)")
    n = len(stamps)
    assert sST + 2*n <= 88, n
    if OPT['diag']:
        da, db = OPT['da'], OPT['db']
        A(f"""
        s_load_dwordx2 s[94:95], s[0:1], 56
        s_and_b32 {s(sT[4])}, s2, 7
        s_lshl_b32 {s(sT[4])}, {s(sT[4])}, 3
        s_not_b32 {s(sT[11])}, {s(sST)}
        s_waitcnt lgkmcnt(0)
        s_cmp_lg_u32 {s(sW)}, {OPT['wa']}
        s_cbranch_scc1 L_dg1
        s_atomic_umax {s(sST+2*da) if da else s(sT[11])}, s[94:95], {s(sT[4])}
        L_dg1:
        s_cmp_lg_u32 {s(sW)}, {OPT['wb']}
        s_cbranch_scc1 L_end
        s_atomic_umax {s(sST+2*db)}, s[94:95], {s(sT[4])} offset:4
        s_cmp_lg_u32 s2, 100
        s_cbranch_scc1 L_end
        s_add_u32 {s(sT[0])}, {s(sST+2*(n-1))}, 500
        L_amp0:
        s_memrealtime {s(sT[2],2)}
        s_waitcnt lgkmcnt(0)
        s_sub_u32 {s(sT[1])}, {s(sT[0])}, {s(sT[2])}
        s_cmp_gt_i32 {s(sT[1])}, 0
        s_cbranch_scc1 L_amp0
        s_load_dwordx16 s[60:75], s[94:95], 0 glc
        s_waitcnt lgkmcnt(0)
        """)
        for i in range(1, 8):
            A(f"s_max_u32 s60, s60, s{60+2*i}")
            A(f"s_max_u32 s61, s61, s{61+2*i}")
        if not da: A("s_not_b32 s60, s60")
        A(f"""
        s_sub_u32 {s(sT[1])}, s61, s60
        s_lshl_b32 {s(sT[1])}, {s(sT[1])}, 4
        s_min_u32 {s(sT[1])}, {s(sT[1])}, 60000
        s_add_u32 {s(sT[0])}, {s(sT[0])}, {s(sT[1])}
        L_amp:
        s_memrealtime {s(sT[2],2)}
        s_waitcnt lgkmcnt(0)
        s_sub_u32 {s(sT[1])}, {s(sT[0])}, {s(sT[2])}
        s_cmp_gt_i32 {s(sT[1])}, 0
        s_cbranch_scc1 L_amp
        s_branch L_end
        """)
    A(f"s_lshl_b32 {s(sT[0])}, s2, 3")
    A(f"s_add_u32 {s(sT[0])}, {s(sT[0])}, {s(sW)}")
    A(f"s_lshl_b32 {s(sT[0])}, {s(sT[0])}, 7")
    A(f"s_add_u32 {s(sT[0])}, {s(sT[0])}, {STAMP}")
    A("v_mov_b32 v3, 0")
    A("s_mov_b64 exec, 1")
    for i in range(n):
        A(f"v_mov_b32 v2, {s(sST+2*i)}")
        A(f"buffer_store_dword v2, v3, {srd(WS_)}, {s(sT[0])} offen offset:{i*4}")
    A.raw("; stamps: " + " ".join(stamps))
A.label("L_end")
A("s_endpgm")
def kd(name, nv, ns):
    A.raw(f""".p2align 6
.amdhsa_kernel {name}
  .amdhsa_next_free_vgpr {nv}
  .amdhsa_next_free_sgpr {ns}
  .amdhsa_accum_offset {nv}
  .amdhsa_group_segment_fixed_size 0
  .amdhsa_kernarg_size 72
  .amdhsa_user_sgpr_count 2
  .amdhsa_user_sgpr_kernarg_segment_ptr 1
  .amdhsa_system_sgpr_workgroup_id_x 1
  .amdhsa_float_denorm_mode_32 3
.end_amdhsa_kernel""")
A.raw('.section .rodata,"a"')
kd(NAME + "_kernel", 256, 102)
if OPT['lst']: kd("empty_kernel", 8, 16)
open(sys.argv[1], "w").write(A.text())
print(sys.argv[1], "nops:", A.nops, "stamps:", len(stamps), file=sys.stderr)
```

```python
import sys, struct
import numpy as np
from asmlib import Asm, v, s

NAME = "concat_heads__spectral_gfnet__spectral_gfnet__prompt"
OPT = dict(outm=1, xnt=0, wnt=0, wsoff=0, probe=0, poff=64, pbuf=0, tlb=0, diag=0, da=0, db=0, wa=0, wb=0, ne=3, xpf=0, gh=1, xprio=0, slp=2, nst=3, gpos=1, xl=8, stag=2, neb=3, amp=0, ampw=0, stamp=0, sl1=0, sl2=0, lst=0, half=0)
for a_ in sys.argv[2:]:
    k_, v_ = a_.split('='); assert k_ in OPT, k_; OPT[k_] = int(v_)

def fbits(x): return "0x%08x" % struct.unpack('<I', struct.pack('<f', x))[0]
def bf16(x):
    u = np.asarray(x, dtype=np.float32).view(np.uint32)
    return ((u + 0x7FFF + ((u >> 16) & 1)) >> 16).astype(np.uint32)

T1 = 0
T2 = 8 << 20
AUX = 16 << 20
T1X = AUX
T2X = AUX + 0x30000
WX = AUX + 0x8000
CP = 256
C1 = AUX + 0x10000
C2 = AUX + 0x20000
EW = AUX + 0xa0000
STAMP = AUX + 0x100000
WSZ = 18 << 20
EXOFF = 32768
PS = 5184
WOFF = EXOFF + 8 * PS
M2OFF = WOFF + 36864
SYOFF = M2OFF + 32768
PGOFF = SYOFF + 64
T1OFF = PGOFF + 2048
LDSZ = T1OFF + 14336
EX2 = EXOFF
OS = 8320
XOUT = EXOFF + 32768
PS2 = 4160
sW, sM, sRHO, sSB, sA, sGRP = 3, 4, 5, 6, 7, 32
X_, WR_, WI_, OUT_, WS_, TAB_ = 8, 12, 16, 20, 24, 28
sCNT = 33
sT = list(range(34, 48))
sV = 48
sEXP = 50
sTAG = 51
sW12, sM8, sE, sROLE, sC1, sC2 = 52, 53, 54, 55, 56, 57
sPM = 58
sST = 60
sO = [96, 97]
sU = [98, 99, 100, 101]
sONE = sU[2]
srd = lambda b: s(b, 4)

A = Asm()
HOST = 128
NST = OPT['nst']
XNT = ' nt' if OPT['xnt'] else ''
WNT = ' nt' if OPT['wnt'] else ''
OUTM = ['', ' sc1', ' nt', ' sc0 sc1', ' sc1 nt', ' sc0 sc1 nt'][OPT['outm']]
def M32(d, a, b, c): return f"v_mfma_f32_32x32x16_bf16 {v(d,16)}, {v(a,4)}, {v(b,4)}, {v(c,16) if c is not None else 0}"
def M16(d, a, b, c): return f"v_mfma_f32_16x16x32_bf16 {v(d,4)}, {v(a,4)}, {v(b,4)}, {v(c,4) if c is not None else 0}"
def CVT(d, a, b, na=False, nb=False): return f"v_cvt_pk_bf16_f32 {v(d)}, {'-' if na else ''}{v(a)}, {'-' if nb else ''}{v(b)}"
def m32(*a): A(M32(*a))
def m16(*a): A(M16(*a))
def cvt(*a): A(CVT(*a))
def weave(mf, fill, per):
    fill = list(fill)
    for i, m in enumerate(mf):
        A(m)
        n = per[i] if isinstance(per, (list, tuple)) else per
        for _ in range(n):
            if fill: A(fill.pop(0))
    for f in fill: A(f)
stamps = []
def stamp(name, sets=(1,)):
    st = OPT['stamp']
    if name in ("start", "end"):
        if st: A(f"s_memrealtime {s(sST + 2*len(stamps), 2)}"); stamps.append(name)
        if st > 1: A(f"s_memtime {s(sST + 2*len(stamps), 2)}"); stamps.append("c" + name)
    elif st in sets:
        if name not in stamps: stamps.append(name)
        A(f"{'s_memrealtime' if st == 1 else 's_memtime'} {s(sST + 2*stamps.index(name), 2)}")

vL, c_, g_ = 1, 2, 3
vT = list(range(2, 16))
TC, TS = 16, 32
FC, FS, FN = 48, 56, 64
M3 = 72
GR, GI = 80, 96
XR, XI = 112, 120
D1R, D1I = 128, 144
D2R, D2I = 160, 176
TMP = 192
PH = 224
WRF, WIF = 16, 48
FR = 80
DRE, DIM, DNR = 144, 160, 176
ER, EI = 192, 224

def peek(off, imm=0):
    A(f"s_mov_b64 {s(sV,2)}, 0")
    A(f"s_atomic_or_x2 {s(sV,2)}, {s(WS_,2)}, {s(off)} glc" if not imm else f"s_atomic_or_x2 {s(sV,2)}, {s(WS_,2)}, {s(off)} offset:{imm} glc")
def poll(label, off, count, sleep, imm=0, keep=None):
    A(f"s_mov_b32 {s(sEXP)}, {count}")
    A(f"s_mov_b32 {s(sCNT)}, 0x8000")
    A.label(label)
    peek(off, imm)
    A(f"s_sub_u32 {s(sCNT)}, {s(sCNT)}, 1")
    A(f"s_cbranch_scc1 {label}_out")
    if sleep: A(f"s_sleep {sleep}")
    A("s_waitcnt lgkmcnt(0)")
    if keep is not None:
        A(f"s_mov_b32 {s(keep)}, {s(sV)}")
        A(f"s_and_b32 {s(sV)}, {s(sV)}, 0xffff")
    A(f"s_cmp_eq_u64 {s(sV,2)}, {s(sEXP,2)}")
    A(f"s_cbranch_scc0 {label}")
    A.label(label + "_out")
def validate(label, off, imm=0):
    A(f"s_mov_b32 {s(sCNT)}, 0x8000")
    A.label(label)
    A("s_waitcnt lgkmcnt(0)")
    A(f"s_cmp_eq_u32 {s(sV+1)}, {s(sTAG)}")
    A(f"s_cbranch_scc1 {label}_out")
    peek(off, imm)
    A(f"s_sub_u32 {s(sCNT)}, {s(sCNT)}, 1")
    A(f"s_cbranch_scc0 {label}")
    A("s_waitcnt lgkmcnt(0)")
    A.label(label + "_out")
def signal(off, imm=0):
    A(f"s_atomic_add {s(sONE)}, {s(WS_,2)}, {s(off)}" + (f" offset:{imm}" if imm else ""))

vSY, vS1, vPG = vT[12], vT[13], vT[11]
def lds_wait(label, off, val):
    A(f"s_mov_b32 {s(sCNT)}, 0x40000")
    A.label(label)
    A(f"ds_read_b32 {v(vS1)}, {v(vSY)} offset:{off}")
    A(f"s_sub_u32 {s(sCNT)}, {s(sCNT)}, 1")
    A(f"s_cbranch_scc1 {label}_out")
    A("s_waitcnt lgkmcnt(0)")
    A(f"v_cmp_gt_u32 vcc, {val}, {v(vS1)}")
    A("s_and_b64 vcc, vcc, vcc")
    A(f"s_cbranch_scc1 {label}")
    A.label(label + "_out")
def lds_bit(off, sbit):
    A(f"v_mov_b32 {v(vS1)}, {s(sbit)}")
    A("s_mov_b64 exec, 1")
    A(f"ds_or_b32 {v(vSY)}, {v(vS1)} offset:{off}")
    A("s_mov_b64 exec, -1")
def lds_post(off, rtn=False):
    A(f"v_mov_b32 {v(vS1)}, 1")
    A("s_mov_b64 exec, 1")
    if rtn: A(f"ds_add_rtn_u32 {v(vS1)}, {v(vSY)}, {v(vS1)} offset:{off}")
    else: A(f"ds_add_u32 {v(vSY)}, {v(vS1)} offset:{off}")
    A("s_mov_b64 exec, -1")

sWB, sI = sU[0], sU[3]
aWM, aWT = GR + 4, GR + 5
nlab = [0]
def w_piece(e):
    if e < 4:
        A(f"s_add_u32 m0, {s(sT[13])}, {WOFF + e*9216}")
        if e & 1: A(f"s_add_u32 {s(sI)}, {s(sT[12])}, {64*16416}")
        A(f"buffer_load_dwordx4 {v(aWM)}, {srd(WI_ if e >> 1 else WR_)}, {s(sI if e & 1 else sT[12])} offen{WNT} lds")
    else:
        n = nlab[0]; nlab[0] += 1
        A(f"""
        s_mul_i32 {s(sI)}, {s(sW)}, 9216
        s_add_u32 m0, {s(sI)}, {WOFF + 8192}
        s_and_b32 {s(sI)}, {s(sW)}, 1
        s_mul_i32 {s(sI)}, {s(sI)}, {64*16416}
        s_add_u32 {s(sI)}, {s(sI)}, {s(sWB)}
        s_bitcmp1_b32 {s(sW)}, 1
        s_cbranch_scc1 L_t1_{n}
        buffer_load_dwordx4 {v(aWT)}, {srd(WR_)}, {s(sI)} offen{WNT} lds
        s_branch L_t2_{n}
        L_t1_{n}:
        buffer_load_dwordx4 {v(aWT)}, {srd(WI_)}, {s(sI)} offen{WNT} lds
        L_t2_{n}:
        """)
def w_base(sw):
    A(f"s_mul_i32 {s(sT[12])}, {s(sw)}, {7*16416}")
    A(f"s_add_u32 {s(sT[12])}, {s(sT[12])}, {s(sWB)}")
    A(f"s_lshl_b32 {s(sT[13])}, {s(sw)}, 10")

def gen_m2(sW):
    G = D2R
    kf, s0, af, bf, ai, bi, ad = G, G+1, G+2, G+3, G+4, G+5, G+6
    P, C_, S_ = D1R, D1R+16, G+8
    A(f"""
    s_and_b32 {s(sT[12])}, {s(sW)}, 1
    s_lshl_b32 {s(sT[12])}, {s(sT[12])}, 4
    s_lshr_b32 {s(sT[13])}, {s(sW)}, 1
    v_add_u32 {v(kf)}, {s(sT[12])}, {v(c_)}
    v_lshl_add_u32 {v(ai)}, {v(kf)}, 2, {s(sT[13])}
    v_lshl_add_u32 {v(s0)}, {v(g_)}, 4, {s(sT[13])}
    v_mul_u32_u24 {v(bf)}, {v(s0)}, {v(kf)}
    v_mul_u32_u24 {v(bi)}, {v(g_)}, {v(ai)}
    v_cvt_f32_u32 {v(af)}, {v(kf)}
    v_cvt_f32_u32 {v(ai)}, {v(ai)}
    v_cvt_f32_u32 {v(bf)}, {v(bf)}
    v_cvt_f32_u32 {v(bi)}, {v(bi)}
    v_mul_f32 {v(bf)}, {fbits(1/128)}, {v(bf)}
    v_mul_f32 {v(bi)}, {fbits(1/32)}, {v(bi)}
    s_lshl_b32 {s(sT[12])}, {s(sW)}, 11
    s_add_u32 {s(sT[12])}, {s(sT[12])}, {M2OFF}
    v_lshl_add_u32 {v(ad)}, {v(vL)}, 4, {s(sT[12])}
    """)
    for d in range(2):
        for i in range(8):
            c = 16*(i >> 2) + (i & 3)
            A(f"v_fmamk_f32 {v(P+8*d+i)}, {v(ai if d else af)}, {fbits(c/128 if d else c/32)}, {v(bi if d else bf)}")
    for i in range(16):
        A(f"v_cos_f32 {v(C_+i)}, {v(P+i)}")
        A(f"v_sin_f32 {v(S_+i)}, {v(P+i)}")
    for d in range(2):
        for j in range(4):
            cvt(P+8*d+j, C_+8*d+2*j, C_+8*d+2*j+1)
            cvt(P+8*d+4+j, S_+8*d+2*j, S_+8*d+2*j+1)
    for d in range(2):
        for cs in range(2):
            A(f"ds_write_b128 {v(ad)}, {v(P+8*d+4*cs,4)} offset:{d*16384+cs*1024}")

def load_tables(addr):
    for i in (8, 9, 10, 11, 12, 13, 0, 4, 1, 5, 2, 6, 3, 7):
        A(f"ds_read_b128 {v(TC+4*i,4)}, {v(addr)} offset:{i*1024}")

def TW1(dr, conj):
    L = []
    for i in range(16):
        L.append(f"v_mul_f32 {v(TMP+i)}, {v(dr+i)}, {v(TC+i)}")
        L.append(f"v_mul_f32 {v(TMP+16+i)}, {v(dr+i)}, {v(TS+i)}" if conj else f"v_mul_f32_e64 {v(TMP+16+i)}, -{v(dr+i)}, {v(TS+i)}")
    return L
def TW2(di, outr, outi, conj, lo, hi):
    L = []
    for i in range(lo, hi, 2):
        for e in range(2):
            L.append(f"v_fma_f32 {v(TMP+i+e)}, -{v(di+i+e)}, {v(TS+i+e)}, {v(TMP+i+e)}" if conj else f"v_fmac_f32 {v(TMP+i+e)}, {v(di+i+e)}, {v(TS+i+e)}")
            L.append(f"v_fmac_f32 {v(TMP+16+i+e)}, {v(di+i+e)}, {v(TC+i+e)}")
        L.append(CVT(outr + i//2, TMP+i, TMP+i+1))
        L.append(CVT(outi + i//2, TMP+16+i, TMP+16+i+1))
    return L

if OPT['lst'] == 0: A.raw(f"; @launch grid=(256,1,1) block=(512,1,1) lds={LDSZ}")
else:
    A.raw(f"; @launch kernel={NAME}_kernel grid=(256,1,1) block=(512,1,1) lds={LDSZ}")
    A.raw(f"; @launch kernel=empty_kernel grid=(1,1,1) block=(64,1,1) lds=0")
A.raw('.amdgcn_target "amdgcn-amd-amdhsa--gfx950"\n.text')
if OPT['lst']: A.raw(".globl empty_kernel\n.p2align 8\n.type empty_kernel,@function\nempty_kernel:\n s_endpgm")
A.raw(f".globl {NAME}_kernel\n.p2align 8\n.type {NAME}_kernel,@function")
A.label(f"{NAME}_kernel")
aL16 = GR + 1
A(f"""
s_cmp_ge_u32 s2, 256
s_cbranch_scc1 L_end
s_bfe_u32 {s(sM)}, s2, 0x10003
s_mul_i32 {s(sT[0])}, {s(sM)}, 24
s_load_dwordx2 {s(X_,2)}, s[0:1], {s(sT[0])}
s_load_dwordx2 {s(WS_,2)}, s[0:1], 64
s_load_dwordx2 {s(WR_,2)}, s[0:1], {s(sT[0])} offset:8
s_load_dwordx2 {s(WI_,2)}, s[0:1], {s(sT[0])} offset:16
s_load_dwordx2 {s(OUT_,2)}, s[0:1], 48
""")
PF_ = 40
if OPT['xpf']:
    A(f"""
    s_sub_u32 {s(sT[0])}, 24, {s(sT[0])}
    s_load_dwordx2 {s(88,2)}, s[0:1], {s(sT[0])} offset:8
    s_load_dwordx2 {s(92,2)}, s[0:1], {s(sT[0])} offset:16
    """)
stamp("start")
A(f"""
v_lshrrev_b32 v2, 6, v0
v_and_b32 {v(vL)}, 63, v0
s_and_b32 {s(sT[1])}, s2, 7
v_readfirstlane_b32 {s(sW)}, v2
s_lshr_b32 {s(sT[2])}, s2, 4
s_lshl_b32 {s(sRHO)}, {s(sT[1])}, 4
s_add_u32 {s(sRHO)}, {s(sRHO)}, {s(sT[2])}
s_and_b32 {s(sSB)}, {s(sRHO)}, 31
s_lshr_b32 {s(sT[5])}, {s(sRHO)}, 5
s_lshl2_add_u32 {s(sSB)}, {s(sSB)}, {s(sT[5])}
v_lshlrev_b32 {v(aL16)}, 4, {v(vL)}
s_mov_b32 {s(X_+2)}, 4194304
s_mov_b32 {s(X_+3)}, 0x20000
s_lshl_b32 {s(sO[0])}, {s(sW)}, 7
s_add_u32 {s(sO[0])}, {s(sO[0])}, {s(sSB)}
s_lshl_b32 {s(sO[0])}, {s(sO[0])}, 11
s_add_u32 {s(sO[1])}, {s(sO[0])}, 0x200000
s_lshl_b32 {s(sW12)}, {s(sW)}, 12
s_mov_b32 m0, {s(sW12)}
s_getpc_b64 {s(TAB_,2)}
L_pc:
s_mov_b32 {s(TAB_+2)}, L_end-L_pc
s_mov_b32 {s(TAB_+3)}, 0x20000
v_lshlrev_b32 v3, 11, v2
s_lshl_b32 {s(sT[6])}, {s(sT[2])}, 7
buffer_load_dword {v(GR)}, v3, {srd(TAB_)}, {s(sT[6])} offen
s_lshl_b32 {s(sA)}, {s(sT[1])}, 1
""")
if OPT['xpf']:
    A(f"""
    s_lshl3_add_u32 {s(sPM)}, {s(sT[2])}, {s(sW)}
    s_lshl4_add_u32 {s(sPM)}, {s(sPM)}, {s(sA)}
    s_mul_i32 {s(sPM)}, {s(sPM)}, 1026
    v_lshlrev_b32 {v(GR+2)}, 7, {v(vL)}
    v_min_u32 {v(GR+2)}, 2048, {v(GR+2)}
    s_mov_b32 s90, 2101248
    s_mov_b32 s91, 0x20000
    s_mov_b32 s94, 2101248
    s_mov_b32 s95, 0x20000
    """)
A("s_waitcnt lgkmcnt(0)")
stamp("karg", (4,))
sX0, sX1 = sO
XISS = f"""
buffer_load_dwordx4 {v(aL16)}, {srd(X_)}, {s(sX0)} offen{XNT} lds
buffer_load_dwordx4 {v(aL16)}, {srd(X_)}, {s(sX0)} offen offset:1024{XNT} lds
s_add_u32 m0, {s(sW12)}, 2048
buffer_load_dwordx4 {v(aL16)}, {srd(X_)}, {s(sX1)} offen{XNT} lds
buffer_load_dwordx4 {v(aL16)}, {srd(X_)}, {s(sX1)} offen offset:1024{XNT} lds
"""
aPF = GR + 2
sPF = sPM
XPF = f"""
buffer_load_dword {v(GR)}, {v(aPF)}, s[88:91], {s(sPF)} offen
buffer_load_dword {v(GR)}, {v(aPF)}, s[92:95], {s(sPF)} offen
"""
if OPT['xpf']:
    A(f"""
    s_cmp_eq_u32 {s(sM)}, 0
    s_cbranch_scc1 L_nopf
    {XPF}
    s_barrier
    L_nopf:
    """)
if OPT['stag']:
    A(f"s_cmp_lg_u32 {s(sM)}, 0")
    A("s_cbranch_scc1 L_xlate")
A(XISS)
A.label("L_xlate")
stamp("xiss", (4,))
A(f"""
s_lshr_b32 {s(sT[3])}, {s(sW)}, 1
s_and_b32 {s(sT[4])}, {s(sW)}, 1
s_lshl_b32 {s(sT[6])}, {s(sT[3])}, 2
s_add_u32 {s(sT[6])}, {s(sT[6])}, {s(sT[4])}
s_lshl_b32 {s(sT[6])}, {s(sT[6])}, 1
v_lshrrev_b32 {v(PH)}, 5, {v(vL)}
v_and_b32 {v(PH+1)}, 31, {v(vL)}
v_lshl_add_u32 {v(PH)}, {v(PH)}, 2, {s(sT[6])}
v_mul_u32_u24 {v(PH)}, {v(PH)}, {v(PH+1)}
v_add_u32 {v(PH+1)}, {v(PH)}, {v(PH+1)}
v_cvt_f32_u32 {v(PH)}, {v(PH)}
v_cvt_f32_u32 {v(PH+1)}, {v(PH+1)}
v_mul_f32 {v(PH+2)}, {fbits(1/32)}, {v(PH)}
v_mul_f32 {v(PH+3)}, {fbits(1/32)}, {v(PH+1)}
v_cos_f32 {v(PH+8)}, {v(PH+2)}
v_cos_f32 {v(PH+9)}, {v(PH+3)}
v_sin_f32 {v(PH+10)}, {v(PH+2)}
v_sin_f32 {v(PH+11)}, {v(PH+3)}
v_mul_f32 {v(PH)}, {fbits(1/32)}, {v(PH+2)}
v_mul_f32 {v(PH+1)}, {fbits(1/32)}, {v(PH+3)}
v_cos_f32 {v(PH+4)}, {v(PH)}
v_cos_f32 {v(PH+5)}, {v(PH+1)}
v_sin_f32 {v(PH+6)}, {v(PH)}
v_sin_f32 {v(PH+7)}, {v(PH+1)}
{CVT(PH+12, PH+8, PH+9)}
{CVT(PH+13, PH+10, PH+11)}
{CVT(PH+14, PH+10, PH+11, True, True)}
v_add_u32 {v(vS1)}, {T1OFF}, {v(aL16)}
s_lshl_b32 {s(sT[3])}, {s(sT[3])}, 10
s_lshl3_add_u32 {s(sT[3])}, {s(sT[4])}, {s(sT[3])}
v_add_u32 {v(PH)}, {s(sT[3])}, {v(vS1)}
s_lshr_b32 {s(sT[3])}, {s(sW)}, 2
s_lshl_b32 {s(sT[3])}, {s(sT[3])}, 10
s_and_b32 {s(sT[4])}, {s(sW)}, 3
s_lshl2_add_u32 {s(sT[3])}, {s(sT[4])}, {s(sT[3])}
v_add_u32 {v(PH+1)}, {s(sT[3])}, {v(vS1)}
v_mov_b32 {v(vSY)}, {SYOFF}
v_mov_b32 v8, 0
v_mov_b32 v9, 0
v_mov_b32 v10, 0
v_mov_b32 v11, 0
v_lshlrev_b32 {v(vPG)}, 2, v0
v_add_u32 {v(vPG)}, {PGOFF}, {v(vPG)}
ds_write_b64 {v(PH)}, {v(PH+4,2)}
ds_write_b64 {v(PH)}, {v(PH+6,2)} offset:4096
ds_write_b32 {v(PH+1)}, {v(PH+12)} offset:8192
ds_write_b32 {v(PH+1)}, {v(PH+13)} offset:10240
ds_write_b32 {v(PH+1)}, {v(PH+14)} offset:12288
ds_write_b128 {v(vSY)}, v[8:11]
ds_write_b128 {v(vSY)}, v[8:11] offset:16
ds_write_b32 {v(vPG)}, v8
s_add_u32 {s(WS_)}, {s(WS_)}, {OPT['wsoff'] << 20}
s_addc_u32 {s(WS_+1)}, {s(WS_+1)}, 0
s_mov_b32 {s(WS_+2)}, {WSZ}
s_mov_b32 {s(WS_+3)}, 0x20000
s_mov_b32 {s(WR_+2)}, 2101248
s_mov_b32 {s(WR_+3)}, 0x20000
s_mov_b32 {s(WI_+2)}, 2101248
s_mov_b32 {s(WI_+3)}, 0x20000
s_mov_b32 {s(OUT_+2)}, 8388608
s_mov_b32 {s(OUT_+3)}, 0x20000
s_lshl_b32 {s(sM8)}, {s(sM)}, 3
s_mov_b32 {s(sT[6])}, {EW}
s_waitcnt lgkmcnt(0)
s_load_dword {s(sE)}, {s(WS_,2)}, {s(sT[6])}
""")
stamp("tgen", (4,))
A("s_barrier")
stamp("tbar", (4,))
load_tables(vS1)
def late_x():
    A(f"s_cmp_eq_u32 {s(sM)}, 0")
    A("s_cbranch_scc1 L_xdone")
    A(XISS)
    A.label("L_xdone")
if OPT['stag'] == 1: late_x()
stamp("xis2", (4,))
aG = GR + 3
sG = sU[1]
SPW = 3
sX16 = sROLE
A(f"""
s_lshl_b32 {s(sC1)}, {s(sM)}, 4
s_add_u32 {s(sC1)}, {s(sC1)}, {s(sW)}
s_lshl_b32 {s(sC1)}, {s(sC1)}, 2
s_add_u32 {s(sC1)}, {s(sC1)}, {s(sT[5])}
s_mul_i32 {s(sC1)}, {s(sC1)}, {CP}
s_add_u32 {s(sC1)}, {s(sC1)}, {C1}
s_mov_b32 {s(sX16)}, 0x10000
s_add_u32 {s(sC2)}, {s(sM8)}, {s(sW)}
s_lshl_b32 {s(sC2)}, {s(sC2)}, 3
s_add_u32 {s(sC2)}, {s(sC2)}, {s(sT[1])}
s_mul_i32 {s(sC2)}, {s(sC2)}, {CP}
s_add_u32 {s(sC2)}, {s(sC2)}, {C2}
""")
A(f"""
s_lshr_b32 {s(sT[6])}, {s(sT[2])}, 3
s_add_u32 {s(sA)}, {s(sA)}, {s(sT[6])}
s_and_b32 {s(sGRP)}, {s(sT[2])}, 7
v_and_b32 {v(c_)}, 15, {v(vL)}
v_lshrrev_b32 {v(g_)}, 4, {v(vL)}
v_lshrrev_b32 v9, 2, {v(c_)}
v_and_b32 v10, 1, {v(c_)}
v_lshl_add_u32 v9, v9, 1, v10
v_and_b32 v10, 2, {v(c_)}
v_lshl_add_u32 v9, v10, 2, v9
v_mul_u32_u24 {v(aG)}, 1026, v9
s_mul_i32 {s(sG)}, {s(sRHO)}, 16416
""")
A(f"""
v_lshrrev_b32 {v(PH)}, 1, {v(c_)}
v_and_b32 {v(PH+1)}, 1, {v(PH)}
s_bfe_u32 {s(sT[0])}, {s(sRHO)}, 0x10002
v_and_b32 {v(PH+2)}, 1, {v(c_)}
v_xor_b32 {v(PH+2)}, {s(sT[0])}, {v(PH+2)}
v_sub_u32 {v(PH+2)}, {v(PH+2)}, {v(PH+1)}
v_cvt_f32_i32 {v(PH+2)}, {v(PH+2)}
v_mov_b32 {v(PH+3)}, {fbits(0.125)}
v_fmamk_f32 {v(PH+2)}, {v(PH+2)}, {fbits(0.25)}, {v(PH+3)}
v_mul_u32_u24 {v(PH+1)}, 0x8000, {v(PH+1)}
v_lshl_or_b32 {v(PH+1)}, {v(PH+1)}, 16, {v(PH+1)}
v_cvt_f32_u32 {v(PH)}, {v(PH)}
v_add_f32 {v(PH+3)}, {fbits(8.0)}, {v(PH)}
v_lshl_add_u32 {v(PH+4)}, {v(g_)}, 8, {s(sSB)}
v_cvt_f32_u32 {v(PH+4)}, {v(PH+4)}
v_mul_f32 {v(PH+4)}, {fbits(1/2048)}, {v(PH+4)}
v_add_f32 {v(PH+5)}, {fbits(1/16)}, {v(PH+4)}
""")
for mt in range(2):
    for e in range(2):
        t = PH + 8 + (mt*2+e)*3
        A(f"v_fma_f32 {v(t)}, {v(PH+4+e)}, {v(PH if mt == 0 else PH+3)}, {v(PH+2)}")
        A(f"v_cos_f32 {v(t+1)}, {v(t)}")
        A(f"v_sin_f32 {v(t+2)}, {v(t)}")
for mt in range(2):
    for e in range(2):
        t = PH + 8 + (mt*2+e)*3
        cvt(M3 + mt*4 + 2*e, t+1, t+2)
        cvt(M3 + mt*4 + 2*e + 1, t+2, t+1)
        A(f"v_xor_b32 {v(M3 + mt*4 + 2*e + 1)}, {v(PH+1)}, {v(M3 + mt*4 + 2*e + 1)}")
if OPT['stag'] == 2: late_x()
aTR, aP, aQe, aQo, aRD, aST = vT[2:8]
sS1 = sT[8:12]
A(f"""
v_bfe_u32 {v(PH)}, {v(vL)}, 2, 2
v_lshrrev_b32 {v(PH+1)}, 5, {v(vL)}
v_lshl_add_u32 {v(PH)}, {v(PH+1)}, 2, {v(PH)}
v_lshlrev_b32 {v(PH)}, 6, {v(PH)}
v_and_b32 {v(PH+2)}, 16, {v(vL)}
v_lshl_add_u32 {v(PH)}, {v(PH+2)}, 1, {v(PH)}
v_and_b32 {v(PH+2)}, 3, {v(vL)}
v_lshl_add_u32 {v(PH)}, {v(PH+2)}, 3, {v(PH)}
v_add_u32 {v(aTR)}, {s(sW12)}, {v(PH)}
s_mul_i32 {s(sT[0])}, {s(sW)}, {PS}
s_add_u32 {s(sT[0])}, {s(sT[0])}, {EXOFF}
v_and_b32 {v(PH+3)}, 31, {v(vL)}
v_mul_u32_u24 {v(PH+4)}, 20, {v(PH+2)}
v_lshrrev_b32 {v(PH+5)}, 2, {v(PH+3)}
v_mul_u32_u24 {v(PH+6)}, 160, {v(PH+1)}
v_add3_u32 {v(PH+4)}, {v(PH+4)}, {v(PH+5)}, {v(PH+6)}
v_lshl_add_u32 {v(aP)}, {v(PH+4)}, 3, {s(sT[0])}
v_sub_u32 {v(PH+3)}, 32, {v(PH+3)}
v_and_b32 {v(PH+4)}, 3, {v(PH+3)}
v_mul_u32_u24 {v(PH+4)}, 20, {v(PH+4)}
v_lshrrev_b32 {v(PH+5)}, 2, {v(PH+3)}
v_sub_u32 {v(PH+6)}, 160, {v(PH+6)}
v_add3_u32 {v(PH+4)}, {v(PH+4)}, {v(PH+5)}, {v(PH+6)}
v_lshl_add_u32 {v(aQe)}, {v(PH+4)}, 3, {s(sT[0])}
v_and_b32 {v(PH+3)}, 32, {v(PH+3)}
v_lshl_add_u32 {v(aQo)}, {v(PH+3)}, 4, {v(aQe)}
s_mul_i32 {s(sT[0])}, {s(sW)}, 640
s_add_u32 {s(sT[0])}, {s(sT[0])}, {EXOFF}
v_mul_u32_u24 {v(PH)}, {2*PS}, {v(g_)}
v_lshl_add_u32 {v(PH)}, {v(c_)}, 3, {v(PH)}
v_add_u32 {v(aRD)}, {s(sT[0])}, {v(PH)}
v_lshlrev_b32 {v(PH)}, 19, {v(g_)}
v_lshl_add_u32 {v(aST)}, {v(c_)}, 4, {v(PH)}
s_lshl_b32 {s(sS1[0])}, {s(sM)}, 22
s_lshl_b32 {s(sT[0])}, {s(sW)}, 15
s_add_u32 {s(sS1[0])}, {s(sS1[0])}, {s(sT[0])}
s_lshl_b32 {s(sT[0])}, {s(sRHO)}, 8
s_add_u32 {s(sS1[0])}, {s(sS1[0])}, {s(sT[0])}
s_add_u32 {s(sS1[1])}, {s(sS1[0])}, {1<<18}
s_add_u32 {s(sS1[2])}, {s(sS1[0])}, {8<<18}
s_add_u32 {s(sS1[3])}, {s(sS1[0])}, {9<<18}
s_mul_i32 {s(sWB)}, {s(sA)}, 1026
s_lshl_b32 {s(sT[0])}, {s(sGRP)}, 7
s_add_u32 {s(sWB)}, {s(sWB)}, {s(sT[0])}
s_andn2_b32 {s(sWB)}, {s(sWB)}, 15
""")
if OPT['stag'] == 3: late_x()
A(f"""
v_add_u32 {v(PH)}, {s(sW)}, {v(vL)}
v_mul_u32_u24 {v(PH+1)}, 57, {v(PH)}
v_lshrrev_b32 {v(PH+1)}, 9, {v(PH+1)}
v_mul_u32_u24 {v(PH+1)}, {16416-144}, {v(PH+1)}
v_lshl_add_u32 {v(aWM)}, {v(PH)}, 4, {v(PH+1)}
v_add_u32 {v(PH)}, 8, {v(vL)}
v_mul_u32_u24 {v(PH+1)}, 57, {v(PH)}
v_lshrrev_b32 {v(PH+1)}, 9, {v(PH+1)}
v_mul_u32_u24 {v(PH+1)}, {16416-144}, {v(PH+1)}
v_lshl_add_u32 {v(aWT)}, {v(PH)}, 4, {v(PH+1)}
v_add_u32 {v(aWT)}, {56*16416}, {v(aWT)}
s_mov_b32 {s(sEXP)}, 0
s_mov_b32 {s(sONE)}, 1
s_and_b32 {s(sT[1])}, {s(sRHO)}, 15
s_cbranch_scc1 L_noinit
s_waitcnt lgkmcnt(0)
s_mul_i32 {s(sTAG)}, {s(sE)}, 0x9E3779B1
s_add_u32 {s(sTAG)}, {s(sTAG)}, 0x7F4A7C15
s_atomic_swap_x2 {s(sEXP,2)}, {s(WS_,2)}, {s(sC2)}
s_and_b32 {s(sT[1])}, {s(sRHO)}, 31
s_cbranch_scc1 L_noinit
s_atomic_swap_x2 {s(sEXP,2)}, {s(WS_,2)}, {s(sC1)}
L_noinit:
""")
NE = OPT['ne']
A(f"""
s_cmp_lg_u32 {s(sW)}, {SPW}
s_cbranch_scc1 L_nogather
buffer_load_ushort v11, {v(aG)}, {srd(WR_)}, {s(sG)} offen offset:1024
buffer_load_ushort v12, {v(aG)}, {srd(WI_)}, {s(sG)} offen offset:1024
L_nogather:
""")
stamp('setup', (4,))
NEB = OPT['neb']
if OPT['stag'] in (2, 3): A("s_barrier")
NTL = 0
if OPT['tlb']:
    NTL = 2
    if OPT['tlb'] == 1:
        A(f"""
        v_mul_u32_u24 {v(PH)}, {18*16384}, {v(vL)}
        v_lshlrev_b32 {v(PH+1)}, 17, {v(vL)}
        s_lshr_b32 {s(sT[0])}, s2, 4
        s_lshl4_add_u32 {s(sT[0])}, {s(sW)}, {s(sT[0])}
        s_cmp_eq_u32 {s(sT[0])}, 1
        s_cselect_b64 exec, -1, 1
        """)
    else:
        A(f"""
        v_lshlrev_b32 {v(PH)}, 21, {v(vL)}
        v_mov_b32 {v(PH+1)}, {v(PH)}
        s_cmp_eq_u32 {s(sW)}, 0
        s_cselect_b64 exec, 0x1ff, 1
        """)
    A(f"""
    buffer_load_dword {v(GR)}, {v(PH)}, {srd(WS_)}, 0 offen
    buffer_load_dword {v(GR)}, {v(PH+1)}, {srd(OUT_)}, 0 offen
    s_mov_b64 exec, -1
    """)
w_base(sW)
for e in range(max(NE, NEB)):
    if e == min(NE, NEB):
        A(f"s_cmp_eq_u32 {s(sM)}, {0 if NE < NEB else 1}")
        A("s_cbranch_scc1 L_noearly")
    w_piece(e)
A.label("L_noearly")
NEA = NE
if OPT['xpf'] == 2:
    NEA = NE + 2
    A(f"""
    s_cmp_lg_u32 {s(sM)}, 0
    s_cbranch_scc1 L_nopf2
    {XPF}
    L_nopf2:
    """)
def wait_m(lbl, add):
    lo, hi = min(NEA, NEB) + NTL, max(NEA, NEB) + NTL
    A(f"s_waitcnt vmcnt({hi+add})")
    if lo != hi:
        A(f"s_cmp_eq_u32 {s(sM)}, {0 if NEA > NEB else 1}")
        A(f"s_cbranch_scc1 {lbl}")
        A(f"s_waitcnt vmcnt({lo+add})")
        A.label(lbl)
stamp("wiss", (4,))
wait_m("L_wm0", 2)
A(f"""
s_cmp_eq_u32 {s(sW)}, {SPW}
s_cbranch_scc1 L_xw1
""")
wait_m("L_wm1", 0)
A.label("L_xw1")
stamp("x", (1, 2, 4))
for comp, dst in ((0, XR), (1, XI)):
    for t in range(2):
        for j in range(2):
            A(f"ds_read_b64_tr_b16 {v(dst+4*t+2*j,2)}, {v(aTR)} offset:{comp*2048+t*1024+j*512}")
A("s_waitcnt lgkmcnt(0)")
stamp("tr", (2, 4))
weave([M32(D1R, XR, FC, None), M32(D1R, XR+4, FC+4, D1R), M32(D1R, XI, FS, D1R), M32(D1R, XI+4, FS+4, D1R), M32(D1I, XR, FN, None)],
      [f"s_mul_i32 {s(sTAG)}, {s(sE)}, 0x9E3779B1", f"s_add_u32 {s(sTAG)}, {s(sTAG)}, 0x7F4A7C15", "s_nop 4", "s_nop 4"], [2, 0, 0, 1, 1])
weave([M32(D1I, XR+4, FN+4, D1I), M32(D1I, XI, FC, D1I), M32(D1I, XI+4, FC+4, D1I)], TW1(D1R, False), [6, 6, 99])
stamp("m1", (2,))
for t_ in TW2(D1I, XR, XI, False, 0, 8): A(t_)
stamp("tw", (2,))
weave([M32(D2R, FC, XR, None), M32(D2I, FN, XR, None), M32(D2R, FS, XI, D2R), M32(D2I, FC, XI, D2I)], TW2(D1I, XR, XI, False, 8, 16), 6)
weave([M32(D2R, FC+4, XR+4, D2R), M32(D2I, FN+4, XR+4, D2I), M32(D2R, FS+4, XI+4, D2R), M32(D2I, FC+4, XI+4, D2I)], [], 0)
stamp("m2", (2,))
for i in range(16):
    cvt(TMP+i, D2R+i, D2I+i)
stamp("cv", (2,))
for i in range(16):
    kd2 = 8*(i >> 2) + (i & 3)
    if i < 8:
        A(f"ds_write_b32 {v(aP)}, {v(TMP+i)} offset:{(80*(kd2>>1)+8*(kd2&1))*8}")
    else:
        e = 31 - kd2 - 4
        A(f"ds_write_b32 {v(aQo if e & 1 else aQe)}, {v(TMP+i)} offset:{(80*(e>>1)+8*(e&1))*8+4}")
A(f"""
s_mov_b64 exec, 1
ds_write_b32 {v(aP)}, {v(TMP)} offset:4
ds_write_b32 {v(aP)}, {v(TMP+8)} offset:{640*8}
s_mov_b64 exec, -1
""")
stamp("wr", (2,))
A("s_waitcnt lgkmcnt(0)")
stamp("wrd", (2,))
A("s_barrier")
stamp("bar1", (1, 2, 4))
A(f"""
s_cmp_lg_u32 {s(sW)}, {SPW}
s_cbranch_scc1 L_nosp1
v_mul_u32_u24 {v(PH)}, {2*PS}, {v(g_)}
ds_read_b64 {v(XR,2)}, {v(PH)} offset:{EXOFF+640*8}
ds_read_b64 {v(XR+2,2)}, {v(PH)} offset:{EXOFF+640*8+PS}
s_lshl_b32 {s(sT[0])}, {s(sM)}, 13
s_lshl_b32 {s(sT[1])}, {s(sRHO)}, 6
s_add_u32 {s(sT[0])}, {s(sT[0])}, {s(sT[1])}
s_add_u32 {s(sT[1])}, {s(sT[0])}, {WX}
s_add_u32 {s(sT[0])}, {s(sT[0])}, {T1X}
v_lshlrev_b32 {v(PH+1)}, 2, {v(vL)}
v_lshlrev_b32 {v(PH+2)}, 4, {v(g_)}
""")
wait_m("L_wm2", 0)
A(f"""
v_lshl_or_b32 v11, v12, 16, v11
s_mov_b64 exec, 0xffff
buffer_store_dword v11, {v(PH+1)}, {srd(WS_)}, {s(sT[1])} offen sc1
s_mov_b64 exec, -1
s_waitcnt lgkmcnt(0)
""")
m16(D1R, M3, XR, None); m16(D1R+4, M3+4, XR, None)
cvt(TMP, D1R, D1R+2); cvt(TMP+1, D1R+4, D1R+6); cvt(TMP+2, D1R+1, D1R+3); cvt(TMP+3, D1R+5, D1R+7)
A(f"""
s_mov_b32 exec_lo, 0x00010001
s_mov_b32 exec_hi, 0x00010001
buffer_store_dwordx4 {v(TMP,4)}, {v(PH+2)}, {srd(WS_)}, {s(sT[0])} offen sc1
s_mov_b64 exec, -1
L_nosp1:
""")
for t in range(4):
    for jj in range(2):
        A(f"ds_read_b64 {v(XR+4*t+2*jj,2)}, {v(aRD)} offset:{160*t+PS*jj}")
for t in range(4):
    A(f"s_waitcnt lgkmcnt({6-2*t})")
    m16(D1R+8*t, M3, XR+4*t, None)
peek(sC1)
for t in range(4):
    m16(D1R+8*t+4, M3+4, XR+4*t, None)
for mt in range(2):
    for al in range(2):
        o = TMP + 4 + (mt*2+al)*4
        d = D1R + 4*mt + 2*al
        cvt(o, d, d+8); cvt(o+2, d+1, d+9); cvt(o+1, d+16, d+24); cvt(o+3, d+17, d+25)
    for al in range(2):
        o = TMP + 4 + (mt*2+al)*4
        A(f"buffer_store_dwordx4 {v(o,4)}, {v(aST)}, {srd(WS_)}, {s(sS1[mt*2+al])} offen sc1")
stamp("st1", (2,))
sPH = sE
A(f"""
s_barrier
""")
A(f"s_mov_b32 {s(sPH)}, 1")
GH = OPT['gh']
if GH:
    A(f"""
    s_cmp_lt_u32 {s(sW)}, 4
    s_cbranch_scc1 L_nogen
    s_sub_u32 {s(sI)}, {s(sW)}, {4 if GH == 2 else 0}
    L_gen:
    """)
    gen_m2(sI)
    if GH == 2:
        A(f"""
        s_add_u32 {s(sI)}, {s(sI)}, 4
        s_cmp_lt_u32 {s(sI)}, 8
        s_cbranch_scc1 L_gen
        """)
    lds_post(12)
    if GH == 1:
        A(f"s_cmp_lt_u32 {s(sW)}, 4")
        A("s_cbranch_scc1 L_genret")
    A.label("L_nogen")
validate("L_val1", sC1)
A(f"""
s_cmp_lg_u32 {s(sW)}, {SPW}
s_cbranch_scc1 L_nosp2
s_waitcnt vmcnt(4)
s_atomic_add {s(sX16)}, {s(WS_,2)}, {s(sC1)}
L_nosp2:
s_waitcnt vmcnt(0)
""")
signal(sC1)
stamp("fl1")
aW, aF, aRe, aIm, aO, aD = vT[2:8]
sFA, sFB, sFC, sDST, sOI, sDONE, sNEW, sMK = sT[4:12]
A(f"""
s_cmp_ge_u32 {s(sW)}, 4
s_cbranch_scc1 L_helper
""")
assert max(NE, NEB) < 5
w_piece(4)
w_base(sW)
for hh in range(2):
    for e in range(3, min(NE, NEB) - 1, -1):
        if e == max(NE, NEB) - 1:
            A(f"s_cmp_eq_u32 {s(sM)}, {1 if NE < NEB else 0}")
            A(f"s_cbranch_scc1 L_nolate{hh}")
        w_piece(e)
    A.label(f"L_nolate{hh}")
    if hh == 0:
        A(f"""
        v_add_u32 {v(PH)}, {s(sW)}, {v(vL)}
        v_add_u32 {v(PH)}, 4, {v(PH)}
        v_mul_u32_u24 {v(PH+1)}, 57, {v(PH)}
        v_lshrrev_b32 {v(PH+1)}, 9, {v(PH+1)}
        v_mul_u32_u24 {v(PH+1)}, {16416-144}, {v(PH+1)}
        v_lshl_add_u32 {v(aWM)}, {v(PH)}, 4, {v(PH+1)}
        s_add_u32 {s(sT[12])}, {s(sT[12])}, {28*16416}
        s_add_u32 {s(sT[13])}, {s(sT[13])}, 4096
        """)
if GH == 1:
    A(f"s_mov_b32 {s(sI)}, {s(sW)}")
    A("s_branch L_gen")
    A.label("L_genret")
if GH == 0:
    A(f"s_mov_b32 {s(sI)}, {s(sW)}")
    A.label("L_gen")
    gen_m2(sI)
    A(f"""
    s_add_u32 {s(sI)}, {s(sI)}, 4
    s_cmp_lt_u32 {s(sI)}, 8
    s_cbranch_scc1 L_gen
    """)
    lds_post(12)
A(f"""
s_mov_b32 {s(sFA)}, 0
s_and_b32 {s(sFC)}, {s(sA)}, 7
s_mov_b32 {s(sFB)}, 0
s_mul_i32 {s(sOI)}, {s(sW)}, {OS}
s_add_u32 {s(sOI)}, {s(sOI)}, {WOFF}
v_lshrrev_b32 {v(aRe)}, 2, {v(vL)}
v_and_b32 {v(aF)}, 3, {v(aRe)}
v_xor_b32 {v(aF)}, {s(sW)}, {v(aF)}
v_lshlrev_b32 {v(aRe)}, 8, {v(aRe)}
v_lshl_add_u32 {v(aRe)}, {v(aF)}, 6, {v(aRe)}
v_and_b32 {v(aF)}, 3, {v(vL)}
v_lshl_add_u32 {v(aRe)}, {v(aF)}, 4, {v(aRe)}
s_lshl_b32 {s(sT[0])}, {s(sW)}, 5
s_add_u32 {s(sT[0])}, {s(sT[0])}, {WOFF}
v_min_u32 {v(aW)}, 2, {v(g_)}
v_mul_u32_u24 {v(aF)}, 144, {v(c_)}
v_lshl_add_u32 {v(aW)}, {v(aW)}, 4, {v(aF)}
v_add_u32 {v(aW)}, {s(sT[0])}, {v(aW)}
""")
A.label("L_p2common")
A(f"v_lshlrev_b32 {v(aF)}, 4, {v(vL)}")
A(f"v_add_u32 {v(aF)}, {M2OFF}, {v(aF)}")
SEL = DNR
A(f"""
v_lshlrev_b32 {v(DIM)}, {s(sFA)}, {v(c_)}
v_lshlrev_b32 {v(DIM+1)}, 3, {v(g_)}
v_sub_u32 {v(DIM)}, {v(DIM)}, {v(DIM+1)}
v_add_u32 {v(DIM)}, {s(sFC)}, {v(DIM)}
v_add_u32 {v(DIM+1)}, {s(sFB)}, {v(DIM)}
v_mov_b32 {v(DIM+4)}, 0x3500
""")
for q in range(2):
    A(f"v_and_b32 {v(DIM+2)}, 1, {v(DIM+q)}")
    A(f"v_lshlrev_b32 {v(DIM+2)}, 4, {v(DIM+2)}")
    A(f"v_lshlrev_b32 {v(DIM+2)}, {v(DIM+2)}, {v(DIM+4)}")
    A(f"v_ashrrev_i32 {v(DIM+3)}, 1, {v(DIM+q)}")
    for j in range(4):
        A(f"v_cmp_eq_u32 vcc, {j}, {v(DIM+3)}")
        A(f"v_cndmask_b32 {v(SEL+4*q+j)}, 0, {v(DIM+2)}, vcc")
A(f"""
v_and_b32 {v(aIm)}, 1, {v(g_)}
v_lshl_add_u32 {v(aRe)}, {v(aIm)}, 3, {v(aRe)}
v_xor_b32 {v(aIm)}, 8, {v(aRe)}
v_bfe_u32 {v(aO)}, {v(vL)}, 1, 2
v_xor_b32 {v(aO)}, {v(aO)}, {v(g_)}
v_lshlrev_b32 {v(aO)}, 4, {v(aO)}
v_lshl_add_u32 {v(aO)}, {v(c_)}, 6, {v(aO)}
v_add_u32 {v(aO)}, {s(sOI)}, {v(aO)}
v_mov_b32 {v(vT[9])}, 1
s_mov_b32 {s(sT[0])}, 0x80008000
s_mov_b32 {s(sDONE)}, 0
""")
if OPT['gpos'] == 1: lds_wait("L_fr", 12, 8 if GH == 1 else 4)
for f in range(16):
    A(f"ds_read_b128 {v(FR+4*f,4)}, {v(aF)} offset:{f*1024}")
A(f"""
s_waitcnt vmcnt(0)
s_cmp_lt_u32 {s(sW)}, 4
s_cbranch_scc1 L_wreg
""")
for t in range(8):
    m16(WRF+4*t, ER+4*t, SEL, None); m16(WIF+4*t, ER+4*t, SEL+4, None)
A(f"s_movk_i32 {s(sMK)}, 0xff")
A("s_branch L_dspx")
A.label("L_wreg")
lds_post(0)

lds_wait("L_wr", 0, 8)
for t in range(16):
    if t == 12: A("s_waitcnt lgkmcnt(8)")
    A(f"ds_read_b128 {v(ER+4*t,4)}, {v(aW)} offset:{t*2304}")
A(f"s_lshl_b32 {s(sMK)}, 16, {s(sW)}")
lds_bit(4, sMK)
for t in range(16):
    if t >= 4: A(f"s_waitcnt lgkmcnt({16-t})")
    m16(WRF+4*t, ER+4*t, SEL, None)
stamp("wcv", (1,))
A(f"""
s_mov_b32 {s(sCNT)}, 0x40000
L_dsp:
ds_read_b32 {v(vS1)}, {v(vSY)} offset:4
s_sub_u32 {s(sCNT)}, {s(sCNT)}, 1
s_cbranch_scc1 L_fwd_done
s_waitcnt lgkmcnt(0)
v_readfirstlane_b32 {s(sMK)}, {v(vS1)}
L_dspx:
s_andn2_b32 {s(sNEW)}, {s(sMK)}, {s(sDONE)}
s_cbranch_scc0 L_dsp
""")
stamp("dat1", (1, 3))
for u in range(4):
    A(f"s_bitcmp1_b32 {s(sNEW)}, {u}")
    A(f"s_cbranch_scc0 L_nr{u}")
    for j in range(2): A(f"ds_read_b64_tr_b16 {v(DRE+4*u+2*j,2)}, {v(aRe)} offset:{u*8192+j*4096}")
    for j in range(2): A(f"ds_read_b64_tr_b16 {v(DIM+4*u+2*j,2)}, {v(aIm)} offset:{u*8192+j*4096}")
    A.label(f"L_nr{u}")
A(f"s_or_b32 {s(sDONE)}, {s(sDONE)}, {s(sNEW)}")
A("s_waitcnt lgkmcnt(0)")
for u in range(4):
    A(f"s_bitcmp1_b32 {s(sNEW)}, {u}")
    A(f"s_cbranch_scc0 L_nm{u}")
    fc = lambda mt: FR + (u*4 + mt*2) * 4
    fs = lambda mt: FR + (u*4 + mt*2 + 1) * 4
    e = lambda mt: (u*2 + mt) * 4
    weave([M16(ER+e(0), fc(0), DRE+4*u, None), M16(ER+e(1), fc(1), DRE+4*u, None),
           M16(EI+e(0), fc(0), DIM+4*u, None), M16(EI+e(1), fc(1), DIM+4*u, None),
           M16(ER+e(0), fs(0), DIM+4*u, ER+e(0)), M16(ER+e(1), fs(1), DIM+4*u, ER+e(1)),
           M16(EI+e(0), fs(0), DNR+4*u, EI+e(0)), M16(EI+e(1), fs(1), DNR+4*u, EI+e(1))],
          [f"v_xor_b32 {v(DNR+4*u+j)}, {s(sT[0])}, {v(DRE+4*u+j)}" for j in range(4)], 2)
    for f in range(4*u, 4*u+4): A(f"ds_read_b128 {v(FR+4*f,4)}, {v(aF)} offset:{16384+f*1024}")
    A.label(f"L_nm{u}")
A(f"""
s_cmp_lg_u32 {s(sDONE)}, 0xff
s_cbranch_scc1 L_dsp
L_fwd_done:
""")
stamp("fwd", (3,))
A("s_nop 1")
TT = DNR
def pk(op, d, a, b, c=None, na=False, nb=False):
    ops = f"{v(d,2)}, {v(a,2)}, {v(b,2)}" + (f", {v(c,2)}" if c is not None else "")
    n = [int(na), int(nb)] + ([0] if c is not None else [])
    mod = f" neg_lo:{n} neg_hi:{n}".replace(", ", ",") if (na or nb) else ""
    A(f"v_pk_{op}_f32 {ops}{mod}")
add = lambda d, a, b: pk("add", d, a, b)
sub = lambda d, a, b: pk("add", d, a, b, nb=True)
A.raw(".p2align 3")
for mt in range(2):
    for rp in range(2):
        er = lambda u: ER + (u*2+mt)*4 + 2*rp
        ei = lambda u: EI + (u*2+mt)*4 + 2*rp
        wr = lambda q: WRF + (q*2+mt)*4 + 2*rp
        wi = lambda q: WIF + (q*2+mt)*4 + 2*rp
        tr = lambda i: TT + 4*i
        ti = lambda i: TT + 4*i + 2
        add(tr(0), er(0), er(2)); add(ti(0), ei(0), ei(2)); sub(tr(1), er(0), er(2)); sub(ti(1), ei(0), ei(2))
        add(tr(2), er(1), er(3)); add(ti(2), ei(1), ei(3)); sub(tr(3), er(1), er(3)); sub(ti(3), ei(1), ei(3))
        add(er(0), tr(0), tr(2)); add(ei(0), ti(0), ti(2)); sub(er(2), tr(0), tr(2)); sub(ei(2), ti(0), ti(2))
        add(er(1), tr(1), ti(3)); sub(ei(1), ti(1), tr(3)); sub(er(3), tr(1), ti(3)); add(ei(3), ti(1), tr(3))
        for q in range(4):
            pk("mul", tr(q), er(q), wr(q)); pk("mul", ti(q), er(q), wi(q))
        for q in range(4):
            pk("fma", tr(q), ei(q), wi(q), tr(q), na=True); pk("fma", ti(q), ei(q), wr(q), ti(q))
        add(wr(0), tr(0), tr(2)); add(wi(0), ti(0), ti(2)); sub(wr(1), tr(0), tr(2)); sub(wi(1), ti(0), ti(2))
        add(wr(2), tr(1), tr(3)); add(wi(2), ti(1), ti(3)); sub(wr(3), tr(1), tr(3)); sub(wi(3), ti(1), ti(3))
        add(er(0), wr(0), wr(2)); add(ei(0), wi(0), wi(2)); sub(er(2), wr(0), wr(2)); sub(ei(2), wi(0), wi(2))
        sub(er(1), wr(1), wi(3)); add(ei(1), wi(1), wr(3)); add(er(3), wr(1), wi(3)); sub(ei(3), wi(1), wr(3))
def OPS(u):
    L = [CVT(DRE+4*u+j, ER+8*u+2*j, ER+8*u+2*j+1) for j in range(4)]
    L += [CVT(DIM+4*u+j, EI+8*u+2*j, EI+8*u+2*j+1) for j in range(4)]
    L += [CVT(DNR+4*u+j, EI+8*u+2*j, EI+8*u+2*j+1, True, True) for j in range(4)]
    return L
def INV(k):
    e = k*4; o = WRF + e
    return [CVT(o, ER+e, ER+e+1), CVT(o+1, ER+e+2, ER+e+3), CVT(o+2, EI+e, EI+e+1), CVT(o+3, EI+e+2, EI+e+3),
            f"ds_write_b128 {v(aO)}, {v(o,4)} offset:{k*1024}", f"ds_add_u32 {v(vPG)}, {v(vT[9])}"]
for t_ in OPS(0): A(t_)
A("s_waitcnt lgkmcnt(0)")
stamp("mid", (3,))
for k in range(8):
    u, nt = k >> 1, k & 1
    fc, fs, e = FR + (u*4 + nt*2) * 4, FR + (u*4 + nt*2 + 1) * 4, k * 4
    ops = OPS(u+1)[6*nt:6*nt+6] if u < 3 else []
    out = INV(k-1) if k >= 1 else []
    fill = ops + out
    weave([M16(ER+e, DRE+4*u, fc, None), M16(EI+e, DIM+4*u, fc, None), M16(ER+e, DNR+4*u, fs, ER+e), M16(EI+e, DRE+4*u, fs, EI+e)],
          fill, [3, 3, 2, 4] if ops and out else ([2, 2, 2, 0] if ops else [0, 0, 0, 6]))
stamp("inv", (3,))
for t_ in INV(7): A(t_)
stamp("cmp2", (1, 3))
A(f"""
s_cmp_lt_u32 {s(sW)}, 4
s_cbranch_scc1 L_setup3
""")
A(f"""
v_lshlrev_b32 {v(aO)}, 7, {v(c_)}
v_lshl_add_u32 {v(aO)}, {v(g_)}, 4, {v(aO)}
""")
for i in range(8): A(f"v_mov_b32 {v(WIF+2*i+1)}, {s(sTAG)}")
for k in range(8):
    o = WIF + 8*(k & 1)
    for e in range(4): cvt(o+2*e, ER+4*k+e, EI+4*k+e)
    for h in range(2): A(f"buffer_store_dwordx4 {v(o+4*h,4)}, {v(aO)}, {srd(WS_)}, {s(sDST)} offen offset:{(k&1)*2048+h*64} sc1")
    if k & 1: A(f"s_add_u32 {s(sDST)}, {s(sDST)}, 4096")
A(f"""
s_setprio 0
s_branch L_setup3
L_helper:
""")
lds_post(0)
sSRC, sPL, sSG, sBIT = sT[4:8]
A(f"""
s_lshl_b32 {s(sT[0])}, {s(sM)}, 4
s_add_u32 {s(sSRC)}, {s(sT[0])}, {s(sA)}
s_lshl3_add_u32 {s(sSRC)}, {s(sSRC)}, {s(sGRP)}
s_sub_u32 {s(sT[1])}, {s(sW)}, 4
s_lshl2_add_u32 {s(sSRC)}, {s(sSRC)}, {s(sT[1])}
s_lshl_b32 {s(sSRC)}, {s(sSRC)}, 13
s_add_u32 {s(sPL)}, {s(sT[0])}, {s(sGRP)}
s_lshl2_add_u32 {s(sPL)}, {s(sPL)}, {s(sT[1])}
s_mul_i32 {s(sPL)}, {s(sPL)}, {CP}
s_add_u32 {s(sPL)}, {s(sPL)}, {C1}
s_cmp_eq_u32 {s(sGRP)}, {SPW}
s_cselect_b32 {s(sSG)}, 0x200020, 32
s_lshl_b32 m0, {s(sT[1])}, 13
s_lshl_b32 {s(sBIT)}, 1, {s(sT[1])}
v_lshlrev_b32 {v(aD)}, 2, {v(g_)}
v_xor_b32 {v(aD)}, {v(aD)}, {v(c_)}
v_lshlrev_b32 {v(aD)}, 4, {v(aD)}
v_lshl_add_u32 {v(aD)}, {v(g_)}, 8, {v(aD)}
""")
poll("L_poll1", sPL, s(sSG), OPT['sl1'])
stamp("pol1")
for n in range(8):
    A(f"buffer_load_dwordx4 {v(aD)}, {srd(WS_)}, {s(sSRC)} offen offset:{(n&3)*1024} sc1 lds")
    if n == 3:
        A(f"s_add_u32 m0, m0, 4096")
        A(f"s_add_u32 {s(sSRC)}, {s(sSRC)}, 4096")
XP = [WR_, WR_+2, WI_, WI_+2]
A(f"""
s_cmp_lg_u32 {s(sW)}, 4
s_cbranch_scc1 L_posted
s_sub_u32 {s(sT[3])}, s2, {HOST}
s_cmp_ge_u32 {s(sT[3])}, 2
s_cbranch_scc1 L_posted
s_cmp_eq_u32 {s(sT[3])}, 0
s_cbranch_scc1 L_xa
s_waitcnt vmcnt(0)
""")
lds_bit(4, sONE)
A(f"""
L_xa:
s_mul_i32 {s(sT[2])}, {s(sT[3])}, {64*CP}
s_add_u32 {s(sT[2])}, {s(sT[2])}, {C1+SPW*4*CP}
s_mov_b32 {s(sCNT)}, 0x8000
L_pollx:
""")
for i in range(4):
    A(f"s_mov_b64 {s(XP[i],2)}, 0")
    A(f"s_atomic_or_x2 {s(XP[i],2)}, {s(WS_,2)}, {s(sT[2])} offset:{i*CP} glc")
A(f"""
s_sub_u32 {s(sCNT)}, {s(sCNT)}, 1
s_cbranch_scc1 L_pollx_out
s_waitcnt lgkmcnt(0)
""")
for i in range(4):
    A(f"s_cmp_lg_u32 {s(XP[i]+1)}, {s(sTAG)}")
    A("s_cbranch_scc1 L_pollx")
A(f"""
s_and_b32 {s(XP[0])}, {s(XP[0])}, {s(XP[1])}
s_and_b32 {s(XP[2])}, {s(XP[2])}, {s(XP[3])}
s_and_b32 {s(XP[0])}, {s(XP[0])}, {s(XP[2])}
s_bitcmp1_b32 {s(XP[0])}, 21
s_cbranch_scc0 L_pollx
L_pollx_out:
""")
if OPT['xprio']: A("s_setprio 3")
A(f"""
s_mov_b32 {s(sFA)}, 1
s_mov_b32 {s(sFC)}, 0
s_mov_b32 {s(sFB)}, 1
s_lshl_b32 {s(sT[2])}, {s(sT[3])}, 13
s_add_u32 {s(sT[0])}, {s(sT[2])}, {WX}
s_add_u32 {s(sT[1])}, {s(sT[0])}, 4096
s_lshl_b32 {s(sDST)}, {s(sT[3])}, 14
s_add_u32 {s(sDST)}, {s(sDST)}, {T2X}
s_add_u32 {s(sT[2])}, {s(sT[2])}, {T1X}
v_lshlrev_b32 {v(aD)}, 4, {v(vL)}
v_lshlrev_b32 {v(aW)}, 6, {v(c_)}
v_lshl_add_u32 {v(aW)}, {v(g_)}, 4, {v(aW)}
s_mov_b32 {s(sOI)}, {XOUT}
v_add_u32 {v(aRe)}, {EXOFF}, {v(aD)}
s_mov_b32 m0, {EXOFF}
""")
for n in range(8):
    A(f"buffer_load_dwordx4 {v(aD)}, {srd(WS_)}, {s(sT[2])} offen sc1 lds")
    if n < 7:
        A(f"s_add_u32 m0, m0, 4096")
        A(f"s_add_u32 {s(sT[2])}, {s(sT[2])}, 1024")
for t in range(8):
    A(f"buffer_load_dwordx4 {v(ER+4*t,4)}, {v(aW)}, {srd(WS_)}, {s(sT[t>>2])} offen offset:{(t&3)*1024} sc1")
A("s_waitcnt vmcnt(16)")
lds_bit(4, sONE)
A("s_branch L_p2common")
A.label("L_posted")
A(f"""
s_cmp_lt_u32 {s(sW)}, {8-NST}
s_cselect_b32 {s(sPH)}, 1, 0
s_waitcnt vmcnt(0)
""")
lds_bit(4, sBIT)
A.label("L_setup3")
A3 = 237
aD3, aPw, aQ1, aQ0, aRd3, aSo, aQp = range(A3, A3+7)
aT = list(range(A3+9, A3+13))
sMR, sS3 = sT[2], sT[3]
A(f"""
v_lshrrev_b32 {v(PH)}, 1, {v(vL)}
v_xor_b32 {v(PH)}, {v(PH)}, {v(vL)}
v_and_b32 {v(PH)}, 4, {v(PH)}
v_mul_u32_u24 {v(PH)}, 3, {v(PH)}
v_xor_b32 {v(PH)}, {v(PH)}, {v(vL)}
v_lshlrev_b32 {v(vS1)}, 4, {v(PH)}
v_add_u32 {v(vS1)}, {T1OFF}, {v(vS1)}
v_and_b32 {v(aSo)}, 15, {v(PH)}
v_lshlrev_b32 {v(aSo)}, 6, {v(aSo)}
v_and_b32 {v(PH)}, 1, {v(g_)}
v_lshl_add_u32 {v(aSo)}, {v(PH)}, 5, {v(aSo)}
v_lshrrev_b32 {v(PH)}, 1, {v(g_)}
v_lshl_add_u32 {v(aSo)}, {v(PH)}, 4, {v(aSo)}
""")
load_tables(vS1)
A(f"""
v_lshrrev_b32 {v(PH)}, 2, {v(c_)}
v_lshl_add_u32 {v(PH)}, {v(PH)}, 7, {s(sSB)}
v_cvt_f32_u32 {v(PH)}, {v(PH)}
v_mul_f32 {v(PH)}, {fbits(1/2048)}, {v(PH)}
v_add_f32 {v(PH+1)}, {fbits(0.25)}, {v(PH)}
v_and_b32 {v(PH+2)}, 1, {v(c_)}
v_cvt_f32_u32 {v(PH+2)}, {v(PH+2)}
v_mul_f32 {v(PH+2)}, {fbits(-0.25)}, {v(PH+2)}
v_add_f32 {v(PH+3)}, {fbits(-0.125)}, {v(PH+2)}
v_add_f32 {v(PH+2)}, {fbits(0.125)}, {v(PH+2)}
v_and_b32 {v(PH+4)}, 2, {v(c_)}
v_lshlrev_b32 {v(PH+4)}, 30, {v(PH+4)}
v_xor_b32 {v(PH+2)}, {v(PH+4)}, {v(PH+2)}
v_xor_b32 {v(PH+3)}, {v(PH+4)}, {v(PH+3)}
v_lshlrev_b32 {v(PH+4)}, 1, {v(g_)}
v_cvt_f32_u32 {v(PH+4)}, {v(PH+4)}
v_add_f32 {v(PH+5)}, 1.0, {v(PH+4)}
v_add_f32 {v(PH+6)}, {fbits(8.0)}, {v(PH+4)}
v_add_f32 {v(PH+7)}, {fbits(9.0)}, {v(PH+4)}
""")
for mt in range(2):
    for j in range(4):
        t = TMP + (mt*4+j)*3
        A(f"v_fma_f32 {v(t)}, {v(PH+mt)}, {v(PH+4+j)}, {v(PH+2+(j&1))}")
        A(f"v_cos_f32 {v(t+1)}, {v(t)}")
        A(f"v_sin_f32 {v(t+2)}, {v(t)}")
for mt in range(2):
    for j in range(4):
        t = TMP + (mt*4+j)*3
        cvt(M3+mt*4+j, t+1, t+2, False, True)
A(f"""
v_lshrrev_b32 {v(PH)}, 3, {v(vL)}
v_and_b32 {v(PH+1)}, 3, {v(PH)}
v_lshlrev_b32 {v(PH+1)}, 6, {v(PH+1)}
v_lshl_add_u32 {v(PH)}, {v(PH)}, 8, {v(PH+1)}
v_and_b32 {v(PH+1)}, 3, {v(vL)}
v_lshl_add_u32 {v(PH)}, {v(PH+1)}, 4, {v(PH)}
v_and_b32 {v(PH+1)}, 4, {v(vL)}
v_lshl_add_u32 {v(PH)}, {v(PH+1)}, 1, {v(PH)}
v_add_u32 {v(aT[0])}, {s(sW12)}, {v(PH)}
v_xor_b32 {v(aT[1])}, 64, {v(aT[0])}
v_xor_b32 {v(aT[2])}, 128, {v(aT[0])}
v_xor_b32 {v(aT[3])}, 192, {v(aT[0])}
v_mul_u32_u24 {v(PH)}, {PS2}, {v(g_)}
s_lshl_b32 {s(sT[0])}, {s(sW)}, 8
s_add_u32 {s(sT[1])}, {s(sT[0])}, {EX2}
s_sub_u32 {s(sT[0])}, {EX2+15*256}, {s(sT[0])}
v_lshl_add_u32 {v(aPw)}, {v(c_)}, 3, {v(PH)}
v_add_u32 {v(aPw)}, {s(sT[1])}, {v(aPw)}
v_sub_u32 {v(PH+1)}, 16, {v(c_)}
v_lshl_add_u32 {v(PH+1)}, {v(PH+1)}, 3, {v(PH)}
v_add_u32 {v(aQp)}, {s(sT[0])}, {v(PH+1)}
v_cmp_eq_u32 vcc, 0, {v(c_)}
v_mov_b32 {v(PH+2)}, 128
v_mov_b32 {v(PH+3)}, 132
v_mov_b32 {v(PH+4)}, -124
v_cndmask_b32 {v(PH+4)}, {v(PH+2)}, {v(PH+4)}, vcc
v_cndmask_b32 {v(PH+3)}, {v(PH+3)}, {v(PH+2)}, vcc
v_add_u32 {v(aQ1)}, {v(aQp)}, {v(PH+4)}
v_add_u32 {v(aQ0)}, {v(aQp)}, {v(PH+3)}
s_mul_i32 {s(sT[0])}, {s(sW)}, {PS2}
s_add_u32 {s(sT[0])}, {s(sT[0])}, {EX2}
v_and_b32 {v(PH+1)}, 31, {v(vL)}
v_lshrrev_b32 {v(PH+2)}, 5, {v(vL)}
v_lshlrev_b32 {v(PH+3)}, 9, {v(PH+2)}
v_lshl_add_u32 {v(PH+3)}, {v(PH+1)}, 3, {v(PH+3)}
v_add_u32 {v(aRd3)}, {s(sT[0])}, {v(PH+3)}
s_lshl_b32 {s(sO[0])}, {s(sW)}, 7
s_add_u32 {s(sO[0])}, {s(sO[0])}, {s(sSB)}
s_lshl_b32 {s(sO[0])}, {s(sO[0])}, 12
s_lshl_b32 {s(sO[1])}, {s(sM)}, 11
s_add_u32 {s(sO[0])}, {s(sO[0])}, {s(sO[1])}
s_add_u32 {s(sO[1])}, {s(sO[0])}, {1024*4096}
s_mov_b32 {s(sPM)}, 0x05040100
s_mov_b32 {s(sPM+1)}, 0x07060302
""")
A(f"""
v_lshlrev_b32 {v(PH)}, 2, {v(g_)}
v_xor_b32 {v(PH)}, {v(PH)}, {v(c_)}
v_lshlrev_b32 {v(PH)}, 4, {v(PH)}
v_lshl_add_u32 {v(aD3)}, {v(g_)}, 8, {v(PH)}
s_lshl_b32 {s(sMR)}, {s(sM)}, 7
s_add_u32 {s(sMR)}, {s(sMR)}, {s(sRHO)}
s_lshl_b32 {s(sS3)}, {s(sMR)}, 15
s_add_u32 {s(sS3)}, {s(sS3)}, {s(sW12)}
s_add_u32 {s(sS3)}, {s(sS3)}, {T2}
s_cmp_lg_u32 {s(sPH)}, 0
s_cbranch_scc1 L_nosig2
""")
aR0, aR1, aS2, aPr = vT[2], vT[3], vT[4], vT[5]
sD = sT[4:5]
A(f"""
v_bfe_u32 {v(aR0)}, {v(vL)}, 2, 2
v_mul_u32_u24 {v(aR0)}, {OS}, {v(aR0)}
v_lshl_add_u32 {v(aR0)}, {v(g_)}, 6, {v(aR0)}
v_and_b32 {v(aR1)}, 3, {v(vL)}
v_mul_u32_u24 {v(aPr)}, 260, {v(aR1)}
v_add_u32 {v(aPr)}, {PGOFF}, {v(aPr)}
v_lshrrev_b32 {v(aS2)}, 5, {v(vL)}
v_xor_b32 {v(aR1)}, {v(aR1)}, {v(aS2)}
v_lshl_add_u32 {v(aR0)}, {v(aR1)}, 4, {v(aR0)}
s_sub_u32 {s(sT[8])}, 7, {s(sW)}
s_lshl_b32 {s(sT[0])}, {s(sT[8])}, 10
s_add_u32 {s(sT[0])}, {s(sT[0])}, {WOFF}
v_add_u32 {v(aR0)}, {s(sT[0])}, {v(aR0)}
v_xor_b32 {v(aR1)}, 32, {v(aR0)}
v_lshlrev_b32 {v(aS2)}, 15, {v(g_)}
v_lshl_add_u32 {v(aS2)}, {v(c_)}, 4, {v(aS2)}
s_lshl_b32 {s(sD[0])}, {s(sM)}, 22
s_lshl_b32 {s(sT[0])}, {s(sT[8])}, 19
s_add_u32 {s(sD[0])}, {s(sD[0])}, {s(sT[0])}
s_lshl_b32 {s(sT[0])}, {s(sGRP)}, 12
s_add_u32 {s(sD[0])}, {s(sD[0])}, {s(sT[0])}
s_lshl_b32 {s(sT[0])}, {s(sA)}, 8
s_add_u32 {s(sD[0])}, {s(sD[0])}, {s(sT[0])}
s_add_u32 {s(sD[0])}, {s(sD[0])}, {T2}
s_add_u32 {s(sT[0])}, {s(sM8)}, {s(sGRP)}
s_lshl_b32 {s(sT[0])}, {s(sT[0])}, 3
s_add_u32 {s(sT[0])}, {s(sT[0])}, {s(sT[8])}
s_mul_i32 {s(sT[0])}, {s(sT[0])}, {CP}
s_add_u32 {s(sT[0])}, {s(sT[0])}, {C2}
""")
NR = -(-8 // NST)
for i in range(NR):
    if NST*i + NST > 8:
        A(f"s_cmp_ge_u32 {s(sT[8])}, 8")
        A("s_cbranch_scc1 L_short")
    A(f"""
    s_mov_b32 {s(sCNT)}, 0x40000
    L_pg{i}:
    ds_read_b32 {v(vS1)}, {v(aPr)}
    s_sub_u32 {s(sCNT)}, {s(sCNT)}, 1
    s_cbranch_scc1 L_pg{i}_out
    {('s_sleep %d' % OPT['slp']) if i == 0 and OPT['slp'] else ''}
    s_waitcnt lgkmcnt(0)
    v_cmp_ge_u32 vcc, {s(sT[8])}, {v(vS1)}
    s_and_b64 vcc, vcc, vcc
    s_cbranch_scc1 L_pg{i}
    L_pg{i}_out:
    """)
    d = D1R + 16*i
    for j in range(4): A(f"ds_read_b128 {v(d+4*j,4)}, {v(aR1 if j & 1 else aR0)} offset:{i*NST*1024+j*256}")
    A(f"s_add_u32 {s(sT[8])}, {s(sT[8])}, {NST}")
    for j in range(4):
        A(f"s_waitcnt lgkmcnt({3-j})")
        A(f"buffer_store_dwordx4 {v(d+4*j,4)}, {v(aS2)}, {srd(WS_)}, {s(sD[0])} offen sc1")
        A(f"s_add_u32 {s(sD[0])}, {s(sD[0])}, {(4 if j < 3 else 16*NST-12) << 15}")
for i in range(NR):
    A(f"s_waitcnt vmcnt({4*(NR-1-i)})")
    signal(sT[0], NST*i*CP)
if 8 % NST:
    A("s_branch L_nosig2")
    A.label("L_short")
    for i in range(NR-1):
        A(f"s_waitcnt vmcnt({4*(NR-2-i)})")
        signal(sT[0], NST*i*CP)
A.label("L_nosig2")
stamp("fl2")
A("s_barrier")
A(f"s_mov_b32 m0, {s(sW12)}")
poll("L_poll2", sC2, 16, OPT['sl2'])
stamp("pol2")
for j in range(4):
    A(f"buffer_load_dwordx4 {v(aD3)}, {srd(WS_)}, {s(sS3)} offen offset:{j*1024} sc1 lds")
A(f"""
s_cmp_lg_u32 {s(sW)}, 4
s_cbranch_scc1 L_noep
s_cmp_lg_u32 s2, {HOST+1}
s_cbranch_scc1 L_noep
s_mov_b32 {s(sT[4])}, {EW}
s_atomic_swap {s(sTAG)}, {s(WS_,2)}, {s(sT[4])}
s_waitcnt lgkmcnt(0)
L_noep:
""")
GB = [(8, 8), (40, 8), (88, 8), (16, 4), (28, 4)]
GS = [r + i for r, n in GB for i in range(n)]
def granule_loads():
    off = 0
    for r, n in GB:
        A(f"s_load_dwordx{n} {s(r,n)}, {s(WS_,2)}, {s(sT[4])} offset:{off} glc"); off += 4*n
A(f"""
s_cmp_lg_u32 {s(sW)}, 0
s_cbranch_scc1 L_nosp3a
s_lshl_b32 {s(sT[4])}, {s(sMR)}, 7
s_add_u32 {s(sT[4])}, {s(sT[4])}, {T2X}
""")
granule_loads()
A.label("L_nosp3a")
for i in range(16):
    A(f"v_perm_b32 {v(GR+i)}, {v(FN+i//2)}, {v(FC+i//2)}, {s(sPM+(i&1))}")
    A(f"v_perm_b32 {v(GI+i)}, {v(FC+i//2)}, {v(FS+i//2)}, {s(sPM+(i&1))}")
A(f"""
s_cmp_lg_u32 {s(sW)}, 0
s_cbranch_scc1 L_nosp3b
s_mov_b32 {s(sCNT)}, 0x8000
s_branch L_gchk
L_gagain:
s_sub_u32 {s(sCNT)}, {s(sCNT)}, 1
s_cbranch_scc1 L_gok
""")
granule_loads()
A.label("L_gchk")
A("s_waitcnt lgkmcnt(0)")
for i in range(16):
    A(f"s_cmp_lg_u32 {s(GS[2*i+1])}, {s(sTAG)}")
    A("s_cbranch_scc1 L_gagain")
A.label("L_gok")
for h in range(2):
    for g in range(4):
        for q in range(2):
            A(f"v_writelane_b32 {v(TMP+4+2*h+q)}, {s(GS[h*16+g*4+2*q])}, {16*g}")
m16(D2R, M3, TMP+4, None); m16(D2R+4, M3+4, TMP+4, None)
A.label("L_nosp3b")
A("s_waitcnt vmcnt(0)")
stamp("dat2", (1, 3))
for t in (0, 2, 1, 3):
    for jj in range(2):
        A(f"ds_read_b64_tr_b16 {v(XR+4*t+2*jj,2)}, {v(aT[t])} offset:{jj*2048}")
for i, t in enumerate((0, 2, 1, 3)):
    A(f"s_waitcnt lgkmcnt({6-2*i})")
    m16(D1R+8*t, M3, XR+4*t, None); m16(D1R+8*t+4, M3+4, XR+4*t, None)
A(f"""
s_cmp_lg_u32 {s(sW)}, 0
s_cbranch_scc1 L_nofix
s_mov_b32 exec_lo, 0x00010001
s_mov_b32 exec_hi, 0x00010001
""")
for d in (D2R, D1R):
    for mt in range(2):
        for i in range(2):
            A(f"v_add_f32 {v(d+4*mt+i)}, {v(d+4*mt+i)}, {v(d+4*mt+2+i)}")
            A(f"v_mul_f32 {v(d+4*mt+i)}, 0.5, {v(d+4*mt+i)}")
cvt(TMP, D2R, D2R+1); cvt(TMP+1, D2R+4, D2R+5)
A(f"""
ds_write_b32 {v(aPw)}, {v(TMP)} offset:{8*256}
ds_write_b32 {v(aPw)}, {v(TMP+1)} offset:{8*256+4*PS2}
s_mov_b64 exec, -1
L_nofix:
s_nop 1
""")
for tp in range(2):
    for mt in range(2):
        d0 = D1R + 8*tp + 4*mt; d1 = d0 + 16
        o = TMP + 8 + (tp*2+mt)*4
        cvt(o, d0, d0+1); cvt(o+1, d1, d1+1); cvt(o+2, d1+2, d1+3); cvt(o+3, d0+2, d0+3)
for tp in range(2):
    for mt in range(2):
        o = TMP + 8 + (tp*2+mt)*4
        A(f"ds_write_b64 {v(aPw)}, {v(o,2)} offset:{mt*4*PS2+tp*128}")
        if tp == 1:
            A(f"ds_write_b64 {v(aQp)}, {v(o+2,2)} offset:{mt*4*PS2}")
        else:
            A(f"ds_write_b32 {v(aQ1)}, {v(o+2)} offset:{mt*4*PS2}")
            A(f"ds_write_b32 {v(aQ0)}, {v(o+3)} offset:{mt*4*PS2}")
A("s_waitcnt lgkmcnt(0)")
A("s_barrier")
stamp("bar3", (1, 3))
for t in range(4):
    for j in range(2):
        A(f"ds_read_b64 {v(XR+4*t+2*j,2)}, {v(aRd3)} offset:{t*1024+j*256}")
for t in range(4):
    A(f"s_waitcnt lgkmcnt({6-2*t})")
    m32(D1R, XR+4*t, GR+4*t, D1R if t else None)
A("s_nop 4")
weave([M32(D1I, XR+4*t, GI+4*t, D1I if t else None) for t in range(4)], ["s_nop 4"] + TW1(D1R, True), [1, 6, 6, 99])
stamp("m3", (3,))
for t_ in TW2(D1I, XR, XI, True, 0, 8): A(t_)
weave([M32(D2R, XR, FC, None), M32(D2R, XI, FN, D2R), M32(D2I, XR, FS, None), M32(D2I, XI, FC, D2I)], TW2(D1I, XR, XI, True, 8, 16), 6)
weave([M32(D2R, XR+4, FC+4, D2R), M32(D2R, XI+4, FN+4, D2R), M32(D2I, XR+4, FS+4, D2I), M32(D2I, XI+4, FC+4, D2I)], [], 0)
stamp("m4", (3,))
for comp, d in ((0, D2R), (1, D2I)):
    o = TMP + comp*8
    for q in (0, 4, 1, 5, 2, 6, 3, 7): cvt(o+q, d+2*q, d+2*q+1)
    for q in range(4): A(f"v_permlane16_swap_b32 {v(o+q)}, {v(o+4+q)}")
    for j in range(2):
        A(f"buffer_store_dwordx4 {v(o+4*j,4)}, {v(aSo)}, {srd(OUT_)}, {s(sO[comp])} offen offset:{j*1024}{OUTM}")
if OPT['stamp']:
    stamp("st3", (1, 3))
    A("s_waitcnt vmcnt(0)")
    stamp("end")
    A("s_waitcnt lgkmcnt(0)")
    if OPT['probe']:
        e_ = sST + 2*(len(stamps)-1)
        A(f"""
        s_load_dwordx2 s[8:9], s[0:1], 64
        s_mov_b32 s10, {256 << 20}
        s_mov_b32 s11, 0x20000
        s_add_u32 {s(sT[0])}, {s(sST)}, 1800
        s_lshl3_add_u32 {s(sT[4])}, s2, {s(sW)}
        s_lshl_b32 {s(sT[4])}, {s(sT[4])}, 12
        s_add_u32 {s(sT[4])}, {s(sT[4])}, {OPT['poff'] << 20}
        v_lshlrev_b32 v2, 4, {v(vL)}
        L_pw:
        s_memrealtime {s(sT[2],2)}
        s_waitcnt lgkmcnt(0)
        s_sub_u32 {s(sT[1])}, {s(sT[0])}, {s(sT[2])}
        s_cmp_gt_i32 {s(sT[1])}, 0
        s_cbranch_scc1 L_pw
        s_memrealtime {s(sST+2,2)}
        """)
        for j in range(4): A(f"buffer_store_dwordx4 v[16:19], v2, s[8:11], {s(sT[4])} offen offset:{j*1024} sc1")
        A(f"""
        s_waitcnt vmcnt(0)
        s_memrealtime {s(e_,2)}
        """)
        if OPT['probe'] == 2:
            A(f"s_xor_b32 {s(sT[4])}, {s(sT[4])}, {3 << 15}")
            A("s_sleep 64")
            for j in range(4): A(f"buffer_load_dwordx4 v[20:23], v2, s[8:11], {s(sT[4])} offen offset:{j*1024} sc1")
            A("s_waitcnt vmcnt(0)")
        A("s_waitcnt lgkmcnt(0)")
    n = len(stamps)
    assert sST + 2*n <= 88, n
    if OPT['diag']:
        da, db = OPT['da'], OPT['db']
        A(f"""
        s_load_dwordx2 s[94:95], s[0:1], 56
        s_and_b32 {s(sT[4])}, s2, 7
        s_lshl_b32 {s(sT[4])}, {s(sT[4])}, 3
        s_not_b32 {s(sT[11])}, {s(sST)}
        s_waitcnt lgkmcnt(0)
        s_cmp_lg_u32 {s(sW)}, {OPT['wa']}
        s_cbranch_scc1 L_dg1
        s_atomic_umax {s(sST+2*da) if da else s(sT[11])}, s[94:95], {s(sT[4])}
        L_dg1:
        s_cmp_lg_u32 {s(sW)}, {OPT['wb']}
        s_cbranch_scc1 L_end
        s_atomic_umax {s(sST+2*db)}, s[94:95], {s(sT[4])} offset:4
        s_cmp_lg_u32 s2, 100
        s_cbranch_scc1 L_end
        s_add_u32 {s(sT[0])}, {s(sST+2*(n-1))}, 500
        L_amp0:
        s_memrealtime {s(sT[2],2)}
        s_waitcnt lgkmcnt(0)
        s_sub_u32 {s(sT[1])}, {s(sT[0])}, {s(sT[2])}
        s_cmp_gt_i32 {s(sT[1])}, 0
        s_cbranch_scc1 L_amp0
        s_load_dwordx16 s[60:75], s[94:95], 0 glc
        s_waitcnt lgkmcnt(0)
        """)
        for i in range(1, 8):
            A(f"s_max_u32 s60, s60, s{60+2*i}")
            A(f"s_max_u32 s61, s61, s{61+2*i}")
        if not da: A("s_not_b32 s60, s60")
        A(f"""
        s_sub_u32 {s(sT[1])}, s61, s60
        s_lshl_b32 {s(sT[1])}, {s(sT[1])}, 4
        s_min_u32 {s(sT[1])}, {s(sT[1])}, 60000
        s_add_u32 {s(sT[0])}, {s(sT[0])}, {s(sT[1])}
        L_amp:
        s_memrealtime {s(sT[2],2)}
        s_waitcnt lgkmcnt(0)
        s_sub_u32 {s(sT[1])}, {s(sT[0])}, {s(sT[2])}
        s_cmp_gt_i32 {s(sT[1])}, 0
        s_cbranch_scc1 L_amp
        s_branch L_end
        """)
    A(f"s_lshl_b32 {s(sT[0])}, s2, 3")
    A(f"s_add_u32 {s(sT[0])}, {s(sT[0])}, {s(sW)}")
    A(f"s_lshl_b32 {s(sT[0])}, {s(sT[0])}, 7")
    A(f"s_add_u32 {s(sT[0])}, {s(sT[0])}, {STAMP}")
    A("v_mov_b32 v3, 0")
    A("s_mov_b64 exec, 1")
    for i in range(n):
        A(f"v_mov_b32 v2, {s(sST+2*i)}")
        A(f"buffer_store_dword v2, v3, {srd(WS_)}, {s(sT[0])} offen offset:{i*4}")
    A.raw("; stamps: " + " ".join(stamps))
A.label("L_end")
A("s_endpgm")
def kd(name, nv, ns):
    A.raw(f""".p2align 6
.amdhsa_kernel {name}
  .amdhsa_next_free_vgpr {nv}
  .amdhsa_next_free_sgpr {ns}
  .amdhsa_accum_offset {nv}
  .amdhsa_group_segment_fixed_size 0
  .amdhsa_kernarg_size 72
  .amdhsa_user_sgpr_count 2
  .amdhsa_user_sgpr_kernarg_segment_ptr 1
  .amdhsa_system_sgpr_workgroup_id_x 1
  .amdhsa_float_denorm_mode_32 3
.end_amdhsa_kernel""")
A.raw('.section .rodata,"a"')
kd(NAME + "_kernel", 256, 102)
if OPT['lst']: kd("empty_kernel", 8, 16)
open(sys.argv[1], "w").write(A.text())
print(sys.argv[1], "nops:", A.nops, "stamps:", len(stamps), file=sys.stderr)
```

```python
import sys, struct
import numpy as np
from asmlib import Asm, v, s

NAME = "concat_heads__spectral_gfnet__spectral_gfnet__prompt"
OPT = dict(outm=1, xnt=0, wnt=0, wsoff=0, probe=0, poff=64, pbuf=0, tlb=0, diag=0, da=0, db=0, wa=0, wb=0, ne=3, xpf=0, gh=1, xprio=0, slp=2, nst=3, gpos=1, xl=8, stag=2, neb=3, amp=0, ampw=0, stamp=0, sl1=0, sl2=0, lst=0, half=0)
for a_ in sys.argv[2:]:
    k_, v_ = a_.split('='); assert k_ in OPT, k_; OPT[k_] = int(v_)

def fbits(x): return "0x%08x" % struct.unpack('<I', struct.pack('<f', x))[0]
def bf16(x):
    u = np.asarray(x, dtype=np.float32).view(np.uint32)
    return ((u + 0x7FFF + ((u >> 16) & 1)) >> 16).astype(np.uint32)

T1 = 0
T2 = 8 << 20
AUX = 16 << 20
T1X = AUX
T2X = AUX + 0x30000
WX = AUX + 0x8000
CP = 256
C1 = AUX + 0x10000
C2 = AUX + 0x20000
EW = AUX + 0xa0000
STAMP = AUX + 0x100000
WSZ = 18 << 20
EXOFF = 32768
PS = 5184
WOFF = EXOFF + 8 * PS
M2OFF = WOFF + 36864
SYOFF = M2OFF + 32768
PGOFF = SYOFF + 64
T1OFF = PGOFF + 2048
LDSZ = T1OFF + 14336
EX2 = EXOFF
OS = 8320
XOUT = EXOFF + 32768
PS2 = 4160
sW, sM, sRHO, sSB, sA, sGRP = 3, 4, 5, 6, 7, 32
X_, WR_, WI_, OUT_, WS_, TAB_ = 8, 12, 16, 20, 24, 28
sCNT = 33
sT = list(range(34, 48))
sV = 48
sEXP = 50
sTAG = 51
sW12, sM8, sE, sROLE, sC1, sC2 = 52, 53, 54, 55, 56, 57
sPM = 58
sST = 60
sO = [96, 97]
sU = [98, 99, 100, 101]
sONE = sU[2]
srd = lambda b: s(b, 4)

A = Asm()
HOST = 128
NST = OPT['nst']
XNT = ' nt' if OPT['xnt'] else ''
WNT = ' nt' if OPT['wnt'] else ''
OUTM = ['', ' sc1', ' nt', ' sc0 sc1', ' sc1 nt', ' sc0 sc1 nt'][OPT['outm']]
def M32(d, a, b, c): return f"v_mfma_f32_32x32x16_bf16 {v(d,16)}, {v(a,4)}, {v(b,4)}, {v(c,16) if c is not None else 0}"
def M16(d, a, b, c): return f"v_mfma_f32_16x16x32_bf16 {v(d,4)}, {v(a,4)}, {v(b,4)}, {v(c,4) if c is not None else 0}"
def CVT(d, a, b, na=False, nb=False): return f"v_cvt_pk_bf16_f32 {v(d)}, {'-' if na else ''}{v(a)}, {'-' if nb else ''}{v(b)}"
def m32(*a): A(M32(*a))
def m16(*a): A(M16(*a))
def cvt(*a): A(CVT(*a))
def weave(mf, fill, per):
    fill = list(fill)
    for i, m in enumerate(mf):
        A(m)
        n = per[i] if isinstance(per, (list, tuple)) else per
        for _ in range(n):
            if fill: A(fill.pop(0))
    for f in fill: A(f)
stamps = []
def stamp(name, sets=(1,)):
    st = OPT['stamp']
    if name in ("start", "end"):
        if st: A(f"s_memrealtime {s(sST + 2*len(stamps), 2)}"); stamps.append(name)
        if st > 1: A(f"s_memtime {s(sST + 2*len(stamps), 2)}"); stamps.append("c" + name)
    elif st in sets:
        if name not in stamps: stamps.append(name)
        if OPT['probe'] == 3 and name in ('bar3', 'st3'): return
        A(f"{'s_memrealtime' if st == 1 else 's_memtime'} {s(sST + 2*stamps.index(name), 2)}")

vL, c_, g_ = 1, 2, 3
vT = list(range(2, 16))
TC, TS = 16, 32
FC, FS, FN = 48, 56, 64
M3 = 72
GR, GI = 80, 96
XR, XI = 112, 120
D1R, D1I = 128, 144
D2R, D2I = 160, 176
TMP = 192
PH = 224
WRF, WIF = 16, 48
FR = 80
DRE, DIM, DNR = 144, 160, 176
ER, EI = 192, 224

def peek(off, imm=0):
    A(f"s_mov_b64 {s(sV,2)}, 0")
    A(f"s_atomic_or_x2 {s(sV,2)}, {s(WS_,2)}, {s(off)} glc" if not imm else f"s_atomic_or_x2 {s(sV,2)}, {s(WS_,2)}, {s(off)} offset:{imm} glc")
def poll(label, off, count, sleep, imm=0, keep=None):
    A(f"s_mov_b32 {s(sEXP)}, {count}")
    A(f"s_mov_b32 {s(sCNT)}, 0x8000")
    A.label(label)
    peek(off, imm)
    A(f"s_sub_u32 {s(sCNT)}, {s(sCNT)}, 1")
    A(f"s_cbranch_scc1 {label}_out")
    if sleep: A(f"s_sleep {sleep}")
    A("s_waitcnt lgkmcnt(0)")
    if keep is not None:
        A(f"s_mov_b32 {s(keep)}, {s(sV)}")
        A(f"s_and_b32 {s(sV)}, {s(sV)}, 0xffff")
    A(f"s_cmp_eq_u64 {s(sV,2)}, {s(sEXP,2)}")
    A(f"s_cbranch_scc0 {label}")
    A.label(label + "_out")
def validate(label, off, imm=0):
    A(f"s_mov_b32 {s(sCNT)}, 0x8000")
    A.label(label)
    A("s_waitcnt lgkmcnt(0)")
    A(f"s_cmp_eq_u32 {s(sV+1)}, {s(sTAG)}")
    A(f"s_cbranch_scc1 {label}_out")
    peek(off, imm)
    A(f"s_sub_u32 {s(sCNT)}, {s(sCNT)}, 1")
    A(f"s_cbranch_scc0 {label}")
    A("s_waitcnt lgkmcnt(0)")
    A.label(label + "_out")
def signal(off, imm=0):
    A(f"s_atomic_add {s(sONE)}, {s(WS_,2)}, {s(off)}" + (f" offset:{imm}" if imm else ""))

vSY, vS1, vPG = vT[12], vT[13], vT[11]
def lds_wait(label, off, val):
    A(f"s_mov_b32 {s(sCNT)}, 0x40000")
    A.label(label)
    A(f"ds_read_b32 {v(vS1)}, {v(vSY)} offset:{off}")
    A(f"s_sub_u32 {s(sCNT)}, {s(sCNT)}, 1")
    A(f"s_cbranch_scc1 {label}_out")
    A("s_waitcnt lgkmcnt(0)")
    A(f"v_cmp_gt_u32 vcc, {val}, {v(vS1)}")
    A("s_and_b64 vcc, vcc, vcc")
    A(f"s_cbranch_scc1 {label}")
    A.label(label + "_out")
def lds_bit(off, sbit):
    A(f"v_mov_b32 {v(vS1)}, {s(sbit)}")
    A("s_mov_b64 exec, 1")
    A(f"ds_or_b32 {v(vSY)}, {v(vS1)} offset:{off}")
    A("s_mov_b64 exec, -1")
def lds_post(off, rtn=False):
    A(f"v_mov_b32 {v(vS1)}, 1")
    A("s_mov_b64 exec, 1")
    if rtn: A(f"ds_add_rtn_u32 {v(vS1)}, {v(vSY)}, {v(vS1)} offset:{off}")
    else: A(f"ds_add_u32 {v(vSY)}, {v(vS1)} offset:{off}")
    A("s_mov_b64 exec, -1")

sWB, sI = sU[0], sU[3]
aWM, aWT = GR + 4, GR + 5
nlab = [0]
def w_piece(e):
    if e < 4:
        A(f"s_add_u32 m0, {s(sT[13])}, {WOFF + e*9216}")
        if e & 1: A(f"s_add_u32 {s(sI)}, {s(sT[12])}, {64*16416}")
        A(f"buffer_load_dwordx4 {v(aWM)}, {srd(WI_ if e >> 1 else WR_)}, {s(sI if e & 1 else sT[12])} offen{WNT} lds")
    else:
        n = nlab[0]; nlab[0] += 1
        A(f"""
        s_mul_i32 {s(sI)}, {s(sW)}, 9216
        s_add_u32 m0, {s(sI)}, {WOFF + 8192}
        s_and_b32 {s(sI)}, {s(sW)}, 1
        s_mul_i32 {s(sI)}, {s(sI)}, {64*16416}
        s_add_u32 {s(sI)}, {s(sI)}, {s(sWB)}
        s_bitcmp1_b32 {s(sW)}, 1
        s_cbranch_scc1 L_t1_{n}
        buffer_load_dwordx4 {v(aWT)}, {srd(WR_)}, {s(sI)} offen{WNT} lds
        s_branch L_t2_{n}
        L_t1_{n}:
        buffer_load_dwordx4 {v(aWT)}, {srd(WI_)}, {s(sI)} offen{WNT} lds
        L_t2_{n}:
        """)
def w_base(sw):
    A(f"s_mul_i32 {s(sT[12])}, {s(sw)}, {7*16416}")
    A(f"s_add_u32 {s(sT[12])}, {s(sT[12])}, {s(sWB)}")
    A(f"s_lshl_b32 {s(sT[13])}, {s(sw)}, 10")

def gen_m2(sW):
    G = D2R
    kf, s0, af, bf, ai, bi, ad = G, G+1, G+2, G+3, G+4, G+5, G+6
    P, C_, S_ = D1R, D1R+16, G+8
    A(f"""
    s_and_b32 {s(sT[12])}, {s(sW)}, 1
    s_lshl_b32 {s(sT[12])}, {s(sT[12])}, 4
    s_lshr_b32 {s(sT[13])}, {s(sW)}, 1
    v_add_u32 {v(kf)}, {s(sT[12])}, {v(c_)}
    v_lshl_add_u32 {v(ai)}, {v(kf)}, 2, {s(sT[13])}
    v_lshl_add_u32 {v(s0)}, {v(g_)}, 4, {s(sT[13])}
    v_mul_u32_u24 {v(bf)}, {v(s0)}, {v(kf)}
    v_mul_u32_u24 {v(bi)}, {v(g_)}, {v(ai)}
    v_cvt_f32_u32 {v(af)}, {v(kf)}
    v_cvt_f32_u32 {v(ai)}, {v(ai)}
    v_cvt_f32_u32 {v(bf)}, {v(bf)}
    v_cvt_f32_u32 {v(bi)}, {v(bi)}
    v_mul_f32 {v(bf)}, {fbits(1/128)}, {v(bf)}
    v_mul_f32 {v(bi)}, {fbits(1/32)}, {v(bi)}
    s_lshl_b32 {s(sT[12])}, {s(sW)}, 11
    s_add_u32 {s(sT[12])}, {s(sT[12])}, {M2OFF}
    v_lshl_add_u32 {v(ad)}, {v(vL)}, 4, {s(sT[12])}
    """)
    for d in range(2):
        for i in range(8):
            c = 16*(i >> 2) + (i & 3)
            A(f"v_fmamk_f32 {v(P+8*d+i)}, {v(ai if d else af)}, {fbits(c/128 if d else c/32)}, {v(bi if d else bf)}")
    for i in range(16):
        A(f"v_cos_f32 {v(C_+i)}, {v(P+i)}")
        A(f"v_sin_f32 {v(S_+i)}, {v(P+i)}")
    for d in range(2):
        for j in range(4):
            cvt(P+8*d+j, C_+8*d+2*j, C_+8*d+2*j+1)
            cvt(P+8*d+4+j, S_+8*d+2*j, S_+8*d+2*j+1)
    for d in range(2):
        for cs in range(2):
            A(f"ds_write_b128 {v(ad)}, {v(P+8*d+4*cs,4)} offset:{d*16384+cs*1024}")

def load_tables(addr):
    for i in (8, 9, 10, 11, 12, 13, 0, 4, 1, 5, 2, 6, 3, 7):
        A(f"ds_read_b128 {v(TC+4*i,4)}, {v(addr)} offset:{i*1024}")

def TW1(dr, conj):
    L = []
    for i in range(16):
        L.append(f"v_mul_f32 {v(TMP+i)}, {v(dr+i)}, {v(TC+i)}")
        L.append(f"v_mul_f32 {v(TMP+16+i)}, {v(dr+i)}, {v(TS+i)}" if conj else f"v_mul_f32_e64 {v(TMP+16+i)}, -{v(dr+i)}, {v(TS+i)}")
    return L
def TW2(di, outr, outi, conj, lo, hi):
    L = []
    for i in range(lo, hi, 2):
        for e in range(2):
            L.append(f"v_fma_f32 {v(TMP+i+e)}, -{v(di+i+e)}, {v(TS+i+e)}, {v(TMP+i+e)}" if conj else f"v_fmac_f32 {v(TMP+i+e)}, {v(di+i+e)}, {v(TS+i+e)}")
            L.append(f"v_fmac_f32 {v(TMP+16+i+e)}, {v(di+i+e)}, {v(TC+i+e)}")
        L.append(CVT(outr + i//2, TMP+i, TMP+i+1))
        L.append(CVT(outi + i//2, TMP+16+i, TMP+16+i+1))
    return L

if OPT['lst'] == 0: A.raw(f"; @launch grid=(256,1,1) block=(512,1,1) lds={LDSZ}")
else:
    A.raw(f"; @launch kernel={NAME}_kernel grid=(256,1,1) block=(512,1,1) lds={LDSZ}")
    A.raw(f"; @launch kernel=empty_kernel grid=(1,1,1) block=(64,1,1) lds=0")
A.raw('.amdgcn_target "amdgcn-amd-amdhsa--gfx950"\n.text')
if OPT['lst']: A.raw(".globl empty_kernel\n.p2align 8\n.type empty_kernel,@function\nempty_kernel:\n s_endpgm")
A.raw(f".globl {NAME}_kernel\n.p2align 8\n.type {NAME}_kernel,@function")
A.label(f"{NAME}_kernel")
aL16 = GR + 1
A(f"""
s_cmp_ge_u32 s2, 256
s_cbranch_scc1 L_end
s_bfe_u32 {s(sM)}, s2, 0x10003
s_mul_i32 {s(sT[0])}, {s(sM)}, 24
s_load_dwordx2 {s(X_,2)}, s[0:1], {s(sT[0])}
s_load_dwordx2 {s(WS_,2)}, s[0:1], 64
s_load_dwordx2 {s(WR_,2)}, s[0:1], {s(sT[0])} offset:8
s_load_dwordx2 {s(WI_,2)}, s[0:1], {s(sT[0])} offset:16
s_load_dwordx2 {s(OUT_,2)}, s[0:1], 48
""")
PF_ = 40
if OPT['xpf']:
    A(f"""
    s_sub_u32 {s(sT[0])}, 24, {s(sT[0])}
    s_load_dwordx2 {s(88,2)}, s[0:1], {s(sT[0])} offset:8
    s_load_dwordx2 {s(92,2)}, s[0:1], {s(sT[0])} offset:16
    """)
stamp("start")
A(f"""
v_lshrrev_b32 v2, 6, v0
v_and_b32 {v(vL)}, 63, v0
s_and_b32 {s(sT[1])}, s2, 7
v_readfirstlane_b32 {s(sW)}, v2
s_lshr_b32 {s(sT[2])}, s2, 4
s_lshl_b32 {s(sRHO)}, {s(sT[1])}, 4
s_add_u32 {s(sRHO)}, {s(sRHO)}, {s(sT[2])}
s_and_b32 {s(sSB)}, {s(sRHO)}, 31
s_lshr_b32 {s(sT[5])}, {s(sRHO)}, 5
s_lshl2_add_u32 {s(sSB)}, {s(sSB)}, {s(sT[5])}
v_lshlrev_b32 {v(aL16)}, 4, {v(vL)}
s_mov_b32 {s(X_+2)}, 4194304
s_mov_b32 {s(X_+3)}, 0x20000
s_lshl_b32 {s(sO[0])}, {s(sW)}, 7
s_add_u32 {s(sO[0])}, {s(sO[0])}, {s(sSB)}
s_lshl_b32 {s(sO[0])}, {s(sO[0])}, 11
s_add_u32 {s(sO[1])}, {s(sO[0])}, 0x200000
s_lshl_b32 {s(sW12)}, {s(sW)}, 12
s_mov_b32 m0, {s(sW12)}
s_getpc_b64 {s(TAB_,2)}
L_pc:
s_mov_b32 {s(TAB_+2)}, L_end-L_pc
s_mov_b32 {s(TAB_+3)}, 0x20000
v_lshlrev_b32 v3, 11, v2
s_lshl_b32 {s(sT[6])}, {s(sT[2])}, 7
buffer_load_dword {v(GR)}, v3, {srd(TAB_)}, {s(sT[6])} offen
s_lshl_b32 {s(sA)}, {s(sT[1])}, 1
""")
if OPT['xpf']:
    A(f"""
    s_lshl3_add_u32 {s(sPM)}, {s(sT[2])}, {s(sW)}
    s_lshl4_add_u32 {s(sPM)}, {s(sPM)}, {s(sA)}
    s_mul_i32 {s(sPM)}, {s(sPM)}, 1026
    v_lshlrev_b32 {v(GR+2)}, 7, {v(vL)}
    v_min_u32 {v(GR+2)}, 2048, {v(GR+2)}
    s_mov_b32 s90, 2101248
    s_mov_b32 s91, 0x20000
    s_mov_b32 s94, 2101248
    s_mov_b32 s95, 0x20000
    """)
A("s_waitcnt lgkmcnt(0)")
stamp("karg", (4,))
if OPT['probe'] == 3:
    A(f"""
    s_mov_b32 {s(WS_+2)}, {256 << 20}
    s_mov_b32 {s(WS_+3)}, 0x20000
    s_lshl3_add_u32 {s(sT[4])}, s2, {s(sW)}
    s_lshl_b32 {s(sT[4])}, {s(sT[4])}, 12
    s_add_u32 {s(sT[4])}, {s(sT[4])}, {OPT['poff'] << 20}
    s_add_u32 {s(sT[0])}, {s(sST)}, {OPT['pbuf']}
    L_pw0:
    s_memrealtime s[84:85]
    s_waitcnt lgkmcnt(0)
    s_sub_u32 {s(sT[3])}, {s(sT[0])}, s84
    s_cmp_gt_i32 {s(sT[3])}, 0
    s_cbranch_scc1 L_pw0
    """)
    for j in range(4): A(f"buffer_store_dwordx4 v[16:19], {v(aL16)}, {srd(WS_)}, {s(sT[4])} offen offset:{j*1024} sc1")
    A(f"""
    s_waitcnt vmcnt(0)
    s_memrealtime s[82:83]
    s_sleep 32
    s_waitcnt lgkmcnt(0)
    """)
sX0, sX1 = sO
XISS = f"""
buffer_load_dwordx4 {v(aL16)}, {srd(X_)}, {s(sX0)} offen{XNT} lds
buffer_load_dwordx4 {v(aL16)}, {srd(X_)}, {s(sX0)} offen offset:1024{XNT} lds
s_add_u32 m0, {s(sW12)}, 2048
buffer_load_dwordx4 {v(aL16)}, {srd(X_)}, {s(sX1)} offen{XNT} lds
buffer_load_dwordx4 {v(aL16)}, {srd(X_)}, {s(sX1)} offen offset:1024{XNT} lds
"""
aPF = GR + 2
sPF = sPM
XPF = f"""
buffer_load_dword {v(GR)}, {v(aPF)}, s[88:91], {s(sPF)} offen
buffer_load_dword {v(GR)}, {v(aPF)}, s[92:95], {s(sPF)} offen
"""
if OPT['xpf']:
    A(f"""
    s_cmp_eq_u32 {s(sM)}, 0
    s_cbranch_scc1 L_nopf
    {XPF}
    s_barrier
    L_nopf:
    """)
if OPT['stag']:
    A(f"s_cmp_lg_u32 {s(sM)}, 0")
    A("s_cbranch_scc1 L_xlate")
A(XISS)
A.label("L_xlate")
stamp("xiss", (4,))
A(f"""
s_lshr_b32 {s(sT[3])}, {s(sW)}, 1
s_and_b32 {s(sT[4])}, {s(sW)}, 1
s_lshl_b32 {s(sT[6])}, {s(sT[3])}, 2
s_add_u32 {s(sT[6])}, {s(sT[6])}, {s(sT[4])}
s_lshl_b32 {s(sT[6])}, {s(sT[6])}, 1
v_lshrrev_b32 {v(PH)}, 5, {v(vL)}
v_and_b32 {v(PH+1)}, 31, {v(vL)}
v_lshl_add_u32 {v(PH)}, {v(PH)}, 2, {s(sT[6])}
v_mul_u32_u24 {v(PH)}, {v(PH)}, {v(PH+1)}
v_add_u32 {v(PH+1)}, {v(PH)}, {v(PH+1)}
v_cvt_f32_u32 {v(PH)}, {v(PH)}
v_cvt_f32_u32 {v(PH+1)}, {v(PH+1)}
v_mul_f32 {v(PH+2)}, {fbits(1/32)}, {v(PH)}
v_mul_f32 {v(PH+3)}, {fbits(1/32)}, {v(PH+1)}
v_cos_f32 {v(PH+8)}, {v(PH+2)}
v_cos_f32 {v(PH+9)}, {v(PH+3)}
v_sin_f32 {v(PH+10)}, {v(PH+2)}
v_sin_f32 {v(PH+11)}, {v(PH+3)}
v_mul_f32 {v(PH)}, {fbits(1/32)}, {v(PH+2)}
v_mul_f32 {v(PH+1)}, {fbits(1/32)}, {v(PH+3)}
v_cos_f32 {v(PH+4)}, {v(PH)}
v_cos_f32 {v(PH+5)}, {v(PH+1)}
v_sin_f32 {v(PH+6)}, {v(PH)}
v_sin_f32 {v(PH+7)}, {v(PH+1)}
{CVT(PH+12, PH+8, PH+9)}
{CVT(PH+13, PH+10, PH+11)}
{CVT(PH+14, PH+10, PH+11, True, True)}
v_add_u32 {v(vS1)}, {T1OFF}, {v(aL16)}
s_lshl_b32 {s(sT[3])}, {s(sT[3])}, 10
s_lshl3_add_u32 {s(sT[3])}, {s(sT[4])}, {s(sT[3])}
v_add_u32 {v(PH)}, {s(sT[3])}, {v(vS1)}
s_lshr_b32 {s(sT[3])}, {s(sW)}, 2
s_lshl_b32 {s(sT[3])}, {s(sT[3])}, 10
s_and_b32 {s(sT[4])}, {s(sW)}, 3
s_lshl2_add_u32 {s(sT[3])}, {s(sT[4])}, {s(sT[3])}
v_add_u32 {v(PH+1)}, {s(sT[3])}, {v(vS1)}
v_mov_b32 {v(vSY)}, {SYOFF}
v_mov_b32 v8, 0
v_mov_b32 v9, 0
v_mov_b32 v10, 0
v_mov_b32 v11, 0
v_lshlrev_b32 {v(vPG)}, 2, v0
v_add_u32 {v(vPG)}, {PGOFF}, {v(vPG)}
ds_write_b64 {v(PH)}, {v(PH+4,2)}
ds_write_b64 {v(PH)}, {v(PH+6,2)} offset:4096
ds_write_b32 {v(PH+1)}, {v(PH+12)} offset:8192
ds_write_b32 {v(PH+1)}, {v(PH+13)} offset:10240
ds_write_b32 {v(PH+1)}, {v(PH+14)} offset:12288
ds_write_b128 {v(vSY)}, v[8:11]
ds_write_b128 {v(vSY)}, v[8:11] offset:16
ds_write_b32 {v(vPG)}, v8
s_add_u32 {s(WS_)}, {s(WS_)}, {OPT['wsoff'] << 20}
s_addc_u32 {s(WS_+1)}, {s(WS_+1)}, 0
s_mov_b32 {s(WS_+2)}, {WSZ}
s_mov_b32 {s(WS_+3)}, 0x20000
s_mov_b32 {s(WR_+2)}, 2101248
s_mov_b32 {s(WR_+3)}, 0x20000
s_mov_b32 {s(WI_+2)}, 2101248
s_mov_b32 {s(WI_+3)}, 0x20000
s_mov_b32 {s(OUT_+2)}, 8388608
s_mov_b32 {s(OUT_+3)}, 0x20000
s_lshl_b32 {s(sM8)}, {s(sM)}, 3
s_mov_b32 {s(sT[6])}, {EW}
s_waitcnt lgkmcnt(0)
s_load_dword {s(sE)}, {s(WS_,2)}, {s(sT[6])}
""")
stamp("tgen", (4,))
A("s_barrier")
stamp("tbar", (4,))
load_tables(vS1)
def late_x():
    A(f"s_cmp_eq_u32 {s(sM)}, 0")
    A("s_cbranch_scc1 L_xdone")
    A(XISS)
    A.label("L_xdone")
if OPT['stag'] == 1: late_x()
stamp("xis2", (4,))
aG = GR + 3
sG = sU[1]
SPW = 3
sX16 = sROLE
A(f"""
s_lshl_b32 {s(sC1)}, {s(sM)}, 4
s_add_u32 {s(sC1)}, {s(sC1)}, {s(sW)}
s_lshl_b32 {s(sC1)}, {s(sC1)}, 2
s_add_u32 {s(sC1)}, {s(sC1)}, {s(sT[5])}
s_mul_i32 {s(sC1)}, {s(sC1)}, {CP}
s_add_u32 {s(sC1)}, {s(sC1)}, {C1}
s_mov_b32 {s(sX16)}, 0x10000
s_add_u32 {s(sC2)}, {s(sM8)}, {s(sW)}
s_lshl_b32 {s(sC2)}, {s(sC2)}, 3
s_add_u32 {s(sC2)}, {s(sC2)}, {s(sT[1])}
s_mul_i32 {s(sC2)}, {s(sC2)}, {CP}
s_add_u32 {s(sC2)}, {s(sC2)}, {C2}
""")
A(f"""
s_lshr_b32 {s(sT[6])}, {s(sT[2])}, 3
s_add_u32 {s(sA)}, {s(sA)}, {s(sT[6])}
s_and_b32 {s(sGRP)}, {s(sT[2])}, 7
v_and_b32 {v(c_)}, 15, {v(vL)}
v_lshrrev_b32 {v(g_)}, 4, {v(vL)}
v_lshrrev_b32 v9, 2, {v(c_)}
v_and_b32 v10, 1, {v(c_)}
v_lshl_add_u32 v9, v9, 1, v10
v_and_b32 v10, 2, {v(c_)}
v_lshl_add_u32 v9, v10, 2, v9
v_mul_u32_u24 {v(aG)}, 1026, v9
s_mul_i32 {s(sG)}, {s(sRHO)}, 16416
""")
A(f"""
v_lshrrev_b32 {v(PH)}, 1, {v(c_)}
v_and_b32 {v(PH+1)}, 1, {v(PH)}
s_bfe_u32 {s(sT[0])}, {s(sRHO)}, 0x10002
v_and_b32 {v(PH+2)}, 1, {v(c_)}
v_xor_b32 {v(PH+2)}, {s(sT[0])}, {v(PH+2)}
v_sub_u32 {v(PH+2)}, {v(PH+2)}, {v(PH+1)}
v_cvt_f32_i32 {v(PH+2)}, {v(PH+2)}
v_mov_b32 {v(PH+3)}, {fbits(0.125)}
v_fmamk_f32 {v(PH+2)}, {v(PH+2)}, {fbits(0.25)}, {v(PH+3)}
v_mul_u32_u24 {v(PH+1)}, 0x8000, {v(PH+1)}
v_lshl_or_b32 {v(PH+1)}, {v(PH+1)}, 16, {v(PH+1)}
v_cvt_f32_u32 {v(PH)}, {v(PH)}
v_add_f32 {v(PH+3)}, {fbits(8.0)}, {v(PH)}
v_lshl_add_u32 {v(PH+4)}, {v(g_)}, 8, {s(sSB)}
v_cvt_f32_u32 {v(PH+4)}, {v(PH+4)}
v_mul_f32 {v(PH+4)}, {fbits(1/2048)}, {v(PH+4)}
v_add_f32 {v(PH+5)}, {fbits(1/16)}, {v(PH+4)}
""")
for mt in range(2):
    for e in range(2):
        t = PH + 8 + (mt*2+e)*3
        A(f"v_fma_f32 {v(t)}, {v(PH+4+e)}, {v(PH if mt == 0 else PH+3)}, {v(PH+2)}")
        A(f"v_cos_f32 {v(t+1)}, {v(t)}")
        A(f"v_sin_f32 {v(t+2)}, {v(t)}")
for mt in range(2):
    for e in range(2):
        t = PH + 8 + (mt*2+e)*3
        cvt(M3 + mt*4 + 2*e, t+1, t+2)
        cvt(M3 + mt*4 + 2*e + 1, t+2, t+1)
        A(f"v_xor_b32 {v(M3 + mt*4 + 2*e + 1)}, {v(PH+1)}, {v(M3 + mt*4 + 2*e + 1)}")
if OPT['stag'] == 2: late_x()
aTR, aP, aQe, aQo, aRD, aST = vT[2:8]
sS1 = sT[8:12]
A(f"""
v_bfe_u32 {v(PH)}, {v(vL)}, 2, 2
v_lshrrev_b32 {v(PH+1)}, 5, {v(vL)}
v_lshl_add_u32 {v(PH)}, {v(PH+1)}, 2, {v(PH)}
v_lshlrev_b32 {v(PH)}, 6, {v(PH)}
v_and_b32 {v(PH+2)}, 16, {v(vL)}
v_lshl_add_u32 {v(PH)}, {v(PH+2)}, 1, {v(PH)}
v_and_b32 {v(PH+2)}, 3, {v(vL)}
v_lshl_add_u32 {v(PH)}, {v(PH+2)}, 3, {v(PH)}
v_add_u32 {v(aTR)}, {s(sW12)}, {v(PH)}
s_mul_i32 {s(sT[0])}, {s(sW)}, {PS}
s_add_u32 {s(sT[0])}, {s(sT[0])}, {EXOFF}
v_and_b32 {v(PH+3)}, 31, {v(vL)}
v_mul_u32_u24 {v(PH+4)}, 20, {v(PH+2)}
v_lshrrev_b32 {v(PH+5)}, 2, {v(PH+3)}
v_mul_u32_u24 {v(PH+6)}, 160, {v(PH+1)}
v_add3_u32 {v(PH+4)}, {v(PH+4)}, {v(PH+5)}, {v(PH+6)}
v_lshl_add_u32 {v(aP)}, {v(PH+4)}, 3, {s(sT[0])}
v_sub_u32 {v(PH+3)}, 32, {v(PH+3)}
v_and_b32 {v(PH+4)}, 3, {v(PH+3)}
v_mul_u32_u24 {v(PH+4)}, 20, {v(PH+4)}
v_lshrrev_b32 {v(PH+5)}, 2, {v(PH+3)}
v_sub_u32 {v(PH+6)}, 160, {v(PH+6)}
v_add3_u32 {v(PH+4)}, {v(PH+4)}, {v(PH+5)}, {v(PH+6)}
v_lshl_add_u32 {v(aQe)}, {v(PH+4)}, 3, {s(sT[0])}
v_and_b32 {v(PH+3)}, 32, {v(PH+3)}
v_lshl_add_u32 {v(aQo)}, {v(PH+3)}, 4, {v(aQe)}
s_mul_i32 {s(sT[0])}, {s(sW)}, 640
s_add_u32 {s(sT[0])}, {s(sT[0])}, {EXOFF}
v_mul_u32_u24 {v(PH)}, {2*PS}, {v(g_)}
v_lshl_add_u32 {v(PH)}, {v(c_)}, 3, {v(PH)}
v_add_u32 {v(aRD)}, {s(sT[0])}, {v(PH)}
v_lshlrev_b32 {v(PH)}, 19, {v(g_)}
v_lshl_add_u32 {v(aST)}, {v(c_)}, 4, {v(PH)}
s_lshl_b32 {s(sS1[0])}, {s(sM)}, 22
s_lshl_b32 {s(sT[0])}, {s(sW)}, 15
s_add_u32 {s(sS1[0])}, {s(sS1[0])}, {s(sT[0])}
s_lshl_b32 {s(sT[0])}, {s(sRHO)}, 8
s_add_u32 {s(sS1[0])}, {s(sS1[0])}, {s(sT[0])}
s_add_u32 {s(sS1[1])}, {s(sS1[0])}, {1<<18}
s_add_u32 {s(sS1[2])}, {s(sS1[0])}, {8<<18}
s_add_u32 {s(sS1[3])}, {s(sS1[0])}, {9<<18}
s_mul_i32 {s(sWB)}, {s(sA)}, 1026
s_lshl_b32 {s(sT[0])}, {s(sGRP)}, 7
s_add_u32 {s(sWB)}, {s(sWB)}, {s(sT[0])}
s_andn2_b32 {s(sWB)}, {s(sWB)}, 15
""")
if OPT['stag'] == 3: late_x()
A(f"""
v_add_u32 {v(PH)}, {s(sW)}, {v(vL)}
v_mul_u32_u24 {v(PH+1)}, 57, {v(PH)}
v_lshrrev_b32 {v(PH+1)}, 9, {v(PH+1)}
v_mul_u32_u24 {v(PH+1)}, {16416-144}, {v(PH+1)}
v_lshl_add_u32 {v(aWM)}, {v(PH)}, 4, {v(PH+1)}
v_add_u32 {v(PH)}, 8, {v(vL)}
v_mul_u32_u24 {v(PH+1)}, 57, {v(PH)}
v_lshrrev_b32 {v(PH+1)}, 9, {v(PH+1)}
v_mul_u32_u24 {v(PH+1)}, {16416-144}, {v(PH+1)}
v_lshl_add_u32 {v(aWT)}, {v(PH)}, 4, {v(PH+1)}
v_add_u32 {v(aWT)}, {56*16416}, {v(aWT)}
s_mov_b32 {s(sEXP)}, 0
s_mov_b32 {s(sONE)}, 1
s_and_b32 {s(sT[1])}, {s(sRHO)}, 15
s_cbranch_scc1 L_noinit
s_waitcnt lgkmcnt(0)
s_mul_i32 {s(sTAG)}, {s(sE)}, 0x9E3779B1
s_add_u32 {s(sTAG)}, {s(sTAG)}, 0x7F4A7C15
s_atomic_swap_x2 {s(sEXP,2)}, {s(WS_,2)}, {s(sC2)}
s_and_b32 {s(sT[1])}, {s(sRHO)}, 31
s_cbranch_scc1 L_noinit
s_atomic_swap_x2 {s(sEXP,2)}, {s(WS_,2)}, {s(sC1)}
L_noinit:
""")
NE = OPT['ne']
A(f"""
s_cmp_lg_u32 {s(sW)}, {SPW}
s_cbranch_scc1 L_nogather
buffer_load_ushort v11, {v(aG)}, {srd(WR_)}, {s(sG)} offen offset:1024
buffer_load_ushort v12, {v(aG)}, {srd(WI_)}, {s(sG)} offen offset:1024
L_nogather:
""")
stamp('setup', (4,))
NEB = OPT['neb']
if OPT['stag'] in (2, 3): A("s_barrier")
NTL = 0
if OPT['tlb']:
    NTL = 2
    if OPT['tlb'] == 1:
        A(f"""
        v_mul_u32_u24 {v(PH)}, {18*16384}, {v(vL)}
        v_lshlrev_b32 {v(PH+1)}, 17, {v(vL)}
        s_lshr_b32 {s(sT[0])}, s2, 4
        s_lshl4_add_u32 {s(sT[0])}, {s(sW)}, {s(sT[0])}
        s_cmp_eq_u32 {s(sT[0])}, 1
        s_cselect_b64 exec, -1, 1
        """)
    else:
        A(f"""
        v_lshlrev_b32 {v(PH)}, 21, {v(vL)}
        v_mov_b32 {v(PH+1)}, {v(PH)}
        s_cmp_eq_u32 {s(sW)}, 0
        s_cselect_b64 exec, 0x1ff, 1
        """)
    A(f"""
    buffer_load_dword {v(GR)}, {v(PH)}, {srd(WS_)}, 0 offen
    buffer_load_dword {v(GR)}, {v(PH+1)}, {srd(OUT_)}, 0 offen
    s_mov_b64 exec, -1
    """)
w_base(sW)
for e in range(max(NE, NEB)):
    if e == min(NE, NEB):
        A(f"s_cmp_eq_u32 {s(sM)}, {0 if NE < NEB else 1}")
        A("s_cbranch_scc1 L_noearly")
    w_piece(e)
A.label("L_noearly")
NEA = NE
if OPT['xpf'] == 2:
    NEA = NE + 2
    A(f"""
    s_cmp_lg_u32 {s(sM)}, 0
    s_cbranch_scc1 L_nopf2
    {XPF}
    L_nopf2:
    """)
def wait_m(lbl, add):
    lo, hi = min(NEA, NEB) + NTL, max(NEA, NEB) + NTL
    A(f"s_waitcnt vmcnt({hi+add})")
    if lo != hi:
        A(f"s_cmp_eq_u32 {s(sM)}, {0 if NEA > NEB else 1}")
        A(f"s_cbranch_scc1 {lbl}")
        A(f"s_waitcnt vmcnt({lo+add})")
        A.label(lbl)
stamp("wiss", (4,))
wait_m("L_wm0", 2)
A(f"""
s_cmp_eq_u32 {s(sW)}, {SPW}
s_cbranch_scc1 L_xw1
""")
wait_m("L_wm1", 0)
A.label("L_xw1")
stamp("x", (1, 2, 4))
for comp, dst in ((0, XR), (1, XI)):
    for t in range(2):
        for j in range(2):
            A(f"ds_read_b64_tr_b16 {v(dst+4*t+2*j,2)}, {v(aTR)} offset:{comp*2048+t*1024+j*512}")
A("s_waitcnt lgkmcnt(0)")
stamp("tr", (2, 4))
weave([M32(D1R, XR, FC, None), M32(D1R, XR+4, FC+4, D1R), M32(D1R, XI, FS, D1R), M32(D1R, XI+4, FS+4, D1R), M32(D1I, XR, FN, None)],
      [f"s_mul_i32 {s(sTAG)}, {s(sE)}, 0x9E3779B1", f"s_add_u32 {s(sTAG)}, {s(sTAG)}, 0x7F4A7C15", "s_nop 4", "s_nop 4"], [2, 0, 0, 1, 1])
weave([M32(D1I, XR+4, FN+4, D1I), M32(D1I, XI, FC, D1I), M32(D1I, XI+4, FC+4, D1I)], TW1(D1R, False), [6, 6, 99])
stamp("m1", (2,))
for t_ in TW2(D1I, XR, XI, False, 0, 8): A(t_)
stamp("tw", (2,))
weave([M32(D2R, FC, XR, None), M32(D2I, FN, XR, None), M32(D2R, FS, XI, D2R), M32(D2I, FC, XI, D2I)], TW2(D1I, XR, XI, False, 8, 16), 6)
weave([M32(D2R, FC+4, XR+4, D2R), M32(D2I, FN+4, XR+4, D2I), M32(D2R, FS+4, XI+4, D2R), M32(D2I, FC+4, XI+4, D2I)], [], 0)
stamp("m2", (2,))
for i in range(16):
    cvt(TMP+i, D2R+i, D2I+i)
stamp("cv", (2,))
for i in range(16):
    kd2 = 8*(i >> 2) + (i & 3)
    if i < 8:
        A(f"ds_write_b32 {v(aP)}, {v(TMP+i)} offset:{(80*(kd2>>1)+8*(kd2&1))*8}")
    else:
        e = 31 - kd2 - 4
        A(f"ds_write_b32 {v(aQo if e & 1 else aQe)}, {v(TMP+i)} offset:{(80*(e>>1)+8*(e&1))*8+4}")
A(f"""
s_mov_b64 exec, 1
ds_write_b32 {v(aP)}, {v(TMP)} offset:4
ds_write_b32 {v(aP)}, {v(TMP+8)} offset:{640*8}
s_mov_b64 exec, -1
""")
stamp("wr", (2,))
A("s_waitcnt lgkmcnt(0)")
stamp("wrd", (2,))
A("s_barrier")
stamp("bar1", (1, 2, 4))
A(f"""
s_cmp_lg_u32 {s(sW)}, {SPW}
s_cbranch_scc1 L_nosp1
v_mul_u32_u24 {v(PH)}, {2*PS}, {v(g_)}
ds_read_b64 {v(XR,2)}, {v(PH)} offset:{EXOFF+640*8}
ds_read_b64 {v(XR+2,2)}, {v(PH)} offset:{EXOFF+640*8+PS}
s_lshl_b32 {s(sT[0])}, {s(sM)}, 13
s_lshl_b32 {s(sT[1])}, {s(sRHO)}, 6
s_add_u32 {s(sT[0])}, {s(sT[0])}, {s(sT[1])}
s_add_u32 {s(sT[1])}, {s(sT[0])}, {WX}
s_add_u32 {s(sT[0])}, {s(sT[0])}, {T1X}
v_lshlrev_b32 {v(PH+1)}, 2, {v(vL)}
v_lshlrev_b32 {v(PH+2)}, 4, {v(g_)}
""")
wait_m("L_wm2", 0)
A(f"""
v_lshl_or_b32 v11, v12, 16, v11
s_mov_b64 exec, 0xffff
buffer_store_dword v11, {v(PH+1)}, {srd(WS_)}, {s(sT[1])} offen sc1
s_mov_b64 exec, -1
s_waitcnt lgkmcnt(0)
""")
m16(D1R, M3, XR, None); m16(D1R+4, M3+4, XR, None)
cvt(TMP, D1R, D1R+2); cvt(TMP+1, D1R+4, D1R+6); cvt(TMP+2, D1R+1, D1R+3); cvt(TMP+3, D1R+5, D1R+7)
A(f"""
s_mov_b32 exec_lo, 0x00010001
s_mov_b32 exec_hi, 0x00010001
buffer_store_dwordx4 {v(TMP,4)}, {v(PH+2)}, {srd(WS_)}, {s(sT[0])} offen sc1
s_mov_b64 exec, -1
L_nosp1:
""")
for t in range(4):
    for jj in range(2):
        A(f"ds_read_b64 {v(XR+4*t+2*jj,2)}, {v(aRD)} offset:{160*t+PS*jj}")
for t in range(4):
    A(f"s_waitcnt lgkmcnt({6-2*t})")
    m16(D1R+8*t, M3, XR+4*t, None)
peek(sC1)
for t in range(4):
    m16(D1R+8*t+4, M3+4, XR+4*t, None)
for mt in range(2):
    for al in range(2):
        o = TMP + 4 + (mt*2+al)*4
        d = D1R + 4*mt + 2*al
        cvt(o, d, d+8); cvt(o+2, d+1, d+9); cvt(o+1, d+16, d+24); cvt(o+3, d+17, d+25)
    for al in range(2):
        o = TMP + 4 + (mt*2+al)*4
        A(f"buffer_store_dwordx4 {v(o,4)}, {v(aST)}, {srd(WS_)}, {s(sS1[mt*2+al])} offen sc1")
stamp("st1", (2,))
sPH = sE
A(f"""
s_barrier
""")
A(f"s_mov_b32 {s(sPH)}, 1")
GH = OPT['gh']
if GH:
    A(f"""
    s_cmp_lt_u32 {s(sW)}, 4
    s_cbranch_scc1 L_nogen
    s_sub_u32 {s(sI)}, {s(sW)}, {4 if GH == 2 else 0}
    L_gen:
    """)
    gen_m2(sI)
    if GH == 2:
        A(f"""
        s_add_u32 {s(sI)}, {s(sI)}, 4
        s_cmp_lt_u32 {s(sI)}, 8
        s_cbranch_scc1 L_gen
        """)
    lds_post(12)
    if GH == 1:
        A(f"s_cmp_lt_u32 {s(sW)}, 4")
        A("s_cbranch_scc1 L_genret")
    A.label("L_nogen")
validate("L_val1", sC1)
A(f"""
s_cmp_lg_u32 {s(sW)}, {SPW}
s_cbranch_scc1 L_nosp2
s_waitcnt vmcnt(4)
s_atomic_add {s(sX16)}, {s(WS_,2)}, {s(sC1)}
L_nosp2:
s_waitcnt vmcnt(0)
""")
signal(sC1)
stamp("fl1")
aW, aF, aRe, aIm, aO, aD = vT[2:8]
sFA, sFB, sFC, sDST, sOI, sDONE, sNEW, sMK = sT[4:12]
A(f"""
s_cmp_ge_u32 {s(sW)}, 4
s_cbranch_scc1 L_helper
""")
assert max(NE, NEB) < 5
w_piece(4)
w_base(sW)
for hh in range(2):
    for e in range(3, min(NE, NEB) - 1, -1):
        if e == max(NE, NEB) - 1:
            A(f"s_cmp_eq_u32 {s(sM)}, {1 if NE < NEB else 0}")
            A(f"s_cbranch_scc1 L_nolate{hh}")
        w_piece(e)
    A.label(f"L_nolate{hh}")
    if hh == 0:
        A(f"""
        v_add_u32 {v(PH)}, {s(sW)}, {v(vL)}
        v_add_u32 {v(PH)}, 4, {v(PH)}
        v_mul_u32_u24 {v(PH+1)}, 57, {v(PH)}
        v_lshrrev_b32 {v(PH+1)}, 9, {v(PH+1)}
        v_mul_u32_u24 {v(PH+1)}, {16416-144}, {v(PH+1)}
        v_lshl_add_u32 {v(aWM)}, {v(PH)}, 4, {v(PH+1)}
        s_add_u32 {s(sT[12])}, {s(sT[12])}, {28*16416}
        s_add_u32 {s(sT[13])}, {s(sT[13])}, 4096
        """)
if GH == 1:
    A(f"s_mov_b32 {s(sI)}, {s(sW)}")
    A("s_branch L_gen")
    A.label("L_genret")
if GH == 0:
    A(f"s_mov_b32 {s(sI)}, {s(sW)}")
    A.label("L_gen")
    gen_m2(sI)
    A(f"""
    s_add_u32 {s(sI)}, {s(sI)}, 4
    s_cmp_lt_u32 {s(sI)}, 8
    s_cbranch_scc1 L_gen
    """)
    lds_post(12)
A(f"""
s_mov_b32 {s(sFA)}, 0
s_and_b32 {s(sFC)}, {s(sA)}, 7
s_mov_b32 {s(sFB)}, 0
s_mul_i32 {s(sOI)}, {s(sW)}, {OS}
s_add_u32 {s(sOI)}, {s(sOI)}, {WOFF}
v_lshrrev_b32 {v(aRe)}, 2, {v(vL)}
v_and_b32 {v(aF)}, 3, {v(aRe)}
v_xor_b32 {v(aF)}, {s(sW)}, {v(aF)}
v_lshlrev_b32 {v(aRe)}, 8, {v(aRe)}
v_lshl_add_u32 {v(aRe)}, {v(aF)}, 6, {v(aRe)}
v_and_b32 {v(aF)}, 3, {v(vL)}
v_lshl_add_u32 {v(aRe)}, {v(aF)}, 4, {v(aRe)}
s_lshl_b32 {s(sT[0])}, {s(sW)}, 5
s_add_u32 {s(sT[0])}, {s(sT[0])}, {WOFF}
v_min_u32 {v(aW)}, 2, {v(g_)}
v_mul_u32_u24 {v(aF)}, 144, {v(c_)}
v_lshl_add_u32 {v(aW)}, {v(aW)}, 4, {v(aF)}
v_add_u32 {v(aW)}, {s(sT[0])}, {v(aW)}
""")
A.label("L_p2common")
A(f"v_lshlrev_b32 {v(aF)}, 4, {v(vL)}")
A(f"v_add_u32 {v(aF)}, {M2OFF}, {v(aF)}")
SEL = DNR
A(f"""
v_lshlrev_b32 {v(DIM)}, {s(sFA)}, {v(c_)}
v_lshlrev_b32 {v(DIM+1)}, 3, {v(g_)}
v_sub_u32 {v(DIM)}, {v(DIM)}, {v(DIM+1)}
v_add_u32 {v(DIM)}, {s(sFC)}, {v(DIM)}
v_add_u32 {v(DIM+1)}, {s(sFB)}, {v(DIM)}
v_mov_b32 {v(DIM+4)}, 0x3500
""")
for q in range(2):
    A(f"v_and_b32 {v(DIM+2)}, 1, {v(DIM+q)}")
    A(f"v_lshlrev_b32 {v(DIM+2)}, 4, {v(DIM+2)}")
    A(f"v_lshlrev_b32 {v(DIM+2)}, {v(DIM+2)}, {v(DIM+4)}")
    A(f"v_ashrrev_i32 {v(DIM+3)}, 1, {v(DIM+q)}")
    for j in range(4):
        A(f"v_cmp_eq_u32 vcc, {j}, {v(DIM+3)}")
        A(f"v_cndmask_b32 {v(SEL+4*q+j)}, 0, {v(DIM+2)}, vcc")
A(f"""
v_and_b32 {v(aIm)}, 1, {v(g_)}
v_lshl_add_u32 {v(aRe)}, {v(aIm)}, 3, {v(aRe)}
v_xor_b32 {v(aIm)}, 8, {v(aRe)}
v_bfe_u32 {v(aO)}, {v(vL)}, 1, 2
v_xor_b32 {v(aO)}, {v(aO)}, {v(g_)}
v_lshlrev_b32 {v(aO)}, 4, {v(aO)}
v_lshl_add_u32 {v(aO)}, {v(c_)}, 6, {v(aO)}
v_add_u32 {v(aO)}, {s(sOI)}, {v(aO)}
v_mov_b32 {v(vT[9])}, 1
s_mov_b32 {s(sT[0])}, 0x80008000
s_mov_b32 {s(sDONE)}, 0
""")
if OPT['gpos'] == 1: lds_wait("L_fr", 12, 8 if GH == 1 else 4)
for f in range(16):
    A(f"ds_read_b128 {v(FR+4*f,4)}, {v(aF)} offset:{f*1024}")
A(f"""
s_waitcnt vmcnt(0)
s_cmp_lt_u32 {s(sW)}, 4
s_cbranch_scc1 L_wreg
""")
for t in range(8):
    m16(WRF+4*t, ER+4*t, SEL, None); m16(WIF+4*t, ER+4*t, SEL+4, None)
A(f"s_movk_i32 {s(sMK)}, 0xff")
A("s_branch L_dspx")
A.label("L_wreg")
lds_post(0)

lds_wait("L_wr", 0, 8)
for t in range(16):
    if t == 12: A("s_waitcnt lgkmcnt(8)")
    A(f"ds_read_b128 {v(ER+4*t,4)}, {v(aW)} offset:{t*2304}")
A(f"s_lshl_b32 {s(sMK)}, 16, {s(sW)}")
lds_bit(4, sMK)
for t in range(16):
    if t >= 4: A(f"s_waitcnt lgkmcnt({16-t})")
    m16(WRF+4*t, ER+4*t, SEL, None)
stamp("wcv", (1,))
A(f"""
s_mov_b32 {s(sCNT)}, 0x40000
L_dsp:
ds_read_b32 {v(vS1)}, {v(vSY)} offset:4
s_sub_u32 {s(sCNT)}, {s(sCNT)}, 1
s_cbranch_scc1 L_fwd_done
s_waitcnt lgkmcnt(0)
v_readfirstlane_b32 {s(sMK)}, {v(vS1)}
L_dspx:
s_andn2_b32 {s(sNEW)}, {s(sMK)}, {s(sDONE)}
s_cbranch_scc0 L_dsp
""")
stamp("dat1", (1, 3))
for u in range(4):
    A(f"s_bitcmp1_b32 {s(sNEW)}, {u}")
    A(f"s_cbranch_scc0 L_nr{u}")
    for j in range(2): A(f"ds_read_b64_tr_b16 {v(DRE+4*u+2*j,2)}, {v(aRe)} offset:{u*8192+j*4096}")
    for j in range(2): A(f"ds_read_b64_tr_b16 {v(DIM+4*u+2*j,2)}, {v(aIm)} offset:{u*8192+j*4096}")
    A.label(f"L_nr{u}")
A(f"s_or_b32 {s(sDONE)}, {s(sDONE)}, {s(sNEW)}")
A("s_waitcnt lgkmcnt(0)")
for u in range(4):
    A(f"s_bitcmp1_b32 {s(sNEW)}, {u}")
    A(f"s_cbranch_scc0 L_nm{u}")
    fc = lambda mt: FR + (u*4 + mt*2) * 4
    fs = lambda mt: FR + (u*4 + mt*2 + 1) * 4
    e = lambda mt: (u*2 + mt) * 4
    weave([M16(ER+e(0), fc(0), DRE+4*u, None), M16(ER+e(1), fc(1), DRE+4*u, None),
           M16(EI+e(0), fc(0), DIM+4*u, None), M16(EI+e(1), fc(1), DIM+4*u, None),
           M16(ER+e(0), fs(0), DIM+4*u, ER+e(0)), M16(ER+e(1), fs(1), DIM+4*u, ER+e(1)),
           M16(EI+e(0), fs(0), DNR+4*u, EI+e(0)), M16(EI+e(1), fs(1), DNR+4*u, EI+e(1))],
          [f"v_xor_b32 {v(DNR+4*u+j)}, {s(sT[0])}, {v(DRE+4*u+j)}" for j in range(4)], 2)
    for f in range(4*u, 4*u+4): A(f"ds_read_b128 {v(FR+4*f,4)}, {v(aF)} offset:{16384+f*1024}")
    A.label(f"L_nm{u}")
A(f"""
s_cmp_lg_u32 {s(sDONE)}, 0xff
s_cbranch_scc1 L_dsp
L_fwd_done:
""")
stamp("fwd", (3,))
A("s_nop 1")
TT = DNR
def pk(op, d, a, b, c=None, na=False, nb=False):
    ops = f"{v(d,2)}, {v(a,2)}, {v(b,2)}" + (f", {v(c,2)}" if c is not None else "")
    n = [int(na), int(nb)] + ([0] if c is not None else [])
    mod = f" neg_lo:{n} neg_hi:{n}".replace(", ", ",") if (na or nb) else ""
    A(f"v_pk_{op}_f32 {ops}{mod}")
add = lambda d, a, b: pk("add", d, a, b)
sub = lambda d, a, b: pk("add", d, a, b, nb=True)
A.raw(".p2align 3")
for mt in range(2):
    for rp in range(2):
        er = lambda u: ER + (u*2+mt)*4 + 2*rp
        ei = lambda u: EI + (u*2+mt)*4 + 2*rp
        wr = lambda q: WRF + (q*2+mt)*4 + 2*rp
        wi = lambda q: WIF + (q*2+mt)*4 + 2*rp
        tr = lambda i: TT + 4*i
        ti = lambda i: TT + 4*i + 2
        add(tr(0), er(0), er(2)); add(ti(0), ei(0), ei(2)); sub(tr(1), er(0), er(2)); sub(ti(1), ei(0), ei(2))
        add(tr(2), er(1), er(3)); add(ti(2), ei(1), ei(3)); sub(tr(3), er(1), er(3)); sub(ti(3), ei(1), ei(3))
        add(er(0), tr(0), tr(2)); add(ei(0), ti(0), ti(2)); sub(er(2), tr(0), tr(2)); sub(ei(2), ti(0), ti(2))
        add(er(1), tr(1), ti(3)); sub(ei(1), ti(1), tr(3)); sub(er(3), tr(1), ti(3)); add(ei(3), ti(1), tr(3))
        for q in range(4):
            pk("mul", tr(q), er(q), wr(q)); pk("mul", ti(q), er(q), wi(q))
        for q in range(4):
            pk("fma", tr(q), ei(q), wi(q), tr(q), na=True); pk("fma", ti(q), ei(q), wr(q), ti(q))
        add(wr(0), tr(0), tr(2)); add(wi(0), ti(0), ti(2)); sub(wr(1), tr(0), tr(2)); sub(wi(1), ti(0), ti(2))
        add(wr(2), tr(1), tr(3)); add(wi(2), ti(1), ti(3)); sub(wr(3), tr(1), tr(3)); sub(wi(3), ti(1), ti(3))
        add(er(0), wr(0), wr(2)); add(ei(0), wi(0), wi(2)); sub(er(2), wr(0), wr(2)); sub(ei(2), wi(0), wi(2))
        sub(er(1), wr(1), wi(3)); add(ei(1), wi(1), wr(3)); add(er(3), wr(1), wi(3)); sub(ei(3), wi(1), wr(3))
def OPS(u):
    L = [CVT(DRE+4*u+j, ER+8*u+2*j, ER+8*u+2*j+1) for j in range(4)]
    L += [CVT(DIM+4*u+j, EI+8*u+2*j, EI+8*u+2*j+1) for j in range(4)]
    L += [CVT(DNR+4*u+j, EI+8*u+2*j, EI+8*u+2*j+1, True, True) for j in range(4)]
    return L
def INV(k):
    e = k*4; o = WRF + e
    return [CVT(o, ER+e, ER+e+1), CVT(o+1, ER+e+2, ER+e+3), CVT(o+2, EI+e, EI+e+1), CVT(o+3, EI+e+2, EI+e+3),
            f"ds_write_b128 {v(aO)}, {v(o,4)} offset:{k*1024}", f"ds_add_u32 {v(vPG)}, {v(vT[9])}"]
for t_ in OPS(0): A(t_)
A("s_waitcnt lgkmcnt(0)")
stamp("mid", (3,))
for k in range(8):
    u, nt = k >> 1, k & 1
    fc, fs, e = FR + (u*4 + nt*2) * 4, FR + (u*4 + nt*2 + 1) * 4, k * 4
    ops = OPS(u+1)[6*nt:6*nt+6] if u < 3 else []
    out = INV(k-1) if k >= 1 else []
    fill = ops + out
    weave([M16(ER+e, DRE+4*u, fc, None), M16(EI+e, DIM+4*u, fc, None), M16(ER+e, DNR+4*u, fs, ER+e), M16(EI+e, DRE+4*u, fs, EI+e)],
          fill, [3, 3, 2, 4] if ops and out else ([2, 2, 2, 0] if ops else [0, 0, 0, 6]))
stamp("inv", (3,))
for t_ in INV(7): A(t_)
stamp("cmp2", (1, 3))
A(f"""
s_cmp_lt_u32 {s(sW)}, 4
s_cbranch_scc1 L_setup3
""")
A(f"""
v_lshlrev_b32 {v(aO)}, 7, {v(c_)}
v_lshl_add_u32 {v(aO)}, {v(g_)}, 4, {v(aO)}
""")
for i in range(8): A(f"v_mov_b32 {v(WIF+2*i+1)}, {s(sTAG)}")
for k in range(8):
    o = WIF + 8*(k & 1)
    for e in range(4): cvt(o+2*e, ER+4*k+e, EI+4*k+e)
    for h in range(2): A(f"buffer_store_dwordx4 {v(o+4*h,4)}, {v(aO)}, {srd(WS_)}, {s(sDST)} offen offset:{(k&1)*2048+h*64} sc1")
    if k & 1: A(f"s_add_u32 {s(sDST)}, {s(sDST)}, 4096")
A(f"""
s_setprio 0
s_branch L_setup3
L_helper:
""")
lds_post(0)
sSRC, sPL, sSG, sBIT = sT[4:8]
A(f"""
s_lshl_b32 {s(sT[0])}, {s(sM)}, 4
s_add_u32 {s(sSRC)}, {s(sT[0])}, {s(sA)}
s_lshl3_add_u32 {s(sSRC)}, {s(sSRC)}, {s(sGRP)}
s_sub_u32 {s(sT[1])}, {s(sW)}, 4
s_lshl2_add_u32 {s(sSRC)}, {s(sSRC)}, {s(sT[1])}
s_lshl_b32 {s(sSRC)}, {s(sSRC)}, 13
s_add_u32 {s(sPL)}, {s(sT[0])}, {s(sGRP)}
s_lshl2_add_u32 {s(sPL)}, {s(sPL)}, {s(sT[1])}
s_mul_i32 {s(sPL)}, {s(sPL)}, {CP}
s_add_u32 {s(sPL)}, {s(sPL)}, {C1}
s_cmp_eq_u32 {s(sGRP)}, {SPW}
s_cselect_b32 {s(sSG)}, 0x200020, 32
s_lshl_b32 m0, {s(sT[1])}, 13
s_lshl_b32 {s(sBIT)}, 1, {s(sT[1])}
v_lshlrev_b32 {v(aD)}, 2, {v(g_)}
v_xor_b32 {v(aD)}, {v(aD)}, {v(c_)}
v_lshlrev_b32 {v(aD)}, 4, {v(aD)}
v_lshl_add_u32 {v(aD)}, {v(g_)}, 8, {v(aD)}
""")
poll("L_poll1", sPL, s(sSG), OPT['sl1'])
stamp("pol1")
for n in range(8):
    A(f"buffer_load_dwordx4 {v(aD)}, {srd(WS_)}, {s(sSRC)} offen offset:{(n&3)*1024} sc1 lds")
    if n == 3:
        A(f"s_add_u32 m0, m0, 4096")
        A(f"s_add_u32 {s(sSRC)}, {s(sSRC)}, 4096")
XP = [WR_, WR_+2, WI_, WI_+2]
A(f"""
s_cmp_lg_u32 {s(sW)}, 4
s_cbranch_scc1 L_posted
s_sub_u32 {s(sT[3])}, s2, {HOST}
s_cmp_ge_u32 {s(sT[3])}, 2
s_cbranch_scc1 L_posted
s_cmp_eq_u32 {s(sT[3])}, 0
s_cbranch_scc1 L_xa
s_waitcnt vmcnt(0)
""")
lds_bit(4, sONE)
A(f"""
L_xa:
s_mul_i32 {s(sT[2])}, {s(sT[3])}, {64*CP}
s_add_u32 {s(sT[2])}, {s(sT[2])}, {C1+SPW*4*CP}
s_mov_b32 {s(sCNT)}, 0x8000
L_pollx:
""")
for i in range(4):
    A(f"s_mov_b64 {s(XP[i],2)}, 0")
    A(f"s_atomic_or_x2 {s(XP[i],2)}, {s(WS_,2)}, {s(sT[2])} offset:{i*CP} glc")
A(f"""
s_sub_u32 {s(sCNT)}, {s(sCNT)}, 1
s_cbranch_scc1 L_pollx_out
s_waitcnt lgkmcnt(0)
""")
for i in range(4):
    A(f"s_cmp_lg_u32 {s(XP[i]+1)}, {s(sTAG)}")
    A("s_cbranch_scc1 L_pollx")
A(f"""
s_and_b32 {s(XP[0])}, {s(XP[0])}, {s(XP[1])}
s_and_b32 {s(XP[2])}, {s(XP[2])}, {s(XP[3])}
s_and_b32 {s(XP[0])}, {s(XP[0])}, {s(XP[2])}
s_bitcmp1_b32 {s(XP[0])}, 21
s_cbranch_scc0 L_pollx
L_pollx_out:
""")
if OPT['xprio']: A("s_setprio 3")
A(f"""
s_mov_b32 {s(sFA)}, 1
s_mov_b32 {s(sFC)}, 0
s_mov_b32 {s(sFB)}, 1
s_lshl_b32 {s(sT[2])}, {s(sT[3])}, 13
s_add_u32 {s(sT[0])}, {s(sT[2])}, {WX}
s_add_u32 {s(sT[1])}, {s(sT[0])}, 4096
s_lshl_b32 {s(sDST)}, {s(sT[3])}, 14
s_add_u32 {s(sDST)}, {s(sDST)}, {T2X}
s_add_u32 {s(sT[2])}, {s(sT[2])}, {T1X}
v_lshlrev_b32 {v(aD)}, 4, {v(vL)}
v_lshlrev_b32 {v(aW)}, 6, {v(c_)}
v_lshl_add_u32 {v(aW)}, {v(g_)}, 4, {v(aW)}
s_mov_b32 {s(sOI)}, {XOUT}
v_add_u32 {v(aRe)}, {EXOFF}, {v(aD)}
s_mov_b32 m0, {EXOFF}
""")
for n in range(8):
    A(f"buffer_load_dwordx4 {v(aD)}, {srd(WS_)}, {s(sT[2])} offen sc1 lds")
    if n < 7:
        A(f"s_add_u32 m0, m0, 4096")
        A(f"s_add_u32 {s(sT[2])}, {s(sT[2])}, 1024")
for t in range(8):
    A(f"buffer_load_dwordx4 {v(ER+4*t,4)}, {v(aW)}, {srd(WS_)}, {s(sT[t>>2])} offen offset:{(t&3)*1024} sc1")
A("s_waitcnt vmcnt(16)")
lds_bit(4, sONE)
A("s_branch L_p2common")
A.label("L_posted")
A(f"""
s_cmp_lt_u32 {s(sW)}, {8-NST}
s_cselect_b32 {s(sPH)}, 1, 0
s_waitcnt vmcnt(0)
""")
lds_bit(4, sBIT)
A.label("L_setup3")
A3 = 237
aD3, aPw, aQ1, aQ0, aRd3, aSo, aQp = range(A3, A3+7)
aT = list(range(A3+9, A3+13))
sMR, sS3 = sT[2], sT[3]
A(f"""
v_lshrrev_b32 {v(PH)}, 1, {v(vL)}
v_xor_b32 {v(PH)}, {v(PH)}, {v(vL)}
v_and_b32 {v(PH)}, 4, {v(PH)}
v_mul_u32_u24 {v(PH)}, 3, {v(PH)}
v_xor_b32 {v(PH)}, {v(PH)}, {v(vL)}
v_lshlrev_b32 {v(vS1)}, 4, {v(PH)}
v_add_u32 {v(vS1)}, {T1OFF}, {v(vS1)}
v_and_b32 {v(aSo)}, 15, {v(PH)}
v_lshlrev_b32 {v(aSo)}, 6, {v(aSo)}
v_and_b32 {v(PH)}, 1, {v(g_)}
v_lshl_add_u32 {v(aSo)}, {v(PH)}, 5, {v(aSo)}
v_lshrrev_b32 {v(PH)}, 1, {v(g_)}
v_lshl_add_u32 {v(aSo)}, {v(PH)}, 4, {v(aSo)}
""")
load_tables(vS1)
A(f"""
v_lshrrev_b32 {v(PH)}, 2, {v(c_)}
v_lshl_add_u32 {v(PH)}, {v(PH)}, 7, {s(sSB)}
v_cvt_f32_u32 {v(PH)}, {v(PH)}
v_mul_f32 {v(PH)}, {fbits(1/2048)}, {v(PH)}
v_add_f32 {v(PH+1)}, {fbits(0.25)}, {v(PH)}
v_and_b32 {v(PH+2)}, 1, {v(c_)}
v_cvt_f32_u32 {v(PH+2)}, {v(PH+2)}
v_mul_f32 {v(PH+2)}, {fbits(-0.25)}, {v(PH+2)}
v_add_f32 {v(PH+3)}, {fbits(-0.125)}, {v(PH+2)}
v_add_f32 {v(PH+2)}, {fbits(0.125)}, {v(PH+2)}
v_and_b32 {v(PH+4)}, 2, {v(c_)}
v_lshlrev_b32 {v(PH+4)}, 30, {v(PH+4)}
v_xor_b32 {v(PH+2)}, {v(PH+4)}, {v(PH+2)}
v_xor_b32 {v(PH+3)}, {v(PH+4)}, {v(PH+3)}
v_lshlrev_b32 {v(PH+4)}, 1, {v(g_)}
v_cvt_f32_u32 {v(PH+4)}, {v(PH+4)}
v_add_f32 {v(PH+5)}, 1.0, {v(PH+4)}
v_add_f32 {v(PH+6)}, {fbits(8.0)}, {v(PH+4)}
v_add_f32 {v(PH+7)}, {fbits(9.0)}, {v(PH+4)}
""")
for mt in range(2):
    for j in range(4):
        t = TMP + (mt*4+j)*3
        A(f"v_fma_f32 {v(t)}, {v(PH+mt)}, {v(PH+4+j)}, {v(PH+2+(j&1))}")
        A(f"v_cos_f32 {v(t+1)}, {v(t)}")
        A(f"v_sin_f32 {v(t+2)}, {v(t)}")
for mt in range(2):
    for j in range(4):
        t = TMP + (mt*4+j)*3
        cvt(M3+mt*4+j, t+1, t+2, False, True)
A(f"""
v_lshrrev_b32 {v(PH)}, 3, {v(vL)}
v_and_b32 {v(PH+1)}, 3, {v(PH)}
v_lshlrev_b32 {v(PH+1)}, 6, {v(PH+1)}
v_lshl_add_u32 {v(PH)}, {v(PH)}, 8, {v(PH+1)}
v_and_b32 {v(PH+1)}, 3, {v(vL)}
v_lshl_add_u32 {v(PH)}, {v(PH+1)}, 4, {v(PH)}
v_and_b32 {v(PH+1)}, 4, {v(vL)}
v_lshl_add_u32 {v(PH)}, {v(PH+1)}, 1, {v(PH)}
v_add_u32 {v(aT[0])}, {s(sW12)}, {v(PH)}
v_xor_b32 {v(aT[1])}, 64, {v(aT[0])}
v_xor_b32 {v(aT[2])}, 128, {v(aT[0])}
v_xor_b32 {v(aT[3])}, 192, {v(aT[0])}
v_mul_u32_u24 {v(PH)}, {PS2}, {v(g_)}
s_lshl_b32 {s(sT[0])}, {s(sW)}, 8
s_add_u32 {s(sT[1])}, {s(sT[0])}, {EX2}
s_sub_u32 {s(sT[0])}, {EX2+15*256}, {s(sT[0])}
v_lshl_add_u32 {v(aPw)}, {v(c_)}, 3, {v(PH)}
v_add_u32 {v(aPw)}, {s(sT[1])}, {v(aPw)}
v_sub_u32 {v(PH+1)}, 16, {v(c_)}
v_lshl_add_u32 {v(PH+1)}, {v(PH+1)}, 3, {v(PH)}
v_add_u32 {v(aQp)}, {s(sT[0])}, {v(PH+1)}
v_cmp_eq_u32 vcc, 0, {v(c_)}
v_mov_b32 {v(PH+2)}, 128
v_mov_b32 {v(PH+3)}, 132
v_mov_b32 {v(PH+4)}, -124
v_cndmask_b32 {v(PH+4)}, {v(PH+2)}, {v(PH+4)}, vcc
v_cndmask_b32 {v(PH+3)}, {v(PH+3)}, {v(PH+2)}, vcc
v_add_u32 {v(aQ1)}, {v(aQp)}, {v(PH+4)}
v_add_u32 {v(aQ0)}, {v(aQp)}, {v(PH+3)}
s_mul_i32 {s(sT[0])}, {s(sW)}, {PS2}
s_add_u32 {s(sT[0])}, {s(sT[0])}, {EX2}
v_and_b32 {v(PH+1)}, 31, {v(vL)}
v_lshrrev_b32 {v(PH+2)}, 5, {v(vL)}
v_lshlrev_b32 {v(PH+3)}, 9, {v(PH+2)}
v_lshl_add_u32 {v(PH+3)}, {v(PH+1)}, 3, {v(PH+3)}
v_add_u32 {v(aRd3)}, {s(sT[0])}, {v(PH+3)}
s_lshl_b32 {s(sO[0])}, {s(sW)}, 7
s_add_u32 {s(sO[0])}, {s(sO[0])}, {s(sSB)}
s_lshl_b32 {s(sO[0])}, {s(sO[0])}, 12
s_lshl_b32 {s(sO[1])}, {s(sM)}, 11
s_add_u32 {s(sO[0])}, {s(sO[0])}, {s(sO[1])}
s_add_u32 {s(sO[1])}, {s(sO[0])}, {1024*4096}
s_mov_b32 {s(sPM)}, 0x05040100
s_mov_b32 {s(sPM+1)}, 0x07060302
""")
A(f"""
v_lshlrev_b32 {v(PH)}, 2, {v(g_)}
v_xor_b32 {v(PH)}, {v(PH)}, {v(c_)}
v_lshlrev_b32 {v(PH)}, 4, {v(PH)}
v_lshl_add_u32 {v(aD3)}, {v(g_)}, 8, {v(PH)}
s_lshl_b32 {s(sMR)}, {s(sM)}, 7
s_add_u32 {s(sMR)}, {s(sMR)}, {s(sRHO)}
s_lshl_b32 {s(sS3)}, {s(sMR)}, 15
s_add_u32 {s(sS3)}, {s(sS3)}, {s(sW12)}
s_add_u32 {s(sS3)}, {s(sS3)}, {T2}
s_cmp_lg_u32 {s(sPH)}, 0
s_cbranch_scc1 L_nosig2
""")
aR0, aR1, aS2, aPr = vT[2], vT[3], vT[4], vT[5]
sD = sT[4:5]
A(f"""
v_bfe_u32 {v(aR0)}, {v(vL)}, 2, 2
v_mul_u32_u24 {v(aR0)}, {OS}, {v(aR0)}
v_lshl_add_u32 {v(aR0)}, {v(g_)}, 6, {v(aR0)}
v_and_b32 {v(aR1)}, 3, {v(vL)}
v_mul_u32_u24 {v(aPr)}, 260, {v(aR1)}
v_add_u32 {v(aPr)}, {PGOFF}, {v(aPr)}
v_lshrrev_b32 {v(aS2)}, 5, {v(vL)}
v_xor_b32 {v(aR1)}, {v(aR1)}, {v(aS2)}
v_lshl_add_u32 {v(aR0)}, {v(aR1)}, 4, {v(aR0)}
s_sub_u32 {s(sT[8])}, 7, {s(sW)}
s_lshl_b32 {s(sT[0])}, {s(sT[8])}, 10
s_add_u32 {s(sT[0])}, {s(sT[0])}, {WOFF}
v_add_u32 {v(aR0)}, {s(sT[0])}, {v(aR0)}
v_xor_b32 {v(aR1)}, 32, {v(aR0)}
v_lshlrev_b32 {v(aS2)}, 15, {v(g_)}
v_lshl_add_u32 {v(aS2)}, {v(c_)}, 4, {v(aS2)}
s_lshl_b32 {s(sD[0])}, {s(sM)}, 22
s_lshl_b32 {s(sT[0])}, {s(sT[8])}, 19
s_add_u32 {s(sD[0])}, {s(sD[0])}, {s(sT[0])}
s_lshl_b32 {s(sT[0])}, {s(sGRP)}, 12
s_add_u32 {s(sD[0])}, {s(sD[0])}, {s(sT[0])}
s_lshl_b32 {s(sT[0])}, {s(sA)}, 8
s_add_u32 {s(sD[0])}, {s(sD[0])}, {s(sT[0])}
s_add_u32 {s(sD[0])}, {s(sD[0])}, {T2}
s_add_u32 {s(sT[0])}, {s(sM8)}, {s(sGRP)}
s_lshl_b32 {s(sT[0])}, {s(sT[0])}, 3
s_add_u32 {s(sT[0])}, {s(sT[0])}, {s(sT[8])}
s_mul_i32 {s(sT[0])}, {s(sT[0])}, {CP}
s_add_u32 {s(sT[0])}, {s(sT[0])}, {C2}
""")
NR = -(-8 // NST)
for i in range(NR):
    if NST*i + NST > 8:
        A(f"s_cmp_ge_u32 {s(sT[8])}, 8")
        A("s_cbranch_scc1 L_short")
    A(f"""
    s_mov_b32 {s(sCNT)}, 0x40000
    L_pg{i}:
    ds_read_b32 {v(vS1)}, {v(aPr)}
    s_sub_u32 {s(sCNT)}, {s(sCNT)}, 1
    s_cbranch_scc1 L_pg{i}_out
    {('s_sleep %d' % OPT['slp']) if i == 0 and OPT['slp'] else ''}
    s_waitcnt lgkmcnt(0)
    v_cmp_ge_u32 vcc, {s(sT[8])}, {v(vS1)}
    s_and_b64 vcc, vcc, vcc
    s_cbranch_scc1 L_pg{i}
    L_pg{i}_out:
    """)
    d = D1R + 16*i
    for j in range(4): A(f"ds_read_b128 {v(d+4*j,4)}, {v(aR1 if j & 1 else aR0)} offset:{i*NST*1024+j*256}")
    A(f"s_add_u32 {s(sT[8])}, {s(sT[8])}, {NST}")
    for j in range(4):
        A(f"s_waitcnt lgkmcnt({3-j})")
        A(f"buffer_store_dwordx4 {v(d+4*j,4)}, {v(aS2)}, {srd(WS_)}, {s(sD[0])} offen sc1")
        A(f"s_add_u32 {s(sD[0])}, {s(sD[0])}, {(4 if j < 3 else 16*NST-12) << 15}")
for i in range(NR):
    A(f"s_waitcnt vmcnt({4*(NR-1-i)})")
    signal(sT[0], NST*i*CP)
if 8 % NST:
    A("s_branch L_nosig2")
    A.label("L_short")
    for i in range(NR-1):
        A(f"s_waitcnt vmcnt({4*(NR-2-i)})")
        signal(sT[0], NST*i*CP)
A.label("L_nosig2")
stamp("fl2")
A("s_barrier")
A(f"s_mov_b32 m0, {s(sW12)}")
poll("L_poll2", sC2, 16, OPT['sl2'])
stamp("pol2")
for j in range(4):
    A(f"buffer_load_dwordx4 {v(aD3)}, {srd(WS_)}, {s(sS3)} offen offset:{j*1024} sc1 lds")
A(f"""
s_cmp_lg_u32 {s(sW)}, 4
s_cbranch_scc1 L_noep
s_cmp_lg_u32 s2, {HOST+1}
s_cbranch_scc1 L_noep
s_mov_b32 {s(sT[4])}, {EW}
s_atomic_swap {s(sTAG)}, {s(WS_,2)}, {s(sT[4])}
s_waitcnt lgkmcnt(0)
L_noep:
""")
GB = [(8, 8), (40, 8), (88, 8), (16, 4), (28, 4)]
GS = [r + i for r, n in GB for i in range(n)]
def granule_loads():
    off = 0
    for r, n in GB:
        A(f"s_load_dwordx{n} {s(r,n)}, {s(WS_,2)}, {s(sT[4])} offset:{off} glc"); off += 4*n
A(f"""
s_cmp_lg_u32 {s(sW)}, 0
s_cbranch_scc1 L_nosp3a
s_lshl_b32 {s(sT[4])}, {s(sMR)}, 7
s_add_u32 {s(sT[4])}, {s(sT[4])}, {T2X}
""")
granule_loads()
A.label("L_nosp3a")
for i in range(16):
    A(f"v_perm_b32 {v(GR+i)}, {v(FN+i//2)}, {v(FC+i//2)}, {s(sPM+(i&1))}")
    A(f"v_perm_b32 {v(GI+i)}, {v(FC+i//2)}, {v(FS+i//2)}, {s(sPM+(i&1))}")
A(f"""
s_cmp_lg_u32 {s(sW)}, 0
s_cbranch_scc1 L_nosp3b
s_mov_b32 {s(sCNT)}, 0x8000
s_branch L_gchk
L_gagain:
s_sub_u32 {s(sCNT)}, {s(sCNT)}, 1
s_cbranch_scc1 L_gok
""")
granule_loads()
A.label("L_gchk")
A("s_waitcnt lgkmcnt(0)")
for i in range(16):
    A(f"s_cmp_lg_u32 {s(GS[2*i+1])}, {s(sTAG)}")
    A("s_cbranch_scc1 L_gagain")
A.label("L_gok")
for h in range(2):
    for g in range(4):
        for q in range(2):
            A(f"v_writelane_b32 {v(TMP+4+2*h+q)}, {s(GS[h*16+g*4+2*q])}, {16*g}")
m16(D2R, M3, TMP+4, None); m16(D2R+4, M3+4, TMP+4, None)
A.label("L_nosp3b")
A("s_waitcnt vmcnt(0)")
stamp("dat2", (1, 3))
for t in (0, 2, 1, 3):
    for jj in range(2):
        A(f"ds_read_b64_tr_b16 {v(XR+4*t+2*jj,2)}, {v(aT[t])} offset:{jj*2048}")
for i, t in enumerate((0, 2, 1, 3)):
    A(f"s_waitcnt lgkmcnt({6-2*i})")
    m16(D1R+8*t, M3, XR+4*t, None); m16(D1R+8*t+4, M3+4, XR+4*t, None)
A(f"""
s_cmp_lg_u32 {s(sW)}, 0
s_cbranch_scc1 L_nofix
s_mov_b32 exec_lo, 0x00010001
s_mov_b32 exec_hi, 0x00010001
""")
for d in (D2R, D1R):
    for mt in range(2):
        for i in range(2):
            A(f"v_add_f32 {v(d+4*mt+i)}, {v(d+4*mt+i)}, {v(d+4*mt+2+i)}")
            A(f"v_mul_f32 {v(d+4*mt+i)}, 0.5, {v(d+4*mt+i)}")
cvt(TMP, D2R, D2R+1); cvt(TMP+1, D2R+4, D2R+5)
A(f"""
ds_write_b32 {v(aPw)}, {v(TMP)} offset:{8*256}
ds_write_b32 {v(aPw)}, {v(TMP+1)} offset:{8*256+4*PS2}
s_mov_b64 exec, -1
L_nofix:
s_nop 1
""")
for tp in range(2):
    for mt in range(2):
        d0 = D1R + 8*tp + 4*mt; d1 = d0 + 16
        o = TMP + 8 + (tp*2+mt)*4
        cvt(o, d0, d0+1); cvt(o+1, d1, d1+1); cvt(o+2, d1+2, d1+3); cvt(o+3, d0+2, d0+3)
for tp in range(2):
    for mt in range(2):
        o = TMP + 8 + (tp*2+mt)*4
        A(f"ds_write_b64 {v(aPw)}, {v(o,2)} offset:{mt*4*PS2+tp*128}")
        if tp == 1:
            A(f"ds_write_b64 {v(aQp)}, {v(o+2,2)} offset:{mt*4*PS2}")
        else:
            A(f"ds_write_b32 {v(aQ1)}, {v(o+2)} offset:{mt*4*PS2}")
            A(f"ds_write_b32 {v(aQ0)}, {v(o+3)} offset:{mt*4*PS2}")
A("s_waitcnt lgkmcnt(0)")
A("s_barrier")
stamp("bar3", (1, 3))
for t in range(4):
    for j in range(2):
        A(f"ds_read_b64 {v(XR+4*t+2*j,2)}, {v(aRd3)} offset:{t*1024+j*256}")
for t in range(4):
    A(f"s_waitcnt lgkmcnt({6-2*t})")
    m32(D1R, XR+4*t, GR+4*t, D1R if t else None)
A("s_nop 4")
weave([M32(D1I, XR+4*t, GI+4*t, D1I if t else None) for t in range(4)], ["s_nop 4"] + TW1(D1R, True), [1, 6, 6, 99])
stamp("m3", (3,))
for t_ in TW2(D1I, XR, XI, True, 0, 8): A(t_)
weave([M32(D2R, XR, FC, None), M32(D2R, XI, FN, D2R), M32(D2I, XR, FS, None), M32(D2I, XI, FC, D2I)], TW2(D1I, XR, XI, True, 8, 16), 6)
weave([M32(D2R, XR+4, FC+4, D2R), M32(D2R, XI+4, FN+4, D2R), M32(D2I, XR+4, FS+4, D2I), M32(D2I, XI+4, FC+4, D2I)], [], 0)
stamp("m4", (3,))
for comp, d in ((0, D2R), (1, D2I)):
    o = TMP + comp*8
    for q in (0, 4, 1, 5, 2, 6, 3, 7): cvt(o+q, d+2*q, d+2*q+1)
    for q in range(4): A(f"v_permlane16_swap_b32 {v(o+q)}, {v(o+4+q)}")
    for j in range(2):
        A(f"buffer_store_dwordx4 {v(o+4*j,4)}, {v(aSo)}, {srd(OUT_)}, {s(sO[comp])} offen offset:{j*1024}{OUTM}")
if OPT['stamp']:
    stamp("st3", (1, 3))
    A("s_waitcnt vmcnt(0)")
    stamp("end")
    A("s_waitcnt lgkmcnt(0)")
    if OPT['probe'] in (1, 2):
        e_ = sST + 2*(len(stamps)-1)
        A(f"""
        s_load_dwordx2 s[8:9], s[0:1], 64
        s_mov_b32 s10, {256 << 20}
        s_mov_b32 s11, 0x20000
        s_add_u32 {s(sT[0])}, {s(sST)}, 1800
        s_lshl3_add_u32 {s(sT[4])}, s2, {s(sW)}
        s_lshl_b32 {s(sT[4])}, {s(sT[4])}, 12
        s_add_u32 {s(sT[4])}, {s(sT[4])}, {OPT['poff'] << 20}
        v_lshlrev_b32 v2, 4, {v(vL)}
        L_pw:
        s_memrealtime {s(sT[2],2)}
        s_waitcnt lgkmcnt(0)
        s_sub_u32 {s(sT[1])}, {s(sT[0])}, {s(sT[2])}
        s_cmp_gt_i32 {s(sT[1])}, 0
        s_cbranch_scc1 L_pw
        s_memrealtime {s(sST+2,2)}
        """)
        for j in range(4): A(f"buffer_store_dwordx4 v[16:19], v2, s[8:11], {s(sT[4])} offen offset:{j*1024} sc1")
        A(f"""
        s_waitcnt vmcnt(0)
        s_memrealtime {s(e_,2)}
        """)
        if OPT['probe'] == 2:
            A(f"s_xor_b32 {s(sT[4])}, {s(sT[4])}, {3 << 15}")
            A("s_sleep 64")
            for j in range(4): A(f"buffer_load_dwordx4 v[20:23], v2, s[8:11], {s(sT[4])} offen offset:{j*1024} sc1")
            A("s_waitcnt vmcnt(0)")
        A("s_waitcnt lgkmcnt(0)")
    n = len(stamps)
    assert sST + 2*n <= 88, n
    if OPT['diag']:
        da, db = OPT['da'], OPT['db']
        A(f"""
        s_load_dwordx2 s[94:95], s[0:1], 56
        s_and_b32 {s(sT[4])}, s2, 7
        s_lshl_b32 {s(sT[4])}, {s(sT[4])}, 3
        s_not_b32 {s(sT[11])}, {s(sST)}
        s_waitcnt lgkmcnt(0)
        s_cmp_lg_u32 {s(sW)}, {OPT['wa']}
        s_cbranch_scc1 L_dg1
        s_atomic_umax {s(sST+2*da) if da else s(sT[11])}, s[94:95], {s(sT[4])}
        L_dg1:
        s_cmp_lg_u32 {s(sW)}, {OPT['wb']}
        s_cbranch_scc1 L_end
        s_atomic_umax {s(sST+2*db)}, s[94:95], {s(sT[4])} offset:4
        s_cmp_lg_u32 s2, 100
        s_cbranch_scc1 L_end
        s_add_u32 {s(sT[0])}, {s(sST+2*(n-1))}, 500
        L_amp0:
        s_memrealtime {s(sT[2],2)}
        s_waitcnt lgkmcnt(0)
        s_sub_u32 {s(sT[1])}, {s(sT[0])}, {s(sT[2])}
        s_cmp_gt_i32 {s(sT[1])}, 0
        s_cbranch_scc1 L_amp0
        s_load_dwordx16 s[60:75], s[94:95], 0 glc
        s_waitcnt lgkmcnt(0)
        """)
        for i in range(1, 8):
            A(f"s_max_u32 s60, s60, s{60+2*i}")
            A(f"s_max_u32 s61, s61, s{61+2*i}")
        if not da: A("s_not_b32 s60, s60")
        A(f"""
        s_sub_u32 {s(sT[1])}, s61, s60
        s_lshl_b32 {s(sT[1])}, {s(sT[1])}, 4
        s_min_u32 {s(sT[1])}, {s(sT[1])}, 60000
        s_add_u32 {s(sT[0])}, {s(sT[0])}, {s(sT[1])}
        L_amp:
        s_memrealtime {s(sT[2],2)}
        s_waitcnt lgkmcnt(0)
        s_sub_u32 {s(sT[1])}, {s(sT[0])}, {s(sT[2])}
        s_cmp_gt_i32 {s(sT[1])}, 0
        s_cbranch_scc1 L_amp
        s_branch L_end
        """)
    A(f"s_lshl_b32 {s(sT[0])}, s2, 3")
    A(f"s_add_u32 {s(sT[0])}, {s(sT[0])}, {s(sW)}")
    A(f"s_lshl_b32 {s(sT[0])}, {s(sT[0])}, 7")
    A(f"s_add_u32 {s(sT[0])}, {s(sT[0])}, {STAMP}")
    A("v_mov_b32 v3, 0")
    A("s_mov_b64 exec, 1")
    for i in range(n):
        A(f"v_mov_b32 v2, {s(sST+2*i)}")
        A(f"buffer_store_dword v2, v3, {srd(WS_)}, {s(sT[0])} offen offset:{i*4}")
    A.raw("; stamps: " + " ".join(stamps))
A.label("L_end")
A("s_endpgm")
def kd(name, nv, ns):
    A.raw(f""".p2align 6
.amdhsa_kernel {name}
  .amdhsa_next_free_vgpr {nv}
  .amdhsa_next_free_sgpr {ns}
  .amdhsa_accum_offset {nv}
  .amdhsa_group_segment_fixed_size 0
  .amdhsa_kernarg_size 72
  .amdhsa_user_sgpr_count 2
  .amdhsa_user_sgpr_kernarg_segment_ptr 1
  .amdhsa_system_sgpr_workgroup_id_x 1
  .amdhsa_float_denorm_mode_32 3
.end_amdhsa_kernel""")
A.raw('.section .rodata,"a"')
kd(NAME + "_kernel", 256, 102)
if OPT['lst']: kd("empty_kernel", 8, 16)
open(sys.argv[1], "w").write(A.text())
print(sys.argv[1], "nops:", A.nops, "stamps:", len(stamps), file=sys.stderr)
```

```python
import sys, struct
import numpy as np
from asmlib import Asm, v, s

NAME = "concat_heads__spectral_gfnet__spectral_gfnet__prompt"
OPT = dict(outm=1, xnt=0, wnt=0, wsoff=0, probe=0, poff=64, pbuf=0, tlb=0, tls=16, diag=0, da=0, db=0, wa=0, wb=0, ne=3, xpf=0, gh=1, xprio=0, slp=2, nst=3, gpos=1, xl=8, stag=2, neb=3, amp=0, ampw=0, stamp=0, sl1=0, sl2=0, lst=0, half=0)
for a_ in sys.argv[2:]:
    k_, v_ = a_.split('='); assert k_ in OPT, k_; OPT[k_] = int(v_)

def fbits(x): return "0x%08x" % struct.unpack('<I', struct.pack('<f', x))[0]
def bf16(x):
    u = np.asarray(x, dtype=np.float32).view(np.uint32)
    return ((u + 0x7FFF + ((u >> 16) & 1)) >> 16).astype(np.uint32)

T1 = 0
T2 = 8 << 20
AUX = 16 << 20
T1X = AUX
T2X = AUX + 0x30000
WX = AUX + 0x8000
CP = 256
C1 = AUX + 0x10000
C2 = AUX + 0x20000
EW = AUX + 0xa0000
STAMP = AUX + 0x100000
WSZ = 18 << 20
EXOFF = 32768
PS = 5184
WOFF = EXOFF + 8 * PS
M2OFF = WOFF + 36864
SYOFF = M2OFF + 32768
PGOFF = SYOFF + 64
T1OFF = PGOFF + 2048
LDSZ = T1OFF + 14336
EX2 = EXOFF
OS = 8320
XOUT = EXOFF + 32768
PS2 = 4160
sW, sM, sRHO, sSB, sA, sGRP = 3, 4, 5, 6, 7, 32
X_, WR_, WI_, OUT_, WS_, TAB_ = 8, 12, 16, 20, 24, 28
sCNT = 33
sT = list(range(34, 48))
sV = 48
sEXP = 50
sTAG = 51
sW12, sM8, sE, sROLE, sC1, sC2 = 52, 53, 54, 55, 56, 57
sPM = 58
sST = 60
sO = [96, 97]
sU = [98, 99, 100, 101]
sONE = sU[2]
srd = lambda b: s(b, 4)

A = Asm()
HOST = 128
NST = OPT['nst']
XNT = ' nt' if OPT['xnt'] else ''
WNT = ' nt' if OPT['wnt'] else ''
OUTM = ['', ' sc1', ' nt', ' sc0 sc1', ' sc1 nt', ' sc0 sc1 nt'][OPT['outm']]
def M32(d, a, b, c): return f"v_mfma_f32_32x32x16_bf16 {v(d,16)}, {v(a,4)}, {v(b,4)}, {v(c,16) if c is not None else 0}"
def M16(d, a, b, c): return f"v_mfma_f32_16x16x32_bf16 {v(d,4)}, {v(a,4)}, {v(b,4)}, {v(c,4) if c is not None else 0}"
def CVT(d, a, b, na=False, nb=False): return f"v_cvt_pk_bf16_f32 {v(d)}, {'-' if na else ''}{v(a)}, {'-' if nb else ''}{v(b)}"
def m32(*a): A(M32(*a))
def m16(*a): A(M16(*a))
def cvt(*a): A(CVT(*a))
def weave(mf, fill, per):
    fill = list(fill)
    for i, m in enumerate(mf):
        A(m)
        n = per[i] if isinstance(per, (list, tuple)) else per
        for _ in range(n):
            if fill: A(fill.pop(0))
    for f in fill: A(f)
stamps = []
def stamp(name, sets=(1,)):
    st = OPT['stamp']
    if name in ("start", "end"):
        if st: A(f"s_memrealtime {s(sST + 2*len(stamps), 2)}"); stamps.append(name)
        if st > 1: A(f"s_memtime {s(sST + 2*len(stamps), 2)}"); stamps.append("c" + name)
    elif st in sets:
        if name not in stamps: stamps.append(name)
        if OPT['probe'] == 3 and name in ('bar3', 'st3'): return
        A(f"{'s_memrealtime' if st == 1 else 's_memtime'} {s(sST + 2*stamps.index(name), 2)}")

vL, c_, g_ = 1, 2, 3
vT = list(range(2, 16))
TC, TS = 16, 32
FC, FS, FN = 48, 56, 64
M3 = 72
GR, GI = 80, 96
XR, XI = 112, 120
D1R, D1I = 128, 144
D2R, D2I = 160, 176
TMP = 192
PH = 224
WRF, WIF = 16, 48
FR = 80
DRE, DIM, DNR = 144, 160, 176
ER, EI = 192, 224

def peek(off, imm=0):
    A(f"s_mov_b64 {s(sV,2)}, 0")
    A(f"s_atomic_or_x2 {s(sV,2)}, {s(WS_,2)}, {s(off)} glc" if not imm else f"s_atomic_or_x2 {s(sV,2)}, {s(WS_,2)}, {s(off)} offset:{imm} glc")
def poll(label, off, count, sleep, imm=0, keep=None):
    A(f"s_mov_b32 {s(sEXP)}, {count}")
    A(f"s_mov_b32 {s(sCNT)}, 0x8000")
    A.label(label)
    peek(off, imm)
    A(f"s_sub_u32 {s(sCNT)}, {s(sCNT)}, 1")
    A(f"s_cbranch_scc1 {label}_out")
    if sleep: A(f"s_sleep {sleep}")
    A("s_waitcnt lgkmcnt(0)")
    if keep is not None:
        A(f"s_mov_b32 {s(keep)}, {s(sV)}")
        A(f"s_and_b32 {s(sV)}, {s(sV)}, 0xffff")
    A(f"s_cmp_eq_u64 {s(sV,2)}, {s(sEXP,2)}")
    A(f"s_cbranch_scc0 {label}")
    A.label(label + "_out")
def validate(label, off, imm=0):
    A(f"s_mov_b32 {s(sCNT)}, 0x8000")
    A.label(label)
    A("s_waitcnt lgkmcnt(0)")
    A(f"s_cmp_eq_u32 {s(sV+1)}, {s(sTAG)}")
    A(f"s_cbranch_scc1 {label}_out")
    peek(off, imm)
    A(f"s_sub_u32 {s(sCNT)}, {s(sCNT)}, 1")
    A(f"s_cbranch_scc0 {label}")
    A("s_waitcnt lgkmcnt(0)")
    A.label(label + "_out")
def signal(off, imm=0):
    A(f"s_atomic_add {s(sONE)}, {s(WS_,2)}, {s(off)}" + (f" offset:{imm}" if imm else ""))

vSY, vS1, vPG = vT[12], vT[13], vT[11]
def lds_wait(label, off, val):
    A(f"s_mov_b32 {s(sCNT)}, 0x40000")
    A.label(label)
    A(f"ds_read_b32 {v(vS1)}, {v(vSY)} offset:{off}")
    A(f"s_sub_u32 {s(sCNT)}, {s(sCNT)}, 1")
    A(f"s_cbranch_scc1 {label}_out")
    A("s_waitcnt lgkmcnt(0)")
    A(f"v_cmp_gt_u32 vcc, {val}, {v(vS1)}")
    A("s_and_b64 vcc, vcc, vcc")
    A(f"s_cbranch_scc1 {label}")
    A.label(label + "_out")
def lds_bit(off, sbit):
    A(f"v_mov_b32 {v(vS1)}, {s(sbit)}")
    A("s_mov_b64 exec, 1")
    A(f"ds_or_b32 {v(vSY)}, {v(vS1)} offset:{off}")
    A("s_mov_b64 exec, -1")
def lds_post(off, rtn=False):
    A(f"v_mov_b32 {v(vS1)}, 1")
    A("s_mov_b64 exec, 1")
    if rtn: A(f"ds_add_rtn_u32 {v(vS1)}, {v(vSY)}, {v(vS1)} offset:{off}")
    else: A(f"ds_add_u32 {v(vSY)}, {v(vS1)} offset:{off}")
    A("s_mov_b64 exec, -1")

sWB, sI = sU[0], sU[3]
aWM, aWT = GR + 4, GR + 5
nlab = [0]
def w_piece(e):
    if e < 4:
        A(f"s_add_u32 m0, {s(sT[13])}, {WOFF + e*9216}")
        if e & 1: A(f"s_add_u32 {s(sI)}, {s(sT[12])}, {64*16416}")
        A(f"buffer_load_dwordx4 {v(aWM)}, {srd(WI_ if e >> 1 else WR_)}, {s(sI if e & 1 else sT[12])} offen{WNT} lds")
    else:
        n = nlab[0]; nlab[0] += 1
        A(f"""
        s_mul_i32 {s(sI)}, {s(sW)}, 9216
        s_add_u32 m0, {s(sI)}, {WOFF + 8192}
        s_and_b32 {s(sI)}, {s(sW)}, 1
        s_mul_i32 {s(sI)}, {s(sI)}, {64*16416}
        s_add_u32 {s(sI)}, {s(sI)}, {s(sWB)}
        s_bitcmp1_b32 {s(sW)}, 1
        s_cbranch_scc1 L_t1_{n}
        buffer_load_dwordx4 {v(aWT)}, {srd(WR_)}, {s(sI)} offen{WNT} lds
        s_branch L_t2_{n}
        L_t1_{n}:
        buffer_load_dwordx4 {v(aWT)}, {srd(WI_)}, {s(sI)} offen{WNT} lds
        L_t2_{n}:
        """)
def w_base(sw):
    A(f"s_mul_i32 {s(sT[12])}, {s(sw)}, {7*16416}")
    A(f"s_add_u32 {s(sT[12])}, {s(sT[12])}, {s(sWB)}")
    A(f"s_lshl_b32 {s(sT[13])}, {s(sw)}, 10")

def gen_m2(sW):
    G = D2R
    kf, s0, af, bf, ai, bi, ad = G, G+1, G+2, G+3, G+4, G+5, G+6
    P, C_, S_ = D1R, D1R+16, G+8
    A(f"""
    s_and_b32 {s(sT[12])}, {s(sW)}, 1
    s_lshl_b32 {s(sT[12])}, {s(sT[12])}, 4
    s_lshr_b32 {s(sT[13])}, {s(sW)}, 1
    v_add_u32 {v(kf)}, {s(sT[12])}, {v(c_)}
    v_lshl_add_u32 {v(ai)}, {v(kf)}, 2, {s(sT[13])}
    v_lshl_add_u32 {v(s0)}, {v(g_)}, 4, {s(sT[13])}
    v_mul_u32_u24 {v(bf)}, {v(s0)}, {v(kf)}
    v_mul_u32_u24 {v(bi)}, {v(g_)}, {v(ai)}
    v_cvt_f32_u32 {v(af)}, {v(kf)}
    v_cvt_f32_u32 {v(ai)}, {v(ai)}
    v_cvt_f32_u32 {v(bf)}, {v(bf)}
    v_cvt_f32_u32 {v(bi)}, {v(bi)}
    v_mul_f32 {v(bf)}, {fbits(1/128)}, {v(bf)}
    v_mul_f32 {v(bi)}, {fbits(1/32)}, {v(bi)}
    s_lshl_b32 {s(sT[12])}, {s(sW)}, 11
    s_add_u32 {s(sT[12])}, {s(sT[12])}, {M2OFF}
    v_lshl_add_u32 {v(ad)}, {v(vL)}, 4, {s(sT[12])}
    """)
    for d in range(2):
        for i in range(8):
            c = 16*(i >> 2) + (i & 3)
            A(f"v_fmamk_f32 {v(P+8*d+i)}, {v(ai if d else af)}, {fbits(c/128 if d else c/32)}, {v(bi if d else bf)}")
    for i in range(16):
        A(f"v_cos_f32 {v(C_+i)}, {v(P+i)}")
        A(f"v_sin_f32 {v(S_+i)}, {v(P+i)}")
    for d in range(2):
        for j in range(4):
            cvt(P+8*d+j, C_+8*d+2*j, C_+8*d+2*j+1)
            cvt(P+8*d+4+j, S_+8*d+2*j, S_+8*d+2*j+1)
    for d in range(2):
        for cs in range(2):
            A(f"ds_write_b128 {v(ad)}, {v(P+8*d+4*cs,4)} offset:{d*16384+cs*1024}")

def load_tables(addr):
    for i in (8, 9, 10, 11, 12, 13, 0, 4, 1, 5, 2, 6, 3, 7):
        A(f"ds_read_b128 {v(TC+4*i,4)}, {v(addr)} offset:{i*1024}")

def TW1(dr, conj):
    L = []
    for i in range(16):
        L.append(f"v_mul_f32 {v(TMP+i)}, {v(dr+i)}, {v(TC+i)}")
        L.append(f"v_mul_f32 {v(TMP+16+i)}, {v(dr+i)}, {v(TS+i)}" if conj else f"v_mul_f32_e64 {v(TMP+16+i)}, -{v(dr+i)}, {v(TS+i)}")
    return L
def TW2(di, outr, outi, conj, lo, hi):
    L = []
    for i in range(lo, hi, 2):
        for e in range(2):
            L.append(f"v_fma_f32 {v(TMP+i+e)}, -{v(di+i+e)}, {v(TS+i+e)}, {v(TMP+i+e)}" if conj else f"v_fmac_f32 {v(TMP+i+e)}, {v(di+i+e)}, {v(TS+i+e)}")
            L.append(f"v_fmac_f32 {v(TMP+16+i+e)}, {v(di+i+e)}, {v(TC+i+e)}")
        L.append(CVT(outr + i//2, TMP+i, TMP+i+1))
        L.append(CVT(outi + i//2, TMP+16+i, TMP+16+i+1))
    return L

if OPT['lst'] == 0: A.raw(f"; @launch grid=(256,1,1) block=(512,1,1) lds={LDSZ}")
else:
    A.raw(f"; @launch kernel={NAME}_kernel grid=(256,1,1) block=(512,1,1) lds={LDSZ}")
    A.raw(f"; @launch kernel=empty_kernel grid=(1,1,1) block=(64,1,1) lds=0")
A.raw('.amdgcn_target "amdgcn-amd-amdhsa--gfx950"\n.text')
if OPT['lst']: A.raw(".globl empty_kernel\n.p2align 8\n.type empty_kernel,@function\nempty_kernel:\n s_endpgm")
A.raw(f".globl {NAME}_kernel\n.p2align 8\n.type {NAME}_kernel,@function")
A.label(f"{NAME}_kernel")
aL16 = GR + 1
A(f"""
s_cmp_ge_u32 s2, 256
s_cbranch_scc1 L_end
s_bfe_u32 {s(sM)}, s2, 0x10003
s_mul_i32 {s(sT[0])}, {s(sM)}, 24
s_load_dwordx2 {s(X_,2)}, s[0:1], {s(sT[0])}
s_load_dwordx2 {s(WS_,2)}, s[0:1], 64
s_load_dwordx2 {s(WR_,2)}, s[0:1], {s(sT[0])} offset:8
s_load_dwordx2 {s(WI_,2)}, s[0:1], {s(sT[0])} offset:16
s_load_dwordx2 {s(OUT_,2)}, s[0:1], 48
""")
PF_ = 40
if OPT['xpf']:
    A(f"""
    s_sub_u32 {s(sT[0])}, 24, {s(sT[0])}
    s_load_dwordx2 {s(88,2)}, s[0:1], {s(sT[0])} offset:8
    s_load_dwordx2 {s(92,2)}, s[0:1], {s(sT[0])} offset:16
    """)
stamp("start")
A(f"""
v_lshrrev_b32 v2, 6, v0
v_and_b32 {v(vL)}, 63, v0
s_and_b32 {s(sT[1])}, s2, 7
v_readfirstlane_b32 {s(sW)}, v2
s_lshr_b32 {s(sT[2])}, s2, 4
s_lshl_b32 {s(sRHO)}, {s(sT[1])}, 4
s_add_u32 {s(sRHO)}, {s(sRHO)}, {s(sT[2])}
s_and_b32 {s(sSB)}, {s(sRHO)}, 31
s_lshr_b32 {s(sT[5])}, {s(sRHO)}, 5
s_lshl2_add_u32 {s(sSB)}, {s(sSB)}, {s(sT[5])}
v_lshlrev_b32 {v(aL16)}, 4, {v(vL)}
s_mov_b32 {s(X_+2)}, 4194304
s_mov_b32 {s(X_+3)}, 0x20000
s_lshl_b32 {s(sO[0])}, {s(sW)}, 7
s_add_u32 {s(sO[0])}, {s(sO[0])}, {s(sSB)}
s_lshl_b32 {s(sO[0])}, {s(sO[0])}, 11
s_add_u32 {s(sO[1])}, {s(sO[0])}, 0x200000
s_lshl_b32 {s(sW12)}, {s(sW)}, 12
s_mov_b32 m0, {s(sW12)}
s_getpc_b64 {s(TAB_,2)}
L_pc:
s_mov_b32 {s(TAB_+2)}, L_end-L_pc
s_mov_b32 {s(TAB_+3)}, 0x20000
v_lshlrev_b32 v3, 11, v2
s_lshl_b32 {s(sT[6])}, {s(sT[2])}, 7
buffer_load_dword {v(GR)}, v3, {srd(TAB_)}, {s(sT[6])} offen
s_lshl_b32 {s(sA)}, {s(sT[1])}, 1
""")
if OPT['xpf']:
    A(f"""
    s_lshl3_add_u32 {s(sPM)}, {s(sT[2])}, {s(sW)}
    s_lshl4_add_u32 {s(sPM)}, {s(sPM)}, {s(sA)}
    s_mul_i32 {s(sPM)}, {s(sPM)}, 1026
    v_lshlrev_b32 {v(GR+2)}, 7, {v(vL)}
    v_min_u32 {v(GR+2)}, 2048, {v(GR+2)}
    s_mov_b32 s90, 2101248
    s_mov_b32 s91, 0x20000
    s_mov_b32 s94, 2101248
    s_mov_b32 s95, 0x20000
    """)
A("s_waitcnt lgkmcnt(0)")
stamp("karg", (4,))
if OPT['probe'] == 3:
    A(f"""
    s_mov_b32 {s(WS_+2)}, {256 << 20}
    s_mov_b32 {s(WS_+3)}, 0x20000
    s_lshl3_add_u32 {s(sT[4])}, s2, {s(sW)}
    s_lshl_b32 {s(sT[4])}, {s(sT[4])}, 12
    s_add_u32 {s(sT[4])}, {s(sT[4])}, {OPT['poff'] << 20}
    s_add_u32 {s(sT[0])}, {s(sST)}, {OPT['pbuf']}
    L_pw0:
    s_memrealtime s[84:85]
    s_waitcnt lgkmcnt(0)
    s_sub_u32 {s(sT[3])}, {s(sT[0])}, s84
    s_cmp_gt_i32 {s(sT[3])}, 0
    s_cbranch_scc1 L_pw0
    """)
    for j in range(4): A(f"buffer_store_dwordx4 v[16:19], {v(aL16)}, {srd(WS_)}, {s(sT[4])} offen offset:{j*1024} sc1")
    A(f"""
    s_waitcnt vmcnt(0)
    s_memrealtime s[82:83]
    s_sleep 32
    s_waitcnt lgkmcnt(0)
    """)
sX0, sX1 = sO
XISS = f"""
buffer_load_dwordx4 {v(aL16)}, {srd(X_)}, {s(sX0)} offen{XNT} lds
buffer_load_dwordx4 {v(aL16)}, {srd(X_)}, {s(sX0)} offen offset:1024{XNT} lds
s_add_u32 m0, {s(sW12)}, 2048
buffer_load_dwordx4 {v(aL16)}, {srd(X_)}, {s(sX1)} offen{XNT} lds
buffer_load_dwordx4 {v(aL16)}, {srd(X_)}, {s(sX1)} offen offset:1024{XNT} lds
"""
aPF = GR + 2
sPF = sPM
XPF = f"""
buffer_load_dword {v(GR)}, {v(aPF)}, s[88:91], {s(sPF)} offen
buffer_load_dword {v(GR)}, {v(aPF)}, s[92:95], {s(sPF)} offen
"""
if OPT['xpf']:
    A(f"""
    s_cmp_eq_u32 {s(sM)}, 0
    s_cbranch_scc1 L_nopf
    {XPF}
    s_barrier
    L_nopf:
    """)
if OPT['stag']:
    A(f"s_cmp_lg_u32 {s(sM)}, 0")
    A("s_cbranch_scc1 L_xlate")
A(XISS)
A.label("L_xlate")
stamp("xiss", (4,))
A(f"""
s_lshr_b32 {s(sT[3])}, {s(sW)}, 1
s_and_b32 {s(sT[4])}, {s(sW)}, 1
s_lshl_b32 {s(sT[6])}, {s(sT[3])}, 2
s_add_u32 {s(sT[6])}, {s(sT[6])}, {s(sT[4])}
s_lshl_b32 {s(sT[6])}, {s(sT[6])}, 1
v_lshrrev_b32 {v(PH)}, 5, {v(vL)}
v_and_b32 {v(PH+1)}, 31, {v(vL)}
v_lshl_add_u32 {v(PH)}, {v(PH)}, 2, {s(sT[6])}
v_mul_u32_u24 {v(PH)}, {v(PH)}, {v(PH+1)}
v_add_u32 {v(PH+1)}, {v(PH)}, {v(PH+1)}
v_cvt_f32_u32 {v(PH)}, {v(PH)}
v_cvt_f32_u32 {v(PH+1)}, {v(PH+1)}
v_mul_f32 {v(PH+2)}, {fbits(1/32)}, {v(PH)}
v_mul_f32 {v(PH+3)}, {fbits(1/32)}, {v(PH+1)}
v_cos_f32 {v(PH+8)}, {v(PH+2)}
v_cos_f32 {v(PH+9)}, {v(PH+3)}
v_sin_f32 {v(PH+10)}, {v(PH+2)}
v_sin_f32 {v(PH+11)}, {v(PH+3)}
v_mul_f32 {v(PH)}, {fbits(1/32)}, {v(PH+2)}
v_mul_f32 {v(PH+1)}, {fbits(1/32)}, {v(PH+3)}
v_cos_f32 {v(PH+4)}, {v(PH)}
v_cos_f32 {v(PH+5)}, {v(PH+1)}
v_sin_f32 {v(PH+6)}, {v(PH)}
v_sin_f32 {v(PH+7)}, {v(PH+1)}
{CVT(PH+12, PH+8, PH+9)}
{CVT(PH+13, PH+10, PH+11)}
{CVT(PH+14, PH+10, PH+11, True, True)}
v_add_u32 {v(vS1)}, {T1OFF}, {v(aL16)}
s_lshl_b32 {s(sT[3])}, {s(sT[3])}, 10
s_lshl3_add_u32 {s(sT[3])}, {s(sT[4])}, {s(sT[3])}
v_add_u32 {v(PH)}, {s(sT[3])}, {v(vS1)}
s_lshr_b32 {s(sT[3])}, {s(sW)}, 2
s_lshl_b32 {s(sT[3])}, {s(sT[3])}, 10
s_and_b32 {s(sT[4])}, {s(sW)}, 3
s_lshl2_add_u32 {s(sT[3])}, {s(sT[4])}, {s(sT[3])}
v_add_u32 {v(PH+1)}, {s(sT[3])}, {v(vS1)}
v_mov_b32 {v(vSY)}, {SYOFF}
v_mov_b32 v8, 0
v_mov_b32 v9, 0
v_mov_b32 v10, 0
v_mov_b32 v11, 0
v_lshlrev_b32 {v(vPG)}, 2, v0
v_add_u32 {v(vPG)}, {PGOFF}, {v(vPG)}
ds_write_b64 {v(PH)}, {v(PH+4,2)}
ds_write_b64 {v(PH)}, {v(PH+6,2)} offset:4096
ds_write_b32 {v(PH+1)}, {v(PH+12)} offset:8192
ds_write_b32 {v(PH+1)}, {v(PH+13)} offset:10240
ds_write_b32 {v(PH+1)}, {v(PH+14)} offset:12288
ds_write_b128 {v(vSY)}, v[8:11]
ds_write_b128 {v(vSY)}, v[8:11] offset:16
ds_write_b32 {v(vPG)}, v8
s_add_u32 {s(WS_)}, {s(WS_)}, {OPT['wsoff'] << 20}
s_addc_u32 {s(WS_+1)}, {s(WS_+1)}, 0
s_mov_b32 {s(WS_+2)}, {WSZ}
s_mov_b32 {s(WS_+3)}, 0x20000
s_mov_b32 {s(WR_+2)}, 2101248
s_mov_b32 {s(WR_+3)}, 0x20000
s_mov_b32 {s(WI_+2)}, 2101248
s_mov_b32 {s(WI_+3)}, 0x20000
s_mov_b32 {s(OUT_+2)}, 8388608
s_mov_b32 {s(OUT_+3)}, 0x20000
s_lshl_b32 {s(sM8)}, {s(sM)}, 3
s_mov_b32 {s(sT[6])}, {EW}
s_waitcnt lgkmcnt(0)
s_load_dword {s(sE)}, {s(WS_,2)}, {s(sT[6])}
""")
stamp("tgen", (4,))
A("s_barrier")
stamp("tbar", (4,))
load_tables(vS1)
def late_x():
    A(f"s_cmp_eq_u32 {s(sM)}, 0")
    A("s_cbranch_scc1 L_xdone")
    A(XISS)
    A.label("L_xdone")
if OPT['stag'] == 1: late_x()
stamp("xis2", (4,))
aG = GR + 3
sG = sU[1]
SPW = 3
sX16 = sROLE
A(f"""
s_lshl_b32 {s(sC1)}, {s(sM)}, 4
s_add_u32 {s(sC1)}, {s(sC1)}, {s(sW)}
s_lshl_b32 {s(sC1)}, {s(sC1)}, 2
s_add_u32 {s(sC1)}, {s(sC1)}, {s(sT[5])}
s_mul_i32 {s(sC1)}, {s(sC1)}, {CP}
s_add_u32 {s(sC1)}, {s(sC1)}, {C1}
s_mov_b32 {s(sX16)}, 0x10000
s_add_u32 {s(sC2)}, {s(sM8)}, {s(sW)}
s_lshl_b32 {s(sC2)}, {s(sC2)}, 3
s_add_u32 {s(sC2)}, {s(sC2)}, {s(sT[1])}
s_mul_i32 {s(sC2)}, {s(sC2)}, {CP}
s_add_u32 {s(sC2)}, {s(sC2)}, {C2}
""")
A(f"""
s_lshr_b32 {s(sT[6])}, {s(sT[2])}, 3
s_add_u32 {s(sA)}, {s(sA)}, {s(sT[6])}
s_and_b32 {s(sGRP)}, {s(sT[2])}, 7
v_and_b32 {v(c_)}, 15, {v(vL)}
v_lshrrev_b32 {v(g_)}, 4, {v(vL)}
v_lshrrev_b32 v9, 2, {v(c_)}
v_and_b32 v10, 1, {v(c_)}
v_lshl_add_u32 v9, v9, 1, v10
v_and_b32 v10, 2, {v(c_)}
v_lshl_add_u32 v9, v10, 2, v9
v_mul_u32_u24 {v(aG)}, 1026, v9
s_mul_i32 {s(sG)}, {s(sRHO)}, 16416
""")
A(f"""
v_lshrrev_b32 {v(PH)}, 1, {v(c_)}
v_and_b32 {v(PH+1)}, 1, {v(PH)}
s_bfe_u32 {s(sT[0])}, {s(sRHO)}, 0x10002
v_and_b32 {v(PH+2)}, 1, {v(c_)}
v_xor_b32 {v(PH+2)}, {s(sT[0])}, {v(PH+2)}
v_sub_u32 {v(PH+2)}, {v(PH+2)}, {v(PH+1)}
v_cvt_f32_i32 {v(PH+2)}, {v(PH+2)}
v_mov_b32 {v(PH+3)}, {fbits(0.125)}
v_fmamk_f32 {v(PH+2)}, {v(PH+2)}, {fbits(0.25)}, {v(PH+3)}
v_mul_u32_u24 {v(PH+1)}, 0x8000, {v(PH+1)}
v_lshl_or_b32 {v(PH+1)}, {v(PH+1)}, 16, {v(PH+1)}
v_cvt_f32_u32 {v(PH)}, {v(PH)}
v_add_f32 {v(PH+3)}, {fbits(8.0)}, {v(PH)}
v_lshl_add_u32 {v(PH+4)}, {v(g_)}, 8, {s(sSB)}
v_cvt_f32_u32 {v(PH+4)}, {v(PH+4)}
v_mul_f32 {v(PH+4)}, {fbits(1/2048)}, {v(PH+4)}
v_add_f32 {v(PH+5)}, {fbits(1/16)}, {v(PH+4)}
""")
for mt in range(2):
    for e in range(2):
        t = PH + 8 + (mt*2+e)*3
        A(f"v_fma_f32 {v(t)}, {v(PH+4+e)}, {v(PH if mt == 0 else PH+3)}, {v(PH+2)}")
        A(f"v_cos_f32 {v(t+1)}, {v(t)}")
        A(f"v_sin_f32 {v(t+2)}, {v(t)}")
for mt in range(2):
    for e in range(2):
        t = PH + 8 + (mt*2+e)*3
        cvt(M3 + mt*4 + 2*e, t+1, t+2)
        cvt(M3 + mt*4 + 2*e + 1, t+2, t+1)
        A(f"v_xor_b32 {v(M3 + mt*4 + 2*e + 1)}, {v(PH+1)}, {v(M3 + mt*4 + 2*e + 1)}")
if OPT['stag'] == 2: late_x()
aTR, aP, aQe, aQo, aRD, aST = vT[2:8]
sS1 = sT[8:12]
A(f"""
v_bfe_u32 {v(PH)}, {v(vL)}, 2, 2
v_lshrrev_b32 {v(PH+1)}, 5, {v(vL)}
v_lshl_add_u32 {v(PH)}, {v(PH+1)}, 2, {v(PH)}
v_lshlrev_b32 {v(PH)}, 6, {v(PH)}
v_and_b32 {v(PH+2)}, 16, {v(vL)}
v_lshl_add_u32 {v(PH)}, {v(PH+2)}, 1, {v(PH)}
v_and_b32 {v(PH+2)}, 3, {v(vL)}
v_lshl_add_u32 {v(PH)}, {v(PH+2)}, 3, {v(PH)}
v_add_u32 {v(aTR)}, {s(sW12)}, {v(PH)}
s_mul_i32 {s(sT[0])}, {s(sW)}, {PS}
s_add_u32 {s(sT[0])}, {s(sT[0])}, {EXOFF}
v_and_b32 {v(PH+3)}, 31, {v(vL)}
v_mul_u32_u24 {v(PH+4)}, 20, {v(PH+2)}
v_lshrrev_b32 {v(PH+5)}, 2, {v(PH+3)}
v_mul_u32_u24 {v(PH+6)}, 160, {v(PH+1)}
v_add3_u32 {v(PH+4)}, {v(PH+4)}, {v(PH+5)}, {v(PH+6)}
v_lshl_add_u32 {v(aP)}, {v(PH+4)}, 3, {s(sT[0])}
v_sub_u32 {v(PH+3)}, 32, {v(PH+3)}
v_and_b32 {v(PH+4)}, 3, {v(PH+3)}
v_mul_u32_u24 {v(PH+4)}, 20, {v(PH+4)}
v_lshrrev_b32 {v(PH+5)}, 2, {v(PH+3)}
v_sub_u32 {v(PH+6)}, 160, {v(PH+6)}
v_add3_u32 {v(PH+4)}, {v(PH+4)}, {v(PH+5)}, {v(PH+6)}
v_lshl_add_u32 {v(aQe)}, {v(PH+4)}, 3, {s(sT[0])}
v_and_b32 {v(PH+3)}, 32, {v(PH+3)}
v_lshl_add_u32 {v(aQo)}, {v(PH+3)}, 4, {v(aQe)}
s_mul_i32 {s(sT[0])}, {s(sW)}, 640
s_add_u32 {s(sT[0])}, {s(sT[0])}, {EXOFF}
v_mul_u32_u24 {v(PH)}, {2*PS}, {v(g_)}
v_lshl_add_u32 {v(PH)}, {v(c_)}, 3, {v(PH)}
v_add_u32 {v(aRD)}, {s(sT[0])}, {v(PH)}
v_lshlrev_b32 {v(PH)}, 19, {v(g_)}
v_lshl_add_u32 {v(aST)}, {v(c_)}, 4, {v(PH)}
s_lshl_b32 {s(sS1[0])}, {s(sM)}, 22
s_lshl_b32 {s(sT[0])}, {s(sW)}, 15
s_add_u32 {s(sS1[0])}, {s(sS1[0])}, {s(sT[0])}
s_lshl_b32 {s(sT[0])}, {s(sRHO)}, 8
s_add_u32 {s(sS1[0])}, {s(sS1[0])}, {s(sT[0])}
s_add_u32 {s(sS1[1])}, {s(sS1[0])}, {1<<18}
s_add_u32 {s(sS1[2])}, {s(sS1[0])}, {8<<18}
s_add_u32 {s(sS1[3])}, {s(sS1[0])}, {9<<18}
s_mul_i32 {s(sWB)}, {s(sA)}, 1026
s_lshl_b32 {s(sT[0])}, {s(sGRP)}, 7
s_add_u32 {s(sWB)}, {s(sWB)}, {s(sT[0])}
s_andn2_b32 {s(sWB)}, {s(sWB)}, 15
""")
if OPT['stag'] == 3: late_x()
A(f"""
v_add_u32 {v(PH)}, {s(sW)}, {v(vL)}
v_mul_u32_u24 {v(PH+1)}, 57, {v(PH)}
v_lshrrev_b32 {v(PH+1)}, 9, {v(PH+1)}
v_mul_u32_u24 {v(PH+1)}, {16416-144}, {v(PH+1)}
v_lshl_add_u32 {v(aWM)}, {v(PH)}, 4, {v(PH+1)}
v_add_u32 {v(PH)}, 8, {v(vL)}
v_mul_u32_u24 {v(PH+1)}, 57, {v(PH)}
v_lshrrev_b32 {v(PH+1)}, 9, {v(PH+1)}
v_mul_u32_u24 {v(PH+1)}, {16416-144}, {v(PH+1)}
v_lshl_add_u32 {v(aWT)}, {v(PH)}, 4, {v(PH+1)}
v_add_u32 {v(aWT)}, {56*16416}, {v(aWT)}
s_mov_b32 {s(sEXP)}, 0
s_mov_b32 {s(sONE)}, 1
s_and_b32 {s(sT[1])}, {s(sRHO)}, 15
s_cbranch_scc1 L_noinit
s_waitcnt lgkmcnt(0)
s_mul_i32 {s(sTAG)}, {s(sE)}, 0x9E3779B1
s_add_u32 {s(sTAG)}, {s(sTAG)}, 0x7F4A7C15
s_atomic_swap_x2 {s(sEXP,2)}, {s(WS_,2)}, {s(sC2)}
s_and_b32 {s(sT[1])}, {s(sRHO)}, 31
s_cbranch_scc1 L_noinit
s_atomic_swap_x2 {s(sEXP,2)}, {s(WS_,2)}, {s(sC1)}
L_noinit:
""")
NE = OPT['ne']
A(f"""
s_cmp_lg_u32 {s(sW)}, {SPW}
s_cbranch_scc1 L_nogather
buffer_load_ushort v11, {v(aG)}, {srd(WR_)}, {s(sG)} offen offset:1024
buffer_load_ushort v12, {v(aG)}, {srd(WI_)}, {s(sG)} offen offset:1024
L_nogather:
""")
stamp('setup', (4,))
NEB = OPT['neb']
if OPT['stag'] in (2, 3): A("s_barrier")
NTL = 0
if OPT['tlb']:
    NTL = 2
    TLS = OPT['tls']
    L = -(-(WSZ >> TLS) // 256)
    A(f"""
    s_andn2_b32 {s(sT[0])}, s2, 7
    s_add_u32 {s(sT[0])}, {s(sT[0])}, {s(sW)}
    s_lshl_b32 {s(sT[0])}, {s(sT[0])}, {TLS}
    s_and_b32 {s(sT[1])}, s2, 7
    s_lshl_b32 {s(sT[1])}, {s(sT[1])}, 7
    s_add_u32 {s(sT[0])}, {s(sT[0])}, {s(sT[1])}
    v_lshlrev_b32 {v(PH)}, {TLS+8}, {v(vL)}
    v_add_u32 {v(PH)}, {s(sT[0])}, {v(PH)}
    v_mov_b32 {v(PH+1)}, 0
    s_mov_b64 exec, {(1 << L) - 1}
    buffer_atomic_or {v(PH+1)}, {v(PH)}, {srd(WS_)}, 0 offen sc1
    buffer_atomic_or {v(PH+1)}, {v(PH)}, {srd(OUT_)}, 0 offen sc1
    s_mov_b64 exec, -1
    """)
w_base(sW)
for e in range(max(NE, NEB)):
    if e == min(NE, NEB):
        A(f"s_cmp_eq_u32 {s(sM)}, {0 if NE < NEB else 1}")
        A("s_cbranch_scc1 L_noearly")
    w_piece(e)
A.label("L_noearly")
NEA = NE
if OPT['xpf'] == 2:
    NEA = NE + 2
    A(f"""
    s_cmp_lg_u32 {s(sM)}, 0
    s_cbranch_scc1 L_nopf2
    {XPF}
    L_nopf2:
    """)
def wait_m(lbl, add):
    lo, hi = min(NEA, NEB) + NTL, max(NEA, NEB) + NTL
    A(f"s_waitcnt vmcnt({hi+add})")
    if lo != hi:
        A(f"s_cmp_eq_u32 {s(sM)}, {0 if NEA > NEB else 1}")
        A(f"s_cbranch_scc1 {lbl}")
        A(f"s_waitcnt vmcnt({lo+add})")
        A.label(lbl)
stamp("wiss", (4,))
wait_m("L_wm0", 2)
A(f"""
s_cmp_eq_u32 {s(sW)}, {SPW}
s_cbranch_scc1 L_xw1
""")
wait_m("L_wm1", 0)
A.label("L_xw1")
stamp("x", (1, 2, 4))
for comp, dst in ((0, XR), (1, XI)):
    for t in range(2):
        for j in range(2):
            A(f"ds_read_b64_tr_b16 {v(dst+4*t+2*j,2)}, {v(aTR)} offset:{comp*2048+t*1024+j*512}")
A("s_waitcnt lgkmcnt(0)")
stamp("tr", (2, 4))
weave([M32(D1R, XR, FC, None), M32(D1R, XR+4, FC+4, D1R), M32(D1R, XI, FS, D1R), M32(D1R, XI+4, FS+4, D1R), M32(D1I, XR, FN, None)],
      [f"s_mul_i32 {s(sTAG)}, {s(sE)}, 0x9E3779B1", f"s_add_u32 {s(sTAG)}, {s(sTAG)}, 0x7F4A7C15", "s_nop 4", "s_nop 4"], [2, 0, 0, 1, 1])
weave([M32(D1I, XR+4, FN+4, D1I), M32(D1I, XI, FC, D1I), M32(D1I, XI+4, FC+4, D1I)], TW1(D1R, False), [6, 6, 99])
stamp("m1", (2,))
for t_ in TW2(D1I, XR, XI, False, 0, 8): A(t_)
stamp("tw", (2,))
weave([M32(D2R, FC, XR, None), M32(D2I, FN, XR, None), M32(D2R, FS, XI, D2R), M32(D2I, FC, XI, D2I)], TW2(D1I, XR, XI, False, 8, 16), 6)
weave([M32(D2R, FC+4, XR+4, D2R), M32(D2I, FN+4, XR+4, D2I), M32(D2R, FS+4, XI+4, D2R), M32(D2I, FC+4, XI+4, D2I)], [], 0)
stamp("m2", (2,))
for i in range(16):
    cvt(TMP+i, D2R+i, D2I+i)
stamp("cv", (2,))
for i in range(16):
    kd2 = 8*(i >> 2) + (i & 3)
    if i < 8:
        A(f"ds_write_b32 {v(aP)}, {v(TMP+i)} offset:{(80*(kd2>>1)+8*(kd2&1))*8}")
    else:
        e = 31 - kd2 - 4
        A(f"ds_write_b32 {v(aQo if e & 1 else aQe)}, {v(TMP+i)} offset:{(80*(e>>1)+8*(e&1))*8+4}")
A(f"""
s_mov_b64 exec, 1
ds_write_b32 {v(aP)}, {v(TMP)} offset:4
ds_write_b32 {v(aP)}, {v(TMP+8)} offset:{640*8}
s_mov_b64 exec, -1
""")
stamp("wr", (2,))
A("s_waitcnt lgkmcnt(0)")
stamp("wrd", (2,))
A("s_barrier")
stamp("bar1", (1, 2, 4))
A(f"""
s_cmp_lg_u32 {s(sW)}, {SPW}
s_cbranch_scc1 L_nosp1
v_mul_u32_u24 {v(PH)}, {2*PS}, {v(g_)}
ds_read_b64 {v(XR,2)}, {v(PH)} offset:{EXOFF+640*8}
ds_read_b64 {v(XR+2,2)}, {v(PH)} offset:{EXOFF+640*8+PS}
s_lshl_b32 {s(sT[0])}, {s(sM)}, 13
s_lshl_b32 {s(sT[1])}, {s(sRHO)}, 6
s_add_u32 {s(sT[0])}, {s(sT[0])}, {s(sT[1])}
s_add_u32 {s(sT[1])}, {s(sT[0])}, {WX}
s_add_u32 {s(sT[0])}, {s(sT[0])}, {T1X}
v_lshlrev_b32 {v(PH+1)}, 2, {v(vL)}
v_lshlrev_b32 {v(PH+2)}, 4, {v(g_)}
""")
wait_m("L_wm2", 0)
A(f"""
v_lshl_or_b32 v11, v12, 16, v11
s_mov_b64 exec, 0xffff
buffer_store_dword v11, {v(PH+1)}, {srd(WS_)}, {s(sT[1])} offen sc1
s_mov_b64 exec, -1
s_waitcnt lgkmcnt(0)
""")
m16(D1R, M3, XR, None); m16(D1R+4, M3+4, XR, None)
cvt(TMP, D1R, D1R+2); cvt(TMP+1, D1R+4, D1R+6); cvt(TMP+2, D1R+1, D1R+3); cvt(TMP+3, D1R+5, D1R+7)
A(f"""
s_mov_b32 exec_lo, 0x00010001
s_mov_b32 exec_hi, 0x00010001
buffer_store_dwordx4 {v(TMP,4)}, {v(PH+2)}, {srd(WS_)}, {s(sT[0])} offen sc1
s_mov_b64 exec, -1
L_nosp1:
""")
for t in range(4):
    for jj in range(2):
        A(f"ds_read_b64 {v(XR+4*t+2*jj,2)}, {v(aRD)} offset:{160*t+PS*jj}")
for t in range(4):
    A(f"s_waitcnt lgkmcnt({6-2*t})")
    m16(D1R+8*t, M3, XR+4*t, None)
peek(sC1)
for t in range(4):
    m16(D1R+8*t+4, M3+4, XR+4*t, None)
for mt in range(2):
    for al in range(2):
        o = TMP + 4 + (mt*2+al)*4
        d = D1R + 4*mt + 2*al
        cvt(o, d, d+8); cvt(o+2, d+1, d+9); cvt(o+1, d+16, d+24); cvt(o+3, d+17, d+25)
    for al in range(2):
        o = TMP + 4 + (mt*2+al)*4
        A(f"buffer_store_dwordx4 {v(o,4)}, {v(aST)}, {srd(WS_)}, {s(sS1[mt*2+al])} offen sc1")
stamp("st1", (2,))
sPH = sE
A(f"""
s_barrier
""")
A(f"s_mov_b32 {s(sPH)}, 1")
GH = OPT['gh']
if GH:
    A(f"""
    s_cmp_lt_u32 {s(sW)}, 4
    s_cbranch_scc1 L_nogen
    s_sub_u32 {s(sI)}, {s(sW)}, {4 if GH == 2 else 0}
    L_gen:
    """)
    gen_m2(sI)
    if GH == 2:
        A(f"""
        s_add_u32 {s(sI)}, {s(sI)}, 4
        s_cmp_lt_u32 {s(sI)}, 8
        s_cbranch_scc1 L_gen
        """)
    lds_post(12)
    if GH == 1:
        A(f"s_cmp_lt_u32 {s(sW)}, 4")
        A("s_cbranch_scc1 L_genret")
    A.label("L_nogen")
validate("L_val1", sC1)
A(f"""
s_cmp_lg_u32 {s(sW)}, {SPW}
s_cbranch_scc1 L_nosp2
s_waitcnt vmcnt(4)
s_atomic_add {s(sX16)}, {s(WS_,2)}, {s(sC1)}
L_nosp2:
s_waitcnt vmcnt(0)
""")
signal(sC1)
stamp("fl1")
aW, aF, aRe, aIm, aO, aD = vT[2:8]
sFA, sFB, sFC, sDST, sOI, sDONE, sNEW, sMK = sT[4:12]
A(f"""
s_cmp_ge_u32 {s(sW)}, 4
s_cbranch_scc1 L_helper
""")
assert max(NE, NEB) < 5
w_piece(4)
w_base(sW)
for hh in range(2):
    for e in range(3, min(NE, NEB) - 1, -1):
        if e == max(NE, NEB) - 1:
            A(f"s_cmp_eq_u32 {s(sM)}, {1 if NE < NEB else 0}")
            A(f"s_cbranch_scc1 L_nolate{hh}")
        w_piece(e)
    A.label(f"L_nolate{hh}")
    if hh == 0:
        A(f"""
        v_add_u32 {v(PH)}, {s(sW)}, {v(vL)}
        v_add_u32 {v(PH)}, 4, {v(PH)}
        v_mul_u32_u24 {v(PH+1)}, 57, {v(PH)}
        v_lshrrev_b32 {v(PH+1)}, 9, {v(PH+1)}
        v_mul_u32_u24 {v(PH+1)}, {16416-144}, {v(PH+1)}
        v_lshl_add_u32 {v(aWM)}, {v(PH)}, 4, {v(PH+1)}
        s_add_u32 {s(sT[12])}, {s(sT[12])}, {28*16416}
        s_add_u32 {s(sT[13])}, {s(sT[13])}, 4096
        """)
if GH == 1:
    A(f"s_mov_b32 {s(sI)}, {s(sW)}")
    A("s_branch L_gen")
    A.label("L_genret")
if GH == 0:
    A(f"s_mov_b32 {s(sI)}, {s(sW)}")
    A.label("L_gen")
    gen_m2(sI)
    A(f"""
    s_add_u32 {s(sI)}, {s(sI)}, 4
    s_cmp_lt_u32 {s(sI)}, 8
    s_cbranch_scc1 L_gen
    """)
    lds_post(12)
A(f"""
s_mov_b32 {s(sFA)}, 0
s_and_b32 {s(sFC)}, {s(sA)}, 7
s_mov_b32 {s(sFB)}, 0
s_mul_i32 {s(sOI)}, {s(sW)}, {OS}
s_add_u32 {s(sOI)}, {s(sOI)}, {WOFF}
v_lshrrev_b32 {v(aRe)}, 2, {v(vL)}
v_and_b32 {v(aF)}, 3, {v(aRe)}
v_xor_b32 {v(aF)}, {s(sW)}, {v(aF)}
v_lshlrev_b32 {v(aRe)}, 8, {v(aRe)}
v_lshl_add_u32 {v(aRe)}, {v(aF)}, 6, {v(aRe)}
v_and_b32 {v(aF)}, 3, {v(vL)}
v_lshl_add_u32 {v(aRe)}, {v(aF)}, 4, {v(aRe)}
s_lshl_b32 {s(sT[0])}, {s(sW)}, 5
s_add_u32 {s(sT[0])}, {s(sT[0])}, {WOFF}
v_min_u32 {v(aW)}, 2, {v(g_)}
v_mul_u32_u24 {v(aF)}, 144, {v(c_)}
v_lshl_add_u32 {v(aW)}, {v(aW)}, 4, {v(aF)}
v_add_u32 {v(aW)}, {s(sT[0])}, {v(aW)}
""")
A.label("L_p2common")
A(f"v_lshlrev_b32 {v(aF)}, 4, {v(vL)}")
A(f"v_add_u32 {v(aF)}, {M2OFF}, {v(aF)}")
SEL = DNR
A(f"""
v_lshlrev_b32 {v(DIM)}, {s(sFA)}, {v(c_)}
v_lshlrev_b32 {v(DIM+1)}, 3, {v(g_)}
v_sub_u32 {v(DIM)}, {v(DIM)}, {v(DIM+1)}
v_add_u32 {v(DIM)}, {s(sFC)}, {v(DIM)}
v_add_u32 {v(DIM+1)}, {s(sFB)}, {v(DIM)}
v_mov_b32 {v(DIM+4)}, 0x3500
""")
for q in range(2):
    A(f"v_and_b32 {v(DIM+2)}, 1, {v(DIM+q)}")
    A(f"v_lshlrev_b32 {v(DIM+2)}, 4, {v(DIM+2)}")
    A(f"v_lshlrev_b32 {v(DIM+2)}, {v(DIM+2)}, {v(DIM+4)}")
    A(f"v_ashrrev_i32 {v(DIM+3)}, 1, {v(DIM+q)}")
    for j in range(4):
        A(f"v_cmp_eq_u32 vcc, {j}, {v(DIM+3)}")
        A(f"v_cndmask_b32 {v(SEL+4*q+j)}, 0, {v(DIM+2)}, vcc")
A(f"""
v_and_b32 {v(aIm)}, 1, {v(g_)}
v_lshl_add_u32 {v(aRe)}, {v(aIm)}, 3, {v(aRe)}
v_xor_b32 {v(aIm)}, 8, {v(aRe)}
v_bfe_u32 {v(aO)}, {v(vL)}, 1, 2
v_xor_b32 {v(aO)}, {v(aO)}, {v(g_)}
v_lshlrev_b32 {v(aO)}, 4, {v(aO)}
v_lshl_add_u32 {v(aO)}, {v(c_)}, 6, {v(aO)}
v_add_u32 {v(aO)}, {s(sOI)}, {v(aO)}
v_mov_b32 {v(vT[9])}, 1
s_mov_b32 {s(sT[0])}, 0x80008000
s_mov_b32 {s(sDONE)}, 0
""")
if OPT['gpos'] == 1: lds_wait("L_fr", 12, 8 if GH == 1 else 4)
for f in range(16):
    A(f"ds_read_b128 {v(FR+4*f,4)}, {v(aF)} offset:{f*1024}")
A(f"""
s_waitcnt vmcnt(0)
s_cmp_lt_u32 {s(sW)}, 4
s_cbranch_scc1 L_wreg
""")
for t in range(8):
    m16(WRF+4*t, ER+4*t, SEL, None); m16(WIF+4*t, ER+4*t, SEL+4, None)
A(f"s_movk_i32 {s(sMK)}, 0xff")
A("s_branch L_dspx")
A.label("L_wreg")
lds_post(0)

lds_wait("L_wr", 0, 8)
for t in range(16):
    if t == 12: A("s_waitcnt lgkmcnt(8)")
    A(f"ds_read_b128 {v(ER+4*t,4)}, {v(aW)} offset:{t*2304}")
A(f"s_lshl_b32 {s(sMK)}, 16, {s(sW)}")
lds_bit(4, sMK)
for t in range(16):
    if t >= 4: A(f"s_waitcnt lgkmcnt({16-t})")
    m16(WRF+4*t, ER+4*t, SEL, None)
stamp("wcv", (1,))
A(f"""
s_mov_b32 {s(sCNT)}, 0x40000
L_dsp:
ds_read_b32 {v(vS1)}, {v(vSY)} offset:4
s_sub_u32 {s(sCNT)}, {s(sCNT)}, 1
s_cbranch_scc1 L_fwd_done
s_waitcnt lgkmcnt(0)
v_readfirstlane_b32 {s(sMK)}, {v(vS1)}
L_dspx:
s_andn2_b32 {s(sNEW)}, {s(sMK)}, {s(sDONE)}
s_cbranch_scc0 L_dsp
""")
stamp("dat1", (1, 3))
for u in range(4):
    A(f"s_bitcmp1_b32 {s(sNEW)}, {u}")
    A(f"s_cbranch_scc0 L_nr{u}")
    for j in range(2): A(f"ds_read_b64_tr_b16 {v(DRE+4*u+2*j,2)}, {v(aRe)} offset:{u*8192+j*4096}")
    for j in range(2): A(f"ds_read_b64_tr_b16 {v(DIM+4*u+2*j,2)}, {v(aIm)} offset:{u*8192+j*4096}")
    A.label(f"L_nr{u}")
A(f"s_or_b32 {s(sDONE)}, {s(sDONE)}, {s(sNEW)}")
A("s_waitcnt lgkmcnt(0)")
for u in range(4):
    A(f"s_bitcmp1_b32 {s(sNEW)}, {u}")
    A(f"s_cbranch_scc0 L_nm{u}")
    fc = lambda mt: FR + (u*4 + mt*2) * 4
    fs = lambda mt: FR + (u*4 + mt*2 + 1) * 4
    e = lambda mt: (u*2 + mt) * 4
    weave([M16(ER+e(0), fc(0), DRE+4*u, None), M16(ER+e(1), fc(1), DRE+4*u, None),
           M16(EI+e(0), fc(0), DIM+4*u, None), M16(EI+e(1), fc(1), DIM+4*u, None),
           M16(ER+e(0), fs(0), DIM+4*u, ER+e(0)), M16(ER+e(1), fs(1), DIM+4*u, ER+e(1)),
           M16(EI+e(0), fs(0), DNR+4*u, EI+e(0)), M16(EI+e(1), fs(1), DNR+4*u, EI+e(1))],
          [f"v_xor_b32 {v(DNR+4*u+j)}, {s(sT[0])}, {v(DRE+4*u+j)}" for j in range(4)], 2)
    for f in range(4*u, 4*u+4): A(f"ds_read_b128 {v(FR+4*f,4)}, {v(aF)} offset:{16384+f*1024}")
    A.label(f"L_nm{u}")
A(f"""
s_cmp_lg_u32 {s(sDONE)}, 0xff
s_cbranch_scc1 L_dsp
L_fwd_done:
""")
stamp("fwd", (3,))
A("s_nop 1")
TT = DNR
def pk(op, d, a, b, c=None, na=False, nb=False):
    ops = f"{v(d,2)}, {v(a,2)}, {v(b,2)}" + (f", {v(c,2)}" if c is not None else "")
    n = [int(na), int(nb)] + ([0] if c is not None else [])
    mod = f" neg_lo:{n} neg_hi:{n}".replace(", ", ",") if (na or nb) else ""
    A(f"v_pk_{op}_f32 {ops}{mod}")
add = lambda d, a, b: pk("add", d, a, b)
sub = lambda d, a, b: pk("add", d, a, b, nb=True)
A.raw(".p2align 3")
for mt in range(2):
    for rp in range(2):
        er = lambda u: ER + (u*2+mt)*4 + 2*rp
        ei = lambda u: EI + (u*2+mt)*4 + 2*rp
        wr = lambda q: WRF + (q*2+mt)*4 + 2*rp
        wi = lambda q: WIF + (q*2+mt)*4 + 2*rp
        tr = lambda i: TT + 4*i
        ti = lambda i: TT + 4*i + 2
        add(tr(0), er(0), er(2)); add(ti(0), ei(0), ei(2)); sub(tr(1), er(0), er(2)); sub(ti(1), ei(0), ei(2))
        add(tr(2), er(1), er(3)); add(ti(2), ei(1), ei(3)); sub(tr(3), er(1), er(3)); sub(ti(3), ei(1), ei(3))
        add(er(0), tr(0), tr(2)); add(ei(0), ti(0), ti(2)); sub(er(2), tr(0), tr(2)); sub(ei(2), ti(0), ti(2))
        add(er(1), tr(1), ti(3)); sub(ei(1), ti(1), tr(3)); sub(er(3), tr(1), ti(3)); add(ei(3), ti(1), tr(3))
        for q in range(4):
            pk("mul", tr(q), er(q), wr(q)); pk("mul", ti(q), er(q), wi(q))
        for q in range(4):
            pk("fma", tr(q), ei(q), wi(q), tr(q), na=True); pk("fma", ti(q), ei(q), wr(q), ti(q))
        add(wr(0), tr(0), tr(2)); add(wi(0), ti(0), ti(2)); sub(wr(1), tr(0), tr(2)); sub(wi(1), ti(0), ti(2))
        add(wr(2), tr(1), tr(3)); add(wi(2), ti(1), ti(3)); sub(wr(3), tr(1), tr(3)); sub(wi(3), ti(1), ti(3))
        add(er(0), wr(0), wr(2)); add(ei(0), wi(0), wi(2)); sub(er(2), wr(0), wr(2)); sub(ei(2), wi(0), wi(2))
        sub(er(1), wr(1), wi(3)); add(ei(1), wi(1), wr(3)); add(er(3), wr(1), wi(3)); sub(ei(3), wi(1), wr(3))
def OPS(u):
    L = [CVT(DRE+4*u+j, ER+8*u+2*j, ER+8*u+2*j+1) for j in range(4)]
    L += [CVT(DIM+4*u+j, EI+8*u+2*j, EI+8*u+2*j+1) for j in range(4)]
    L += [CVT(DNR+4*u+j, EI+8*u+2*j, EI+8*u+2*j+1, True, True) for j in range(4)]
    return L
def INV(k):
    e = k*4; o = WRF + e
    return [CVT(o, ER+e, ER+e+1), CVT(o+1, ER+e+2, ER+e+3), CVT(o+2, EI+e, EI+e+1), CVT(o+3, EI+e+2, EI+e+3),
            f"ds_write_b128 {v(aO)}, {v(o,4)} offset:{k*1024}", f"ds_add_u32 {v(vPG)}, {v(vT[9])}"]
for t_ in OPS(0): A(t_)
A("s_waitcnt lgkmcnt(0)")
stamp("mid", (3,))
for k in range(8):
    u, nt = k >> 1, k & 1
    fc, fs, e = FR + (u*4 + nt*2) * 4, FR + (u*4 + nt*2 + 1) * 4, k * 4
    ops = OPS(u+1)[6*nt:6*nt+6] if u < 3 else []
    out = INV(k-1) if k >= 1 else []
    fill = ops + out
    weave([M16(ER+e, DRE+4*u, fc, None), M16(EI+e, DIM+4*u, fc, None), M16(ER+e, DNR+4*u, fs, ER+e), M16(EI+e, DRE+4*u, fs, EI+e)],
          fill, [3, 3, 2, 4] if ops and out else ([2, 2, 2, 0] if ops else [0, 0, 0, 6]))
stamp("inv", (3,))
for t_ in INV(7): A(t_)
stamp("cmp2", (1, 3))
A(f"""
s_cmp_lt_u32 {s(sW)}, 4
s_cbranch_scc1 L_setup3
""")
A(f"""
v_lshlrev_b32 {v(aO)}, 7, {v(c_)}
v_lshl_add_u32 {v(aO)}, {v(g_)}, 4, {v(aO)}
""")
for i in range(8): A(f"v_mov_b32 {v(WIF+2*i+1)}, {s(sTAG)}")
for k in range(8):
    o = WIF + 8*(k & 1)
    for e in range(4): cvt(o+2*e, ER+4*k+e, EI+4*k+e)
    for h in range(2): A(f"buffer_store_dwordx4 {v(o+4*h,4)}, {v(aO)}, {srd(WS_)}, {s(sDST)} offen offset:{(k&1)*2048+h*64} sc1")
    if k & 1: A(f"s_add_u32 {s(sDST)}, {s(sDST)}, 4096")
A(f"""
s_setprio 0
s_branch L_setup3
L_helper:
""")
lds_post(0)
sSRC, sPL, sSG, sBIT = sT[4:8]
A(f"""
s_lshl_b32 {s(sT[0])}, {s(sM)}, 4
s_add_u32 {s(sSRC)}, {s(sT[0])}, {s(sA)}
s_lshl3_add_u32 {s(sSRC)}, {s(sSRC)}, {s(sGRP)}
s_sub_u32 {s(sT[1])}, {s(sW)}, 4
s_lshl2_add_u32 {s(sSRC)}, {s(sSRC)}, {s(sT[1])}
s_lshl_b32 {s(sSRC)}, {s(sSRC)}, 13
s_add_u32 {s(sPL)}, {s(sT[0])}, {s(sGRP)}
s_lshl2_add_u32 {s(sPL)}, {s(sPL)}, {s(sT[1])}
s_mul_i32 {s(sPL)}, {s(sPL)}, {CP}
s_add_u32 {s(sPL)}, {s(sPL)}, {C1}
s_cmp_eq_u32 {s(sGRP)}, {SPW}
s_cselect_b32 {s(sSG)}, 0x200020, 32
s_lshl_b32 m0, {s(sT[1])}, 13
s_lshl_b32 {s(sBIT)}, 1, {s(sT[1])}
v_lshlrev_b32 {v(aD)}, 2, {v(g_)}
v_xor_b32 {v(aD)}, {v(aD)}, {v(c_)}
v_lshlrev_b32 {v(aD)}, 4, {v(aD)}
v_lshl_add_u32 {v(aD)}, {v(g_)}, 8, {v(aD)}
""")
poll("L_poll1", sPL, s(sSG), OPT['sl1'])
stamp("pol1")
for n in range(8):
    A(f"buffer_load_dwordx4 {v(aD)}, {srd(WS_)}, {s(sSRC)} offen offset:{(n&3)*1024} sc1 lds")
    if n == 3:
        A(f"s_add_u32 m0, m0, 4096")
        A(f"s_add_u32 {s(sSRC)}, {s(sSRC)}, 4096")
XP = [WR_, WR_+2, WI_, WI_+2]
A(f"""
s_cmp_lg_u32 {s(sW)}, 4
s_cbranch_scc1 L_posted
s_sub_u32 {s(sT[3])}, s2, {HOST}
s_cmp_ge_u32 {s(sT[3])}, 2
s_cbranch_scc1 L_posted
s_cmp_eq_u32 {s(sT[3])}, 0
s_cbranch_scc1 L_xa
s_waitcnt vmcnt(0)
""")
lds_bit(4, sONE)
A(f"""
L_xa:
s_mul_i32 {s(sT[2])}, {s(sT[3])}, {64*CP}
s_add_u32 {s(sT[2])}, {s(sT[2])}, {C1+SPW*4*CP}
s_mov_b32 {s(sCNT)}, 0x8000
L_pollx:
""")
for i in range(4):
    A(f"s_mov_b64 {s(XP[i],2)}, 0")
    A(f"s_atomic_or_x2 {s(XP[i],2)}, {s(WS_,2)}, {s(sT[2])} offset:{i*CP} glc")
A(f"""
s_sub_u32 {s(sCNT)}, {s(sCNT)}, 1
s_cbranch_scc1 L_pollx_out
s_waitcnt lgkmcnt(0)
""")
for i in range(4):
    A(f"s_cmp_lg_u32 {s(XP[i]+1)}, {s(sTAG)}")
    A("s_cbranch_scc1 L_pollx")
A(f"""
s_and_b32 {s(XP[0])}, {s(XP[0])}, {s(XP[1])}
s_and_b32 {s(XP[2])}, {s(XP[2])}, {s(XP[3])}
s_and_b32 {s(XP[0])}, {s(XP[0])}, {s(XP[2])}
s_bitcmp1_b32 {s(XP[0])}, 21
s_cbranch_scc0 L_pollx
L_pollx_out:
""")
if OPT['xprio']: A("s_setprio 3")
A(f"""
s_mov_b32 {s(sFA)}, 1
s_mov_b32 {s(sFC)}, 0
s_mov_b32 {s(sFB)}, 1
s_lshl_b32 {s(sT[2])}, {s(sT[3])}, 13
s_add_u32 {s(sT[0])}, {s(sT[2])}, {WX}
s_add_u32 {s(sT[1])}, {s(sT[0])}, 4096
s_lshl_b32 {s(sDST)}, {s(sT[3])}, 14
s_add_u32 {s(sDST)}, {s(sDST)}, {T2X}
s_add_u32 {s(sT[2])}, {s(sT[2])}, {T1X}
v_lshlrev_b32 {v(aD)}, 4, {v(vL)}
v_lshlrev_b32 {v(aW)}, 6, {v(c_)}
v_lshl_add_u32 {v(aW)}, {v(g_)}, 4, {v(aW)}
s_mov_b32 {s(sOI)}, {XOUT}
v_add_u32 {v(aRe)}, {EXOFF}, {v(aD)}
s_mov_b32 m0, {EXOFF}
""")
for n in range(8):
    A(f"buffer_load_dwordx4 {v(aD)}, {srd(WS_)}, {s(sT[2])} offen sc1 lds")
    if n < 7:
        A(f"s_add_u32 m0, m0, 4096")
        A(f"s_add_u32 {s(sT[2])}, {s(sT[2])}, 1024")
for t in range(8):
    A(f"buffer_load_dwordx4 {v(ER+4*t,4)}, {v(aW)}, {srd(WS_)}, {s(sT[t>>2])} offen offset:{(t&3)*1024} sc1")
A("s_waitcnt vmcnt(16)")
lds_bit(4, sONE)
A("s_branch L_p2common")
A.label("L_posted")
A(f"""
s_cmp_lt_u32 {s(sW)}, {8-NST}
s_cselect_b32 {s(sPH)}, 1, 0
s_waitcnt vmcnt(0)
""")
lds_bit(4, sBIT)
A.label("L_setup3")
A3 = 237
aD3, aPw, aQ1, aQ0, aRd3, aSo, aQp = range(A3, A3+7)
aT = list(range(A3+9, A3+13))
sMR, sS3 = sT[2], sT[3]
A(f"""
v_lshrrev_b32 {v(PH)}, 1, {v(vL)}
v_xor_b32 {v(PH)}, {v(PH)}, {v(vL)}
v_and_b32 {v(PH)}, 4, {v(PH)}
v_mul_u32_u24 {v(PH)}, 3, {v(PH)}
v_xor_b32 {v(PH)}, {v(PH)}, {v(vL)}
v_lshlrev_b32 {v(vS1)}, 4, {v(PH)}
v_add_u32 {v(vS1)}, {T1OFF}, {v(vS1)}
v_and_b32 {v(aSo)}, 15, {v(PH)}
v_lshlrev_b32 {v(aSo)}, 6, {v(aSo)}
v_and_b32 {v(PH)}, 1, {v(g_)}
v_lshl_add_u32 {v(aSo)}, {v(PH)}, 5, {v(aSo)}
v_lshrrev_b32 {v(PH)}, 1, {v(g_)}
v_lshl_add_u32 {v(aSo)}, {v(PH)}, 4, {v(aSo)}
""")
load_tables(vS1)
A(f"""
v_lshrrev_b32 {v(PH)}, 2, {v(c_)}
v_lshl_add_u32 {v(PH)}, {v(PH)}, 7, {s(sSB)}
v_cvt_f32_u32 {v(PH)}, {v(PH)}
v_mul_f32 {v(PH)}, {fbits(1/2048)}, {v(PH)}
v_add_f32 {v(PH+1)}, {fbits(0.25)}, {v(PH)}
v_and_b32 {v(PH+2)}, 1, {v(c_)}
v_cvt_f32_u32 {v(PH+2)}, {v(PH+2)}
v_mul_f32 {v(PH+2)}, {fbits(-0.25)}, {v(PH+2)}
v_add_f32 {v(PH+3)}, {fbits(-0.125)}, {v(PH+2)}
v_add_f32 {v(PH+2)}, {fbits(0.125)}, {v(PH+2)}
v_and_b32 {v(PH+4)}, 2, {v(c_)}
v_lshlrev_b32 {v(PH+4)}, 30, {v(PH+4)}
v_xor_b32 {v(PH+2)}, {v(PH+4)}, {v(PH+2)}
v_xor_b32 {v(PH+3)}, {v(PH+4)}, {v(PH+3)}
v_lshlrev_b32 {v(PH+4)}, 1, {v(g_)}
v_cvt_f32_u32 {v(PH+4)}, {v(PH+4)}
v_add_f32 {v(PH+5)}, 1.0, {v(PH+4)}
v_add_f32 {v(PH+6)}, {fbits(8.0)}, {v(PH+4)}
v_add_f32 {v(PH+7)}, {fbits(9.0)}, {v(PH+4)}
""")
for mt in range(2):
    for j in range(4):
        t = TMP + (mt*4+j)*3
        A(f"v_fma_f32 {v(t)}, {v(PH+mt)}, {v(PH+4+j)}, {v(PH+2+(j&1))}")
        A(f"v_cos_f32 {v(t+1)}, {v(t)}")
        A(f"v_sin_f32 {v(t+2)}, {v(t)}")
for mt in range(2):
    for j in range(4):
        t = TMP + (mt*4+j)*3
        cvt(M3+mt*4+j, t+1, t+2, False, True)
A(f"""
v_lshrrev_b32 {v(PH)}, 3, {v(vL)}
v_and_b32 {v(PH+1)}, 3, {v(PH)}
v_lshlrev_b32 {v(PH+1)}, 6, {v(PH+1)}
v_lshl_add_u32 {v(PH)}, {v(PH)}, 8, {v(PH+1)}
v_and_b32 {v(PH+1)}, 3, {v(vL)}
v_lshl_add_u32 {v(PH)}, {v(PH+1)}, 4, {v(PH)}
v_and_b32 {v(PH+1)}, 4, {v(vL)}
v_lshl_add_u32 {v(PH)}, {v(PH+1)}, 1, {v(PH)}
v_add_u32 {v(aT[0])}, {s(sW12)}, {v(PH)}
v_xor_b32 {v(aT[1])}, 64, {v(aT[0])}
v_xor_b32 {v(aT[2])}, 128, {v(aT[0])}
v_xor_b32 {v(aT[3])}, 192, {v(aT[0])}
v_mul_u32_u24 {v(PH)}, {PS2}, {v(g_)}
s_lshl_b32 {s(sT[0])}, {s(sW)}, 8
s_add_u32 {s(sT[1])}, {s(sT[0])}, {EX2}
s_sub_u32 {s(sT[0])}, {EX2+15*256}, {s(sT[0])}
v_lshl_add_u32 {v(aPw)}, {v(c_)}, 3, {v(PH)}
v_add_u32 {v(aPw)}, {s(sT[1])}, {v(aPw)}
v_sub_u32 {v(PH+1)}, 16, {v(c_)}
v_lshl_add_u32 {v(PH+1)}, {v(PH+1)}, 3, {v(PH)}
v_add_u32 {v(aQp)}, {s(sT[0])}, {v(PH+1)}
v_cmp_eq_u32 vcc, 0, {v(c_)}
v_mov_b32 {v(PH+2)}, 128
v_mov_b32 {v(PH+3)}, 132
v_mov_b32 {v(PH+4)}, -124
v_cndmask_b32 {v(PH+4)}, {v(PH+2)}, {v(PH+4)}, vcc
v_cndmask_b32 {v(PH+3)}, {v(PH+3)}, {v(PH+2)}, vcc
v_add_u32 {v(aQ1)}, {v(aQp)}, {v(PH+4)}
v_add_u32 {v(aQ0)}, {v(aQp)}, {v(PH+3)}
s_mul_i32 {s(sT[0])}, {s(sW)}, {PS2}
s_add_u32 {s(sT[0])}, {s(sT[0])}, {EX2}
v_and_b32 {v(PH+1)}, 31, {v(vL)}
v_lshrrev_b32 {v(PH+2)}, 5, {v(vL)}
v_lshlrev_b32 {v(PH+3)}, 9, {v(PH+2)}
v_lshl_add_u32 {v(PH+3)}, {v(PH+1)}, 3, {v(PH+3)}
v_add_u32 {v(aRd3)}, {s(sT[0])}, {v(PH+3)}
s_lshl_b32 {s(sO[0])}, {s(sW)}, 7
s_add_u32 {s(sO[0])}, {s(sO[0])}, {s(sSB)}
s_lshl_b32 {s(sO[0])}, {s(sO[0])}, 12
s_lshl_b32 {s(sO[1])}, {s(sM)}, 11
s_add_u32 {s(sO[0])}, {s(sO[0])}, {s(sO[1])}
s_add_u32 {s(sO[1])}, {s(sO[0])}, {1024*4096}
s_mov_b32 {s(sPM)}, 0x05040100
s_mov_b32 {s(sPM+1)}, 0x07060302
""")
A(f"""
v_lshlrev_b32 {v(PH)}, 2, {v(g_)}
v_xor_b32 {v(PH)}, {v(PH)}, {v(c_)}
v_lshlrev_b32 {v(PH)}, 4, {v(PH)}
v_lshl_add_u32 {v(aD3)}, {v(g_)}, 8, {v(PH)}
s_lshl_b32 {s(sMR)}, {s(sM)}, 7
s_add_u32 {s(sMR)}, {s(sMR)}, {s(sRHO)}
s_lshl_b32 {s(sS3)}, {s(sMR)}, 15
s_add_u32 {s(sS3)}, {s(sS3)}, {s(sW12)}
s_add_u32 {s(sS3)}, {s(sS3)}, {T2}
s_cmp_lg_u32 {s(sPH)}, 0
s_cbranch_scc1 L_nosig2
""")
aR0, aR1, aS2, aPr = vT[2], vT[3], vT[4], vT[5]
sD = sT[4:5]
A(f"""
v_bfe_u32 {v(aR0)}, {v(vL)}, 2, 2
v_mul_u32_u24 {v(aR0)}, {OS}, {v(aR0)}
v_lshl_add_u32 {v(aR0)}, {v(g_)}, 6, {v(aR0)}
v_and_b32 {v(aR1)}, 3, {v(vL)}
v_mul_u32_u24 {v(aPr)}, 260, {v(aR1)}
v_add_u32 {v(aPr)}, {PGOFF}, {v(aPr)}
v_lshrrev_b32 {v(aS2)}, 5, {v(vL)}
v_xor_b32 {v(aR1)}, {v(aR1)}, {v(aS2)}
v_lshl_add_u32 {v(aR0)}, {v(aR1)}, 4, {v(aR0)}
s_sub_u32 {s(sT[8])}, 7, {s(sW)}
s_lshl_b32 {s(sT[0])}, {s(sT[8])}, 10
s_add_u32 {s(sT[0])}, {s(sT[0])}, {WOFF}
v_add_u32 {v(aR0)}, {s(sT[0])}, {v(aR0)}
v_xor_b32 {v(aR1)}, 32, {v(aR0)}
v_lshlrev_b32 {v(aS2)}, 15, {v(g_)}
v_lshl_add_u32 {v(aS2)}, {v(c_)}, 4, {v(aS2)}
s_lshl_b32 {s(sD[0])}, {s(sM)}, 22
s_lshl_b32 {s(sT[0])}, {s(sT[8])}, 19
s_add_u32 {s(sD[0])}, {s(sD[0])}, {s(sT[0])}
s_lshl_b32 {s(sT[0])}, {s(sGRP)}, 12
s_add_u32 {s(sD[0])}, {s(sD[0])}, {s(sT[0])}
s_lshl_b32 {s(sT[0])}, {s(sA)}, 8
s_add_u32 {s(sD[0])}, {s(sD[0])}, {s(sT[0])}
s_add_u32 {s(sD[0])}, {s(sD[0])}, {T2}
s_add_u32 {s(sT[0])}, {s(sM8)}, {s(sGRP)}
s_lshl_b32 {s(sT[0])}, {s(sT[0])}, 3
s_add_u32 {s(sT[0])}, {s(sT[0])}, {s(sT[8])}
s_mul_i32 {s(sT[0])}, {s(sT[0])}, {CP}
s_add_u32 {s(sT[0])}, {s(sT[0])}, {C2}
""")
NR = -(-8 // NST)
for i in range(NR):
    if NST*i + NST > 8:
        A(f"s_cmp_ge_u32 {s(sT[8])}, 8")
        A("s_cbranch_scc1 L_short")
    A(f"""
    s_mov_b32 {s(sCNT)}, 0x40000
    L_pg{i}:
    ds_read_b32 {v(vS1)}, {v(aPr)}
    s_sub_u32 {s(sCNT)}, {s(sCNT)}, 1
    s_cbranch_scc1 L_pg{i}_out
    {('s_sleep %d' % OPT['slp']) if i == 0 and OPT['slp'] else ''}
    s_waitcnt lgkmcnt(0)
    v_cmp_ge_u32 vcc, {s(sT[8])}, {v(vS1)}
    s_and_b64 vcc, vcc, vcc
    s_cbranch_scc1 L_pg{i}
    L_pg{i}_out:
    """)
    d = D1R + 16*i
    for j in range(4): A(f"ds_read_b128 {v(d+4*j,4)}, {v(aR1 if j & 1 else aR0)} offset:{i*NST*1024+j*256}")
    A(f"s_add_u32 {s(sT[8])}, {s(sT[8])}, {NST}")
    for j in range(4):
        A(f"s_waitcnt lgkmcnt({3-j})")
        A(f"buffer_store_dwordx4 {v(d+4*j,4)}, {v(aS2)}, {srd(WS_)}, {s(sD[0])} offen sc1")
        A(f"s_add_u32 {s(sD[0])}, {s(sD[0])}, {(4 if j < 3 else 16*NST-12) << 15}")
for i in range(NR):
    A(f"s_waitcnt vmcnt({4*(NR-1-i)})")
    signal(sT[0], NST*i*CP)
if 8 % NST:
    A("s_branch L_nosig2")
    A.label("L_short")
    for i in range(NR-1):
        A(f"s_waitcnt vmcnt({4*(NR-2-i)})")
        signal(sT[0], NST*i*CP)
A.label("L_nosig2")
stamp("fl2")
A("s_barrier")
A(f"s_mov_b32 m0, {s(sW12)}")
poll("L_poll2", sC2, 16, OPT['sl2'])
stamp("pol2")
for j in range(4):
    A(f"buffer_load_dwordx4 {v(aD3)}, {srd(WS_)}, {s(sS3)} offen offset:{j*1024} sc1 lds")
A(f"""
s_cmp_lg_u32 {s(sW)}, 4
s_cbranch_scc1 L_noep
s_cmp_lg_u32 s2, {HOST+1}
s_cbranch_scc1 L_noep
s_mov_b32 {s(sT[4])}, {EW}
s_atomic_swap {s(sTAG)}, {s(WS_,2)}, {s(sT[4])}
s_waitcnt lgkmcnt(0)
L_noep:
""")
GB = [(8, 8), (40, 8), (88, 8), (16, 4), (28, 4)]
GS = [r + i for r, n in GB for i in range(n)]
def granule_loads():
    off = 0
    for r, n in GB:
        A(f"s_load_dwordx{n} {s(r,n)}, {s(WS_,2)}, {s(sT[4])} offset:{off} glc"); off += 4*n
A(f"""
s_cmp_lg_u32 {s(sW)}, 0
s_cbranch_scc1 L_nosp3a
s_lshl_b32 {s(sT[4])}, {s(sMR)}, 7
s_add_u32 {s(sT[4])}, {s(sT[4])}, {T2X}
""")
granule_loads()
A.label("L_nosp3a")
for i in range(16):
    A(f"v_perm_b32 {v(GR+i)}, {v(FN+i//2)}, {v(FC+i//2)}, {s(sPM+(i&1))}")
    A(f"v_perm_b32 {v(GI+i)}, {v(FC+i//2)}, {v(FS+i//2)}, {s(sPM+(i&1))}")
A(f"""
s_cmp_lg_u32 {s(sW)}, 0
s_cbranch_scc1 L_nosp3b
s_mov_b32 {s(sCNT)}, 0x8000
s_branch L_gchk
L_gagain:
s_sub_u32 {s(sCNT)}, {s(sCNT)}, 1
s_cbranch_scc1 L_gok
""")
granule_loads()
A.label("L_gchk")
A("s_waitcnt lgkmcnt(0)")
for i in range(16):
    A(f"s_cmp_lg_u32 {s(GS[2*i+1])}, {s(sTAG)}")
    A("s_cbranch_scc1 L_gagain")
A.label("L_gok")
for h in range(2):
    for g in range(4):
        for q in range(2):
            A(f"v_writelane_b32 {v(TMP+4+2*h+q)}, {s(GS[h*16+g*4+2*q])}, {16*g}")
m16(D2R, M3, TMP+4, None); m16(D2R+4, M3+4, TMP+4, None)
A.label("L_nosp3b")
A("s_waitcnt vmcnt(0)")
stamp("dat2", (1, 3))
for t in (0, 2, 1, 3):
    for jj in range(2):
        A(f"ds_read_b64_tr_b16 {v(XR+4*t+2*jj,2)}, {v(aT[t])} offset:{jj*2048}")
for i, t in enumerate((0, 2, 1, 3)):
    A(f"s_waitcnt lgkmcnt({6-2*i})")
    m16(D1R+8*t, M3, XR+4*t, None); m16(D1R+8*t+4, M3+4, XR+4*t, None)
A(f"""
s_cmp_lg_u32 {s(sW)}, 0
s_cbranch_scc1 L_nofix
s_mov_b32 exec_lo, 0x00010001
s_mov_b32 exec_hi, 0x00010001
""")
for d in (D2R, D1R):
    for mt in range(2):
        for i in range(2):
            A(f"v_add_f32 {v(d+4*mt+i)}, {v(d+4*mt+i)}, {v(d+4*mt+2+i)}")
            A(f"v_mul_f32 {v(d+4*mt+i)}, 0.5, {v(d+4*mt+i)}")
cvt(TMP, D2R, D2R+1); cvt(TMP+1, D2R+4, D2R+5)
A(f"""
ds_write_b32 {v(aPw)}, {v(TMP)} offset:{8*256}
ds_write_b32 {v(aPw)}, {v(TMP+1)} offset:{8*256+4*PS2}
s_mov_b64 exec, -1
L_nofix:
s_nop 1
""")
for tp in range(2):
    for mt in range(2):
        d0 = D1R + 8*tp + 4*mt; d1 = d0 + 16
        o = TMP + 8 + (tp*2+mt)*4
        cvt(o, d0, d0+1); cvt(o+1, d1, d1+1); cvt(o+2, d1+2, d1+3); cvt(o+3, d0+2, d0+3)
for tp in range(2):
    for mt in range(2):
        o = TMP + 8 + (tp*2+mt)*4
        A(f"ds_write_b64 {v(aPw)}, {v(o,2)} offset:{mt*4*PS2+tp*128}")
        if tp == 1:
            A(f"ds_write_b64 {v(aQp)}, {v(o+2,2)} offset:{mt*4*PS2}")
        else:
            A(f"ds_write_b32 {v(aQ1)}, {v(o+2)} offset:{mt*4*PS2}")
            A(f"ds_write_b32 {v(aQ0)}, {v(o+3)} offset:{mt*4*PS2}")
A("s_waitcnt lgkmcnt(0)")
A("s_barrier")
stamp("bar3", (1, 3))
for t in range(4):
    for j in range(2):
        A(f"ds_read_b64 {v(XR+4*t+2*j,2)}, {v(aRd3)} offset:{t*1024+j*256}")
for t in range(4):
    A(f"s_waitcnt lgkmcnt({6-2*t})")
    m32(D1R, XR+4*t, GR+4*t, D1R if t else None)
A("s_nop 4")
weave([M32(D1I, XR+4*t, GI+4*t, D1I if t else None) for t in range(4)], ["s_nop 4"] + TW1(D1R, True), [1, 6, 6, 99])
stamp("m3", (3,))
for t_ in TW2(D1I, XR, XI, True, 0, 8): A(t_)
weave([M32(D2R, XR, FC, None), M32(D2R, XI, FN, D2R), M32(D2I, XR, FS, None), M32(D2I, XI, FC, D2I)], TW2(D1I, XR, XI, True, 8, 16), 6)
weave([M32(D2R, XR+4, FC+4, D2R), M32(D2R, XI+4, FN+4, D2R), M32(D2I, XR+4, FS+4, D2I), M32(D2I, XI+4, FC+4, D2I)], [], 0)
stamp("m4", (3,))
for comp, d in ((0, D2R), (1, D2I)):
    o = TMP + comp*8
    for q in (0, 4, 1, 5, 2, 6, 3, 7): cvt(o+q, d+2*q, d+2*q+1)
    for q in range(4): A(f"v_permlane16_swap_b32 {v(o+q)}, {v(o+4+q)}")
    for j in range(2):
        A(f"buffer_store_dwordx4 {v(o+4*j,4)}, {v(aSo)}, {srd(OUT_)}, {s(sO[comp])} offen offset:{j*1024}{OUTM}")
if OPT['stamp']:
    stamp("st3", (1, 3))
    A("s_waitcnt vmcnt(0)")
    stamp("end")
    A("s_waitcnt lgkmcnt(0)")
    if OPT['probe'] in (1, 2):
        e_ = sST + 2*(len(stamps)-1)
        A(f"""
        s_load_dwordx2 s[8:9], s[0:1], 64
        s_mov_b32 s10, {256 << 20}
        s_mov_b32 s11, 0x20000
        s_add_u32 {s(sT[0])}, {s(sST)}, 1800
        s_lshl3_add_u32 {s(sT[4])}, s2, {s(sW)}
        s_lshl_b32 {s(sT[4])}, {s(sT[4])}, 12
        s_add_u32 {s(sT[4])}, {s(sT[4])}, {OPT['poff'] << 20}
        v_lshlrev_b32 v2, 4, {v(vL)}
        L_pw:
        s_memrealtime {s(sT[2],2)}
        s_waitcnt lgkmcnt(0)
        s_sub_u32 {s(sT[1])}, {s(sT[0])}, {s(sT[2])}
        s_cmp_gt_i32 {s(sT[1])}, 0
        s_cbranch_scc1 L_pw
        s_memrealtime {s(sST+2,2)}
        """)
        for j in range(4): A(f"buffer_store_dwordx4 v[16:19], v2, s[8:11], {s(sT[4])} offen offset:{j*1024} sc1")
        A(f"""
        s_waitcnt vmcnt(0)
        s_memrealtime {s(e_,2)}
        """)
        if OPT['probe'] == 2:
            A(f"s_xor_b32 {s(sT[4])}, {s(sT[4])}, {3 << 15}")
            A("s_sleep 64")
            for j in range(4): A(f"buffer_load_dwordx4 v[20:23], v2, s[8:11], {s(sT[4])} offen offset:{j*1024} sc1")
            A("s_waitcnt vmcnt(0)")
        A("s_waitcnt lgkmcnt(0)")
    n = len(stamps)
    assert sST + 2*n <= 88, n
    if OPT['diag']:
        da, db = OPT['da'], OPT['db']
        A(f"""
        s_load_dwordx2 s[94:95], s[0:1], 56
        s_and_b32 {s(sT[4])}, s2, 7
        s_lshl_b32 {s(sT[4])}, {s(sT[4])}, 3
        s_not_b32 {s(sT[11])}, {s(sST)}
        s_waitcnt lgkmcnt(0)
        s_cmp_lg_u32 {s(sW)}, {OPT['wa']}
        s_cbranch_scc1 L_dg1
        s_atomic_umax {s(sST+2*da) if da else s(sT[11])}, s[94:95], {s(sT[4])}
        L_dg1:
        s_cmp_lg_u32 {s(sW)}, {OPT['wb']}
        s_cbranch_scc1 L_end
        s_atomic_umax {s(sST+2*db)}, s[94:95], {s(sT[4])} offset:4
        s_cmp_lg_u32 s2, 100
        s_cbranch_scc1 L_end
        s_add_u32 {s(sT[0])}, {s(sST+2*(n-1))}, 500
        L_amp0:
        s_memrealtime {s(sT[2],2)}
        s_waitcnt lgkmcnt(0)
        s_sub_u32 {s(sT[1])}, {s(sT[0])}, {s(sT[2])}
        s_cmp_gt_i32 {s(sT[1])}, 0
        s_cbranch_scc1 L_amp0
        s_load_dwordx16 s[60:75], s[94:95], 0 glc
        s_waitcnt lgkmcnt(0)
        """)
        for i in range(1, 8):
            A(f"s_max_u32 s60, s60, s{60+2*i}")
            A(f"s_max_u32 s61, s61, s{61+2*i}")
        if not da: A("s_not_b32 s60, s60")
        A(f"""
        s_sub_u32 {s(sT[1])}, s61, s60
        s_lshl_b32 {s(sT[1])}, {s(sT[1])}, 4
        s_min_u32 {s(sT[1])}, {s(sT[1])}, 60000
        s_add_u32 {s(sT[0])}, {s(sT[0])}, {s(sT[1])}
        L_amp:
        s_memrealtime {s(sT[2],2)}
        s_waitcnt lgkmcnt(0)
        s_sub_u32 {s(sT[1])}, {s(sT[0])}, {s(sT[2])}
        s_cmp_gt_i32 {s(sT[1])}, 0
        s_cbranch_scc1 L_amp
        s_branch L_end
        """)
    A(f"s_lshl_b32 {s(sT[0])}, s2, 3")
    A(f"s_add_u32 {s(sT[0])}, {s(sT[0])}, {s(sW)}")
    A(f"s_lshl_b32 {s(sT[0])}, {s(sT[0])}, 7")
    A(f"s_add_u32 {s(sT[0])}, {s(sT[0])}, {STAMP}")
    A("v_mov_b32 v3, 0")
    A("s_mov_b64 exec, 1")
    for i in range(n):
        A(f"v_mov_b32 v2, {s(sST+2*i)}")
        A(f"buffer_store_dword v2, v3, {srd(WS_)}, {s(sT[0])} offen offset:{i*4}")
    A.raw("; stamps: " + " ".join(stamps))
A.label("L_end")
A("s_endpgm")
def kd(name, nv, ns):
    A.raw(f""".p2align 6
.amdhsa_kernel {name}
  .amdhsa_next_free_vgpr {nv}
  .amdhsa_next_free_sgpr {ns}
  .amdhsa_accum_offset {nv}
  .amdhsa_group_segment_fixed_size 0
  .amdhsa_kernarg_size 72
  .amdhsa_user_sgpr_count 2
  .amdhsa_user_sgpr_kernarg_segment_ptr 1
  .amdhsa_system_sgpr_workgroup_id_x 1
  .amdhsa_float_denorm_mode_32 3
.end_amdhsa_kernel""")
A.raw('.section .rodata,"a"')
kd(NAME + "_kernel", 256, 102)
if OPT['lst']: kd("empty_kernel", 8, 16)
open(sys.argv[1], "w").write(A.text())
print(sys.argv[1], "nops:", A.nops, "stamps:", len(stamps), file=sys.stderr)
```

```python
import sys, struct
import numpy as np
from asmlib import Asm, v, s

NAME = "concat_heads__spectral_gfnet__spectral_gfnet__prompt"
OPT = dict(outm=1, xnt=0, wnt=0, wsoff=0, probe=0, poff=64, pbuf=0, pit=0, tlb=0, tls=16, diag=0, da=0, db=0, wa=0, wb=0, ne=3, xpf=0, gh=1, xprio=0, slp=2, nst=3, gpos=1, xl=8, stag=2, neb=3, amp=0, ampw=0, stamp=0, sl1=0, sl2=0, lst=0, half=0)
for a_ in sys.argv[2:]:
    k_, v_ = a_.split('='); assert k_ in OPT, k_; OPT[k_] = int(v_)

def fbits(x): return "0x%08x" % struct.unpack('<I', struct.pack('<f', x))[0]
def bf16(x):
    u = np.asarray(x, dtype=np.float32).view(np.uint32)
    return ((u + 0x7FFF + ((u >> 16) & 1)) >> 16).astype(np.uint32)

T1 = 0
T2 = 8 << 20
AUX = 16 << 20
T1X = AUX
T2X = AUX + 0x30000
WX = AUX + 0x8000
CP = 256
C1 = AUX + 0x10000
C2 = AUX + 0x20000
EW = AUX + 0xa0000
STAMP = AUX + 0x100000
WSZ = 18 << 20
EXOFF = 32768
PS = 5184
WOFF = EXOFF + 8 * PS
M2OFF = WOFF + 36864
SYOFF = M2OFF + 32768
PGOFF = SYOFF + 64
T1OFF = PGOFF + 2048
LDSZ = T1OFF + 14336
EX2 = EXOFF
OS = 8320
XOUT = EXOFF + 32768
PS2 = 4160
sW, sM, sRHO, sSB, sA, sGRP = 3, 4, 5, 6, 7, 32
X_, WR_, WI_, OUT_, WS_, TAB_ = 8, 12, 16, 20, 24, 28
sCNT = 33
sT = list(range(34, 48))
sV = 48
sEXP = 50
sTAG = 51
sW12, sM8, sE, sROLE, sC1, sC2 = 52, 53, 54, 55, 56, 57
sPM = 58
sST = 60
sO = [96, 97]
sU = [98, 99, 100, 101]
sONE = sU[2]
srd = lambda b: s(b, 4)

A = Asm()
HOST = 128
NST = OPT['nst']
XNT = ' nt' if OPT['xnt'] else ''
WNT = ' nt' if OPT['wnt'] else ''
OUTM = ['', ' sc1', ' nt', ' sc0 sc1', ' sc1 nt', ' sc0 sc1 nt'][OPT['outm']]
def M32(d, a, b, c): return f"v_mfma_f32_32x32x16_bf16 {v(d,16)}, {v(a,4)}, {v(b,4)}, {v(c,16) if c is not None else 0}"
def M16(d, a, b, c): return f"v_mfma_f32_16x16x32_bf16 {v(d,4)}, {v(a,4)}, {v(b,4)}, {v(c,4) if c is not None else 0}"
def CVT(d, a, b, na=False, nb=False): return f"v_cvt_pk_bf16_f32 {v(d)}, {'-' if na else ''}{v(a)}, {'-' if nb else ''}{v(b)}"
def m32(*a): A(M32(*a))
def m16(*a): A(M16(*a))
def cvt(*a): A(CVT(*a))
def weave(mf, fill, per):
    fill = list(fill)
    for i, m in enumerate(mf):
        A(m)
        n = per[i] if isinstance(per, (list, tuple)) else per
        for _ in range(n):
            if fill: A(fill.pop(0))
    for f in fill: A(f)
stamps = []
def stamp(name, sets=(1,)):
    st = OPT['stamp']
    if name in ("start", "end"):
        if st: A(f"s_memrealtime {s(sST + 2*len(stamps), 2)}"); stamps.append(name)
        if st > 1: A(f"s_memtime {s(sST + 2*len(stamps), 2)}"); stamps.append("c" + name)
    elif st in sets:
        if name not in stamps: stamps.append(name)
        if OPT['probe'] == 3 and name in ('bar3', 'st3'): return
        A(f"{'s_memrealtime' if st == 1 else 's_memtime'} {s(sST + 2*stamps.index(name), 2)}")

vL, c_, g_ = 1, 2, 3
vT = list(range(2, 16))
TC, TS = 16, 32
FC, FS, FN = 48, 56, 64
M3 = 72
GR, GI = 80, 96
XR, XI = 112, 120
D1R, D1I = 128, 144
D2R, D2I = 160, 176
TMP = 192
PH = 224
WRF, WIF = 16, 48
FR = 80
DRE, DIM, DNR = 144, 160, 176
ER, EI = 192, 224

def peek(off, imm=0):
    A(f"s_mov_b64 {s(sV,2)}, 0")
    A(f"s_atomic_or_x2 {s(sV,2)}, {s(WS_,2)}, {s(off)} glc" if not imm else f"s_atomic_or_x2 {s(sV,2)}, {s(WS_,2)}, {s(off)} offset:{imm} glc")
def poll(label, off, count, sleep, imm=0, keep=None):
    A(f"s_mov_b32 {s(sEXP)}, {count}")
    A(f"s_mov_b32 {s(sCNT)}, 0x8000")
    A.label(label)
    peek(off, imm)
    A(f"s_sub_u32 {s(sCNT)}, {s(sCNT)}, 1")
    A(f"s_cbranch_scc1 {label}_out")
    if sleep: A(f"s_sleep {sleep}")
    A("s_waitcnt lgkmcnt(0)")
    if keep is not None:
        A(f"s_mov_b32 {s(keep)}, {s(sV)}")
        A(f"s_and_b32 {s(sV)}, {s(sV)}, 0xffff")
    A(f"s_cmp_eq_u64 {s(sV,2)}, {s(sEXP,2)}")
    A(f"s_cbranch_scc0 {label}")
    A.label(label + "_out")
def validate(label, off, imm=0):
    A(f"s_mov_b32 {s(sCNT)}, 0x8000")
    A.label(label)
    A("s_waitcnt lgkmcnt(0)")
    A(f"s_cmp_eq_u32 {s(sV+1)}, {s(sTAG)}")
    A(f"s_cbranch_scc1 {label}_out")
    peek(off, imm)
    A(f"s_sub_u32 {s(sCNT)}, {s(sCNT)}, 1")
    A(f"s_cbranch_scc0 {label}")
    A("s_waitcnt lgkmcnt(0)")
    A.label(label + "_out")
def signal(off, imm=0):
    A(f"s_atomic_add {s(sONE)}, {s(WS_,2)}, {s(off)}" + (f" offset:{imm}" if imm else ""))

vSY, vS1, vPG = vT[12], vT[13], vT[11]
def lds_wait(label, off, val):
    A(f"s_mov_b32 {s(sCNT)}, 0x40000")
    A.label(label)
    A(f"ds_read_b32 {v(vS1)}, {v(vSY)} offset:{off}")
    A(f"s_sub_u32 {s(sCNT)}, {s(sCNT)}, 1")
    A(f"s_cbranch_scc1 {label}_out")
    A("s_waitcnt lgkmcnt(0)")
    A(f"v_cmp_gt_u32 vcc, {val}, {v(vS1)}")
    A("s_and_b64 vcc, vcc, vcc")
    A(f"s_cbranch_scc1 {label}")
    A.label(label + "_out")
def lds_bit(off, sbit):
    A(f"v_mov_b32 {v(vS1)}, {s(sbit)}")
    A("s_mov_b64 exec, 1")
    A(f"ds_or_b32 {v(vSY)}, {v(vS1)} offset:{off}")
    A("s_mov_b64 exec, -1")
def lds_post(off, rtn=False):
    A(f"v_mov_b32 {v(vS1)}, 1")
    A("s_mov_b64 exec, 1")
    if rtn: A(f"ds_add_rtn_u32 {v(vS1)}, {v(vSY)}, {v(vS1)} offset:{off}")
    else: A(f"ds_add_u32 {v(vSY)}, {v(vS1)} offset:{off}")
    A("s_mov_b64 exec, -1")

sWB, sI = sU[0], sU[3]
aWM, aWT = GR + 4, GR + 5
nlab = [0]
def w_piece(e):
    if e < 4:
        A(f"s_add_u32 m0, {s(sT[13])}, {WOFF + e*9216}")
        if e & 1: A(f"s_add_u32 {s(sI)}, {s(sT[12])}, {64*16416}")
        A(f"buffer_load_dwordx4 {v(aWM)}, {srd(WI_ if e >> 1 else WR_)}, {s(sI if e & 1 else sT[12])} offen{WNT} lds")
    else:
        n = nlab[0]; nlab[0] += 1
        A(f"""
        s_mul_i32 {s(sI)}, {s(sW)}, 9216
        s_add_u32 m0, {s(sI)}, {WOFF + 8192}
        s_and_b32 {s(sI)}, {s(sW)}, 1
        s_mul_i32 {s(sI)}, {s(sI)}, {64*16416}
        s_add_u32 {s(sI)}, {s(sI)}, {s(sWB)}
        s_bitcmp1_b32 {s(sW)}, 1
        s_cbranch_scc1 L_t1_{n}
        buffer_load_dwordx4 {v(aWT)}, {srd(WR_)}, {s(sI)} offen{WNT} lds
        s_branch L_t2_{n}
        L_t1_{n}:
        buffer_load_dwordx4 {v(aWT)}, {srd(WI_)}, {s(sI)} offen{WNT} lds
        L_t2_{n}:
        """)
def w_base(sw):
    A(f"s_mul_i32 {s(sT[12])}, {s(sw)}, {7*16416}")
    A(f"s_add_u32 {s(sT[12])}, {s(sT[12])}, {s(sWB)}")
    A(f"s_lshl_b32 {s(sT[13])}, {s(sw)}, 10")

def gen_m2(sW):
    G = D2R
    kf, s0, af, bf, ai, bi, ad = G, G+1, G+2, G+3, G+4, G+5, G+6
    P, C_, S_ = D1R, D1R+16, G+8
    A(f"""
    s_and_b32 {s(sT[12])}, {s(sW)}, 1
    s_lshl_b32 {s(sT[12])}, {s(sT[12])}, 4
    s_lshr_b32 {s(sT[13])}, {s(sW)}, 1
    v_add_u32 {v(kf)}, {s(sT[12])}, {v(c_)}
    v_lshl_add_u32 {v(ai)}, {v(kf)}, 2, {s(sT[13])}
    v_lshl_add_u32 {v(s0)}, {v(g_)}, 4, {s(sT[13])}
    v_mul_u32_u24 {v(bf)}, {v(s0)}, {v(kf)}
    v_mul_u32_u24 {v(bi)}, {v(g_)}, {v(ai)}
    v_cvt_f32_u32 {v(af)}, {v(kf)}
    v_cvt_f32_u32 {v(ai)}, {v(ai)}
    v_cvt_f32_u32 {v(bf)}, {v(bf)}
    v_cvt_f32_u32 {v(bi)}, {v(bi)}
    v_mul_f32 {v(bf)}, {fbits(1/128)}, {v(bf)}
    v_mul_f32 {v(bi)}, {fbits(1/32)}, {v(bi)}
    s_lshl_b32 {s(sT[12])}, {s(sW)}, 11
    s_add_u32 {s(sT[12])}, {s(sT[12])}, {M2OFF}
    v_lshl_add_u32 {v(ad)}, {v(vL)}, 4, {s(sT[12])}
    """)
    for d in range(2):
        for i in range(8):
            c = 16*(i >> 2) + (i & 3)
            A(f"v_fmamk_f32 {v(P+8*d+i)}, {v(ai if d else af)}, {fbits(c/128 if d else c/32)}, {v(bi if d else bf)}")
    for i in range(16):
        A(f"v_cos_f32 {v(C_+i)}, {v(P+i)}")
        A(f"v_sin_f32 {v(S_+i)}, {v(P+i)}")
    for d in range(2):
        for j in range(4):
            cvt(P+8*d+j, C_+8*d+2*j, C_+8*d+2*j+1)
            cvt(P+8*d+4+j, S_+8*d+2*j, S_+8*d+2*j+1)
    for d in range(2):
        for cs in range(2):
            A(f"ds_write_b128 {v(ad)}, {v(P+8*d+4*cs,4)} offset:{d*16384+cs*1024}")

def load_tables(addr):
    for i in (8, 9, 10, 11, 12, 13, 0, 4, 1, 5, 2, 6, 3, 7):
        A(f"ds_read_b128 {v(TC+4*i,4)}, {v(addr)} offset:{i*1024}")

def TW1(dr, conj):
    L = []
    for i in range(16):
        L.append(f"v_mul_f32 {v(TMP+i)}, {v(dr+i)}, {v(TC+i)}")
        L.append(f"v_mul_f32 {v(TMP+16+i)}, {v(dr+i)}, {v(TS+i)}" if conj else f"v_mul_f32_e64 {v(TMP+16+i)}, -{v(dr+i)}, {v(TS+i)}")
    return L
def TW2(di, outr, outi, conj, lo, hi):
    L = []
    for i in range(lo, hi, 2):
        for e in range(2):
            L.append(f"v_fma_f32 {v(TMP+i+e)}, -{v(di+i+e)}, {v(TS+i+e)}, {v(TMP+i+e)}" if conj else f"v_fmac_f32 {v(TMP+i+e)}, {v(di+i+e)}, {v(TS+i+e)}")
            L.append(f"v_fmac_f32 {v(TMP+16+i+e)}, {v(di+i+e)}, {v(TC+i+e)}")
        L.append(CVT(outr + i//2, TMP+i, TMP+i+1))
        L.append(CVT(outi + i//2, TMP+16+i, TMP+16+i+1))
    return L

if OPT['lst'] == 0: A.raw(f"; @launch grid=(256,1,1) block=(512,1,1) lds={LDSZ}")
else:
    A.raw(f"; @launch kernel={NAME}_kernel grid=(256,1,1) block=(512,1,1) lds={LDSZ}")
    A.raw(f"; @launch kernel=empty_kernel grid=(1,1,1) block=(64,1,1) lds=0")
A.raw('.amdgcn_target "amdgcn-amd-amdhsa--gfx950"\n.text')
if OPT['lst']: A.raw(".globl empty_kernel\n.p2align 8\n.type empty_kernel,@function\nempty_kernel:\n s_endpgm")
A.raw(f".globl {NAME}_kernel\n.p2align 8\n.type {NAME}_kernel,@function")
A.label(f"{NAME}_kernel")
aL16 = GR + 1
A(f"""
s_cmp_ge_u32 s2, 256
s_cbranch_scc1 L_end
s_bfe_u32 {s(sM)}, s2, 0x10003
s_mul_i32 {s(sT[0])}, {s(sM)}, 24
s_load_dwordx2 {s(X_,2)}, s[0:1], {s(sT[0])}
s_load_dwordx2 {s(WS_,2)}, s[0:1], 64
s_load_dwordx2 {s(WR_,2)}, s[0:1], {s(sT[0])} offset:8
s_load_dwordx2 {s(WI_,2)}, s[0:1], {s(sT[0])} offset:16
s_load_dwordx2 {s(OUT_,2)}, s[0:1], 48
""")
PF_ = 40
if OPT['xpf']:
    A(f"""
    s_sub_u32 {s(sT[0])}, 24, {s(sT[0])}
    s_load_dwordx2 {s(88,2)}, s[0:1], {s(sT[0])} offset:8
    s_load_dwordx2 {s(92,2)}, s[0:1], {s(sT[0])} offset:16
    """)
stamp("start")
A(f"""
v_lshrrev_b32 v2, 6, v0
v_and_b32 {v(vL)}, 63, v0
s_and_b32 {s(sT[1])}, s2, 7
v_readfirstlane_b32 {s(sW)}, v2
s_lshr_b32 {s(sT[2])}, s2, 4
s_lshl_b32 {s(sRHO)}, {s(sT[1])}, 4
s_add_u32 {s(sRHO)}, {s(sRHO)}, {s(sT[2])}
s_and_b32 {s(sSB)}, {s(sRHO)}, 31
s_lshr_b32 {s(sT[5])}, {s(sRHO)}, 5
s_lshl2_add_u32 {s(sSB)}, {s(sSB)}, {s(sT[5])}
v_lshlrev_b32 {v(aL16)}, 4, {v(vL)}
s_mov_b32 {s(X_+2)}, 4194304
s_mov_b32 {s(X_+3)}, 0x20000
s_lshl_b32 {s(sO[0])}, {s(sW)}, 7
s_add_u32 {s(sO[0])}, {s(sO[0])}, {s(sSB)}
s_lshl_b32 {s(sO[0])}, {s(sO[0])}, 11
s_add_u32 {s(sO[1])}, {s(sO[0])}, 0x200000
s_lshl_b32 {s(sW12)}, {s(sW)}, 12
s_mov_b32 m0, {s(sW12)}
s_getpc_b64 {s(TAB_,2)}
L_pc:
s_mov_b32 {s(TAB_+2)}, L_end-L_pc
s_mov_b32 {s(TAB_+3)}, 0x20000
v_lshlrev_b32 v3, 11, v2
s_lshl_b32 {s(sT[6])}, {s(sT[2])}, 7
buffer_load_dword {v(GR)}, v3, {srd(TAB_)}, {s(sT[6])} offen
s_lshl_b32 {s(sA)}, {s(sT[1])}, 1
""")
if OPT['xpf']:
    A(f"""
    s_lshl3_add_u32 {s(sPM)}, {s(sT[2])}, {s(sW)}
    s_lshl4_add_u32 {s(sPM)}, {s(sPM)}, {s(sA)}
    s_mul_i32 {s(sPM)}, {s(sPM)}, 1026
    v_lshlrev_b32 {v(GR+2)}, 7, {v(vL)}
    v_min_u32 {v(GR+2)}, 2048, {v(GR+2)}
    s_mov_b32 s90, 2101248
    s_mov_b32 s91, 0x20000
    s_mov_b32 s94, 2101248
    s_mov_b32 s95, 0x20000
    """)
A("s_waitcnt lgkmcnt(0)")
stamp("karg", (4,))
if OPT['probe'] == 3:
    A(f"""
    s_mov_b32 {s(WS_+2)}, {256 << 20}
    s_mov_b32 {s(WS_+3)}, 0x20000
    s_lshl3_add_u32 {s(sT[4])}, s2, {s(sW)}
    s_lshl_b32 {s(sT[4])}, {s(sT[4])}, 12
    s_add_u32 {s(sT[4])}, {s(sT[4])}, {OPT['poff'] << 20}
    """)
    if OPT['pit']:
        A(f"""
        s_lshl_b32 {s(sT[4])}, {s(sM)}, 7
        s_add_u32 {s(sT[4])}, {s(sT[4])}, {s(sW)}
        s_mul_i32 {s(sT[4])}, {s(sT[4])}, {OPT['pit']}
        s_lshl_b32 {s(sT[3])}, {s(sRHO)}, 8
        s_add_u32 {s(sT[4])}, {s(sT[4])}, {s(sT[3])}
        s_add_u32 {s(sT[4])}, {s(sT[4])}, {OPT['poff'] << 20}
        v_lshrrev_b32 v20, 4, {v(vL)}
        v_mul_u32_u24 v20, {8*OPT['pit']}, v20
        v_and_b32 v21, 15, {v(vL)}
        v_lshl_add_u32 v20, v21, 4, v20
        """)
    A(f"""
    s_add_u32 {s(sT[0])}, {s(sST)}, {OPT['pbuf']}
    L_pw0:
    s_memrealtime s[84:85]
    s_waitcnt lgkmcnt(0)
    s_sub_u32 {s(sT[3])}, {s(sT[0])}, s84
    s_cmp_gt_i32 {s(sT[3])}, 0
    s_cbranch_scc1 L_pw0
    """)
    if OPT['pit'] == 0:
        for j in range(4): A(f"buffer_store_dwordx4 v[16:19], {v(aL16)}, {srd(WS_)}, {s(sT[4])} offen offset:{j*1024} sc1")
    else:
        for j in range(4):
            A(f"buffer_store_dwordx4 v[16:19], v20, {srd(WS_)}, {s(sT[4])} offen sc1")
            A(f"s_add_u32 {s(sT[4])}, {s(sT[4])}, {32*OPT['pit']}")
    A(f"""
    s_waitcnt vmcnt(0)
    s_memrealtime s[82:83]
    s_sleep 32
    s_waitcnt lgkmcnt(0)
    """)
sX0, sX1 = sO
XISS = f"""
buffer_load_dwordx4 {v(aL16)}, {srd(X_)}, {s(sX0)} offen{XNT} lds
buffer_load_dwordx4 {v(aL16)}, {srd(X_)}, {s(sX0)} offen offset:1024{XNT} lds
s_add_u32 m0, {s(sW12)}, 2048
buffer_load_dwordx4 {v(aL16)}, {srd(X_)}, {s(sX1)} offen{XNT} lds
buffer_load_dwordx4 {v(aL16)}, {srd(X_)}, {s(sX1)} offen offset:1024{XNT} lds
"""
aPF = GR + 2
sPF = sPM
XPF = f"""
buffer_load_dword {v(GR)}, {v(aPF)}, s[88:91], {s(sPF)} offen
buffer_load_dword {v(GR)}, {v(aPF)}, s[92:95], {s(sPF)} offen
"""
if OPT['xpf']:
    A(f"""
    s_cmp_eq_u32 {s(sM)}, 0
    s_cbranch_scc1 L_nopf
    {XPF}
    s_barrier
    L_nopf:
    """)
if OPT['stag']:
    A(f"s_cmp_lg_u32 {s(sM)}, 0")
    A("s_cbranch_scc1 L_xlate")
A(XISS)
A.label("L_xlate")
stamp("xiss", (4,))
A(f"""
s_lshr_b32 {s(sT[3])}, {s(sW)}, 1
s_and_b32 {s(sT[4])}, {s(sW)}, 1
s_lshl_b32 {s(sT[6])}, {s(sT[3])}, 2
s_add_u32 {s(sT[6])}, {s(sT[6])}, {s(sT[4])}
s_lshl_b32 {s(sT[6])}, {s(sT[6])}, 1
v_lshrrev_b32 {v(PH)}, 5, {v(vL)}
v_and_b32 {v(PH+1)}, 31, {v(vL)}
v_lshl_add_u32 {v(PH)}, {v(PH)}, 2, {s(sT[6])}
v_mul_u32_u24 {v(PH)}, {v(PH)}, {v(PH+1)}
v_add_u32 {v(PH+1)}, {v(PH)}, {v(PH+1)}
v_cvt_f32_u32 {v(PH)}, {v(PH)}
v_cvt_f32_u32 {v(PH+1)}, {v(PH+1)}
v_mul_f32 {v(PH+2)}, {fbits(1/32)}, {v(PH)}
v_mul_f32 {v(PH+3)}, {fbits(1/32)}, {v(PH+1)}
v_cos_f32 {v(PH+8)}, {v(PH+2)}
v_cos_f32 {v(PH+9)}, {v(PH+3)}
v_sin_f32 {v(PH+10)}, {v(PH+2)}
v_sin_f32 {v(PH+11)}, {v(PH+3)}
v_mul_f32 {v(PH)}, {fbits(1/32)}, {v(PH+2)}
v_mul_f32 {v(PH+1)}, {fbits(1/32)}, {v(PH+3)}
v_cos_f32 {v(PH+4)}, {v(PH)}
v_cos_f32 {v(PH+5)}, {v(PH+1)}
v_sin_f32 {v(PH+6)}, {v(PH)}
v_sin_f32 {v(PH+7)}, {v(PH+1)}
{CVT(PH+12, PH+8, PH+9)}
{CVT(PH+13, PH+10, PH+11)}
{CVT(PH+14, PH+10, PH+11, True, True)}
v_add_u32 {v(vS1)}, {T1OFF}, {v(aL16)}
s_lshl_b32 {s(sT[3])}, {s(sT[3])}, 10
s_lshl3_add_u32 {s(sT[3])}, {s(sT[4])}, {s(sT[3])}
v_add_u32 {v(PH)}, {s(sT[3])}, {v(vS1)}
s_lshr_b32 {s(sT[3])}, {s(sW)}, 2
s_lshl_b32 {s(sT[3])}, {s(sT[3])}, 10
s_and_b32 {s(sT[4])}, {s(sW)}, 3
s_lshl2_add_u32 {s(sT[3])}, {s(sT[4])}, {s(sT[3])}
v_add_u32 {v(PH+1)}, {s(sT[3])}, {v(vS1)}
v_mov_b32 {v(vSY)}, {SYOFF}
v_mov_b32 v8, 0
v_mov_b32 v9, 0
v_mov_b32 v10, 0
v_mov_b32 v11, 0
v_lshlrev_b32 {v(vPG)}, 2, v0
v_add_u32 {v(vPG)}, {PGOFF}, {v(vPG)}
ds_write_b64 {v(PH)}, {v(PH+4,2)}
ds_write_b64 {v(PH)}, {v(PH+6,2)} offset:4096
ds_write_b32 {v(PH+1)}, {v(PH+12)} offset:8192
ds_write_b32 {v(PH+1)}, {v(PH+13)} offset:10240
ds_write_b32 {v(PH+1)}, {v(PH+14)} offset:12288
ds_write_b128 {v(vSY)}, v[8:11]
ds_write_b128 {v(vSY)}, v[8:11] offset:16
ds_write_b32 {v(vPG)}, v8
s_add_u32 {s(WS_)}, {s(WS_)}, {OPT['wsoff'] << 20}
s_addc_u32 {s(WS_+1)}, {s(WS_+1)}, 0
s_mov_b32 {s(WS_+2)}, {WSZ}
s_mov_b32 {s(WS_+3)}, 0x20000
s_mov_b32 {s(WR_+2)}, 2101248
s_mov_b32 {s(WR_+3)}, 0x20000
s_mov_b32 {s(WI_+2)}, 2101248
s_mov_b32 {s(WI_+3)}, 0x20000
s_mov_b32 {s(OUT_+2)}, 8388608
s_mov_b32 {s(OUT_+3)}, 0x20000
s_lshl_b32 {s(sM8)}, {s(sM)}, 3
s_mov_b32 {s(sT[6])}, {EW}
s_waitcnt lgkmcnt(0)
s_load_dword {s(sE)}, {s(WS_,2)}, {s(sT[6])}
""")
stamp("tgen", (4,))
A("s_barrier")
stamp("tbar", (4,))
load_tables(vS1)
def late_x():
    A(f"s_cmp_eq_u32 {s(sM)}, 0")
    A("s_cbranch_scc1 L_xdone")
    A(XISS)
    A.label("L_xdone")
if OPT['stag'] == 1: late_x()
stamp("xis2", (4,))
aG = GR + 3
sG = sU[1]
SPW = 3
sX16 = sROLE
A(f"""
s_lshl_b32 {s(sC1)}, {s(sM)}, 4
s_add_u32 {s(sC1)}, {s(sC1)}, {s(sW)}
s_lshl_b32 {s(sC1)}, {s(sC1)}, 2
s_add_u32 {s(sC1)}, {s(sC1)}, {s(sT[5])}
s_mul_i32 {s(sC1)}, {s(sC1)}, {CP}
s_add_u32 {s(sC1)}, {s(sC1)}, {C1}
s_mov_b32 {s(sX16)}, 0x10000
s_add_u32 {s(sC2)}, {s(sM8)}, {s(sW)}
s_lshl_b32 {s(sC2)}, {s(sC2)}, 3
s_add_u32 {s(sC2)}, {s(sC2)}, {s(sT[1])}
s_mul_i32 {s(sC2)}, {s(sC2)}, {CP}
s_add_u32 {s(sC2)}, {s(sC2)}, {C2}
""")
A(f"""
s_lshr_b32 {s(sT[6])}, {s(sT[2])}, 3
s_add_u32 {s(sA)}, {s(sA)}, {s(sT[6])}
s_and_b32 {s(sGRP)}, {s(sT[2])}, 7
v_and_b32 {v(c_)}, 15, {v(vL)}
v_lshrrev_b32 {v(g_)}, 4, {v(vL)}
v_lshrrev_b32 v9, 2, {v(c_)}
v_and_b32 v10, 1, {v(c_)}
v_lshl_add_u32 v9, v9, 1, v10
v_and_b32 v10, 2, {v(c_)}
v_lshl_add_u32 v9, v10, 2, v9
v_mul_u32_u24 {v(aG)}, 1026, v9
s_mul_i32 {s(sG)}, {s(sRHO)}, 16416
""")
A(f"""
v_lshrrev_b32 {v(PH)}, 1, {v(c_)}
v_and_b32 {v(PH+1)}, 1, {v(PH)}
s_bfe_u32 {s(sT[0])}, {s(sRHO)}, 0x10002
v_and_b32 {v(PH+2)}, 1, {v(c_)}
v_xor_b32 {v(PH+2)}, {s(sT[0])}, {v(PH+2)}
v_sub_u32 {v(PH+2)}, {v(PH+2)}, {v(PH+1)}
v_cvt_f32_i32 {v(PH+2)}, {v(PH+2)}
v_mov_b32 {v(PH+3)}, {fbits(0.125)}
v_fmamk_f32 {v(PH+2)}, {v(PH+2)}, {fbits(0.25)}, {v(PH+3)}
v_mul_u32_u24 {v(PH+1)}, 0x8000, {v(PH+1)}
v_lshl_or_b32 {v(PH+1)}, {v(PH+1)}, 16, {v(PH+1)}
v_cvt_f32_u32 {v(PH)}, {v(PH)}
v_add_f32 {v(PH+3)}, {fbits(8.0)}, {v(PH)}
v_lshl_add_u32 {v(PH+4)}, {v(g_)}, 8, {s(sSB)}
v_cvt_f32_u32 {v(PH+4)}, {v(PH+4)}
v_mul_f32 {v(PH+4)}, {fbits(1/2048)}, {v(PH+4)}
v_add_f32 {v(PH+5)}, {fbits(1/16)}, {v(PH+4)}
""")
for mt in range(2):
    for e in range(2):
        t = PH + 8 + (mt*2+e)*3
        A(f"v_fma_f32 {v(t)}, {v(PH+4+e)}, {v(PH if mt == 0 else PH+3)}, {v(PH+2)}")
        A(f"v_cos_f32 {v(t+1)}, {v(t)}")
        A(f"v_sin_f32 {v(t+2)}, {v(t)}")
for mt in range(2):
    for e in range(2):
        t = PH + 8 + (mt*2+e)*3
        cvt(M3 + mt*4 + 2*e, t+1, t+2)
        cvt(M3 + mt*4 + 2*e + 1, t+2, t+1)
        A(f"v_xor_b32 {v(M3 + mt*4 + 2*e + 1)}, {v(PH+1)}, {v(M3 + mt*4 + 2*e + 1)}")
if OPT['stag'] == 2: late_x()
aTR, aP, aQe, aQo, aRD, aST = vT[2:8]
sS1 = sT[8:12]
A(f"""
v_bfe_u32 {v(PH)}, {v(vL)}, 2, 2
v_lshrrev_b32 {v(PH+1)}, 5, {v(vL)}
v_lshl_add_u32 {v(PH)}, {v(PH+1)}, 2, {v(PH)}
v_lshlrev_b32 {v(PH)}, 6, {v(PH)}
v_and_b32 {v(PH+2)}, 16, {v(vL)}
v_lshl_add_u32 {v(PH)}, {v(PH+2)}, 1, {v(PH)}
v_and_b32 {v(PH+2)}, 3, {v(vL)}
v_lshl_add_u32 {v(PH)}, {v(PH+2)}, 3, {v(PH)}
v_add_u32 {v(aTR)}, {s(sW12)}, {v(PH)}
s_mul_i32 {s(sT[0])}, {s(sW)}, {PS}
s_add_u32 {s(sT[0])}, {s(sT[0])}, {EXOFF}
v_and_b32 {v(PH+3)}, 31, {v(vL)}
v_mul_u32_u24 {v(PH+4)}, 20, {v(PH+2)}
v_lshrrev_b32 {v(PH+5)}, 2, {v(PH+3)}
v_mul_u32_u24 {v(PH+6)}, 160, {v(PH+1)}
v_add3_u32 {v(PH+4)}, {v(PH+4)}, {v(PH+5)}, {v(PH+6)}
v_lshl_add_u32 {v(aP)}, {v(PH+4)}, 3, {s(sT[0])}
v_sub_u32 {v(PH+3)}, 32, {v(PH+3)}
v_and_b32 {v(PH+4)}, 3, {v(PH+3)}
v_mul_u32_u24 {v(PH+4)}, 20, {v(PH+4)}
v_lshrrev_b32 {v(PH+5)}, 2, {v(PH+3)}
v_sub_u32 {v(PH+6)}, 160, {v(PH+6)}
v_add3_u32 {v(PH+4)}, {v(PH+4)}, {v(PH+5)}, {v(PH+6)}
v_lshl_add_u32 {v(aQe)}, {v(PH+4)}, 3, {s(sT[0])}
v_and_b32 {v(PH+3)}, 32, {v(PH+3)}
v_lshl_add_u32 {v(aQo)}, {v(PH+3)}, 4, {v(aQe)}
s_mul_i32 {s(sT[0])}, {s(sW)}, 640
s_add_u32 {s(sT[0])}, {s(sT[0])}, {EXOFF}
v_mul_u32_u24 {v(PH)}, {2*PS}, {v(g_)}
v_lshl_add_u32 {v(PH)}, {v(c_)}, 3, {v(PH)}
v_add_u32 {v(aRD)}, {s(sT[0])}, {v(PH)}
v_lshlrev_b32 {v(PH)}, 19, {v(g_)}
v_lshl_add_u32 {v(aST)}, {v(c_)}, 4, {v(PH)}
s_lshl_b32 {s(sS1[0])}, {s(sM)}, 22
s_lshl_b32 {s(sT[0])}, {s(sW)}, 15
s_add_u32 {s(sS1[0])}, {s(sS1[0])}, {s(sT[0])}
s_lshl_b32 {s(sT[0])}, {s(sRHO)}, 8
s_add_u32 {s(sS1[0])}, {s(sS1[0])}, {s(sT[0])}
s_add_u32 {s(sS1[1])}, {s(sS1[0])}, {1<<18}
s_add_u32 {s(sS1[2])}, {s(sS1[0])}, {8<<18}
s_add_u32 {s(sS1[3])}, {s(sS1[0])}, {9<<18}
s_mul_i32 {s(sWB)}, {s(sA)}, 1026
s_lshl_b32 {s(sT[0])}, {s(sGRP)}, 7
s_add_u32 {s(sWB)}, {s(sWB)}, {s(sT[0])}
s_andn2_b32 {s(sWB)}, {s(sWB)}, 15
""")
if OPT['stag'] == 3: late_x()
A(f"""
v_add_u32 {v(PH)}, {s(sW)}, {v(vL)}
v_mul_u32_u24 {v(PH+1)}, 57, {v(PH)}
v_lshrrev_b32 {v(PH+1)}, 9, {v(PH+1)}
v_mul_u32_u24 {v(PH+1)}, {16416-144}, {v(PH+1)}
v_lshl_add_u32 {v(aWM)}, {v(PH)}, 4, {v(PH+1)}
v_add_u32 {v(PH)}, 8, {v(vL)}
v_mul_u32_u24 {v(PH+1)}, 57, {v(PH)}
v_lshrrev_b32 {v(PH+1)}, 9, {v(PH+1)}
v_mul_u32_u24 {v(PH+1)}, {16416-144}, {v(PH+1)}
v_lshl_add_u32 {v(aWT)}, {v(PH)}, 4, {v(PH+1)}
v_add_u32 {v(aWT)}, {56*16416}, {v(aWT)}
s_mov_b32 {s(sEXP)}, 0
s_mov_b32 {s(sONE)}, 1
s_and_b32 {s(sT[1])}, {s(sRHO)}, 15
s_cbranch_scc1 L_noinit
s_waitcnt lgkmcnt(0)
s_mul_i32 {s(sTAG)}, {s(sE)}, 0x9E3779B1
s_add_u32 {s(sTAG)}, {s(sTAG)}, 0x7F4A7C15
s_atomic_swap_x2 {s(sEXP,2)}, {s(WS_,2)}, {s(sC2)}
s_and_b32 {s(sT[1])}, {s(sRHO)}, 31
s_cbranch_scc1 L_noinit
s_atomic_swap_x2 {s(sEXP,2)}, {s(WS_,2)}, {s(sC1)}
L_noinit:
""")
NE = OPT['ne']
A(f"""
s_cmp_lg_u32 {s(sW)}, {SPW}
s_cbranch_scc1 L_nogather
buffer_load_ushort v11, {v(aG)}, {srd(WR_)}, {s(sG)} offen offset:1024
buffer_load_ushort v12, {v(aG)}, {srd(WI_)}, {s(sG)} offen offset:1024
L_nogather:
""")
stamp('setup', (4,))
NEB = OPT['neb']
if OPT['stag'] in (2, 3): A("s_barrier")
NTL = 0
if OPT['tlb']:
    NTL = 2
    TLS = OPT['tls']
    L = -(-(WSZ >> TLS) // 256)
    A(f"""
    s_andn2_b32 {s(sT[0])}, s2, 7
    s_add_u32 {s(sT[0])}, {s(sT[0])}, {s(sW)}
    s_lshl_b32 {s(sT[0])}, {s(sT[0])}, {TLS}
    s_and_b32 {s(sT[1])}, s2, 7
    s_lshl_b32 {s(sT[1])}, {s(sT[1])}, 7
    s_add_u32 {s(sT[0])}, {s(sT[0])}, {s(sT[1])}
    v_lshlrev_b32 {v(PH)}, {TLS+8}, {v(vL)}
    v_add_u32 {v(PH)}, {s(sT[0])}, {v(PH)}
    v_mov_b32 {v(PH+1)}, 0
    s_mov_b64 exec, {(1 << L) - 1}
    buffer_atomic_or {v(PH+1)}, {v(PH)}, {srd(WS_)}, 0 offen sc1
    buffer_atomic_or {v(PH+1)}, {v(PH)}, {srd(OUT_)}, 0 offen sc1
    s_mov_b64 exec, -1
    """)
w_base(sW)
for e in range(max(NE, NEB)):
    if e == min(NE, NEB):
        A(f"s_cmp_eq_u32 {s(sM)}, {0 if NE < NEB else 1}")
        A("s_cbranch_scc1 L_noearly")
    w_piece(e)
A.label("L_noearly")
NEA = NE
if OPT['xpf'] == 2:
    NEA = NE + 2
    A(f"""
    s_cmp_lg_u32 {s(sM)}, 0
    s_cbranch_scc1 L_nopf2
    {XPF}
    L_nopf2:
    """)
def wait_m(lbl, add):
    lo, hi = min(NEA, NEB) + NTL, max(NEA, NEB) + NTL
    A(f"s_waitcnt vmcnt({hi+add})")
    if lo != hi:
        A(f"s_cmp_eq_u32 {s(sM)}, {0 if NEA > NEB else 1}")
        A(f"s_cbranch_scc1 {lbl}")
        A(f"s_waitcnt vmcnt({lo+add})")
        A.label(lbl)
stamp("wiss", (4,))
wait_m("L_wm0", 2)
A(f"""
s_cmp_eq_u32 {s(sW)}, {SPW}
s_cbranch_scc1 L_xw1
""")
wait_m("L_wm1", 0)
A.label("L_xw1")
stamp("x", (1, 2, 4))
for comp, dst in ((0, XR), (1, XI)):
    for t in range(2):
        for j in range(2):
            A(f"ds_read_b64_tr_b16 {v(dst+4*t+2*j,2)}, {v(aTR)} offset:{comp*2048+t*1024+j*512}")
A("s_waitcnt lgkmcnt(0)")
stamp("tr", (2, 4))
weave([M32(D1R, XR, FC, None), M32(D1R, XR+4, FC+4, D1R), M32(D1R, XI, FS, D1R), M32(D1R, XI+4, FS+4, D1R), M32(D1I, XR, FN, None)],
      [f"s_mul_i32 {s(sTAG)}, {s(sE)}, 0x9E3779B1", f"s_add_u32 {s(sTAG)}, {s(sTAG)}, 0x7F4A7C15", "s_nop 4", "s_nop 4"], [2, 0, 0, 1, 1])
weave([M32(D1I, XR+4, FN+4, D1I), M32(D1I, XI, FC, D1I), M32(D1I, XI+4, FC+4, D1I)], TW1(D1R, False), [6, 6, 99])
stamp("m1", (2,))
for t_ in TW2(D1I, XR, XI, False, 0, 8): A(t_)
stamp("tw", (2,))
weave([M32(D2R, FC, XR, None), M32(D2I, FN, XR, None), M32(D2R, FS, XI, D2R), M32(D2I, FC, XI, D2I)], TW2(D1I, XR, XI, False, 8, 16), 6)
weave([M32(D2R, FC+4, XR+4, D2R), M32(D2I, FN+4, XR+4, D2I), M32(D2R, FS+4, XI+4, D2R), M32(D2I, FC+4, XI+4, D2I)], [], 0)
stamp("m2", (2,))
for i in range(16):
    cvt(TMP+i, D2R+i, D2I+i)
stamp("cv", (2,))
for i in range(16):
    kd2 = 8*(i >> 2) + (i & 3)
    if i < 8:
        A(f"ds_write_b32 {v(aP)}, {v(TMP+i)} offset:{(80*(kd2>>1)+8*(kd2&1))*8}")
    else:
        e = 31 - kd2 - 4
        A(f"ds_write_b32 {v(aQo if e & 1 else aQe)}, {v(TMP+i)} offset:{(80*(e>>1)+8*(e&1))*8+4}")
A(f"""
s_mov_b64 exec, 1
ds_write_b32 {v(aP)}, {v(TMP)} offset:4
ds_write_b32 {v(aP)}, {v(TMP+8)} offset:{640*8}
s_mov_b64 exec, -1
""")
stamp("wr", (2,))
A("s_waitcnt lgkmcnt(0)")
stamp("wrd", (2,))
A("s_barrier")
stamp("bar1", (1, 2, 4))
A(f"""
s_cmp_lg_u32 {s(sW)}, {SPW}
s_cbranch_scc1 L_nosp1
v_mul_u32_u24 {v(PH)}, {2*PS}, {v(g_)}
ds_read_b64 {v(XR,2)}, {v(PH)} offset:{EXOFF+640*8}
ds_read_b64 {v(XR+2,2)}, {v(PH)} offset:{EXOFF+640*8+PS}
s_lshl_b32 {s(sT[0])}, {s(sM)}, 13
s_lshl_b32 {s(sT[1])}, {s(sRHO)}, 6
s_add_u32 {s(sT[0])}, {s(sT[0])}, {s(sT[1])}
s_add_u32 {s(sT[1])}, {s(sT[0])}, {WX}
s_add_u32 {s(sT[0])}, {s(sT[0])}, {T1X}
v_lshlrev_b32 {v(PH+1)}, 2, {v(vL)}
v_lshlrev_b32 {v(PH+2)}, 4, {v(g_)}
""")
wait_m("L_wm2", 0)
A(f"""
v_lshl_or_b32 v11, v12, 16, v11
s_mov_b64 exec, 0xffff
buffer_store_dword v11, {v(PH+1)}, {srd(WS_)}, {s(sT[1])} offen sc1
s_mov_b64 exec, -1
s_waitcnt lgkmcnt(0)
""")
m16(D1R, M3, XR, None); m16(D1R+4, M3+4, XR, None)
cvt(TMP, D1R, D1R+2); cvt(TMP+1, D1R+4, D1R+6); cvt(TMP+2, D1R+1, D1R+3); cvt(TMP+3, D1R+5, D1R+7)
A(f"""
s_mov_b32 exec_lo, 0x00010001
s_mov_b32 exec_hi, 0x00010001
buffer_store_dwordx4 {v(TMP,4)}, {v(PH+2)}, {srd(WS_)}, {s(sT[0])} offen sc1
s_mov_b64 exec, -1
L_nosp1:
""")
for t in range(4):
    for jj in range(2):
        A(f"ds_read_b64 {v(XR+4*t+2*jj,2)}, {v(aRD)} offset:{160*t+PS*jj}")
for t in range(4):
    A(f"s_waitcnt lgkmcnt({6-2*t})")
    m16(D1R+8*t, M3, XR+4*t, None)
peek(sC1)
for t in range(4):
    m16(D1R+8*t+4, M3+4, XR+4*t, None)
for mt in range(2):
    for al in range(2):
        o = TMP + 4 + (mt*2+al)*4
        d = D1R + 4*mt + 2*al
        cvt(o, d, d+8); cvt(o+2, d+1, d+9); cvt(o+1, d+16, d+24); cvt(o+3, d+17, d+25)
    for al in range(2):
        o = TMP + 4 + (mt*2+al)*4
        A(f"buffer_store_dwordx4 {v(o,4)}, {v(aST)}, {srd(WS_)}, {s(sS1[mt*2+al])} offen sc1")
stamp("st1", (2,))
sPH = sE
A(f"""
s_barrier
""")
A(f"s_mov_b32 {s(sPH)}, 1")
GH = OPT['gh']
if GH:
    A(f"""
    s_cmp_lt_u32 {s(sW)}, 4
    s_cbranch_scc1 L_nogen
    s_sub_u32 {s(sI)}, {s(sW)}, {4 if GH == 2 else 0}
    L_gen:
    """)
    gen_m2(sI)
    if GH == 2:
        A(f"""
        s_add_u32 {s(sI)}, {s(sI)}, 4
        s_cmp_lt_u32 {s(sI)}, 8
        s_cbranch_scc1 L_gen
        """)
    lds_post(12)
    if GH == 1:
        A(f"s_cmp_lt_u32 {s(sW)}, 4")
        A("s_cbranch_scc1 L_genret")
    A.label("L_nogen")
validate("L_val1", sC1)
A(f"""
s_cmp_lg_u32 {s(sW)}, {SPW}
s_cbranch_scc1 L_nosp2
s_waitcnt vmcnt(4)
s_atomic_add {s(sX16)}, {s(WS_,2)}, {s(sC1)}
L_nosp2:
s_waitcnt vmcnt(0)
""")
signal(sC1)
stamp("fl1")
aW, aF, aRe, aIm, aO, aD = vT[2:8]
sFA, sFB, sFC, sDST, sOI, sDONE, sNEW, sMK = sT[4:12]
A(f"""
s_cmp_ge_u32 {s(sW)}, 4
s_cbranch_scc1 L_helper
""")
assert max(NE, NEB) < 5
w_piece(4)
w_base(sW)
for hh in range(2):
    for e in range(3, min(NE, NEB) - 1, -1):
        if e == max(NE, NEB) - 1:
            A(f"s_cmp_eq_u32 {s(sM)}, {1 if NE < NEB else 0}")
            A(f"s_cbranch_scc1 L_nolate{hh}")
        w_piece(e)
    A.label(f"L_nolate{hh}")
    if hh == 0:
        A(f"""
        v_add_u32 {v(PH)}, {s(sW)}, {v(vL)}
        v_add_u32 {v(PH)}, 4, {v(PH)}
        v_mul_u32_u24 {v(PH+1)}, 57, {v(PH)}
        v_lshrrev_b32 {v(PH+1)}, 9, {v(PH+1)}
        v_mul_u32_u24 {v(PH+1)}, {16416-144}, {v(PH+1)}
        v_lshl_add_u32 {v(aWM)}, {v(PH)}, 4, {v(PH+1)}
        s_add_u32 {s(sT[12])}, {s(sT[12])}, {28*16416}
        s_add_u32 {s(sT[13])}, {s(sT[13])}, 4096
        """)
if GH == 1:
    A(f"s_mov_b32 {s(sI)}, {s(sW)}")
    A("s_branch L_gen")
    A.label("L_genret")
if GH == 0:
    A(f"s_mov_b32 {s(sI)}, {s(sW)}")
    A.label("L_gen")
    gen_m2(sI)
    A(f"""
    s_add_u32 {s(sI)}, {s(sI)}, 4
    s_cmp_lt_u32 {s(sI)}, 8
    s_cbranch_scc1 L_gen
    """)
    lds_post(12)
A(f"""
s_mov_b32 {s(sFA)}, 0
s_and_b32 {s(sFC)}, {s(sA)}, 7
s_mov_b32 {s(sFB)}, 0
s_mul_i32 {s(sOI)}, {s(sW)}, {OS}
s_add_u32 {s(sOI)}, {s(sOI)}, {WOFF}
v_lshrrev_b32 {v(aRe)}, 2, {v(vL)}
v_and_b32 {v(aF)}, 3, {v(aRe)}
v_xor_b32 {v(aF)}, {s(sW)}, {v(aF)}
v_lshlrev_b32 {v(aRe)}, 8, {v(aRe)}
v_lshl_add_u32 {v(aRe)}, {v(aF)}, 6, {v(aRe)}
v_and_b32 {v(aF)}, 3, {v(vL)}
v_lshl_add_u32 {v(aRe)}, {v(aF)}, 4, {v(aRe)}
s_lshl_b32 {s(sT[0])}, {s(sW)}, 5
s_add_u32 {s(sT[0])}, {s(sT[0])}, {WOFF}
v_min_u32 {v(aW)}, 2, {v(g_)}
v_mul_u32_u24 {v(aF)}, 144, {v(c_)}
v_lshl_add_u32 {v(aW)}, {v(aW)}, 4, {v(aF)}
v_add_u32 {v(aW)}, {s(sT[0])}, {v(aW)}
""")
A.label("L_p2common")
A(f"v_lshlrev_b32 {v(aF)}, 4, {v(vL)}")
A(f"v_add_u32 {v(aF)}, {M2OFF}, {v(aF)}")
SEL = DNR
A(f"""
v_lshlrev_b32 {v(DIM)}, {s(sFA)}, {v(c_)}
v_lshlrev_b32 {v(DIM+1)}, 3, {v(g_)}
v_sub_u32 {v(DIM)}, {v(DIM)}, {v(DIM+1)}
v_add_u32 {v(DIM)}, {s(sFC)}, {v(DIM)}
v_add_u32 {v(DIM+1)}, {s(sFB)}, {v(DIM)}
v_mov_b32 {v(DIM+4)}, 0x3500
""")
for q in range(2):
    A(f"v_and_b32 {v(DIM+2)}, 1, {v(DIM+q)}")
    A(f"v_lshlrev_b32 {v(DIM+2)}, 4, {v(DIM+2)}")
    A(f"v_lshlrev_b32 {v(DIM+2)}, {v(DIM+2)}, {v(DIM+4)}")
    A(f"v_ashrrev_i32 {v(DIM+3)}, 1, {v(DIM+q)}")
    for j in range(4):
        A(f"v_cmp_eq_u32 vcc, {j}, {v(DIM+3)}")
        A(f"v_cndmask_b32 {v(SEL+4*q+j)}, 0, {v(DIM+2)}, vcc")
A(f"""
v_and_b32 {v(aIm)}, 1, {v(g_)}
v_lshl_add_u32 {v(aRe)}, {v(aIm)}, 3, {v(aRe)}
v_xor_b32 {v(aIm)}, 8, {v(aRe)}
v_bfe_u32 {v(aO)}, {v(vL)}, 1, 2
v_xor_b32 {v(aO)}, {v(aO)}, {v(g_)}
v_lshlrev_b32 {v(aO)}, 4, {v(aO)}
v_lshl_add_u32 {v(aO)}, {v(c_)}, 6, {v(aO)}
v_add_u32 {v(aO)}, {s(sOI)}, {v(aO)}
v_mov_b32 {v(vT[9])}, 1
s_mov_b32 {s(sT[0])}, 0x80008000
s_mov_b32 {s(sDONE)}, 0
""")
if OPT['gpos'] == 1: lds_wait("L_fr", 12, 8 if GH == 1 else 4)
for f in range(16):
    A(f"ds_read_b128 {v(FR+4*f,4)}, {v(aF)} offset:{f*1024}")
A(f"""
s_waitcnt vmcnt(0)
s_cmp_lt_u32 {s(sW)}, 4
s_cbranch_scc1 L_wreg
""")
for t in range(8):
    m16(WRF+4*t, ER+4*t, SEL, None); m16(WIF+4*t, ER+4*t, SEL+4, None)
A(f"s_movk_i32 {s(sMK)}, 0xff")
A("s_branch L_dspx")
A.label("L_wreg")
lds_post(0)

lds_wait("L_wr", 0, 8)
for t in range(16):
    if t == 12: A("s_waitcnt lgkmcnt(8)")
    A(f"ds_read_b128 {v(ER+4*t,4)}, {v(aW)} offset:{t*2304}")
A(f"s_lshl_b32 {s(sMK)}, 16, {s(sW)}")
lds_bit(4, sMK)
for t in range(16):
    if t >= 4: A(f"s_waitcnt lgkmcnt({16-t})")
    m16(WRF+4*t, ER+4*t, SEL, None)
stamp("wcv", (1,))
A(f"""
s_mov_b32 {s(sCNT)}, 0x40000
L_dsp:
ds_read_b32 {v(vS1)}, {v(vSY)} offset:4
s_sub_u32 {s(sCNT)}, {s(sCNT)}, 1
s_cbranch_scc1 L_fwd_done
s_waitcnt lgkmcnt(0)
v_readfirstlane_b32 {s(sMK)}, {v(vS1)}
L_dspx:
s_andn2_b32 {s(sNEW)}, {s(sMK)}, {s(sDONE)}
s_cbranch_scc0 L_dsp
""")
stamp("dat1", (1, 3))
for u in range(4):
    A(f"s_bitcmp1_b32 {s(sNEW)}, {u}")
    A(f"s_cbranch_scc0 L_nr{u}")
    for j in range(2): A(f"ds_read_b64_tr_b16 {v(DRE+4*u+2*j,2)}, {v(aRe)} offset:{u*8192+j*4096}")
    for j in range(2): A(f"ds_read_b64_tr_b16 {v(DIM+4*u+2*j,2)}, {v(aIm)} offset:{u*8192+j*4096}")
    A.label(f"L_nr{u}")
A(f"s_or_b32 {s(sDONE)}, {s(sDONE)}, {s(sNEW)}")
A("s_waitcnt lgkmcnt(0)")
for u in range(4):
    A(f"s_bitcmp1_b32 {s(sNEW)}, {u}")
    A(f"s_cbranch_scc0 L_nm{u}")
    fc = lambda mt: FR + (u*4 + mt*2) * 4
    fs = lambda mt: FR + (u*4 + mt*2 + 1) * 4
    e = lambda mt: (u*2 + mt) * 4
    weave([M16(ER+e(0), fc(0), DRE+4*u, None), M16(ER+e(1), fc(1), DRE+4*u, None),
           M16(EI+e(0), fc(0), DIM+4*u, None), M16(EI+e(1), fc(1), DIM+4*u, None),
           M16(ER+e(0), fs(0), DIM+4*u, ER+e(0)), M16(ER+e(1), fs(1), DIM+4*u, ER+e(1)),
           M16(EI+e(0), fs(0), DNR+4*u, EI+e(0)), M16(EI+e(1), fs(1), DNR+4*u, EI+e(1))],
          [f"v_xor_b32 {v(DNR+4*u+j)}, {s(sT[0])}, {v(DRE+4*u+j)}" for j in range(4)], 2)
    for f in range(4*u, 4*u+4): A(f"ds_read_b128 {v(FR+4*f,4)}, {v(aF)} offset:{16384+f*1024}")
    A.label(f"L_nm{u}")
A(f"""
s_cmp_lg_u32 {s(sDONE)}, 0xff
s_cbranch_scc1 L_dsp
L_fwd_done:
""")
stamp("fwd", (3,))
A("s_nop 1")
TT = DNR
def pk(op, d, a, b, c=None, na=False, nb=False):
    ops = f"{v(d,2)}, {v(a,2)}, {v(b,2)}" + (f", {v(c,2)}" if c is not None else "")
    n = [int(na), int(nb)] + ([0] if c is not None else [])
    mod = f" neg_lo:{n} neg_hi:{n}".replace(", ", ",") if (na or nb) else ""
    A(f"v_pk_{op}_f32 {ops}{mod}")
add = lambda d, a, b: pk("add", d, a, b)
sub = lambda d, a, b: pk("add", d, a, b, nb=True)
A.raw(".p2align 3")
for mt in range(2):
    for rp in range(2):
        er = lambda u: ER + (u*2+mt)*4 + 2*rp
        ei = lambda u: EI + (u*2+mt)*4 + 2*rp
        wr = lambda q: WRF + (q*2+mt)*4 + 2*rp
        wi = lambda q: WIF + (q*2+mt)*4 + 2*rp
        tr = lambda i: TT + 4*i
        ti = lambda i: TT + 4*i + 2
        add(tr(0), er(0), er(2)); add(ti(0), ei(0), ei(2)); sub(tr(1), er(0), er(2)); sub(ti(1), ei(0), ei(2))
        add(tr(2), er(1), er(3)); add(ti(2), ei(1), ei(3)); sub(tr(3), er(1), er(3)); sub(ti(3), ei(1), ei(3))
        add(er(0), tr(0), tr(2)); add(ei(0), ti(0), ti(2)); sub(er(2), tr(0), tr(2)); sub(ei(2), ti(0), ti(2))
        add(er(1), tr(1), ti(3)); sub(ei(1), ti(1), tr(3)); sub(er(3), tr(1), ti(3)); add(ei(3), ti(1), tr(3))
        for q in range(4):
            pk("mul", tr(q), er(q), wr(q)); pk("mul", ti(q), er(q), wi(q))
        for q in range(4):
            pk("fma", tr(q), ei(q), wi(q), tr(q), na=True); pk("fma", ti(q), ei(q), wr(q), ti(q))
        add(wr(0), tr(0), tr(2)); add(wi(0), ti(0), ti(2)); sub(wr(1), tr(0), tr(2)); sub(wi(1), ti(0), ti(2))
        add(wr(2), tr(1), tr(3)); add(wi(2), ti(1), ti(3)); sub(wr(3), tr(1), tr(3)); sub(wi(3), ti(1), ti(3))
        add(er(0), wr(0), wr(2)); add(ei(0), wi(0), wi(2)); sub(er(2), wr(0), wr(2)); sub(ei(2), wi(0), wi(2))
        sub(er(1), wr(1), wi(3)); add(ei(1), wi(1), wr(3)); add(er(3), wr(1), wi(3)); sub(ei(3), wi(1), wr(3))
def OPS(u):
    L = [CVT(DRE+4*u+j, ER+8*u+2*j, ER+8*u+2*j+1) for j in range(4)]
    L += [CVT(DIM+4*u+j, EI+8*u+2*j, EI+8*u+2*j+1) for j in range(4)]
    L += [CVT(DNR+4*u+j, EI+8*u+2*j, EI+8*u+2*j+1, True, True) for j in range(4)]
    return L
def INV(k):
    e = k*4; o = WRF + e
    return [CVT(o, ER+e, ER+e+1), CVT(o+1, ER+e+2, ER+e+3), CVT(o+2, EI+e, EI+e+1), CVT(o+3, EI+e+2, EI+e+3),
            f"ds_write_b128 {v(aO)}, {v(o,4)} offset:{k*1024}", f"ds_add_u32 {v(vPG)}, {v(vT[9])}"]
for t_ in OPS(0): A(t_)
A("s_waitcnt lgkmcnt(0)")
stamp("mid", (3,))
for k in range(8):
    u, nt = k >> 1, k & 1
    fc, fs, e = FR + (u*4 + nt*2) * 4, FR + (u*4 + nt*2 + 1) * 4, k * 4
    ops = OPS(u+1)[6*nt:6*nt+6] if u < 3 else []
    out = INV(k-1) if k >= 1 else []
    fill = ops + out
    weave([M16(ER+e, DRE+4*u, fc, None), M16(EI+e, DIM+4*u, fc, None), M16(ER+e, DNR+4*u, fs, ER+e), M16(EI+e, DRE+4*u, fs, EI+e)],
          fill, [3, 3, 2, 4] if ops and out else ([2, 2, 2, 0] if ops else [0, 0, 0, 6]))
stamp("inv", (3,))
for t_ in INV(7): A(t_)
stamp("cmp2", (1, 3))
A(f"""
s_cmp_lt_u32 {s(sW)}, 4
s_cbranch_scc1 L_setup3
""")
A(f"""
v_lshlrev_b32 {v(aO)}, 7, {v(c_)}
v_lshl_add_u32 {v(aO)}, {v(g_)}, 4, {v(aO)}
""")
for i in range(8): A(f"v_mov_b32 {v(WIF+2*i+1)}, {s(sTAG)}")
for k in range(8):
    o = WIF + 8*(k & 1)
    for e in range(4): cvt(o+2*e, ER+4*k+e, EI+4*k+e)
    for h in range(2): A(f"buffer_store_dwordx4 {v(o+4*h,4)}, {v(aO)}, {srd(WS_)}, {s(sDST)} offen offset:{(k&1)*2048+h*64} sc1")
    if k & 1: A(f"s_add_u32 {s(sDST)}, {s(sDST)}, 4096")
A(f"""
s_setprio 0
s_branch L_setup3
L_helper:
""")
lds_post(0)
sSRC, sPL, sSG, sBIT = sT[4:8]
A(f"""
s_lshl_b32 {s(sT[0])}, {s(sM)}, 4
s_add_u32 {s(sSRC)}, {s(sT[0])}, {s(sA)}
s_lshl3_add_u32 {s(sSRC)}, {s(sSRC)}, {s(sGRP)}
s_sub_u32 {s(sT[1])}, {s(sW)}, 4
s_lshl2_add_u32 {s(sSRC)}, {s(sSRC)}, {s(sT[1])}
s_lshl_b32 {s(sSRC)}, {s(sSRC)}, 13
s_add_u32 {s(sPL)}, {s(sT[0])}, {s(sGRP)}
s_lshl2_add_u32 {s(sPL)}, {s(sPL)}, {s(sT[1])}
s_mul_i32 {s(sPL)}, {s(sPL)}, {CP}
s_add_u32 {s(sPL)}, {s(sPL)}, {C1}
s_cmp_eq_u32 {s(sGRP)}, {SPW}
s_cselect_b32 {s(sSG)}, 0x200020, 32
s_lshl_b32 m0, {s(sT[1])}, 13
s_lshl_b32 {s(sBIT)}, 1, {s(sT[1])}
v_lshlrev_b32 {v(aD)}, 2, {v(g_)}
v_xor_b32 {v(aD)}, {v(aD)}, {v(c_)}
v_lshlrev_b32 {v(aD)}, 4, {v(aD)}
v_lshl_add_u32 {v(aD)}, {v(g_)}, 8, {v(aD)}
""")
poll("L_poll1", sPL, s(sSG), OPT['sl1'])
stamp("pol1")
for n in range(8):
    A(f"buffer_load_dwordx4 {v(aD)}, {srd(WS_)}, {s(sSRC)} offen offset:{(n&3)*1024} sc1 lds")
    if n == 3:
        A(f"s_add_u32 m0, m0, 4096")
        A(f"s_add_u32 {s(sSRC)}, {s(sSRC)}, 4096")
XP = [WR_, WR_+2, WI_, WI_+2]
A(f"""
s_cmp_lg_u32 {s(sW)}, 4
s_cbranch_scc1 L_posted
s_sub_u32 {s(sT[3])}, s2, {HOST}
s_cmp_ge_u32 {s(sT[3])}, 2
s_cbranch_scc1 L_posted
s_cmp_eq_u32 {s(sT[3])}, 0
s_cbranch_scc1 L_xa
s_waitcnt vmcnt(0)
""")
lds_bit(4, sONE)
A(f"""
L_xa:
s_mul_i32 {s(sT[2])}, {s(sT[3])}, {64*CP}
s_add_u32 {s(sT[2])}, {s(sT[2])}, {C1+SPW*4*CP}
s_mov_b32 {s(sCNT)}, 0x8000
L_pollx:
""")
for i in range(4):
    A(f"s_mov_b64 {s(XP[i],2)}, 0")
    A(f"s_atomic_or_x2 {s(XP[i],2)}, {s(WS_,2)}, {s(sT[2])} offset:{i*CP} glc")
A(f"""
s_sub_u32 {s(sCNT)}, {s(sCNT)}, 1
s_cbranch_scc1 L_pollx_out
s_waitcnt lgkmcnt(0)
""")
for i in range(4):
    A(f"s_cmp_lg_u32 {s(XP[i]+1)}, {s(sTAG)}")
    A("s_cbranch_scc1 L_pollx")
A(f"""
s_and_b32 {s(XP[0])}, {s(XP[0])}, {s(XP[1])}
s_and_b32 {s(XP[2])}, {s(XP[2])}, {s(XP[3])}
s_and_b32 {s(XP[0])}, {s(XP[0])}, {s(XP[2])}
s_bitcmp1_b32 {s(XP[0])}, 21
s_cbranch_scc0 L_pollx
L_pollx_out:
""")
if OPT['xprio']: A("s_setprio 3")
A(f"""
s_mov_b32 {s(sFA)}, 1
s_mov_b32 {s(sFC)}, 0
s_mov_b32 {s(sFB)}, 1
s_lshl_b32 {s(sT[2])}, {s(sT[3])}, 13
s_add_u32 {s(sT[0])}, {s(sT[2])}, {WX}
s_add_u32 {s(sT[1])}, {s(sT[0])}, 4096
s_lshl_b32 {s(sDST)}, {s(sT[3])}, 14
s_add_u32 {s(sDST)}, {s(sDST)}, {T2X}
s_add_u32 {s(sT[2])}, {s(sT[2])}, {T1X}
v_lshlrev_b32 {v(aD)}, 4, {v(vL)}
v_lshlrev_b32 {v(aW)}, 6, {v(c_)}
v_lshl_add_u32 {v(aW)}, {v(g_)}, 4, {v(aW)}
s_mov_b32 {s(sOI)}, {XOUT}
v_add_u32 {v(aRe)}, {EXOFF}, {v(aD)}
s_mov_b32 m0, {EXOFF}
""")
for n in range(8):
    A(f"buffer_load_dwordx4 {v(aD)}, {srd(WS_)}, {s(sT[2])} offen sc1 lds")
    if n < 7:
        A(f"s_add_u32 m0, m0, 4096")
        A(f"s_add_u32 {s(sT[2])}, {s(sT[2])}, 1024")
for t in range(8):
    A(f"buffer_load_dwordx4 {v(ER+4*t,4)}, {v(aW)}, {srd(WS_)}, {s(sT[t>>2])} offen offset:{(t&3)*1024} sc1")
A("s_waitcnt vmcnt(16)")
lds_bit(4, sONE)
A("s_branch L_p2common")
A.label("L_posted")
A(f"""
s_cmp_lt_u32 {s(sW)}, {8-NST}
s_cselect_b32 {s(sPH)}, 1, 0
s_waitcnt vmcnt(0)
""")
lds_bit(4, sBIT)
A.label("L_setup3")
A3 = 237
aD3, aPw, aQ1, aQ0, aRd3, aSo, aQp = range(A3, A3+7)
aT = list(range(A3+9, A3+13))
sMR, sS3 = sT[2], sT[3]
A(f"""
v_lshrrev_b32 {v(PH)}, 1, {v(vL)}
v_xor_b32 {v(PH)}, {v(PH)}, {v(vL)}
v_and_b32 {v(PH)}, 4, {v(PH)}
v_mul_u32_u24 {v(PH)}, 3, {v(PH)}
v_xor_b32 {v(PH)}, {v(PH)}, {v(vL)}
v_lshlrev_b32 {v(vS1)}, 4, {v(PH)}
v_add_u32 {v(vS1)}, {T1OFF}, {v(vS1)}
v_and_b32 {v(aSo)}, 15, {v(PH)}
v_lshlrev_b32 {v(aSo)}, 6, {v(aSo)}
v_and_b32 {v(PH)}, 1, {v(g_)}
v_lshl_add_u32 {v(aSo)}, {v(PH)}, 5, {v(aSo)}
v_lshrrev_b32 {v(PH)}, 1, {v(g_)}
v_lshl_add_u32 {v(aSo)}, {v(PH)}, 4, {v(aSo)}
""")
load_tables(vS1)
A(f"""
v_lshrrev_b32 {v(PH)}, 2, {v(c_)}
v_lshl_add_u32 {v(PH)}, {v(PH)}, 7, {s(sSB)}
v_cvt_f32_u32 {v(PH)}, {v(PH)}
v_mul_f32 {v(PH)}, {fbits(1/2048)}, {v(PH)}
v_add_f32 {v(PH+1)}, {fbits(0.25)}, {v(PH)}
v_and_b32 {v(PH+2)}, 1, {v(c_)}
v_cvt_f32_u32 {v(PH+2)}, {v(PH+2)}
v_mul_f32 {v(PH+2)}, {fbits(-0.25)}, {v(PH+2)}
v_add_f32 {v(PH+3)}, {fbits(-0.125)}, {v(PH+2)}
v_add_f32 {v(PH+2)}, {fbits(0.125)}, {v(PH+2)}
v_and_b32 {v(PH+4)}, 2, {v(c_)}
v_lshlrev_b32 {v(PH+4)}, 30, {v(PH+4)}
v_xor_b32 {v(PH+2)}, {v(PH+4)}, {v(PH+2)}
v_xor_b32 {v(PH+3)}, {v(PH+4)}, {v(PH+3)}
v_lshlrev_b32 {v(PH+4)}, 1, {v(g_)}
v_cvt_f32_u32 {v(PH+4)}, {v(PH+4)}
v_add_f32 {v(PH+5)}, 1.0, {v(PH+4)}
v_add_f32 {v(PH+6)}, {fbits(8.0)}, {v(PH+4)}
v_add_f32 {v(PH+7)}, {fbits(9.0)}, {v(PH+4)}
""")
for mt in range(2):
    for j in range(4):
        t = TMP + (mt*4+j)*3
        A(f"v_fma_f32 {v(t)}, {v(PH+mt)}, {v(PH+4+j)}, {v(PH+2+(j&1))}")
        A(f"v_cos_f32 {v(t+1)}, {v(t)}")
        A(f"v_sin_f32 {v(t+2)}, {v(t)}")
for mt in range(2):
    for j in range(4):
        t = TMP + (mt*4+j)*3
        cvt(M3+mt*4+j, t+1, t+2, False, True)
A(f"""
v_lshrrev_b32 {v(PH)}, 3, {v(vL)}
v_and_b32 {v(PH+1)}, 3, {v(PH)}
v_lshlrev_b32 {v(PH+1)}, 6, {v(PH+1)}
v_lshl_add_u32 {v(PH)}, {v(PH)}, 8, {v(PH+1)}
v_and_b32 {v(PH+1)}, 3, {v(vL)}
v_lshl_add_u32 {v(PH)}, {v(PH+1)}, 4, {v(PH)}
v_and_b32 {v(PH+1)}, 4, {v(vL)}
v_lshl_add_u32 {v(PH)}, {v(PH+1)}, 1, {v(PH)}
v_add_u32 {v(aT[0])}, {s(sW12)}, {v(PH)}
v_xor_b32 {v(aT[1])}, 64, {v(aT[0])}
v_xor_b32 {v(aT[2])}, 128, {v(aT[0])}
v_xor_b32 {v(aT[3])}, 192, {v(aT[0])}
v_mul_u32_u24 {v(PH)}, {PS2}, {v(g_)}
s_lshl_b32 {s(sT[0])}, {s(sW)}, 8
s_add_u32 {s(sT[1])}, {s(sT[0])}, {EX2}
s_sub_u32 {s(sT[0])}, {EX2+15*256}, {s(sT[0])}
v_lshl_add_u32 {v(aPw)}, {v(c_)}, 3, {v(PH)}
v_add_u32 {v(aPw)}, {s(sT[1])}, {v(aPw)}
v_sub_u32 {v(PH+1)}, 16, {v(c_)}
v_lshl_add_u32 {v(PH+1)}, {v(PH+1)}, 3, {v(PH)}
v_add_u32 {v(aQp)}, {s(sT[0])}, {v(PH+1)}
v_cmp_eq_u32 vcc, 0, {v(c_)}
v_mov_b32 {v(PH+2)}, 128
v_mov_b32 {v(PH+3)}, 132
v_mov_b32 {v(PH+4)}, -124
v_cndmask_b32 {v(PH+4)}, {v(PH+2)}, {v(PH+4)}, vcc
v_cndmask_b32 {v(PH+3)}, {v(PH+3)}, {v(PH+2)}, vcc
v_add_u32 {v(aQ1)}, {v(aQp)}, {v(PH+4)}
v_add_u32 {v(aQ0)}, {v(aQp)}, {v(PH+3)}
s_mul_i32 {s(sT[0])}, {s(sW)}, {PS2}
s_add_u32 {s(sT[0])}, {s(sT[0])}, {EX2}
v_and_b32 {v(PH+1)}, 31, {v(vL)}
v_lshrrev_b32 {v(PH+2)}, 5, {v(vL)}
v_lshlrev_b32 {v(PH+3)}, 9, {v(PH+2)}
v_lshl_add_u32 {v(PH+3)}, {v(PH+1)}, 3, {v(PH+3)}
v_add_u32 {v(aRd3)}, {s(sT[0])}, {v(PH+3)}
s_lshl_b32 {s(sO[0])}, {s(sW)}, 7
s_add_u32 {s(sO[0])}, {s(sO[0])}, {s(sSB)}
s_lshl_b32 {s(sO[0])}, {s(sO[0])}, 12
s_lshl_b32 {s(sO[1])}, {s(sM)}, 11
s_add_u32 {s(sO[0])}, {s(sO[0])}, {s(sO[1])}
s_add_u32 {s(sO[1])}, {s(sO[0])}, {1024*4096}
s_mov_b32 {s(sPM)}, 0x05040100
s_mov_b32 {s(sPM+1)}, 0x07060302
""")
A(f"""
v_lshlrev_b32 {v(PH)}, 2, {v(g_)}
v_xor_b32 {v(PH)}, {v(PH)}, {v(c_)}
v_lshlrev_b32 {v(PH)}, 4, {v(PH)}
v_lshl_add_u32 {v(aD3)}, {v(g_)}, 8, {v(PH)}
s_lshl_b32 {s(sMR)}, {s(sM)}, 7
s_add_u32 {s(sMR)}, {s(sMR)}, {s(sRHO)}
s_lshl_b32 {s(sS3)}, {s(sMR)}, 15
s_add_u32 {s(sS3)}, {s(sS3)}, {s(sW12)}
s_add_u32 {s(sS3)}, {s(sS3)}, {T2}
s_cmp_lg_u32 {s(sPH)}, 0
s_cbranch_scc1 L_nosig2
""")
aR0, aR1, aS2, aPr = vT[2], vT[3], vT[4], vT[5]
sD = sT[4:5]
A(f"""
v_bfe_u32 {v(aR0)}, {v(vL)}, 2, 2
v_mul_u32_u24 {v(aR0)}, {OS}, {v(aR0)}
v_lshl_add_u32 {v(aR0)}, {v(g_)}, 6, {v(aR0)}
v_and_b32 {v(aR1)}, 3, {v(vL)}
v_mul_u32_u24 {v(aPr)}, 260, {v(aR1)}
v_add_u32 {v(aPr)}, {PGOFF}, {v(aPr)}
v_lshrrev_b32 {v(aS2)}, 5, {v(vL)}
v_xor_b32 {v(aR1)}, {v(aR1)}, {v(aS2)}
v_lshl_add_u32 {v(aR0)}, {v(aR1)}, 4, {v(aR0)}
s_sub_u32 {s(sT[8])}, 7, {s(sW)}
s_lshl_b32 {s(sT[0])}, {s(sT[8])}, 10
s_add_u32 {s(sT[0])}, {s(sT[0])}, {WOFF}
v_add_u32 {v(aR0)}, {s(sT[0])}, {v(aR0)}
v_xor_b32 {v(aR1)}, 32, {v(aR0)}
v_lshlrev_b32 {v(aS2)}, 15, {v(g_)}
v_lshl_add_u32 {v(aS2)}, {v(c_)}, 4, {v(aS2)}
s_lshl_b32 {s(sD[0])}, {s(sM)}, 22
s_lshl_b32 {s(sT[0])}, {s(sT[8])}, 19
s_add_u32 {s(sD[0])}, {s(sD[0])}, {s(sT[0])}
s_lshl_b32 {s(sT[0])}, {s(sGRP)}, 12
s_add_u32 {s(sD[0])}, {s(sD[0])}, {s(sT[0])}
s_lshl_b32 {s(sT[0])}, {s(sA)}, 8
s_add_u32 {s(sD[0])}, {s(sD[0])}, {s(sT[0])}
s_add_u32 {s(sD[0])}, {s(sD[0])}, {T2}
s_add_u32 {s(sT[0])}, {s(sM8)}, {s(sGRP)}
s_lshl_b32 {s(sT[0])}, {s(sT[0])}, 3
s_add_u32 {s(sT[0])}, {s(sT[0])}, {s(sT[8])}
s_mul_i32 {s(sT[0])}, {s(sT[0])}, {CP}
s_add_u32 {s(sT[0])}, {s(sT[0])}, {C2}
""")
NR = -(-8 // NST)
for i in range(NR):
    if NST*i + NST > 8:
        A(f"s_cmp_ge_u32 {s(sT[8])}, 8")
        A("s_cbranch_scc1 L_short")
    A(f"""
    s_mov_b32 {s(sCNT)}, 0x40000
    L_pg{i}:
    ds_read_b32 {v(vS1)}, {v(aPr)}
    s_sub_u32 {s(sCNT)}, {s(sCNT)}, 1
    s_cbranch_scc1 L_pg{i}_out
    {('s_sleep %d' % OPT['slp']) if i == 0 and OPT['slp'] else ''}
    s_waitcnt lgkmcnt(0)
    v_cmp_ge_u32 vcc, {s(sT[8])}, {v(vS1)}
    s_and_b64 vcc, vcc, vcc
    s_cbranch_scc1 L_pg{i}
    L_pg{i}_out:
    """)
    d = D1R + 16*i
    for j in range(4): A(f"ds_read_b128 {v(d+4*j,4)}, {v(aR1 if j & 1 else aR0)} offset:{i*NST*1024+j*256}")
    A(f"s_add_u32 {s(sT[8])}, {s(sT[8])}, {NST}")
    for j in range(4):
        A(f"s_waitcnt lgkmcnt({3-j})")
        A(f"buffer_store_dwordx4 {v(d+4*j,4)}, {v(aS2)}, {srd(WS_)}, {s(sD[0])} offen sc1")
        A(f"s_add_u32 {s(sD[0])}, {s(sD[0])}, {(4 if j < 3 else 16*NST-12) << 15}")
for i in range(NR):
    A(f"s_waitcnt vmcnt({4*(NR-1-i)})")
    signal(sT[0], NST*i*CP)
if 8 % NST:
    A("s_branch L_nosig2")
    A.label("L_short")
    for i in range(NR-1):
        A(f"s_waitcnt vmcnt({4*(NR-2-i)})")
        signal(sT[0], NST*i*CP)
A.label("L_nosig2")
stamp("fl2")
A("s_barrier")
A(f"s_mov_b32 m0, {s(sW12)}")
poll("L_poll2", sC2, 16, OPT['sl2'])
stamp("pol2")
for j in range(4):
    A(f"buffer_load_dwordx4 {v(aD3)}, {srd(WS_)}, {s(sS3)} offen offset:{j*1024} sc1 lds")
A(f"""
s_cmp_lg_u32 {s(sW)}, 4
s_cbranch_scc1 L_noep
s_cmp_lg_u32 s2, {HOST+1}
s_cbranch_scc1 L_noep
s_mov_b32 {s(sT[4])}, {EW}
s_atomic_swap {s(sTAG)}, {s(WS_,2)}, {s(sT[4])}
s_waitcnt lgkmcnt(0)
L_noep:
""")
GB = [(8, 8), (40, 8), (88, 8), (16, 4), (28, 4)]
GS = [r + i for r, n in GB for i in range(n)]
def granule_loads():
    off = 0
    for r, n in GB:
        A(f"s_load_dwordx{n} {s(r,n)}, {s(WS_,2)}, {s(sT[4])} offset:{off} glc"); off += 4*n
A(f"""
s_cmp_lg_u32 {s(sW)}, 0
s_cbranch_scc1 L_nosp3a
s_lshl_b32 {s(sT[4])}, {s(sMR)}, 7
s_add_u32 {s(sT[4])}, {s(sT[4])}, {T2X}
""")
granule_loads()
A.label("L_nosp3a")
for i in range(16):
    A(f"v_perm_b32 {v(GR+i)}, {v(FN+i//2)}, {v(FC+i//2)}, {s(sPM+(i&1))}")
    A(f"v_perm_b32 {v(GI+i)}, {v(FC+i//2)}, {v(FS+i//2)}, {s(sPM+(i&1))}")
A(f"""
s_cmp_lg_u32 {s(sW)}, 0
s_cbranch_scc1 L_nosp3b
s_mov_b32 {s(sCNT)}, 0x8000
s_branch L_gchk
L_gagain:
s_sub_u32 {s(sCNT)}, {s(sCNT)}, 1
s_cbranch_scc1 L_gok
""")
granule_loads()
A.label("L_gchk")
A("s_waitcnt lgkmcnt(0)")
for i in range(16):
    A(f"s_cmp_lg_u32 {s(GS[2*i+1])}, {s(sTAG)}")
    A("s_cbranch_scc1 L_gagain")
A.label("L_gok")
for h in range(2):
    for g in range(4):
        for q in range(2):
            A(f"v_writelane_b32 {v(TMP+4+2*h+q)}, {s(GS[h*16+g*4+2*q])}, {16*g}")
m16(D2R, M3, TMP+4, None); m16(D2R+4, M3+4, TMP+4, None)
A.label("L_nosp3b")
A("s_waitcnt vmcnt(0)")
stamp("dat2", (1, 3))
for t in (0, 2, 1, 3):
    for jj in range(2):
        A(f"ds_read_b64_tr_b16 {v(XR+4*t+2*jj,2)}, {v(aT[t])} offset:{jj*2048}")
for i, t in enumerate((0, 2, 1, 3)):
    A(f"s_waitcnt lgkmcnt({6-2*i})")
    m16(D1R+8*t, M3, XR+4*t, None); m16(D1R+8*t+4, M3+4, XR+4*t, None)
A(f"""
s_cmp_lg_u32 {s(sW)}, 0
s_cbranch_scc1 L_nofix
s_mov_b32 exec_lo, 0x00010001
s_mov_b32 exec_hi, 0x00010001
""")
for d in (D2R, D1R):
    for mt in range(2):
        for i in range(2):
            A(f"v_add_f32 {v(d+4*mt+i)}, {v(d+4*mt+i)}, {v(d+4*mt+2+i)}")
            A(f"v_mul_f32 {v(d+4*mt+i)}, 0.5, {v(d+4*mt+i)}")
cvt(TMP, D2R, D2R+1); cvt(TMP+1, D2R+4, D2R+5)
A(f"""
ds_write_b32 {v(aPw)}, {v(TMP)} offset:{8*256}
ds_write_b32 {v(aPw)}, {v(TMP+1)} offset:{8*256+4*PS2}
s_mov_b64 exec, -1
L_nofix:
s_nop 1
""")
for tp in range(2):
    for mt in range(2):
        d0 = D1R + 8*tp + 4*mt; d1 = d0 + 16
        o = TMP + 8 + (tp*2+mt)*4
        cvt(o, d0, d0+1); cvt(o+1, d1, d1+1); cvt(o+2, d1+2, d1+3); cvt(o+3, d0+2, d0+3)
for tp in range(2):
    for mt in range(2):
        o = TMP + 8 + (tp*2+mt)*4
        A(f"ds_write_b64 {v(aPw)}, {v(o,2)} offset:{mt*4*PS2+tp*128}")
        if tp == 1:
            A(f"ds_write_b64 {v(aQp)}, {v(o+2,2)} offset:{mt*4*PS2}")
        else:
            A(f"ds_write_b32 {v(aQ1)}, {v(o+2)} offset:{mt*4*PS2}")
            A(f"ds_write_b32 {v(aQ0)}, {v(o+3)} offset:{mt*4*PS2}")
A("s_waitcnt lgkmcnt(0)")
A("s_barrier")
stamp("bar3", (1, 3))
for t in range(4):
    for j in range(2):
        A(f"ds_read_b64 {v(XR+4*t+2*j,2)}, {v(aRd3)} offset:{t*1024+j*256}")
for t in range(4):
    A(f"s_waitcnt lgkmcnt({6-2*t})")
    m32(D1R, XR+4*t, GR+4*t, D1R if t else None)
A("s_nop 4")
weave([M32(D1I, XR+4*t, GI+4*t, D1I if t else None) for t in range(4)], ["s_nop 4"] + TW1(D1R, True), [1, 6, 6, 99])
stamp("m3", (3,))
for t_ in TW2(D1I, XR, XI, True, 0, 8): A(t_)
weave([M32(D2R, XR, FC, None), M32(D2R, XI, FN, D2R), M32(D2I, XR, FS, None), M32(D2I, XI, FC, D2I)], TW2(D1I, XR, XI, True, 8, 16), 6)
weave([M32(D2R, XR+4, FC+4, D2R), M32(D2R, XI+4, FN+4, D2R), M32(D2I, XR+4, FS+4, D2I), M32(D2I, XI+4, FC+4, D2I)], [], 0)
stamp("m4", (3,))
for comp, d in ((0, D2R), (1, D2I)):
    o = TMP + comp*8
    for q in (0, 4, 1, 5, 2, 6, 3, 7): cvt(o+q, d+2*q, d+2*q+1)
    for q in range(4): A(f"v_permlane16_swap_b32 {v(o+q)}, {v(o+4+q)}")
    for j in range(2):
        A(f"buffer_store_dwordx4 {v(o+4*j,4)}, {v(aSo)}, {srd(OUT_)}, {s(sO[comp])} offen offset:{j*1024}{OUTM}")
if OPT['stamp']:
    stamp("st3", (1, 3))
    A("s_waitcnt vmcnt(0)")
    stamp("end")
    A("s_waitcnt lgkmcnt(0)")
    if OPT['probe'] in (1, 2):
        e_ = sST + 2*(len(stamps)-1)
        A(f"""
        s_load_dwordx2 s[8:9], s[0:1], 64
        s_mov_b32 s10, {256 << 20}
        s_mov_b32 s11, 0x20000
        s_add_u32 {s(sT[0])}, {s(sST)}, 1800
        s_lshl3_add_u32 {s(sT[4])}, s2, {s(sW)}
        s_lshl_b32 {s(sT[4])}, {s(sT[4])}, 12
        s_add_u32 {s(sT[4])}, {s(sT[4])}, {OPT['poff'] << 20}
        v_lshlrev_b32 v2, 4, {v(vL)}
        L_pw:
        s_memrealtime {s(sT[2],2)}
        s_waitcnt lgkmcnt(0)
        s_sub_u32 {s(sT[1])}, {s(sT[0])}, {s(sT[2])}
        s_cmp_gt_i32 {s(sT[1])}, 0
        s_cbranch_scc1 L_pw
        s_memrealtime {s(sST+2,2)}
        """)
        for j in range(4): A(f"buffer_store_dwordx4 v[16:19], v2, s[8:11], {s(sT[4])} offen offset:{j*1024} sc1")
        A(f"""
        s_waitcnt vmcnt(0)
        s_memrealtime {s(e_,2)}
        """)
        if OPT['probe'] == 2:
            A(f"s_xor_b32 {s(sT[4])}, {s(sT[4])}, {3 << 15}")
            A("s_sleep 64")
            for j in range(4): A(f"buffer_load_dwordx4 v[20:23], v2, s[8:11], {s(sT[4])} offen offset:{j*1024} sc1")
            A("s_waitcnt vmcnt(0)")
        A("s_waitcnt lgkmcnt(0)")
    n = len(stamps)
    assert sST + 2*n <= 88, n
    if OPT['diag']:
        da, db = OPT['da'], OPT['db']
        A(f"""
        s_load_dwordx2 s[94:95], s[0:1], 56
        s_and_b32 {s(sT[4])}, s2, 7
        s_lshl_b32 {s(sT[4])}, {s(sT[4])}, 3
        s_not_b32 {s(sT[11])}, {s(sST)}
        s_waitcnt lgkmcnt(0)
        s_cmp_lg_u32 {s(sW)}, {OPT['wa']}
        s_cbranch_scc1 L_dg1
        s_atomic_umax {s(sST+2*da) if da else s(sT[11])}, s[94:95], {s(sT[4])}
        L_dg1:
        s_cmp_lg_u32 {s(sW)}, {OPT['wb']}
        s_cbranch_scc1 L_end
        s_atomic_umax {s(sST+2*db)}, s[94:95], {s(sT[4])} offset:4
        s_cmp_lg_u32 s2, 100
        s_cbranch_scc1 L_end
        s_add_u32 {s(sT[0])}, {s(sST+2*(n-1))}, 500
        L_amp0:
        s_memrealtime {s(sT[2],2)}
        s_waitcnt lgkmcnt(0)
        s_sub_u32 {s(sT[1])}, {s(sT[0])}, {s(sT[2])}
        s_cmp_gt_i32 {s(sT[1])}, 0
        s_cbranch_scc1 L_amp0
        s_load_dwordx16 s[60:75], s[94:95], 0 glc
        s_waitcnt lgkmcnt(0)
        """)
        for i in range(1, 8):
            A(f"s_max_u32 s60, s60, s{60+2*i}")
            A(f"s_max_u32 s61, s61, s{61+2*i}")
        if not da: A("s_not_b32 s60, s60")
        A(f"""
        s_sub_u32 {s(sT[1])}, s61, s60
        s_lshl_b32 {s(sT[1])}, {s(sT[1])}, 4
        s_min_u32 {s(sT[1])}, {s(sT[1])}, 60000
        s_add_u32 {s(sT[0])}, {s(sT[0])}, {s(sT[1])}
        L_amp:
        s_memrealtime {s(sT[2],2)}
        s_waitcnt lgkmcnt(0)
        s_sub_u32 {s(sT[1])}, {s(sT[0])}, {s(sT[2])}
        s_cmp_gt_i32 {s(sT[1])}, 0
        s_cbranch_scc1 L_amp
        s_branch L_end
        """)
    A(f"s_lshl_b32 {s(sT[0])}, s2, 3")
    A(f"s_add_u32 {s(sT[0])}, {s(sT[0])}, {s(sW)}")
    A(f"s_lshl_b32 {s(sT[0])}, {s(sT[0])}, 7")
    A(f"s_add_u32 {s(sT[0])}, {s(sT[0])}, {STAMP}")
    A("v_mov_b32 v3, 0")
    A("s_mov_b64 exec, 1")
    for i in range(n):
        A(f"v_mov_b32 v2, {s(sST+2*i)}")
        A(f"buffer_store_dword v2, v3, {srd(WS_)}, {s(sT[0])} offen offset:{i*4}")
    A.raw("; stamps: " + " ".join(stamps))
A.label("L_end")
A("s_endpgm")
def kd(name, nv, ns):
    A.raw(f""".p2align 6
.amdhsa_kernel {name}
  .amdhsa_next_free_vgpr {nv}
  .amdhsa_next_free_sgpr {ns}
  .amdhsa_accum_offset {nv}
  .amdhsa_group_segment_fixed_size 0
  .amdhsa_kernarg_size 72
  .amdhsa_user_sgpr_count 2
  .amdhsa_user_sgpr_kernarg_segment_ptr 1
  .amdhsa_system_sgpr_workgroup_id_x 1
  .amdhsa_float_denorm_mode_32 3
.end_amdhsa_kernel""")
A.raw('.section .rodata,"a"')
kd(NAME + "_kernel", 256, 102)
if OPT['lst']: kd("empty_kernel", 8, 16)
open(sys.argv[1], "w").write(A.text())
print(sys.argv[1], "nops:", A.nops, "stamps:", len(stamps), file=sys.stderr)
```

```python
import sys, struct
import numpy as np
from asmlib import Asm, v, s

NAME = "concat_heads__spectral_gfnet__spectral_gfnet__prompt"
OPT = dict(outm=1, xnt=0, wnt=0, wsoff=0, probe=0, poff=64, pbuf=0, pit=0, prd=0, tlb=0, tls=16, diag=0, da=0, db=0, wa=0, wb=0, ne=3, xpf=0, gh=1, xprio=0, slp=2, nst=3, gpos=1, xl=8, stag=2, neb=3, amp=0, ampw=0, stamp=0, sl1=0, sl2=0, lst=0, half=0)
for a_ in sys.argv[2:]:
    k_, v_ = a_.split('='); assert k_ in OPT, k_; OPT[k_] = int(v_)

def fbits(x): return "0x%08x" % struct.unpack('<I', struct.pack('<f', x))[0]
def bf16(x):
    u = np.asarray(x, dtype=np.float32).view(np.uint32)
    return ((u + 0x7FFF + ((u >> 16) & 1)) >> 16).astype(np.uint32)

T1 = 0
T2 = 8 << 20
AUX = 16 << 20
T1X = AUX
T2X = AUX + 0x30000
WX = AUX + 0x8000
CP = 256
C1 = AUX + 0x10000
C2 = AUX + 0x20000
EW = AUX + 0xa0000
STAMP = AUX + 0x100000
WSZ = 18 << 20
EXOFF = 32768
PS = 5184
WOFF = EXOFF + 8 * PS
M2OFF = WOFF + 36864
SYOFF = M2OFF + 32768
PGOFF = SYOFF + 64
T1OFF = PGOFF + 2048
LDSZ = T1OFF + 14336
EX2 = EXOFF
OS = 8320
XOUT = EXOFF + 32768
PS2 = 4160
sW, sM, sRHO, sSB, sA, sGRP = 3, 4, 5, 6, 7, 32
X_, WR_, WI_, OUT_, WS_, TAB_ = 8, 12, 16, 20, 24, 28
sCNT = 33
sT = list(range(34, 48))
sV = 48
sEXP = 50
sTAG = 51
sW12, sM8, sE, sROLE, sC1, sC2 = 52, 53, 54, 55, 56, 57
sPM = 58
sST = 60
sO = [96, 97]
sU = [98, 99, 100, 101]
sONE = sU[2]
srd = lambda b: s(b, 4)

A = Asm()
HOST = 128
NST = OPT['nst']
XNT = ' nt' if OPT['xnt'] else ''
WNT = ' nt' if OPT['wnt'] else ''
OUTM = ['', ' sc1', ' nt', ' sc0 sc1', ' sc1 nt', ' sc0 sc1 nt'][OPT['outm']]
def M32(d, a, b, c): return f"v_mfma_f32_32x32x16_bf16 {v(d,16)}, {v(a,4)}, {v(b,4)}, {v(c,16) if c is not None else 0}"
def M16(d, a, b, c): return f"v_mfma_f32_16x16x32_bf16 {v(d,4)}, {v(a,4)}, {v(b,4)}, {v(c,4) if c is not None else 0}"
def CVT(d, a, b, na=False, nb=False): return f"v_cvt_pk_bf16_f32 {v(d)}, {'-' if na else ''}{v(a)}, {'-' if nb else ''}{v(b)}"
def m32(*a): A(M32(*a))
def m16(*a): A(M16(*a))
def cvt(*a): A(CVT(*a))
def weave(mf, fill, per):
    fill = list(fill)
    for i, m in enumerate(mf):
        A(m)
        n = per[i] if isinstance(per, (list, tuple)) else per
        for _ in range(n):
            if fill: A(fill.pop(0))
    for f in fill: A(f)
stamps = []
def stamp(name, sets=(1,)):
    st = OPT['stamp']
    if name in ("start", "end"):
        if st: A(f"s_memrealtime {s(sST + 2*len(stamps), 2)}"); stamps.append(name)
        if st > 1: A(f"s_memtime {s(sST + 2*len(stamps), 2)}"); stamps.append("c" + name)
    elif st in sets:
        if name not in stamps: stamps.append(name)
        if OPT['probe'] == 3 and name in ('bar3', 'st3'): return
        A(f"{'s_memrealtime' if st == 1 else 's_memtime'} {s(sST + 2*stamps.index(name), 2)}")

vL, c_, g_ = 1, 2, 3
vT = list(range(2, 16))
TC, TS = 16, 32
FC, FS, FN = 48, 56, 64
M3 = 72
GR, GI = 80, 96
XR, XI = 112, 120
D1R, D1I = 128, 144
D2R, D2I = 160, 176
TMP = 192
PH = 224
WRF, WIF = 16, 48
FR = 80
DRE, DIM, DNR = 144, 160, 176
ER, EI = 192, 224

def peek(off, imm=0):
    A(f"s_mov_b64 {s(sV,2)}, 0")
    A(f"s_atomic_or_x2 {s(sV,2)}, {s(WS_,2)}, {s(off)} glc" if not imm else f"s_atomic_or_x2 {s(sV,2)}, {s(WS_,2)}, {s(off)} offset:{imm} glc")
def poll(label, off, count, sleep, imm=0, keep=None):
    A(f"s_mov_b32 {s(sEXP)}, {count}")
    A(f"s_mov_b32 {s(sCNT)}, 0x8000")
    A.label(label)
    peek(off, imm)
    A(f"s_sub_u32 {s(sCNT)}, {s(sCNT)}, 1")
    A(f"s_cbranch_scc1 {label}_out")
    if sleep: A(f"s_sleep {sleep}")
    A("s_waitcnt lgkmcnt(0)")
    if keep is not None:
        A(f"s_mov_b32 {s(keep)}, {s(sV)}")
        A(f"s_and_b32 {s(sV)}, {s(sV)}, 0xffff")
    A(f"s_cmp_eq_u64 {s(sV,2)}, {s(sEXP,2)}")
    A(f"s_cbranch_scc0 {label}")
    A.label(label + "_out")
def validate(label, off, imm=0):
    A(f"s_mov_b32 {s(sCNT)}, 0x8000")
    A.label(label)
    A("s_waitcnt lgkmcnt(0)")
    A(f"s_cmp_eq_u32 {s(sV+1)}, {s(sTAG)}")
    A(f"s_cbranch_scc1 {label}_out")
    peek(off, imm)
    A(f"s_sub_u32 {s(sCNT)}, {s(sCNT)}, 1")
    A(f"s_cbranch_scc0 {label}")
    A("s_waitcnt lgkmcnt(0)")
    A.label(label + "_out")
def signal(off, imm=0):
    A(f"s_atomic_add {s(sONE)}, {s(WS_,2)}, {s(off)}" + (f" offset:{imm}" if imm else ""))

vSY, vS1, vPG = vT[12], vT[13], vT[11]
def lds_wait(label, off, val):
    A(f"s_mov_b32 {s(sCNT)}, 0x40000")
    A.label(label)
    A(f"ds_read_b32 {v(vS1)}, {v(vSY)} offset:{off}")
    A(f"s_sub_u32 {s(sCNT)}, {s(sCNT)}, 1")
    A(f"s_cbranch_scc1 {label}_out")
    A("s_waitcnt lgkmcnt(0)")
    A(f"v_cmp_gt_u32 vcc, {val}, {v(vS1)}")
    A("s_and_b64 vcc, vcc, vcc")
    A(f"s_cbranch_scc1 {label}")
    A.label(label + "_out")
def lds_bit(off, sbit):
    A(f"v_mov_b32 {v(vS1)}, {s(sbit)}")
    A("s_mov_b64 exec, 1")
    A(f"ds_or_b32 {v(vSY)}, {v(vS1)} offset:{off}")
    A("s_mov_b64 exec, -1")
def lds_post(off, rtn=False):
    A(f"v_mov_b32 {v(vS1)}, 1")
    A("s_mov_b64 exec, 1")
    if rtn: A(f"ds_add_rtn_u32 {v(vS1)}, {v(vSY)}, {v(vS1)} offset:{off}")
    else: A(f"ds_add_u32 {v(vSY)}, {v(vS1)} offset:{off}")
    A("s_mov_b64 exec, -1")

sWB, sI = sU[0], sU[3]
aWM, aWT = GR + 4, GR + 5
nlab = [0]
def w_piece(e):
    if e < 4:
        A(f"s_add_u32 m0, {s(sT[13])}, {WOFF + e*9216}")
        if e & 1: A(f"s_add_u32 {s(sI)}, {s(sT[12])}, {64*16416}")
        A(f"buffer_load_dwordx4 {v(aWM)}, {srd(WI_ if e >> 1 else WR_)}, {s(sI if e & 1 else sT[12])} offen{WNT} lds")
    else:
        n = nlab[0]; nlab[0] += 1
        A(f"""
        s_mul_i32 {s(sI)}, {s(sW)}, 9216
        s_add_u32 m0, {s(sI)}, {WOFF + 8192}
        s_and_b32 {s(sI)}, {s(sW)}, 1
        s_mul_i32 {s(sI)}, {s(sI)}, {64*16416}
        s_add_u32 {s(sI)}, {s(sI)}, {s(sWB)}
        s_bitcmp1_b32 {s(sW)}, 1
        s_cbranch_scc1 L_t1_{n}
        buffer_load_dwordx4 {v(aWT)}, {srd(WR_)}, {s(sI)} offen{WNT} lds
        s_branch L_t2_{n}
        L_t1_{n}:
        buffer_load_dwordx4 {v(aWT)}, {srd(WI_)}, {s(sI)} offen{WNT} lds
        L_t2_{n}:
        """)
def w_base(sw):
    A(f"s_mul_i32 {s(sT[12])}, {s(sw)}, {7*16416}")
    A(f"s_add_u32 {s(sT[12])}, {s(sT[12])}, {s(sWB)}")
    A(f"s_lshl_b32 {s(sT[13])}, {s(sw)}, 10")

def gen_m2(sW):
    G = D2R
    kf, s0, af, bf, ai, bi, ad = G, G+1, G+2, G+3, G+4, G+5, G+6
    P, C_, S_ = D1R, D1R+16, G+8
    A(f"""
    s_and_b32 {s(sT[12])}, {s(sW)}, 1
    s_lshl_b32 {s(sT[12])}, {s(sT[12])}, 4
    s_lshr_b32 {s(sT[13])}, {s(sW)}, 1
    v_add_u32 {v(kf)}, {s(sT[12])}, {v(c_)}
    v_lshl_add_u32 {v(ai)}, {v(kf)}, 2, {s(sT[13])}
    v_lshl_add_u32 {v(s0)}, {v(g_)}, 4, {s(sT[13])}
    v_mul_u32_u24 {v(bf)}, {v(s0)}, {v(kf)}
    v_mul_u32_u24 {v(bi)}, {v(g_)}, {v(ai)}
    v_cvt_f32_u32 {v(af)}, {v(kf)}
    v_cvt_f32_u32 {v(ai)}, {v(ai)}
    v_cvt_f32_u32 {v(bf)}, {v(bf)}
    v_cvt_f32_u32 {v(bi)}, {v(bi)}
    v_mul_f32 {v(bf)}, {fbits(1/128)}, {v(bf)}
    v_mul_f32 {v(bi)}, {fbits(1/32)}, {v(bi)}
    s_lshl_b32 {s(sT[12])}, {s(sW)}, 11
    s_add_u32 {s(sT[12])}, {s(sT[12])}, {M2OFF}
    v_lshl_add_u32 {v(ad)}, {v(vL)}, 4, {s(sT[12])}
    """)
    for d in range(2):
        for i in range(8):
            c = 16*(i >> 2) + (i & 3)
            A(f"v_fmamk_f32 {v(P+8*d+i)}, {v(ai if d else af)}, {fbits(c/128 if d else c/32)}, {v(bi if d else bf)}")
    for i in range(16):
        A(f"v_cos_f32 {v(C_+i)}, {v(P+i)}")
        A(f"v_sin_f32 {v(S_+i)}, {v(P+i)}")
    for d in range(2):
        for j in range(4):
            cvt(P+8*d+j, C_+8*d+2*j, C_+8*d+2*j+1)
            cvt(P+8*d+4+j, S_+8*d+2*j, S_+8*d+2*j+1)
    for d in range(2):
        for cs in range(2):
            A(f"ds_write_b128 {v(ad)}, {v(P+8*d+4*cs,4)} offset:{d*16384+cs*1024}")

def load_tables(addr):
    for i in (8, 9, 10, 11, 12, 13, 0, 4, 1, 5, 2, 6, 3, 7):
        A(f"ds_read_b128 {v(TC+4*i,4)}, {v(addr)} offset:{i*1024}")

def TW1(dr, conj):
    L = []
    for i in range(16):
        L.append(f"v_mul_f32 {v(TMP+i)}, {v(dr+i)}, {v(TC+i)}")
        L.append(f"v_mul_f32 {v(TMP+16+i)}, {v(dr+i)}, {v(TS+i)}" if conj else f"v_mul_f32_e64 {v(TMP+16+i)}, -{v(dr+i)}, {v(TS+i)}")
    return L
def TW2(di, outr, outi, conj, lo, hi):
    L = []
    for i in range(lo, hi, 2):
        for e in range(2):
            L.append(f"v_fma_f32 {v(TMP+i+e)}, -{v(di+i+e)}, {v(TS+i+e)}, {v(TMP+i+e)}" if conj else f"v_fmac_f32 {v(TMP+i+e)}, {v(di+i+e)}, {v(TS+i+e)}")
            L.append(f"v_fmac_f32 {v(TMP+16+i+e)}, {v(di+i+e)}, {v(TC+i+e)}")
        L.append(CVT(outr + i//2, TMP+i, TMP+i+1))
        L.append(CVT(outi + i//2, TMP+16+i, TMP+16+i+1))
    return L

if OPT['lst'] == 0: A.raw(f"; @launch grid=(256,1,1) block=(512,1,1) lds={LDSZ}")
else:
    A.raw(f"; @launch kernel={NAME}_kernel grid=(256,1,1) block=(512,1,1) lds={LDSZ}")
    A.raw(f"; @launch kernel=empty_kernel grid=(1,1,1) block=(64,1,1) lds=0")
A.raw('.amdgcn_target "amdgcn-amd-amdhsa--gfx950"\n.text')
if OPT['lst']: A.raw(".globl empty_kernel\n.p2align 8\n.type empty_kernel,@function\nempty_kernel:\n s_endpgm")
A.raw(f".globl {NAME}_kernel\n.p2align 8\n.type {NAME}_kernel,@function")
A.label(f"{NAME}_kernel")
aL16 = GR + 1
A(f"""
s_cmp_ge_u32 s2, 256
s_cbranch_scc1 L_end
s_bfe_u32 {s(sM)}, s2, 0x10003
s_mul_i32 {s(sT[0])}, {s(sM)}, 24
s_load_dwordx2 {s(X_,2)}, s[0:1], {s(sT[0])}
s_load_dwordx2 {s(WS_,2)}, s[0:1], 64
s_load_dwordx2 {s(WR_,2)}, s[0:1], {s(sT[0])} offset:8
s_load_dwordx2 {s(WI_,2)}, s[0:1], {s(sT[0])} offset:16
s_load_dwordx2 {s(OUT_,2)}, s[0:1], 48
""")
PF_ = 40
if OPT['xpf']:
    A(f"""
    s_sub_u32 {s(sT[0])}, 24, {s(sT[0])}
    s_load_dwordx2 {s(88,2)}, s[0:1], {s(sT[0])} offset:8
    s_load_dwordx2 {s(92,2)}, s[0:1], {s(sT[0])} offset:16
    """)
stamp("start")
A(f"""
v_lshrrev_b32 v2, 6, v0
v_and_b32 {v(vL)}, 63, v0
s_and_b32 {s(sT[1])}, s2, 7
v_readfirstlane_b32 {s(sW)}, v2
s_lshr_b32 {s(sT[2])}, s2, 4
s_lshl_b32 {s(sRHO)}, {s(sT[1])}, 4
s_add_u32 {s(sRHO)}, {s(sRHO)}, {s(sT[2])}
s_and_b32 {s(sSB)}, {s(sRHO)}, 31
s_lshr_b32 {s(sT[5])}, {s(sRHO)}, 5
s_lshl2_add_u32 {s(sSB)}, {s(sSB)}, {s(sT[5])}
v_lshlrev_b32 {v(aL16)}, 4, {v(vL)}
s_mov_b32 {s(X_+2)}, 4194304
s_mov_b32 {s(X_+3)}, 0x20000
s_lshl_b32 {s(sO[0])}, {s(sW)}, 7
s_add_u32 {s(sO[0])}, {s(sO[0])}, {s(sSB)}
s_lshl_b32 {s(sO[0])}, {s(sO[0])}, 11
s_add_u32 {s(sO[1])}, {s(sO[0])}, 0x200000
s_lshl_b32 {s(sW12)}, {s(sW)}, 12
s_mov_b32 m0, {s(sW12)}
s_getpc_b64 {s(TAB_,2)}
L_pc:
s_mov_b32 {s(TAB_+2)}, L_end-L_pc
s_mov_b32 {s(TAB_+3)}, 0x20000
v_lshlrev_b32 v3, 11, v2
s_lshl_b32 {s(sT[6])}, {s(sT[2])}, 7
buffer_load_dword {v(GR)}, v3, {srd(TAB_)}, {s(sT[6])} offen
s_lshl_b32 {s(sA)}, {s(sT[1])}, 1
""")
if OPT['xpf']:
    A(f"""
    s_lshl3_add_u32 {s(sPM)}, {s(sT[2])}, {s(sW)}
    s_lshl4_add_u32 {s(sPM)}, {s(sPM)}, {s(sA)}
    s_mul_i32 {s(sPM)}, {s(sPM)}, 1026
    v_lshlrev_b32 {v(GR+2)}, 7, {v(vL)}
    v_min_u32 {v(GR+2)}, 2048, {v(GR+2)}
    s_mov_b32 s90, 2101248
    s_mov_b32 s91, 0x20000
    s_mov_b32 s94, 2101248
    s_mov_b32 s95, 0x20000
    """)
A("s_waitcnt lgkmcnt(0)")
stamp("karg", (4,))
if OPT['probe'] == 3:
    A(f"""
    s_mov_b32 {s(WS_+2)}, {256 << 20}
    s_mov_b32 {s(WS_+3)}, 0x20000
    s_lshl3_add_u32 {s(sT[4])}, s2, {s(sW)}
    s_lshl_b32 {s(sT[4])}, {s(sT[4])}, 12
    s_add_u32 {s(sT[4])}, {s(sT[4])}, {OPT['poff'] << 20}
    """)
    if OPT['pit']:
        A(f"""
        s_lshl_b32 {s(sT[4])}, {s(sM)}, 7
        s_add_u32 {s(sT[4])}, {s(sT[4])}, {s(sW)}
        s_mul_i32 {s(sT[4])}, {s(sT[4])}, {OPT['pit']}
        s_lshl_b32 {s(sT[3])}, {s(sRHO)}, 8
        s_add_u32 {s(sT[4])}, {s(sT[4])}, {s(sT[3])}
        s_add_u32 {s(sT[4])}, {s(sT[4])}, {OPT['poff'] << 20}
        v_lshrrev_b32 v20, 4, {v(vL)}
        v_mul_u32_u24 v20, {8*OPT['pit']}, v20
        v_and_b32 v21, 15, {v(vL)}
        v_lshl_add_u32 v20, v21, 4, v20
        """)
    A(f"""
    s_add_u32 {s(sT[0])}, {s(sST)}, {OPT['pbuf']}
    L_pw0:
    s_memrealtime s[84:85]
    s_waitcnt lgkmcnt(0)
    s_sub_u32 {s(sT[3])}, {s(sT[0])}, s84
    s_cmp_gt_i32 {s(sT[3])}, 0
    s_cbranch_scc1 L_pw0
    """)
    if OPT['pit'] == 0:
        for j in range(4): A(f"buffer_store_dwordx4 v[16:19], {v(aL16)}, {srd(WS_)}, {s(sT[4])} offen offset:{j*1024} sc1")
    else:
        for j in range(4):
            A(f"buffer_store_dwordx4 v[16:19], v20, {srd(WS_)}, {s(sT[4])} offen sc1")
            A(f"s_add_u32 {s(sT[4])}, {s(sT[4])}, {32*OPT['pit']}")
    A(f"""
    s_waitcnt vmcnt(0)
    s_memrealtime s[82:83]
    s_sleep 32
    s_waitcnt lgkmcnt(0)
    """)
sX0, sX1 = sO
XISS = f"""
buffer_load_dwordx4 {v(aL16)}, {srd(X_)}, {s(sX0)} offen{XNT} lds
buffer_load_dwordx4 {v(aL16)}, {srd(X_)}, {s(sX0)} offen offset:1024{XNT} lds
s_add_u32 m0, {s(sW12)}, 2048
buffer_load_dwordx4 {v(aL16)}, {srd(X_)}, {s(sX1)} offen{XNT} lds
buffer_load_dwordx4 {v(aL16)}, {srd(X_)}, {s(sX1)} offen offset:1024{XNT} lds
"""
aPF = GR + 2
sPF = sPM
XPF = f"""
buffer_load_dword {v(GR)}, {v(aPF)}, s[88:91], {s(sPF)} offen
buffer_load_dword {v(GR)}, {v(aPF)}, s[92:95], {s(sPF)} offen
"""
if OPT['xpf']:
    A(f"""
    s_cmp_eq_u32 {s(sM)}, 0
    s_cbranch_scc1 L_nopf
    {XPF}
    s_barrier
    L_nopf:
    """)
if OPT['stag']:
    A(f"s_cmp_lg_u32 {s(sM)}, 0")
    A("s_cbranch_scc1 L_xlate")
A(XISS)
A.label("L_xlate")
stamp("xiss", (4,))
A(f"""
s_lshr_b32 {s(sT[3])}, {s(sW)}, 1
s_and_b32 {s(sT[4])}, {s(sW)}, 1
s_lshl_b32 {s(sT[6])}, {s(sT[3])}, 2
s_add_u32 {s(sT[6])}, {s(sT[6])}, {s(sT[4])}
s_lshl_b32 {s(sT[6])}, {s(sT[6])}, 1
v_lshrrev_b32 {v(PH)}, 5, {v(vL)}
v_and_b32 {v(PH+1)}, 31, {v(vL)}
v_lshl_add_u32 {v(PH)}, {v(PH)}, 2, {s(sT[6])}
v_mul_u32_u24 {v(PH)}, {v(PH)}, {v(PH+1)}
v_add_u32 {v(PH+1)}, {v(PH)}, {v(PH+1)}
v_cvt_f32_u32 {v(PH)}, {v(PH)}
v_cvt_f32_u32 {v(PH+1)}, {v(PH+1)}
v_mul_f32 {v(PH+2)}, {fbits(1/32)}, {v(PH)}
v_mul_f32 {v(PH+3)}, {fbits(1/32)}, {v(PH+1)}
v_cos_f32 {v(PH+8)}, {v(PH+2)}
v_cos_f32 {v(PH+9)}, {v(PH+3)}
v_sin_f32 {v(PH+10)}, {v(PH+2)}
v_sin_f32 {v(PH+11)}, {v(PH+3)}
v_mul_f32 {v(PH)}, {fbits(1/32)}, {v(PH+2)}
v_mul_f32 {v(PH+1)}, {fbits(1/32)}, {v(PH+3)}
v_cos_f32 {v(PH+4)}, {v(PH)}
v_cos_f32 {v(PH+5)}, {v(PH+1)}
v_sin_f32 {v(PH+6)}, {v(PH)}
v_sin_f32 {v(PH+7)}, {v(PH+1)}
{CVT(PH+12, PH+8, PH+9)}
{CVT(PH+13, PH+10, PH+11)}
{CVT(PH+14, PH+10, PH+11, True, True)}
v_add_u32 {v(vS1)}, {T1OFF}, {v(aL16)}
s_lshl_b32 {s(sT[3])}, {s(sT[3])}, 10
s_lshl3_add_u32 {s(sT[3])}, {s(sT[4])}, {s(sT[3])}
v_add_u32 {v(PH)}, {s(sT[3])}, {v(vS1)}
s_lshr_b32 {s(sT[3])}, {s(sW)}, 2
s_lshl_b32 {s(sT[3])}, {s(sT[3])}, 10
s_and_b32 {s(sT[4])}, {s(sW)}, 3
s_lshl2_add_u32 {s(sT[3])}, {s(sT[4])}, {s(sT[3])}
v_add_u32 {v(PH+1)}, {s(sT[3])}, {v(vS1)}
v_mov_b32 {v(vSY)}, {SYOFF}
v_mov_b32 v8, 0
v_mov_b32 v9, 0
v_mov_b32 v10, 0
v_mov_b32 v11, 0
v_lshlrev_b32 {v(vPG)}, 2, v0
v_add_u32 {v(vPG)}, {PGOFF}, {v(vPG)}
ds_write_b64 {v(PH)}, {v(PH+4,2)}
ds_write_b64 {v(PH)}, {v(PH+6,2)} offset:4096
ds_write_b32 {v(PH+1)}, {v(PH+12)} offset:8192
ds_write_b32 {v(PH+1)}, {v(PH+13)} offset:10240
ds_write_b32 {v(PH+1)}, {v(PH+14)} offset:12288
ds_write_b128 {v(vSY)}, v[8:11]
ds_write_b128 {v(vSY)}, v[8:11] offset:16
ds_write_b32 {v(vPG)}, v8
s_add_u32 {s(WS_)}, {s(WS_)}, {OPT['wsoff'] << 20}
s_addc_u32 {s(WS_+1)}, {s(WS_+1)}, 0
s_mov_b32 {s(WS_+2)}, {WSZ}
s_mov_b32 {s(WS_+3)}, 0x20000
s_mov_b32 {s(WR_+2)}, 2101248
s_mov_b32 {s(WR_+3)}, 0x20000
s_mov_b32 {s(WI_+2)}, 2101248
s_mov_b32 {s(WI_+3)}, 0x20000
s_mov_b32 {s(OUT_+2)}, 8388608
s_mov_b32 {s(OUT_+3)}, 0x20000
s_lshl_b32 {s(sM8)}, {s(sM)}, 3
s_mov_b32 {s(sT[6])}, {EW}
s_waitcnt lgkmcnt(0)
s_load_dword {s(sE)}, {s(WS_,2)}, {s(sT[6])}
""")
stamp("tgen", (4,))
A("s_barrier")
stamp("tbar", (4,))
load_tables(vS1)
def late_x():
    A(f"s_cmp_eq_u32 {s(sM)}, 0")
    A("s_cbranch_scc1 L_xdone")
    A(XISS)
    A.label("L_xdone")
if OPT['stag'] == 1: late_x()
stamp("xis2", (4,))
aG = GR + 3
sG = sU[1]
SPW = 3
sX16 = sROLE
A(f"""
s_lshl_b32 {s(sC1)}, {s(sM)}, 4
s_add_u32 {s(sC1)}, {s(sC1)}, {s(sW)}
s_lshl_b32 {s(sC1)}, {s(sC1)}, 2
s_add_u32 {s(sC1)}, {s(sC1)}, {s(sT[5])}
s_mul_i32 {s(sC1)}, {s(sC1)}, {CP}
s_add_u32 {s(sC1)}, {s(sC1)}, {C1}
s_mov_b32 {s(sX16)}, 0x10000
s_add_u32 {s(sC2)}, {s(sM8)}, {s(sW)}
s_lshl_b32 {s(sC2)}, {s(sC2)}, 3
s_add_u32 {s(sC2)}, {s(sC2)}, {s(sT[1])}
s_mul_i32 {s(sC2)}, {s(sC2)}, {CP}
s_add_u32 {s(sC2)}, {s(sC2)}, {C2}
""")
A(f"""
s_lshr_b32 {s(sT[6])}, {s(sT[2])}, 3
s_add_u32 {s(sA)}, {s(sA)}, {s(sT[6])}
s_and_b32 {s(sGRP)}, {s(sT[2])}, 7
v_and_b32 {v(c_)}, 15, {v(vL)}
v_lshrrev_b32 {v(g_)}, 4, {v(vL)}
v_lshrrev_b32 v9, 2, {v(c_)}
v_and_b32 v10, 1, {v(c_)}
v_lshl_add_u32 v9, v9, 1, v10
v_and_b32 v10, 2, {v(c_)}
v_lshl_add_u32 v9, v10, 2, v9
v_mul_u32_u24 {v(aG)}, 1026, v9
s_mul_i32 {s(sG)}, {s(sRHO)}, 16416
""")
A(f"""
v_lshrrev_b32 {v(PH)}, 1, {v(c_)}
v_and_b32 {v(PH+1)}, 1, {v(PH)}
s_bfe_u32 {s(sT[0])}, {s(sRHO)}, 0x10002
v_and_b32 {v(PH+2)}, 1, {v(c_)}
v_xor_b32 {v(PH+2)}, {s(sT[0])}, {v(PH+2)}
v_sub_u32 {v(PH+2)}, {v(PH+2)}, {v(PH+1)}
v_cvt_f32_i32 {v(PH+2)}, {v(PH+2)}
v_mov_b32 {v(PH+3)}, {fbits(0.125)}
v_fmamk_f32 {v(PH+2)}, {v(PH+2)}, {fbits(0.25)}, {v(PH+3)}
v_mul_u32_u24 {v(PH+1)}, 0x8000, {v(PH+1)}
v_lshl_or_b32 {v(PH+1)}, {v(PH+1)}, 16, {v(PH+1)}
v_cvt_f32_u32 {v(PH)}, {v(PH)}
v_add_f32 {v(PH+3)}, {fbits(8.0)}, {v(PH)}
v_lshl_add_u32 {v(PH+4)}, {v(g_)}, 8, {s(sSB)}
v_cvt_f32_u32 {v(PH+4)}, {v(PH+4)}
v_mul_f32 {v(PH+4)}, {fbits(1/2048)}, {v(PH+4)}
v_add_f32 {v(PH+5)}, {fbits(1/16)}, {v(PH+4)}
""")
for mt in range(2):
    for e in range(2):
        t = PH + 8 + (mt*2+e)*3
        A(f"v_fma_f32 {v(t)}, {v(PH+4+e)}, {v(PH if mt == 0 else PH+3)}, {v(PH+2)}")
        A(f"v_cos_f32 {v(t+1)}, {v(t)}")
        A(f"v_sin_f32 {v(t+2)}, {v(t)}")
for mt in range(2):
    for e in range(2):
        t = PH + 8 + (mt*2+e)*3
        cvt(M3 + mt*4 + 2*e, t+1, t+2)
        cvt(M3 + mt*4 + 2*e + 1, t+2, t+1)
        A(f"v_xor_b32 {v(M3 + mt*4 + 2*e + 1)}, {v(PH+1)}, {v(M3 + mt*4 + 2*e + 1)}")
if OPT['stag'] == 2: late_x()
aTR, aP, aQe, aQo, aRD, aST = vT[2:8]
sS1 = sT[8:12]
A(f"""
v_bfe_u32 {v(PH)}, {v(vL)}, 2, 2
v_lshrrev_b32 {v(PH+1)}, 5, {v(vL)}
v_lshl_add_u32 {v(PH)}, {v(PH+1)}, 2, {v(PH)}
v_lshlrev_b32 {v(PH)}, 6, {v(PH)}
v_and_b32 {v(PH+2)}, 16, {v(vL)}
v_lshl_add_u32 {v(PH)}, {v(PH+2)}, 1, {v(PH)}
v_and_b32 {v(PH+2)}, 3, {v(vL)}
v_lshl_add_u32 {v(PH)}, {v(PH+2)}, 3, {v(PH)}
v_add_u32 {v(aTR)}, {s(sW12)}, {v(PH)}
s_mul_i32 {s(sT[0])}, {s(sW)}, {PS}
s_add_u32 {s(sT[0])}, {s(sT[0])}, {EXOFF}
v_and_b32 {v(PH+3)}, 31, {v(vL)}
v_mul_u32_u24 {v(PH+4)}, 20, {v(PH+2)}
v_lshrrev_b32 {v(PH+5)}, 2, {v(PH+3)}
v_mul_u32_u24 {v(PH+6)}, 160, {v(PH+1)}
v_add3_u32 {v(PH+4)}, {v(PH+4)}, {v(PH+5)}, {v(PH+6)}
v_lshl_add_u32 {v(aP)}, {v(PH+4)}, 3, {s(sT[0])}
v_sub_u32 {v(PH+3)}, 32, {v(PH+3)}
v_and_b32 {v(PH+4)}, 3, {v(PH+3)}
v_mul_u32_u24 {v(PH+4)}, 20, {v(PH+4)}
v_lshrrev_b32 {v(PH+5)}, 2, {v(PH+3)}
v_sub_u32 {v(PH+6)}, 160, {v(PH+6)}
v_add3_u32 {v(PH+4)}, {v(PH+4)}, {v(PH+5)}, {v(PH+6)}
v_lshl_add_u32 {v(aQe)}, {v(PH+4)}, 3, {s(sT[0])}
v_and_b32 {v(PH+3)}, 32, {v(PH+3)}
v_lshl_add_u32 {v(aQo)}, {v(PH+3)}, 4, {v(aQe)}
s_mul_i32 {s(sT[0])}, {s(sW)}, 640
s_add_u32 {s(sT[0])}, {s(sT[0])}, {EXOFF}
v_mul_u32_u24 {v(PH)}, {2*PS}, {v(g_)}
v_lshl_add_u32 {v(PH)}, {v(c_)}, 3, {v(PH)}
v_add_u32 {v(aRD)}, {s(sT[0])}, {v(PH)}
v_lshlrev_b32 {v(PH)}, 19, {v(g_)}
v_lshl_add_u32 {v(aST)}, {v(c_)}, 4, {v(PH)}
s_lshl_b32 {s(sS1[0])}, {s(sM)}, 22
s_lshl_b32 {s(sT[0])}, {s(sW)}, 15
s_add_u32 {s(sS1[0])}, {s(sS1[0])}, {s(sT[0])}
s_lshl_b32 {s(sT[0])}, {s(sRHO)}, 8
s_add_u32 {s(sS1[0])}, {s(sS1[0])}, {s(sT[0])}
s_add_u32 {s(sS1[1])}, {s(sS1[0])}, {1<<18}
s_add_u32 {s(sS1[2])}, {s(sS1[0])}, {8<<18}
s_add_u32 {s(sS1[3])}, {s(sS1[0])}, {9<<18}
s_mul_i32 {s(sWB)}, {s(sA)}, 1026
s_lshl_b32 {s(sT[0])}, {s(sGRP)}, 7
s_add_u32 {s(sWB)}, {s(sWB)}, {s(sT[0])}
s_andn2_b32 {s(sWB)}, {s(sWB)}, 15
""")
if OPT['stag'] == 3: late_x()
A(f"""
v_add_u32 {v(PH)}, {s(sW)}, {v(vL)}
v_mul_u32_u24 {v(PH+1)}, 57, {v(PH)}
v_lshrrev_b32 {v(PH+1)}, 9, {v(PH+1)}
v_mul_u32_u24 {v(PH+1)}, {16416-144}, {v(PH+1)}
v_lshl_add_u32 {v(aWM)}, {v(PH)}, 4, {v(PH+1)}
v_add_u32 {v(PH)}, 8, {v(vL)}
v_mul_u32_u24 {v(PH+1)}, 57, {v(PH)}
v_lshrrev_b32 {v(PH+1)}, 9, {v(PH+1)}
v_mul_u32_u24 {v(PH+1)}, {16416-144}, {v(PH+1)}
v_lshl_add_u32 {v(aWT)}, {v(PH)}, 4, {v(PH+1)}
v_add_u32 {v(aWT)}, {56*16416}, {v(aWT)}
s_mov_b32 {s(sEXP)}, 0
s_mov_b32 {s(sONE)}, 1
s_and_b32 {s(sT[1])}, {s(sRHO)}, 15
s_cbranch_scc1 L_noinit
s_waitcnt lgkmcnt(0)
s_mul_i32 {s(sTAG)}, {s(sE)}, 0x9E3779B1
s_add_u32 {s(sTAG)}, {s(sTAG)}, 0x7F4A7C15
s_atomic_swap_x2 {s(sEXP,2)}, {s(WS_,2)}, {s(sC2)}
s_and_b32 {s(sT[1])}, {s(sRHO)}, 31
s_cbranch_scc1 L_noinit
s_atomic_swap_x2 {s(sEXP,2)}, {s(WS_,2)}, {s(sC1)}
L_noinit:
""")
NE = OPT['ne']
A(f"""
s_cmp_lg_u32 {s(sW)}, {SPW}
s_cbranch_scc1 L_nogather
buffer_load_ushort v11, {v(aG)}, {srd(WR_)}, {s(sG)} offen offset:1024
buffer_load_ushort v12, {v(aG)}, {srd(WI_)}, {s(sG)} offen offset:1024
L_nogather:
""")
stamp('setup', (4,))
NEB = OPT['neb']
if OPT['stag'] in (2, 3): A("s_barrier")
NTL = 0
if OPT['tlb']:
    NTL = 2
    TLS = OPT['tls']
    L = -(-(WSZ >> TLS) // 256)
    A(f"""
    s_andn2_b32 {s(sT[0])}, s2, 7
    s_add_u32 {s(sT[0])}, {s(sT[0])}, {s(sW)}
    s_lshl_b32 {s(sT[0])}, {s(sT[0])}, {TLS}
    s_and_b32 {s(sT[1])}, s2, 7
    s_lshl_b32 {s(sT[1])}, {s(sT[1])}, 7
    s_add_u32 {s(sT[0])}, {s(sT[0])}, {s(sT[1])}
    v_lshlrev_b32 {v(PH)}, {TLS+8}, {v(vL)}
    v_add_u32 {v(PH)}, {s(sT[0])}, {v(PH)}
    v_mov_b32 {v(PH+1)}, 0
    s_mov_b64 exec, {(1 << L) - 1}
    buffer_atomic_or {v(PH+1)}, {v(PH)}, {srd(WS_)}, 0 offen sc1
    buffer_atomic_or {v(PH+1)}, {v(PH)}, {srd(OUT_)}, 0 offen sc1
    s_mov_b64 exec, -1
    """)
w_base(sW)
for e in range(max(NE, NEB)):
    if e == min(NE, NEB):
        A(f"s_cmp_eq_u32 {s(sM)}, {0 if NE < NEB else 1}")
        A("s_cbranch_scc1 L_noearly")
    w_piece(e)
A.label("L_noearly")
NEA = NE
if OPT['xpf'] == 2:
    NEA = NE + 2
    A(f"""
    s_cmp_lg_u32 {s(sM)}, 0
    s_cbranch_scc1 L_nopf2
    {XPF}
    L_nopf2:
    """)
def wait_m(lbl, add):
    lo, hi = min(NEA, NEB) + NTL, max(NEA, NEB) + NTL
    A(f"s_waitcnt vmcnt({hi+add})")
    if lo != hi:
        A(f"s_cmp_eq_u32 {s(sM)}, {0 if NEA > NEB else 1}")
        A(f"s_cbranch_scc1 {lbl}")
        A(f"s_waitcnt vmcnt({lo+add})")
        A.label(lbl)
stamp("wiss", (4,))
wait_m("L_wm0", 2)
A(f"""
s_cmp_eq_u32 {s(sW)}, {SPW}
s_cbranch_scc1 L_xw1
""")
wait_m("L_wm1", 0)
A.label("L_xw1")
stamp("x", (1, 2, 4))
for comp, dst in ((0, XR), (1, XI)):
    for t in range(2):
        for j in range(2):
            A(f"ds_read_b64_tr_b16 {v(dst+4*t+2*j,2)}, {v(aTR)} offset:{comp*2048+t*1024+j*512}")
A("s_waitcnt lgkmcnt(0)")
stamp("tr", (2, 4))
weave([M32(D1R, XR, FC, None), M32(D1R, XR+4, FC+4, D1R), M32(D1R, XI, FS, D1R), M32(D1R, XI+4, FS+4, D1R), M32(D1I, XR, FN, None)],
      [f"s_mul_i32 {s(sTAG)}, {s(sE)}, 0x9E3779B1", f"s_add_u32 {s(sTAG)}, {s(sTAG)}, 0x7F4A7C15", "s_nop 4", "s_nop 4"], [2, 0, 0, 1, 1])
weave([M32(D1I, XR+4, FN+4, D1I), M32(D1I, XI, FC, D1I), M32(D1I, XI+4, FC+4, D1I)], TW1(D1R, False), [6, 6, 99])
stamp("m1", (2,))
for t_ in TW2(D1I, XR, XI, False, 0, 8): A(t_)
stamp("tw", (2,))
weave([M32(D2R, FC, XR, None), M32(D2I, FN, XR, None), M32(D2R, FS, XI, D2R), M32(D2I, FC, XI, D2I)], TW2(D1I, XR, XI, False, 8, 16), 6)
weave([M32(D2R, FC+4, XR+4, D2R), M32(D2I, FN+4, XR+4, D2I), M32(D2R, FS+4, XI+4, D2R), M32(D2I, FC+4, XI+4, D2I)], [], 0)
stamp("m2", (2,))
for i in range(16):
    cvt(TMP+i, D2R+i, D2I+i)
stamp("cv", (2,))
for i in range(16):
    kd2 = 8*(i >> 2) + (i & 3)
    if i < 8:
        A(f"ds_write_b32 {v(aP)}, {v(TMP+i)} offset:{(80*(kd2>>1)+8*(kd2&1))*8}")
    else:
        e = 31 - kd2 - 4
        A(f"ds_write_b32 {v(aQo if e & 1 else aQe)}, {v(TMP+i)} offset:{(80*(e>>1)+8*(e&1))*8+4}")
A(f"""
s_mov_b64 exec, 1
ds_write_b32 {v(aP)}, {v(TMP)} offset:4
ds_write_b32 {v(aP)}, {v(TMP+8)} offset:{640*8}
s_mov_b64 exec, -1
""")
stamp("wr", (2,))
A("s_waitcnt lgkmcnt(0)")
stamp("wrd", (2,))
A("s_barrier")
stamp("bar1", (1, 2, 4))
A(f"""
s_cmp_lg_u32 {s(sW)}, {SPW}
s_cbranch_scc1 L_nosp1
v_mul_u32_u24 {v(PH)}, {2*PS}, {v(g_)}
ds_read_b64 {v(XR,2)}, {v(PH)} offset:{EXOFF+640*8}
ds_read_b64 {v(XR+2,2)}, {v(PH)} offset:{EXOFF+640*8+PS}
s_lshl_b32 {s(sT[0])}, {s(sM)}, 13
s_lshl_b32 {s(sT[1])}, {s(sRHO)}, 6
s_add_u32 {s(sT[0])}, {s(sT[0])}, {s(sT[1])}
s_add_u32 {s(sT[1])}, {s(sT[0])}, {WX}
s_add_u32 {s(sT[0])}, {s(sT[0])}, {T1X}
v_lshlrev_b32 {v(PH+1)}, 2, {v(vL)}
v_lshlrev_b32 {v(PH+2)}, 4, {v(g_)}
""")
wait_m("L_wm2", 0)
A(f"""
v_lshl_or_b32 v11, v12, 16, v11
s_mov_b64 exec, 0xffff
buffer_store_dword v11, {v(PH+1)}, {srd(WS_)}, {s(sT[1])} offen sc1
s_mov_b64 exec, -1
s_waitcnt lgkmcnt(0)
""")
m16(D1R, M3, XR, None); m16(D1R+4, M3+4, XR, None)
cvt(TMP, D1R, D1R+2); cvt(TMP+1, D1R+4, D1R+6); cvt(TMP+2, D1R+1, D1R+3); cvt(TMP+3, D1R+5, D1R+7)
A(f"""
s_mov_b32 exec_lo, 0x00010001
s_mov_b32 exec_hi, 0x00010001
buffer_store_dwordx4 {v(TMP,4)}, {v(PH+2)}, {srd(WS_)}, {s(sT[0])} offen sc1
s_mov_b64 exec, -1
L_nosp1:
""")
for t in range(4):
    for jj in range(2):
        A(f"ds_read_b64 {v(XR+4*t+2*jj,2)}, {v(aRD)} offset:{160*t+PS*jj}")
for t in range(4):
    A(f"s_waitcnt lgkmcnt({6-2*t})")
    m16(D1R+8*t, M3, XR+4*t, None)
peek(sC1)
for t in range(4):
    m16(D1R+8*t+4, M3+4, XR+4*t, None)
for mt in range(2):
    for al in range(2):
        o = TMP + 4 + (mt*2+al)*4
        d = D1R + 4*mt + 2*al
        cvt(o, d, d+8); cvt(o+2, d+1, d+9); cvt(o+1, d+16, d+24); cvt(o+3, d+17, d+25)
    for al in range(2):
        o = TMP + 4 + (mt*2+al)*4
        A(f"buffer_store_dwordx4 {v(o,4)}, {v(aST)}, {srd(WS_)}, {s(sS1[mt*2+al])} offen sc1")
stamp("st1", (2,))
sPH = sE
A(f"""
s_barrier
""")
A(f"s_mov_b32 {s(sPH)}, 1")
GH = OPT['gh']
if GH:
    A(f"""
    s_cmp_lt_u32 {s(sW)}, 4
    s_cbranch_scc1 L_nogen
    s_sub_u32 {s(sI)}, {s(sW)}, {4 if GH == 2 else 0}
    L_gen:
    """)
    gen_m2(sI)
    if GH == 2:
        A(f"""
        s_add_u32 {s(sI)}, {s(sI)}, 4
        s_cmp_lt_u32 {s(sI)}, 8
        s_cbranch_scc1 L_gen
        """)
    lds_post(12)
    if GH == 1:
        A(f"s_cmp_lt_u32 {s(sW)}, 4")
        A("s_cbranch_scc1 L_genret")
    A.label("L_nogen")
validate("L_val1", sC1)
A(f"""
s_cmp_lg_u32 {s(sW)}, {SPW}
s_cbranch_scc1 L_nosp2
s_waitcnt vmcnt(4)
s_atomic_add {s(sX16)}, {s(WS_,2)}, {s(sC1)}
L_nosp2:
s_waitcnt vmcnt(0)
""")
signal(sC1)
stamp("fl1")
aW, aF, aRe, aIm, aO, aD = vT[2:8]
sFA, sFB, sFC, sDST, sOI, sDONE, sNEW, sMK = sT[4:12]
A(f"""
s_cmp_ge_u32 {s(sW)}, 4
s_cbranch_scc1 L_helper
""")
assert max(NE, NEB) < 5
w_piece(4)
w_base(sW)
for hh in range(2):
    for e in range(3, min(NE, NEB) - 1, -1):
        if e == max(NE, NEB) - 1:
            A(f"s_cmp_eq_u32 {s(sM)}, {1 if NE < NEB else 0}")
            A(f"s_cbranch_scc1 L_nolate{hh}")
        w_piece(e)
    A.label(f"L_nolate{hh}")
    if hh == 0:
        A(f"""
        v_add_u32 {v(PH)}, {s(sW)}, {v(vL)}
        v_add_u32 {v(PH)}, 4, {v(PH)}
        v_mul_u32_u24 {v(PH+1)}, 57, {v(PH)}
        v_lshrrev_b32 {v(PH+1)}, 9, {v(PH+1)}
        v_mul_u32_u24 {v(PH+1)}, {16416-144}, {v(PH+1)}
        v_lshl_add_u32 {v(aWM)}, {v(PH)}, 4, {v(PH+1)}
        s_add_u32 {s(sT[12])}, {s(sT[12])}, {28*16416}
        s_add_u32 {s(sT[13])}, {s(sT[13])}, 4096
        """)
if GH == 1:
    A(f"s_mov_b32 {s(sI)}, {s(sW)}")
    A("s_branch L_gen")
    A.label("L_genret")
if GH == 0:
    A(f"s_mov_b32 {s(sI)}, {s(sW)}")
    A.label("L_gen")
    gen_m2(sI)
    A(f"""
    s_add_u32 {s(sI)}, {s(sI)}, 4
    s_cmp_lt_u32 {s(sI)}, 8
    s_cbranch_scc1 L_gen
    """)
    lds_post(12)
A(f"""
s_mov_b32 {s(sFA)}, 0
s_and_b32 {s(sFC)}, {s(sA)}, 7
s_mov_b32 {s(sFB)}, 0
s_mul_i32 {s(sOI)}, {s(sW)}, {OS}
s_add_u32 {s(sOI)}, {s(sOI)}, {WOFF}
v_lshrrev_b32 {v(aRe)}, 2, {v(vL)}
v_and_b32 {v(aF)}, 3, {v(aRe)}
v_xor_b32 {v(aF)}, {s(sW)}, {v(aF)}
v_lshlrev_b32 {v(aRe)}, 8, {v(aRe)}
v_lshl_add_u32 {v(aRe)}, {v(aF)}, 6, {v(aRe)}
v_and_b32 {v(aF)}, 3, {v(vL)}
v_lshl_add_u32 {v(aRe)}, {v(aF)}, 4, {v(aRe)}
s_lshl_b32 {s(sT[0])}, {s(sW)}, 5
s_add_u32 {s(sT[0])}, {s(sT[0])}, {WOFF}
v_min_u32 {v(aW)}, 2, {v(g_)}
v_mul_u32_u24 {v(aF)}, 144, {v(c_)}
v_lshl_add_u32 {v(aW)}, {v(aW)}, 4, {v(aF)}
v_add_u32 {v(aW)}, {s(sT[0])}, {v(aW)}
""")
A.label("L_p2common")
A(f"v_lshlrev_b32 {v(aF)}, 4, {v(vL)}")
A(f"v_add_u32 {v(aF)}, {M2OFF}, {v(aF)}")
SEL = DNR
A(f"""
v_lshlrev_b32 {v(DIM)}, {s(sFA)}, {v(c_)}
v_lshlrev_b32 {v(DIM+1)}, 3, {v(g_)}
v_sub_u32 {v(DIM)}, {v(DIM)}, {v(DIM+1)}
v_add_u32 {v(DIM)}, {s(sFC)}, {v(DIM)}
v_add_u32 {v(DIM+1)}, {s(sFB)}, {v(DIM)}
v_mov_b32 {v(DIM+4)}, 0x3500
""")
for q in range(2):
    A(f"v_and_b32 {v(DIM+2)}, 1, {v(DIM+q)}")
    A(f"v_lshlrev_b32 {v(DIM+2)}, 4, {v(DIM+2)}")
    A(f"v_lshlrev_b32 {v(DIM+2)}, {v(DIM+2)}, {v(DIM+4)}")
    A(f"v_ashrrev_i32 {v(DIM+3)}, 1, {v(DIM+q)}")
    for j in range(4):
        A(f"v_cmp_eq_u32 vcc, {j}, {v(DIM+3)}")
        A(f"v_cndmask_b32 {v(SEL+4*q+j)}, 0, {v(DIM+2)}, vcc")
A(f"""
v_and_b32 {v(aIm)}, 1, {v(g_)}
v_lshl_add_u32 {v(aRe)}, {v(aIm)}, 3, {v(aRe)}
v_xor_b32 {v(aIm)}, 8, {v(aRe)}
v_bfe_u32 {v(aO)}, {v(vL)}, 1, 2
v_xor_b32 {v(aO)}, {v(aO)}, {v(g_)}
v_lshlrev_b32 {v(aO)}, 4, {v(aO)}
v_lshl_add_u32 {v(aO)}, {v(c_)}, 6, {v(aO)}
v_add_u32 {v(aO)}, {s(sOI)}, {v(aO)}
v_mov_b32 {v(vT[9])}, 1
s_mov_b32 {s(sT[0])}, 0x80008000
s_mov_b32 {s(sDONE)}, 0
""")
if OPT['gpos'] == 1: lds_wait("L_fr", 12, 8 if GH == 1 else 4)
for f in range(16):
    A(f"ds_read_b128 {v(FR+4*f,4)}, {v(aF)} offset:{f*1024}")
A(f"""
s_waitcnt vmcnt(0)
s_cmp_lt_u32 {s(sW)}, 4
s_cbranch_scc1 L_wreg
""")
for t in range(8):
    m16(WRF+4*t, ER+4*t, SEL, None); m16(WIF+4*t, ER+4*t, SEL+4, None)
A(f"s_movk_i32 {s(sMK)}, 0xff")
A("s_branch L_dspx")
A.label("L_wreg")
lds_post(0)

lds_wait("L_wr", 0, 8)
for t in range(16):
    if t == 12: A("s_waitcnt lgkmcnt(8)")
    A(f"ds_read_b128 {v(ER+4*t,4)}, {v(aW)} offset:{t*2304}")
A(f"s_lshl_b32 {s(sMK)}, 16, {s(sW)}")
lds_bit(4, sMK)
for t in range(16):
    if t >= 4: A(f"s_waitcnt lgkmcnt({16-t})")
    m16(WRF+4*t, ER+4*t, SEL, None)
stamp("wcv", (1,))
A(f"""
s_mov_b32 {s(sCNT)}, 0x40000
L_dsp:
ds_read_b32 {v(vS1)}, {v(vSY)} offset:4
s_sub_u32 {s(sCNT)}, {s(sCNT)}, 1
s_cbranch_scc1 L_fwd_done
s_waitcnt lgkmcnt(0)
v_readfirstlane_b32 {s(sMK)}, {v(vS1)}
L_dspx:
s_andn2_b32 {s(sNEW)}, {s(sMK)}, {s(sDONE)}
s_cbranch_scc0 L_dsp
""")
stamp("dat1", (1, 3))
for u in range(4):
    A(f"s_bitcmp1_b32 {s(sNEW)}, {u}")
    A(f"s_cbranch_scc0 L_nr{u}")
    for j in range(2): A(f"ds_read_b64_tr_b16 {v(DRE+4*u+2*j,2)}, {v(aRe)} offset:{u*8192+j*4096}")
    for j in range(2): A(f"ds_read_b64_tr_b16 {v(DIM+4*u+2*j,2)}, {v(aIm)} offset:{u*8192+j*4096}")
    A.label(f"L_nr{u}")
A(f"s_or_b32 {s(sDONE)}, {s(sDONE)}, {s(sNEW)}")
A("s_waitcnt lgkmcnt(0)")
for u in range(4):
    A(f"s_bitcmp1_b32 {s(sNEW)}, {u}")
    A(f"s_cbranch_scc0 L_nm{u}")
    fc = lambda mt: FR + (u*4 + mt*2) * 4
    fs = lambda mt: FR + (u*4 + mt*2 + 1) * 4
    e = lambda mt: (u*2 + mt) * 4
    weave([M16(ER+e(0), fc(0), DRE+4*u, None), M16(ER+e(1), fc(1), DRE+4*u, None),
           M16(EI+e(0), fc(0), DIM+4*u, None), M16(EI+e(1), fc(1), DIM+4*u, None),
           M16(ER+e(0), fs(0), DIM+4*u, ER+e(0)), M16(ER+e(1), fs(1), DIM+4*u, ER+e(1)),
           M16(EI+e(0), fs(0), DNR+4*u, EI+e(0)), M16(EI+e(1), fs(1), DNR+4*u, EI+e(1))],
          [f"v_xor_b32 {v(DNR+4*u+j)}, {s(sT[0])}, {v(DRE+4*u+j)}" for j in range(4)], 2)
    for f in range(4*u, 4*u+4): A(f"ds_read_b128 {v(FR+4*f,4)}, {v(aF)} offset:{16384+f*1024}")
    A.label(f"L_nm{u}")
A(f"""
s_cmp_lg_u32 {s(sDONE)}, 0xff
s_cbranch_scc1 L_dsp
L_fwd_done:
""")
stamp("fwd", (3,))
A("s_nop 1")
TT = DNR
def pk(op, d, a, b, c=None, na=False, nb=False):
    ops = f"{v(d,2)}, {v(a,2)}, {v(b,2)}" + (f", {v(c,2)}" if c is not None else "")
    n = [int(na), int(nb)] + ([0] if c is not None else [])
    mod = f" neg_lo:{n} neg_hi:{n}".replace(", ", ",") if (na or nb) else ""
    A(f"v_pk_{op}_f32 {ops}{mod}")
add = lambda d, a, b: pk("add", d, a, b)
sub = lambda d, a, b: pk("add", d, a, b, nb=True)
A.raw(".p2align 3")
for mt in range(2):
    for rp in range(2):
        er = lambda u: ER + (u*2+mt)*4 + 2*rp
        ei = lambda u: EI + (u*2+mt)*4 + 2*rp
        wr = lambda q: WRF + (q*2+mt)*4 + 2*rp
        wi = lambda q: WIF + (q*2+mt)*4 + 2*rp
        tr = lambda i: TT + 4*i
        ti = lambda i: TT + 4*i + 2
        add(tr(0), er(0), er(2)); add(ti(0), ei(0), ei(2)); sub(tr(1), er(0), er(2)); sub(ti(1), ei(0), ei(2))
        add(tr(2), er(1), er(3)); add(ti(2), ei(1), ei(3)); sub(tr(3), er(1), er(3)); sub(ti(3), ei(1), ei(3))
        add(er(0), tr(0), tr(2)); add(ei(0), ti(0), ti(2)); sub(er(2), tr(0), tr(2)); sub(ei(2), ti(0), ti(2))
        add(er(1), tr(1), ti(3)); sub(ei(1), ti(1), tr(3)); sub(er(3), tr(1), ti(3)); add(ei(3), ti(1), tr(3))
        for q in range(4):
            pk("mul", tr(q), er(q), wr(q)); pk("mul", ti(q), er(q), wi(q))
        for q in range(4):
            pk("fma", tr(q), ei(q), wi(q), tr(q), na=True); pk("fma", ti(q), ei(q), wr(q), ti(q))
        add(wr(0), tr(0), tr(2)); add(wi(0), ti(0), ti(2)); sub(wr(1), tr(0), tr(2)); sub(wi(1), ti(0), ti(2))
        add(wr(2), tr(1), tr(3)); add(wi(2), ti(1), ti(3)); sub(wr(3), tr(1), tr(3)); sub(wi(3), ti(1), ti(3))
        add(er(0), wr(0), wr(2)); add(ei(0), wi(0), wi(2)); sub(er(2), wr(0), wr(2)); sub(ei(2), wi(0), wi(2))
        sub(er(1), wr(1), wi(3)); add(ei(1), wi(1), wr(3)); add(er(3), wr(1), wi(3)); sub(ei(3), wi(1), wr(3))
def OPS(u):
    L = [CVT(DRE+4*u+j, ER+8*u+2*j, ER+8*u+2*j+1) for j in range(4)]
    L += [CVT(DIM+4*u+j, EI+8*u+2*j, EI+8*u+2*j+1) for j in range(4)]
    L += [CVT(DNR+4*u+j, EI+8*u+2*j, EI+8*u+2*j+1, True, True) for j in range(4)]
    return L
def INV(k):
    e = k*4; o = WRF + e
    return [CVT(o, ER+e, ER+e+1), CVT(o+1, ER+e+2, ER+e+3), CVT(o+2, EI+e, EI+e+1), CVT(o+3, EI+e+2, EI+e+3),
            f"ds_write_b128 {v(aO)}, {v(o,4)} offset:{k*1024}", f"ds_add_u32 {v(vPG)}, {v(vT[9])}"]
for t_ in OPS(0): A(t_)
A("s_waitcnt lgkmcnt(0)")
stamp("mid", (3,))
for k in range(8):
    u, nt = k >> 1, k & 1
    fc, fs, e = FR + (u*4 + nt*2) * 4, FR + (u*4 + nt*2 + 1) * 4, k * 4
    ops = OPS(u+1)[6*nt:6*nt+6] if u < 3 else []
    out = INV(k-1) if k >= 1 else []
    fill = ops + out
    weave([M16(ER+e, DRE+4*u, fc, None), M16(EI+e, DIM+4*u, fc, None), M16(ER+e, DNR+4*u, fs, ER+e), M16(EI+e, DRE+4*u, fs, EI+e)],
          fill, [3, 3, 2, 4] if ops and out else ([2, 2, 2, 0] if ops else [0, 0, 0, 6]))
stamp("inv", (3,))
for t_ in INV(7): A(t_)
stamp("cmp2", (1, 3))
A(f"""
s_cmp_lt_u32 {s(sW)}, 4
s_cbranch_scc1 L_setup3
""")
A(f"""
v_lshlrev_b32 {v(aO)}, 7, {v(c_)}
v_lshl_add_u32 {v(aO)}, {v(g_)}, 4, {v(aO)}
""")
for i in range(8): A(f"v_mov_b32 {v(WIF+2*i+1)}, {s(sTAG)}")
for k in range(8):
    o = WIF + 8*(k & 1)
    for e in range(4): cvt(o+2*e, ER+4*k+e, EI+4*k+e)
    for h in range(2): A(f"buffer_store_dwordx4 {v(o+4*h,4)}, {v(aO)}, {srd(WS_)}, {s(sDST)} offen offset:{(k&1)*2048+h*64} sc1")
    if k & 1: A(f"s_add_u32 {s(sDST)}, {s(sDST)}, 4096")
A(f"""
s_setprio 0
s_branch L_setup3
L_helper:
""")
lds_post(0)
sSRC, sPL, sSG, sBIT = sT[4:8]
A(f"""
s_lshl_b32 {s(sT[0])}, {s(sM)}, 4
s_add_u32 {s(sSRC)}, {s(sT[0])}, {s(sA)}
s_lshl3_add_u32 {s(sSRC)}, {s(sSRC)}, {s(sGRP)}
s_sub_u32 {s(sT[1])}, {s(sW)}, 4
s_lshl2_add_u32 {s(sSRC)}, {s(sSRC)}, {s(sT[1])}
s_lshl_b32 {s(sSRC)}, {s(sSRC)}, 13
s_add_u32 {s(sPL)}, {s(sT[0])}, {s(sGRP)}
s_lshl2_add_u32 {s(sPL)}, {s(sPL)}, {s(sT[1])}
s_mul_i32 {s(sPL)}, {s(sPL)}, {CP}
s_add_u32 {s(sPL)}, {s(sPL)}, {C1}
s_cmp_eq_u32 {s(sGRP)}, {SPW}
s_cselect_b32 {s(sSG)}, 0x200020, 32
s_lshl_b32 m0, {s(sT[1])}, 13
s_lshl_b32 {s(sBIT)}, 1, {s(sT[1])}
v_lshlrev_b32 {v(aD)}, 2, {v(g_)}
v_xor_b32 {v(aD)}, {v(aD)}, {v(c_)}
v_lshlrev_b32 {v(aD)}, 4, {v(aD)}
v_lshl_add_u32 {v(aD)}, {v(g_)}, 8, {v(aD)}
""")
poll("L_poll1", sPL, s(sSG), OPT['sl1'])
stamp("pol1")
for n in range(8):
    A(f"buffer_load_dwordx4 {v(aD)}, {srd(WS_)}, {s(sSRC)} offen offset:{(n&3)*1024} sc1 lds")
    if n == 3:
        A(f"s_add_u32 m0, m0, 4096")
        A(f"s_add_u32 {s(sSRC)}, {s(sSRC)}, 4096")
XP = [WR_, WR_+2, WI_, WI_+2]
A(f"""
s_cmp_lg_u32 {s(sW)}, 4
s_cbranch_scc1 L_posted
s_sub_u32 {s(sT[3])}, s2, {HOST}
s_cmp_ge_u32 {s(sT[3])}, 2
s_cbranch_scc1 L_posted
s_cmp_eq_u32 {s(sT[3])}, 0
s_cbranch_scc1 L_xa
s_waitcnt vmcnt(0)
""")
lds_bit(4, sONE)
A(f"""
L_xa:
s_mul_i32 {s(sT[2])}, {s(sT[3])}, {64*CP}
s_add_u32 {s(sT[2])}, {s(sT[2])}, {C1+SPW*4*CP}
s_mov_b32 {s(sCNT)}, 0x8000
L_pollx:
""")
for i in range(4):
    A(f"s_mov_b64 {s(XP[i],2)}, 0")
    A(f"s_atomic_or_x2 {s(XP[i],2)}, {s(WS_,2)}, {s(sT[2])} offset:{i*CP} glc")
A(f"""
s_sub_u32 {s(sCNT)}, {s(sCNT)}, 1
s_cbranch_scc1 L_pollx_out
s_waitcnt lgkmcnt(0)
""")
for i in range(4):
    A(f"s_cmp_lg_u32 {s(XP[i]+1)}, {s(sTAG)}")
    A("s_cbranch_scc1 L_pollx")
A(f"""
s_and_b32 {s(XP[0])}, {s(XP[0])}, {s(XP[1])}
s_and_b32 {s(XP[2])}, {s(XP[2])}, {s(XP[3])}
s_and_b32 {s(XP[0])}, {s(XP[0])}, {s(XP[2])}
s_bitcmp1_b32 {s(XP[0])}, 21
s_cbranch_scc0 L_pollx
L_pollx_out:
""")
if OPT['xprio']: A("s_setprio 3")
A(f"""
s_mov_b32 {s(sFA)}, 1
s_mov_b32 {s(sFC)}, 0
s_mov_b32 {s(sFB)}, 1
s_lshl_b32 {s(sT[2])}, {s(sT[3])}, 13
s_add_u32 {s(sT[0])}, {s(sT[2])}, {WX}
s_add_u32 {s(sT[1])}, {s(sT[0])}, 4096
s_lshl_b32 {s(sDST)}, {s(sT[3])}, 14
s_add_u32 {s(sDST)}, {s(sDST)}, {T2X}
s_add_u32 {s(sT[2])}, {s(sT[2])}, {T1X}
v_lshlrev_b32 {v(aD)}, 4, {v(vL)}
v_lshlrev_b32 {v(aW)}, 6, {v(c_)}
v_lshl_add_u32 {v(aW)}, {v(g_)}, 4, {v(aW)}
s_mov_b32 {s(sOI)}, {XOUT}
v_add_u32 {v(aRe)}, {EXOFF}, {v(aD)}
s_mov_b32 m0, {EXOFF}
""")
for n in range(8):
    A(f"buffer_load_dwordx4 {v(aD)}, {srd(WS_)}, {s(sT[2])} offen sc1 lds")
    if n < 7:
        A(f"s_add_u32 m0, m0, 4096")
        A(f"s_add_u32 {s(sT[2])}, {s(sT[2])}, 1024")
for t in range(8):
    A(f"buffer_load_dwordx4 {v(ER+4*t,4)}, {v(aW)}, {srd(WS_)}, {s(sT[t>>2])} offen offset:{(t&3)*1024} sc1")
A("s_waitcnt vmcnt(16)")
lds_bit(4, sONE)
A("s_branch L_p2common")
A.label("L_posted")
A(f"""
s_cmp_lt_u32 {s(sW)}, {8-NST}
s_cselect_b32 {s(sPH)}, 1, 0
s_waitcnt vmcnt(0)
""")
lds_bit(4, sBIT)
A.label("L_setup3")
A3 = 237
aD3, aPw, aQ1, aQ0, aRd3, aSo, aQp = range(A3, A3+7)
aT = list(range(A3+9, A3+13))
sMR, sS3 = sT[2], sT[3]
A(f"""
v_lshrrev_b32 {v(PH)}, 1, {v(vL)}
v_xor_b32 {v(PH)}, {v(PH)}, {v(vL)}
v_and_b32 {v(PH)}, 4, {v(PH)}
v_mul_u32_u24 {v(PH)}, 3, {v(PH)}
v_xor_b32 {v(PH)}, {v(PH)}, {v(vL)}
v_lshlrev_b32 {v(vS1)}, 4, {v(PH)}
v_add_u32 {v(vS1)}, {T1OFF}, {v(vS1)}
v_and_b32 {v(aSo)}, 15, {v(PH)}
v_lshlrev_b32 {v(aSo)}, 6, {v(aSo)}
v_and_b32 {v(PH)}, 1, {v(g_)}
v_lshl_add_u32 {v(aSo)}, {v(PH)}, 5, {v(aSo)}
v_lshrrev_b32 {v(PH)}, 1, {v(g_)}
v_lshl_add_u32 {v(aSo)}, {v(PH)}, 4, {v(aSo)}
""")
load_tables(vS1)
A(f"""
v_lshrrev_b32 {v(PH)}, 2, {v(c_)}
v_lshl_add_u32 {v(PH)}, {v(PH)}, 7, {s(sSB)}
v_cvt_f32_u32 {v(PH)}, {v(PH)}
v_mul_f32 {v(PH)}, {fbits(1/2048)}, {v(PH)}
v_add_f32 {v(PH+1)}, {fbits(0.25)}, {v(PH)}
v_and_b32 {v(PH+2)}, 1, {v(c_)}
v_cvt_f32_u32 {v(PH+2)}, {v(PH+2)}
v_mul_f32 {v(PH+2)}, {fbits(-0.25)}, {v(PH+2)}
v_add_f32 {v(PH+3)}, {fbits(-0.125)}, {v(PH+2)}
v_add_f32 {v(PH+2)}, {fbits(0.125)}, {v(PH+2)}
v_and_b32 {v(PH+4)}, 2, {v(c_)}
v_lshlrev_b32 {v(PH+4)}, 30, {v(PH+4)}
v_xor_b32 {v(PH+2)}, {v(PH+4)}, {v(PH+2)}
v_xor_b32 {v(PH+3)}, {v(PH+4)}, {v(PH+3)}
v_lshlrev_b32 {v(PH+4)}, 1, {v(g_)}
v_cvt_f32_u32 {v(PH+4)}, {v(PH+4)}
v_add_f32 {v(PH+5)}, 1.0, {v(PH+4)}
v_add_f32 {v(PH+6)}, {fbits(8.0)}, {v(PH+4)}
v_add_f32 {v(PH+7)}, {fbits(9.0)}, {v(PH+4)}
""")
for mt in range(2):
    for j in range(4):
        t = TMP + (mt*4+j)*3
        A(f"v_fma_f32 {v(t)}, {v(PH+mt)}, {v(PH+4+j)}, {v(PH+2+(j&1))}")
        A(f"v_cos_f32 {v(t+1)}, {v(t)}")
        A(f"v_sin_f32 {v(t+2)}, {v(t)}")
for mt in range(2):
    for j in range(4):
        t = TMP + (mt*4+j)*3
        cvt(M3+mt*4+j, t+1, t+2, False, True)
A(f"""
v_lshrrev_b32 {v(PH)}, 3, {v(vL)}
v_and_b32 {v(PH+1)}, 3, {v(PH)}
v_lshlrev_b32 {v(PH+1)}, 6, {v(PH+1)}
v_lshl_add_u32 {v(PH)}, {v(PH)}, 8, {v(PH+1)}
v_and_b32 {v(PH+1)}, 3, {v(vL)}
v_lshl_add_u32 {v(PH)}, {v(PH+1)}, 4, {v(PH)}
v_and_b32 {v(PH+1)}, 4, {v(vL)}
v_lshl_add_u32 {v(PH)}, {v(PH+1)}, 1, {v(PH)}
v_add_u32 {v(aT[0])}, {s(sW12)}, {v(PH)}
v_xor_b32 {v(aT[1])}, 64, {v(aT[0])}
v_xor_b32 {v(aT[2])}, 128, {v(aT[0])}
v_xor_b32 {v(aT[3])}, 192, {v(aT[0])}
v_mul_u32_u24 {v(PH)}, {PS2}, {v(g_)}
s_lshl_b32 {s(sT[0])}, {s(sW)}, 8
s_add_u32 {s(sT[1])}, {s(sT[0])}, {EX2}
s_sub_u32 {s(sT[0])}, {EX2+15*256}, {s(sT[0])}
v_lshl_add_u32 {v(aPw)}, {v(c_)}, 3, {v(PH)}
v_add_u32 {v(aPw)}, {s(sT[1])}, {v(aPw)}
v_sub_u32 {v(PH+1)}, 16, {v(c_)}
v_lshl_add_u32 {v(PH+1)}, {v(PH+1)}, 3, {v(PH)}
v_add_u32 {v(aQp)}, {s(sT[0])}, {v(PH+1)}
v_cmp_eq_u32 vcc, 0, {v(c_)}
v_mov_b32 {v(PH+2)}, 128
v_mov_b32 {v(PH+3)}, 132
v_mov_b32 {v(PH+4)}, -124
v_cndmask_b32 {v(PH+4)}, {v(PH+2)}, {v(PH+4)}, vcc
v_cndmask_b32 {v(PH+3)}, {v(PH+3)}, {v(PH+2)}, vcc
v_add_u32 {v(aQ1)}, {v(aQp)}, {v(PH+4)}
v_add_u32 {v(aQ0)}, {v(aQp)}, {v(PH+3)}
s_mul_i32 {s(sT[0])}, {s(sW)}, {PS2}
s_add_u32 {s(sT[0])}, {s(sT[0])}, {EX2}
v_and_b32 {v(PH+1)}, 31, {v(vL)}
v_lshrrev_b32 {v(PH+2)}, 5, {v(vL)}
v_lshlrev_b32 {v(PH+3)}, 9, {v(PH+2)}
v_lshl_add_u32 {v(PH+3)}, {v(PH+1)}, 3, {v(PH+3)}
v_add_u32 {v(aRd3)}, {s(sT[0])}, {v(PH+3)}
s_lshl_b32 {s(sO[0])}, {s(sW)}, 7
s_add_u32 {s(sO[0])}, {s(sO[0])}, {s(sSB)}
s_lshl_b32 {s(sO[0])}, {s(sO[0])}, 12
s_lshl_b32 {s(sO[1])}, {s(sM)}, 11
s_add_u32 {s(sO[0])}, {s(sO[0])}, {s(sO[1])}
s_add_u32 {s(sO[1])}, {s(sO[0])}, {1024*4096}
s_mov_b32 {s(sPM)}, 0x05040100
s_mov_b32 {s(sPM+1)}, 0x07060302
""")
A(f"""
v_lshlrev_b32 {v(PH)}, 2, {v(g_)}
v_xor_b32 {v(PH)}, {v(PH)}, {v(c_)}
v_lshlrev_b32 {v(PH)}, 4, {v(PH)}
v_lshl_add_u32 {v(aD3)}, {v(g_)}, 8, {v(PH)}
s_lshl_b32 {s(sMR)}, {s(sM)}, 7
s_add_u32 {s(sMR)}, {s(sMR)}, {s(sRHO)}
s_lshl_b32 {s(sS3)}, {s(sMR)}, 15
s_add_u32 {s(sS3)}, {s(sS3)}, {s(sW12)}
s_add_u32 {s(sS3)}, {s(sS3)}, {T2}
s_cmp_lg_u32 {s(sPH)}, 0
s_cbranch_scc1 L_nosig2
""")
aR0, aR1, aS2, aPr = vT[2], vT[3], vT[4], vT[5]
sD = sT[4:5]
A(f"""
v_bfe_u32 {v(aR0)}, {v(vL)}, 2, 2
v_mul_u32_u24 {v(aR0)}, {OS}, {v(aR0)}
v_lshl_add_u32 {v(aR0)}, {v(g_)}, 6, {v(aR0)}
v_and_b32 {v(aR1)}, 3, {v(vL)}
v_mul_u32_u24 {v(aPr)}, 260, {v(aR1)}
v_add_u32 {v(aPr)}, {PGOFF}, {v(aPr)}
v_lshrrev_b32 {v(aS2)}, 5, {v(vL)}
v_xor_b32 {v(aR1)}, {v(aR1)}, {v(aS2)}
v_lshl_add_u32 {v(aR0)}, {v(aR1)}, 4, {v(aR0)}
s_sub_u32 {s(sT[8])}, 7, {s(sW)}
s_lshl_b32 {s(sT[0])}, {s(sT[8])}, 10
s_add_u32 {s(sT[0])}, {s(sT[0])}, {WOFF}
v_add_u32 {v(aR0)}, {s(sT[0])}, {v(aR0)}
v_xor_b32 {v(aR1)}, 32, {v(aR0)}
v_lshlrev_b32 {v(aS2)}, 15, {v(g_)}
v_lshl_add_u32 {v(aS2)}, {v(c_)}, 4, {v(aS2)}
s_lshl_b32 {s(sD[0])}, {s(sM)}, 22
s_lshl_b32 {s(sT[0])}, {s(sT[8])}, 19
s_add_u32 {s(sD[0])}, {s(sD[0])}, {s(sT[0])}
s_lshl_b32 {s(sT[0])}, {s(sGRP)}, 12
s_add_u32 {s(sD[0])}, {s(sD[0])}, {s(sT[0])}
s_lshl_b32 {s(sT[0])}, {s(sA)}, 8
s_add_u32 {s(sD[0])}, {s(sD[0])}, {s(sT[0])}
s_add_u32 {s(sD[0])}, {s(sD[0])}, {T2}
s_add_u32 {s(sT[0])}, {s(sM8)}, {s(sGRP)}
s_lshl_b32 {s(sT[0])}, {s(sT[0])}, 3
s_add_u32 {s(sT[0])}, {s(sT[0])}, {s(sT[8])}
s_mul_i32 {s(sT[0])}, {s(sT[0])}, {CP}
s_add_u32 {s(sT[0])}, {s(sT[0])}, {C2}
""")
NR = -(-8 // NST)
for i in range(NR):
    if NST*i + NST > 8:
        A(f"s_cmp_ge_u32 {s(sT[8])}, 8")
        A("s_cbranch_scc1 L_short")
    A(f"""
    s_mov_b32 {s(sCNT)}, 0x40000
    L_pg{i}:
    ds_read_b32 {v(vS1)}, {v(aPr)}
    s_sub_u32 {s(sCNT)}, {s(sCNT)}, 1
    s_cbranch_scc1 L_pg{i}_out
    {('s_sleep %d' % OPT['slp']) if i == 0 and OPT['slp'] else ''}
    s_waitcnt lgkmcnt(0)
    v_cmp_ge_u32 vcc, {s(sT[8])}, {v(vS1)}
    s_and_b64 vcc, vcc, vcc
    s_cbranch_scc1 L_pg{i}
    L_pg{i}_out:
    """)
    d = D1R + 16*i
    for j in range(4): A(f"ds_read_b128 {v(d+4*j,4)}, {v(aR1 if j & 1 else aR0)} offset:{i*NST*1024+j*256}")
    A(f"s_add_u32 {s(sT[8])}, {s(sT[8])}, {NST}")
    for j in range(4):
        A(f"s_waitcnt lgkmcnt({3-j})")
        A(f"buffer_store_dwordx4 {v(d+4*j,4)}, {v(aS2)}, {srd(WS_)}, {s(sD[0])} offen sc1")
        A(f"s_add_u32 {s(sD[0])}, {s(sD[0])}, {(4 if j < 3 else 16*NST-12) << 15}")
for i in range(NR):
    A(f"s_waitcnt vmcnt({4*(NR-1-i)})")
    signal(sT[0], NST*i*CP)
if 8 % NST:
    A("s_branch L_nosig2")
    A.label("L_short")
    for i in range(NR-1):
        A(f"s_waitcnt vmcnt({4*(NR-2-i)})")
        signal(sT[0], NST*i*CP)
A.label("L_nosig2")
stamp("fl2")
A("s_barrier")
A(f"s_mov_b32 m0, {s(sW12)}")
poll("L_poll2", sC2, 16, OPT['sl2'])
stamp("pol2")
for j in range(4):
    A(f"buffer_load_dwordx4 {v(aD3)}, {srd(WS_)}, {s(sS3)} offen offset:{j*1024} sc1 lds")
A(f"""
s_cmp_lg_u32 {s(sW)}, 4
s_cbranch_scc1 L_noep
s_cmp_lg_u32 s2, {HOST+1}
s_cbranch_scc1 L_noep
s_mov_b32 {s(sT[4])}, {EW}
s_atomic_swap {s(sTAG)}, {s(WS_,2)}, {s(sT[4])}
s_waitcnt lgkmcnt(0)
L_noep:
""")
GB = [(8, 8), (40, 8), (88, 8), (16, 4), (28, 4)]
GS = [r + i for r, n in GB for i in range(n)]
def granule_loads():
    off = 0
    for r, n in GB:
        A(f"s_load_dwordx{n} {s(r,n)}, {s(WS_,2)}, {s(sT[4])} offset:{off} glc"); off += 4*n
A(f"""
s_cmp_lg_u32 {s(sW)}, 0
s_cbranch_scc1 L_nosp3a
s_lshl_b32 {s(sT[4])}, {s(sMR)}, 7
s_add_u32 {s(sT[4])}, {s(sT[4])}, {T2X}
""")
granule_loads()
A.label("L_nosp3a")
for i in range(16):
    A(f"v_perm_b32 {v(GR+i)}, {v(FN+i//2)}, {v(FC+i//2)}, {s(sPM+(i&1))}")
    A(f"v_perm_b32 {v(GI+i)}, {v(FC+i//2)}, {v(FS+i//2)}, {s(sPM+(i&1))}")
A(f"""
s_cmp_lg_u32 {s(sW)}, 0
s_cbranch_scc1 L_nosp3b
s_mov_b32 {s(sCNT)}, 0x8000
s_branch L_gchk
L_gagain:
s_sub_u32 {s(sCNT)}, {s(sCNT)}, 1
s_cbranch_scc1 L_gok
""")
granule_loads()
A.label("L_gchk")
A("s_waitcnt lgkmcnt(0)")
for i in range(16):
    A(f"s_cmp_lg_u32 {s(GS[2*i+1])}, {s(sTAG)}")
    A("s_cbranch_scc1 L_gagain")
A.label("L_gok")
for h in range(2):
    for g in range(4):
        for q in range(2):
            A(f"v_writelane_b32 {v(TMP+4+2*h+q)}, {s(GS[h*16+g*4+2*q])}, {16*g}")
m16(D2R, M3, TMP+4, None); m16(D2R+4, M3+4, TMP+4, None)
A.label("L_nosp3b")
A("s_waitcnt vmcnt(0)")
stamp("dat2", (1, 3))
for t in (0, 2, 1, 3):
    for jj in range(2):
        A(f"ds_read_b64_tr_b16 {v(XR+4*t+2*jj,2)}, {v(aT[t])} offset:{jj*2048}")
for i, t in enumerate((0, 2, 1, 3)):
    A(f"s_waitcnt lgkmcnt({6-2*i})")
    m16(D1R+8*t, M3, XR+4*t, None); m16(D1R+8*t+4, M3+4, XR+4*t, None)
A(f"""
s_cmp_lg_u32 {s(sW)}, 0
s_cbranch_scc1 L_nofix
s_mov_b32 exec_lo, 0x00010001
s_mov_b32 exec_hi, 0x00010001
""")
for d in (D2R, D1R):
    for mt in range(2):
        for i in range(2):
            A(f"v_add_f32 {v(d+4*mt+i)}, {v(d+4*mt+i)}, {v(d+4*mt+2+i)}")
            A(f"v_mul_f32 {v(d+4*mt+i)}, 0.5, {v(d+4*mt+i)}")
cvt(TMP, D2R, D2R+1); cvt(TMP+1, D2R+4, D2R+5)
A(f"""
ds_write_b32 {v(aPw)}, {v(TMP)} offset:{8*256}
ds_write_b32 {v(aPw)}, {v(TMP+1)} offset:{8*256+4*PS2}
s_mov_b64 exec, -1
L_nofix:
s_nop 1
""")
for tp in range(2):
    for mt in range(2):
        d0 = D1R + 8*tp + 4*mt; d1 = d0 + 16
        o = TMP + 8 + (tp*2+mt)*4
        cvt(o, d0, d0+1); cvt(o+1, d1, d1+1); cvt(o+2, d1+2, d1+3); cvt(o+3, d0+2, d0+3)
for tp in range(2):
    for mt in range(2):
        o = TMP + 8 + (tp*2+mt)*4
        A(f"ds_write_b64 {v(aPw)}, {v(o,2)} offset:{mt*4*PS2+tp*128}")
        if tp == 1:
            A(f"ds_write_b64 {v(aQp)}, {v(o+2,2)} offset:{mt*4*PS2}")
        else:
            A(f"ds_write_b32 {v(aQ1)}, {v(o+2)} offset:{mt*4*PS2}")
            A(f"ds_write_b32 {v(aQ0)}, {v(o+3)} offset:{mt*4*PS2}")
A("s_waitcnt lgkmcnt(0)")
A("s_barrier")
stamp("bar3", (1, 3))
for t in range(4):
    for j in range(2):
        A(f"ds_read_b64 {v(XR+4*t+2*j,2)}, {v(aRd3)} offset:{t*1024+j*256}")
for t in range(4):
    A(f"s_waitcnt lgkmcnt({6-2*t})")
    m32(D1R, XR+4*t, GR+4*t, D1R if t else None)
A("s_nop 4")
weave([M32(D1I, XR+4*t, GI+4*t, D1I if t else None) for t in range(4)], ["s_nop 4"] + TW1(D1R, True), [1, 6, 6, 99])
stamp("m3", (3,))
for t_ in TW2(D1I, XR, XI, True, 0, 8): A(t_)
weave([M32(D2R, XR, FC, None), M32(D2R, XI, FN, D2R), M32(D2I, XR, FS, None), M32(D2I, XI, FC, D2I)], TW2(D1I, XR, XI, True, 8, 16), 6)
weave([M32(D2R, XR+4, FC+4, D2R), M32(D2R, XI+4, FN+4, D2R), M32(D2I, XR+4, FS+4, D2I), M32(D2I, XI+4, FC+4, D2I)], [], 0)
stamp("m4", (3,))
for comp, d in ((0, D2R), (1, D2I)):
    o = TMP + comp*8
    for q in (0, 4, 1, 5, 2, 6, 3, 7): cvt(o+q, d+2*q, d+2*q+1)
    for q in range(4): A(f"v_permlane16_swap_b32 {v(o+q)}, {v(o+4+q)}")
    for j in range(2):
        A(f"buffer_store_dwordx4 {v(o+4*j,4)}, {v(aSo)}, {srd(OUT_)}, {s(sO[comp])} offen offset:{j*1024}{OUTM}")
if OPT['stamp']:
    stamp("st3", (1, 3))
    A("s_waitcnt vmcnt(0)")
    stamp("end")
    A("s_waitcnt lgkmcnt(0)")
    if OPT['prd']:
        A(f"""
        s_load_dwordx2 s[8:9], s[0:1], 64
        s_mov_b32 s10, {256 << 20}
        s_mov_b32 s11, 0x20000
        s_lshl3_add_u32 {s(sT[4])}, s2, {s(sW)}
        s_lshl_b32 {s(sT[4])}, {s(sT[4])}, 12
        s_add_u32 {s(sT[4])}, {s(sT[4])}, {OPT['poff'] << 20}
        v_lshlrev_b32 v2, 4, {v(vL)}
        s_waitcnt lgkmcnt(0)
        """)
        for j in range(4): A(f"buffer_load_dwordx4 v[20:23], v2, s[8:11], {s(sT[4])} offen offset:{j*1024} sc1")
        A("s_waitcnt vmcnt(0)")
    if OPT['probe'] in (1, 2):
        e_ = sST + 2*(len(stamps)-1)
        A(f"""
        s_load_dwordx2 s[8:9], s[0:1], 64
        s_mov_b32 s10, {256 << 20}
        s_mov_b32 s11, 0x20000
        s_add_u32 {s(sT[0])}, {s(sST)}, 1800
        s_lshl3_add_u32 {s(sT[4])}, s2, {s(sW)}
        s_lshl_b32 {s(sT[4])}, {s(sT[4])}, 12
        s_add_u32 {s(sT[4])}, {s(sT[4])}, {OPT['poff'] << 20}
        v_lshlrev_b32 v2, 4, {v(vL)}
        L_pw:
        s_memrealtime {s(sT[2],2)}
        s_waitcnt lgkmcnt(0)
        s_sub_u32 {s(sT[1])}, {s(sT[0])}, {s(sT[2])}
        s_cmp_gt_i32 {s(sT[1])}, 0
        s_cbranch_scc1 L_pw
        s_memrealtime {s(sST+2,2)}
        """)
        for j in range(4): A(f"buffer_store_dwordx4 v[16:19], v2, s[8:11], {s(sT[4])} offen offset:{j*1024} sc1")
        A(f"""
        s_waitcnt vmcnt(0)
        s_memrealtime {s(e_,2)}
        """)
        if OPT['probe'] == 2:
            A(f"s_xor_b32 {s(sT[4])}, {s(sT[4])}, {3 << 15}")
            A("s_sleep 64")
            for j in range(4): A(f"buffer_load_dwordx4 v[20:23], v2, s[8:11], {s(sT[4])} offen offset:{j*1024} sc1")
            A("s_waitcnt vmcnt(0)")
        A("s_waitcnt lgkmcnt(0)")
    n = len(stamps)
    assert sST + 2*n <= 88, n
    if OPT['diag']:
        da, db = OPT['da'], OPT['db']
        A(f"""
        s_load_dwordx2 s[94:95], s[0:1], 56
        s_and_b32 {s(sT[4])}, s2, 7
        s_lshl_b32 {s(sT[4])}, {s(sT[4])}, 3
        s_not_b32 {s(sT[11])}, {s(sST)}
        s_waitcnt lgkmcnt(0)
        s_cmp_lg_u32 {s(sW)}, {OPT['wa']}
        s_cbranch_scc1 L_dg1
        s_atomic_umax {s(sST+2*da) if da else s(sT[11])}, s[94:95], {s(sT[4])}
        L_dg1:
        s_cmp_lg_u32 {s(sW)}, {OPT['wb']}
        s_cbranch_scc1 L_end
        s_atomic_umax {s(sST+2*db)}, s[94:95], {s(sT[4])} offset:4
        s_cmp_lg_u32 s2, 100
        s_cbranch_scc1 L_end
        s_add_u32 {s(sT[0])}, {s(sST+2*(n-1))}, 500
        L_amp0:
        s_memrealtime {s(sT[2],2)}
        s_waitcnt lgkmcnt(0)
        s_sub_u32 {s(sT[1])}, {s(sT[0])}, {s(sT[2])}
        s_cmp_gt_i32 {s(sT[1])}, 0
        s_cbranch_scc1 L_amp0
        s_load_dwordx16 s[60:75], s[94:95], 0 glc
        s_waitcnt lgkmcnt(0)
        """)
        for i in range(1, 8):
            A(f"s_max_u32 s60, s60, s{60+2*i}")
            A(f"s_max_u32 s61, s61, s{61+2*i}")
        if not da: A("s_not_b32 s60, s60")
        A(f"""
        s_sub_u32 {s(sT[1])}, s61, s60
        s_lshl_b32 {s(sT[1])}, {s(sT[1])}, 4
        s_min_u32 {s(sT[1])}, {s(sT[1])}, 60000
        s_add_u32 {s(sT[0])}, {s(sT[0])}, {s(sT[1])}
        L_amp:
        s_memrealtime {s(sT[2],2)}
        s_waitcnt lgkmcnt(0)
        s_sub_u32 {s(sT[1])}, {s(sT[0])}, {s(sT[2])}
        s_cmp_gt_i32 {s(sT[1])}, 0
        s_cbranch_scc1 L_amp
        s_branch L_end
        """)
    A(f"s_lshl_b32 {s(sT[0])}, s2, 3")
    A(f"s_add_u32 {s(sT[0])}, {s(sT[0])}, {s(sW)}")
    A(f"s_lshl_b32 {s(sT[0])}, {s(sT[0])}, 7")
    A(f"s_add_u32 {s(sT[0])}, {s(sT[0])}, {STAMP}")
    A("v_mov_b32 v3, 0")
    A("s_mov_b64 exec, 1")
    for i in range(n):
        A(f"v_mov_b32 v2, {s(sST+2*i)}")
        A(f"buffer_store_dword v2, v3, {srd(WS_)}, {s(sT[0])} offen offset:{i*4}")
    A.raw("; stamps: " + " ".join(stamps))
A.label("L_end")
A("s_endpgm")
def kd(name, nv, ns):
    A.raw(f""".p2align 6
.amdhsa_kernel {name}
  .amdhsa_next_free_vgpr {nv}
  .amdhsa_next_free_sgpr {ns}
  .amdhsa_accum_offset {nv}
  .amdhsa_group_segment_fixed_size 0
  .amdhsa_kernarg_size 72
  .amdhsa_user_sgpr_count 2
  .amdhsa_user_sgpr_kernarg_segment_ptr 1
  .amdhsa_system_sgpr_workgroup_id_x 1
  .amdhsa_float_denorm_mode_32 3
.end_amdhsa_kernel""")
A.raw('.section .rodata,"a"')
kd(NAME + "_kernel", 256, 102)
if OPT['lst']: kd("empty_kernel", 8, 16)
open(sys.argv[1], "w").write(A.text())
print(sys.argv[1], "nops:", A.nops, "stamps:", len(stamps), file=sys.stderr)
```

```python
import sys, struct
import numpy as np
from asmlib import Asm, v, s

NAME = "concat_heads__spectral_gfnet__spectral_gfnet__prompt"
OPT = dict(outm=1, xnt=0, wnt=0, swz=0, wsoff=0, probe=0, poff=64, pbuf=0, pit=0, prd=0, tlb=0, tls=16, diag=0, da=0, db=0, wa=0, wb=0, ne=3, xpf=0, gh=1, xprio=0, slp=2, nst=3, gpos=1, xl=8, stag=2, neb=3, amp=0, ampw=0, stamp=0, sl1=0, sl2=0, lst=0, half=0)
for a_ in sys.argv[2:]:
    k_, v_ = a_.split('='); assert k_ in OPT, k_; OPT[k_] = int(v_)

def fbits(x): return "0x%08x" % struct.unpack('<I', struct.pack('<f', x))[0]
def bf16(x):
    u = np.asarray(x, dtype=np.float32).view(np.uint32)
    return ((u + 0x7FFF + ((u >> 16) & 1)) >> 16).astype(np.uint32)

AUX = 0
XB = AUX + 0x30000
CP = 256
C1 = AUX + 0x10000
C2 = AUX + 0x20000
EW = AUX + 0xa0000
STAMP = AUX + 0x100000
WSZ = 2 << 20
EXOFF = 32768
PS = 5184
WOFF = EXOFF + 8 * PS
M2OFF = WOFF + 36864
SYOFF = M2OFF + 32768
PGOFF = SYOFF + 64
T1OFF = PGOFF + 2048
LDSZ = T1OFF + 14336
EX2 = EXOFF
OS = 8320
XOUT = EXOFF + 32768
PS2 = 4160
sW, sM, sRHO, sSB, sA, sGRP = 3, 4, 5, 6, 7, 32
X_, WR_, WI_, OUT_, WS_, TAB_ = 8, 12, 16, 20, 24, 28
sCNT = 33
sT = list(range(34, 48))
sV = 48
sEXP = 50
sTAG = 51
sW12, sM8, sE, sROLE, sC1, sC2 = 52, 53, 54, 55, 56, 57
sPM = 58
sST = 60
sO = [96, 97]
sU = [98, 99, 100, 101]
sONE = sU[2]
srd = lambda b: s(b, 4)

A = Asm()
SWM = 7 if OPT['swz'] else 0
AROW = 128 * 4096
HOST = 128
NST = OPT['nst']
XNT = ' nt' if OPT['xnt'] else ''
WNT = ' nt' if OPT['wnt'] else ''
OUTM = ['', ' sc1', ' nt', ' sc0 sc1', ' sc1 nt', ' sc0 sc1 nt'][OPT['outm']]
def M32(d, a, b, c): return f"v_mfma_f32_32x32x16_bf16 {v(d,16)}, {v(a,4)}, {v(b,4)}, {v(c,16) if c is not None else 0}"
def M16(d, a, b, c): return f"v_mfma_f32_16x16x32_bf16 {v(d,4)}, {v(a,4)}, {v(b,4)}, {v(c,4) if c is not None else 0}"
def CVT(d, a, b, na=False, nb=False): return f"v_cvt_pk_bf16_f32 {v(d)}, {'-' if na else ''}{v(a)}, {'-' if nb else ''}{v(b)}"
def m32(*a): A(M32(*a))
def m16(*a): A(M16(*a))
def cvt(*a): A(CVT(*a))
def weave(mf, fill, per):
    fill = list(fill)
    for i, m in enumerate(mf):
        A(m)
        n = per[i] if isinstance(per, (list, tuple)) else per
        for _ in range(n):
            if fill: A(fill.pop(0))
    for f in fill: A(f)
stamps = []
def stamp(name, sets=(1,)):
    st = OPT['stamp']
    if name in ("start", "end"):
        if st: A(f"s_memrealtime {s(sST + 2*len(stamps), 2)}"); stamps.append(name)
        if st > 1: A(f"s_memtime {s(sST + 2*len(stamps), 2)}"); stamps.append("c" + name)
    elif st in sets:
        if name not in stamps: stamps.append(name)
        if OPT['probe'] == 3 and name in ('bar3', 'st3'): return
        A(f"{'s_memrealtime' if st == 1 else 's_memtime'} {s(sST + 2*stamps.index(name), 2)}")

vL, c_, g_ = 1, 2, 3
vT = list(range(2, 16))
TC, TS = 16, 32
FC, FS, FN = 48, 56, 64
M3 = 72
GR, GI = 80, 96
XR, XI = 112, 120
D1R, D1I = 128, 144
D2R, D2I = 160, 176
TMP = 192
PH = 224
WRF, WIF = 16, 48
FR = 80
DRE, DIM, DNR = 144, 160, 176
ER, EI = 192, 224

def peek(off, imm=0):
    A(f"s_mov_b64 {s(sV,2)}, 0")
    A(f"s_atomic_or_x2 {s(sV,2)}, {s(WS_,2)}, {s(off)} glc" if not imm else f"s_atomic_or_x2 {s(sV,2)}, {s(WS_,2)}, {s(off)} offset:{imm} glc")
def poll(label, off, count, sleep, imm=0, keep=None):
    A(f"s_mov_b32 {s(sEXP)}, {count}")
    A(f"s_mov_b32 {s(sCNT)}, 0x8000")
    A.label(label)
    peek(off, imm)
    A(f"s_sub_u32 {s(sCNT)}, {s(sCNT)}, 1")
    A(f"s_cbranch_scc1 {label}_out")
    if sleep: A(f"s_sleep {sleep}")
    A("s_waitcnt lgkmcnt(0)")
    if keep is not None:
        A(f"s_mov_b32 {s(keep)}, {s(sV)}")
        A(f"s_and_b32 {s(sV)}, {s(sV)}, 0xffff")
    A(f"s_cmp_eq_u64 {s(sV,2)}, {s(sEXP,2)}")
    A(f"s_cbranch_scc0 {label}")
    A.label(label + "_out")
def validate(label, off, imm=0):
    A(f"s_mov_b32 {s(sCNT)}, 0x8000")
    A.label(label)
    A("s_waitcnt lgkmcnt(0)")
    A(f"s_cmp_eq_u32 {s(sV+1)}, {s(sTAG)}")
    A(f"s_cbranch_scc1 {label}_out")
    peek(off, imm)
    A(f"s_sub_u32 {s(sCNT)}, {s(sCNT)}, 1")
    A(f"s_cbranch_scc0 {label}")
    A("s_waitcnt lgkmcnt(0)")
    A.label(label + "_out")
def signal(off, imm=0):
    A(f"s_atomic_add {s(sONE)}, {s(WS_,2)}, {s(off)}" + (f" offset:{imm}" if imm else ""))

vSY, vS1, vPG = vT[12], vT[13], vT[11]
def lds_wait(label, off, val):
    A(f"s_mov_b32 {s(sCNT)}, 0x40000")
    A.label(label)
    A(f"ds_read_b32 {v(vS1)}, {v(vSY)} offset:{off}")
    A(f"s_sub_u32 {s(sCNT)}, {s(sCNT)}, 1")
    A(f"s_cbranch_scc1 {label}_out")
    A("s_waitcnt lgkmcnt(0)")
    A(f"v_cmp_gt_u32 vcc, {val}, {v(vS1)}")
    A("s_and_b64 vcc, vcc, vcc")
    A(f"s_cbranch_scc1 {label}")
    A.label(label + "_out")
def lds_bit(off, sbit):
    A(f"v_mov_b32 {v(vS1)}, {s(sbit)}")
    A("s_mov_b64 exec, 1")
    A(f"ds_or_b32 {v(vSY)}, {v(vS1)} offset:{off}")
    A("s_mov_b64 exec, -1")
def lds_post(off, rtn=False):
    A(f"v_mov_b32 {v(vS1)}, 1")
    A("s_mov_b64 exec, 1")
    if rtn: A(f"ds_add_rtn_u32 {v(vS1)}, {v(vSY)}, {v(vS1)} offset:{off}")
    else: A(f"ds_add_u32 {v(vSY)}, {v(vS1)} offset:{off}")
    A("s_mov_b64 exec, -1")

sWB, sI = sU[0], sU[3]
aWM, aWT = GR + 4, GR + 5
nlab = [0]
def w_piece(e):
    if e < 4:
        A(f"s_add_u32 m0, {s(sT[13])}, {WOFF + e*9216}")
        if e & 1: A(f"s_add_u32 {s(sI)}, {s(sT[12])}, {64*16416}")
        A(f"buffer_load_dwordx4 {v(aWM)}, {srd(WI_ if e >> 1 else WR_)}, {s(sI if e & 1 else sT[12])} offen{WNT} lds")
    else:
        n = nlab[0]; nlab[0] += 1
        A(f"""
        s_mul_i32 {s(sI)}, {s(sW)}, 9216
        s_add_u32 m0, {s(sI)}, {WOFF + 8192}
        s_and_b32 {s(sI)}, {s(sW)}, 1
        s_mul_i32 {s(sI)}, {s(sI)}, {64*16416}
        s_add_u32 {s(sI)}, {s(sI)}, {s(sWB)}
        s_bitcmp1_b32 {s(sW)}, 1
        s_cbranch_scc1 L_t1_{n}
        buffer_load_dwordx4 {v(aWT)}, {srd(WR_)}, {s(sI)} offen{WNT} lds
        s_branch L_t2_{n}
        L_t1_{n}:
        buffer_load_dwordx4 {v(aWT)}, {srd(WI_)}, {s(sI)} offen{WNT} lds
        L_t2_{n}:
        """)
def w_base(sw):
    A(f"s_mul_i32 {s(sT[12])}, {s(sw)}, {7*16416}")
    A(f"s_add_u32 {s(sT[12])}, {s(sT[12])}, {s(sWB)}")
    A(f"s_lshl_b32 {s(sT[13])}, {s(sw)}, 10")

def gen_m2(sW):
    G = D2R
    kf, s0, af, bf, ai, bi, ad = G, G+1, G+2, G+3, G+4, G+5, G+6
    P, C_, S_ = D1R, D1R+16, G+8
    A(f"""
    s_and_b32 {s(sT[12])}, {s(sW)}, 1
    s_lshl_b32 {s(sT[12])}, {s(sT[12])}, 4
    s_lshr_b32 {s(sT[13])}, {s(sW)}, 1
    v_add_u32 {v(kf)}, {s(sT[12])}, {v(c_)}
    v_lshl_add_u32 {v(ai)}, {v(kf)}, 2, {s(sT[13])}
    v_lshl_add_u32 {v(s0)}, {v(g_)}, 4, {s(sT[13])}
    v_mul_u32_u24 {v(bf)}, {v(s0)}, {v(kf)}
    v_mul_u32_u24 {v(bi)}, {v(g_)}, {v(ai)}
    v_cvt_f32_u32 {v(af)}, {v(kf)}
    v_cvt_f32_u32 {v(ai)}, {v(ai)}
    v_cvt_f32_u32 {v(bf)}, {v(bf)}
    v_cvt_f32_u32 {v(bi)}, {v(bi)}
    v_mul_f32 {v(bf)}, {fbits(1/128)}, {v(bf)}
    v_mul_f32 {v(bi)}, {fbits(1/32)}, {v(bi)}
    s_lshl_b32 {s(sT[12])}, {s(sW)}, 11
    s_add_u32 {s(sT[12])}, {s(sT[12])}, {M2OFF}
    v_lshl_add_u32 {v(ad)}, {v(vL)}, 4, {s(sT[12])}
    """)
    for d in range(2):
        for i in range(8):
            c = 16*(i >> 2) + (i & 3)
            A(f"v_fmamk_f32 {v(P+8*d+i)}, {v(ai if d else af)}, {fbits(c/128 if d else c/32)}, {v(bi if d else bf)}")
    for i in range(16):
        A(f"v_cos_f32 {v(C_+i)}, {v(P+i)}")
        A(f"v_sin_f32 {v(S_+i)}, {v(P+i)}")
    for d in range(2):
        for j in range(4):
            cvt(P+8*d+j, C_+8*d+2*j, C_+8*d+2*j+1)
            cvt(P+8*d+4+j, S_+8*d+2*j, S_+8*d+2*j+1)
    for d in range(2):
        for cs in range(2):
            A(f"ds_write_b128 {v(ad)}, {v(P+8*d+4*cs,4)} offset:{d*16384+cs*1024}")

def load_tables(addr):
    for i in (8, 9, 10, 11, 12, 13, 0, 4, 1, 5, 2, 6, 3, 7):
        A(f"ds_read_b128 {v(TC+4*i,4)}, {v(addr)} offset:{i*1024}")

def TW1(dr, conj):
    L = []
    for i in range(16):
        L.append(f"v_mul_f32 {v(TMP+i)}, {v(dr+i)}, {v(TC+i)}")
        L.append(f"v_mul_f32 {v(TMP+16+i)}, {v(dr+i)}, {v(TS+i)}" if conj else f"v_mul_f32_e64 {v(TMP+16+i)}, -{v(dr+i)}, {v(TS+i)}")
    return L
def TW2(di, outr, outi, conj, lo, hi):
    L = []
    for i in range(lo, hi, 2):
        for e in range(2):
            L.append(f"v_fma_f32 {v(TMP+i+e)}, -{v(di+i+e)}, {v(TS+i+e)}, {v(TMP+i+e)}" if conj else f"v_fmac_f32 {v(TMP+i+e)}, {v(di+i+e)}, {v(TS+i+e)}")
            L.append(f"v_fmac_f32 {v(TMP+16+i+e)}, {v(di+i+e)}, {v(TC+i+e)}")
        L.append(CVT(outr + i//2, TMP+i, TMP+i+1))
        L.append(CVT(outi + i//2, TMP+16+i, TMP+16+i+1))
    return L

if OPT['lst'] == 0: A.raw(f"; @launch grid=(256,1,1) block=(512,1,1) lds={LDSZ}")
else:
    A.raw(f"; @launch kernel={NAME}_kernel grid=(256,1,1) block=(512,1,1) lds={LDSZ}")
    A.raw(f"; @launch kernel=empty_kernel grid=(1,1,1) block=(64,1,1) lds=0")
A.raw('.amdgcn_target "amdgcn-amd-amdhsa--gfx950"\n.text')
if OPT['lst']: A.raw(".globl empty_kernel\n.p2align 8\n.type empty_kernel,@function\nempty_kernel:\n s_endpgm")
A.raw(f".globl {NAME}_kernel\n.p2align 8\n.type {NAME}_kernel,@function")
A.label(f"{NAME}_kernel")
aL16 = GR + 1
A(f"""
s_cmp_ge_u32 s2, 256
s_cbranch_scc1 L_end
s_bfe_u32 {s(sM)}, s2, 0x10003
s_mul_i32 {s(sT[0])}, {s(sM)}, 24
s_load_dwordx2 {s(X_,2)}, s[0:1], {s(sT[0])}
s_load_dwordx2 {s(WS_,2)}, s[0:1], 64
s_load_dwordx2 {s(WR_,2)}, s[0:1], {s(sT[0])} offset:8
s_load_dwordx2 {s(WI_,2)}, s[0:1], {s(sT[0])} offset:16
s_load_dwordx2 {s(OUT_,2)}, s[0:1], 48
""")
PF_ = 40
if OPT['xpf']:
    A(f"""
    s_sub_u32 {s(sT[0])}, 24, {s(sT[0])}
    s_load_dwordx2 {s(88,2)}, s[0:1], {s(sT[0])} offset:8
    s_load_dwordx2 {s(92,2)}, s[0:1], {s(sT[0])} offset:16
    """)
stamp("start")
A(f"""
v_lshrrev_b32 v2, 6, v0
v_and_b32 {v(vL)}, 63, v0
s_and_b32 {s(sT[1])}, s2, 7
v_readfirstlane_b32 {s(sW)}, v2
s_lshr_b32 {s(sT[2])}, s2, 4
s_lshl_b32 {s(sRHO)}, {s(sT[1])}, 4
s_add_u32 {s(sRHO)}, {s(sRHO)}, {s(sT[2])}
s_and_b32 {s(sSB)}, {s(sRHO)}, 31
s_lshr_b32 {s(sT[5])}, {s(sRHO)}, 5
s_lshl2_add_u32 {s(sSB)}, {s(sSB)}, {s(sT[5])}
v_lshlrev_b32 {v(aL16)}, 4, {v(vL)}
s_mov_b32 {s(X_+2)}, 4194304
s_mov_b32 {s(X_+3)}, 0x20000
s_lshl_b32 {s(sO[0])}, {s(sW)}, 7
s_add_u32 {s(sO[0])}, {s(sO[0])}, {s(sSB)}
s_lshl_b32 {s(sO[0])}, {s(sO[0])}, 11
s_add_u32 {s(sO[1])}, {s(sO[0])}, 0x200000
s_lshl_b32 {s(sW12)}, {s(sW)}, 12
s_mov_b32 m0, {s(sW12)}
s_getpc_b64 {s(TAB_,2)}
L_pc:
s_mov_b32 {s(TAB_+2)}, L_end-L_pc
s_mov_b32 {s(TAB_+3)}, 0x20000
v_lshlrev_b32 v3, 11, v2
s_lshl_b32 {s(sT[6])}, {s(sT[2])}, 7
buffer_load_dword {v(GR)}, v3, {srd(TAB_)}, {s(sT[6])} offen
s_lshl_b32 {s(sA)}, {s(sT[1])}, 1
""")
if OPT['xpf']:
    A(f"""
    s_lshl3_add_u32 {s(sPM)}, {s(sT[2])}, {s(sW)}
    s_lshl4_add_u32 {s(sPM)}, {s(sPM)}, {s(sA)}
    s_mul_i32 {s(sPM)}, {s(sPM)}, 1026
    v_lshlrev_b32 {v(GR+2)}, 7, {v(vL)}
    v_min_u32 {v(GR+2)}, 2048, {v(GR+2)}
    s_mov_b32 s90, 2101248
    s_mov_b32 s91, 0x20000
    s_mov_b32 s94, 2101248
    s_mov_b32 s95, 0x20000
    """)
A("s_waitcnt lgkmcnt(0)")
stamp("karg", (4,))
if OPT['probe'] == 3:
    A(f"""
    s_mov_b32 {s(WS_+2)}, {256 << 20}
    s_mov_b32 {s(WS_+3)}, 0x20000
    s_lshl3_add_u32 {s(sT[4])}, s2, {s(sW)}
    s_lshl_b32 {s(sT[4])}, {s(sT[4])}, 12
    s_add_u32 {s(sT[4])}, {s(sT[4])}, {OPT['poff'] << 20}
    """)
    if OPT['pit']:
        A(f"""
        s_lshl_b32 {s(sT[4])}, {s(sM)}, 7
        s_add_u32 {s(sT[4])}, {s(sT[4])}, {s(sW)}
        s_mul_i32 {s(sT[4])}, {s(sT[4])}, {OPT['pit']}
        s_lshl_b32 {s(sT[3])}, {s(sRHO)}, 8
        s_add_u32 {s(sT[4])}, {s(sT[4])}, {s(sT[3])}
        s_add_u32 {s(sT[4])}, {s(sT[4])}, {OPT['poff'] << 20}
        v_lshrrev_b32 v20, 4, {v(vL)}
        v_mul_u32_u24 v20, {8*OPT['pit']}, v20
        v_and_b32 v21, 15, {v(vL)}
        v_lshl_add_u32 v20, v21, 4, v20
        """)
    A(f"""
    s_add_u32 {s(sT[0])}, {s(sST)}, {OPT['pbuf']}
    L_pw0:
    s_memrealtime s[84:85]
    s_waitcnt lgkmcnt(0)
    s_sub_u32 {s(sT[3])}, {s(sT[0])}, s84
    s_cmp_gt_i32 {s(sT[3])}, 0
    s_cbranch_scc1 L_pw0
    """)
    if OPT['pit'] == 0:
        for j in range(4): A(f"buffer_store_dwordx4 v[16:19], {v(aL16)}, {srd(WS_)}, {s(sT[4])} offen offset:{j*1024} sc1")
    else:
        for j in range(4):
            A(f"buffer_store_dwordx4 v[16:19], v20, {srd(WS_)}, {s(sT[4])} offen sc1")
            A(f"s_add_u32 {s(sT[4])}, {s(sT[4])}, {32*OPT['pit']}")
    A(f"""
    s_waitcnt vmcnt(0)
    s_memrealtime s[82:83]
    s_sleep 32
    s_waitcnt lgkmcnt(0)
    """)
sX0, sX1 = sO
XISS = f"""
buffer_load_dwordx4 {v(aL16)}, {srd(X_)}, {s(sX0)} offen{XNT} lds
buffer_load_dwordx4 {v(aL16)}, {srd(X_)}, {s(sX0)} offen offset:1024{XNT} lds
s_add_u32 m0, {s(sW12)}, 2048
buffer_load_dwordx4 {v(aL16)}, {srd(X_)}, {s(sX1)} offen{XNT} lds
buffer_load_dwordx4 {v(aL16)}, {srd(X_)}, {s(sX1)} offen offset:1024{XNT} lds
"""
aPF = GR + 2
sPF = sPM
XPF = f"""
buffer_load_dword {v(GR)}, {v(aPF)}, s[88:91], {s(sPF)} offen
buffer_load_dword {v(GR)}, {v(aPF)}, s[92:95], {s(sPF)} offen
"""
if OPT['xpf']:
    A(f"""
    s_cmp_eq_u32 {s(sM)}, 0
    s_cbranch_scc1 L_nopf
    {XPF}
    s_barrier
    L_nopf:
    """)
if OPT['stag']:
    A(f"s_cmp_lg_u32 {s(sM)}, 0")
    A("s_cbranch_scc1 L_xlate")
A(XISS)
A.label("L_xlate")
stamp("xiss", (4,))
A(f"""
s_lshr_b32 {s(sT[3])}, {s(sW)}, 1
s_and_b32 {s(sT[4])}, {s(sW)}, 1
s_lshl_b32 {s(sT[6])}, {s(sT[3])}, 2
s_add_u32 {s(sT[6])}, {s(sT[6])}, {s(sT[4])}
s_lshl_b32 {s(sT[6])}, {s(sT[6])}, 1
v_lshrrev_b32 {v(PH)}, 5, {v(vL)}
v_and_b32 {v(PH+1)}, 31, {v(vL)}
v_lshl_add_u32 {v(PH)}, {v(PH)}, 2, {s(sT[6])}
v_mul_u32_u24 {v(PH)}, {v(PH)}, {v(PH+1)}
v_add_u32 {v(PH+1)}, {v(PH)}, {v(PH+1)}
v_cvt_f32_u32 {v(PH)}, {v(PH)}
v_cvt_f32_u32 {v(PH+1)}, {v(PH+1)}
v_mul_f32 {v(PH+2)}, {fbits(1/32)}, {v(PH)}
v_mul_f32 {v(PH+3)}, {fbits(1/32)}, {v(PH+1)}
v_cos_f32 {v(PH+8)}, {v(PH+2)}
v_cos_f32 {v(PH+9)}, {v(PH+3)}
v_sin_f32 {v(PH+10)}, {v(PH+2)}
v_sin_f32 {v(PH+11)}, {v(PH+3)}
v_mul_f32 {v(PH)}, {fbits(1/32)}, {v(PH+2)}
v_mul_f32 {v(PH+1)}, {fbits(1/32)}, {v(PH+3)}
v_cos_f32 {v(PH+4)}, {v(PH)}
v_cos_f32 {v(PH+5)}, {v(PH+1)}
v_sin_f32 {v(PH+6)}, {v(PH)}
v_sin_f32 {v(PH+7)}, {v(PH+1)}
{CVT(PH+12, PH+8, PH+9)}
{CVT(PH+13, PH+10, PH+11)}
{CVT(PH+14, PH+10, PH+11, True, True)}
v_add_u32 {v(vS1)}, {T1OFF}, {v(aL16)}
s_lshl_b32 {s(sT[3])}, {s(sT[3])}, 10
s_lshl3_add_u32 {s(sT[3])}, {s(sT[4])}, {s(sT[3])}
v_add_u32 {v(PH)}, {s(sT[3])}, {v(vS1)}
s_lshr_b32 {s(sT[3])}, {s(sW)}, 2
s_lshl_b32 {s(sT[3])}, {s(sT[3])}, 10
s_and_b32 {s(sT[4])}, {s(sW)}, 3
s_lshl2_add_u32 {s(sT[3])}, {s(sT[4])}, {s(sT[3])}
v_add_u32 {v(PH+1)}, {s(sT[3])}, {v(vS1)}
v_mov_b32 {v(vSY)}, {SYOFF}
v_mov_b32 v8, 0
v_mov_b32 v9, 0
v_mov_b32 v10, 0
v_mov_b32 v11, 0
v_lshlrev_b32 {v(vPG)}, 2, v0
v_add_u32 {v(vPG)}, {PGOFF}, {v(vPG)}
ds_write_b64 {v(PH)}, {v(PH+4,2)}
ds_write_b64 {v(PH)}, {v(PH+6,2)} offset:4096
ds_write_b32 {v(PH+1)}, {v(PH+12)} offset:8192
ds_write_b32 {v(PH+1)}, {v(PH+13)} offset:10240
ds_write_b32 {v(PH+1)}, {v(PH+14)} offset:12288
ds_write_b128 {v(vSY)}, v[8:11]
ds_write_b128 {v(vSY)}, v[8:11] offset:16
ds_write_b32 {v(vPG)}, v8
s_add_u32 {s(WS_)}, {s(WS_)}, {OPT['wsoff'] << 20}
s_addc_u32 {s(WS_+1)}, {s(WS_+1)}, 0
s_mov_b32 {s(WS_+2)}, {WSZ}
s_mov_b32 {s(WS_+3)}, 0x20000
s_mov_b32 {s(WR_+2)}, 2101248
s_mov_b32 {s(WR_+3)}, 0x20000
s_mov_b32 {s(WI_+2)}, 2101248
s_mov_b32 {s(WI_+3)}, 0x20000
s_mov_b32 {s(OUT_+2)}, 8388608
s_mov_b32 {s(OUT_+3)}, 0x20000
s_lshl_b32 {s(sM8)}, {s(sM)}, 3
s_mov_b32 {s(sT[6])}, {EW}
s_waitcnt lgkmcnt(0)
s_load_dword {s(sE)}, {s(WS_,2)}, {s(sT[6])}
""")
stamp("tgen", (4,))
A("s_barrier")
stamp("tbar", (4,))
load_tables(vS1)
def late_x():
    A(f"s_cmp_eq_u32 {s(sM)}, 0")
    A("s_cbranch_scc1 L_xdone")
    A(XISS)
    A.label("L_xdone")
if OPT['stag'] == 1: late_x()
stamp("xis2", (4,))
aG = GR + 3
sG = sU[1]
SPW = 3
sX16 = sROLE
A(f"""
s_lshl_b32 {s(sC1)}, {s(sM)}, 4
s_add_u32 {s(sC1)}, {s(sC1)}, {s(sW)}
s_lshl_b32 {s(sC1)}, {s(sC1)}, 2
s_add_u32 {s(sC1)}, {s(sC1)}, {s(sT[5])}
s_mul_i32 {s(sC1)}, {s(sC1)}, {CP}
s_add_u32 {s(sC1)}, {s(sC1)}, {C1}
s_mov_b32 {s(sX16)}, 0x10000
s_add_u32 {s(sC2)}, {s(sM8)}, {s(sW)}
s_lshl_b32 {s(sC2)}, {s(sC2)}, 3
s_add_u32 {s(sC2)}, {s(sC2)}, {s(sT[1])}
s_mul_i32 {s(sC2)}, {s(sC2)}, {CP}
s_add_u32 {s(sC2)}, {s(sC2)}, {C2}
""")
A(f"""
s_lshr_b32 {s(sT[6])}, {s(sT[2])}, 3
s_add_u32 {s(sA)}, {s(sA)}, {s(sT[6])}
s_and_b32 {s(sGRP)}, {s(sT[2])}, 7
v_and_b32 {v(c_)}, 15, {v(vL)}
v_lshrrev_b32 {v(g_)}, 4, {v(vL)}
v_lshrrev_b32 v9, 2, {v(c_)}
v_and_b32 v10, 1, {v(c_)}
v_lshl_add_u32 v9, v9, 1, v10
v_and_b32 v10, 2, {v(c_)}
v_lshl_add_u32 v9, v10, 2, v9
v_mul_u32_u24 {v(aG)}, 1026, v9
s_mul_i32 {s(sG)}, {s(sRHO)}, 16416
""")
A(f"""
v_lshrrev_b32 {v(PH)}, 1, {v(c_)}
v_and_b32 {v(PH+1)}, 1, {v(PH)}
s_bfe_u32 {s(sT[0])}, {s(sRHO)}, 0x10002
v_and_b32 {v(PH+2)}, 1, {v(c_)}
v_xor_b32 {v(PH+2)}, {s(sT[0])}, {v(PH+2)}
v_sub_u32 {v(PH+2)}, {v(PH+2)}, {v(PH+1)}
v_cvt_f32_i32 {v(PH+2)}, {v(PH+2)}
v_mov_b32 {v(PH+3)}, {fbits(0.125)}
v_fmamk_f32 {v(PH+2)}, {v(PH+2)}, {fbits(0.25)}, {v(PH+3)}
v_mul_u32_u24 {v(PH+1)}, 0x8000, {v(PH+1)}
v_lshl_or_b32 {v(PH+1)}, {v(PH+1)}, 16, {v(PH+1)}
v_cvt_f32_u32 {v(PH)}, {v(PH)}
v_add_f32 {v(PH+3)}, {fbits(8.0)}, {v(PH)}
v_lshl_add_u32 {v(PH+4)}, {v(g_)}, 8, {s(sSB)}
v_cvt_f32_u32 {v(PH+4)}, {v(PH+4)}
v_mul_f32 {v(PH+4)}, {fbits(1/2048)}, {v(PH+4)}
v_add_f32 {v(PH+5)}, {fbits(1/16)}, {v(PH+4)}
""")
for mt in range(2):
    for e in range(2):
        t = PH + 8 + (mt*2+e)*3
        A(f"v_fma_f32 {v(t)}, {v(PH+4+e)}, {v(PH if mt == 0 else PH+3)}, {v(PH+2)}")
        A(f"v_cos_f32 {v(t+1)}, {v(t)}")
        A(f"v_sin_f32 {v(t+2)}, {v(t)}")
for mt in range(2):
    for e in range(2):
        t = PH + 8 + (mt*2+e)*3
        cvt(M3 + mt*4 + 2*e, t+1, t+2)
        cvt(M3 + mt*4 + 2*e + 1, t+2, t+1)
        A(f"v_xor_b32 {v(M3 + mt*4 + 2*e + 1)}, {v(PH+1)}, {v(M3 + mt*4 + 2*e + 1)}")
if OPT['stag'] == 2: late_x()
aTR, aP, aQe, aQo, aRD, aST = vT[2:8]
sS1 = sT[8:12]
A(f"""
v_bfe_u32 {v(PH)}, {v(vL)}, 2, 2
v_lshrrev_b32 {v(PH+1)}, 5, {v(vL)}
v_lshl_add_u32 {v(PH)}, {v(PH+1)}, 2, {v(PH)}
v_lshlrev_b32 {v(PH)}, 6, {v(PH)}
v_and_b32 {v(PH+2)}, 16, {v(vL)}
v_lshl_add_u32 {v(PH)}, {v(PH+2)}, 1, {v(PH)}
v_and_b32 {v(PH+2)}, 3, {v(vL)}
v_lshl_add_u32 {v(PH)}, {v(PH+2)}, 3, {v(PH)}
v_add_u32 {v(aTR)}, {s(sW12)}, {v(PH)}
s_mul_i32 {s(sT[0])}, {s(sW)}, {PS}
s_add_u32 {s(sT[0])}, {s(sT[0])}, {EXOFF}
v_and_b32 {v(PH+3)}, 31, {v(vL)}
v_mul_u32_u24 {v(PH+4)}, 20, {v(PH+2)}
v_lshrrev_b32 {v(PH+5)}, 2, {v(PH+3)}
v_mul_u32_u24 {v(PH+6)}, 160, {v(PH+1)}
v_add3_u32 {v(PH+4)}, {v(PH+4)}, {v(PH+5)}, {v(PH+6)}
v_lshl_add_u32 {v(aP)}, {v(PH+4)}, 3, {s(sT[0])}
v_sub_u32 {v(PH+3)}, 32, {v(PH+3)}
v_and_b32 {v(PH+4)}, 3, {v(PH+3)}
v_mul_u32_u24 {v(PH+4)}, 20, {v(PH+4)}
v_lshrrev_b32 {v(PH+5)}, 2, {v(PH+3)}
v_sub_u32 {v(PH+6)}, 160, {v(PH+6)}
v_add3_u32 {v(PH+4)}, {v(PH+4)}, {v(PH+5)}, {v(PH+6)}
v_lshl_add_u32 {v(aQe)}, {v(PH+4)}, 3, {s(sT[0])}
v_and_b32 {v(PH+3)}, 32, {v(PH+3)}
v_lshl_add_u32 {v(aQo)}, {v(PH+3)}, 4, {v(aQe)}
s_mul_i32 {s(sT[0])}, {s(sW)}, 640
s_add_u32 {s(sT[0])}, {s(sT[0])}, {EXOFF}
v_mul_u32_u24 {v(PH)}, {2*PS}, {v(g_)}
v_lshl_add_u32 {v(PH)}, {v(c_)}, 3, {v(PH)}
v_add_u32 {v(aRD)}, {s(sT[0])}, {v(PH)}
v_lshlrev_b32 {v(PH)}, 20, {v(g_)}
v_lshl_add_u32 {v(aST)}, {v(c_)}, 4, {v(PH)}
s_and_b32 {s(sT[0])}, {s(sRHO)}, {SWM}
s_xor_b32 {s(sT[0])}, {s(sT[0])}, {s(sW)}
s_add_u32 {s(sT[0])}, {s(sT[0])}, {s(sM8)}
s_lshl4_add_u32 {s(sT[0])}, {s(sSB)}, {s(sT[0])}
s_lshl_b32 {s(sS1[0])}, {s(sT[0])}, 8
s_add_u32 {s(sS1[1])}, {s(sS1[0])}, {AROW}
s_add_u32 {s(sS1[2])}, {s(sS1[0])}, {8*AROW}
s_add_u32 {s(sS1[3])}, {s(sS1[0])}, {9*AROW}
s_mul_i32 {s(sWB)}, {s(sA)}, 1026
s_lshl_b32 {s(sT[0])}, {s(sGRP)}, 7
s_add_u32 {s(sWB)}, {s(sWB)}, {s(sT[0])}
s_andn2_b32 {s(sWB)}, {s(sWB)}, 15
""")
if OPT['stag'] == 3: late_x()
A(f"""
v_add_u32 {v(PH)}, {s(sW)}, {v(vL)}
v_mul_u32_u24 {v(PH+1)}, 57, {v(PH)}
v_lshrrev_b32 {v(PH+1)}, 9, {v(PH+1)}
v_mul_u32_u24 {v(PH+1)}, {16416-144}, {v(PH+1)}
v_lshl_add_u32 {v(aWM)}, {v(PH)}, 4, {v(PH+1)}
v_add_u32 {v(PH)}, 8, {v(vL)}
v_mul_u32_u24 {v(PH+1)}, 57, {v(PH)}
v_lshrrev_b32 {v(PH+1)}, 9, {v(PH+1)}
v_mul_u32_u24 {v(PH+1)}, {16416-144}, {v(PH+1)}
v_lshl_add_u32 {v(aWT)}, {v(PH)}, 4, {v(PH+1)}
v_add_u32 {v(aWT)}, {56*16416}, {v(aWT)}
s_mov_b32 {s(sEXP)}, 0
s_mov_b32 {s(sONE)}, 1
s_and_b32 {s(sT[1])}, {s(sRHO)}, 15
s_cbranch_scc1 L_noinit
s_waitcnt lgkmcnt(0)
s_mul_i32 {s(sTAG)}, {s(sE)}, 0x9E3779B1
s_add_u32 {s(sTAG)}, {s(sTAG)}, 0x7F4A7C15
s_atomic_swap_x2 {s(sEXP,2)}, {s(WS_,2)}, {s(sC2)}
s_and_b32 {s(sT[1])}, {s(sRHO)}, 31
s_cbranch_scc1 L_noinit
s_atomic_swap_x2 {s(sEXP,2)}, {s(WS_,2)}, {s(sC1)}
L_noinit:
""")
NE = OPT['ne']
A(f"""
s_cmp_lg_u32 {s(sW)}, {SPW}
s_cbranch_scc1 L_nogather
buffer_load_ushort v11, {v(aG)}, {srd(WR_)}, {s(sG)} offen offset:1024
buffer_load_ushort v12, {v(aG)}, {srd(WI_)}, {s(sG)} offen offset:1024
L_nogather:
""")
stamp('setup', (4,))
NEB = OPT['neb']
if OPT['stag'] in (2, 3): A("s_barrier")
NTL = 0
if OPT['tlb']:
    NTL = 2
    TLS = OPT['tls']
    L = -(-(WSZ >> TLS) // 256)
    A(f"""
    s_andn2_b32 {s(sT[0])}, s2, 7
    s_add_u32 {s(sT[0])}, {s(sT[0])}, {s(sW)}
    s_lshl_b32 {s(sT[0])}, {s(sT[0])}, {TLS}
    s_and_b32 {s(sT[1])}, s2, 7
    s_lshl_b32 {s(sT[1])}, {s(sT[1])}, 7
    s_add_u32 {s(sT[0])}, {s(sT[0])}, {s(sT[1])}
    v_lshlrev_b32 {v(PH)}, {TLS+8}, {v(vL)}
    v_add_u32 {v(PH)}, {s(sT[0])}, {v(PH)}
    v_mov_b32 {v(PH+1)}, 0
    s_mov_b64 exec, {(1 << L) - 1}
    buffer_atomic_or {v(PH+1)}, {v(PH)}, {srd(WS_)}, 0 offen sc1
    buffer_atomic_or {v(PH+1)}, {v(PH)}, {srd(OUT_)}, 0 offen sc1
    s_mov_b64 exec, -1
    """)
w_base(sW)
for e in range(max(NE, NEB)):
    if e == min(NE, NEB):
        A(f"s_cmp_eq_u32 {s(sM)}, {0 if NE < NEB else 1}")
        A("s_cbranch_scc1 L_noearly")
    w_piece(e)
A.label("L_noearly")
NEA = NE
if OPT['xpf'] == 2:
    NEA = NE + 2
    A(f"""
    s_cmp_lg_u32 {s(sM)}, 0
    s_cbranch_scc1 L_nopf2
    {XPF}
    L_nopf2:
    """)
def wait_m(lbl, add):
    lo, hi = min(NEA, NEB) + NTL, max(NEA, NEB) + NTL
    A(f"s_waitcnt vmcnt({hi+add})")
    if lo != hi:
        A(f"s_cmp_eq_u32 {s(sM)}, {0 if NEA > NEB else 1}")
        A(f"s_cbranch_scc1 {lbl}")
        A(f"s_waitcnt vmcnt({lo+add})")
        A.label(lbl)
stamp("wiss", (4,))
wait_m("L_wm0", 2)
A(f"""
s_cmp_eq_u32 {s(sW)}, {SPW}
s_cbranch_scc1 L_xw1
""")
wait_m("L_wm1", 0)
A.label("L_xw1")
stamp("x", (1, 2, 4))
for comp, dst in ((0, XR), (1, XI)):
    for t in range(2):
        for j in range(2):
            A(f"ds_read_b64_tr_b16 {v(dst+4*t+2*j,2)}, {v(aTR)} offset:{comp*2048+t*1024+j*512}")
A("s_waitcnt lgkmcnt(0)")
stamp("tr", (2, 4))
weave([M32(D1R, XR, FC, None), M32(D1R, XR+4, FC+4, D1R), M32(D1R, XI, FS, D1R), M32(D1R, XI+4, FS+4, D1R), M32(D1I, XR, FN, None)],
      [f"s_mul_i32 {s(sTAG)}, {s(sE)}, 0x9E3779B1", f"s_add_u32 {s(sTAG)}, {s(sTAG)}, 0x7F4A7C15", "s_nop 4", "s_nop 4"], [2, 0, 0, 1, 1])
weave([M32(D1I, XR+4, FN+4, D1I), M32(D1I, XI, FC, D1I), M32(D1I, XI+4, FC+4, D1I)], TW1(D1R, False), [6, 6, 99])
stamp("m1", (2,))
for t_ in TW2(D1I, XR, XI, False, 0, 8): A(t_)
stamp("tw", (2,))
weave([M32(D2R, FC, XR, None), M32(D2I, FN, XR, None), M32(D2R, FS, XI, D2R), M32(D2I, FC, XI, D2I)], TW2(D1I, XR, XI, False, 8, 16), 6)
weave([M32(D2R, FC+4, XR+4, D2R), M32(D2I, FN+4, XR+4, D2I), M32(D2R, FS+4, XI+4, D2R), M32(D2I, FC+4, XI+4, D2I)], [], 0)
stamp("m2", (2,))
for i in range(16):
    cvt(TMP+i, D2R+i, D2I+i)
stamp("cv", (2,))
for i in range(16):
    kd2 = 8*(i >> 2) + (i & 3)
    if i < 8:
        A(f"ds_write_b32 {v(aP)}, {v(TMP+i)} offset:{(80*(kd2>>1)+8*(kd2&1))*8}")
    else:
        e = 31 - kd2 - 4
        A(f"ds_write_b32 {v(aQo if e & 1 else aQe)}, {v(TMP+i)} offset:{(80*(e>>1)+8*(e&1))*8+4}")
A(f"""
s_mov_b64 exec, 1
ds_write_b32 {v(aP)}, {v(TMP)} offset:4
ds_write_b32 {v(aP)}, {v(TMP+8)} offset:{640*8}
s_mov_b64 exec, -1
""")
stamp("wr", (2,))
A("s_waitcnt lgkmcnt(0)")
stamp("wrd", (2,))
A("s_barrier")
stamp("bar1", (1, 2, 4))
A(f"""
s_cmp_lg_u32 {s(sW)}, {SPW}
s_cbranch_scc1 L_nosp1
v_mul_u32_u24 {v(PH)}, {2*PS}, {v(g_)}
ds_read_b64 {v(XR,2)}, {v(PH)} offset:{EXOFF+640*8}
ds_read_b64 {v(XR+2,2)}, {v(PH)} offset:{EXOFF+640*8+PS}
s_lshl4_add_u32 {s(sT[0])}, {s(sM8)}, {s(sRHO)}
s_lshl_b32 {s(sT[0])}, {s(sT[0])}, 7
s_add_u32 {s(sT[0])}, {s(sT[0])}, {XB}
v_lshlrev_b32 {v(PH+1)}, 2, {v(vL)}
v_lshlrev_b32 {v(PH+2)}, 4, {v(g_)}
""")
wait_m("L_wm2", 0)
A(f"""
v_lshl_or_b32 v11, v12, 16, v11
s_mov_b64 exec, 0xffff
buffer_store_dword v11, {v(PH+1)}, {srd(WS_)}, {s(sT[0])} offen offset:64 sc1
s_mov_b64 exec, -1
s_waitcnt lgkmcnt(0)
""")
m16(D1R, M3, XR, None); m16(D1R+4, M3+4, XR, None)
cvt(TMP, D1R, D1R+2); cvt(TMP+1, D1R+4, D1R+6); cvt(TMP+2, D1R+1, D1R+3); cvt(TMP+3, D1R+5, D1R+7)
A(f"""
s_mov_b32 exec_lo, 0x00010001
s_mov_b32 exec_hi, 0x00010001
buffer_store_dwordx4 {v(TMP,4)}, {v(PH+2)}, {srd(WS_)}, {s(sT[0])} offen sc1
s_mov_b64 exec, -1
L_nosp1:
""")
for t in range(4):
    for jj in range(2):
        A(f"ds_read_b64 {v(XR+4*t+2*jj,2)}, {v(aRD)} offset:{160*t+PS*jj}")
for t in range(4):
    A(f"s_waitcnt lgkmcnt({6-2*t})")
    m16(D1R+8*t, M3, XR+4*t, None)
peek(sC1)
for t in range(4):
    m16(D1R+8*t+4, M3+4, XR+4*t, None)
for mt in range(2):
    for al in range(2):
        o = TMP + 4 + (mt*2+al)*4
        d = D1R + 4*mt + 2*al
        cvt(o, d, d+8); cvt(o+2, d+1, d+9); cvt(o+1, d+16, d+24); cvt(o+3, d+17, d+25)
    for al in range(2):
        o = TMP + 4 + (mt*2+al)*4
        A(f"buffer_store_dwordx4 {v(o,4)}, {v(aST)}, {srd(OUT_)}, {s(sS1[mt*2+al])} offen sc1")
stamp("st1", (2,))
sPH = sE
A(f"""
s_barrier
""")
A(f"s_mov_b32 {s(sPH)}, 1")
GH = OPT['gh']
if GH:
    A(f"""
    s_cmp_lt_u32 {s(sW)}, 4
    s_cbranch_scc1 L_nogen
    s_sub_u32 {s(sI)}, {s(sW)}, {4 if GH == 2 else 0}
    L_gen:
    """)
    gen_m2(sI)
    if GH == 2:
        A(f"""
        s_add_u32 {s(sI)}, {s(sI)}, 4
        s_cmp_lt_u32 {s(sI)}, 8
        s_cbranch_scc1 L_gen
        """)
    lds_post(12)
    if GH == 1:
        A(f"s_cmp_lt_u32 {s(sW)}, 4")
        A("s_cbranch_scc1 L_genret")
    A.label("L_nogen")
validate("L_val1", sC1)
A(f"""
s_cmp_lg_u32 {s(sW)}, {SPW}
s_cbranch_scc1 L_nosp2
s_waitcnt vmcnt(4)
s_atomic_add {s(sX16)}, {s(WS_,2)}, {s(sC1)}
L_nosp2:
s_waitcnt vmcnt(0)
""")
signal(sC1)
stamp("fl1")
aW, aF, aRe, aIm, aO, aD = vT[2:8]
sFA, sFB, sFC, sDST, sOI, sDONE, sNEW, sMK = sT[4:12]
A(f"""
s_cmp_ge_u32 {s(sW)}, 4
s_cbranch_scc1 L_helper
""")
assert max(NE, NEB) < 5
w_piece(4)
w_base(sW)
for hh in range(2):
    for e in range(3, min(NE, NEB) - 1, -1):
        if e == max(NE, NEB) - 1:
            A(f"s_cmp_eq_u32 {s(sM)}, {1 if NE < NEB else 0}")
            A(f"s_cbranch_scc1 L_nolate{hh}")
        w_piece(e)
    A.label(f"L_nolate{hh}")
    if hh == 0:
        A(f"""
        v_add_u32 {v(PH)}, {s(sW)}, {v(vL)}
        v_add_u32 {v(PH)}, 4, {v(PH)}
        v_mul_u32_u24 {v(PH+1)}, 57, {v(PH)}
        v_lshrrev_b32 {v(PH+1)}, 9, {v(PH+1)}
        v_mul_u32_u24 {v(PH+1)}, {16416-144}, {v(PH+1)}
        v_lshl_add_u32 {v(aWM)}, {v(PH)}, 4, {v(PH+1)}
        s_add_u32 {s(sT[12])}, {s(sT[12])}, {28*16416}
        s_add_u32 {s(sT[13])}, {s(sT[13])}, 4096
        """)
if GH == 1:
    A(f"s_mov_b32 {s(sI)}, {s(sW)}")
    A("s_branch L_gen")
    A.label("L_genret")
if GH == 0:
    A(f"s_mov_b32 {s(sI)}, {s(sW)}")
    A.label("L_gen")
    gen_m2(sI)
    A(f"""
    s_add_u32 {s(sI)}, {s(sI)}, 4
    s_cmp_lt_u32 {s(sI)}, 8
    s_cbranch_scc1 L_gen
    """)
    lds_post(12)
A(f"""
s_mov_b32 {s(sFA)}, 0
s_and_b32 {s(sFC)}, {s(sA)}, 7
s_mov_b32 {s(sFB)}, 0
s_mul_i32 {s(sOI)}, {s(sW)}, {OS}
s_add_u32 {s(sOI)}, {s(sOI)}, {WOFF}
v_lshrrev_b32 {v(aRe)}, 2, {v(vL)}
v_and_b32 {v(aF)}, 3, {v(aRe)}
v_xor_b32 {v(aF)}, {s(sW)}, {v(aF)}
v_lshlrev_b32 {v(aRe)}, 8, {v(aRe)}
v_lshl_add_u32 {v(aRe)}, {v(aF)}, 6, {v(aRe)}
v_and_b32 {v(aF)}, 3, {v(vL)}
v_lshl_add_u32 {v(aRe)}, {v(aF)}, 4, {v(aRe)}
s_lshl_b32 {s(sT[0])}, {s(sW)}, 5
s_add_u32 {s(sT[0])}, {s(sT[0])}, {WOFF}
v_min_u32 {v(aW)}, 2, {v(g_)}
v_mul_u32_u24 {v(aF)}, 144, {v(c_)}
v_lshl_add_u32 {v(aW)}, {v(aW)}, 4, {v(aF)}
v_add_u32 {v(aW)}, {s(sT[0])}, {v(aW)}
""")
A.label("L_p2common")
A(f"v_lshlrev_b32 {v(aF)}, 4, {v(vL)}")
A(f"v_add_u32 {v(aF)}, {M2OFF}, {v(aF)}")
SEL = DNR
A(f"""
v_lshlrev_b32 {v(DIM)}, {s(sFA)}, {v(c_)}
v_lshlrev_b32 {v(DIM+1)}, 3, {v(g_)}
v_sub_u32 {v(DIM)}, {v(DIM)}, {v(DIM+1)}
v_add_u32 {v(DIM)}, {s(sFC)}, {v(DIM)}
v_add_u32 {v(DIM+1)}, {s(sFB)}, {v(DIM)}
v_mov_b32 {v(DIM+4)}, 0x3500
""")
for q in range(2):
    A(f"v_and_b32 {v(DIM+2)}, 1, {v(DIM+q)}")
    A(f"v_lshlrev_b32 {v(DIM+2)}, 4, {v(DIM+2)}")
    A(f"v_lshlrev_b32 {v(DIM+2)}, {v(DIM+2)}, {v(DIM+4)}")
    A(f"v_ashrrev_i32 {v(DIM+3)}, 1, {v(DIM+q)}")
    for j in range(4):
        A(f"v_cmp_eq_u32 vcc, {j}, {v(DIM+3)}")
        A(f"v_cndmask_b32 {v(SEL+4*q+j)}, 0, {v(DIM+2)}, vcc")
A(f"""
v_and_b32 {v(aIm)}, 1, {v(g_)}
v_lshl_add_u32 {v(aRe)}, {v(aIm)}, 3, {v(aRe)}
v_xor_b32 {v(aIm)}, 8, {v(aRe)}
v_bfe_u32 {v(aO)}, {v(vL)}, 1, 2
v_xor_b32 {v(aO)}, {v(aO)}, {v(g_)}
v_lshlrev_b32 {v(aO)}, 4, {v(aO)}
v_lshl_add_u32 {v(aO)}, {v(c_)}, 6, {v(aO)}
v_add_u32 {v(aO)}, {s(sOI)}, {v(aO)}
v_mov_b32 {v(vT[9])}, 1
s_mov_b32 {s(sT[0])}, 0x80008000
s_mov_b32 {s(sDONE)}, 0
""")
if OPT['gpos'] == 1: lds_wait("L_fr", 12, 8 if GH == 1 else 4)
for f in range(16):
    A(f"ds_read_b128 {v(FR+4*f,4)}, {v(aF)} offset:{f*1024}")
A(f"""
s_waitcnt vmcnt(0)
s_cmp_lt_u32 {s(sW)}, 4
s_cbranch_scc1 L_wreg
""")
for t in range(8):
    m16(WRF+4*t, ER+4*t, SEL, None); m16(WIF+4*t, ER+4*t, SEL+4, None)
A(f"s_movk_i32 {s(sMK)}, 0xff")
A("s_branch L_dspx")
A.label("L_wreg")
lds_post(0)

lds_wait("L_wr", 0, 8)
for t in range(16):
    if t == 12: A("s_waitcnt lgkmcnt(8)")
    A(f"ds_read_b128 {v(ER+4*t,4)}, {v(aW)} offset:{t*2304}")
A(f"s_lshl_b32 {s(sMK)}, 16, {s(sW)}")
lds_bit(4, sMK)
for t in range(16):
    if t >= 4: A(f"s_waitcnt lgkmcnt({16-t})")
    m16(WRF+4*t, ER+4*t, SEL, None)
stamp("wcv", (1,))
A(f"""
s_mov_b32 {s(sCNT)}, 0x40000
L_dsp:
ds_read_b32 {v(vS1)}, {v(vSY)} offset:4
s_sub_u32 {s(sCNT)}, {s(sCNT)}, 1
s_cbranch_scc1 L_fwd_done
s_waitcnt lgkmcnt(0)
v_readfirstlane_b32 {s(sMK)}, {v(vS1)}
L_dspx:
s_andn2_b32 {s(sNEW)}, {s(sMK)}, {s(sDONE)}
s_cbranch_scc0 L_dsp
""")
stamp("dat1", (1, 3))
for u in range(4):
    A(f"s_bitcmp1_b32 {s(sNEW)}, {u}")
    A(f"s_cbranch_scc0 L_nr{u}")
    for j in range(2): A(f"ds_read_b64_tr_b16 {v(DRE+4*u+2*j,2)}, {v(aRe)} offset:{u*8192+j*4096}")
    for j in range(2): A(f"ds_read_b64_tr_b16 {v(DIM+4*u+2*j,2)}, {v(aIm)} offset:{u*8192+j*4096}")
    A.label(f"L_nr{u}")
A(f"s_or_b32 {s(sDONE)}, {s(sDONE)}, {s(sNEW)}")
A("s_waitcnt lgkmcnt(0)")
for u in range(4):
    A(f"s_bitcmp1_b32 {s(sNEW)}, {u}")
    A(f"s_cbranch_scc0 L_nm{u}")
    fc = lambda mt: FR + (u*4 + mt*2) * 4
    fs = lambda mt: FR + (u*4 + mt*2 + 1) * 4
    e = lambda mt: (u*2 + mt) * 4
    weave([M16(ER+e(0), fc(0), DRE+4*u, None), M16(ER+e(1), fc(1), DRE+4*u, None),
           M16(EI+e(0), fc(0), DIM+4*u, None), M16(EI+e(1), fc(1), DIM+4*u, None),
           M16(ER+e(0), fs(0), DIM+4*u, ER+e(0)), M16(ER+e(1), fs(1), DIM+4*u, ER+e(1)),
           M16(EI+e(0), fs(0), DNR+4*u, EI+e(0)), M16(EI+e(1), fs(1), DNR+4*u, EI+e(1))],
          [f"v_xor_b32 {v(DNR+4*u+j)}, {s(sT[0])}, {v(DRE+4*u+j)}" for j in range(4)], 2)
    for f in range(4*u, 4*u+4): A(f"ds_read_b128 {v(FR+4*f,4)}, {v(aF)} offset:{16384+f*1024}")
    A.label(f"L_nm{u}")
A(f"""
s_cmp_lg_u32 {s(sDONE)}, 0xff
s_cbranch_scc1 L_dsp
L_fwd_done:
""")
stamp("fwd", (3,))
A("s_nop 1")
TT = DNR
def pk(op, d, a, b, c=None, na=False, nb=False):
    ops = f"{v(d,2)}, {v(a,2)}, {v(b,2)}" + (f", {v(c,2)}" if c is not None else "")
    n = [int(na), int(nb)] + ([0] if c is not None else [])
    mod = f" neg_lo:{n} neg_hi:{n}".replace(", ", ",") if (na or nb) else ""
    A(f"v_pk_{op}_f32 {ops}{mod}")
add = lambda d, a, b: pk("add", d, a, b)
sub = lambda d, a, b: pk("add", d, a, b, nb=True)
A.raw(".p2align 3")
for mt in range(2):
    for rp in range(2):
        er = lambda u: ER + (u*2+mt)*4 + 2*rp
        ei = lambda u: EI + (u*2+mt)*4 + 2*rp
        wr = lambda q: WRF + (q*2+mt)*4 + 2*rp
        wi = lambda q: WIF + (q*2+mt)*4 + 2*rp
        tr = lambda i: TT + 4*i
        ti = lambda i: TT + 4*i + 2
        add(tr(0), er(0), er(2)); add(ti(0), ei(0), ei(2)); sub(tr(1), er(0), er(2)); sub(ti(1), ei(0), ei(2))
        add(tr(2), er(1), er(3)); add(ti(2), ei(1), ei(3)); sub(tr(3), er(1), er(3)); sub(ti(3), ei(1), ei(3))
        add(er(0), tr(0), tr(2)); add(ei(0), ti(0), ti(2)); sub(er(2), tr(0), tr(2)); sub(ei(2), ti(0), ti(2))
        add(er(1), tr(1), ti(3)); sub(ei(1), ti(1), tr(3)); sub(er(3), tr(1), ti(3)); add(ei(3), ti(1), tr(3))
        for q in range(4):
            pk("mul", tr(q), er(q), wr(q)); pk("mul", ti(q), er(q), wi(q))
        for q in range(4):
            pk("fma", tr(q), ei(q), wi(q), tr(q), na=True); pk("fma", ti(q), ei(q), wr(q), ti(q))
        add(wr(0), tr(0), tr(2)); add(wi(0), ti(0), ti(2)); sub(wr(1), tr(0), tr(2)); sub(wi(1), ti(0), ti(2))
        add(wr(2), tr(1), tr(3)); add(wi(2), ti(1), ti(3)); sub(wr(3), tr(1), tr(3)); sub(wi(3), ti(1), ti(3))
        add(er(0), wr(0), wr(2)); add(ei(0), wi(0), wi(2)); sub(er(2), wr(0), wr(2)); sub(ei(2), wi(0), wi(2))
        sub(er(1), wr(1), wi(3)); add(ei(1), wi(1), wr(3)); add(er(3), wr(1), wi(3)); sub(ei(3), wi(1), wr(3))
def OPS(u):
    L = [CVT(DRE+4*u+j, ER+8*u+2*j, ER+8*u+2*j+1) for j in range(4)]
    L += [CVT(DIM+4*u+j, EI+8*u+2*j, EI+8*u+2*j+1) for j in range(4)]
    L += [CVT(DNR+4*u+j, EI+8*u+2*j, EI+8*u+2*j+1, True, True) for j in range(4)]
    return L
def INV(k):
    e = k*4; o = WRF + e
    return [CVT(o, ER+e, ER+e+1), CVT(o+1, ER+e+2, ER+e+3), CVT(o+2, EI+e, EI+e+1), CVT(o+3, EI+e+2, EI+e+3),
            f"ds_write_b128 {v(aO)}, {v(o,4)} offset:{k*1024}", f"ds_add_u32 {v(vPG)}, {v(vT[9])}"]
for t_ in OPS(0): A(t_)
A("s_waitcnt lgkmcnt(0)")
stamp("mid", (3,))
for k in range(8):
    u, nt = k >> 1, k & 1
    fc, fs, e = FR + (u*4 + nt*2) * 4, FR + (u*4 + nt*2 + 1) * 4, k * 4
    ops = OPS(u+1)[6*nt:6*nt+6] if u < 3 else []
    out = INV(k-1) if k >= 1 else []
    fill = ops + out
    weave([M16(ER+e, DRE+4*u, fc, None), M16(EI+e, DIM+4*u, fc, None), M16(ER+e, DNR+4*u, fs, ER+e), M16(EI+e, DRE+4*u, fs, EI+e)],
          fill, [3, 3, 2, 4] if ops and out else ([2, 2, 2, 0] if ops else [0, 0, 0, 6]))
stamp("inv", (3,))
for t_ in INV(7): A(t_)
stamp("cmp2", (1, 3))
A(f"""
s_cmp_lt_u32 {s(sW)}, 4
s_cbranch_scc1 L_setup3
""")
A(f"""
v_lshlrev_b32 {v(aO)}, 7, {v(c_)}
v_lshl_add_u32 {v(aO)}, {v(g_)}, 4, {v(aO)}
""")
for i in range(8): A(f"v_mov_b32 {v(WIF+2*i+1)}, {s(sTAG)}")
for k in range(8):
    o = WIF + 8*(k & 1)
    for e in range(4): cvt(o+2*e, ER+4*k+e, EI+4*k+e)
    for h in range(2): A(f"buffer_store_dwordx4 {v(o+4*h,4)}, {v(aO)}, {srd(WS_)}, {s(sDST)} offen offset:{(k&1)*2048+h*64} sc1")
    if k & 1: A(f"s_add_u32 {s(sDST)}, {s(sDST)}, 4096")
A(f"""
s_setprio 0
s_branch L_setup3
L_helper:
""")
lds_post(0)
sSRC, sPL, sSG, sBIT = sT[4:8]
A(f"""
s_lshl_b32 {s(sT[0])}, {s(sM)}, 4
s_sub_u32 {s(sT[1])}, {s(sW)}, 4
s_lshl_b32 {s(sSRC)}, {s(sA)}, 7
s_add_u32 {s(sSRC)}, {s(sSRC)}, {s(sT[1])}
s_lshl1_add_u32 {s(sSRC)}, {s(sSRC)}, {s(sM)}
s_lshl_b32 {s(sSRC)}, {s(sSRC)}, 11
s_add_u32 {s(sPL)}, {s(sT[0])}, {s(sGRP)}
s_lshl2_add_u32 {s(sPL)}, {s(sPL)}, {s(sT[1])}
s_mul_i32 {s(sPL)}, {s(sPL)}, {CP}
s_add_u32 {s(sPL)}, {s(sPL)}, {C1}
s_cmp_eq_u32 {s(sGRP)}, {SPW}
s_cselect_b32 {s(sSG)}, 0x200020, 32
s_lshl_b32 m0, {s(sT[1])}, 13
s_lshl_b32 {s(sBIT)}, 1, {s(sT[1])}
v_lshlrev_b32 {v(aD)}, 2, {v(g_)}
v_xor_b32 {v(aD)}, {v(aD)}, {v(c_)}
v_lshlrev_b32 {v(aD)}, 4, {v(aD)}
v_lshl_add_u32 {v(aD)}, {v(g_)}, 14, {v(aD)}
v_and_b32 {v(aO)}, {SWM}, {v(g_)}
v_xor_b32 {v(aO)}, {s(sGRP)}, {v(aO)}
v_lshl_add_u32 {v(aD)}, {v(aO)}, 8, {v(aD)}
v_xor_b32 {v(aO)}, {1024 if SWM else 0}, {v(aD)}
""")
poll("L_poll1", sPL, s(sSG), OPT['sl1'])
stamp("pol1")
for n in range(8):
    A(f"buffer_load_dwordx4 {v(aO if n & 1 else aD)}, {srd(OUT_)}, {s(sSRC)} offen sc1 lds")
    if n < 7:
        A(f"s_add_u32 m0, m0, 1024")
        A(f"s_add_u32 {s(sSRC)}, {s(sSRC)}, 65536")
XP = [WR_, WR_+2, WI_, WI_+2]
A(f"""
s_cmp_lg_u32 {s(sW)}, 4
s_cbranch_scc1 L_posted
s_sub_u32 {s(sT[3])}, s2, {HOST}
s_cmp_ge_u32 {s(sT[3])}, 2
s_cbranch_scc1 L_posted
s_cmp_eq_u32 {s(sT[3])}, 0
s_cbranch_scc1 L_xa
s_waitcnt vmcnt(0)
""")
lds_bit(4, sONE)
A(f"""
L_xa:
s_mul_i32 {s(sT[2])}, {s(sT[3])}, {64*CP}
s_add_u32 {s(sT[2])}, {s(sT[2])}, {C1+SPW*4*CP}
s_mov_b32 {s(sCNT)}, 0x8000
L_pollx:
""")
for i in range(4):
    A(f"s_mov_b64 {s(XP[i],2)}, 0")
    A(f"s_atomic_or_x2 {s(XP[i],2)}, {s(WS_,2)}, {s(sT[2])} offset:{i*CP} glc")
A(f"""
s_sub_u32 {s(sCNT)}, {s(sCNT)}, 1
s_cbranch_scc1 L_pollx_out
s_waitcnt lgkmcnt(0)
""")
for i in range(4):
    A(f"s_cmp_lg_u32 {s(XP[i]+1)}, {s(sTAG)}")
    A("s_cbranch_scc1 L_pollx")
A(f"""
s_and_b32 {s(XP[0])}, {s(XP[0])}, {s(XP[1])}
s_and_b32 {s(XP[2])}, {s(XP[2])}, {s(XP[3])}
s_and_b32 {s(XP[0])}, {s(XP[0])}, {s(XP[2])}
s_bitcmp1_b32 {s(XP[0])}, 21
s_cbranch_scc0 L_pollx
L_pollx_out:
""")
if OPT['xprio']: A("s_setprio 3")
A(f"""
s_mov_b32 {s(sFA)}, 1
s_mov_b32 {s(sFC)}, 0
s_mov_b32 {s(sFB)}, 1
s_lshl_b32 {s(sDST)}, {s(sT[3])}, 14
s_add_u32 {s(sDST)}, {s(sDST)}, {XB}
s_mov_b32 {s(sT[2])}, {s(sDST)}
v_lshrrev_b32 {v(aD)}, 2, {v(vL)}
v_and_b32 {v(aW)}, 3, {v(vL)}
v_lshlrev_b32 {v(aW)}, 4, {v(aW)}
v_lshl_add_u32 {v(aD)}, {v(aD)}, 7, {v(aW)}
v_lshlrev_b32 {v(aW)}, 7, {v(c_)}
v_lshl_add_u32 {v(aW)}, {v(g_)}, 4, {v(aW)}
s_mov_b32 {s(sOI)}, {XOUT}
v_lshlrev_b32 {v(aRe)}, 4, {v(vL)}
v_add_u32 {v(aRe)}, {EXOFF}, {v(aRe)}
s_mov_b32 m0, {EXOFF}
""")
for n in range(8):
    A(f"buffer_load_dwordx4 {v(aD)}, {srd(WS_)}, {s(sT[2])} offen sc1 lds")
    A(f"buffer_load_dwordx4 {v(ER+4*n,4)}, {v(aW)}, {srd(WS_)}, {s(sT[2])} offen offset:64 sc1")
    if n < 7:
        A(f"s_add_u32 m0, m0, 4096")
        A(f"s_add_u32 {s(sT[2])}, {s(sT[2])}, 2048")
A("s_waitcnt vmcnt(16)")
lds_bit(4, sONE)
A("s_branch L_p2common")
A.label("L_posted")
A(f"""
s_cmp_lt_u32 {s(sW)}, {8-NST}
s_cselect_b32 {s(sPH)}, 1, 0
s_waitcnt vmcnt(0)
""")
lds_bit(4, sBIT)
A.label("L_setup3")
A3 = 237
aD3, aPw, aQ1, aQ0, aRd3, aSo, aQp = range(A3, A3+7)
aT = list(range(A3+9, A3+13))
sMR, sS3 = sT[2], sT[3]
A(f"""
v_lshrrev_b32 {v(PH)}, 1, {v(vL)}
v_xor_b32 {v(PH)}, {v(PH)}, {v(vL)}
v_and_b32 {v(PH)}, 4, {v(PH)}
v_mul_u32_u24 {v(PH)}, 3, {v(PH)}
v_xor_b32 {v(PH)}, {v(PH)}, {v(vL)}
v_lshlrev_b32 {v(vS1)}, 4, {v(PH)}
v_add_u32 {v(vS1)}, {T1OFF}, {v(vS1)}
v_and_b32 {v(aSo)}, 15, {v(PH)}
v_lshlrev_b32 {v(aSo)}, 6, {v(aSo)}
v_and_b32 {v(PH)}, 1, {v(g_)}
v_lshl_add_u32 {v(aSo)}, {v(PH)}, 5, {v(aSo)}
v_lshrrev_b32 {v(PH)}, 1, {v(g_)}
v_lshl_add_u32 {v(aSo)}, {v(PH)}, 4, {v(aSo)}
""")
load_tables(vS1)
A(f"""
v_lshrrev_b32 {v(PH)}, 2, {v(c_)}
v_lshl_add_u32 {v(PH)}, {v(PH)}, 7, {s(sSB)}
v_cvt_f32_u32 {v(PH)}, {v(PH)}
v_mul_f32 {v(PH)}, {fbits(1/2048)}, {v(PH)}
v_add_f32 {v(PH+1)}, {fbits(0.25)}, {v(PH)}
v_and_b32 {v(PH+2)}, 1, {v(c_)}
v_cvt_f32_u32 {v(PH+2)}, {v(PH+2)}
v_mul_f32 {v(PH+2)}, {fbits(-0.25)}, {v(PH+2)}
v_add_f32 {v(PH+3)}, {fbits(-0.125)}, {v(PH+2)}
v_add_f32 {v(PH+2)}, {fbits(0.125)}, {v(PH+2)}
v_and_b32 {v(PH+4)}, 2, {v(c_)}
v_lshlrev_b32 {v(PH+4)}, 30, {v(PH+4)}
v_xor_b32 {v(PH+2)}, {v(PH+4)}, {v(PH+2)}
v_xor_b32 {v(PH+3)}, {v(PH+4)}, {v(PH+3)}
v_lshlrev_b32 {v(PH+4)}, 1, {v(g_)}
v_cvt_f32_u32 {v(PH+4)}, {v(PH+4)}
v_add_f32 {v(PH+5)}, 1.0, {v(PH+4)}
v_add_f32 {v(PH+6)}, {fbits(8.0)}, {v(PH+4)}
v_add_f32 {v(PH+7)}, {fbits(9.0)}, {v(PH+4)}
""")
for mt in range(2):
    for j in range(4):
        t = TMP + (mt*4+j)*3
        A(f"v_fma_f32 {v(t)}, {v(PH+mt)}, {v(PH+4+j)}, {v(PH+2+(j&1))}")
        A(f"v_cos_f32 {v(t+1)}, {v(t)}")
        A(f"v_sin_f32 {v(t+2)}, {v(t)}")
for mt in range(2):
    for j in range(4):
        t = TMP + (mt*4+j)*3
        cvt(M3+mt*4+j, t+1, t+2, False, True)
A(f"""
v_lshrrev_b32 {v(PH)}, 3, {v(vL)}
v_and_b32 {v(PH+1)}, 3, {v(PH)}
v_lshlrev_b32 {v(PH+1)}, 6, {v(PH+1)}
v_lshl_add_u32 {v(PH)}, {v(PH)}, 8, {v(PH+1)}
v_and_b32 {v(PH+1)}, 3, {v(vL)}
v_lshl_add_u32 {v(PH)}, {v(PH+1)}, 4, {v(PH)}
v_and_b32 {v(PH+1)}, 4, {v(vL)}
v_lshl_add_u32 {v(PH)}, {v(PH+1)}, 1, {v(PH)}
v_add_u32 {v(aT[0])}, {s(sW12)}, {v(PH)}
v_xor_b32 {v(aT[1])}, 64, {v(aT[0])}
v_xor_b32 {v(aT[2])}, 128, {v(aT[0])}
v_xor_b32 {v(aT[3])}, 192, {v(aT[0])}
v_mul_u32_u24 {v(PH)}, {PS2}, {v(g_)}
s_lshl_b32 {s(sT[0])}, {s(sW)}, 8
s_add_u32 {s(sT[1])}, {s(sT[0])}, {EX2}
s_sub_u32 {s(sT[0])}, {EX2+15*256}, {s(sT[0])}
v_lshl_add_u32 {v(aPw)}, {v(c_)}, 3, {v(PH)}
v_add_u32 {v(aPw)}, {s(sT[1])}, {v(aPw)}
v_sub_u32 {v(PH+1)}, 16, {v(c_)}
v_lshl_add_u32 {v(PH+1)}, {v(PH+1)}, 3, {v(PH)}
v_add_u32 {v(aQp)}, {s(sT[0])}, {v(PH+1)}
v_cmp_eq_u32 vcc, 0, {v(c_)}
v_mov_b32 {v(PH+2)}, 128
v_mov_b32 {v(PH+3)}, 132
v_mov_b32 {v(PH+4)}, -124
v_cndmask_b32 {v(PH+4)}, {v(PH+2)}, {v(PH+4)}, vcc
v_cndmask_b32 {v(PH+3)}, {v(PH+3)}, {v(PH+2)}, vcc
v_add_u32 {v(aQ1)}, {v(aQp)}, {v(PH+4)}
v_add_u32 {v(aQ0)}, {v(aQp)}, {v(PH+3)}
s_mul_i32 {s(sT[0])}, {s(sW)}, {PS2}
s_add_u32 {s(sT[0])}, {s(sT[0])}, {EX2}
v_and_b32 {v(PH+1)}, 31, {v(vL)}
v_lshrrev_b32 {v(PH+2)}, 5, {v(vL)}
v_lshlrev_b32 {v(PH+3)}, 9, {v(PH+2)}
v_lshl_add_u32 {v(PH+3)}, {v(PH+1)}, 3, {v(PH+3)}
v_add_u32 {v(aRd3)}, {s(sT[0])}, {v(PH+3)}
s_lshl_b32 {s(sO[0])}, {s(sW)}, 7
s_add_u32 {s(sO[0])}, {s(sO[0])}, {s(sSB)}
s_lshl_b32 {s(sO[0])}, {s(sO[0])}, 12
s_lshl_b32 {s(sO[1])}, {s(sM)}, 11
s_add_u32 {s(sO[0])}, {s(sO[0])}, {s(sO[1])}
s_add_u32 {s(sO[1])}, {s(sO[0])}, {1024*4096}
s_mov_b32 {s(sPM)}, 0x05040100
s_mov_b32 {s(sPM+1)}, 0x07060302
""")
A(f"""
v_lshlrev_b32 {v(PH)}, 2, {v(g_)}
v_xor_b32 {v(PH)}, {v(PH)}, {v(c_)}
v_lshlrev_b32 {v(PH)}, 4, {v(PH)}
v_lshl_add_u32 {v(aD3)}, {v(g_)}, 19, {v(PH)}
s_lshl_b32 {s(sMR)}, {s(sM)}, 7
s_add_u32 {s(sMR)}, {s(sMR)}, {s(sRHO)}
s_and_b32 {s(sS3)}, {s(sRHO)}, {SWM}
s_xor_b32 {s(sS3)}, {s(sS3)}, {s(sW)}
s_add_u32 {s(sS3)}, {s(sS3)}, {s(sM8)}
s_lshl4_add_u32 {s(sS3)}, {s(sSB)}, {s(sS3)}
s_lshl_b32 {s(sS3)}, {s(sS3)}, 8
s_cmp_lg_u32 {s(sPH)}, 0
s_cbranch_scc1 L_nosig2
""")
aR0, aR1, aS2, aPr, aS3 = vT[2:7]
sD = sT[4:5]
A(f"""
v_bfe_u32 {v(aR0)}, {v(vL)}, 2, 2
v_mul_u32_u24 {v(aR0)}, {OS}, {v(aR0)}
v_lshl_add_u32 {v(aR0)}, {v(g_)}, 6, {v(aR0)}
v_and_b32 {v(aR1)}, 3, {v(vL)}
v_mul_u32_u24 {v(aPr)}, 260, {v(aR1)}
v_add_u32 {v(aPr)}, {PGOFF}, {v(aPr)}
v_lshrrev_b32 {v(aS2)}, 5, {v(vL)}
v_xor_b32 {v(aR1)}, {v(aR1)}, {v(aS2)}
v_lshl_add_u32 {v(aR0)}, {v(aR1)}, 4, {v(aR0)}
s_sub_u32 {s(sT[8])}, 7, {s(sW)}
s_lshl_b32 {s(sT[0])}, {s(sT[8])}, 10
s_add_u32 {s(sT[0])}, {s(sT[0])}, {WOFF}
v_add_u32 {v(aR0)}, {s(sT[0])}, {v(aR0)}
v_xor_b32 {v(aR1)}, 32, {v(aR0)}
v_lshlrev_b32 {v(aS2)}, 14, {v(g_)}
v_lshl_add_u32 {v(aS2)}, {v(c_)}, 4, {v(aS2)}
v_and_b32 {v(aS3)}, {SWM}, {v(g_)}
v_xor_b32 {v(aS3)}, {s(sGRP)}, {v(aS3)}
v_lshl_add_u32 {v(aS2)}, {v(aS3)}, 8, {v(aS2)}
v_xor_b32 {v(aS3)}, {1024 if SWM else 0}, {v(aS2)}
s_lshl_b32 {s(sT[5])}, {s(sA)}, 8
s_add_u32 {s(sT[5])}, {s(sT[5])}, {s(sM)}
s_lshl_b32 {s(sT[5])}, {s(sT[5])}, 11
s_add_u32 {s(sT[0])}, {s(sM8)}, {s(sGRP)}
s_lshl_b32 {s(sT[0])}, {s(sT[0])}, 3
s_add_u32 {s(sT[0])}, {s(sT[0])}, {s(sT[8])}
s_mul_i32 {s(sT[0])}, {s(sT[0])}, {CP}
s_add_u32 {s(sT[0])}, {s(sT[0])}, {C2}
""")
NR = -(-8 // NST)
for i in range(NR):
    if NST*i + NST > 8:
        A(f"s_cmp_ge_u32 {s(sT[8])}, 8")
        A("s_cbranch_scc1 L_short")
    A(f"""
    s_lshr_b32 {s(sD[0])}, {s(sT[8])}, 1
    s_and_b32 {s(sT[6])}, {s(sT[8])}, 1
    s_lshl_b32 {s(sT[6])}, {s(sT[6])}, 6
    s_add_u32 {s(sD[0])}, {s(sD[0])}, {s(sT[6])}
    s_lshl_b32 {s(sD[0])}, {s(sD[0])}, 12
    s_add_u32 {s(sD[0])}, {s(sD[0])}, {s(sT[5])}
    s_mov_b32 {s(sCNT)}, 0x40000
    L_pg{i}:
    ds_read_b32 {v(vS1)}, {v(aPr)}
    s_sub_u32 {s(sCNT)}, {s(sCNT)}, 1
    s_cbranch_scc1 L_pg{i}_out
    {('s_sleep %d' % OPT['slp']) if i == 0 and OPT['slp'] else ''}
    s_waitcnt lgkmcnt(0)
    v_cmp_ge_u32 vcc, {s(sT[8])}, {v(vS1)}
    s_and_b64 vcc, vcc, vcc
    s_cbranch_scc1 L_pg{i}
    L_pg{i}_out:
    """)
    d = D1R + 16*i
    for j in range(4): A(f"ds_read_b128 {v(d+4*j,4)}, {v(aR1 if j & 1 else aR0)} offset:{i*NST*1024+j*256}")
    A(f"s_add_u32 {s(sT[8])}, {s(sT[8])}, {NST}")
    for j in range(4):
        A(f"s_waitcnt lgkmcnt({3-j})")
        A(f"buffer_store_dwordx4 {v(d+4*j,4)}, {v(aS3 if j & 1 else aS2)}, {srd(OUT_)}, {s(sD[0])} offen sc1")
        if j < 3: A(f"s_add_u32 {s(sD[0])}, {s(sD[0])}, 65536")
for i in range(NR):
    A(f"s_waitcnt vmcnt({4*(NR-1-i)})")
    signal(sT[0], NST*i*CP)
if 8 % NST:
    A("s_branch L_nosig2")
    A.label("L_short")
    for i in range(NR-1):
        A(f"s_waitcnt vmcnt({4*(NR-2-i)})")
        signal(sT[0], NST*i*CP)
A.label("L_nosig2")
stamp("fl2")
A("s_barrier")
A(f"s_mov_b32 m0, {s(sW12)}")
poll("L_poll2", sC2, 16, OPT['sl2'])
stamp("pol2")
for j in range(4):
    A(f"buffer_load_dwordx4 {v(aD3)}, {srd(OUT_)}, {s(sS3)} offen sc1 lds")
    if j < 3:
        A("s_add_u32 m0, m0, 1024")
        A(f"s_add_u32 {s(sS3)}, {s(sS3)}, {4*AROW}")
A(f"""
s_cmp_lg_u32 {s(sW)}, 4
s_cbranch_scc1 L_noep
s_cmp_lg_u32 s2, {HOST+1}
s_cbranch_scc1 L_noep
s_mov_b32 {s(sT[4])}, {EW}
s_atomic_swap {s(sTAG)}, {s(WS_,2)}, {s(sT[4])}
s_waitcnt lgkmcnt(0)
L_noep:
""")
GB = [(8, 8), (40, 8), (88, 8), (16, 4), (28, 4)]
GS = [r + i for r, n in GB for i in range(n)]
def granule_loads():
    off = 0
    for r, n in GB:
        A(f"s_load_dwordx{n} {s(r,n)}, {s(WS_,2)}, {s(sT[4])} offset:{off} glc"); off += 4*n
A(f"""
s_cmp_lg_u32 {s(sW)}, 0
s_cbranch_scc1 L_nosp3a
s_lshl_b32 {s(sT[4])}, {s(sMR)}, 7
s_add_u32 {s(sT[4])}, {s(sT[4])}, {XB}
""")
granule_loads()
A.label("L_nosp3a")
for i in range(16):
    A(f"v_perm_b32 {v(GR+i)}, {v(FN+i//2)}, {v(FC+i//2)}, {s(sPM+(i&1))}")
    A(f"v_perm_b32 {v(GI+i)}, {v(FC+i//2)}, {v(FS+i//2)}, {s(sPM+(i&1))}")
A(f"""
s_cmp_lg_u32 {s(sW)}, 0
s_cbranch_scc1 L_nosp3b
s_mov_b32 {s(sCNT)}, 0x8000
s_branch L_gchk
L_gagain:
s_sub_u32 {s(sCNT)}, {s(sCNT)}, 1
s_cbranch_scc1 L_gok
""")
granule_loads()
A.label("L_gchk")
A("s_waitcnt lgkmcnt(0)")
for i in range(16):
    A(f"s_cmp_lg_u32 {s(GS[2*i+1])}, {s(sTAG)}")
    A("s_cbranch_scc1 L_gagain")
A.label("L_gok")
for h in range(2):
    for g in range(4):
        for q in range(2):
            A(f"v_writelane_b32 {v(TMP+4+2*h+q)}, {s(GS[h*16+g*4+2*q])}, {16*g}")
m16(D2R, M3, TMP+4, None); m16(D2R+4, M3+4, TMP+4, None)
A.label("L_nosp3b")
A("s_waitcnt vmcnt(0)")
stamp("dat2", (1, 3))
for t in (0, 2, 1, 3):
    for jj in range(2):
        A(f"ds_read_b64_tr_b16 {v(XR+4*t+2*jj,2)}, {v(aT[t])} offset:{jj*2048}")
for i, t in enumerate((0, 2, 1, 3)):
    A(f"s_waitcnt lgkmcnt({6-2*i})")
    m16(D1R+8*t, M3, XR+4*t, None); m16(D1R+8*t+4, M3+4, XR+4*t, None)
A(f"""
s_cmp_lg_u32 {s(sW)}, 0
s_cbranch_scc1 L_nofix
s_mov_b32 exec_lo, 0x00010001
s_mov_b32 exec_hi, 0x00010001
""")
for d in (D2R, D1R):
    for mt in range(2):
        for i in range(2):
            A(f"v_add_f32 {v(d+4*mt+i)}, {v(d+4*mt+i)}, {v(d+4*mt+2+i)}")
            A(f"v_mul_f32 {v(d+4*mt+i)}, 0.5, {v(d+4*mt+i)}")
cvt(TMP, D2R, D2R+1); cvt(TMP+1, D2R+4, D2R+5)
A(f"""
ds_write_b32 {v(aPw)}, {v(TMP)} offset:{8*256}
ds_write_b32 {v(aPw)}, {v(TMP+1)} offset:{8*256+4*PS2}
s_mov_b64 exec, -1
L_nofix:
s_nop 1
""")
for tp in range(2):
    for mt in range(2):
        d0 = D1R + 8*tp + 4*mt; d1 = d0 + 16
        o = TMP + 8 + (tp*2+mt)*4
        cvt(o, d0, d0+1); cvt(o+1, d1, d1+1); cvt(o+2, d1+2, d1+3); cvt(o+3, d0+2, d0+3)
for tp in range(2):
    for mt in range(2):
        o = TMP + 8 + (tp*2+mt)*4
        A(f"ds_write_b64 {v(aPw)}, {v(o,2)} offset:{mt*4*PS2+tp*128}")
        if tp == 1:
            A(f"ds_write_b64 {v(aQp)}, {v(o+2,2)} offset:{mt*4*PS2}")
        else:
            A(f"ds_write_b32 {v(aQ1)}, {v(o+2)} offset:{mt*4*PS2}")
            A(f"ds_write_b32 {v(aQ0)}, {v(o+3)} offset:{mt*4*PS2}")
A("s_waitcnt lgkmcnt(0)")
A("s_barrier")
stamp("bar3", (1, 3))
for t in range(4):
    for j in range(2):
        A(f"ds_read_b64 {v(XR+4*t+2*j,2)}, {v(aRd3)} offset:{t*1024+j*256}")
for t in range(4):
    A(f"s_waitcnt lgkmcnt({6-2*t})")
    m32(D1R, XR+4*t, GR+4*t, D1R if t else None)
A("s_nop 4")
weave([M32(D1I, XR+4*t, GI+4*t, D1I if t else None) for t in range(4)], ["s_nop 4"] + TW1(D1R, True), [1, 6, 6, 99])
stamp("m3", (3,))
for t_ in TW2(D1I, XR, XI, True, 0, 8): A(t_)
weave([M32(D2R, XR, FC, None), M32(D2R, XI, FN, D2R), M32(D2I, XR, FS, None), M32(D2I, XI, FC, D2I)], TW2(D1I, XR, XI, True, 8, 16), 6)
weave([M32(D2R, XR+4, FC+4, D2R), M32(D2R, XI+4, FN+4, D2R), M32(D2I, XR+4, FS+4, D2I), M32(D2I, XI+4, FC+4, D2I)], [], 0)
stamp("m4", (3,))
for comp, d in ((0, D2R), (1, D2I)):
    o = TMP + comp*8
    for q in (0, 4, 1, 5, 2, 6, 3, 7): cvt(o+q, d+2*q, d+2*q+1)
    for q in range(4): A(f"v_permlane16_swap_b32 {v(o+q)}, {v(o+4+q)}")
    for j in range(2):
        A(f"buffer_store_dwordx4 {v(o+4*j,4)}, {v(aSo)}, {srd(OUT_)}, {s(sO[comp])} offen offset:{j*1024}{OUTM}")
if OPT['stamp']:
    stamp("st3", (1, 3))
    A("s_waitcnt vmcnt(0)")
    stamp("end")
    A("s_waitcnt lgkmcnt(0)")
    if OPT['prd']:
        A(f"""
        s_load_dwordx2 s[8:9], s[0:1], 64
        s_mov_b32 s10, {256 << 20}
        s_mov_b32 s11, 0x20000
        s_lshl3_add_u32 {s(sT[4])}, s2, {s(sW)}
        s_lshl_b32 {s(sT[4])}, {s(sT[4])}, 12
        s_add_u32 {s(sT[4])}, {s(sT[4])}, {OPT['poff'] << 20}
        v_lshlrev_b32 v2, 4, {v(vL)}
        s_waitcnt lgkmcnt(0)
        """)
        for j in range(4): A(f"buffer_load_dwordx4 v[20:23], v2, s[8:11], {s(sT[4])} offen offset:{j*1024} sc1")
        A("s_waitcnt vmcnt(0)")
    if OPT['probe'] in (1, 2):
        e_ = sST + 2*(len(stamps)-1)
        A(f"""
        s_load_dwordx2 s[8:9], s[0:1], 64
        s_mov_b32 s10, {256 << 20}
        s_mov_b32 s11, 0x20000
        s_add_u32 {s(sT[0])}, {s(sST)}, 1800
        s_lshl3_add_u32 {s(sT[4])}, s2, {s(sW)}
        s_lshl_b32 {s(sT[4])}, {s(sT[4])}, 12
        s_add_u32 {s(sT[4])}, {s(sT[4])}, {OPT['poff'] << 20}
        v_lshlrev_b32 v2, 4, {v(vL)}
        L_pw:
        s_memrealtime {s(sT[2],2)}
        s_waitcnt lgkmcnt(0)
        s_sub_u32 {s(sT[1])}, {s(sT[0])}, {s(sT[2])}
        s_cmp_gt_i32 {s(sT[1])}, 0
        s_cbranch_scc1 L_pw
        s_memrealtime {s(sST+2,2)}
        """)
        for j in range(4): A(f"buffer_store_dwordx4 v[16:19], v2, s[8:11], {s(sT[4])} offen offset:{j*1024} sc1")
        A(f"""
        s_waitcnt vmcnt(0)
        s_memrealtime {s(e_,2)}
        """)
        if OPT['probe'] == 2:
            A(f"s_xor_b32 {s(sT[4])}, {s(sT[4])}, {3 << 15}")
            A("s_sleep 64")
            for j in range(4): A(f"buffer_load_dwordx4 v[20:23], v2, s[8:11], {s(sT[4])} offen offset:{j*1024} sc1")
            A("s_waitcnt vmcnt(0)")
        A("s_waitcnt lgkmcnt(0)")
    n = len(stamps)
    assert sST + 2*n <= 88, n
    if OPT['diag']:
        da, db = OPT['da'], OPT['db']
        A(f"""
        s_load_dwordx2 s[94:95], s[0:1], 56
        s_and_b32 {s(sT[4])}, s2, 7
        s_lshl_b32 {s(sT[4])}, {s(sT[4])}, 3
        s_not_b32 {s(sT[11])}, {s(sST)}
        s_sleep 100
        s_waitcnt lgkmcnt(0)
        s_cmp_lg_u32 {s(sW)}, {OPT['wa']}
        s_cbranch_scc1 L_dg1
        s_atomic_umax {s(sST+2*da) if da else s(sT[11])}, s[94:95], {s(sT[4])}
        L_dg1:
        s_cmp_lg_u32 {s(sW)}, {OPT['wb']}
        s_cbranch_scc1 L_end
        s_atomic_umax {s(sST+2*db)}, s[94:95], {s(sT[4])} offset:4
        s_cmp_lg_u32 s2, 100
        s_cbranch_scc1 L_end
        s_add_u32 {s(sT[0])}, {s(sST+2*(n-1))}, 900
        L_amp0:
        s_memrealtime {s(sT[2],2)}
        s_waitcnt lgkmcnt(0)
        s_sub_u32 {s(sT[1])}, {s(sT[0])}, {s(sT[2])}
        s_cmp_gt_i32 {s(sT[1])}, 0
        s_cbranch_scc1 L_amp0
        s_load_dwordx16 s[60:75], s[94:95], 0 glc
        s_waitcnt lgkmcnt(0)
        """)
        for i in range(1, 8):
            A(f"s_max_u32 s60, s60, s{60+2*i}")
            A(f"s_max_u32 s61, s61, s{61+2*i}")
        if not da: A("s_not_b32 s60, s60")
        A(f"""
        s_sub_u32 {s(sT[1])}, s61, s60
        s_lshl_b32 {s(sT[1])}, {s(sT[1])}, 4
        s_min_u32 {s(sT[1])}, {s(sT[1])}, 60000
        s_add_u32 {s(sT[0])}, {s(sT[0])}, {s(sT[1])}
        L_amp:
        s_memrealtime {s(sT[2],2)}
        s_waitcnt lgkmcnt(0)
        s_sub_u32 {s(sT[1])}, {s(sT[0])}, {s(sT[2])}
        s_cmp_gt_i32 {s(sT[1])}, 0
        s_cbranch_scc1 L_amp
        s_branch L_end
        """)
    A(f"s_lshl_b32 {s(sT[0])}, s2, 3")
    A(f"s_add_u32 {s(sT[0])}, {s(sT[0])}, {s(sW)}")
    A(f"s_lshl_b32 {s(sT[0])}, {s(sT[0])}, 7")
    A(f"s_add_u32 {s(sT[0])}, {s(sT[0])}, {STAMP}")
    A("v_mov_b32 v3, 0")
    A("s_mov_b64 exec, 1")
    for i in range(n):
        A(f"v_mov_b32 v2, {s(sST+2*i)}")
        A(f"buffer_store_dword v2, v3, {srd(WS_)}, {s(sT[0])} offen offset:{i*4}")
    A.raw("; stamps: " + " ".join(stamps))
A.label("L_end")
A("s_endpgm")
def kd(name, nv, ns):
    A.raw(f""".p2align 6
.amdhsa_kernel {name}
  .amdhsa_next_free_vgpr {nv}
  .amdhsa_next_free_sgpr {ns}
  .amdhsa_accum_offset {nv}
  .amdhsa_group_segment_fixed_size 0
  .amdhsa_kernarg_size 72
  .amdhsa_user_sgpr_count 2
  .amdhsa_user_sgpr_kernarg_segment_ptr 1
  .amdhsa_system_sgpr_workgroup_id_x 1
  .amdhsa_float_denorm_mode_32 3
.end_amdhsa_kernel""")
A.raw('.section .rodata,"a"')
kd(NAME + "_kernel", 256, 102)
if OPT['lst']: kd("empty_kernel", 8, 16)
open(sys.argv[1], "w").write(A.text())
print(sys.argv[1], "nops:", A.nops, "stamps:", len(stamps), file=sys.stderr)
```

```python
import sys, struct
import numpy as np
from asmlib import Asm, v, s

NAME = "concat_heads__spectral_gfnet__spectral_gfnet__prompt"
OPT = dict(outm=1, xnt=0, wnt=0, px=4, diag=0, da=0, db=0, wa=0, wb=0, ne=3, gh=1, xprio=0, slp=2, nst=3, stag=1, tg=1, wp=0,
           stamp=0, sl1=0, sl2=0, lst=0)
for a_ in sys.argv[2:]:
    k_, v_ = a_.split('='); assert k_ in OPT, k_; OPT[k_] = int(v_)

def fbits(x): return "0x%08x" % struct.unpack('<I', struct.pack('<f', x))[0]
def bf16(x):
    u = np.asarray(x, dtype=np.float32).view(np.uint32)
    return ((u + 0x7FFF + ((u >> 16) & 1)) >> 16).astype(np.uint32)

AUX = 0
XB = AUX + 0x30000
CP = 256
CB = AUX + 0x10000
EW = AUX + 0xa0000
STAMP = AUX + 0x100000
WSZ = 2 << 20
EXOFF = 32768
PS = 5184
WOFF = EXOFF + 8 * PS
M2OFF = WOFF + 36864
SYOFF = M2OFF + 32768
PGOFF = SYOFF + 64
T1OFF = PGOFF + 2048
LDSZ = T1OFF + 14336
EX2 = EXOFF
OS = 8320
XOUT = EXOFF + 32768
PS2 = 4160
sW, sM, sRHO, sSB, sA, sGRP = 3, 4, 5, 6, 7, 32
X_, WR_, WI_, OUT_, WS_, TAB_ = 8, 12, 16, 20, 24, 44
sCNT = 33
sT = list(range(34, 48))
sV = 48
sEXP = 50
sTAG = 51
sW12, sM8, sE, sROLE, sC1, sC2 = 52, 53, 54, 55, 56, 57
sPM = 58
sST = 60
sO = [96, 97]
sU = [98, 99, 100, 101]
sONE = sU[2]
sCM = 30
sP = 31
srd = lambda b: s(b, 4)

A = Asm()
AROW = 128 * 4096
HOST = 128
NST = OPT['nst']
XNT = ' nt' if OPT['xnt'] else ''
WNT = ' nt' if OPT['wnt'] else ''
OUTM = ['', ' sc1', ' nt', ' sc0 sc1', ' sc1 nt', ' sc0 sc1 nt'][OPT['outm']]
def M32(d, a, b, c): return f"v_mfma_f32_32x32x16_bf16 {v(d,16)}, {v(a,4)}, {v(b,4)}, {v(c,16) if c is not None else 0}"
def M16(d, a, b, c): return f"v_mfma_f32_16x16x32_bf16 {v(d,4)}, {v(a,4)}, {v(b,4)}, {v(c,4) if c is not None else 0}"
def CVT(d, a, b, na=False, nb=False): return f"v_cvt_pk_bf16_f32 {v(d)}, {'-' if na else ''}{v(a)}, {'-' if nb else ''}{v(b)}"
def m32(*a): A(M32(*a))
def m16(*a): A(M16(*a))
def cvt(*a): A(CVT(*a))
def weave(mf, fill, per):
    fill = list(fill)
    for i, m in enumerate(mf):
        A(m)
        n = per[i] if isinstance(per, (list, tuple)) else per
        for _ in range(n):
            if fill: A(fill.pop(0))
    for f in fill: A(f)
stamps = []
def stamp(name, sets=(1,)):
    st = OPT['stamp']
    if name in ("start", "end"):
        if st: A(f"s_memrealtime {s(sST + 2*len(stamps), 2)}"); stamps.append(name)
        if st > 1: A(f"s_memtime {s(sST + 2*len(stamps), 2)}"); stamps.append("c" + name)
    elif st in sets:
        if name not in stamps: stamps.append(name)
        A(f"{'s_memrealtime' if st == 1 else 's_memtime'} {s(sST + 2*stamps.index(name), 2)}")

vL, c_, g_ = 1, 2, 3
vT = list(range(2, 16))
TC, TS = 16, 32
FC, FS, FN = 48, 56, 64
M3 = 72
GR, GI = 80, 96
XR, XI = 112, 120
D1R, D1I = 128, 144
D2R, D2I = 160, 176
TMP = 192
PH = 224
WRF, WIF = 16, 48
FR = 80
DRE, DIM, DNR = 144, 160, 176
ER, EI = 192, 224

def peek(off, imm=0):
    A(f"s_mov_b64 {s(sV,2)}, 0")
    A(f"s_atomic_or_x2 {s(sV,2)}, {s(WS_,2)}, {s(off)} glc" if not imm else f"s_atomic_or_x2 {s(sV,2)}, {s(WS_,2)}, {s(off)} offset:{imm} glc")
def poll(label, off, count, sleep, imm=0, keep=None):
    A(f"s_mov_b32 {s(sEXP)}, {count}")
    A(f"s_mov_b32 {s(sCNT)}, 0x8000")
    A.label(label)
    peek(off, imm)
    A(f"s_sub_u32 {s(sCNT)}, {s(sCNT)}, 1")
    A(f"s_cbranch_scc1 {label}_out")
    if sleep: A(f"s_sleep {sleep}")
    A("s_waitcnt lgkmcnt(0)")
    if keep is not None:
        A(f"s_mov_b32 {s(keep)}, {s(sV)}")
        A(f"s_and_b32 {s(sV)}, {s(sV)}, 0xffff")
    A(f"s_cmp_eq_u64 {s(sV,2)}, {s(sEXP,2)}")
    A(f"s_cbranch_scc0 {label}")
    A.label(label + "_out")
def validate(label, off, imm=0):
    A(f"s_mov_b32 {s(sCNT)}, 0x8000")
    A.label(label)
    A("s_waitcnt lgkmcnt(0)")
    A(f"s_cmp_eq_u32 {s(sV+1)}, {s(sTAG)}")
    A(f"s_cbranch_scc1 {label}_out")
    peek(off, imm)
    A(f"s_sub_u32 {s(sCNT)}, {s(sCNT)}, 1")
    A(f"s_cbranch_scc0 {label}")
    A("s_waitcnt lgkmcnt(0)")
    A.label(label + "_out")
def signal(off, imm=0):
    A(f"s_atomic_add {s(sONE)}, {s(WS_,2)}, {s(off)}" + (f" offset:{imm}" if imm else ""))

vSY, vS1, vPG = vT[12], vT[13], vT[11]
def lds_wait(label, off, val):
    A(f"s_mov_b32 {s(sCNT)}, 0x40000")
    A.label(label)
    A(f"ds_read_b32 {v(vS1)}, {v(vSY)} offset:{off}")
    A(f"s_sub_u32 {s(sCNT)}, {s(sCNT)}, 1")
    A(f"s_cbranch_scc1 {label}_out")
    A("s_waitcnt lgkmcnt(0)")
    A(f"v_cmp_gt_u32 vcc, {val}, {v(vS1)}")
    A("s_and_b64 vcc, vcc, vcc")
    A(f"s_cbranch_scc1 {label}")
    A.label(label + "_out")
def lds_bit(off, sbit):
    A(f"v_mov_b32 {v(vS1)}, {s(sbit)}")
    A("s_mov_b64 exec, 1")
    A(f"ds_or_b32 {v(vSY)}, {v(vS1)} offset:{off}")
    A("s_mov_b64 exec, -1")
def lds_post(off, rtn=False):
    A(f"v_mov_b32 {v(vS1)}, 1")
    A("s_mov_b64 exec, 1")
    if rtn: A(f"ds_add_rtn_u32 {v(vS1)}, {v(vSY)}, {v(vS1)} offset:{off}")
    else: A(f"ds_add_u32 {v(vSY)}, {v(vS1)} offset:{off}")
    A("s_mov_b64 exec, -1")

sWB, sI = sU[0], sU[3]
aWM, aWT = GR + 4, GR + 5
nlab = [0]
def w_piece(e):
    if e < 4:
        arr, half = e & 1, e >> 1
        A(f"s_add_u32 m0, {s(sT[13])}, {WOFF + (2*arr+half)*9216}")
        if half: A(f"s_add_u32 {s(sI)}, {s(sT[12])}, {64*16416}")
        A(f"buffer_load_dwordx4 {v(aWM)}, {srd(WI_ if arr else WR_)}, {s(sI if half else sT[12])} offen{WNT} lds")
    else:
        n = nlab[0]; nlab[0] += 1
        A(f"""
        s_mul_i32 {s(sI)}, {s(sW)}, 9216
        s_add_u32 m0, {s(sI)}, {WOFF + 8192}
        s_and_b32 {s(sI)}, {s(sW)}, 1
        s_mul_i32 {s(sI)}, {s(sI)}, {64*16416}
        s_add_u32 {s(sI)}, {s(sI)}, {s(sWB)}
        s_bitcmp1_b32 {s(sW)}, 1
        s_cbranch_scc1 L_t1_{n}
        buffer_load_dwordx4 {v(aWT)}, {srd(WR_)}, {s(sI)} offen{WNT} lds
        s_branch L_t2_{n}
        L_t1_{n}:
        buffer_load_dwordx4 {v(aWT)}, {srd(WI_)}, {s(sI)} offen{WNT} lds
        L_t2_{n}:
        """)
def w_base(sw):
    A(f"s_mul_i32 {s(sT[12])}, {s(sw)}, {7*16416}")
    A(f"s_add_u32 {s(sT[12])}, {s(sT[12])}, {s(sWB)}")
    A(f"s_lshl_b32 {s(sT[13])}, {s(sw)}, 10")

def gen_m2(sW):
    G = D2R
    kf, s0, af, bf, ai, bi, ad = G, G+1, G+2, G+3, G+4, G+5, G+6
    P, C_, S_ = D1R, D1R+16, G+8
    A(f"""
    s_and_b32 {s(sT[12])}, {s(sW)}, 1
    s_lshl_b32 {s(sT[12])}, {s(sT[12])}, 4
    s_lshr_b32 {s(sT[13])}, {s(sW)}, 1
    v_add_u32 {v(kf)}, {s(sT[12])}, {v(c_)}
    v_lshl_add_u32 {v(ai)}, {v(kf)}, 2, {s(sT[13])}
    v_lshl_add_u32 {v(s0)}, {v(g_)}, 4, {s(sT[13])}
    v_mul_u32_u24 {v(bf)}, {v(s0)}, {v(kf)}
    v_mul_u32_u24 {v(bi)}, {v(g_)}, {v(ai)}
    v_cvt_f32_u32 {v(af)}, {v(kf)}
    v_cvt_f32_u32 {v(ai)}, {v(ai)}
    v_cvt_f32_u32 {v(bf)}, {v(bf)}
    v_cvt_f32_u32 {v(bi)}, {v(bi)}
    v_mul_f32 {v(bf)}, {fbits(1/128)}, {v(bf)}
    v_mul_f32 {v(bi)}, {fbits(1/32)}, {v(bi)}
    s_lshl_b32 {s(sT[12])}, {s(sW)}, 11
    s_add_u32 {s(sT[12])}, {s(sT[12])}, {M2OFF}
    v_lshl_add_u32 {v(ad)}, {v(vL)}, 4, {s(sT[12])}
    """)
    for d in range(2):
        for i in range(8):
            c = 16*(i >> 2) + (i & 3)
            A(f"v_fmamk_f32 {v(P+8*d+i)}, {v(ai if d else af)}, {fbits(c/128 if d else c/32)}, {v(bi if d else bf)}")
    for i in range(16):
        A(f"v_cos_f32 {v(C_+i)}, {v(P+i)}")
        A(f"v_sin_f32 {v(S_+i)}, {v(P+i)}")
    for d in range(2):
        for j in range(4):
            cvt(P+8*d+j, C_+8*d+2*j, C_+8*d+2*j+1)
            cvt(P+8*d+4+j, S_+8*d+2*j, S_+8*d+2*j+1)
    for d in range(2):
        for cs in range(2):
            A(f"ds_write_b128 {v(ad)}, {v(P+8*d+4*cs,4)} offset:{d*16384+cs*1024}")

def load_tables(addr):
    for i in (8, 9, 10, 11, 12, 13, 0, 4, 1, 5, 2, 6, 3, 7):
        A(f"ds_read_b128 {v(TC+4*i,4)}, {v(addr)} offset:{i*1024}")

def TW1(dr, conj):
    L = []
    for i in range(16):
        L.append(f"v_mul_f32 {v(TMP+i)}, {v(dr+i)}, {v(TC+i)}")
        L.append(f"v_mul_f32 {v(TMP+16+i)}, {v(dr+i)}, {v(TS+i)}" if conj else f"v_mul_f32_e64 {v(TMP+16+i)}, -{v(dr+i)}, {v(TS+i)}")
    return L
def TW2(di, outr, outi, conj, lo, hi):
    L = []
    for i in range(lo, hi, 2):
        for e in range(2):
            L.append(f"v_fma_f32 {v(TMP+i+e)}, -{v(di+i+e)}, {v(TS+i+e)}, {v(TMP+i+e)}" if conj else f"v_fmac_f32 {v(TMP+i+e)}, {v(di+i+e)}, {v(TS+i+e)}")
            L.append(f"v_fmac_f32 {v(TMP+16+i+e)}, {v(di+i+e)}, {v(TC+i+e)}")
        L.append(CVT(outr + i//2, TMP+i, TMP+i+1))
        L.append(CVT(outi + i//2, TMP+16+i, TMP+16+i+1))
    return L

if OPT['lst'] == 0: A.raw(f"; @launch grid=(256,1,1) block=(512,1,1) lds={LDSZ}")
else:
    A.raw(f"; @launch kernel={NAME}_kernel grid=(256,1,1) block=(512,1,1) lds={LDSZ}")
    A.raw(f"; @launch kernel=empty_kernel grid=(1,1,1) block=(64,1,1) lds=0")
A.raw('.amdgcn_target "amdgcn-amd-amdhsa--gfx950"\n.text')
if OPT['lst']: A.raw(".globl empty_kernel\n.p2align 8\n.type empty_kernel,@function\nempty_kernel:\n s_endpgm")
A.raw(f".globl {NAME}_kernel\n.p2align 8\n.type {NAME}_kernel,@function")
A.label(f"{NAME}_kernel")
aL16 = GR + 1
SPW = 3
sX16 = sROLE
NE = NEB = OPT['ne']
STAG = OPT['stag']
A(f"""
s_cmp_ge_u32 s2, 256
s_cbranch_scc1 L_end
s_bfe_u32 {s(sM)}, s2, 0x10003
s_mul_i32 {s(sT[0])}, {s(sM)}, 24
s_load_dwordx2 {s(X_,2)}, s[0:1], {s(sT[0])}
s_load_dwordx2 {s(WS_,2)}, s[0:1], 64
s_load_dwordx2 {s(WR_,2)}, s[0:1], {s(sT[0])} offset:8
s_load_dwordx2 {s(WI_,2)}, s[0:1], {s(sT[0])} offset:16
s_load_dwordx2 {s(OUT_,2)}, s[0:1], 48
""")
stamp("start")
A(f"""
v_lshrrev_b32 v2, 6, v0
s_getpc_b64 {s(TAB_,2)}
L_pc:
s_lshr_b32 {s(sT[2])}, s2, 4
v_readfirstlane_b32 {s(sW)}, v2
s_mov_b32 {s(TAB_+2)}, L_end-L_pc
s_mov_b32 {s(TAB_+3)}, 0x20000
v_lshlrev_b32 v3, 11, v2
s_lshl_b32 {s(sT[6])}, {s(sT[2])}, 7
buffer_load_dword {v(GR)}, v3, {srd(TAB_)}, {s(sT[6])} offen
v_and_b32 {v(vL)}, 63, v0
s_and_b32 {s(sT[1])}, s2, 7
s_lshl4_add_u32 {s(sRHO)}, {s(sT[1])}, {s(sT[2])}
s_and_b32 {s(sSB)}, {s(sRHO)}, 31
s_lshr_b32 {s(sT[5])}, {s(sRHO)}, 5
s_lshl2_add_u32 {s(sSB)}, {s(sSB)}, {s(sT[5])}
v_lshlrev_b32 {v(aL16)}, 4, {v(vL)}
s_mov_b32 {s(X_+2)}, 4194304
s_mov_b32 {s(X_+3)}, 0x20000
s_and_b32 {s(sP)}, {s(sRHO)}, {OPT['px']}
s_xor_b32 {s(sP)}, {s(sP)}, {s(sW)}
s_lshl_b32 {s(sO[0])}, {s(sP)}, 7
s_add_u32 {s(sO[0])}, {s(sO[0])}, {s(sSB)}
s_lshl_b32 {s(sO[0])}, {s(sO[0])}, 11
s_add_u32 {s(sO[1])}, {s(sO[0])}, 0x200000
s_lshl_b32 {s(sW12)}, {s(sW)}, 12
s_mov_b32 m0, {s(sW12)}
""")
XISS = f"""
buffer_load_dwordx4 {v(aL16)}, {srd(X_)}, {s(sO[0])} offen{XNT} lds
buffer_load_dwordx4 {v(aL16)}, {srd(X_)}, {s(sO[0])} offen offset:1024{XNT} lds
s_add_u32 m0, {s(sW12)}, 2048
buffer_load_dwordx4 {v(aL16)}, {srd(X_)}, {s(sO[1])} offen{XNT} lds
buffer_load_dwordx4 {v(aL16)}, {srd(X_)}, {s(sO[1])} offen offset:1024{XNT} lds
"""
def early_x():
    A("s_waitcnt lgkmcnt(0)")
    stamp("karg", (4,))
    if STAG:
        A(f"s_cmp_lg_u32 {s(sM)}, 0")
        A("s_cbranch_scc1 L_xlate")
    A(XISS)
    A.label("L_xlate")
    stamp("xiss", (4,))
if OPT['tg'] == 0: early_x()
A(f"""
s_lshr_b32 {s(sT[3])}, {s(sW)}, 1
s_and_b32 {s(sT[4])}, {s(sW)}, 1
s_lshl2_add_u32 {s(sT[6])}, {s(sT[3])}, {s(sT[4])}
s_lshl_b32 {s(sT[6])}, {s(sT[6])}, 1
v_lshrrev_b32 {v(PH+16)}, 5, {v(vL)}
v_and_b32 {v(PH+17)}, 31, {v(vL)}
v_lshl_add_u32 {v(PH)}, {v(PH+16)}, 2, {s(sT[6])}
v_mul_u32_u24 {v(PH)}, {v(PH)}, {v(PH+17)}
v_add_u32 {v(PH+1)}, {v(PH)}, {v(PH+17)}
v_cvt_f32_u32 {v(PH)}, {v(PH)}
v_cvt_f32_u32 {v(PH+1)}, {v(PH+1)}
s_mov_b32 {s(sT[6])}, {fbits(1/32)}
v_mul_f32 {v(PH+2)}, {s(sT[6])}, {v(PH)}
v_mul_f32 {v(PH+3)}, {s(sT[6])}, {v(PH+1)}
v_cos_f32 {v(PH+8)}, {v(PH+2)}
v_cos_f32 {v(PH+9)}, {v(PH+3)}
v_sin_f32 {v(PH+10)}, {v(PH+2)}
v_sin_f32 {v(PH+11)}, {v(PH+3)}
v_mul_f32 {v(PH)}, {s(sT[6])}, {v(PH+2)}
v_mul_f32 {v(PH+1)}, {s(sT[6])}, {v(PH+3)}
v_cos_f32 {v(PH+4)}, {v(PH)}
v_cos_f32 {v(PH+5)}, {v(PH+1)}
v_sin_f32 {v(PH+6)}, {v(PH)}
v_sin_f32 {v(PH+7)}, {v(PH+1)}
{CVT(PH+12, PH+8, PH+9)}
{CVT(PH+13, PH+10, PH+11)}
{CVT(PH+14, PH+10, PH+11, True, True)}
v_add_u32 {v(vS1)}, {T1OFF}, {v(aL16)}
s_lshl_b32 {s(sT[3])}, {s(sT[3])}, 10
s_lshl3_add_u32 {s(sT[3])}, {s(sT[4])}, {s(sT[3])}
v_add_u32 {v(PH)}, {s(sT[3])}, {v(vS1)}
s_mul_i32 {s(sT[3])}, {s(sW)}, 0x104
s_and_b32 {s(sT[3])}, {s(sT[3])}, 0x40c
v_add_u32 {v(PH+1)}, {s(sT[3])}, {v(vS1)}
""")
if OPT['tg'] == 1: early_x()
A(f"""
ds_write_b64 {v(PH)}, {v(PH+4,2)}
ds_write_b64 {v(PH)}, {v(PH+6,2)} offset:4096
ds_write_b32 {v(PH+1)}, {v(PH+12)} offset:8192
ds_write_b32 {v(PH+1)}, {v(PH+13)} offset:10240
ds_write_b32 {v(PH+1)}, {v(PH+14)} offset:12288
v_and_b32 {v(c_)}, 15, {v(vL)}
v_lshrrev_b32 {v(g_)}, 4, {v(vL)}
s_mov_b32 {s(sT[6])}, {EW}
s_cmp_lg_u32 {s(sW)}, 0
s_waitcnt lgkmcnt(0)
s_cbranch_scc1 L_noe
s_load_dword {s(sE)}, {s(WS_,2)}, {s(sT[6])}
L_noe:
""")
stamp("tgen", (4,))
A("s_barrier")
stamp("tbar", (4,))
if STAG:
    A(f"s_cmp_eq_u32 {s(sM)}, 0")
    A("s_cbranch_scc1 L_xdone")
    if STAG == 2:
        gen_m2(sW)
        A("s_barrier")
    A(XISS)
    A.label("L_xdone")
load_tables(vS1)
stamp("xis2", (4,))
aTR, aP, aQe, aQo, aRD, aST = vT[2:8]
sS1 = sT[8:10]
H_, F_ = PH + 16, PH + 17
A(f"""
s_lshr_b32 {s(sT[3])}, {s(sT[2])}, 3
s_lshl1_add_u32 {s(sA)}, {s(sT[1])}, {s(sT[3])}
s_and_b32 {s(sGRP)}, {s(sT[2])}, 7
s_mov_b32 {s(WR_+2)}, 2101248
s_mov_b32 {s(WR_+3)}, 0x20000
s_mov_b32 {s(WI_+2)}, 2101248
s_mov_b32 {s(WI_+3)}, 0x20000
s_cmp_lg_u32 {s(sW)}, {SPW}
s_cbranch_scc1 L_nogather
v_lshrrev_b32 v9, 2, {v(c_)}
v_and_b32 v10, 1, {v(c_)}
v_lshl_add_u32 v9, v9, 1, v10
v_and_b32 v10, 2, {v(c_)}
v_lshl_add_u32 v9, v10, 2, v9
v_mul_u32_u24 v9, 1026, v9
s_mul_i32 {s(sT[3])}, {s(sRHO)}, 16416
buffer_load_ushort v11, v9, {srd(WR_)}, {s(sT[3])} offen offset:1024
buffer_load_ushort v12, v9, {srd(WI_)}, {s(sT[3])} offen offset:1024
L_nogather:
s_mul_i32 {s(sWB)}, {s(sA)}, 1026
s_lshl_b32 {s(sT[0])}, {s(sGRP)}, 7
s_add_u32 {s(sWB)}, {s(sWB)}, {s(sT[0])}
s_andn2_b32 {s(sWB)}, {s(sWB)}, 15
v_add_u32 {v(PH)}, {s(sW)}, {v(vL)}
v_mul_u32_u24 {v(PH+1)}, 57, {v(PH)}
v_lshrrev_b32 {v(PH+1)}, 9, {v(PH+1)}
v_mul_u32_u24 {v(PH+1)}, {16416-144}, {v(PH+1)}
v_lshl_add_u32 {v(aWM)}, {v(PH)}, 4, {v(PH+1)}
v_bfe_u32 {v(PH)}, {v(vL)}, 2, 2
v_lshl_add_u32 {v(PH)}, {v(H_)}, 2, {v(PH)}
v_lshl_add_u32 {v(PH)}, {v(PH)}, 6, {s(sW12)}
v_and_b32 {v(PH+2)}, 16, {v(vL)}
v_lshl_add_u32 {v(PH)}, {v(PH+2)}, 1, {v(PH)}
v_and_b32 {v(PH+2)}, 3, {v(vL)}
v_lshl_add_u32 {v(aTR)}, {v(PH+2)}, 3, {v(PH)}
""")
stamp('setup', (4,))
WP = OPT['wp']
aWN = GR + 3
def w_pair(es):
    global aWM
    w_base(sW)
    for e in es: w_piece(e)
    A(f"s_add_u32 {s(sT[12])}, {s(sT[12])}, {28*16416}")
    A(f"s_add_u32 {s(sT[13])}, {s(sT[13])}, 4096")
    keep, aWM = aWM, aWN
    for e in es: w_piece(e)
    aWM = keep
WNSET = f"""
v_add_u32 {v(PH+20)}, {s(sW)}, {v(vL)}
v_add_u32 {v(PH+20)}, 4, {v(PH+20)}
v_mul_u32_u24 {v(PH+21)}, 57, {v(PH+20)}
v_lshrrev_b32 {v(PH+21)}, 9, {v(PH+21)}
v_mul_u32_u24 {v(PH+21)}, {16416-144}, {v(PH+21)}
v_lshl_add_u32 {v(aWN)}, {v(PH+20)}, 4, {v(PH+21)}
"""
NX = 0
if WP == 0:
    NX = NE
    w_base(sW)
    for e in range(NE): w_piece(e)
stamp("wiss", (4,))
L = lambda t: [x.strip() for x in t.strip().split("\n")]
SETA = L(f"""
s_mul_i32 {s(sT[0])}, {s(sP)}, {PS}
s_add_u32 {s(sT[0])}, {s(sT[0])}, {EXOFF}
v_mul_u32_u24 {v(PH+4)}, 20, {v(PH+2)}
v_lshrrev_b32 {v(PH+5)}, 2, {v(F_)}
v_mul_u32_u24 {v(PH+6)}, 160, {v(H_)}
v_add3_u32 {v(PH+4)}, {v(PH+4)}, {v(PH+5)}, {v(PH+6)}
v_lshl_add_u32 {v(aP)}, {v(PH+4)}, 3, {s(sT[0])}
v_sub_u32 {v(PH+3)}, 32, {v(F_)}
v_and_b32 {v(PH+4)}, 3, {v(PH+3)}
v_mul_u32_u24 {v(PH+4)}, 20, {v(PH+4)}
v_lshrrev_b32 {v(PH+5)}, 2, {v(PH+3)}
v_sub_u32 {v(PH+6)}, 160, {v(PH+6)}
v_add3_u32 {v(PH+4)}, {v(PH+4)}, {v(PH+5)}, {v(PH+6)}
v_lshl_add_u32 {v(aQe)}, {v(PH+4)}, 3, {s(sT[0])}
v_and_b32 {v(PH+3)}, 32, {v(PH+3)}
v_lshl_add_u32 {v(aQo)}, {v(PH+3)}, 4, {v(aQe)}
v_lshrrev_b32 {v(PH)}, 1, {v(c_)}
v_and_b32 {v(PH+1)}, 1, {v(PH)}
s_bfe_u32 {s(sT[0])}, {s(sRHO)}, 0x10002
v_and_b32 {v(PH+2)}, 1, {v(c_)}
v_xor_b32 {v(PH+2)}, {s(sT[0])}, {v(PH+2)}
v_sub_u32 {v(PH+2)}, {v(PH+2)}, {v(PH+1)}
v_cvt_f32_i32 {v(PH+2)}, {v(PH+2)}
v_mov_b32 {v(PH+3)}, {fbits(0.125)}
v_fmamk_f32 {v(PH+2)}, {v(PH+2)}, {fbits(0.25)}, {v(PH+3)}
v_mul_u32_u24 {v(PH+1)}, 0x8000, {v(PH+1)}
v_lshl_or_b32 {v(PH+1)}, {v(PH+1)}, 16, {v(PH+1)}
v_cvt_f32_u32 {v(PH)}, {v(PH)}
""")
SETB = L(f"""
v_add_f32 {v(PH+3)}, {fbits(8.0)}, {v(PH)}
v_lshl_add_u32 {v(PH+4)}, {v(g_)}, 8, {s(sSB)}
v_cvt_f32_u32 {v(PH+4)}, {v(PH+4)}
v_mul_f32 {v(PH+4)}, {fbits(1/2048)}, {v(PH+4)}
v_add_f32 {v(PH+5)}, {fbits(1/16)}, {v(PH+4)}
""")
for k in range(4): SETB.append(f"v_fma_f32 {v(PH+8+3*k)}, {v(PH+4+(k&1))}, {v(PH if k < 2 else PH+3)}, {v(PH+2)}")
for k in range(4): SETB += [f"v_cos_f32 {v(PH+9+3*k)}, {v(PH+8+3*k)}", f"v_sin_f32 {v(PH+10+3*k)}, {v(PH+8+3*k)}"]
SETC = []
for k in range(4):
    t = PH + 8 + 3*k
    SETC += [CVT(M3+2*k, t+1, t+2), CVT(M3+2*k+1, t+2, t+1), f"v_xor_b32 {v(M3+2*k+1)}, {v(PH+1)}, {v(M3+2*k+1)}"]
SETD = L(f"""
s_lshl_b32 {s(sM8)}, {s(sM)}, 3
s_mul_i32 {s(sCM)}, {s(sM)}, {128*CP}
s_add_u32 {s(sCM)}, {s(sCM)}, {CB}
s_mov_b32 {s(sEXP)}, 0
s_mov_b32 {s(sONE)}, 1
s_mov_b32 {s(sX16)}, 0x10000
s_lshl2_add_u32 {s(sC1)}, {s(sW)}, {s(sT[5])}
s_mul_i32 {s(sC1)}, {s(sC1)}, {CP}
s_add_u32 {s(sC1)}, {s(sC1)}, {s(sCM)}
s_lshl3_add_u32 {s(sC2)}, {s(sW)}, {s(sT[1])}
s_mul_i32 {s(sC2)}, {s(sC2)}, {CP}
s_add_u32 {s(sC2)}, {s(sC2)}, {s(sCM)}
s_add_u32 {s(sC2)}, {s(sC2)}, {32*CP}
s_mov_b32 {s(WS_+2)}, {WSZ}
s_mov_b32 {s(WS_+3)}, 0x20000
s_mov_b32 {s(OUT_+2)}, 8388608
s_mov_b32 {s(OUT_+3)}, 0x20000
s_lshl_b32 {s(sS1[0])}, {s(sO[0])}, 1
s_lshl_b32 {s(sT[3])}, {s(sM)}, 11
s_add_u32 {s(sS1[0])}, {s(sS1[0])}, {s(sT[3])}
s_add_u32 {s(sS1[1])}, {s(sS1[0])}, {8*AROW}
s_mul_i32 {s(sT[3])}, {s(sW)}, 640
s_add_u32 {s(sT[3])}, {s(sT[3])}, {EXOFF}
v_mul_u32_u24 {v(aRD)}, {2*PS}, {v(g_)}
v_lshl_add_u32 {v(aRD)}, {v(c_)}, 3, {v(aRD)}
v_add_u32 {v(aRD)}, {s(sT[3])}, {v(aRD)}
v_lshlrev_b32 {v(aST)}, 9, {v(g_)}
v_lshl_add_u32 {v(aST)}, {v(c_)}, 4, {v(aST)}
v_mov_b32 {v(vSY)}, {SYOFF}
v_lshlrev_b32 {v(vPG)}, 2, v0
v_add_u32 {v(vPG)}, {PGOFF}, {v(vPG)}
v_mov_b32 {v(GR+6)}, 0
v_mov_b32 {v(GR+7)}, 0
""")
for t_ in SETD: A(t_)
A(f"""
ds_write_b64 {v(vSY)}, {v(GR+6,2)}
ds_write_b64 {v(vSY)}, {v(GR+6,2)} offset:8
ds_write_b32 {v(vPG)}, {v(GR+6)}
s_mul_i32 {s(sT[3])}, {s(sRHO)}, {CP}
s_add_u32 {s(sT[3])}, {s(sT[3])}, {s(sCM)}
s_waitcnt vmcnt({NX+2})
s_cmp_eq_u32 {s(sW)}, {SPW}
s_cbranch_scc1 L_xw1
s_waitcnt vmcnt({NX})
L_xw1:
""")
stamp("x", (1, 2, 4))
for comp, dst in ((0, XR), (1, XI)):
    for t in range(2):
        for j in range(2):
            A(f"ds_read_b64_tr_b16 {v(dst+4*t+2*j,2)}, {v(aTR)} offset:{comp*2048+t*1024+j*512}")
A(f"s_cmp_lg_u32 {s(sW)}, 0")
A("s_waitcnt lgkmcnt(0)")
stamp("tr", (2, 4))
TAGI = [f"s_mul_i32 {s(sTAG)}, {s(sE)}, 0x9E3779B1", f"s_add_u32 {s(sTAG)}, {s(sTAG)}, 0x7F4A7C15"]
m32(D1R, XR, FC, None)
A(f"""
s_cbranch_scc1 L_e1
{TAGI[0]}
{TAGI[1]}
s_atomic_swap_x2 {s(sEXP,2)}, {s(WS_,2)}, {s(sT[3])}
s_branch L_e2
L_e1:
s_load_dword {s(sE)}, {s(WS_,2)}, {s(sT[6])}
L_e2:
""")
weave([M32(D1R, XR+4, FC+4, D1R), M32(D1R, XI, FS, D1R), M32(D1R, XI+4, FS+4, D1R), M32(D1I, XR, FN, None)], SETA[:24], 6)
weave([M32(D1I, XR+4, FN+4, D1I), M32(D1I, XI, FC, D1I), M32(D1I, XI+4, FC+4, D1I)], TW1(D1R, False), [6, 6, 99])
stamp("m1", (2,))
for t_ in TW2(D1I, XR, XI, False, 0, 8): A(t_)
A(SETA[24])
stamp("tw", (2,))
weave([M32(D2R, FC, XR, None), M32(D2I, FN, XR, None), M32(D2R, FS, XI, D2R), M32(D2I, FC, XI, D2I)], TW2(D1I, XR, XI, False, 8, 16) + SETA[25:26], [6, 6, 6, 7])
weave([M32(D2R, FC+4, XR+4, D2R), M32(D2I, FN+4, XR+4, D2I), M32(D2R, FS+4, XI+4, D2R), M32(D2I, FC+4, XI+4, D2I)], SETA[26:] + SETB + SETC[:7], [6, 5, 3, 99])
stamp("m2", (2,))
for i in range(16):
    cvt(TMP+i, D2R+i, D2I+i)
stamp("cv", (2,))
for i in range(16):
    kd2 = 8*(i >> 2) + (i & 3)
    if i < 8:
        A(f"ds_write_b32 {v(aP)}, {v(TMP+i)} offset:{(80*(kd2>>1)+8*(kd2&1))*8}")
    else:
        e = 31 - kd2 - 4
        A(f"ds_write_b32 {v(aQo if e & 1 else aQe)}, {v(TMP+i)} offset:{(80*(e>>1)+8*(e&1))*8+4}")
A(f"""
s_mov_b64 exec, 1
ds_write_b32 {v(aP)}, {v(TMP)} offset:4
ds_write_b32 {v(aP)}, {v(TMP+8)} offset:{640*8}
s_mov_b64 exec, -1
""")
stamp("wr", (2,))
for t_ in SETC[7:]: A(t_)
if WP == 1:
    A(f"s_cmp_ge_u32 {s(sW)}, 4")
    A("s_cbranch_scc1 L_nowp")
    A(WNSET)
    w_pair(range(NE))
    A.label("L_nowp")
A("s_waitcnt lgkmcnt(0)")
for t_ in TAGI: A(t_)
stamp("wrd", (2,))
A("s_barrier")
stamp("bar1", (1, 2, 4))
A(f"""
s_cmp_lg_u32 {s(sW)}, {SPW}
s_cbranch_scc1 L_nosp1
v_mul_u32_u24 {v(PH)}, {2*PS}, {v(g_)}
ds_read_b64 {v(XR,2)}, {v(PH)} offset:{EXOFF+640*8}
ds_read_b64 {v(XR+2,2)}, {v(PH)} offset:{EXOFF+640*8+PS}
s_lshl4_add_u32 {s(sT[0])}, {s(sM8)}, {s(sRHO)}
s_lshl_b32 {s(sT[0])}, {s(sT[0])}, 7
s_add_u32 {s(sT[0])}, {s(sT[0])}, {XB}
v_lshlrev_b32 {v(PH+1)}, 2, {v(vL)}
v_lshlrev_b32 {v(PH+2)}, 4, {v(g_)}
s_waitcnt vmcnt({NE if WP == 0 else 2*NE})
v_lshl_or_b32 v11, v12, 16, v11
s_mov_b64 exec, 0xffff
buffer_store_dword v11, {v(PH+1)}, {srd(WS_)}, {s(sT[0])} offen offset:64 sc1
s_mov_b64 exec, -1
s_waitcnt lgkmcnt(0)
""")
m16(D1R, M3, XR, None); m16(D1R+4, M3+4, XR, None)
cvt(TMP, D1R, D1R+2); cvt(TMP+1, D1R+4, D1R+6); cvt(TMP+2, D1R+1, D1R+3); cvt(TMP+3, D1R+5, D1R+7)
A(f"""
s_mov_b32 exec_lo, 0x00010001
s_mov_b32 exec_hi, 0x00010001
buffer_store_dwordx4 {v(TMP,4)}, {v(PH+2)}, {srd(WS_)}, {s(sT[0])} offen sc1
s_mov_b64 exec, -1
L_nosp1:
""")
for t in range(4):
    for jj in range(2):
        A(f"ds_read_b64 {v(XR+4*t+2*jj,2)}, {v(aRD)} offset:{160*t+PS*jj}")
for t in range(4):
    A(f"s_waitcnt lgkmcnt({6-2*t})")
    m16(D1R+8*t, M3, XR+4*t, None)
peek(sC1)
for t in range(4):
    m16(D1R+8*t+4, M3+4, XR+4*t, None)
for mt in range(2):
    for al in range(2):
        o = TMP + 4 + (mt*2+al)*4
        d = D1R + 4*mt + 2*al
        cvt(o, d, d+8); cvt(o+2, d+1, d+9); cvt(o+1, d+16, d+24); cvt(o+3, d+17, d+25)
    for al in range(2):
        o = TMP + 4 + (mt*2+al)*4
        A(f"buffer_store_dwordx4 {v(o,4)}, {v(aST)}, {srd(OUT_)}, {s(sS1[mt])} offen offset:{al*256} sc1")
stamp("st1", (2,))
sPH = sE
A(f"""
s_barrier
""")
A(f"s_mov_b32 {s(sPH)}, 1")
GH = OPT['gh']
if GH:
    A(f"""
    s_cmp_lt_u32 {s(sW)}, 4
    s_cbranch_scc1 L_nogen
    s_sub_u32 {s(sI)}, {s(sW)}, {4 if GH == 2 else 0}
    L_gen:
    """)
    if STAG == 2:
        A(f"s_cmp_lg_u32 {s(sM)}, 0")
        A("s_cbranch_scc1 L_genskip")
    gen_m2(sI)
    A.label("L_genskip")
    if GH == 2:
        A(f"""
        s_add_u32 {s(sI)}, {s(sI)}, 4
        s_cmp_lt_u32 {s(sI)}, 8
        s_cbranch_scc1 L_gen
        """)
    lds_post(12)
    if GH == 1:
        A(f"s_cmp_lt_u32 {s(sW)}, 4")
        A("s_cbranch_scc1 L_genret")
    A.label("L_nogen")
validate("L_val1", sC1)
A(f"""
s_cmp_lg_u32 {s(sW)}, {SPW}
s_cbranch_scc1 L_nosp2
s_waitcnt vmcnt(4)
s_atomic_add {s(sX16)}, {s(WS_,2)}, {s(sC1)}
L_nosp2:
s_waitcnt vmcnt(0)
""")
signal(sC1)
stamp("fl1")
aW, aF, aRe, aIm, aO, aD = vT[2:8]
sFA, sFB, sFC, sDST, sOI, sDONE, sNEW, sMK = sT[4:12]
A(f"""
s_cmp_ge_u32 {s(sW)}, 4
s_cbranch_scc1 L_helper
""")
A(f"""
v_add_u32 {v(PH)}, 8, {v(vL)}
v_mul_u32_u24 {v(PH+1)}, 57, {v(PH)}
v_lshrrev_b32 {v(PH+1)}, 9, {v(PH+1)}
v_mul_u32_u24 {v(PH+1)}, {16416-144}, {v(PH+1)}
v_lshl_add_u32 {v(aWT)}, {v(PH)}, 4, {v(PH+1)}
v_add_u32 {v(aWT)}, {56*16416}, {v(aWT)}
""")
w_piece(4)
if WP == 0: A(WNSET)
w_pair(range(NE, 4))
if GH == 1:
    A(f"s_mov_b32 {s(sI)}, {s(sW)}")
    A("s_branch L_gen")
    A.label("L_genret")
if GH == 0:
    A(f"s_mov_b32 {s(sI)}, {s(sW)}")
    A.label("L_gen")
    gen_m2(sI)
    A(f"""
    s_add_u32 {s(sI)}, {s(sI)}, 4
    s_cmp_lt_u32 {s(sI)}, 8
    s_cbranch_scc1 L_gen
    """)
    lds_post(12)
A(f"""
s_mov_b32 {s(sFA)}, 0
s_and_b32 {s(sFC)}, {s(sA)}, 7
s_mov_b32 {s(sFB)}, 0
s_mul_i32 {s(sOI)}, {s(sW)}, {OS}
s_add_u32 {s(sOI)}, {s(sOI)}, {WOFF}
v_lshrrev_b32 {v(aRe)}, 2, {v(vL)}
v_and_b32 {v(aF)}, 3, {v(aRe)}
v_xor_b32 {v(aF)}, {s(sW)}, {v(aF)}
v_lshlrev_b32 {v(aRe)}, 8, {v(aRe)}
v_lshl_add_u32 {v(aRe)}, {v(aF)}, 6, {v(aRe)}
v_and_b32 {v(aF)}, 3, {v(vL)}
v_lshl_add_u32 {v(aRe)}, {v(aF)}, 4, {v(aRe)}
s_lshl_b32 {s(sT[0])}, {s(sW)}, 5
s_add_u32 {s(sT[0])}, {s(sT[0])}, {WOFF}
v_min_u32 {v(aW)}, 2, {v(g_)}
v_mul_u32_u24 {v(aF)}, 144, {v(c_)}
v_lshl_add_u32 {v(aW)}, {v(aW)}, 4, {v(aF)}
v_add_u32 {v(aW)}, {s(sT[0])}, {v(aW)}
""")
A.label("L_p2common")
A(f"v_lshlrev_b32 {v(aF)}, 4, {v(vL)}")
A(f"v_add_u32 {v(aF)}, {M2OFF}, {v(aF)}")
SEL = DNR
A(f"""
v_lshlrev_b32 {v(DIM)}, {s(sFA)}, {v(c_)}
v_lshlrev_b32 {v(DIM+1)}, 3, {v(g_)}
v_sub_u32 {v(DIM)}, {v(DIM)}, {v(DIM+1)}
v_add_u32 {v(DIM)}, {s(sFC)}, {v(DIM)}
v_add_u32 {v(DIM+1)}, {s(sFB)}, {v(DIM)}
v_mov_b32 {v(DIM+4)}, 0x3500
""")
for q in range(2):
    A(f"v_and_b32 {v(DIM+2)}, 1, {v(DIM+q)}")
    A(f"v_lshlrev_b32 {v(DIM+2)}, 4, {v(DIM+2)}")
    A(f"v_lshlrev_b32 {v(DIM+2)}, {v(DIM+2)}, {v(DIM+4)}")
    A(f"v_ashrrev_i32 {v(DIM+3)}, 1, {v(DIM+q)}")
    for j in range(4):
        A(f"v_cmp_eq_u32 vcc, {j}, {v(DIM+3)}")
        A(f"v_cndmask_b32 {v(SEL+4*q+j)}, 0, {v(DIM+2)}, vcc")
A(f"""
v_and_b32 {v(aIm)}, 1, {v(g_)}
v_lshl_add_u32 {v(aRe)}, {v(aIm)}, 3, {v(aRe)}
v_xor_b32 {v(aIm)}, 8, {v(aRe)}
v_bfe_u32 {v(aO)}, {v(vL)}, 1, 2
v_xor_b32 {v(aO)}, {v(aO)}, {v(g_)}
v_lshlrev_b32 {v(aO)}, 4, {v(aO)}
v_lshl_add_u32 {v(aO)}, {v(c_)}, 6, {v(aO)}
v_add_u32 {v(aO)}, {s(sOI)}, {v(aO)}
v_mov_b32 {v(vT[9])}, 1
s_mov_b32 {s(sT[0])}, 0x80008000
s_mov_b32 {s(sDONE)}, 0
""")
lds_wait("L_fr", 12, 8 if GH == 1 else 4)
for f in range(16):
    A(f"ds_read_b128 {v(FR+4*f,4)}, {v(aF)} offset:{f*1024}")
A(f"""
s_waitcnt vmcnt(0)
s_cmp_lt_u32 {s(sW)}, 4
s_cbranch_scc1 L_wreg
""")
for t in range(8):
    m16(WRF+4*t, ER+4*t, SEL, None); m16(WIF+4*t, ER+4*t, SEL+4, None)
A(f"s_movk_i32 {s(sMK)}, 0xff")
A("s_branch L_dspx")
A.label("L_wreg")
lds_post(0)

lds_wait("L_wr", 0, 8)
for t in range(16):
    if t == 12: A("s_waitcnt lgkmcnt(8)")
    A(f"ds_read_b128 {v(ER+4*t,4)}, {v(aW)} offset:{t*2304}")
A(f"s_lshl_b32 {s(sMK)}, 16, {s(sW)}")
lds_bit(4, sMK)
for t in range(16):
    if t >= 4: A(f"s_waitcnt lgkmcnt({16-t})")
    m16(WRF+4*t, ER+4*t, SEL, None)
stamp("wcv", (1,))
A(f"""
s_mov_b32 {s(sCNT)}, 0x40000
L_dsp:
ds_read_b32 {v(vS1)}, {v(vSY)} offset:4
s_sub_u32 {s(sCNT)}, {s(sCNT)}, 1
s_cbranch_scc1 L_fwd_done
s_waitcnt lgkmcnt(0)
v_readfirstlane_b32 {s(sMK)}, {v(vS1)}
L_dspx:
s_andn2_b32 {s(sNEW)}, {s(sMK)}, {s(sDONE)}
s_cbranch_scc0 L_dsp
""")
stamp("dat1", (1, 3))
for u in range(4):
    A(f"s_bitcmp1_b32 {s(sNEW)}, {u}")
    A(f"s_cbranch_scc0 L_nr{u}")
    for j in range(2): A(f"ds_read_b64_tr_b16 {v(DRE+4*u+2*j,2)}, {v(aRe)} offset:{u*8192+j*4096}")
    for j in range(2): A(f"ds_read_b64_tr_b16 {v(DIM+4*u+2*j,2)}, {v(aIm)} offset:{u*8192+j*4096}")
    A.label(f"L_nr{u}")
A(f"s_or_b32 {s(sDONE)}, {s(sDONE)}, {s(sNEW)}")
A("s_waitcnt lgkmcnt(0)")
for u in range(4):
    A(f"s_bitcmp1_b32 {s(sNEW)}, {u}")
    A(f"s_cbranch_scc0 L_nm{u}")
    fc = lambda mt: FR + (u*4 + mt*2) * 4
    fs = lambda mt: FR + (u*4 + mt*2 + 1) * 4
    e = lambda mt: (u*2 + mt) * 4
    weave([M16(ER+e(0), fc(0), DRE+4*u, None), M16(ER+e(1), fc(1), DRE+4*u, None),
           M16(EI+e(0), fc(0), DIM+4*u, None), M16(EI+e(1), fc(1), DIM+4*u, None),
           M16(ER+e(0), fs(0), DIM+4*u, ER+e(0)), M16(ER+e(1), fs(1), DIM+4*u, ER+e(1)),
           M16(EI+e(0), fs(0), DNR+4*u, EI+e(0)), M16(EI+e(1), fs(1), DNR+4*u, EI+e(1))],
          [f"v_xor_b32 {v(DNR+4*u+j)}, {s(sT[0])}, {v(DRE+4*u+j)}" for j in range(4)], 2)
    for f in range(4*u, 4*u+4): A(f"ds_read_b128 {v(FR+4*f,4)}, {v(aF)} offset:{16384+f*1024}")
    A.label(f"L_nm{u}")
A(f"""
s_cmp_lg_u32 {s(sDONE)}, 0xff
s_cbranch_scc1 L_dsp
L_fwd_done:
""")
stamp("fwd", (3,))
A("s_nop 1")
TT = DNR
def pk(op, d, a, b, c=None, na=False, nb=False):
    ops = f"{v(d,2)}, {v(a,2)}, {v(b,2)}" + (f", {v(c,2)}" if c is not None else "")
    n = [int(na), int(nb)] + ([0] if c is not None else [])
    mod = f" neg_lo:{n} neg_hi:{n}".replace(", ", ",") if (na or nb) else ""
    A(f"v_pk_{op}_f32 {ops}{mod}")
add = lambda d, a, b: pk("add", d, a, b)
sub = lambda d, a, b: pk("add", d, a, b, nb=True)
A.raw(".p2align 3")
for mt in range(2):
    for rp in range(2):
        er = lambda u: ER + (u*2+mt)*4 + 2*rp
        ei = lambda u: EI + (u*2+mt)*4 + 2*rp
        wr = lambda q: WRF + (q*2+mt)*4 + 2*rp
        wi = lambda q: WIF + (q*2+mt)*4 + 2*rp
        tr = lambda i: TT + 4*i
        ti = lambda i: TT + 4*i + 2
        add(tr(0), er(0), er(2)); add(ti(0), ei(0), ei(2)); sub(tr(1), er(0), er(2)); sub(ti(1), ei(0), ei(2))
        add(tr(2), er(1), er(3)); add(ti(2), ei(1), ei(3)); sub(tr(3), er(1), er(3)); sub(ti(3), ei(1), ei(3))
        add(er(0), tr(0), tr(2)); add(ei(0), ti(0), ti(2)); sub(er(2), tr(0), tr(2)); sub(ei(2), ti(0), ti(2))
        add(er(1), tr(1), ti(3)); sub(ei(1), ti(1), tr(3)); sub(er(3), tr(1), ti(3)); add(ei(3), ti(1), tr(3))
        for q in range(4):
            pk("mul", tr(q), er(q), wr(q)); pk("mul", ti(q), er(q), wi(q))
        for q in range(4):
            pk("fma", tr(q), ei(q), wi(q), tr(q), na=True); pk("fma", ti(q), ei(q), wr(q), ti(q))
        add(wr(0), tr(0), tr(2)); add(wi(0), ti(0), ti(2)); sub(wr(1), tr(0), tr(2)); sub(wi(1), ti(0), ti(2))
        add(wr(2), tr(1), tr(3)); add(wi(2), ti(1), ti(3)); sub(wr(3), tr(1), tr(3)); sub(wi(3), ti(1), ti(3))
        add(er(0), wr(0), wr(2)); add(ei(0), wi(0), wi(2)); sub(er(2), wr(0), wr(2)); sub(ei(2), wi(0), wi(2))
        sub(er(1), wr(1), wi(3)); add(ei(1), wi(1), wr(3)); add(er(3), wr(1), wi(3)); sub(ei(3), wi(1), wr(3))
def OPS(u):
    L = [CVT(DRE+4*u+j, ER+8*u+2*j, ER+8*u+2*j+1) for j in range(4)]
    L += [CVT(DIM+4*u+j, EI+8*u+2*j, EI+8*u+2*j+1) for j in range(4)]
    L += [CVT(DNR+4*u+j, EI+8*u+2*j, EI+8*u+2*j+1, True, True) for j in range(4)]
    return L
def INV(k):
    e = k*4; o = WRF + e
    return [CVT(o, ER+e, ER+e+1), CVT(o+1, ER+e+2, ER+e+3), CVT(o+2, EI+e, EI+e+1), CVT(o+3, EI+e+2, EI+e+3),
            f"ds_write_b128 {v(aO)}, {v(o,4)} offset:{k*1024}", f"ds_add_u32 {v(vPG)}, {v(vT[9])}"]
for t_ in OPS(0): A(t_)
A("s_waitcnt lgkmcnt(0)")
stamp("mid", (3,))
for k in range(8):
    u, nt = k >> 1, k & 1
    fc, fs, e = FR + (u*4 + nt*2) * 4, FR + (u*4 + nt*2 + 1) * 4, k * 4
    ops = OPS(u+1)[6*nt:6*nt+6] if u < 3 else []
    out = INV(k-1) if k >= 1 else []
    fill = ops + out
    weave([M16(ER+e, DRE+4*u, fc, None), M16(EI+e, DIM+4*u, fc, None), M16(ER+e, DNR+4*u, fs, ER+e), M16(EI+e, DRE+4*u, fs, EI+e)],
          fill, [3, 3, 2, 4] if ops and out else ([2, 2, 2, 0] if ops else [0, 0, 0, 6]))
stamp("inv", (3,))
for t_ in INV(7): A(t_)
stamp("cmp2", (1, 3))
A(f"""
s_cmp_lt_u32 {s(sW)}, 4
s_cbranch_scc1 L_setup3
""")
A(f"""
v_lshlrev_b32 {v(aO)}, 7, {v(c_)}
v_lshl_add_u32 {v(aO)}, {v(g_)}, 4, {v(aO)}
""")
for i in range(8): A(f"v_mov_b32 {v(WIF+2*i+1)}, {s(sTAG)}")
for k in range(8):
    o = WIF + 8*(k & 1)
    for e in range(4): cvt(o+2*e, ER+4*k+e, EI+4*k+e)
    for h in range(2): A(f"buffer_store_dwordx4 {v(o+4*h,4)}, {v(aO)}, {srd(WS_)}, {s(sDST)} offen offset:{(k&1)*2048+h*64} sc1")
    if k & 1: A(f"s_add_u32 {s(sDST)}, {s(sDST)}, 4096")
A(f"""
s_setprio 0
s_branch L_setup3
L_helper:
""")
lds_post(0)
sSRC, sPL, sSG, sBIT = sT[4:8]
A(f"""
s_sub_u32 {s(sT[1])}, {s(sW)}, 4
s_and_b32 {s(sT[10])}, {s(sA)}, 8
s_add_u32 {s(sT[10])}, {s(sT[10])}, {s(sGRP)}
s_lshl_b32 {s(sT[10])}, {s(sT[10])}, 11
s_add_u32 {s(sT[10])}, {s(sT[10])}, {s(sM8)}
s_and_b32 {s(sT[9])}, {s(sA)}, 7
s_add_u32 {s(sT[10])}, {s(sT[10])}, {s(sT[9])}
s_lshl_b32 {s(sT[10])}, {s(sT[10])}, 8
s_lshl_b32 {s(sSRC)}, {s(sT[1])}, 12
s_add_u32 {s(sSRC)}, {s(sSRC)}, {s(sT[10])}
s_lshl2_add_u32 {s(sPL)}, {s(sGRP)}, {s(sT[1])}
s_mul_i32 {s(sPL)}, {s(sPL)}, {CP}
s_add_u32 {s(sPL)}, {s(sPL)}, {s(sCM)}
s_cmp_eq_u32 {s(sGRP)}, {SPW}
s_cselect_b32 {s(sSG)}, 0x200020, 32
s_lshl_b32 m0, {s(sT[1])}, 13
s_lshl_b32 {s(sBIT)}, 1, {s(sT[1])}
v_lshlrev_b32 {v(aD)}, 2, {v(g_)}
v_xor_b32 {v(aD)}, {v(aD)}, {v(c_)}
v_lshlrev_b32 {v(aD)}, 4, {v(aD)}
v_lshl_add_u32 {v(aD)}, {v(g_)}, 14, {v(aD)}
""")
poll("L_poll1", sPL, s(sSG), OPT['sl1'])
stamp("pol1")
for n in range(8):
    A(f"buffer_load_dwordx4 {v(aD)}, {srd(OUT_)}, {s(sSRC)} offen sc1 lds")
    if n < 7:
        A(f"s_add_u32 m0, m0, 1024")
        A(f"s_add_u32 {s(sSRC)}, {s(sSRC)}, 65536")
        if OPT['px']: A(f"s_xor_b32 {s(sSRC)}, {s(sSRC)}, {4*AROW}")
XP = [WR_, WR_+2, WI_, WI_+2]
A(f"""
s_cmp_lg_u32 {s(sW)}, 4
s_cbranch_scc1 L_posted
s_sub_u32 {s(sT[3])}, s2, {HOST}
s_cmp_ge_u32 {s(sT[3])}, 2
s_cbranch_scc1 L_posted
s_cmp_eq_u32 {s(sT[3])}, 0
s_cbranch_scc1 L_xa
s_waitcnt vmcnt(0)
""")
lds_bit(4, sONE)
A(f"""
L_xa:
s_mul_i32 {s(sT[2])}, {s(sT[3])}, {128*CP}
s_add_u32 {s(sT[2])}, {s(sT[2])}, {CB+SPW*4*CP}
s_mov_b32 {s(sCNT)}, 0x8000
L_pollx:
""")
for i in range(4):
    A(f"s_mov_b64 {s(XP[i],2)}, 0")
    A(f"s_atomic_or_x2 {s(XP[i],2)}, {s(WS_,2)}, {s(sT[2])} offset:{i*CP} glc")
A(f"""
s_sub_u32 {s(sCNT)}, {s(sCNT)}, 1
s_cbranch_scc1 L_pollx_out
s_waitcnt lgkmcnt(0)
""")
for i in range(4):
    A(f"s_cmp_lg_u32 {s(XP[i]+1)}, {s(sTAG)}")
    A("s_cbranch_scc1 L_pollx")
A(f"""
s_and_b32 {s(XP[0])}, {s(XP[0])}, {s(XP[1])}
s_and_b32 {s(XP[2])}, {s(XP[2])}, {s(XP[3])}
s_and_b32 {s(XP[0])}, {s(XP[0])}, {s(XP[2])}
s_bitcmp1_b32 {s(XP[0])}, 21
s_cbranch_scc0 L_pollx
L_pollx_out:
""")
if OPT['xprio']: A("s_setprio 3")
A(f"""
s_mov_b32 {s(sFA)}, 1
s_mov_b32 {s(sFC)}, 0
s_mov_b32 {s(sFB)}, 1
s_lshl_b32 {s(sDST)}, {s(sT[3])}, 14
s_add_u32 {s(sDST)}, {s(sDST)}, {XB}
s_mov_b32 {s(sT[2])}, {s(sDST)}
v_lshrrev_b32 {v(aD)}, 2, {v(vL)}
v_and_b32 {v(aW)}, 3, {v(vL)}
v_lshlrev_b32 {v(aW)}, 4, {v(aW)}
v_lshl_add_u32 {v(aD)}, {v(aD)}, 7, {v(aW)}
v_lshlrev_b32 {v(aW)}, 7, {v(c_)}
v_lshl_add_u32 {v(aW)}, {v(g_)}, 4, {v(aW)}
s_mov_b32 {s(sOI)}, {XOUT}
v_lshlrev_b32 {v(aRe)}, 4, {v(vL)}
v_add_u32 {v(aRe)}, {EXOFF}, {v(aRe)}
s_mov_b32 m0, {EXOFF}
""")
for n in range(8):
    A(f"buffer_load_dwordx4 {v(aD)}, {srd(WS_)}, {s(sT[2])} offen sc1 lds")
    A(f"buffer_load_dwordx4 {v(ER+4*n,4)}, {v(aW)}, {srd(WS_)}, {s(sT[2])} offen offset:64 sc1")
    if n < 7:
        A(f"s_add_u32 m0, m0, 4096")
        A(f"s_add_u32 {s(sT[2])}, {s(sT[2])}, 2048")
A("s_waitcnt vmcnt(16)")
lds_bit(4, sONE)
A("s_branch L_p2common")
A.label("L_posted")
A(f"""
s_cmp_lt_u32 {s(sW)}, {8-NST}
s_cselect_b32 {s(sPH)}, 1, 0
s_waitcnt vmcnt(0)
""")
lds_bit(4, sBIT)
A.label("L_setup3")
A3 = 237
aD3, aPw, aQ1, aQ0, aRd3, aSo, aQp = range(A3, A3+7)
aT = list(range(A3+9, A3+13))
sMR, sS3 = sT[2], sT[3]
A(f"""
v_lshrrev_b32 {v(PH)}, 1, {v(vL)}
v_xor_b32 {v(PH)}, {v(PH)}, {v(vL)}
v_and_b32 {v(PH)}, 4, {v(PH)}
v_mul_u32_u24 {v(PH)}, 3, {v(PH)}
v_xor_b32 {v(PH)}, {v(PH)}, {v(vL)}
v_lshlrev_b32 {v(vS1)}, 4, {v(PH)}
v_add_u32 {v(vS1)}, {T1OFF}, {v(vS1)}
v_and_b32 {v(aSo)}, 15, {v(PH)}
v_lshlrev_b32 {v(aSo)}, 6, {v(aSo)}
v_and_b32 {v(PH)}, 1, {v(g_)}
v_lshl_add_u32 {v(aSo)}, {v(PH)}, 5, {v(aSo)}
v_lshrrev_b32 {v(PH)}, 1, {v(g_)}
v_lshl_add_u32 {v(aSo)}, {v(PH)}, 4, {v(aSo)}
""")
load_tables(vS1)
A(f"""
v_lshrrev_b32 {v(PH)}, 2, {v(c_)}
v_lshl_add_u32 {v(PH)}, {v(PH)}, 7, {s(sSB)}
v_cvt_f32_u32 {v(PH)}, {v(PH)}
v_mul_f32 {v(PH)}, {fbits(1/2048)}, {v(PH)}
v_add_f32 {v(PH+1)}, {fbits(0.25)}, {v(PH)}
v_and_b32 {v(PH+2)}, 1, {v(c_)}
v_cvt_f32_u32 {v(PH+2)}, {v(PH+2)}
v_mul_f32 {v(PH+2)}, {fbits(-0.25)}, {v(PH+2)}
v_add_f32 {v(PH+3)}, {fbits(-0.125)}, {v(PH+2)}
v_add_f32 {v(PH+2)}, {fbits(0.125)}, {v(PH+2)}
v_and_b32 {v(PH+4)}, 2, {v(c_)}
v_lshlrev_b32 {v(PH+4)}, 30, {v(PH+4)}
v_xor_b32 {v(PH+2)}, {v(PH+4)}, {v(PH+2)}
v_xor_b32 {v(PH+3)}, {v(PH+4)}, {v(PH+3)}
v_lshlrev_b32 {v(PH+4)}, 1, {v(g_)}
v_cvt_f32_u32 {v(PH+4)}, {v(PH+4)}
v_add_f32 {v(PH+5)}, 1.0, {v(PH+4)}
v_add_f32 {v(PH+6)}, {fbits(8.0)}, {v(PH+4)}
v_add_f32 {v(PH+7)}, {fbits(9.0)}, {v(PH+4)}
""")
for mt in range(2):
    for j in range(4):
        t = TMP + (mt*4+j)*3
        A(f"v_fma_f32 {v(t)}, {v(PH+mt)}, {v(PH+4+j)}, {v(PH+2+(j&1))}")
        A(f"v_cos_f32 {v(t+1)}, {v(t)}")
        A(f"v_sin_f32 {v(t+2)}, {v(t)}")
for mt in range(2):
    for j in range(4):
        t = TMP + (mt*4+j)*3
        cvt(M3+mt*4+j, t+1, t+2, False, True)
A(f"""
v_lshrrev_b32 {v(PH)}, 3, {v(vL)}
v_and_b32 {v(PH+1)}, 3, {v(PH)}
v_lshlrev_b32 {v(PH+1)}, 6, {v(PH+1)}
v_lshl_add_u32 {v(PH)}, {v(PH)}, 8, {v(PH+1)}
v_and_b32 {v(PH+1)}, 3, {v(vL)}
v_lshl_add_u32 {v(PH)}, {v(PH+1)}, 4, {v(PH)}
v_and_b32 {v(PH+1)}, 4, {v(vL)}
v_lshl_add_u32 {v(PH)}, {v(PH+1)}, 1, {v(PH)}
v_add_u32 {v(aT[0])}, {s(sW12)}, {v(PH)}
v_xor_b32 {v(aT[1])}, 64, {v(aT[0])}
v_xor_b32 {v(aT[2])}, 128, {v(aT[0])}
v_xor_b32 {v(aT[3])}, 192, {v(aT[0])}
v_mul_u32_u24 {v(PH)}, {PS2}, {v(g_)}
s_lshl_b32 {s(sT[0])}, {s(sW)}, 8
s_add_u32 {s(sT[1])}, {s(sT[0])}, {EX2}
s_sub_u32 {s(sT[0])}, {EX2+15*256}, {s(sT[0])}
v_lshl_add_u32 {v(aPw)}, {v(c_)}, 3, {v(PH)}
v_add_u32 {v(aPw)}, {s(sT[1])}, {v(aPw)}
v_sub_u32 {v(PH+1)}, 16, {v(c_)}
v_lshl_add_u32 {v(PH+1)}, {v(PH+1)}, 3, {v(PH)}
v_add_u32 {v(aQp)}, {s(sT[0])}, {v(PH+1)}
v_cmp_eq_u32 vcc, 0, {v(c_)}
v_mov_b32 {v(PH+2)}, 128
v_mov_b32 {v(PH+3)}, 132
v_mov_b32 {v(PH+4)}, -124
v_cndmask_b32 {v(PH+4)}, {v(PH+2)}, {v(PH+4)}, vcc
v_cndmask_b32 {v(PH+3)}, {v(PH+3)}, {v(PH+2)}, vcc
v_add_u32 {v(aQ1)}, {v(aQp)}, {v(PH+4)}
v_add_u32 {v(aQ0)}, {v(aQp)}, {v(PH+3)}
s_mul_i32 {s(sT[0])}, {s(sP)}, {PS2}
s_add_u32 {s(sT[0])}, {s(sT[0])}, {EX2}
v_and_b32 {v(PH+1)}, 31, {v(vL)}
v_lshrrev_b32 {v(PH+2)}, 5, {v(vL)}
v_lshlrev_b32 {v(PH+3)}, 9, {v(PH+2)}
v_lshl_add_u32 {v(PH+3)}, {v(PH+1)}, 3, {v(PH+3)}
v_add_u32 {v(aRd3)}, {s(sT[0])}, {v(PH+3)}
s_lshl_b32 {s(sO[0])}, {s(sP)}, 7
s_add_u32 {s(sO[0])}, {s(sO[0])}, {s(sSB)}
s_lshl_b32 {s(sO[0])}, {s(sO[0])}, 12
s_lshl_b32 {s(sO[1])}, {s(sM)}, 11
s_add_u32 {s(sO[0])}, {s(sO[0])}, {s(sO[1])}
s_add_u32 {s(sO[1])}, {s(sO[0])}, {1024*4096}
s_mov_b32 {s(sPM)}, 0x05040100
s_mov_b32 {s(sPM+1)}, 0x07060302
""")
A(f"""
v_lshlrev_b32 {v(PH)}, 2, {v(g_)}
v_xor_b32 {v(PH)}, {v(PH)}, {v(c_)}
v_lshlrev_b32 {v(PH)}, 4, {v(PH)}
v_lshl_add_u32 {v(aD3)}, {v(g_)}, 8, {v(PH)}
s_lshl_b32 {s(sMR)}, {s(sM)}, 7
s_add_u32 {s(sMR)}, {s(sMR)}, {s(sRHO)}
s_cmp_lg_u32 {s(sPH)}, 0
s_cbranch_scc1 L_nosig2
""")
aR0, aR1, aS2, aPr, aS3 = vT[2:7]
sD = sT[4:5]
A(f"""
v_bfe_u32 {v(aR0)}, {v(vL)}, 2, 2
v_mul_u32_u24 {v(aR0)}, {OS}, {v(aR0)}
v_lshl_add_u32 {v(aR0)}, {v(g_)}, 6, {v(aR0)}
v_and_b32 {v(aR1)}, 3, {v(vL)}
v_mul_u32_u24 {v(aPr)}, 260, {v(aR1)}
v_add_u32 {v(aPr)}, {PGOFF}, {v(aPr)}
v_lshrrev_b32 {v(aS2)}, 5, {v(vL)}
v_xor_b32 {v(aR1)}, {v(aR1)}, {v(aS2)}
v_lshl_add_u32 {v(aR0)}, {v(aR1)}, 4, {v(aR0)}
s_sub_u32 {s(sT[8])}, 7, {s(sW)}
s_lshl_b32 {s(sT[0])}, {s(sT[8])}, 10
s_add_u32 {s(sT[0])}, {s(sT[0])}, {WOFF}
v_add_u32 {v(aR0)}, {s(sT[0])}, {v(aR0)}
v_xor_b32 {v(aR1)}, 32, {v(aR0)}
v_lshlrev_b32 {v(aS2)}, 14, {v(g_)}
v_lshl_add_u32 {v(aS2)}, {v(c_)}, 4, {v(aS2)}
s_lshl3_add_u32 {s(sT[0])}, {s(sGRP)}, {s(sT[8])}
s_mul_i32 {s(sT[0])}, {s(sT[0])}, {CP}
s_add_u32 {s(sT[0])}, {s(sT[0])}, {s(sCM)}
s_add_u32 {s(sT[0])}, {s(sT[0])}, {32*CP}
""")
NR = -(-8 // NST)
for i in range(NR):
    if NST*i + NST > 8:
        A(f"s_cmp_ge_u32 {s(sT[8])}, 8")
        A("s_cbranch_scc1 L_short")
    A(f"""
    s_lshr_b32 {s(sD[0])}, {s(sT[8])}, 1
    s_and_b32 {s(sT[6])}, {s(sT[8])}, 1
    s_lshl_b32 {s(sT[6])}, {s(sT[6])}, 6
    s_add_u32 {s(sD[0])}, {s(sD[0])}, {s(sT[6])}
    s_lshl_b32 {s(sD[0])}, {s(sD[0])}, 12
    s_add_u32 {s(sD[0])}, {s(sD[0])}, {s(sT[10])}
    s_mov_b32 {s(sCNT)}, 0x40000
    L_pg{i}:
    ds_read_b32 {v(vS1)}, {v(aPr)}
    s_sub_u32 {s(sCNT)}, {s(sCNT)}, 1
    s_cbranch_scc1 L_pg{i}_out
    {('s_sleep %d' % OPT['slp']) if i == 0 and OPT['slp'] else ''}
    s_waitcnt lgkmcnt(0)
    v_cmp_ge_u32 vcc, {s(sT[8])}, {v(vS1)}
    s_and_b64 vcc, vcc, vcc
    s_cbranch_scc1 L_pg{i}
    L_pg{i}_out:
    """)
    d = D1R + 16*i
    for j in range(4): A(f"ds_read_b128 {v(d+4*j,4)}, {v(aR1 if j & 1 else aR0)} offset:{i*NST*1024+j*256}")
    A(f"s_add_u32 {s(sT[8])}, {s(sT[8])}, {NST}")
    for j in range(4):
        A(f"s_waitcnt lgkmcnt({3-j})")
        A(f"buffer_store_dwordx4 {v(d+4*j,4)}, {v(aS2)}, {srd(OUT_)}, {s(sD[0])} offen sc1")
        if j < 3:
            A(f"s_add_u32 {s(sD[0])}, {s(sD[0])}, 65536")
            if OPT['px']: A(f"s_xor_b32 {s(sD[0])}, {s(sD[0])}, {4*AROW}")
for i in range(NR):
    A(f"s_waitcnt vmcnt({4*(NR-1-i)})")
    signal(sT[0], NST*i*CP)
if 8 % NST:
    A("s_branch L_nosig2")
    A.label("L_short")
    for i in range(NR-1):
        A(f"s_waitcnt vmcnt({4*(NR-2-i)})")
        signal(sT[0], NST*i*CP)
A.label("L_nosig2")
stamp("fl2")
A("s_barrier")
A(f"s_mov_b32 m0, {s(sW12)}")
poll("L_poll2", sC2, 16, OPT['sl2'])
stamp("pol2")
for j in range(4):
    A(f"buffer_load_dwordx4 {v(aD3)}, {srd(OUT_)}, {s(sO[j>>1])} offen offset:{(j&1)*1024} sc1 lds")
    if j == 1: A("s_add_u32 m0, m0, 2048")
A(f"""
s_cmp_lg_u32 {s(sW)}, 4
s_cbranch_scc1 L_noep
s_cmp_lg_u32 s2, {HOST+1}
s_cbranch_scc1 L_noep
s_mov_b32 {s(sT[4])}, {EW}
s_atomic_swap {s(sTAG)}, {s(WS_,2)}, {s(sT[4])}
s_waitcnt lgkmcnt(0)
L_noep:
""")
GB = [(8, 8), (40, 8), (88, 8), (16, 4), (28, 4)]
GS = [r + i for r, n in GB for i in range(n)]
def granule_loads():
    off = 0
    for r, n in GB:
        A(f"s_load_dwordx{n} {s(r,n)}, {s(WS_,2)}, {s(sT[4])} offset:{off} glc"); off += 4*n
A(f"""
s_cmp_lg_u32 {s(sW)}, 0
s_cbranch_scc1 L_nosp3a
s_lshl_b32 {s(sT[4])}, {s(sMR)}, 7
s_add_u32 {s(sT[4])}, {s(sT[4])}, {XB}
""")
granule_loads()
A.label("L_nosp3a")
for i in range(16):
    A(f"v_perm_b32 {v(GR+i)}, {v(FN+i//2)}, {v(FC+i//2)}, {s(sPM+(i&1))}")
    A(f"v_perm_b32 {v(GI+i)}, {v(FC+i//2)}, {v(FS+i//2)}, {s(sPM+(i&1))}")
A(f"""
s_cmp_lg_u32 {s(sW)}, 0
s_cbranch_scc1 L_nosp3b
s_mov_b32 {s(sCNT)}, 0x8000
s_branch L_gchk
L_gagain:
s_sub_u32 {s(sCNT)}, {s(sCNT)}, 1
s_cbranch_scc1 L_gok
""")
granule_loads()
A.label("L_gchk")
A("s_waitcnt lgkmcnt(0)")
for i in range(16):
    A(f"s_cmp_lg_u32 {s(GS[2*i+1])}, {s(sTAG)}")
    A("s_cbranch_scc1 L_gagain")
A.label("L_gok")
for h in range(2):
    for g in range(4):
        for q in range(2):
            A(f"v_writelane_b32 {v(TMP+4+2*h+q)}, {s(GS[h*16+g*4+2*q])}, {16*g}")
m16(D2R, M3, TMP+4, None); m16(D2R+4, M3+4, TMP+4, None)
A.label("L_nosp3b")
A("s_waitcnt vmcnt(0)")
stamp("dat2", (1, 3))
for t in (0, 2, 1, 3):
    for jj in range(2):
        A(f"ds_read_b64_tr_b16 {v(XR+4*t+2*jj,2)}, {v(aT[t])} offset:{jj*2048}")
for i, t in enumerate((0, 2, 1, 3)):
    A(f"s_waitcnt lgkmcnt({6-2*i})")
    m16(D1R+8*t, M3, XR+4*t, None); m16(D1R+8*t+4, M3+4, XR+4*t, None)
A(f"""
s_cmp_lg_u32 {s(sW)}, 0
s_cbranch_scc1 L_nofix
s_mov_b32 exec_lo, 0x00010001
s_mov_b32 exec_hi, 0x00010001
""")
for d in (D2R, D1R):
    for mt in range(2):
        for i in range(2):
            A(f"v_add_f32 {v(d+4*mt+i)}, {v(d+4*mt+i)}, {v(d+4*mt+2+i)}")
            A(f"v_mul_f32 {v(d+4*mt+i)}, 0.5, {v(d+4*mt+i)}")
cvt(TMP, D2R, D2R+1); cvt(TMP+1, D2R+4, D2R+5)
A(f"""
ds_write_b32 {v(aPw)}, {v(TMP)} offset:{8*256}
ds_write_b32 {v(aPw)}, {v(TMP+1)} offset:{8*256+4*PS2}
s_mov_b64 exec, -1
L_nofix:
s_nop 1
""")
for tp in range(2):
    for mt in range(2):
        d0 = D1R + 8*tp + 4*mt; d1 = d0 + 16
        o = TMP + 8 + (tp*2+mt)*4
        cvt(o, d0, d0+1); cvt(o+1, d1, d1+1); cvt(o+2, d1+2, d1+3); cvt(o+3, d0+2, d0+3)
for tp in range(2):
    for mt in range(2):
        o = TMP + 8 + (tp*2+mt)*4
        A(f"ds_write_b64 {v(aPw)}, {v(o,2)} offset:{mt*4*PS2+tp*128}")
        if tp == 1:
            A(f"ds_write_b64 {v(aQp)}, {v(o+2,2)} offset:{mt*4*PS2}")
        else:
            A(f"ds_write_b32 {v(aQ1)}, {v(o+2)} offset:{mt*4*PS2}")
            A(f"ds_write_b32 {v(aQ0)}, {v(o+3)} offset:{mt*4*PS2}")
A("s_waitcnt lgkmcnt(0)")
A("s_barrier")
stamp("bar3", (1, 3))
for t in range(4):
    for j in range(2):
        A(f"ds_read_b64 {v(XR+4*t+2*j,2)}, {v(aRd3)} offset:{t*1024+j*256}")
for t in range(4):
    A(f"s_waitcnt lgkmcnt({6-2*t})")
    m32(D1R, XR+4*t, GR+4*t, D1R if t else None)
A("s_nop 4")
weave([M32(D1I, XR+4*t, GI+4*t, D1I if t else None) for t in range(4)], ["s_nop 4"] + TW1(D1R, True), [1, 6, 6, 99])
stamp("m3", (3,))
for t_ in TW2(D1I, XR, XI, True, 0, 8): A(t_)
weave([M32(D2R, XR, FC, None), M32(D2R, XI, FN, D2R), M32(D2I, XR, FS, None), M32(D2I, XI, FC, D2I)], TW2(D1I, XR, XI, True, 8, 16), 6)
weave([M32(D2R, XR+4, FC+4, D2R), M32(D2R, XI+4, FN+4, D2R), M32(D2I, XR+4, FS+4, D2I), M32(D2I, XI+4, FC+4, D2I)], [], 0)
stamp("m4", (3,))
for comp, d in ((0, D2R), (1, D2I)):
    o = TMP + comp*8
    for q in (0, 4, 1, 5, 2, 6, 3, 7): cvt(o+q, d+2*q, d+2*q+1)
    for q in range(4): A(f"v_permlane16_swap_b32 {v(o+q)}, {v(o+4+q)}")
    for j in range(2):
        A(f"buffer_store_dwordx4 {v(o+4*j,4)}, {v(aSo)}, {srd(OUT_)}, {s(sO[comp])} offen offset:{j*1024}{OUTM}")
if OPT['stamp']:
    stamp("st3", (1, 3))
    A("s_waitcnt vmcnt(0)")
    stamp("end")
    A("s_waitcnt lgkmcnt(0)")
    n = len(stamps)
    assert sST + 2*n <= 88, n
    if OPT['diag']:
        da, db = OPT['da'], OPT['db']
        A(f"""
        s_load_dwordx2 s[94:95], s[0:1], 56
        s_and_b32 {s(sT[4])}, s2, 7
        s_lshl_b32 {s(sT[4])}, {s(sT[4])}, 3
        s_not_b32 {s(sT[11])}, {s(sST)}
        s_sleep 100
        s_waitcnt lgkmcnt(0)
        s_cmp_lg_u32 {s(sW)}, {OPT['wa']}
        s_cbranch_scc1 L_dg1
        s_atomic_umax {s(sST+2*da) if da else s(sT[11])}, s[94:95], {s(sT[4])}
        L_dg1:
        s_cmp_lg_u32 {s(sW)}, {OPT['wb']}
        s_cbranch_scc1 L_end
        s_atomic_umax {s(sST+2*db)}, s[94:95], {s(sT[4])} offset:4
        s_cmp_lg_u32 s2, 100
        s_cbranch_scc1 L_end
        s_add_u32 {s(sT[0])}, {s(sST+2*(n-1))}, 900
        L_amp0:
        s_memrealtime {s(sT[2],2)}
        s_waitcnt lgkmcnt(0)
        s_sub_u32 {s(sT[1])}, {s(sT[0])}, {s(sT[2])}
        s_cmp_gt_i32 {s(sT[1])}, 0
        s_cbranch_scc1 L_amp0
        s_load_dwordx16 s[60:75], s[94:95], 0 glc
        s_waitcnt lgkmcnt(0)
        """)
        for i in range(1, 8):
            A(f"s_max_u32 s60, s60, s{60+2*i}")
            A(f"s_max_u32 s61, s61, s{61+2*i}")
        if not da: A("s_not_b32 s60, s60")
        A(f"""
        s_sub_u32 {s(sT[1])}, s61, s60
        s_lshl_b32 {s(sT[1])}, {s(sT[1])}, 4
        s_min_u32 {s(sT[1])}, {s(sT[1])}, 60000
        s_add_u32 {s(sT[0])}, {s(sT[0])}, {s(sT[1])}
        L_amp:
        s_memrealtime {s(sT[2],2)}
        s_waitcnt lgkmcnt(0)
        s_sub_u32 {s(sT[1])}, {s(sT[0])}, {s(sT[2])}
        s_cmp_gt_i32 {s(sT[1])}, 0
        s_cbranch_scc1 L_amp
        s_branch L_end
        """)
    A(f"s_lshl_b32 {s(sT[0])}, s2, 3")
    A(f"s_add_u32 {s(sT[0])}, {s(sT[0])}, {s(sW)}")
    A(f"s_lshl_b32 {s(sT[0])}, {s(sT[0])}, 7")
    A(f"s_add_u32 {s(sT[0])}, {s(sT[0])}, {STAMP}")
    A("v_mov_b32 v3, 0")
    A("s_mov_b64 exec, 1")
    for i in range(n):
        A(f"v_mov_b32 v2, {s(sST+2*i)}")
        A(f"buffer_store_dword v2, v3, {srd(WS_)}, {s(sT[0])} offen offset:{i*4}")
    A.raw("; stamps: " + " ".join(stamps))
A.label("L_end")
A("s_endpgm")
def kd(name, nv, ns):
    A.raw(f""".p2align 6
.amdhsa_kernel {name}
  .amdhsa_next_free_vgpr {nv}
  .amdhsa_next_free_sgpr {ns}
  .amdhsa_accum_offset {nv}
  .amdhsa_group_segment_fixed_size 0
  .amdhsa_kernarg_size 72
  .amdhsa_user_sgpr_count 2
  .amdhsa_user_sgpr_kernarg_segment_ptr 1
  .amdhsa_system_sgpr_workgroup_id_x 1
  .amdhsa_float_denorm_mode_32 3
.end_amdhsa_kernel""")
A.raw('.section .rodata,"a"')
kd(NAME + "_kernel", 256, 102)
if OPT['lst']: kd("empty_kernel", 8, 16)
open(sys.argv[1], "w").write(A.text())
print(sys.argv[1], "nops:", A.nops, "stamps:", len(stamps), file=sys.stderr)
```

```python
import sys, struct
import numpy as np
from asmlib import Asm, v, s

NAME = "concat_heads__spectral_gfnet__spectral_gfnet__prompt"
OPT = dict(outm=1, xnt=0, wnt=0, px=4, diag=0, da=0, db=0, wa=0, wb=0, ne=3, gh=0, xprio=0, slp=0, nst=3, stag=1, tg=1, wp=0, hp=3, p1p=1,
           stamp=0, sl1=8, sl2=8, rm=1, ha=128, hb=161, spw=1, s3p=1, lst=0)
for a_ in sys.argv[2:]:
    k_, v_ = a_.split('='); assert k_ in OPT, k_; OPT[k_] = int(v_)

def fbits(x): return "0x%08x" % struct.unpack('<I', struct.pack('<f', x))[0]
def bf16(x):
    u = np.asarray(x, dtype=np.float32).view(np.uint32)
    return ((u + 0x7FFF + ((u >> 16) & 1)) >> 16).astype(np.uint32)

AUX = 0
XB = AUX + 0x30000
CP = 256
CB = AUX + 0x10000
EW = AUX + 0xa0000
STAMP = AUX + 0x100000
WSZ = 2 << 20
EXOFF = 32768
PS = 5184
WOFF = EXOFF + 8 * PS
M2OFF = WOFF + 36864
SYOFF = M2OFF + 32768
PGOFF = SYOFF + 64
T1OFF = PGOFF + 2048
LDSZ = T1OFF + 14336
EX2 = EXOFF
OS = 8320
XOUT = EXOFF + 32768
PS2 = 4160
sW, sM, sRHO, sSB, sA, sGRP = 3, 4, 5, 6, 7, 32
X_, WR_, WI_, OUT_, WS_, TAB_ = 8, 12, 16, 20, 24, 44
sCNT = 33
sT = list(range(34, 48))
sV = 48
sEXP = 50
sTAG = 51
sW12, sM8, sE, sROLE, sC1, sC2 = 52, 53, 54, 55, 56, 57
sPM = 58
sST = 60
sO = [96, 97]
sU = [98, 99, 100, 101]
sONE = sU[2]
sCM = 30
sP = 31
srd = lambda b: s(b, 4)

A = Asm()
AROW = 128 * 4096
HA, HB = OPT['ha'], OPT['hb']
NST = OPT['nst']
XNT = ' nt' if OPT['xnt'] else ''
WNT = ' nt' if OPT['wnt'] else ''
OUTM = ['', ' sc1', ' nt', ' sc0 sc1', ' sc1 nt', ' sc0 sc1 nt'][OPT['outm']]
def M32(d, a, b, c): return f"v_mfma_f32_32x32x16_bf16 {v(d,16)}, {v(a,4)}, {v(b,4)}, {v(c,16) if c is not None else 0}"
def M16(d, a, b, c): return f"v_mfma_f32_16x16x32_bf16 {v(d,4)}, {v(a,4)}, {v(b,4)}, {v(c,4) if c is not None else 0}"
def CVT(d, a, b, na=False, nb=False): return f"v_cvt_pk_bf16_f32 {v(d)}, {'-' if na else ''}{v(a)}, {'-' if nb else ''}{v(b)}"
def m32(*a): A(M32(*a))
def m16(*a): A(M16(*a))
def cvt(*a): A(CVT(*a))
def weave(mf, fill, per):
    fill = list(fill)
    for i, m in enumerate(mf):
        A(m)
        n = per[i] if isinstance(per, (list, tuple)) else per
        for _ in range(n):
            if fill: A(fill.pop(0))
    for f in fill: A(f)
stamps = []
def stamp(name, sets=(1,)):
    st = OPT['stamp']
    if name in ("start", "end"):
        if st: A(f"s_memrealtime {s(sST + 2*len(stamps), 2)}"); stamps.append(name)
        if st > 1: A(f"s_memtime {s(sST + 2*len(stamps), 2)}"); stamps.append("c" + name)
    elif st in sets:
        if name not in stamps: stamps.append(name)
        A(f"{'s_memrealtime' if st == 1 else 's_memtime'} {s(sST + 2*stamps.index(name), 2)}")

vL, c_, g_ = 1, 2, 3
vT = list(range(2, 16))
TC, TS = 16, 32
FC, FS, FN = 48, 56, 64
M3 = 72
GR, GI = 80, 96
XR, XI = 112, 120
D1R, D1I = 128, 144
D2R, D2I = 160, 176
TMP = 192
PH = 224
WRF, WIF = 16, 48
FR = 80
DRE, DIM, DNR = 144, 160, 176
ER, EI = 192, 224

def peek(off, imm=0):
    A(f"s_mov_b64 {s(sV,2)}, 0")
    A(f"s_atomic_or_x2 {s(sV,2)}, {s(WS_,2)}, {s(off)} glc" if not imm else f"s_atomic_or_x2 {s(sV,2)}, {s(WS_,2)}, {s(off)} offset:{imm} glc")
def poll(label, off, count, sleep, imm=0, keep=None):
    A(f"s_mov_b32 {s(sEXP)}, {count}")
    A(f"s_mov_b32 {s(sCNT)}, 0x8000")
    A.label(label)
    peek(off, imm)
    A(f"s_sub_u32 {s(sCNT)}, {s(sCNT)}, 1")
    A(f"s_cbranch_scc1 {label}_out")
    if sleep: A(f"s_sleep {sleep}")
    A("s_waitcnt lgkmcnt(0)")
    if keep is not None:
        A(f"s_mov_b32 {s(keep)}, {s(sV)}")
        A(f"s_and_b32 {s(sV)}, {s(sV)}, 0xffff")
    A(f"s_cmp_eq_u64 {s(sV,2)}, {s(sEXP,2)}")
    A(f"s_cbranch_scc0 {label}")
    A.label(label + "_out")
def validate(label, off, imm=0):
    A(f"s_mov_b32 {s(sCNT)}, 0x8000")
    A.label(label)
    A("s_waitcnt lgkmcnt(0)")
    A(f"s_cmp_eq_u32 {s(sV+1)}, {s(sTAG)}")
    A(f"s_cbranch_scc1 {label}_out")
    peek(off, imm)
    A(f"s_sub_u32 {s(sCNT)}, {s(sCNT)}, 1")
    A(f"s_cbranch_scc0 {label}")
    A("s_waitcnt lgkmcnt(0)")
    A.label(label + "_out")
def signal(off, imm=0):
    A(f"s_atomic_add {s(sONE)}, {s(WS_,2)}, {s(off)}" + (f" offset:{imm}" if imm else ""))

vSY, vS1, vPG = vT[12], vT[13], vT[11]
def lds_wait(label, off, val):
    A(f"s_mov_b32 {s(sCNT)}, 0x40000")
    A.label(label)
    A(f"ds_read_b32 {v(vS1)}, {v(vSY)} offset:{off}")
    A(f"s_sub_u32 {s(sCNT)}, {s(sCNT)}, 1")
    A(f"s_cbranch_scc1 {label}_out")
    A("s_waitcnt lgkmcnt(0)")
    A(f"v_cmp_gt_u32 vcc, {val}, {v(vS1)}")
    A("s_and_b64 vcc, vcc, vcc")
    A(f"s_cbranch_scc1 {label}")
    A.label(label + "_out")
def lds_bit(off, sbit):
    A(f"v_mov_b32 {v(vS1)}, {s(sbit)}")
    A("s_mov_b64 exec, 1")
    A(f"ds_or_b32 {v(vSY)}, {v(vS1)} offset:{off}")
    A("s_mov_b64 exec, -1")
def lds_post(off, rtn=False):
    A(f"v_mov_b32 {v(vS1)}, 1")
    A("s_mov_b64 exec, 1")
    if rtn: A(f"ds_add_rtn_u32 {v(vS1)}, {v(vSY)}, {v(vS1)} offset:{off}")
    else: A(f"ds_add_u32 {v(vSY)}, {v(vS1)} offset:{off}")
    A("s_mov_b64 exec, -1")

sWB, sI = sU[0], sU[3]
aWM, aWT = GR + 4, GR + 5
nlab = [0]
def w_piece(e):
    if e < 4:
        arr, half = e & 1, e >> 1
        A(f"s_add_u32 m0, {s(sT[13])}, {WOFF + (2*arr+half)*9216}")
        if half: A(f"s_add_u32 {s(sI)}, {s(sT[12])}, {64*16416}")
        A(f"buffer_load_dwordx4 {v(aWM)}, {srd(WI_ if arr else WR_)}, {s(sI if half else sT[12])} offen{WNT} lds")
    else:
        n = nlab[0]; nlab[0] += 1
        A(f"""
        s_mul_i32 {s(sI)}, {s(sW)}, 9216
        s_add_u32 m0, {s(sI)}, {WOFF + 8192}
        s_and_b32 {s(sI)}, {s(sW)}, 1
        s_mul_i32 {s(sI)}, {s(sI)}, {64*16416}
        s_add_u32 {s(sI)}, {s(sI)}, {s(sWB)}
        s_bitcmp1_b32 {s(sW)}, 1
        s_cbranch_scc1 L_t1_{n}
        buffer_load_dwordx4 {v(aWT)}, {srd(WR_)}, {s(sI)} offen{WNT} lds
        s_branch L_t2_{n}
        L_t1_{n}:
        buffer_load_dwordx4 {v(aWT)}, {srd(WI_)}, {s(sI)} offen{WNT} lds
        L_t2_{n}:
        """)
def w_base(sw):
    A(f"s_mul_i32 {s(sT[12])}, {s(sw)}, {7*16416}")
    A(f"s_add_u32 {s(sT[12])}, {s(sT[12])}, {s(sWB)}")
    A(f"s_lshl_b32 {s(sT[13])}, {s(sw)}, 10")

def gen_m2(sW):
    G = D2R
    kf, s0, af, bf, ai, bi, ad = G, G+1, G+2, G+3, G+4, G+5, G+6
    P, C_, S_ = D1R, D1R+16, G+8
    A(f"""
    s_and_b32 {s(sT[12])}, {s(sW)}, 1
    s_lshl_b32 {s(sT[12])}, {s(sT[12])}, 4
    s_lshr_b32 {s(sT[13])}, {s(sW)}, 1
    v_add_u32 {v(kf)}, {s(sT[12])}, {v(c_)}
    v_lshl_add_u32 {v(ai)}, {v(kf)}, 2, {s(sT[13])}
    v_lshl_add_u32 {v(s0)}, {v(g_)}, 4, {s(sT[13])}
    v_mul_u32_u24 {v(bf)}, {v(s0)}, {v(kf)}
    v_mul_u32_u24 {v(bi)}, {v(g_)}, {v(ai)}
    v_cvt_f32_u32 {v(af)}, {v(kf)}
    v_cvt_f32_u32 {v(ai)}, {v(ai)}
    v_cvt_f32_u32 {v(bf)}, {v(bf)}
    v_cvt_f32_u32 {v(bi)}, {v(bi)}
    v_mul_f32 {v(bf)}, {fbits(1/128)}, {v(bf)}
    v_mul_f32 {v(bi)}, {fbits(1/32)}, {v(bi)}
    s_lshl_b32 {s(sT[12])}, {s(sW)}, 11
    s_add_u32 {s(sT[12])}, {s(sT[12])}, {M2OFF}
    v_lshl_add_u32 {v(ad)}, {v(vL)}, 4, {s(sT[12])}
    """)
    for d in range(2):
        for i in range(8):
            c = 16*(i >> 2) + (i & 3)
            A(f"v_fmamk_f32 {v(P+8*d+i)}, {v(ai if d else af)}, {fbits(c/128 if d else c/32)}, {v(bi if d else bf)}")
    for i in range(16):
        A(f"v_cos_f32 {v(C_+i)}, {v(P+i)}")
        A(f"v_sin_f32 {v(S_+i)}, {v(P+i)}")
    for d in range(2):
        for j in range(4):
            cvt(P+8*d+j, C_+8*d+2*j, C_+8*d+2*j+1)
            cvt(P+8*d+4+j, S_+8*d+2*j, S_+8*d+2*j+1)
    for d in range(2):
        for cs in range(2):
            A(f"ds_write_b128 {v(ad)}, {v(P+8*d+4*cs,4)} offset:{d*16384+cs*1024}")

def load_tables(addr):
    for i in (8, 9, 10, 11, 12, 13, 0, 4, 1, 5, 2, 6, 3, 7):
        A(f"ds_read_b128 {v(TC+4*i,4)}, {v(addr)} offset:{i*1024}")

def TW1(dr, conj):
    L = []
    for i in range(16):
        L.append(f"v_mul_f32 {v(TMP+i)}, {v(dr+i)}, {v(TC+i)}")
        L.append(f"v_mul_f32 {v(TMP+16+i)}, {v(dr+i)}, {v(TS+i)}" if conj else f"v_mul_f32_e64 {v(TMP+16+i)}, -{v(dr+i)}, {v(TS+i)}")
    return L
def TW2(di, outr, outi, conj, lo, hi):
    L = []
    for i in range(lo, hi, 2):
        for e in range(2):
            L.append(f"v_fma_f32 {v(TMP+i+e)}, -{v(di+i+e)}, {v(TS+i+e)}, {v(TMP+i+e)}" if conj else f"v_fmac_f32 {v(TMP+i+e)}, {v(di+i+e)}, {v(TS+i+e)}")
            L.append(f"v_fmac_f32 {v(TMP+16+i+e)}, {v(di+i+e)}, {v(TC+i+e)}")
        L.append(CVT(outr + i//2, TMP+i, TMP+i+1))
        L.append(CVT(outi + i//2, TMP+16+i, TMP+16+i+1))
    return L

if OPT['lst'] == 0: A.raw(f"; @launch grid=(256,1,1) block=(512,1,1) lds={LDSZ}")
else:
    A.raw(f"; @launch kernel={NAME}_kernel grid=(256,1,1) block=(512,1,1) lds={LDSZ}")
    A.raw(f"; @launch kernel=empty_kernel grid=(1,1,1) block=(64,1,1) lds=0")
A.raw('.amdgcn_target "amdgcn-amd-amdhsa--gfx950"\n.text')
if OPT['lst']: A.raw(".globl empty_kernel\n.p2align 8\n.type empty_kernel,@function\nempty_kernel:\n s_endpgm")
A.raw(f".globl {NAME}_kernel\n.p2align 8\n.type {NAME}_kernel,@function")
A.label(f"{NAME}_kernel")
aL16 = GR + 1
SPW = OPT['spw']
NE = NEB = OPT['ne']
STAG = OPT['stag']
A(f"""
s_cmp_ge_u32 s2, 256
s_cbranch_scc1 L_end
s_bfe_u32 {s(sM)}, s2, 0x10003
s_mul_i32 {s(sT[0])}, {s(sM)}, 24
s_load_dwordx2 {s(X_,2)}, s[0:1], {s(sT[0])}
s_load_dwordx2 {s(WS_,2)}, s[0:1], 64
s_load_dwordx2 {s(WR_,2)}, s[0:1], {s(sT[0])} offset:8
s_load_dwordx2 {s(WI_,2)}, s[0:1], {s(sT[0])} offset:16
s_load_dwordx2 {s(OUT_,2)}, s[0:1], 48
""")
stamp("start")
A(f"""
v_lshrrev_b32 v2, 6, v0
s_getpc_b64 {s(TAB_,2)}
L_pc:
s_lshr_b32 {s(sT[2])}, s2, 4
v_readfirstlane_b32 {s(sW)}, v2
s_mov_b32 {s(TAB_+2)}, L_end-L_pc
s_mov_b32 {s(TAB_+3)}, 0x20000
v_lshlrev_b32 v3, 11, v2
s_lshl_b32 {s(sT[6])}, {s(sT[2])}, 7
buffer_load_dword {v(GR)}, v3, {srd(TAB_)}, {s(sT[6])} offen
v_and_b32 {v(vL)}, 63, v0
s_and_b32 {s(sT[1])}, s2, 7
""")
if OPT['rm'] == 0: A(f"s_lshl4_add_u32 {s(sRHO)}, {s(sT[1])}, {s(sT[2])}")
else:
    A(f"""
    s_and_b32 {s(sRHO)}, s2, 0x73
    s_and_b32 {s(sT[5])}, s2, 4
    s_lshl1_add_u32 {s(sRHO)}, {s(sT[5])}, {s(sRHO)}
    s_lshr_b32 {s(sT[5])}, s2, 7
    s_lshl2_add_u32 {s(sRHO)}, {s(sT[5])}, {s(sRHO)}
    """)
    if OPT['rm'] == 2: A(f"s_xor_b32 {s(sRHO)}, {s(sRHO)}, 0x70")
A(f"""
s_and_b32 {s(sSB)}, {s(sRHO)}, 31
s_lshr_b32 {s(sT[5])}, {s(sRHO)}, 5
s_lshl2_add_u32 {s(sSB)}, {s(sSB)}, {s(sT[5])}
v_lshlrev_b32 {v(aL16)}, 4, {v(vL)}
s_mov_b32 {s(X_+2)}, 4194304
s_mov_b32 {s(X_+3)}, 0x20000
s_and_b32 {s(sP)}, {s(sRHO)}, {OPT['px']}
s_xor_b32 {s(sP)}, {s(sP)}, {s(sW)}
s_lshl_b32 {s(sO[0])}, {s(sP)}, 7
s_add_u32 {s(sO[0])}, {s(sO[0])}, {s(sSB)}
s_lshl_b32 {s(sO[0])}, {s(sO[0])}, 11
s_add_u32 {s(sO[1])}, {s(sO[0])}, 0x200000
s_lshl_b32 {s(sW12)}, {s(sW)}, 12
s_mov_b32 m0, {s(sW12)}
""")
XISS = f"""
buffer_load_dwordx4 {v(aL16)}, {srd(X_)}, {s(sO[0])} offen{XNT} lds
buffer_load_dwordx4 {v(aL16)}, {srd(X_)}, {s(sO[0])} offen offset:1024{XNT} lds
s_add_u32 m0, {s(sW12)}, 2048
buffer_load_dwordx4 {v(aL16)}, {srd(X_)}, {s(sO[1])} offen{XNT} lds
buffer_load_dwordx4 {v(aL16)}, {srd(X_)}, {s(sO[1])} offen offset:1024{XNT} lds
"""
def early_x():
    A("s_waitcnt lgkmcnt(0)")
    stamp("karg", (4,))
    if STAG:
        A(f"s_cmp_lg_u32 {s(sM)}, 0")
        A("s_cbranch_scc1 L_xlate")
    A(XISS)
    A.label("L_xlate")
    stamp("xiss", (4,))
if OPT['tg'] == 0: early_x()
A(f"""
s_lshr_b32 {s(sT[3])}, {s(sW)}, 1
s_and_b32 {s(sT[4])}, {s(sW)}, 1
s_lshl2_add_u32 {s(sT[6])}, {s(sT[3])}, {s(sT[4])}
s_lshl_b32 {s(sT[6])}, {s(sT[6])}, 1
v_lshrrev_b32 {v(PH+16)}, 5, {v(vL)}
v_and_b32 {v(PH+17)}, 31, {v(vL)}
v_lshl_add_u32 {v(PH)}, {v(PH+16)}, 2, {s(sT[6])}
v_mul_u32_u24 {v(PH)}, {v(PH)}, {v(PH+17)}
v_add_u32 {v(PH+1)}, {v(PH)}, {v(PH+17)}
v_cvt_f32_u32 {v(PH)}, {v(PH)}
v_cvt_f32_u32 {v(PH+1)}, {v(PH+1)}
s_mov_b32 {s(sT[6])}, {fbits(1/32)}
v_mul_f32 {v(PH+2)}, {s(sT[6])}, {v(PH)}
v_mul_f32 {v(PH+3)}, {s(sT[6])}, {v(PH+1)}
v_cos_f32 {v(PH+8)}, {v(PH+2)}
v_cos_f32 {v(PH+9)}, {v(PH+3)}
v_sin_f32 {v(PH+10)}, {v(PH+2)}
v_sin_f32 {v(PH+11)}, {v(PH+3)}
v_mul_f32 {v(PH)}, {s(sT[6])}, {v(PH+2)}
v_mul_f32 {v(PH+1)}, {s(sT[6])}, {v(PH+3)}
v_cos_f32 {v(PH+4)}, {v(PH)}
v_cos_f32 {v(PH+5)}, {v(PH+1)}
v_sin_f32 {v(PH+6)}, {v(PH)}
v_sin_f32 {v(PH+7)}, {v(PH+1)}
{CVT(PH+12, PH+8, PH+9)}
{CVT(PH+13, PH+10, PH+11)}
{CVT(PH+14, PH+10, PH+11, True, True)}
v_add_u32 {v(vS1)}, {T1OFF}, {v(aL16)}
s_lshl_b32 {s(sT[3])}, {s(sT[3])}, 10
s_lshl3_add_u32 {s(sT[3])}, {s(sT[4])}, {s(sT[3])}
v_add_u32 {v(PH)}, {s(sT[3])}, {v(vS1)}
s_mul_i32 {s(sT[3])}, {s(sW)}, 0x104
s_and_b32 {s(sT[3])}, {s(sT[3])}, 0x40c
v_add_u32 {v(PH+1)}, {s(sT[3])}, {v(vS1)}
""")
if OPT['tg'] == 1: early_x()
A(f"""
ds_write_b64 {v(PH)}, {v(PH+4,2)}
ds_write_b64 {v(PH)}, {v(PH+6,2)} offset:4096
ds_write_b32 {v(PH+1)}, {v(PH+12)} offset:8192
ds_write_b32 {v(PH+1)}, {v(PH+13)} offset:10240
ds_write_b32 {v(PH+1)}, {v(PH+14)} offset:12288
v_and_b32 {v(c_)}, 15, {v(vL)}
v_lshrrev_b32 {v(g_)}, 4, {v(vL)}
s_mov_b32 {s(sT[6])}, {EW}
s_cmp_lg_u32 {s(sW)}, 0
s_waitcnt lgkmcnt(0)
s_cbranch_scc1 L_noe
s_load_dword {s(sE)}, {s(WS_,2)}, {s(sT[6])}
L_noe:
""")
stamp("tgen", (4,))
A("s_barrier")
stamp("tbar", (4,))
if STAG:
    A(f"s_cmp_eq_u32 {s(sM)}, 0")
    A("s_cbranch_scc1 L_xdone")
    if STAG == 2:
        gen_m2(sW)
        A("s_barrier")
    A(XISS)
    A.label("L_xdone")
load_tables(vS1)
stamp("xis2", (4,))
aTR, aP, aQe, aQo, aRD, aST = vT[2:8]
sS1 = sT[8:10]
H_, F_ = PH + 16, PH + 17
A(f"""
s_lshr_b32 {s(sT[3])}, {s(sT[2])}, 3
s_lshl1_add_u32 {s(sA)}, {s(sT[1])}, {s(sT[3])}
s_and_b32 {s(sGRP)}, {s(sT[2])}, 7
s_mov_b32 {s(WR_+2)}, 2101248
s_mov_b32 {s(WR_+3)}, 0x20000
s_mov_b32 {s(WI_+2)}, 2101248
s_mov_b32 {s(WI_+3)}, 0x20000
s_cmp_lg_u32 {s(sW)}, {SPW}
s_cbranch_scc1 L_nogather
v_lshrrev_b32 v9, 2, {v(c_)}
v_and_b32 v10, 1, {v(c_)}
v_lshl_add_u32 v9, v9, 1, v10
v_and_b32 v10, 2, {v(c_)}
v_lshl_add_u32 v9, v10, 2, v9
v_mul_u32_u24 v9, 1026, v9
s_mul_i32 {s(sT[3])}, {s(sRHO)}, 16416
buffer_load_ushort v11, v9, {srd(WR_)}, {s(sT[3])} offen offset:1024
buffer_load_ushort v12, v9, {srd(WI_)}, {s(sT[3])} offen offset:1024
L_nogather:
s_mul_i32 {s(sWB)}, {s(sA)}, 1026
s_lshl_b32 {s(sT[0])}, {s(sGRP)}, 7
s_add_u32 {s(sWB)}, {s(sWB)}, {s(sT[0])}
s_andn2_b32 {s(sWB)}, {s(sWB)}, 15
v_add_u32 {v(PH)}, {s(sW)}, {v(vL)}
v_mul_u32_u24 {v(PH+1)}, 57, {v(PH)}
v_lshrrev_b32 {v(PH+1)}, 9, {v(PH+1)}
v_mul_u32_u24 {v(PH+1)}, {16416-144}, {v(PH+1)}
v_lshl_add_u32 {v(aWM)}, {v(PH)}, 4, {v(PH+1)}
v_bfe_u32 {v(PH)}, {v(vL)}, 2, 2
v_lshl_add_u32 {v(PH)}, {v(H_)}, 2, {v(PH)}
v_lshl_add_u32 {v(PH)}, {v(PH)}, 6, {s(sW12)}
v_and_b32 {v(PH+2)}, 16, {v(vL)}
v_lshl_add_u32 {v(PH)}, {v(PH+2)}, 1, {v(PH)}
v_and_b32 {v(PH+2)}, 3, {v(vL)}
v_lshl_add_u32 {v(aTR)}, {v(PH+2)}, 3, {v(PH)}
""")
stamp('setup', (4,))
WP = OPT['wp']
aWN = GR + 3
def w_pair(es):
    global aWM
    w_base(sW)
    for e in es: w_piece(e)
    A(f"s_add_u32 {s(sT[12])}, {s(sT[12])}, {28*16416}")
    A(f"s_add_u32 {s(sT[13])}, {s(sT[13])}, 4096")
    keep, aWM = aWM, aWN
    for e in es: w_piece(e)
    aWM = keep
WNSET = f"""
v_add_u32 {v(PH+20)}, {s(sW)}, {v(vL)}
v_add_u32 {v(PH+20)}, 4, {v(PH+20)}
v_mul_u32_u24 {v(PH+21)}, 57, {v(PH+20)}
v_lshrrev_b32 {v(PH+21)}, 9, {v(PH+21)}
v_mul_u32_u24 {v(PH+21)}, {16416-144}, {v(PH+21)}
v_lshl_add_u32 {v(aWN)}, {v(PH+20)}, 4, {v(PH+21)}
"""
NX = 0
if WP == 0:
    NX = NE
    w_base(sW)
    for e in range(NE): w_piece(e)
stamp("wiss", (4,))
L = lambda t: [x.strip() for x in t.strip().split("\n")]
SETA = L(f"""
s_mul_i32 {s(sT[0])}, {s(sP)}, {PS}
s_add_u32 {s(sT[0])}, {s(sT[0])}, {EXOFF}
v_mul_u32_u24 {v(PH+4)}, 20, {v(PH+2)}
v_lshrrev_b32 {v(PH+5)}, 2, {v(F_)}
v_mul_u32_u24 {v(PH+6)}, 160, {v(H_)}
v_add3_u32 {v(PH+4)}, {v(PH+4)}, {v(PH+5)}, {v(PH+6)}
v_lshl_add_u32 {v(aP)}, {v(PH+4)}, 3, {s(sT[0])}
v_sub_u32 {v(PH+3)}, 32, {v(F_)}
v_and_b32 {v(PH+4)}, 3, {v(PH+3)}
v_mul_u32_u24 {v(PH+4)}, 20, {v(PH+4)}
v_lshrrev_b32 {v(PH+5)}, 2, {v(PH+3)}
v_sub_u32 {v(PH+6)}, 160, {v(PH+6)}
v_add3_u32 {v(PH+4)}, {v(PH+4)}, {v(PH+5)}, {v(PH+6)}
v_lshl_add_u32 {v(aQe)}, {v(PH+4)}, 3, {s(sT[0])}
v_and_b32 {v(PH+3)}, 32, {v(PH+3)}
v_lshl_add_u32 {v(aQo)}, {v(PH+3)}, 4, {v(aQe)}
v_lshrrev_b32 {v(PH)}, 1, {v(c_)}
v_and_b32 {v(PH+1)}, 1, {v(PH)}
s_bfe_u32 {s(sT[0])}, {s(sRHO)}, 0x10002
v_and_b32 {v(PH+2)}, 1, {v(c_)}
v_xor_b32 {v(PH+2)}, {s(sT[0])}, {v(PH+2)}
v_sub_u32 {v(PH+2)}, {v(PH+2)}, {v(PH+1)}
v_cvt_f32_i32 {v(PH+2)}, {v(PH+2)}
v_mov_b32 {v(PH+3)}, {fbits(0.125)}
v_fmamk_f32 {v(PH+2)}, {v(PH+2)}, {fbits(0.25)}, {v(PH+3)}
v_mul_u32_u24 {v(PH+1)}, 0x8000, {v(PH+1)}
v_lshl_or_b32 {v(PH+1)}, {v(PH+1)}, 16, {v(PH+1)}
v_cvt_f32_u32 {v(PH)}, {v(PH)}
""")
SETB = L(f"""
v_add_f32 {v(PH+3)}, {fbits(8.0)}, {v(PH)}
v_lshl_add_u32 {v(PH+4)}, {v(g_)}, 8, {s(sSB)}
v_cvt_f32_u32 {v(PH+4)}, {v(PH+4)}
v_mul_f32 {v(PH+4)}, {fbits(1/2048)}, {v(PH+4)}
v_add_f32 {v(PH+5)}, {fbits(1/16)}, {v(PH+4)}
""")
for k in range(4): SETB.append(f"v_fma_f32 {v(PH+8+3*k)}, {v(PH+4+(k&1))}, {v(PH if k < 2 else PH+3)}, {v(PH+2)}")
for k in range(4): SETB += [f"v_cos_f32 {v(PH+9+3*k)}, {v(PH+8+3*k)}", f"v_sin_f32 {v(PH+10+3*k)}, {v(PH+8+3*k)}"]
SETC = []
for k in range(4):
    t = PH + 8 + 3*k
    SETC += [CVT(M3+2*k, t+1, t+2), CVT(M3+2*k+1, t+2, t+1), f"v_xor_b32 {v(M3+2*k+1)}, {v(PH+1)}, {v(M3+2*k+1)}"]
SETD = L(f"""
s_lshl_b32 {s(sM8)}, {s(sM)}, 3
s_mul_i32 {s(sCM)}, {s(sM)}, {128*CP}
s_add_u32 {s(sCM)}, {s(sCM)}, {CB}
s_mov_b32 {s(sEXP)}, 0
s_mov_b32 {s(sONE)}, 1
s_bfe_u32 {s(sC1)}, {s(sRHO)}, 0x20003
s_lshl2_add_u32 {s(sC1)}, {s(sW)}, {s(sC1)}
s_mul_i32 {s(sC1)}, {s(sC1)}, {CP}
s_add_u32 {s(sC1)}, {s(sC1)}, {s(sCM)}
s_lshr_b32 {s(sC2)}, {s(sRHO)}, 4
s_lshl3_add_u32 {s(sC2)}, {s(sW)}, {s(sC2)}
s_mul_i32 {s(sC2)}, {s(sC2)}, {CP}
s_add_u32 {s(sC2)}, {s(sC2)}, {s(sCM)}
s_add_u32 {s(sC2)}, {s(sC2)}, {32*CP}
s_mov_b32 {s(WS_+2)}, {WSZ}
s_mov_b32 {s(WS_+3)}, 0x20000
s_mov_b32 {s(OUT_+2)}, 8388608
s_mov_b32 {s(OUT_+3)}, 0x20000
s_lshl_b32 {s(sS1[0])}, {s(sO[0])}, 1
s_lshl_b32 {s(sT[3])}, {s(sM)}, 11
s_add_u32 {s(sS1[0])}, {s(sS1[0])}, {s(sT[3])}
s_add_u32 {s(sS1[1])}, {s(sS1[0])}, {8*AROW}
s_mul_i32 {s(sT[3])}, {s(sW)}, 640
s_add_u32 {s(sT[3])}, {s(sT[3])}, {EXOFF}
v_mul_u32_u24 {v(aRD)}, {2*PS}, {v(g_)}
v_lshl_add_u32 {v(aRD)}, {v(c_)}, 3, {v(aRD)}
v_add_u32 {v(aRD)}, {s(sT[3])}, {v(aRD)}
v_lshlrev_b32 {v(aST)}, 9, {v(g_)}
v_lshl_add_u32 {v(aST)}, {v(c_)}, 4, {v(aST)}
v_mov_b32 {v(vSY)}, {SYOFF}
v_lshlrev_b32 {v(vPG)}, 2, v0
v_add_u32 {v(vPG)}, {PGOFF}, {v(vPG)}
v_mov_b32 {v(GR+6)}, 0
v_mov_b32 {v(GR+7)}, 0
""")
for t_ in SETD: A(t_)
A(f"""
ds_write_b64 {v(vSY)}, {v(GR+6,2)}
ds_write_b64 {v(vSY)}, {v(GR+6,2)} offset:8
ds_write_b32 {v(vPG)}, {v(GR+6)}
s_mul_i32 {s(sT[3])}, {s(sRHO)}, {CP}
s_add_u32 {s(sT[3])}, {s(sT[3])}, {s(sCM)}
s_waitcnt vmcnt({NX+2})
s_cmp_eq_u32 {s(sW)}, {SPW}
s_cbranch_scc1 L_xw1
s_waitcnt vmcnt({NX})
L_xw1:
""")
if OPT['p1p']:
    A(f"s_cmp_lt_u32 {s(sW)}, 4")
    A("s_cbranch_scc1 L_np")
    A("s_setprio 1")
    A.label("L_np")
stamp("x", (1, 2, 4))
for comp, dst in ((0, XR), (1, XI)):
    for t in range(2):
        for j in range(2):
            A(f"ds_read_b64_tr_b16 {v(dst+4*t+2*j,2)}, {v(aTR)} offset:{comp*2048+t*1024+j*512}")
A(f"s_cmp_lg_u32 {s(sW)}, 0")
A("s_waitcnt lgkmcnt(0)")
stamp("tr", (2, 4))
TAGI = [f"s_mul_i32 {s(sTAG)}, {s(sE)}, 0x9E3779B1", f"s_add_u32 {s(sTAG)}, {s(sTAG)}, 0x7F4A7C15"]
m32(D1R, XR, FC, None)
A(f"""
s_cbranch_scc1 L_e1
{TAGI[0]}
{TAGI[1]}
s_atomic_swap_x2 {s(sEXP,2)}, {s(WS_,2)}, {s(sT[3])}
s_branch L_e2
L_e1:
s_load_dword {s(sE)}, {s(WS_,2)}, {s(sT[6])}
L_e2:
""")
weave([M32(D1R, XR+4, FC+4, D1R), M32(D1R, XI, FS, D1R), M32(D1R, XI+4, FS+4, D1R), M32(D1I, XR, FN, None)], SETA[:24], 6)
weave([M32(D1I, XR+4, FN+4, D1I), M32(D1I, XI, FC, D1I), M32(D1I, XI+4, FC+4, D1I)], TW1(D1R, False), [6, 6, 99])
stamp("m1", (2,))
for t_ in TW2(D1I, XR, XI, False, 0, 8): A(t_)
A(SETA[24])
stamp("tw", (2,))
weave([M32(D2R, FC, XR, None), M32(D2I, FN, XR, None), M32(D2R, FS, XI, D2R), M32(D2I, FC, XI, D2I)], TW2(D1I, XR, XI, False, 8, 16) + SETA[25:26], [6, 6, 6, 7])
weave([M32(D2R, FC+4, XR+4, D2R), M32(D2I, FN+4, XR+4, D2I), M32(D2R, FS+4, XI+4, D2R), M32(D2I, FC+4, XI+4, D2I)], SETA[26:] + SETB + SETC[:7], [6, 5, 3, 99])
stamp("m2", (2,))
for i in range(16):
    cvt(TMP+i, D2R+i, D2I+i)
stamp("cv", (2,))
for i in range(16):
    kd2 = 8*(i >> 2) + (i & 3)
    if i < 8:
        A(f"ds_write_b32 {v(aP)}, {v(TMP+i)} offset:{(80*(kd2>>1)+8*(kd2&1))*8}")
    else:
        e = 31 - kd2 - 4
        A(f"ds_write_b32 {v(aQo if e & 1 else aQe)}, {v(TMP+i)} offset:{(80*(e>>1)+8*(e&1))*8+4}")
A(f"""
s_mov_b64 exec, 1
ds_write_b32 {v(aP)}, {v(TMP)} offset:4
ds_write_b32 {v(aP)}, {v(TMP+8)} offset:{640*8}
s_mov_b64 exec, -1
""")
stamp("wr", (2,))
for t_ in SETC[7:]: A(t_)
if WP == 1:
    A(f"s_cmp_ge_u32 {s(sW)}, 4")
    A("s_cbranch_scc1 L_nowp")
    A(WNSET)
    w_pair(range(NE))
    A.label("L_nowp")
A("s_waitcnt lgkmcnt(0)")
for t_ in TAGI: A(t_)
stamp("wrd", (2,))
if OPT['p1p']: A("s_setprio 0")
A("s_barrier")
stamp("bar1", (1, 2, 4))
A(f"""
s_cmp_lg_u32 {s(sW)}, {SPW}
s_cbranch_scc1 L_nosp1
v_mul_u32_u24 {v(PH)}, {2*PS}, {v(g_)}
ds_read_b64 {v(XR,2)}, {v(PH)} offset:{EXOFF+640*8}
ds_read_b64 {v(XR+2,2)}, {v(PH)} offset:{EXOFF+640*8+PS}
s_lshl4_add_u32 {s(sT[0])}, {s(sM8)}, {s(sRHO)}
s_lshl_b32 {s(sT[0])}, {s(sT[0])}, 7
s_add_u32 {s(sT[0])}, {s(sT[0])}, {XB}
v_lshlrev_b32 {v(PH+1)}, 2, {v(vL)}
v_lshlrev_b32 {v(PH+2)}, 4, {v(g_)}
s_waitcnt vmcnt({NE if WP == 0 else 2*NE})
v_lshl_or_b32 v11, v12, 16, v11
s_mov_b64 exec, 0xffff
buffer_store_dword v11, {v(PH+1)}, {srd(WS_)}, {s(sT[0])} offen offset:64 sc1
s_mov_b64 exec, -1
s_waitcnt lgkmcnt(0)
""")
m16(D1R, M3, XR, None); m16(D1R+4, M3+4, XR, None)
cvt(TMP, D1R, D1R+2); cvt(TMP+1, D1R+4, D1R+6); cvt(TMP+2, D1R+1, D1R+3); cvt(TMP+3, D1R+5, D1R+7)
A(f"""
s_mov_b32 exec_lo, 0x00010001
s_mov_b32 exec_hi, 0x00010001
buffer_store_dwordx4 {v(TMP,4)}, {v(PH+2)}, {srd(WS_)}, {s(sT[0])} offen sc1
s_mov_b64 exec, -1
L_nosp1:
""")
for t in range(4):
    for jj in range(2):
        A(f"ds_read_b64 {v(XR+4*t+2*jj,2)}, {v(aRD)} offset:{160*t+PS*jj}")
for t in range(4):
    A(f"s_waitcnt lgkmcnt({6-2*t})")
    m16(D1R+8*t, M3, XR+4*t, None)
peek(sC1)
for t in range(4):
    m16(D1R+8*t+4, M3+4, XR+4*t, None)
for mt in range(2):
    for al in range(2):
        o = TMP + 4 + (mt*2+al)*4
        d = D1R + 4*mt + 2*al
        cvt(o, d, d+8); cvt(o+2, d+1, d+9); cvt(o+1, d+16, d+24); cvt(o+3, d+17, d+25)
    for al in range(2):
        o = TMP + 4 + (mt*2+al)*4
        A(f"buffer_store_dwordx4 {v(o,4)}, {v(aST)}, {srd(OUT_)}, {s(sS1[mt])} offen offset:{al*256} sc1")
stamp("st1", (2,))
sPH = sE
A(f"""
s_barrier
""")
S3P = OPT['s3p']
def early_setup():
    A(f"""
    s_mov_b32 {s(sPH)}, 2
    s_cmp_ge_u32 {s(sW)}, 4
    s_cbranch_scc1 L_setup3
    L_ret1:
    """)
if S3P == 1: early_setup()
A(f"s_mov_b32 {s(sPH)}, 1")
GH = OPT['gh']
if GH:
    A(f"""
    s_cmp_lt_u32 {s(sW)}, 4
    s_cbranch_scc1 L_nogen
    s_sub_u32 {s(sI)}, {s(sW)}, {4 if GH == 2 else 0}
    L_gen:
    """)
    if STAG == 2:
        A(f"s_cmp_lg_u32 {s(sM)}, 0")
        A("s_cbranch_scc1 L_genskip")
    gen_m2(sI)
    A.label("L_genskip")
    if GH == 2:
        A(f"""
        s_add_u32 {s(sI)}, {s(sI)}, 4
        s_cmp_lt_u32 {s(sI)}, 8
        s_cbranch_scc1 L_gen
        """)
    lds_post(12)
    if GH == 1:
        A(f"s_cmp_lt_u32 {s(sW)}, 4")
        A("s_cbranch_scc1 L_genret")
    A.label("L_nogen")
validate("L_val1", sC1)
A("s_waitcnt vmcnt(0)")
signal(sC1)
stamp("fl1")
if S3P == 2:
    early_setup()
    A(f"s_mov_b32 {s(sPH)}, 1")
aW, aF, aRe, aIm, aO, aD = vT[2:8]
sFA, sFB, sFC, sDST, sOI, sDONE, sNEW, sMK = sT[4:12]
A(f"""
s_cmp_ge_u32 {s(sW)}, 4
s_cbranch_scc1 L_helper
""")
A(f"""
v_add_u32 {v(PH)}, 8, {v(vL)}
v_mul_u32_u24 {v(PH+1)}, 57, {v(PH)}
v_lshrrev_b32 {v(PH+1)}, 9, {v(PH+1)}
v_mul_u32_u24 {v(PH+1)}, {16416-144}, {v(PH+1)}
v_lshl_add_u32 {v(aWT)}, {v(PH)}, 4, {v(PH+1)}
v_add_u32 {v(aWT)}, {56*16416}, {v(aWT)}
""")
w_piece(4)
if WP == 0: A(WNSET)
w_pair(range(NE, 4))
if GH == 1:
    A(f"s_mov_b32 {s(sI)}, {s(sW)}")
    A("s_branch L_gen")
    A.label("L_genret")
if GH == 0:
    A(f"s_mov_b32 {s(sI)}, {s(sW)}")
    A.label("L_gen")
    gen_m2(sI)
    A(f"""
    s_add_u32 {s(sI)}, {s(sI)}, 4
    s_cmp_lt_u32 {s(sI)}, 8
    s_cbranch_scc1 L_gen
    """)
    lds_post(12)
A(f"""
s_mov_b32 {s(sFA)}, 0
s_and_b32 {s(sFC)}, {s(sA)}, 7
s_mov_b32 {s(sFB)}, 0
s_mul_i32 {s(sOI)}, {s(sW)}, {OS}
s_add_u32 {s(sOI)}, {s(sOI)}, {WOFF}
v_lshrrev_b32 {v(aRe)}, 2, {v(vL)}
v_and_b32 {v(aF)}, 3, {v(aRe)}
v_xor_b32 {v(aF)}, {s(sW)}, {v(aF)}
v_lshlrev_b32 {v(aRe)}, 8, {v(aRe)}
v_lshl_add_u32 {v(aRe)}, {v(aF)}, 6, {v(aRe)}
v_and_b32 {v(aF)}, 3, {v(vL)}
v_lshl_add_u32 {v(aRe)}, {v(aF)}, 4, {v(aRe)}
s_lshl_b32 {s(sT[0])}, {s(sW)}, 5
s_add_u32 {s(sT[0])}, {s(sT[0])}, {WOFF}
v_min_u32 {v(aW)}, 2, {v(g_)}
v_mul_u32_u24 {v(aF)}, 144, {v(c_)}
v_lshl_add_u32 {v(aW)}, {v(aW)}, 4, {v(aF)}
v_add_u32 {v(aW)}, {s(sT[0])}, {v(aW)}
""")
A.label("L_p2common")
A(f"v_lshlrev_b32 {v(aF)}, 4, {v(vL)}")
A(f"v_add_u32 {v(aF)}, {M2OFF}, {v(aF)}")
SEL = DNR
A(f"""
v_lshlrev_b32 {v(DIM)}, {s(sFA)}, {v(c_)}
v_lshlrev_b32 {v(DIM+1)}, 3, {v(g_)}
v_sub_u32 {v(DIM)}, {v(DIM)}, {v(DIM+1)}
v_add_u32 {v(DIM)}, {s(sFC)}, {v(DIM)}
v_add_u32 {v(DIM+1)}, {s(sFB)}, {v(DIM)}
v_mov_b32 {v(DIM+4)}, 0x3500
""")
for q in range(2):
    A(f"v_and_b32 {v(DIM+2)}, 1, {v(DIM+q)}")
    A(f"v_lshlrev_b32 {v(DIM+2)}, 4, {v(DIM+2)}")
    A(f"v_lshlrev_b32 {v(DIM+2)}, {v(DIM+2)}, {v(DIM+4)}")
    A(f"v_ashrrev_i32 {v(DIM+3)}, 1, {v(DIM+q)}")
    for j in range(4):
        A(f"v_cmp_eq_u32 vcc, {j}, {v(DIM+3)}")
        A(f"v_cndmask_b32 {v(SEL+4*q+j)}, 0, {v(DIM+2)}, vcc")
A(f"""
v_and_b32 {v(aIm)}, 1, {v(g_)}
v_lshl_add_u32 {v(aRe)}, {v(aIm)}, 3, {v(aRe)}
v_xor_b32 {v(aIm)}, 8, {v(aRe)}
v_bfe_u32 {v(aO)}, {v(vL)}, 1, 2
v_xor_b32 {v(aO)}, {v(aO)}, {v(g_)}
v_lshlrev_b32 {v(aO)}, 4, {v(aO)}
v_lshl_add_u32 {v(aO)}, {v(c_)}, 6, {v(aO)}
v_add_u32 {v(aO)}, {s(sOI)}, {v(aO)}
v_mov_b32 {v(vT[9])}, 1
s_mov_b32 {s(sT[0])}, 0x80008000
s_mov_b32 {s(sDONE)}, 0
""")
lds_wait("L_fr", 12, 8 if GH == 1 else 4)
for f in range(16):
    A(f"ds_read_b128 {v(FR+4*f,4)}, {v(aF)} offset:{f*1024}")
A(f"""
s_waitcnt vmcnt(0)
s_cmp_lt_u32 {s(sW)}, 4
s_cbranch_scc1 L_wreg
""")
XP = [WR_, WR_+2, WI_, WI_+2]
A(f"""
s_mov_b32 {s(sCNT)}, 0x8000
L_pollx:
""")
for i in range(4):
    A(f"s_mov_b64 {s(XP[i],2)}, 0")
    A(f"s_atomic_or_x2 {s(XP[i],2)}, {s(WS_,2)}, {s(sT[2])} offset:{(SPW*4+i)*CP} glc")
A(f"""
s_sub_u32 {s(sCNT)}, {s(sCNT)}, 1
s_cbranch_scc1 L_pollx_out
s_waitcnt lgkmcnt(0)
""")
for i in range(4):
    A(f"s_cmp_lg_u32 {s(XP[i]+1)}, {s(sTAG)}")
    A("s_cbranch_scc1 L_pollx")
A(f"""
s_and_b32 {s(XP[0])}, {s(XP[0])}, {s(XP[1])}
s_and_b32 {s(XP[2])}, {s(XP[2])}, {s(XP[3])}
s_and_b32 {s(XP[0])}, {s(XP[0])}, {s(XP[2])}
s_cmp_lg_u32 {s(XP[0])}, 32
s_cbranch_scc1 L_pollx
L_pollx_out:
s_mov_b32 {s(sT[2])}, {s(sDST)}
""")
stamp("pol1")
for n in range(8):
    A(f"buffer_load_dwordx4 {v(ER+4*n,4)}, {v(aW)}, {srd(WS_)}, {s(sT[2])} offen offset:64 sc1")
    A(f"buffer_load_dwordx4 {v(aD)}, {srd(WS_)}, {s(sT[2])} offen sc1 lds")
    if n < 7:
        A(f"s_add_u32 m0, m0, 4096")
        A(f"s_add_u32 {s(sT[2])}, {s(sT[2])}, 2048")
A("s_setprio 3" if OPT['xprio'] else "s_setprio 0")
for t in range(8):
    A(f"s_waitcnt vmcnt({14-2*t})")
    m16(WRF+4*t, ER+4*t, SEL, None); m16(WIF+4*t, ER+4*t, SEL+4, None)
A(f"s_mov_b32 {s(sDONE)}, 0x04040404")
A("s_branch L_f0")
A.label("L_wreg")
lds_post(0)

lds_wait("L_wr", 0, 8)
for t in range(16):
    if t == 12: A("s_waitcnt lgkmcnt(8)")
    A(f"ds_read_b128 {v(ER+4*t,4)}, {v(aW)} offset:{t*2304}")
lds_post(8)
for t in range(16):
    if t >= 4: A(f"s_waitcnt lgkmcnt({16-t})")
    m16(WRF+4*t, ER+4*t, SEL, None)
stamp("wcv", (1,))
def TRQ(u):
    for j in range(2): A(f"ds_read_b64_tr_b16 {v(DRE+4*u+2*j,2)}, {v(aRe)} offset:{u*8192+j*4096}")
    for j in range(2): A(f"ds_read_b64_tr_b16 {v(DIM+4*u+2*j,2)}, {v(aIm)} offset:{u*8192+j*4096}")
    A(f"ds_read_b32 {v(vS1)}, {v(vSY)} offset:{4 if u < 3 else 8}")
def spin(u):
    A(f"""
    s_mov_b32 {s(sCNT)}, 0x40000
    L_sp{u}:
    ds_read_b32 {v(vS1)}, {v(vSY)} offset:4
    s_sub_u32 {s(sCNT)}, {s(sCNT)}, 1
    s_cbranch_scc1 L_sp{u}_out
    s_waitcnt lgkmcnt(0)
    v_readfirstlane_b32 {s(sMK)}, {v(vS1)}
    s_bitcmp1_b32 {s(sMK)}, {8*u+2}
    s_cbranch_scc0 L_sp{u}
    L_sp{u}_out:
    """)
IFR = lambda u: [f"ds_read_b128 {v(FR+4*f,4)}, {v(aF)} offset:{16384+f*1024}" for f in range(4*u, 4*u+4)]
spin(0)
A.label("L_f0")
TRQ(0)
for u in range(4):
    A("s_waitcnt lgkmcnt(0)")
    A(f"v_readfirstlane_b32 {s(sMK)}, {v(vS1)}")
    if u == 3: stamp("dat1", (1, 3))
    fc = lambda mt: FR + (u*4 + mt*2) * 4
    fs = lambda mt: FR + (u*4 + mt*2 + 1) * 4
    e = lambda mt: (u*2 + mt) * 4
    m16(ER+e(0), fc(0), DRE+4*u, None)
    A(f"s_or_b32 {s(sMK)}, {s(sMK)}, {s(sDONE)}")
    if u < 3:
        A(f"s_bitcmp1_b32 {s(sMK)}, {8*u+10}")
        A(f"s_cbranch_scc0 L_nt{u}")
        TRQ(u+1)
        A.label(f"L_nt{u}")
    xo = [f"v_xor_b32 {v(DNR+4*u+j)}, {s(sT[0])}, {v(DRE+4*u+j)}" for j in range(4)]
    weave([M16(ER+e(1), fc(1), DRE+4*u, None),
           M16(EI+e(0), fc(0), DIM+4*u, None), M16(EI+e(1), fc(1), DIM+4*u, None),
           M16(ER+e(0), fs(0), DIM+4*u, ER+e(0)), M16(ER+e(1), fs(1), DIM+4*u, ER+e(1)),
           M16(EI+e(0), fs(0), DNR+4*u, EI+e(0)), M16(EI+e(1), fs(1), DNR+4*u, EI+e(1))],
          (IFR(u-1) if u else []) + xo, 2)
    if u < 3:
        A(f"s_cbranch_scc1 L_ok{u}")
        spin(u+1)
        TRQ(u+1)
        A.label(f"L_ok{u}")
for t_ in IFR(3): A(t_)
A(f"""
s_bitcmp1_b32 {s(sMK)}, 2
s_cbranch_scc1 L_cv_out
""")
lds_wait("L_cv", 8, 4)
stamp("fwd", (3,))
A("s_nop 1")
TT = DNR
def pk(op, d, a, b, c=None, na=False, nb=False):
    ops = f"{v(d,2)}, {v(a,2)}, {v(b,2)}" + (f", {v(c,2)}" if c is not None else "")
    n = [int(na), int(nb)] + ([0] if c is not None else [])
    mod = f" neg_lo:{n} neg_hi:{n}".replace(", ", ",") if (na or nb) else ""
    A(f"v_pk_{op}_f32 {ops}{mod}")
add = lambda d, a, b: pk("add", d, a, b)
sub = lambda d, a, b: pk("add", d, a, b, nb=True)
A.raw(".p2align 3")
for mt in range(2):
    for rp in range(2):
        er = lambda u: ER + (u*2+mt)*4 + 2*rp
        ei = lambda u: EI + (u*2+mt)*4 + 2*rp
        wr = lambda q: WRF + (q*2+mt)*4 + 2*rp
        wi = lambda q: WIF + (q*2+mt)*4 + 2*rp
        tr = lambda i: TT + 4*i
        ti = lambda i: TT + 4*i + 2
        add(tr(0), er(0), er(2)); add(ti(0), ei(0), ei(2)); sub(tr(1), er(0), er(2)); sub(ti(1), ei(0), ei(2))
        add(tr(2), er(1), er(3)); add(ti(2), ei(1), ei(3)); sub(tr(3), er(1), er(3)); sub(ti(3), ei(1), ei(3))
        add(er(0), tr(0), tr(2)); add(ei(0), ti(0), ti(2)); sub(er(2), tr(0), tr(2)); sub(ei(2), ti(0), ti(2))
        add(er(1), tr(1), ti(3)); sub(ei(1), ti(1), tr(3)); sub(er(3), tr(1), ti(3)); add(ei(3), ti(1), tr(3))
        for q in range(4):
            pk("mul", tr(q), er(q), wr(q)); pk("mul", ti(q), er(q), wi(q))
        for q in range(4):
            pk("fma", tr(q), ei(q), wi(q), tr(q), na=True); pk("fma", ti(q), ei(q), wr(q), ti(q))
        add(wr(0), tr(0), tr(2)); add(wi(0), ti(0), ti(2)); sub(wr(1), tr(0), tr(2)); sub(wi(1), ti(0), ti(2))
        add(wr(2), tr(1), tr(3)); add(wi(2), ti(1), ti(3)); sub(wr(3), tr(1), tr(3)); sub(wi(3), ti(1), ti(3))
        add(er(0), wr(0), wr(2)); add(ei(0), wi(0), wi(2)); sub(er(2), wr(0), wr(2)); sub(ei(2), wi(0), wi(2))
        sub(er(1), wr(1), wi(3)); add(ei(1), wi(1), wr(3)); add(er(3), wr(1), wi(3)); sub(ei(3), wi(1), wr(3))
def OPS(u):
    L = [CVT(DRE+4*u+j, ER+8*u+2*j, ER+8*u+2*j+1) for j in range(4)]
    L += [CVT(DIM+4*u+j, EI+8*u+2*j, EI+8*u+2*j+1) for j in range(4)]
    L += [CVT(DNR+4*u+j, EI+8*u+2*j, EI+8*u+2*j+1, True, True) for j in range(4)]
    return L
def INV(k):
    e = k*4; o = WRF + e
    return [CVT(o, ER+e, ER+e+1), CVT(o+1, ER+e+2, ER+e+3), CVT(o+2, EI+e, EI+e+1), CVT(o+3, EI+e+2, EI+e+3),
            f"ds_write_b128 {v(aO)}, {v(o,4)} offset:{k*1024}", f"ds_add_u32 {v(vPG)}, {v(vT[9])}"]
for t_ in OPS(0): A(t_)
A("s_waitcnt lgkmcnt(0)")
stamp("mid", (3,))
for k in range(8):
    u, nt = k >> 1, k & 1
    fc, fs, e = FR + (u*4 + nt*2) * 4, FR + (u*4 + nt*2 + 1) * 4, k * 4
    ops = OPS(u+1)[6*nt:6*nt+6] if u < 3 else []
    out = INV(k-1) if k >= 1 else []
    fill = ops + out
    weave([M16(ER+e, DRE+4*u, fc, None), M16(EI+e, DIM+4*u, fc, None), M16(ER+e, DNR+4*u, fs, ER+e), M16(EI+e, DRE+4*u, fs, EI+e)],
          fill, [3, 3, 2, 4] if ops and out else ([2, 2, 2, 0] if ops else [0, 0, 0, 6]))
stamp("inv", (3,))
for t_ in INV(7): A(t_)
stamp("cmp2", (1, 3))
A(f"""
s_cmp_lt_u32 {s(sW)}, 4
s_cbranch_scc1 L_setup3
""")
A(f"""
v_lshlrev_b32 {v(aO)}, 7, {v(c_)}
v_lshl_add_u32 {v(aO)}, {v(g_)}, 4, {v(aO)}
""")
for i in range(8): A(f"v_mov_b32 {v(WIF+2*i+1)}, {s(sTAG)}")
for k in range(8):
    o = WIF + 8*(k & 1)
    for e in range(4): cvt(o+2*e, ER+4*k+e, EI+4*k+e)
    for h in range(2): A(f"buffer_store_dwordx4 {v(o+4*h,4)}, {v(aO)}, {srd(WS_)}, {s(sDST)} offen offset:{(k&1)*2048+h*64} sc1")
    if k & 1: A(f"s_add_u32 {s(sDST)}, {s(sDST)}, 4096")
A(f"""
s_setprio 0
s_branch L_setup3
L_helper:
""")
if OPT['hp'] & 1: A("s_setprio 2")
lds_post(0)
A(f"""
s_cmp_eq_u32 s2, {HA}
s_cselect_b32 {s(sT[3])}, {s(sW)}, 0
s_cmp_eq_u32 s2, {HB}
s_cselect_b32 {s(sT[3])}, {s(sW)}, {s(sT[3])}
s_cmp_lg_u32 {s(sT[3])}, 4
s_cbranch_scc1 L_loader
s_mov_b32 {s(sFA)}, 1
s_mov_b32 {s(sFC)}, 0
s_mov_b32 {s(sFB)}, 1
s_cmp_eq_u32 s2, {HB}
s_cselect_b32 {s(sDST)}, 0x4000, 0
s_lshl1_add_u32 {s(sT[2])}, {s(sDST)}, {CB}
s_add_u32 {s(sDST)}, {s(sDST)}, {XB}
v_lshrrev_b32 {v(aD)}, 2, {v(vL)}
v_and_b32 {v(aW)}, 3, {v(vL)}
v_lshlrev_b32 {v(aW)}, 4, {v(aW)}
v_lshl_add_u32 {v(aD)}, {v(aD)}, 7, {v(aW)}
v_lshlrev_b32 {v(aW)}, 7, {v(c_)}
v_lshl_add_u32 {v(aW)}, {v(g_)}, 4, {v(aW)}
s_mov_b32 {s(sOI)}, {XOUT}
v_lshlrev_b32 {v(aRe)}, 4, {v(vL)}
v_add_u32 {v(aRe)}, {EXOFF}, {v(aRe)}
s_mov_b32 m0, {EXOFF}
s_branch L_p2common
L_loader:
""")
sSRC, sPL, sSG, sBIT = sT[4:8]
A(f"""
s_sub_u32 {s(sT[1])}, {s(sW)}, 4
s_and_b32 {s(sT[10])}, {s(sA)}, 8
s_add_u32 {s(sT[10])}, {s(sT[10])}, {s(sGRP)}
s_lshl_b32 {s(sT[10])}, {s(sT[10])}, 11
s_add_u32 {s(sT[10])}, {s(sT[10])}, {s(sM8)}
s_and_b32 {s(sT[9])}, {s(sA)}, 7
s_add_u32 {s(sT[10])}, {s(sT[10])}, {s(sT[9])}
s_lshl_b32 {s(sT[10])}, {s(sT[10])}, 8
s_lshl_b32 {s(sSRC)}, {s(sT[1])}, 17
s_add_u32 {s(sSRC)}, {s(sSRC)}, {s(sT[10])}
s_lshl2_add_u32 {s(sPL)}, {s(sGRP)}, {s(sT[1])}
s_mul_i32 {s(sPL)}, {s(sPL)}, {CP}
s_add_u32 {s(sPL)}, {s(sPL)}, {s(sCM)}
s_lshl_b32 m0, {s(sT[1])}, 11
s_xor_b32 {s(sSG)}, {s(sSRC)}, {65536 | (OPT['px'] << 19)}
v_lshlrev_b32 {v(aD)}, 2, {v(g_)}
v_xor_b32 {v(aD)}, {v(aD)}, {v(c_)}
v_lshlrev_b32 {v(aD)}, 4, {v(aD)}
v_lshl_add_u32 {v(aD)}, {v(g_)}, 14, {v(aD)}
""")
A(f"""
s_cmp_eq_u32 {s(sT[3])}, 5
s_cselect_b32 {s(sBIT)}, 2, 1
v_mov_b32 {v(vT[2])}, {s(sBIT)}
v_lshlrev_b32 {v(vT[3])}, 8, {v(vT[2])}
v_lshlrev_b32 {v(vT[4])}, 16, {v(vT[2])}
v_lshlrev_b32 {v(vT[5])}, 24, {v(vT[2])}
s_cbranch_scc0 L_single
s_mov_b32 {s(sEXP)}, 32
s_mov_b32 {s(sCNT)}, 0x8000
s_sub_u32 {s(sT[2])}, {s(sPL)}, {CP}
L_dual:
s_mov_b64 {s(XP[0],2)}, 0
s_atomic_or_x2 {s(XP[0],2)}, {s(WS_,2)}, {s(sT[2])} glc
""")
peek(sPL)
A(f"""
s_sub_u32 {s(sCNT)}, {s(sCNT)}, 1
s_cbranch_scc1 L_poll1_out
s_waitcnt lgkmcnt(0)
s_cmp_eq_u64 {s(XP[0],2)}, {s(sEXP,2)}
s_cbranch_scc0 L_dual
s_cmp_eq_u64 {s(sV,2)}, {s(sEXP,2)}
s_cbranch_scc1 L_poll1_out
L_single:
""")
poll("L_poll1", sPL, 32, OPT['sl1'])
stamp("pol1")
for n in range(8):
    r_ = sSG if n & 1 else sSRC
    A(f"buffer_load_dwordx4 {v(aD)}, {srd(OUT_)}, {s(r_)} offen sc1 lds")
    if n < 7: A(f"s_add_u32 m0, m0, {7168 if n & 1 else 1024}")
    if n < 6: A(f"s_add_u32 {s(r_)}, {s(r_)}, 4096")
A(f"""
s_cmp_lg_u32 {s(sT[3])}, 5
s_cbranch_scc1 L_posted
s_mov_b32 {s(sT[3])}, 0
s_mov_b32 m0, 0
s_mov_b32 {s(sSRC)}, {s(sT[10])}
s_xor_b32 {s(sSG)}, {s(sSRC)}, {65536 | (OPT['px'] << 19)}
s_branch L_poll1_out
""")
def post_rows(extra):
    A("s_mov_b64 exec, 1")
    for u in range(4):
        A(f"s_waitcnt vmcnt({extra+6-2*u})")
        A(f"ds_add_u32 {v(vSY)}, {v(vT[2]+u)} offset:4")
    A("s_mov_b64 exec, -1")
A.label("L_posted")
A(f"""
s_cmp_lt_u32 {s(sW)}, {8-NST}
s_cselect_b32 {s(sPH)}, 1, 0
""")
post_rows(0)
if OPT['hp'] & 1: A("s_setprio 0")
if S3P: A("s_branch L_setup3_end")
A.label("L_setup3")
A3 = 237
aD3, aPw, aQ1, aQ0, aRd3, aSo, aQp = range(A3, A3+7)
aT = list(range(A3+9, A3+13))
sMR = 29
A(f"""
v_lshrrev_b32 {v(PH)}, 1, {v(vL)}
v_xor_b32 {v(PH)}, {v(PH)}, {v(vL)}
v_and_b32 {v(PH)}, 4, {v(PH)}
v_mul_u32_u24 {v(PH)}, 3, {v(PH)}
v_xor_b32 {v(PH)}, {v(PH)}, {v(vL)}
v_lshlrev_b32 {v(vS1)}, 4, {v(PH)}
v_add_u32 {v(vS1)}, {T1OFF}, {v(vS1)}
v_and_b32 {v(aSo)}, 15, {v(PH)}
v_lshlrev_b32 {v(aSo)}, 6, {v(aSo)}
v_and_b32 {v(PH)}, 1, {v(g_)}
v_lshl_add_u32 {v(aSo)}, {v(PH)}, 5, {v(aSo)}
v_lshrrev_b32 {v(PH)}, 1, {v(g_)}
v_lshl_add_u32 {v(aSo)}, {v(PH)}, 4, {v(aSo)}
""")
load_tables(vS1)
A(f"""
v_lshrrev_b32 {v(PH)}, 2, {v(c_)}
v_lshl_add_u32 {v(PH)}, {v(PH)}, 7, {s(sSB)}
v_cvt_f32_u32 {v(PH)}, {v(PH)}
v_mul_f32 {v(PH)}, {fbits(1/2048)}, {v(PH)}
v_add_f32 {v(PH+1)}, {fbits(0.25)}, {v(PH)}
v_and_b32 {v(PH+2)}, 1, {v(c_)}
v_cvt_f32_u32 {v(PH+2)}, {v(PH+2)}
v_mul_f32 {v(PH+2)}, {fbits(-0.25)}, {v(PH+2)}
v_add_f32 {v(PH+3)}, {fbits(-0.125)}, {v(PH+2)}
v_add_f32 {v(PH+2)}, {fbits(0.125)}, {v(PH+2)}
v_and_b32 {v(PH+4)}, 2, {v(c_)}
v_lshlrev_b32 {v(PH+4)}, 30, {v(PH+4)}
v_xor_b32 {v(PH+2)}, {v(PH+4)}, {v(PH+2)}
v_xor_b32 {v(PH+3)}, {v(PH+4)}, {v(PH+3)}
v_lshlrev_b32 {v(PH+4)}, 1, {v(g_)}
v_cvt_f32_u32 {v(PH+4)}, {v(PH+4)}
v_add_f32 {v(PH+5)}, 1.0, {v(PH+4)}
v_add_f32 {v(PH+6)}, {fbits(8.0)}, {v(PH+4)}
v_add_f32 {v(PH+7)}, {fbits(9.0)}, {v(PH+4)}
""")
for mt in range(2):
    for j in range(4):
        t = TMP + (mt*4+j)*3
        A(f"v_fma_f32 {v(t)}, {v(PH+mt)}, {v(PH+4+j)}, {v(PH+2+(j&1))}")
        A(f"v_cos_f32 {v(t+1)}, {v(t)}")
        A(f"v_sin_f32 {v(t+2)}, {v(t)}")
for mt in range(2):
    for j in range(4):
        t = TMP + (mt*4+j)*3
        cvt(M3+mt*4+j, t+1, t+2, False, True)
A(f"""
v_lshrrev_b32 {v(PH)}, 3, {v(vL)}
v_and_b32 {v(PH+1)}, 3, {v(PH)}
v_lshlrev_b32 {v(PH+1)}, 6, {v(PH+1)}
v_lshl_add_u32 {v(PH)}, {v(PH)}, 8, {v(PH+1)}
v_and_b32 {v(PH+1)}, 3, {v(vL)}
v_lshl_add_u32 {v(PH)}, {v(PH+1)}, 4, {v(PH)}
v_and_b32 {v(PH+1)}, 4, {v(vL)}
v_lshl_add_u32 {v(PH)}, {v(PH+1)}, 1, {v(PH)}
v_add_u32 {v(aT[0])}, {s(sW12)}, {v(PH)}
v_xor_b32 {v(aT[1])}, 64, {v(aT[0])}
v_xor_b32 {v(aT[2])}, 128, {v(aT[0])}
v_xor_b32 {v(aT[3])}, 192, {v(aT[0])}
v_mul_u32_u24 {v(PH)}, {PS2}, {v(g_)}
s_lshl_b32 {s(sT[0])}, {s(sW)}, 8
s_add_u32 {s(sT[1])}, {s(sT[0])}, {EX2}
s_sub_u32 {s(sT[0])}, {EX2+15*256}, {s(sT[0])}
v_lshl_add_u32 {v(aPw)}, {v(c_)}, 3, {v(PH)}
v_add_u32 {v(aPw)}, {s(sT[1])}, {v(aPw)}
v_sub_u32 {v(PH+1)}, 16, {v(c_)}
v_lshl_add_u32 {v(PH+1)}, {v(PH+1)}, 3, {v(PH)}
v_add_u32 {v(aQp)}, {s(sT[0])}, {v(PH+1)}
v_cmp_eq_u32 vcc, 0, {v(c_)}
v_mov_b32 {v(PH+2)}, 128
v_mov_b32 {v(PH+3)}, 132
v_mov_b32 {v(PH+4)}, -124
v_cndmask_b32 {v(PH+4)}, {v(PH+2)}, {v(PH+4)}, vcc
v_cndmask_b32 {v(PH+3)}, {v(PH+3)}, {v(PH+2)}, vcc
v_add_u32 {v(aQ1)}, {v(aQp)}, {v(PH+4)}
v_add_u32 {v(aQ0)}, {v(aQp)}, {v(PH+3)}
s_mul_i32 {s(sT[0])}, {s(sP)}, {PS2}
s_add_u32 {s(sT[0])}, {s(sT[0])}, {EX2}
v_and_b32 {v(PH+1)}, 31, {v(vL)}
v_lshrrev_b32 {v(PH+2)}, 5, {v(vL)}
v_lshlrev_b32 {v(PH+3)}, 9, {v(PH+2)}
v_lshl_add_u32 {v(PH+3)}, {v(PH+1)}, 3, {v(PH+3)}
v_add_u32 {v(aRd3)}, {s(sT[0])}, {v(PH+3)}
s_lshl_b32 {s(sO[0])}, {s(sP)}, 7
s_add_u32 {s(sO[0])}, {s(sO[0])}, {s(sSB)}
s_lshl_b32 {s(sO[0])}, {s(sO[0])}, 12
s_lshl_b32 {s(sO[1])}, {s(sM)}, 11
s_add_u32 {s(sO[0])}, {s(sO[0])}, {s(sO[1])}
s_add_u32 {s(sO[1])}, {s(sO[0])}, {1024*4096}
s_mov_b32 {s(sPM)}, 0x05040100
s_mov_b32 {s(sPM+1)}, 0x07060302
""")
A(f"""
v_lshlrev_b32 {v(PH)}, 2, {v(g_)}
v_xor_b32 {v(PH)}, {v(PH)}, {v(c_)}
v_lshlrev_b32 {v(PH)}, 4, {v(PH)}
v_lshl_add_u32 {v(aD3)}, {v(g_)}, 8, {v(PH)}
s_lshl_b32 {s(sMR)}, {s(sM)}, 7
s_add_u32 {s(sMR)}, {s(sMR)}, {s(sRHO)}
""")
if S3P:
    A(f"s_cmp_eq_u32 {s(sPH)}, 2")
    A("s_cbranch_scc1 L_ret1")
A(f"""
L_setup3_end:
s_cmp_lg_u32 {s(sPH)}, 0
s_cbranch_scc1 L_nosig2
""")
aR0, aR1, aS2, aPr, aS3 = vT[2:7]
sD = sT[4:5]
A(f"""
v_bfe_u32 {v(aR0)}, {v(vL)}, 2, 2
v_mul_u32_u24 {v(aR0)}, {OS}, {v(aR0)}
v_lshl_add_u32 {v(aR0)}, {v(g_)}, 6, {v(aR0)}
v_and_b32 {v(aR1)}, 3, {v(vL)}
v_mul_u32_u24 {v(aPr)}, 260, {v(aR1)}
v_add_u32 {v(aPr)}, {PGOFF}, {v(aPr)}
v_lshrrev_b32 {v(aS2)}, 5, {v(vL)}
v_xor_b32 {v(aR1)}, {v(aR1)}, {v(aS2)}
v_lshl_add_u32 {v(aR0)}, {v(aR1)}, 4, {v(aR0)}
s_sub_u32 {s(sT[8])}, 7, {s(sW)}
s_lshl_b32 {s(sT[0])}, {s(sT[8])}, 10
s_add_u32 {s(sT[0])}, {s(sT[0])}, {WOFF}
v_add_u32 {v(aR0)}, {s(sT[0])}, {v(aR0)}
v_xor_b32 {v(aR1)}, 32, {v(aR0)}
v_lshlrev_b32 {v(aS2)}, 14, {v(g_)}
v_lshl_add_u32 {v(aS2)}, {v(c_)}, 4, {v(aS2)}
s_lshl3_add_u32 {s(sT[0])}, {s(sGRP)}, {s(sT[8])}
s_mul_i32 {s(sT[0])}, {s(sT[0])}, {CP}
s_add_u32 {s(sT[0])}, {s(sT[0])}, {s(sCM)}
s_add_u32 {s(sT[0])}, {s(sT[0])}, {32*CP}
""")
if OPT['hp'] & 2: A("s_setprio 2")
NR = -(-8 // NST)
for i in range(NR):
    if NST*i + NST > 8:
        A(f"s_cmp_ge_u32 {s(sT[8])}, 8")
        A("s_cbranch_scc1 L_short")
    A(f"""
    s_lshr_b32 {s(sD[0])}, {s(sT[8])}, 1
    s_and_b32 {s(sT[6])}, {s(sT[8])}, 1
    s_lshl_b32 {s(sT[6])}, {s(sT[6])}, 6
    s_add_u32 {s(sD[0])}, {s(sD[0])}, {s(sT[6])}
    s_lshl_b32 {s(sD[0])}, {s(sD[0])}, 12
    s_add_u32 {s(sD[0])}, {s(sD[0])}, {s(sT[10])}
    s_mov_b32 {s(sCNT)}, 0x40000
    L_pg{i}:
    ds_read_b32 {v(vS1)}, {v(aPr)}
    s_sub_u32 {s(sCNT)}, {s(sCNT)}, 1
    s_cbranch_scc1 L_pg{i}_out
    {('s_sleep %d' % OPT['slp']) if i == 0 and OPT['slp'] else ''}
    s_waitcnt lgkmcnt(0)
    v_cmp_ge_u32 vcc, {s(sT[8])}, {v(vS1)}
    s_and_b64 vcc, vcc, vcc
    s_cbranch_scc1 L_pg{i}
    L_pg{i}_out:
    """)
    d = D1R + 16*i
    for j in range(4): A(f"ds_read_b128 {v(d+4*j,4)}, {v(aR1 if j & 1 else aR0)} offset:{i*NST*1024+j*256}")
    A(f"s_add_u32 {s(sT[8])}, {s(sT[8])}, {NST}")
    for j in range(4):
        A(f"s_waitcnt lgkmcnt({3-j})")
        A(f"buffer_store_dwordx4 {v(d+4*j,4)}, {v(aS2)}, {srd(OUT_)}, {s(sD[0])} offen sc1")
        if j < 3:
            A(f"s_add_u32 {s(sD[0])}, {s(sD[0])}, 65536")
            if OPT['px']: A(f"s_xor_b32 {s(sD[0])}, {s(sD[0])}, {4*AROW}")
for i in range(NR):
    A(f"s_waitcnt vmcnt({4*(NR-1-i)})")
    signal(sT[0], NST*i*CP)
if 8 % NST:
    A("s_branch L_nosig2")
    A.label("L_short")
    for i in range(NR-1):
        A(f"s_waitcnt vmcnt({4*(NR-2-i)})")
        signal(sT[0], NST*i*CP)
A.label("L_nosig2")
if OPT['hp'] & 2: A("s_setprio 0")
stamp("fl2")
A("s_barrier")
A(f"s_mov_b32 m0, {s(sW12)}")
poll("L_poll2", sC2, 16, OPT['sl2'])
stamp("pol2")
for j in range(4):
    A(f"buffer_load_dwordx4 {v(aD3)}, {srd(OUT_)}, {s(sO[j>>1])} offen offset:{(j&1)*1024} sc1 lds")
    if j == 1: A("s_add_u32 m0, m0, 2048")
A(f"""
s_cmp_lg_u32 {s(sW)}, 4
s_cbranch_scc1 L_noep
s_cmp_lg_u32 s2, {HB}
s_cbranch_scc1 L_noep
s_mov_b32 {s(sT[4])}, {EW}
s_atomic_swap {s(sTAG)}, {s(WS_,2)}, {s(sT[4])}
s_waitcnt lgkmcnt(0)
L_noep:
""")
GB = [(8, 8), (40, 8), (88, 8), (16, 4), (28, 4)] if OPT['stamp'] else [(60, 16), (76, 16)]
GS = [r + i for r, n in GB for i in range(n)]
def granule_loads():
    off = 0
    for r, n in GB:
        A(f"s_load_dwordx{n} {s(r,n)}, {s(WS_,2)}, {s(sT[4])} offset:{off} glc"); off += 4*n
A(f"""
s_cmp_lg_u32 {s(sW)}, 0
s_cbranch_scc1 L_nosp3a
s_lshl_b32 {s(sT[4])}, {s(sMR)}, 7
s_add_u32 {s(sT[4])}, {s(sT[4])}, {XB}
""")
granule_loads()
A.label("L_nosp3a")
for i in range(16):
    A(f"v_perm_b32 {v(GR+i)}, {v(FN+i//2)}, {v(FC+i//2)}, {s(sPM+(i&1))}")
    A(f"v_perm_b32 {v(GI+i)}, {v(FC+i//2)}, {v(FS+i//2)}, {s(sPM+(i&1))}")
A(f"""
s_cmp_lg_u32 {s(sW)}, 0
s_cbranch_scc1 L_nosp3b
s_mov_b32 {s(sCNT)}, 0x8000
s_branch L_gchk
L_gagain:
s_sub_u32 {s(sCNT)}, {s(sCNT)}, 1
s_cbranch_scc1 L_gok
""")
granule_loads()
A.label("L_gchk")
A("s_waitcnt lgkmcnt(0)")
for i in range(16):
    A(f"s_cmp_lg_u32 {s(GS[2*i+1])}, {s(sTAG)}")
    A("s_cbranch_scc1 L_gagain")
A.label("L_gok")
for h in range(2):
    for g in range(4):
        for q in range(2):
            A(f"v_writelane_b32 {v(TMP+4+2*h+q)}, {s(GS[h*16+g*4+2*q])}, {16*g}")
m16(D2R, M3, TMP+4, None); m16(D2R+4, M3+4, TMP+4, None)
A.label("L_nosp3b")
A("s_waitcnt vmcnt(0)")
stamp("dat2", (1, 3))
for t in (0, 2, 1, 3):
    for jj in range(2):
        A(f"ds_read_b64_tr_b16 {v(XR+4*t+2*jj,2)}, {v(aT[t])} offset:{jj*2048}")
for i, t in enumerate((0, 2, 1, 3)):
    A(f"s_waitcnt lgkmcnt({6-2*i})")
    m16(D1R+8*t, M3, XR+4*t, None); m16(D1R+8*t+4, M3+4, XR+4*t, None)
A(f"""
s_cmp_lg_u32 {s(sW)}, 0
s_cbranch_scc1 L_nofix
s_mov_b32 exec_lo, 0x00010001
s_mov_b32 exec_hi, 0x00010001
""")
for d in (D2R, D1R):
    for mt in range(2):
        for i in range(2):
            A(f"v_add_f32 {v(d+4*mt+i)}, {v(d+4*mt+i)}, {v(d+4*mt+2+i)}")
            A(f"v_mul_f32 {v(d+4*mt+i)}, 0.5, {v(d+4*mt+i)}")
cvt(TMP, D2R, D2R+1); cvt(TMP+1, D2R+4, D2R+5)
A(f"""
ds_write_b32 {v(aPw)}, {v(TMP)} offset:{8*256}
ds_write_b32 {v(aPw)}, {v(TMP+1)} offset:{8*256+4*PS2}
s_mov_b64 exec, -1
L_nofix:
s_nop 1
""")
for tp in range(2):
    for mt in range(2):
        d0 = D1R + 8*tp + 4*mt; d1 = d0 + 16
        o = TMP + 8 + (tp*2+mt)*4
        cvt(o, d0, d0+1); cvt(o+1, d1, d1+1); cvt(o+2, d1+2, d1+3); cvt(o+3, d0+2, d0+3)
for tp in range(2):
    for mt in range(2):
        o = TMP + 8 + (tp*2+mt)*4
        A(f"ds_write_b64 {v(aPw)}, {v(o,2)} offset:{mt*4*PS2+tp*128}")
        if tp == 1:
            A(f"ds_write_b64 {v(aQp)}, {v(o+2,2)} offset:{mt*4*PS2}")
        else:
            A(f"ds_write_b32 {v(aQ1)}, {v(o+2)} offset:{mt*4*PS2}")
            A(f"ds_write_b32 {v(aQ0)}, {v(o+3)} offset:{mt*4*PS2}")
A("s_waitcnt lgkmcnt(0)")
A("s_barrier")
stamp("bar3", (1, 3))
for t in range(4):
    for j in range(2):
        A(f"ds_read_b64 {v(XR+4*t+2*j,2)}, {v(aRd3)} offset:{t*1024+j*256}")
for t in range(4):
    A(f"s_waitcnt lgkmcnt({6-2*t})")
    m32(D1R, XR+4*t, GR+4*t, D1R if t else None)
A("s_nop 4")
weave([M32(D1I, XR+4*t, GI+4*t, D1I if t else None) for t in range(4)], ["s_nop 4"] + TW1(D1R, True), [1, 6, 6, 99])
stamp("m3", (3,))
for t_ in TW2(D1I, XR, XI, True, 0, 8): A(t_)
weave([M32(D2R, XR, FC, None), M32(D2R, XI, FN, D2R), M32(D2I, XR, FS, None), M32(D2I, XI, FC, D2I)], TW2(D1I, XR, XI, True, 8, 16), 6)
weave([M32(D2R, XR+4, FC+4, D2R), M32(D2R, XI+4, FN+4, D2R), M32(D2I, XR+4, FS+4, D2I), M32(D2I, XI+4, FC+4, D2I)], [], 0)
stamp("m4", (3,))
for comp, d in ((0, D2R), (1, D2I)):
    o = TMP + comp*8
    for q in (0, 4, 1, 5, 2, 6, 3, 7): cvt(o+q, d+2*q, d+2*q+1)
    for q in range(4): A(f"v_permlane16_swap_b32 {v(o+q)}, {v(o+4+q)}")
    for j in range(2):
        A(f"buffer_store_dwordx4 {v(o+4*j,4)}, {v(aSo)}, {srd(OUT_)}, {s(sO[comp])} offen offset:{j*1024}{OUTM}")
if OPT['stamp']:
    stamp("st3", (1, 3))
    A("s_waitcnt vmcnt(0)")
    stamp("end")
    A("s_waitcnt lgkmcnt(0)")
    n = len(stamps)
    assert sST + 2*n <= 88, n
    if OPT['diag']:
        da, db = OPT['da'], OPT['db']
        A(f"""
        s_load_dwordx2 s[94:95], s[0:1], 56
        s_and_b32 {s(sT[4])}, s2, 7
        s_lshl_b32 {s(sT[4])}, {s(sT[4])}, 3
        s_not_b32 {s(sT[11])}, {s(sST)}
        s_sleep 100
        s_waitcnt lgkmcnt(0)
        s_cmp_lg_u32 {s(sW)}, {OPT['wa']}
        s_cbranch_scc1 L_dg1
        s_atomic_umax {s(sST+2*da) if da else s(sT[11])}, s[94:95], {s(sT[4])}
        L_dg1:
        s_cmp_lg_u32 {s(sW)}, {OPT['wb']}
        s_cbranch_scc1 L_end
        s_atomic_umax {s(sST+2*db)}, s[94:95], {s(sT[4])} offset:4
        s_cmp_lg_u32 s2, 100
        s_cbranch_scc1 L_end
        s_add_u32 {s(sT[0])}, {s(sST+2*(n-1))}, 900
        L_amp0:
        s_memrealtime {s(sT[2],2)}
        s_waitcnt lgkmcnt(0)
        s_sub_u32 {s(sT[1])}, {s(sT[0])}, {s(sT[2])}
        s_cmp_gt_i32 {s(sT[1])}, 0
        s_cbranch_scc1 L_amp0
        s_load_dwordx16 s[60:75], s[94:95], 0 glc
        s_waitcnt lgkmcnt(0)
        """)
        for i in range(1, 8):
            A(f"s_max_u32 s60, s60, s{60+2*i}")
            A(f"s_max_u32 s61, s61, s{61+2*i}")
        if not da: A("s_not_b32 s60, s60")
        A(f"""
        s_sub_u32 {s(sT[1])}, s61, s60
        s_lshl_b32 {s(sT[1])}, {s(sT[1])}, 4
        s_min_u32 {s(sT[1])}, {s(sT[1])}, 60000
        s_add_u32 {s(sT[0])}, {s(sT[0])}, {s(sT[1])}
        L_amp:
        s_memrealtime {s(sT[2],2)}
        s_waitcnt lgkmcnt(0)
        s_sub_u32 {s(sT[1])}, {s(sT[0])}, {s(sT[2])}
        s_cmp_gt_i32 {s(sT[1])}, 0
        s_cbranch_scc1 L_amp
        s_branch L_end
        """)
    A(f"s_lshl_b32 {s(sT[0])}, s2, 3")
    A(f"s_add_u32 {s(sT[0])}, {s(sT[0])}, {s(sW)}")
    A(f"s_lshl_b32 {s(sT[0])}, {s(sT[0])}, 7")
    A(f"s_add_u32 {s(sT[0])}, {s(sT[0])}, {STAMP}")
    A("v_mov_b32 v3, 0")
    A("s_mov_b64 exec, 1")
    for i in range(n):
        A(f"v_mov_b32 v2, {s(sST+2*i)}")
        A(f"buffer_store_dword v2, v3, {srd(WS_)}, {s(sT[0])} offen offset:{i*4}")
    A.raw("; stamps: " + " ".join(stamps))
A.label("L_end")
A("s_endpgm")
def kd(name, nv, ns):
    A.raw(f""".p2align 6
.amdhsa_kernel {name}
  .amdhsa_next_free_vgpr {nv}
  .amdhsa_next_free_sgpr {ns}
  .amdhsa_accum_offset {nv}
  .amdhsa_group_segment_fixed_size 0
  .amdhsa_kernarg_size 72
  .amdhsa_user_sgpr_count 2
  .amdhsa_user_sgpr_kernarg_segment_ptr 1
  .amdhsa_system_sgpr_workgroup_id_x 1
  .amdhsa_float_denorm_mode_32 3
.end_amdhsa_kernel""")
A.raw('.section .rodata,"a"')
kd(NAME + "_kernel", 256, 102)
if OPT['lst']: kd("empty_kernel", 8, 16)
open(sys.argv[1], "w").write(A.text())
print(sys.argv[1], "nops:", A.nops, "stamps:", len(stamps), file=sys.stderr)
```

```python
import sys, struct
import numpy as np
from asmlib import Asm, v, s

NAME = "concat_heads__spectral_gfnet__spectral_gfnet__prompt"
OPT = dict(outm=1, xnt=0, wnt=0, px=4, diag=0, da=0, db=0, wa=0, wb=0, ne=3, nea=3, gh=0, xprio=0, slp=0, nst=3, stag=2, tg=1, wp=0, hp=3, p1p=1,
           stamp=0, sl1=8, sl2=8, rm=1, ha=128, hb=161, spw=1, s3p=1, fw=1, al=1, p3p=1, lst=0)
for a_ in sys.argv[2:]:
    k_, v_ = a_.split('='); assert k_ in OPT, k_; OPT[k_] = int(v_)

def fbits(x): return "0x%08x" % struct.unpack('<I', struct.pack('<f', x))[0]
def bf16(x):
    u = np.asarray(x, dtype=np.float32).view(np.uint32)
    return ((u + 0x7FFF + ((u >> 16) & 1)) >> 16).astype(np.uint32)

AUX = 0
XB = AUX + 0x30000
CP = 256
CB = AUX + 0x10000
EW = AUX + 0xa0000
STAMP = AUX + 0x100000
WSZ = 2 << 20
EXOFF = 32768
PS = 5184
WOFF = EXOFF + 8 * PS
M2OFF = WOFF + 36864
SYOFF = M2OFF + 32768
PGOFF = SYOFF + 64
T1OFF = PGOFF + 2048
LDSZ = T1OFF + 14336
EX2 = EXOFF
OS = 8320
XOUT = EXOFF + 32768
PS2 = 4160
sW, sM, sRHO, sSB, sA, sGRP = 3, 4, 5, 6, 7, 32
X_, WR_, WI_, OUT_, WS_, TAB_ = 8, 12, 16, 20, 24, 44
sCNT = 33
sT = list(range(34, 48))
sV = 48
sEXP = 50
sTAG = 51
sW12, sM8, sE, sROLE, sC1, sC2 = 52, 53, 54, 55, 56, 57
sPM = 58
sST = 60
sO = [96, 97]
sU = [98, 99, 100, 101]
sONE = sU[2]
sCM = 30
sP = 31
srd = lambda b: s(b, 4)

A = Asm()
AROW = 128 * 4096
HA, HB = OPT['ha'], OPT['hb']
NST = OPT['nst']
XNT = ' nt' if OPT['xnt'] else ''
WNT = ' nt' if OPT['wnt'] else ''
OUTM = ['', ' sc1', ' nt', ' sc0 sc1', ' sc1 nt', ' sc0 sc1 nt'][OPT['outm']]
def M32(d, a, b, c): return f"v_mfma_f32_32x32x16_bf16 {v(d,16)}, {v(a,4)}, {v(b,4)}, {v(c,16) if c is not None else 0}"
def M16(d, a, b, c): return f"v_mfma_f32_16x16x32_bf16 {v(d,4)}, {v(a,4)}, {v(b,4)}, {v(c,4) if c is not None else 0}"
def CVT(d, a, b, na=False, nb=False): return f"v_cvt_pk_bf16_f32 {v(d)}, {'-' if na else ''}{v(a)}, {'-' if nb else ''}{v(b)}"
def m32(*a): A(M32(*a))
def m16(*a): A(M16(*a))
def cvt(*a): A(CVT(*a))
def weave(mf, fill, per):
    fill = list(fill)
    for i, m in enumerate(mf):
        A(m)
        n = per[i] if isinstance(per, (list, tuple)) else per
        for _ in range(n):
            if fill: A(fill.pop(0))
    for f in fill: A(f)
stamps = []
def stamp(name, sets=(1,)):
    st = OPT['stamp']
    if name in ("start", "end"):
        if st: A(f"s_memrealtime {s(sST + 2*len(stamps), 2)}"); stamps.append(name)
        if st > 1: A(f"s_memtime {s(sST + 2*len(stamps), 2)}"); stamps.append("c" + name)
    elif st in sets:
        if name not in stamps: stamps.append(name)
        A(f"{'s_memrealtime' if st == 1 else 's_memtime'} {s(sST + 2*stamps.index(name), 2)}")

vL, c_, g_ = 1, 2, 3
vT = list(range(2, 16))
TC, TS = 16, 32
FC, FS, FN = 48, 56, 64
M3 = 72
GR, GI = 80, 96
XR, XI = 112, 120
D1R, D1I = 128, 144
D2R, D2I = 160, 176
TMP = 192
PH = 224
WRF, WIF = 16, 48
FR = 80
DRE, DIM, DNR = 144, 160, 176
ER, EI = 192, 224

def peek(off, imm=0):
    A(f"s_mov_b64 {s(sV,2)}, 0")
    A(f"s_atomic_or_x2 {s(sV,2)}, {s(WS_,2)}, {s(off)} glc" if not imm else f"s_atomic_or_x2 {s(sV,2)}, {s(WS_,2)}, {s(off)} offset:{imm} glc")
def poll(label, off, count, sleep, imm=0, keep=None):
    A(f"s_mov_b32 {s(sEXP)}, {count}")
    A(f"s_mov_b32 {s(sCNT)}, 0x8000")
    A.label(label)
    peek(off, imm)
    A(f"s_sub_u32 {s(sCNT)}, {s(sCNT)}, 1")
    A(f"s_cbranch_scc1 {label}_out")
    if sleep: A(f"s_sleep {sleep}")
    A("s_waitcnt lgkmcnt(0)")
    if keep is not None:
        A(f"s_mov_b32 {s(keep)}, {s(sV)}")
        A(f"s_and_b32 {s(sV)}, {s(sV)}, 0xffff")
    A(f"s_cmp_eq_u64 {s(sV,2)}, {s(sEXP,2)}")
    A(f"s_cbranch_scc0 {label}")
    A.label(label + "_out")
def validate(label, off, imm=0):
    A(f"s_mov_b32 {s(sCNT)}, 0x8000")
    A.label(label)
    A("s_waitcnt lgkmcnt(0)")
    A(f"s_cmp_eq_u32 {s(sV+1)}, {s(sTAG)}")
    A(f"s_cbranch_scc1 {label}_out")
    peek(off, imm)
    A(f"s_sub_u32 {s(sCNT)}, {s(sCNT)}, 1")
    A(f"s_cbranch_scc0 {label}")
    A("s_waitcnt lgkmcnt(0)")
    A.label(label + "_out")
def signal(off, imm=0):
    A(f"s_atomic_add {s(sONE)}, {s(WS_,2)}, {s(off)}" + (f" offset:{imm}" if imm else ""))

vSY, vS1, vPG = vT[12], vT[13], vT[11]
def lds_wait(label, off, val):
    A(f"s_mov_b32 {s(sCNT)}, 0x40000")
    A.label(label)
    A(f"ds_read_b32 {v(vS1)}, {v(vSY)} offset:{off}")
    A(f"s_sub_u32 {s(sCNT)}, {s(sCNT)}, 1")
    A(f"s_cbranch_scc1 {label}_out")
    A("s_waitcnt lgkmcnt(0)")
    A(f"v_cmp_gt_u32 vcc, {val}, {v(vS1)}")
    A("s_and_b64 vcc, vcc, vcc")
    A(f"s_cbranch_scc1 {label}")
    A.label(label + "_out")
def lds_bit(off, sbit):
    A(f"v_mov_b32 {v(vS1)}, {s(sbit)}")
    A("s_mov_b64 exec, 1")
    A(f"ds_or_b32 {v(vSY)}, {v(vS1)} offset:{off}")
    A("s_mov_b64 exec, -1")
def lds_post(off, rtn=False):
    A(f"v_mov_b32 {v(vS1)}, 1")
    A("s_mov_b64 exec, 1")
    if rtn: A(f"ds_add_rtn_u32 {v(vS1)}, {v(vSY)}, {v(vS1)} offset:{off}")
    else: A(f"ds_add_u32 {v(vSY)}, {v(vS1)} offset:{off}")
    A("s_mov_b64 exec, -1")

sWB, sI = sU[0], sU[3]
aWM, aWT = GR + 4, GR + 5
nlab = [0]
def w_piece(e):
    if e < 4:
        arr, half = e & 1, e >> 1
        A(f"s_add_u32 m0, {s(sT[13])}, {WOFF + (2*arr+half)*9216}")
        if half: A(f"s_add_u32 {s(sI)}, {s(sT[12])}, {64*16416}")
        A(f"buffer_load_dwordx4 {v(aWM)}, {srd(WI_ if arr else WR_)}, {s(sI if half else sT[12])} offen{WNT} lds")
    else:
        n = nlab[0]; nlab[0] += 1
        A(f"""
        s_mul_i32 {s(sI)}, {s(sW)}, 9216
        s_add_u32 m0, {s(sI)}, {WOFF + 8192}
        s_and_b32 {s(sI)}, {s(sW)}, 1
        s_mul_i32 {s(sI)}, {s(sI)}, {64*16416}
        s_add_u32 {s(sI)}, {s(sI)}, {s(sWB)}
        s_bitcmp1_b32 {s(sW)}, 1
        s_cbranch_scc1 L_t1_{n}
        buffer_load_dwordx4 {v(aWT)}, {srd(WR_)}, {s(sI)} offen{WNT} lds
        s_branch L_t2_{n}
        L_t1_{n}:
        buffer_load_dwordx4 {v(aWT)}, {srd(WI_)}, {s(sI)} offen{WNT} lds
        L_t2_{n}:
        """)
def w_base(sw):
    A(f"s_mul_i32 {s(sT[12])}, {s(sw)}, {7*16416}")
    A(f"s_add_u32 {s(sT[12])}, {s(sT[12])}, {s(sWB)}")
    A(f"s_lshl_b32 {s(sT[13])}, {s(sw)}, 10")

def gen_m2(sW):
    G = D2R
    kf, s0, af, bf, ai, bi, ad = G, G+1, G+2, G+3, G+4, G+5, G+6
    P, C_, S_ = D1R, D1R+16, G+8
    A(f"""
    s_and_b32 {s(sT[12])}, {s(sW)}, 1
    s_lshl_b32 {s(sT[12])}, {s(sT[12])}, 4
    s_lshr_b32 {s(sT[13])}, {s(sW)}, 1
    v_add_u32 {v(kf)}, {s(sT[12])}, {v(c_)}
    v_lshl_add_u32 {v(ai)}, {v(kf)}, 2, {s(sT[13])}
    v_lshl_add_u32 {v(s0)}, {v(g_)}, 4, {s(sT[13])}
    v_mul_u32_u24 {v(bf)}, {v(s0)}, {v(kf)}
    v_mul_u32_u24 {v(bi)}, {v(g_)}, {v(ai)}
    v_cvt_f32_u32 {v(af)}, {v(kf)}
    v_cvt_f32_u32 {v(ai)}, {v(ai)}
    v_cvt_f32_u32 {v(bf)}, {v(bf)}
    v_cvt_f32_u32 {v(bi)}, {v(bi)}
    v_mul_f32 {v(bf)}, {fbits(1/128)}, {v(bf)}
    v_mul_f32 {v(bi)}, {fbits(1/32)}, {v(bi)}
    s_lshl_b32 {s(sT[12])}, {s(sW)}, 11
    s_add_u32 {s(sT[12])}, {s(sT[12])}, {M2OFF}
    v_lshl_add_u32 {v(ad)}, {v(vL)}, 4, {s(sT[12])}
    """)
    for d in range(2):
        for i in range(8):
            c = 16*(i >> 2) + (i & 3)
            A(f"v_fmamk_f32 {v(P+8*d+i)}, {v(ai if d else af)}, {fbits(c/128 if d else c/32)}, {v(bi if d else bf)}")
    for i in range(16):
        A(f"v_cos_f32 {v(C_+i)}, {v(P+i)}")
        A(f"v_sin_f32 {v(S_+i)}, {v(P+i)}")
    for d in range(2):
        for j in range(4):
            cvt(P+8*d+j, C_+8*d+2*j, C_+8*d+2*j+1)
            cvt(P+8*d+4+j, S_+8*d+2*j, S_+8*d+2*j+1)
    for d in range(2):
        for cs in range(2):
            A(f"ds_write_b128 {v(ad)}, {v(P+8*d+4*cs,4)} offset:{d*16384+cs*1024}")

def load_tables(addr):
    for i in (8, 9, 10, 11, 12, 13, 0, 4, 1, 5, 2, 6, 3, 7):
        A(f"ds_read_b128 {v(TC+4*i,4)}, {v(addr)} offset:{i*1024}")

def TW1(dr, conj):
    L = []
    for i in range(16):
        L.append(f"v_mul_f32 {v(TMP+i)}, {v(dr+i)}, {v(TC+i)}")
        L.append(f"v_mul_f32 {v(TMP+16+i)}, {v(dr+i)}, {v(TS+i)}" if conj else f"v_mul_f32_e64 {v(TMP+16+i)}, -{v(dr+i)}, {v(TS+i)}")
    return L
def TW2(di, outr, outi, conj, lo, hi):
    L = []
    for i in range(lo, hi, 2):
        for e in range(2):
            L.append(f"v_fma_f32 {v(TMP+i+e)}, -{v(di+i+e)}, {v(TS+i+e)}, {v(TMP+i+e)}" if conj else f"v_fmac_f32 {v(TMP+i+e)}, {v(di+i+e)}, {v(TS+i+e)}")
            L.append(f"v_fmac_f32 {v(TMP+16+i+e)}, {v(di+i+e)}, {v(TC+i+e)}")
        L.append(CVT(outr + i//2, TMP+i, TMP+i+1))
        L.append(CVT(outi + i//2, TMP+16+i, TMP+16+i+1))
    return L

A.raw("; GFNet spectral filter: persistent 3-pass MFMA FFT (generated by a script of the author)")
if OPT['lst'] == 0: A.raw(f"; @launch grid=(256,1,1) block=(512,1,1) lds={LDSZ}")
else:
    A.raw(f"; @launch kernel={NAME}_kernel grid=(256,1,1) block=(512,1,1) lds={LDSZ}")
    A.raw(f"; @launch kernel=empty_kernel grid=(1,1,1) block=(64,1,1) lds=0")
A.raw('.amdgcn_target "amdgcn-amd-amdhsa--gfx950"\n.text')
if OPT['lst']: A.raw(".globl empty_kernel\n.p2align 8\n.type empty_kernel,@function\nempty_kernel:\n s_endpgm")
A.raw(f".globl {NAME}_kernel\n.p2align 8\n.type {NAME}_kernel,@function")
A.label(f"{NAME}_kernel")
aL16 = GR + 1
SPW = OPT['spw']
NE = NEB = OPT['ne']
NEA = OPT['nea']
assert NEA <= NE
STAG = OPT['stag']
A(f"""
s_cmp_ge_u32 s2, 256
s_cbranch_scc1 L_end
s_bfe_u32 {s(sM)}, s2, 0x10003
s_mul_i32 {s(sT[0])}, {s(sM)}, 24
s_load_dwordx2 {s(X_,2)}, s[0:1], {s(sT[0])}
s_load_dwordx2 {s(WS_,2)}, s[0:1], 64
s_load_dwordx2 {s(WR_,2)}, s[0:1], {s(sT[0])} offset:8
s_load_dwordx2 {s(WI_,2)}, s[0:1], {s(sT[0])} offset:16
s_load_dwordx2 {s(OUT_,2)}, s[0:1], 48
""")
stamp("start")
A(f"""
v_lshrrev_b32 v2, 6, v0
s_getpc_b64 {s(TAB_,2)}
L_pc:
s_lshr_b32 {s(sT[2])}, s2, 4
v_readfirstlane_b32 {s(sW)}, v2
s_mov_b32 {s(TAB_+2)}, L_end-L_pc
s_mov_b32 {s(TAB_+3)}, 0x20000
v_lshlrev_b32 v3, 11, v2
s_lshl_b32 {s(sT[6])}, {s(sT[2])}, 7
buffer_load_dword {v(GR)}, v3, {srd(TAB_)}, {s(sT[6])} offen
v_and_b32 {v(vL)}, 63, v0
s_and_b32 {s(sT[1])}, s2, 7
""")
if OPT['rm'] == 0: A(f"s_lshl4_add_u32 {s(sRHO)}, {s(sT[1])}, {s(sT[2])}")
else:
    A(f"""
    s_and_b32 {s(sRHO)}, s2, 0x73
    s_and_b32 {s(sT[5])}, s2, 4
    s_lshl1_add_u32 {s(sRHO)}, {s(sT[5])}, {s(sRHO)}
    s_lshr_b32 {s(sT[5])}, s2, 7
    s_lshl2_add_u32 {s(sRHO)}, {s(sT[5])}, {s(sRHO)}
    """)
    if OPT['rm'] == 2: A(f"s_xor_b32 {s(sRHO)}, {s(sRHO)}, 0x70")
A(f"""
s_and_b32 {s(sSB)}, {s(sRHO)}, 31
s_lshr_b32 {s(sT[5])}, {s(sRHO)}, 5
s_lshl2_add_u32 {s(sSB)}, {s(sSB)}, {s(sT[5])}
v_lshlrev_b32 {v(aL16)}, 4, {v(vL)}
s_mov_b32 {s(X_+2)}, 4194304
s_mov_b32 {s(X_+3)}, 0x20000
s_and_b32 {s(sP)}, {s(sRHO)}, {OPT['px']}
s_xor_b32 {s(sP)}, {s(sP)}, {s(sW)}
s_lshl_b32 {s(sO[0])}, {s(sP)}, 7
s_add_u32 {s(sO[0])}, {s(sO[0])}, {s(sSB)}
s_lshl_b32 {s(sO[0])}, {s(sO[0])}, 11
s_add_u32 {s(sO[1])}, {s(sO[0])}, 0x200000
s_lshl_b32 {s(sW12)}, {s(sW)}, 12
s_mov_b32 m0, {s(sW12)}
""")
XISS = f"""
buffer_load_dwordx4 {v(aL16)}, {srd(X_)}, {s(sO[0])} offen{XNT} lds
buffer_load_dwordx4 {v(aL16)}, {srd(X_)}, {s(sO[0])} offen offset:1024{XNT} lds
s_add_u32 m0, {s(sW12)}, 2048
buffer_load_dwordx4 {v(aL16)}, {srd(X_)}, {s(sO[1])} offen{XNT} lds
buffer_load_dwordx4 {v(aL16)}, {srd(X_)}, {s(sO[1])} offen offset:1024{XNT} lds
"""
def early_x():
    A("s_waitcnt lgkmcnt(0)")
    stamp("karg", (4,))
    if STAG:
        A(f"s_cmp_lg_u32 {s(sM)}, 0")
        A("s_cbranch_scc1 L_xlate")
    A(XISS)
    A.label("L_xlate")
    stamp("xiss", (4,))
if OPT['tg'] == 0: early_x()
A(f"""
s_lshr_b32 {s(sT[3])}, {s(sW)}, 1
s_and_b32 {s(sT[4])}, {s(sW)}, 1
s_lshl2_add_u32 {s(sT[6])}, {s(sT[3])}, {s(sT[4])}
s_lshl_b32 {s(sT[6])}, {s(sT[6])}, 1
v_lshrrev_b32 {v(PH+16)}, 5, {v(vL)}
v_and_b32 {v(PH+17)}, 31, {v(vL)}
v_lshl_add_u32 {v(PH)}, {v(PH+16)}, 2, {s(sT[6])}
v_mul_u32_u24 {v(PH)}, {v(PH)}, {v(PH+17)}
v_add_u32 {v(PH+1)}, {v(PH)}, {v(PH+17)}
v_cvt_f32_u32 {v(PH)}, {v(PH)}
v_cvt_f32_u32 {v(PH+1)}, {v(PH+1)}
s_mov_b32 {s(sT[6])}, {fbits(1/32)}
v_mul_f32 {v(PH+2)}, {s(sT[6])}, {v(PH)}
v_mul_f32 {v(PH+3)}, {s(sT[6])}, {v(PH+1)}
v_cos_f32 {v(PH+8)}, {v(PH+2)}
v_cos_f32 {v(PH+9)}, {v(PH+3)}
v_sin_f32 {v(PH+10)}, {v(PH+2)}
v_sin_f32 {v(PH+11)}, {v(PH+3)}
v_mul_f32 {v(PH)}, {s(sT[6])}, {v(PH+2)}
v_mul_f32 {v(PH+1)}, {s(sT[6])}, {v(PH+3)}
v_cos_f32 {v(PH+4)}, {v(PH)}
v_cos_f32 {v(PH+5)}, {v(PH+1)}
v_sin_f32 {v(PH+6)}, {v(PH)}
v_sin_f32 {v(PH+7)}, {v(PH+1)}
{CVT(PH+12, PH+8, PH+9)}
{CVT(PH+13, PH+10, PH+11)}
{CVT(PH+14, PH+10, PH+11, True, True)}
v_add_u32 {v(vS1)}, {T1OFF}, {v(aL16)}
s_lshl_b32 {s(sT[3])}, {s(sT[3])}, 10
s_lshl3_add_u32 {s(sT[3])}, {s(sT[4])}, {s(sT[3])}
v_add_u32 {v(PH)}, {s(sT[3])}, {v(vS1)}
s_mul_i32 {s(sT[3])}, {s(sW)}, 0x104
s_and_b32 {s(sT[3])}, {s(sT[3])}, 0x40c
v_add_u32 {v(PH+1)}, {s(sT[3])}, {v(vS1)}
""")
if OPT['tg'] == 1: early_x()
A(f"""
ds_write_b64 {v(PH)}, {v(PH+4,2)}
ds_write_b64 {v(PH)}, {v(PH+6,2)} offset:4096
ds_write_b32 {v(PH+1)}, {v(PH+12)} offset:8192
ds_write_b32 {v(PH+1)}, {v(PH+13)} offset:10240
ds_write_b32 {v(PH+1)}, {v(PH+14)} offset:12288
v_and_b32 {v(c_)}, 15, {v(vL)}
v_lshrrev_b32 {v(g_)}, 4, {v(vL)}
s_mov_b32 {s(sT[6])}, {EW}
s_cmp_lg_u32 {s(sW)}, 0
s_waitcnt lgkmcnt(0)
s_cbranch_scc1 L_noe
s_load_dword {s(sE)}, {s(WS_,2)}, {s(sT[6])}
L_noe:
""")
stamp("tgen", (4,))
A("s_barrier")
stamp("tbar", (4,))
if STAG == 3:
    load_tables(vS1)
if STAG:
    A(f"s_cmp_eq_u32 {s(sM)}, 0")
    A("s_cbranch_scc1 L_xdone")
    if STAG == 3: A("s_barrier")
    if STAG == 2:
        gen_m2(sW)
        A("s_barrier")
    A(XISS)
    A.label("L_xdone")
if STAG != 3: load_tables(vS1)
stamp("xis2", (4,))
aTR, aP, aQe, aQo, aRD, aST = vT[2:8]
sS1 = sT[8:10]
H_, F_ = PH + 16, PH + 17
A(f"""
s_lshr_b32 {s(sT[3])}, {s(sT[2])}, 3
s_lshl1_add_u32 {s(sA)}, {s(sT[1])}, {s(sT[3])}
s_and_b32 {s(sGRP)}, {s(sT[2])}, 7
s_mov_b32 {s(WR_+2)}, 2101248
s_mov_b32 {s(WR_+3)}, 0x20000
s_mov_b32 {s(WI_+2)}, 2101248
s_mov_b32 {s(WI_+3)}, 0x20000
s_cmp_lg_u32 {s(sW)}, {SPW}
s_cbranch_scc1 L_nogather
v_lshrrev_b32 v9, 2, {v(c_)}
v_and_b32 v10, 1, {v(c_)}
v_lshl_add_u32 v9, v9, 1, v10
v_and_b32 v10, 2, {v(c_)}
v_lshl_add_u32 v9, v10, 2, v9
v_mul_u32_u24 v9, 1026, v9
s_mul_i32 {s(sT[3])}, {s(sRHO)}, 16416
buffer_load_ushort v11, v9, {srd(WR_)}, {s(sT[3])} offen offset:1024
buffer_load_ushort v12, v9, {srd(WI_)}, {s(sT[3])} offen offset:1024
L_nogather:
s_mul_i32 {s(sWB)}, {s(sA)}, 1026
s_lshl_b32 {s(sT[0])}, {s(sGRP)}, 7
s_add_u32 {s(sWB)}, {s(sWB)}, {s(sT[0])}
s_andn2_b32 {s(sWB)}, {s(sWB)}, 15
v_add_u32 {v(PH)}, {s(sW)}, {v(vL)}
v_mul_u32_u24 {v(PH+1)}, 57, {v(PH)}
v_lshrrev_b32 {v(PH+1)}, 9, {v(PH+1)}
v_mul_u32_u24 {v(PH+1)}, {16416-144}, {v(PH+1)}
v_lshl_add_u32 {v(aWM)}, {v(PH)}, 4, {v(PH+1)}
v_bfe_u32 {v(PH)}, {v(vL)}, 2, 2
v_lshl_add_u32 {v(PH)}, {v(H_)}, 2, {v(PH)}
v_lshl_add_u32 {v(PH)}, {v(PH)}, 6, {s(sW12)}
v_and_b32 {v(PH+2)}, 16, {v(vL)}
v_lshl_add_u32 {v(PH)}, {v(PH+2)}, 1, {v(PH)}
v_and_b32 {v(PH+2)}, 3, {v(vL)}
v_lshl_add_u32 {v(aTR)}, {v(PH+2)}, 3, {v(PH)}
""")
stamp('setup', (4,))
WP = OPT['wp']
aWN = GR + 3
def w_pair(es):
    global aWM
    w_base(sW)
    for e in es: w_piece(e)
    A(f"s_add_u32 {s(sT[12])}, {s(sT[12])}, {28*16416}")
    A(f"s_add_u32 {s(sT[13])}, {s(sT[13])}, 4096")
    keep, aWM = aWM, aWN
    for e in es: w_piece(e)
    aWM = keep
WNSET = f"""
v_add_u32 {v(PH+20)}, {s(sW)}, {v(vL)}
v_add_u32 {v(PH+20)}, 4, {v(PH+20)}
v_mul_u32_u24 {v(PH+21)}, 57, {v(PH+20)}
v_lshrrev_b32 {v(PH+21)}, 9, {v(PH+21)}
v_mul_u32_u24 {v(PH+21)}, {16416-144}, {v(PH+21)}
v_lshl_add_u32 {v(aWN)}, {v(PH+20)}, 4, {v(PH+21)}
"""
NX = 0
if WP == 0:
    NX = NE
    w_base(sW)
    for e in range(NE):
        if e == NEA:
            A(f"s_cmp_eq_u32 {s(sM)}, 0")
            A("s_cbranch_scc1 L_noearly")
        w_piece(e)
    A.label("L_noearly")
def wait_m(lbl, add):
    A(f"s_waitcnt vmcnt({NE+add})")
    if NEA != NE:
        A(f"s_cmp_lg_u32 {s(sM)}, 0")
        A(f"s_cbranch_scc1 {lbl}")
        A(f"s_waitcnt vmcnt({NEA+add})")
        A.label(lbl)
stamp("wiss", (4,))
L = lambda t: [x.strip() for x in t.strip().split("\n")]
SETA = L(f"""
s_mul_i32 {s(sT[0])}, {s(sP)}, {PS}
s_add_u32 {s(sT[0])}, {s(sT[0])}, {EXOFF}
v_mul_u32_u24 {v(PH+4)}, 20, {v(PH+2)}
v_lshrrev_b32 {v(PH+5)}, 2, {v(F_)}
v_mul_u32_u24 {v(PH+6)}, 160, {v(H_)}
v_add3_u32 {v(PH+4)}, {v(PH+4)}, {v(PH+5)}, {v(PH+6)}
v_lshl_add_u32 {v(aP)}, {v(PH+4)}, 3, {s(sT[0])}
v_sub_u32 {v(PH+3)}, 32, {v(F_)}
v_and_b32 {v(PH+4)}, 3, {v(PH+3)}
v_mul_u32_u24 {v(PH+4)}, 20, {v(PH+4)}
v_lshrrev_b32 {v(PH+5)}, 2, {v(PH+3)}
v_sub_u32 {v(PH+6)}, 160, {v(PH+6)}
v_add3_u32 {v(PH+4)}, {v(PH+4)}, {v(PH+5)}, {v(PH+6)}
v_lshl_add_u32 {v(aQe)}, {v(PH+4)}, 3, {s(sT[0])}
v_and_b32 {v(PH+3)}, 32, {v(PH+3)}
v_lshl_add_u32 {v(aQo)}, {v(PH+3)}, 4, {v(aQe)}
v_lshrrev_b32 {v(PH)}, 1, {v(c_)}
v_and_b32 {v(PH+1)}, 1, {v(PH)}
s_bfe_u32 {s(sT[0])}, {s(sRHO)}, 0x10002
v_and_b32 {v(PH+2)}, 1, {v(c_)}
v_xor_b32 {v(PH+2)}, {s(sT[0])}, {v(PH+2)}
v_sub_u32 {v(PH+2)}, {v(PH+2)}, {v(PH+1)}
v_cvt_f32_i32 {v(PH+2)}, {v(PH+2)}
v_mov_b32 {v(PH+3)}, {fbits(0.125)}
v_fmamk_f32 {v(PH+2)}, {v(PH+2)}, {fbits(0.25)}, {v(PH+3)}
v_mul_u32_u24 {v(PH+1)}, 0x8000, {v(PH+1)}
v_lshl_or_b32 {v(PH+1)}, {v(PH+1)}, 16, {v(PH+1)}
v_cvt_f32_u32 {v(PH)}, {v(PH)}
""")
SETB = L(f"""
v_add_f32 {v(PH+3)}, {fbits(8.0)}, {v(PH)}
v_lshl_add_u32 {v(PH+4)}, {v(g_)}, 8, {s(sSB)}
v_cvt_f32_u32 {v(PH+4)}, {v(PH+4)}
v_mul_f32 {v(PH+4)}, {fbits(1/2048)}, {v(PH+4)}
v_add_f32 {v(PH+5)}, {fbits(1/16)}, {v(PH+4)}
""")
for k in range(4): SETB.append(f"v_fma_f32 {v(PH+8+3*k)}, {v(PH+4+(k&1))}, {v(PH if k < 2 else PH+3)}, {v(PH+2)}")
for k in range(4): SETB += [f"v_cos_f32 {v(PH+9+3*k)}, {v(PH+8+3*k)}", f"v_sin_f32 {v(PH+10+3*k)}, {v(PH+8+3*k)}"]
SETC = []
for k in range(4):
    t = PH + 8 + 3*k
    SETC += [CVT(M3+2*k, t+1, t+2), CVT(M3+2*k+1, t+2, t+1), f"v_xor_b32 {v(M3+2*k+1)}, {v(PH+1)}, {v(M3+2*k+1)}"]
SETD = L(f"""
s_lshl_b32 {s(sM8)}, {s(sM)}, 3
s_mul_i32 {s(sCM)}, {s(sM)}, {128*CP}
s_add_u32 {s(sCM)}, {s(sCM)}, {CB}
s_mov_b32 {s(sEXP)}, 0
s_mov_b32 {s(sONE)}, 1
s_bfe_u32 {s(sC1)}, {s(sRHO)}, 0x20003
s_lshl2_add_u32 {s(sC1)}, {s(sW)}, {s(sC1)}
s_mul_i32 {s(sC1)}, {s(sC1)}, {CP}
s_add_u32 {s(sC1)}, {s(sC1)}, {s(sCM)}
s_lshr_b32 {s(sC2)}, {s(sRHO)}, 4
s_lshl3_add_u32 {s(sC2)}, {s(sW)}, {s(sC2)}
s_mul_i32 {s(sC2)}, {s(sC2)}, {CP}
s_add_u32 {s(sC2)}, {s(sC2)}, {s(sCM)}
s_add_u32 {s(sC2)}, {s(sC2)}, {32*CP}
s_mov_b32 {s(WS_+2)}, {WSZ}
s_mov_b32 {s(WS_+3)}, 0x20000
s_mov_b32 {s(OUT_+2)}, 8388608
s_mov_b32 {s(OUT_+3)}, 0x20000
s_lshl_b32 {s(sS1[0])}, {s(sO[0])}, 1
s_lshl_b32 {s(sT[3])}, {s(sM)}, 11
s_add_u32 {s(sS1[0])}, {s(sS1[0])}, {s(sT[3])}
s_add_u32 {s(sS1[1])}, {s(sS1[0])}, {8*AROW}
s_mul_i32 {s(sT[3])}, {s(sW)}, 640
s_add_u32 {s(sT[3])}, {s(sT[3])}, {EXOFF}
v_mul_u32_u24 {v(aRD)}, {2*PS}, {v(g_)}
v_lshl_add_u32 {v(aRD)}, {v(c_)}, 3, {v(aRD)}
v_add_u32 {v(aRD)}, {s(sT[3])}, {v(aRD)}
v_lshlrev_b32 {v(aST)}, 9, {v(g_)}
v_lshl_add_u32 {v(aST)}, {v(c_)}, 4, {v(aST)}
v_mov_b32 {v(vSY)}, {SYOFF}
v_lshlrev_b32 {v(vPG)}, 2, v0
v_add_u32 {v(vPG)}, {PGOFF}, {v(vPG)}
v_mov_b32 {v(GR+6)}, 0
v_mov_b32 {v(GR+7)}, 0
""")
for t_ in SETD: A(t_)
A(f"""
ds_write_b64 {v(vSY)}, {v(GR+6,2)}
ds_write_b64 {v(vSY)}, {v(GR+6,2)} offset:8
ds_write_b32 {v(vPG)}, {v(GR+6)}
s_mul_i32 {s(sT[3])}, {s(sRHO)}, {CP}
s_add_u32 {s(sT[3])}, {s(sT[3])}, {s(sCM)}
""")
wait_m("L_wm0", 2)
A(f"s_cmp_eq_u32 {s(sW)}, {SPW}")
A("s_cbranch_scc1 L_xw1")
wait_m("L_wm1", 0)
A.label("L_xw1")
if OPT['p1p'] == 2: A("s_setprio 1")
if OPT['p1p'] == 1:
    A(f"s_cmp_lt_u32 {s(sW)}, 4")
    A("s_cbranch_scc1 L_np")
    A("s_setprio 1")
    A.label("L_np")
stamp("x", (1, 2, 4))
for comp, dst in ((0, XR), (1, XI)):
    for t in range(2):
        for j in range(2):
            A(f"ds_read_b64_tr_b16 {v(dst+4*t+2*j,2)}, {v(aTR)} offset:{comp*2048+t*1024+j*512}")
A(f"s_cmp_lg_u32 {s(sW)}, 0")
A("s_waitcnt lgkmcnt(0)")
stamp("tr", (2, 4))
TAGI = [f"s_mul_i32 {s(sTAG)}, {s(sE)}, 0x9E3779B1", f"s_add_u32 {s(sTAG)}, {s(sTAG)}, 0x7F4A7C15"]
m32(D1R, XR, FC, None)
A(f"""
s_cbranch_scc1 L_e1
{TAGI[0]}
{TAGI[1]}
s_atomic_swap_x2 {s(sEXP,2)}, {s(WS_,2)}, {s(sT[3])}
s_branch L_e2
L_e1:
s_load_dword {s(sE)}, {s(WS_,2)}, {s(sT[6])}
L_e2:
""")
weave([M32(D1R, XR+4, FC+4, D1R), M32(D1R, XI, FS, D1R), M32(D1R, XI+4, FS+4, D1R), M32(D1I, XR, FN, None)], SETA[:24], 6)
weave([M32(D1I, XR+4, FN+4, D1I), M32(D1I, XI, FC, D1I), M32(D1I, XI+4, FC+4, D1I)], (lambda t: t[:12] + ["s_setprio 0"] + t[12:] if OPT['p1p'] == 2 else t)(TW1(D1R, False)), [6, 6, 99])
stamp("m1", (2,))
for t_ in TW2(D1I, XR, XI, False, 0, 8): A(t_)
A(SETA[24])
stamp("tw", (2,))
weave([M32(D2R, FC, XR, None), M32(D2I, FN, XR, None), M32(D2R, FS, XI, D2R), M32(D2I, FC, XI, D2I)], TW2(D1I, XR, XI, False, 8, 16) + SETA[25:26], [6, 6, 6, 7])
weave([M32(D2R, FC+4, XR+4, D2R), M32(D2I, FN+4, XR+4, D2I), M32(D2R, FS+4, XI+4, D2R), M32(D2I, FC+4, XI+4, D2I)], SETA[26:] + SETB + SETC[:7], [6, 5, 3, 99])
stamp("m2", (2,))
for i in range(16):
    cvt(TMP+i, D2R+i, D2I+i)
stamp("cv", (2,))
for i in range(16):
    kd2 = 8*(i >> 2) + (i & 3)
    if i < 8:
        A(f"ds_write_b32 {v(aP)}, {v(TMP+i)} offset:{(80*(kd2>>1)+8*(kd2&1))*8}")
    else:
        e = 31 - kd2 - 4
        A(f"ds_write_b32 {v(aQo if e & 1 else aQe)}, {v(TMP+i)} offset:{(80*(e>>1)+8*(e&1))*8+4}")
A(f"""
s_mov_b64 exec, 1
ds_write_b32 {v(aP)}, {v(TMP)} offset:4
ds_write_b32 {v(aP)}, {v(TMP+8)} offset:{640*8}
s_mov_b64 exec, -1
""")
stamp("wr", (2,))
for t_ in SETC[7:]: A(t_)
if WP == 1:
    A(f"s_cmp_ge_u32 {s(sW)}, 4")
    A("s_cbranch_scc1 L_nowp")
    A(WNSET)
    w_pair(range(NE))
    A.label("L_nowp")
A("s_waitcnt lgkmcnt(0)")
for t_ in TAGI: A(t_)
stamp("wrd", (2,))
if OPT['p1p'] == 1: A("s_setprio 0")
A("s_barrier")
stamp("bar1", (1, 2, 4))
A(f"""
s_cmp_lg_u32 {s(sW)}, {SPW}
s_cbranch_scc1 L_nosp1
v_mul_u32_u24 {v(PH)}, {2*PS}, {v(g_)}
ds_read_b64 {v(XR,2)}, {v(PH)} offset:{EXOFF+640*8}
ds_read_b64 {v(XR+2,2)}, {v(PH)} offset:{EXOFF+640*8+PS}
s_lshl4_add_u32 {s(sT[0])}, {s(sM8)}, {s(sRHO)}
s_lshl_b32 {s(sT[0])}, {s(sT[0])}, 7
s_add_u32 {s(sT[0])}, {s(sT[0])}, {XB}
v_lshlrev_b32 {v(PH+1)}, 2, {v(vL)}
v_lshlrev_b32 {v(PH+2)}, 4, {v(g_)}
""")
wait_m("L_wm2", 0)
A(f"""
v_lshl_or_b32 v11, v12, 16, v11
s_mov_b64 exec, 0xffff
buffer_store_dword v11, {v(PH+1)}, {srd(WS_)}, {s(sT[0])} offen offset:64 sc1
s_mov_b64 exec, -1
s_waitcnt lgkmcnt(0)
""")
m16(D1R, M3, XR, None); m16(D1R+4, M3+4, XR, None)
cvt(TMP, D1R, D1R+2); cvt(TMP+1, D1R+4, D1R+6); cvt(TMP+2, D1R+1, D1R+3); cvt(TMP+3, D1R+5, D1R+7)
A(f"""
s_mov_b32 exec_lo, 0x00010001
s_mov_b32 exec_hi, 0x00010001
buffer_store_dwordx4 {v(TMP,4)}, {v(PH+2)}, {srd(WS_)}, {s(sT[0])} offen sc1
s_mov_b64 exec, -1
L_nosp1:
""")
for t in range(4):
    for jj in range(2):
        A(f"ds_read_b64 {v(XR+4*t+2*jj,2)}, {v(aRD)} offset:{160*t+PS*jj}")
for t in range(4):
    A(f"s_waitcnt lgkmcnt({6-2*t})")
    m16(D1R+8*t, M3, XR+4*t, None)
peek(sC1)
for t in range(4):
    m16(D1R+8*t+4, M3+4, XR+4*t, None)
for mt in range(2):
    for al in range(2):
        o = TMP + 4 + (mt*2+al)*4
        d = D1R + 4*mt + 2*al
        cvt(o, d, d+8); cvt(o+2, d+1, d+9); cvt(o+1, d+16, d+24); cvt(o+3, d+17, d+25)
    for al in range(2):
        o = TMP + 4 + (mt*2+al)*4
        A(f"buffer_store_dwordx4 {v(o,4)}, {v(aST)}, {srd(OUT_)}, {s(sS1[mt])} offen offset:{al*256} sc1")
stamp("st1", (2,))
sPH = sE
A(f"""
s_barrier
""")
S3P = OPT['s3p']
def early_setup():
    A(f"""
    s_mov_b32 {s(sPH)}, 2
    s_cmp_ge_u32 {s(sW)}, 4
    s_cbranch_scc1 L_setup3
    L_ret1:
    """)
if S3P == 1: early_setup()
A(f"s_mov_b32 {s(sPH)}, 1")
GH = OPT['gh']
if GH:
    A(f"""
    s_cmp_lt_u32 {s(sW)}, 4
    s_cbranch_scc1 L_nogen
    s_sub_u32 {s(sI)}, {s(sW)}, {4 if GH == 2 else 0}
    L_gen:
    """)
    if STAG == 2:
        A(f"s_cmp_lg_u32 {s(sM)}, 0")
        A("s_cbranch_scc1 L_genskip")
    gen_m2(sI)
    A.label("L_genskip")
    if GH == 2:
        A(f"""
        s_add_u32 {s(sI)}, {s(sI)}, 4
        s_cmp_lt_u32 {s(sI)}, 8
        s_cbranch_scc1 L_gen
        """)
    lds_post(12)
    if GH == 1:
        A(f"s_cmp_lt_u32 {s(sW)}, 4")
        A("s_cbranch_scc1 L_genret")
    A.label("L_nogen")
validate("L_val1", sC1)
A("s_waitcnt vmcnt(0)")
signal(sC1)
stamp("fl1")
if S3P == 2:
    early_setup()
    A(f"s_mov_b32 {s(sPH)}, 1")
aW, aF, aRe, aIm, aO, aD = vT[2:8]
sFA, sFB, sFC, sDST, sOI, sDONE, sNEW, sMK = sT[4:12]
A(f"""
s_cmp_ge_u32 {s(sW)}, 4
s_cbranch_scc1 L_helper
""")
A(f"""
v_add_u32 {v(PH)}, 8, {v(vL)}
v_mul_u32_u24 {v(PH+1)}, 57, {v(PH)}
v_lshrrev_b32 {v(PH+1)}, 9, {v(PH+1)}
v_mul_u32_u24 {v(PH+1)}, {16416-144}, {v(PH+1)}
v_lshl_add_u32 {v(aWT)}, {v(PH)}, 4, {v(PH+1)}
v_add_u32 {v(aWT)}, {56*16416}, {v(aWT)}
""")
w_piece(4)
if WP == 0: A(WNSET)
w_pair(range(NE, 4))
if NEA != NE:
    A(f"s_cmp_lg_u32 {s(sM)}, 0")
    A("s_cbranch_scc1 L_nolate")
    w_pair(range(NEA, NE))
    A.label("L_nolate")
if GH == 1:
    A(f"s_mov_b32 {s(sI)}, {s(sW)}")
    A("s_branch L_gen")
    A.label("L_genret")
if GH == 0:
    if STAG == 2:
        A(f"s_cmp_lg_u32 {s(sM)}, 0")
        A("s_cbranch_scc1 L_genskip")
    A(f"s_mov_b32 {s(sI)}, {s(sW)}")
    A.label("L_gen")
    gen_m2(sI)
    A(f"""
    s_add_u32 {s(sI)}, {s(sI)}, 4
    s_cmp_lt_u32 {s(sI)}, 8
    s_cbranch_scc1 L_gen
    L_genskip:
    """)
    lds_post(12)
A(f"""
s_mov_b32 {s(sFA)}, 0
s_and_b32 {s(sFC)}, {s(sA)}, 7
s_mov_b32 {s(sFB)}, 0
s_mul_i32 {s(sOI)}, {s(sW)}, {OS}
s_add_u32 {s(sOI)}, {s(sOI)}, {WOFF}
v_lshrrev_b32 {v(aRe)}, 2, {v(vL)}
v_and_b32 {v(aF)}, 3, {v(aRe)}
v_xor_b32 {v(aF)}, {s(sW)}, {v(aF)}
v_lshlrev_b32 {v(aRe)}, 8, {v(aRe)}
v_lshl_add_u32 {v(aRe)}, {v(aF)}, 6, {v(aRe)}
v_and_b32 {v(aF)}, 3, {v(vL)}
v_lshl_add_u32 {v(aRe)}, {v(aF)}, 4, {v(aRe)}
s_lshl_b32 {s(sT[0])}, {s(sW)}, 5
s_add_u32 {s(sT[0])}, {s(sT[0])}, {WOFF}
v_min_u32 {v(aW)}, 2, {v(g_)}
v_mul_u32_u24 {v(aF)}, 144, {v(c_)}
v_lshl_add_u32 {v(aW)}, {v(aW)}, 4, {v(aF)}
v_add_u32 {v(aW)}, {s(sT[0])}, {v(aW)}
""")
A.label("L_p2common")
A(f"v_lshlrev_b32 {v(aF)}, 4, {v(vL)}")
A(f"v_add_u32 {v(aF)}, {M2OFF}, {v(aF)}")
SEL = DNR
A(f"""
v_lshlrev_b32 {v(DIM)}, {s(sFA)}, {v(c_)}
v_lshlrev_b32 {v(DIM+1)}, 3, {v(g_)}
v_sub_u32 {v(DIM)}, {v(DIM)}, {v(DIM+1)}
v_add_u32 {v(DIM)}, {s(sFC)}, {v(DIM)}
v_add_u32 {v(DIM+1)}, {s(sFB)}, {v(DIM)}
v_mov_b32 {v(DIM+4)}, 0x3500
""")
for q in range(2):
    A(f"v_and_b32 {v(DIM+2)}, 1, {v(DIM+q)}")
    A(f"v_lshlrev_b32 {v(DIM+2)}, 4, {v(DIM+2)}")
    A(f"v_lshlrev_b32 {v(DIM+2)}, {v(DIM+2)}, {v(DIM+4)}")
    A(f"v_ashrrev_i32 {v(DIM+3)}, 1, {v(DIM+q)}")
    for j in range(4):
        A(f"v_cmp_eq_u32 vcc, {j}, {v(DIM+3)}")
        A(f"v_cndmask_b32 {v(SEL+4*q+j)}, 0, {v(DIM+2)}, vcc")
A(f"""
v_and_b32 {v(aIm)}, 1, {v(g_)}
v_lshl_add_u32 {v(aRe)}, {v(aIm)}, 3, {v(aRe)}
v_xor_b32 {v(aIm)}, 8, {v(aRe)}
v_bfe_u32 {v(aO)}, {v(vL)}, 1, 2
v_xor_b32 {v(aO)}, {v(aO)}, {v(g_)}
v_lshlrev_b32 {v(aO)}, 4, {v(aO)}
v_lshl_add_u32 {v(aO)}, {v(c_)}, 6, {v(aO)}
v_add_u32 {v(aO)}, {s(sOI)}, {v(aO)}
v_mov_b32 {v(vT[9])}, 1
s_mov_b32 {s(sT[0])}, 0x80008000
s_mov_b32 {s(sDONE)}, 0
""")
lds_wait("L_fr", 12, 8 if GH == 1 else 4)
for f in range(16):
    A(f"ds_read_b128 {v(FR+4*f,4)}, {v(aF)} offset:{f*1024}")
A(f"""
s_waitcnt vmcnt(0)
s_cmp_lt_u32 {s(sW)}, 4
s_cbranch_scc1 L_wreg
""")
XP = [WR_, WR_+2, WI_, WI_+2]
A(f"""
s_mov_b32 {s(sCNT)}, 0x8000
L_pollx:
""")
for i in range(4):
    A(f"s_mov_b64 {s(XP[i],2)}, 0")
    A(f"s_atomic_or_x2 {s(XP[i],2)}, {s(WS_,2)}, {s(sT[2])} offset:{(SPW*4+i)*CP} glc")
A(f"""
s_sub_u32 {s(sCNT)}, {s(sCNT)}, 1
s_cbranch_scc1 L_pollx_out
s_waitcnt lgkmcnt(0)
""")
for i in range(4):
    A(f"s_cmp_lg_u32 {s(XP[i]+1)}, {s(sTAG)}")
    A("s_cbranch_scc1 L_pollx")
A(f"""
s_and_b32 {s(XP[0])}, {s(XP[0])}, {s(XP[1])}
s_and_b32 {s(XP[2])}, {s(XP[2])}, {s(XP[3])}
s_and_b32 {s(XP[0])}, {s(XP[0])}, {s(XP[2])}
s_cmp_lg_u32 {s(XP[0])}, 32
s_cbranch_scc1 L_pollx
L_pollx_out:
s_mov_b32 {s(sT[2])}, {s(sDST)}
""")
stamp("pol1")
for n in range(8):
    A(f"buffer_load_dwordx4 {v(ER+4*n,4)}, {v(aW)}, {srd(WS_)}, {s(sT[2])} offen offset:64 sc1")
    A(f"buffer_load_dwordx4 {v(aD)}, {srd(WS_)}, {s(sT[2])} offen sc1 lds")
    if n < 7:
        A(f"s_add_u32 m0, m0, 4096")
        A(f"s_add_u32 {s(sT[2])}, {s(sT[2])}, 2048")
A("s_setprio 3" if OPT['xprio'] else "s_setprio 0")
for t in range(8):
    A(f"s_waitcnt vmcnt({14-2*t})")
    m16(WRF+4*t, ER+4*t, SEL, None); m16(WIF+4*t, ER+4*t, SEL+4, None)
A(f"s_mov_b32 {s(sDONE)}, 0x04040404")
A("s_waitcnt lgkmcnt(0)")
A("s_branch L_f0")
A.label("L_wreg")
lds_post(0)

lds_wait("L_wr", 0, 8)
for t in range(16):
    if t == 12: A("s_waitcnt lgkmcnt(8)")
    A(f"ds_read_b128 {v(ER+4*t,4)}, {v(aW)} offset:{t*2304}")
lds_post(8)
for t in range(16):
    if t >= 4: A(f"s_waitcnt lgkmcnt({16-t})")
    m16(WRF+4*t, ER+4*t, SEL, None)
stamp("wcv", (1,))
def TRQ(u):
    for j in range(2): A(f"ds_read_b64_tr_b16 {v(DRE+4*u+2*j,2)}, {v(aRe)} offset:{u*8192+j*4096}")
    for j in range(2): A(f"ds_read_b64_tr_b16 {v(DIM+4*u+2*j,2)}, {v(aIm)} offset:{u*8192+j*4096}")
    A(f"ds_read_b32 {v(vS1)}, {v(vSY)} offset:{4 if u < 3 else 8}")
def spin(u):
    A(f"""
    s_mov_b32 {s(sCNT)}, 0x40000
    L_sp{u}:
    ds_read_b32 {v(vS1)}, {v(vSY)} offset:4
    s_sub_u32 {s(sCNT)}, {s(sCNT)}, 1
    s_cbranch_scc1 L_sp{u}_out
    s_waitcnt lgkmcnt(0)
    v_readfirstlane_b32 {s(sMK)}, {v(vS1)}
    s_bitcmp1_b32 {s(sMK)}, {8*u+2}
    s_cbranch_scc0 L_sp{u}
    L_sp{u}_out:
    """)
IFR = lambda u: [f"ds_read_b128 {v(FR+4*f,4)}, {v(aF)} offset:{16384+f*1024}" for f in range(4*u, 4*u+4)]
if OPT['fw']:
    def TR4(u):
        return [f"ds_read_b64_tr_b16 {v(DRE+4*u+2*j,2)}, {v(aRe)} offset:{u*8192+j*4096}" for j in range(2)] + \
               [f"ds_read_b64_tr_b16 {v(DIM+4*u+2*j,2)}, {v(aIm)} offset:{u*8192+j*4096}" for j in range(2)]
    def BLK(u):
        fc = lambda mt: FR + (u*4 + mt*2) * 4
        fs = lambda mt: FR + (u*4 + mt*2 + 1) * 4
        e = lambda mt: (u*2 + mt) * 4
        return [M16(ER+e(0), fc(0), DRE+4*u, None), M16(ER+e(1), fc(1), DRE+4*u, None),
                M16(EI+e(0), fc(0), DIM+4*u, None), M16(EI+e(1), fc(1), DIM+4*u, None),
                M16(ER+e(0), fs(0), DIM+4*u, ER+e(0)), M16(ER+e(1), fs(1), DIM+4*u, ER+e(1)),
                M16(EI+e(0), fs(0), DNR+4*u, EI+e(0)), M16(EI+e(1), fs(1), DNR+4*u, EI+e(1))]
    XO = lambda u: [f"v_xor_b32 {v(DNR+4*u+j)}, {s(sT[0])}, {v(DRE+4*u+j)}" for j in range(4)]
    if OPT['fw'] == 1:
        lds_wait("L_go", 8, 8)
        A.label("L_f0")
        stamp("dat1", (1, 3))
        for t_ in TR4(0) + TR4(1) + TR4(2): A(t_)
        A("s_waitcnt lgkmcnt(10)")
        weave(BLK(0), XO(0) + ["s_waitcnt lgkmcnt(8)"] + TR4(3), [2, 3, 1, 1, 1, 1, 0, 0])
        A("s_waitcnt lgkmcnt(8)")
        weave(BLK(1), XO(1), 2)
        A("s_waitcnt lgkmcnt(0)")
        weave(BLK(2), XO(2) + IFR(0) + IFR(1)[:2], [2, 2, 1, 1, 1, 1, 1, 1])
        weave(BLK(3), XO(3) + IFR(1)[2:] + IFR(2), [2, 2, 1, 1, 1, 1, 1, 1])
    else:
        lds_wait("L_go", 4, 4)
        A.label("L_f0")
        for t_ in TR4(0) + TR4(1): A(t_)
        A(f"ds_read_b32 {v(vS1)}, {v(vSY)} offset:8")
        A("s_waitcnt lgkmcnt(7)")
        weave(BLK(0)[:2], XO(0), 2)
        A("s_waitcnt lgkmcnt(0)")
        A(f"v_or_b32 {v(vS1)}, {s(sDONE)}, {v(vS1)}")
        A(BLK(0)[2])
        A(f"v_cmp_gt_u32 vcc, 8, {v(vS1)}")
        A(BLK(0)[3])
        A("s_and_b64 vcc, vcc, vcc")
        A("s_cbranch_scc0 L_go2_out")
        lds_wait("L_go2", 8, 8)
        stamp("dat1", (1, 3))
        weave(BLK(0)[4:], TR4(2) + TR4(3), 2)
        weave(BLK(1), XO(1), 2)
        A("s_waitcnt lgkmcnt(0)")
        weave(BLK(2), XO(2) + IFR(0) + IFR(1)[:2], [2, 2, 1, 1, 1, 1, 1, 1])
        weave(BLK(3), XO(3) + IFR(1)[2:] + IFR(2), [2, 2, 1, 1, 1, 1, 1, 1])
    for t_ in IFR(3): A(t_)
    A("s_nop 1")
else:
    spin(0)
    A.label("L_f0")
    TRQ(0)
    for u in range(4):
        A("s_waitcnt lgkmcnt(0)")
        A(f"v_readfirstlane_b32 {s(sMK)}, {v(vS1)}")
        if u == 3: stamp("dat1", (1, 3))
        fc = lambda mt: FR + (u*4 + mt*2) * 4
        fs = lambda mt: FR + (u*4 + mt*2 + 1) * 4
        e = lambda mt: (u*2 + mt) * 4
        m16(ER+e(0), fc(0), DRE+4*u, None)
        A(f"s_or_b32 {s(sMK)}, {s(sMK)}, {s(sDONE)}")
        if u < 3:
            A(f"s_bitcmp1_b32 {s(sMK)}, {8*u+10}")
            A(f"s_cbranch_scc0 L_nt{u}")
            TRQ(u+1)
            A.label(f"L_nt{u}")
        xo = [f"v_xor_b32 {v(DNR+4*u+j)}, {s(sT[0])}, {v(DRE+4*u+j)}" for j in range(4)]
        weave([M16(ER+e(1), fc(1), DRE+4*u, None),
               M16(EI+e(0), fc(0), DIM+4*u, None), M16(EI+e(1), fc(1), DIM+4*u, None),
               M16(ER+e(0), fs(0), DIM+4*u, ER+e(0)), M16(ER+e(1), fs(1), DIM+4*u, ER+e(1)),
               M16(EI+e(0), fs(0), DNR+4*u, EI+e(0)), M16(EI+e(1), fs(1), DNR+4*u, EI+e(1))],
              (IFR(u-1) if u else []) + xo, 2)
        if u < 3:
            A(f"s_cbranch_scc1 L_ok{u}")
            spin(u+1)
            TRQ(u+1)
            A.label(f"L_ok{u}")
    for t_ in IFR(3): A(t_)
    A(f"""
    s_bitcmp1_b32 {s(sMK)}, 2
    s_cbranch_scc1 L_cv_out
    """)
    lds_wait("L_cv", 8, 4)
stamp("fwd", (3,))
A("s_nop 1")
TT = DNR
def pk(op, d, a, b, c=None, na=False, nb=False):
    ops = f"{v(d,2)}, {v(a,2)}, {v(b,2)}" + (f", {v(c,2)}" if c is not None else "")
    n = [int(na), int(nb)] + ([0] if c is not None else [])
    mod = f" neg_lo:{n} neg_hi:{n}".replace(", ", ",") if (na or nb) else ""
    A(f"v_pk_{op}_f32 {ops}{mod}")
add = lambda d, a, b: pk("add", d, a, b)
sub = lambda d, a, b: pk("add", d, a, b, nb=True)
A.raw(".p2align 3")
for mt in range(2):
    for rp in range(2):
        er = lambda u: ER + (u*2+mt)*4 + 2*rp
        ei = lambda u: EI + (u*2+mt)*4 + 2*rp
        wr = lambda q: WRF + (q*2+mt)*4 + 2*rp
        wi = lambda q: WIF + (q*2+mt)*4 + 2*rp
        tr = lambda i: TT + 4*i
        ti = lambda i: TT + 4*i + 2
        add(tr(0), er(0), er(2)); add(ti(0), ei(0), ei(2)); sub(tr(1), er(0), er(2)); sub(ti(1), ei(0), ei(2))
        add(tr(2), er(1), er(3)); add(ti(2), ei(1), ei(3)); sub(tr(3), er(1), er(3)); sub(ti(3), ei(1), ei(3))
        add(er(0), tr(0), tr(2)); add(ei(0), ti(0), ti(2)); sub(er(2), tr(0), tr(2)); sub(ei(2), ti(0), ti(2))
        add(er(1), tr(1), ti(3)); sub(ei(1), ti(1), tr(3)); sub(er(3), tr(1), ti(3)); add(ei(3), ti(1), tr(3))
        for q in range(4):
            pk("mul", tr(q), er(q), wr(q)); pk("mul", ti(q), er(q), wi(q))
        for q in range(4):
            pk("fma", tr(q), ei(q), wi(q), tr(q), na=True); pk("fma", ti(q), ei(q), wr(q), ti(q))
        add(wr(0), tr(0), tr(2)); add(wi(0), ti(0), ti(2)); sub(wr(1), tr(0), tr(2)); sub(wi(1), ti(0), ti(2))
        add(wr(2), tr(1), tr(3)); add(wi(2), ti(1), ti(3)); sub(wr(3), tr(1), tr(3)); sub(wi(3), ti(1), ti(3))
        add(er(0), wr(0), wr(2)); add(ei(0), wi(0), wi(2)); sub(er(2), wr(0), wr(2)); sub(ei(2), wi(0), wi(2))
        sub(er(1), wr(1), wi(3)); add(ei(1), wi(1), wr(3)); add(er(3), wr(1), wi(3)); sub(ei(3), wi(1), wr(3))
def OPS(u):
    L = [CVT(DRE+4*u+j, ER+8*u+2*j, ER+8*u+2*j+1) for j in range(4)]
    L += [CVT(DIM+4*u+j, EI+8*u+2*j, EI+8*u+2*j+1) for j in range(4)]
    L += [CVT(DNR+4*u+j, EI+8*u+2*j, EI+8*u+2*j+1, True, True) for j in range(4)]
    return L
def INV(k):
    e = k*4; o = WRF + e
    return [CVT(o, ER+e, ER+e+1), CVT(o+1, ER+e+2, ER+e+3), CVT(o+2, EI+e, EI+e+1), CVT(o+3, EI+e+2, EI+e+3),
            f"ds_write_b128 {v(aO)}, {v(o,4)} offset:{k*1024}", f"ds_add_u32 {v(vPG)}, {v(vT[9])}"]
for t_ in OPS(0): A(t_)
A("s_waitcnt lgkmcnt(0)")
stamp("mid", (3,))
for k in range(8):
    u, nt = k >> 1, k & 1
    fc, fs, e = FR + (u*4 + nt*2) * 4, FR + (u*4 + nt*2 + 1) * 4, k * 4
    ops = OPS(u+1)[6*nt:6*nt+6] if u < 3 else []
    out = INV(k-1) if k >= 1 else []
    fill = ops + out
    weave([M16(ER+e, DRE+4*u, fc, None), M16(EI+e, DIM+4*u, fc, None), M16(ER+e, DNR+4*u, fs, ER+e), M16(EI+e, DRE+4*u, fs, EI+e)],
          fill, [3, 3, 2, 4] if ops and out else ([2, 2, 2, 0] if ops else [0, 0, 0, 6]))
stamp("inv", (3,))
for t_ in INV(7): A(t_)
stamp("cmp2", (1, 3))
A(f"""
s_cmp_lt_u32 {s(sW)}, 4
s_cbranch_scc1 L_setup3
""")
A(f"""
v_lshlrev_b32 {v(aO)}, 7, {v(c_)}
v_lshl_add_u32 {v(aO)}, {v(g_)}, 4, {v(aO)}
""")
for i in range(8): A(f"v_mov_b32 {v(WIF+2*i+1)}, {s(sTAG)}")
for k in range(8):
    o = WIF + 8*(k & 1)
    for e in range(4): cvt(o+2*e, ER+4*k+e, EI+4*k+e)
    for h in range(2): A(f"buffer_store_dwordx4 {v(o+4*h,4)}, {v(aO)}, {srd(WS_)}, {s(sDST)} offen offset:{(k&1)*2048+h*64} sc1")
    if k & 1: A(f"s_add_u32 {s(sDST)}, {s(sDST)}, 4096")
A(f"""
s_setprio 0
s_branch L_setup3
L_helper:
""")
if OPT['hp'] & 1: A("s_setprio 2")
lds_post(0)
A(f"""
s_cmp_eq_u32 s2, {HA}
s_cselect_b32 {s(sT[3])}, {s(sW)}, 0
s_cmp_eq_u32 s2, {HB}
s_cselect_b32 {s(sT[3])}, {s(sW)}, {s(sT[3])}
s_cmp_lg_u32 {s(sT[3])}, 4
s_cbranch_scc1 L_loader
s_mov_b32 {s(sFA)}, 1
s_mov_b32 {s(sFC)}, 0
s_mov_b32 {s(sFB)}, 1
s_cmp_eq_u32 s2, {HB}
s_cselect_b32 {s(sDST)}, 0x4000, 0
s_lshl1_add_u32 {s(sT[2])}, {s(sDST)}, {CB}
s_add_u32 {s(sDST)}, {s(sDST)}, {XB}
v_lshrrev_b32 {v(aD)}, 2, {v(vL)}
v_and_b32 {v(aW)}, 3, {v(vL)}
v_lshlrev_b32 {v(aW)}, 4, {v(aW)}
v_lshl_add_u32 {v(aD)}, {v(aD)}, 7, {v(aW)}
v_lshlrev_b32 {v(aW)}, 7, {v(c_)}
v_lshl_add_u32 {v(aW)}, {v(g_)}, 4, {v(aW)}
s_mov_b32 {s(sOI)}, {XOUT}
v_lshlrev_b32 {v(aRe)}, 4, {v(vL)}
v_add_u32 {v(aRe)}, {EXOFF}, {v(aRe)}
s_mov_b32 m0, {EXOFF}
s_branch L_p2common
L_loader:
""")
sSRC, sPL, sSG, sBIT = sT[4:8]
A(f"""
s_sub_u32 {s(sT[1])}, {s(sW)}, 4
s_and_b32 {s(sT[10])}, {s(sA)}, 8
s_add_u32 {s(sT[10])}, {s(sT[10])}, {s(sGRP)}
s_lshl_b32 {s(sT[10])}, {s(sT[10])}, 11
s_add_u32 {s(sT[10])}, {s(sT[10])}, {s(sM8)}
s_and_b32 {s(sT[9])}, {s(sA)}, 7
s_add_u32 {s(sT[10])}, {s(sT[10])}, {s(sT[9])}
s_lshl_b32 {s(sT[10])}, {s(sT[10])}, 8
s_lshl_b32 {s(sSRC)}, {s(sT[1])}, 17
s_add_u32 {s(sSRC)}, {s(sSRC)}, {s(sT[10])}
s_lshl2_add_u32 {s(sPL)}, {s(sGRP)}, {s(sT[1])}
s_mul_i32 {s(sPL)}, {s(sPL)}, {CP}
s_add_u32 {s(sPL)}, {s(sPL)}, {s(sCM)}
s_lshl_b32 m0, {s(sT[1])}, 11
s_xor_b32 {s(sSG)}, {s(sSRC)}, {65536 | (OPT['px'] << 19)}
v_lshlrev_b32 {v(aD)}, 2, {v(g_)}
v_xor_b32 {v(aD)}, {v(aD)}, {v(c_)}
v_lshlrev_b32 {v(aD)}, 4, {v(aD)}
v_lshl_add_u32 {v(aD)}, {v(g_)}, 14, {v(aD)}
""")
A(f"""
s_cmp_eq_u32 {s(sT[3])}, 5
s_cselect_b32 {s(sBIT)}, 2, 1
v_mov_b32 {v(vT[2])}, {s(sBIT)}
v_lshlrev_b32 {v(vT[3])}, 8, {v(vT[2])}
v_lshlrev_b32 {v(vT[4])}, 16, {v(vT[2])}
v_lshlrev_b32 {v(vT[5])}, 24, {v(vT[2])}
s_cbranch_scc0 L_single
s_mov_b32 {s(sEXP)}, 32
s_mov_b32 {s(sCNT)}, 0x8000
s_sub_u32 {s(sT[2])}, {s(sPL)}, {CP}
L_dual:
s_mov_b64 {s(XP[0],2)}, 0
s_atomic_or_x2 {s(XP[0],2)}, {s(WS_,2)}, {s(sT[2])} glc
""")
peek(sPL)
A(f"""
s_sub_u32 {s(sCNT)}, {s(sCNT)}, 1
s_cbranch_scc1 L_poll1_out
s_waitcnt lgkmcnt(0)
s_cmp_eq_u64 {s(XP[0],2)}, {s(sEXP,2)}
s_cbranch_scc0 L_dual
s_cmp_eq_u64 {s(sV,2)}, {s(sEXP,2)}
s_cbranch_scc1 L_poll1_out
L_single:
""")
poll("L_poll1", sPL, 32, OPT['sl1'])
stamp("pol1")
for n in range(8):
    r_ = sSG if n & 1 else sSRC
    A(f"buffer_load_dwordx4 {v(aD)}, {srd(OUT_)}, {s(r_)} offen sc1 lds")
    if n < 7: A(f"s_add_u32 m0, m0, {7168 if n & 1 else 1024}")
    if n < 6: A(f"s_add_u32 {s(r_)}, {s(r_)}, 4096")
A(f"""
s_cmp_lg_u32 {s(sT[3])}, 5
s_cbranch_scc1 L_posted
s_mov_b32 {s(sT[3])}, 0
s_mov_b32 m0, 0
s_mov_b32 {s(sSRC)}, {s(sT[10])}
s_xor_b32 {s(sSG)}, {s(sSRC)}, {65536 | (OPT['px'] << 19)}
s_branch L_poll1_out
""")
def post_rows(extra):
    A("s_mov_b64 exec, 1")
    if OPT['fw'] == 1:
        A("s_waitcnt vmcnt(0)")
        A(f"ds_add_u32 {v(vSY)}, {v(vT[2])} offset:8")
    elif OPT['fw'] == 2:
        A("s_waitcnt vmcnt(4)")
        A(f"ds_add_u32 {v(vSY)}, {v(vT[2])} offset:4")
        A("s_waitcnt vmcnt(0)")
        A(f"ds_add_u32 {v(vSY)}, {v(vT[2])} offset:8")
    else:
      for u in range(4):
        A(f"s_waitcnt vmcnt({extra+6-2*u})")
        A(f"ds_add_u32 {v(vSY)}, {v(vT[2]+u)} offset:4")
    A("s_mov_b64 exec, -1")
A.label("L_posted")
A(f"""
s_cmp_lt_u32 {s(sW)}, {8-NST}
s_cselect_b32 {s(sPH)}, 1, 0
""")
post_rows(0)
stamp("ld1")
if OPT['hp'] & 1: A("s_setprio 0")
if S3P: A("s_branch L_setup3_end")
A.label("L_setup3")
A3 = 237
aD3, aPw, aQ1, aQ0, aRd3, aSo, aQp = range(A3, A3+7)
aT = list(range(A3+9, A3+13))
sMR = 29
A(f"""
v_lshrrev_b32 {v(PH)}, 1, {v(vL)}
v_xor_b32 {v(PH)}, {v(PH)}, {v(vL)}
v_and_b32 {v(PH)}, 4, {v(PH)}
v_mul_u32_u24 {v(PH)}, 3, {v(PH)}
v_xor_b32 {v(PH)}, {v(PH)}, {v(vL)}
v_lshlrev_b32 {v(vS1)}, 4, {v(PH)}
v_add_u32 {v(vS1)}, {T1OFF}, {v(vS1)}
v_and_b32 {v(aSo)}, 15, {v(PH)}
v_lshlrev_b32 {v(aSo)}, 6, {v(aSo)}
v_and_b32 {v(PH)}, 1, {v(g_)}
v_lshl_add_u32 {v(aSo)}, {v(PH)}, 5, {v(aSo)}
v_lshrrev_b32 {v(PH)}, 1, {v(g_)}
v_lshl_add_u32 {v(aSo)}, {v(PH)}, 4, {v(aSo)}
""")
load_tables(vS1)
A(f"""
v_lshrrev_b32 {v(PH)}, 2, {v(c_)}
v_lshl_add_u32 {v(PH)}, {v(PH)}, 7, {s(sSB)}
v_cvt_f32_u32 {v(PH)}, {v(PH)}
v_mul_f32 {v(PH)}, {fbits(1/2048)}, {v(PH)}
v_add_f32 {v(PH+1)}, {fbits(0.25)}, {v(PH)}
v_and_b32 {v(PH+2)}, 1, {v(c_)}
v_cvt_f32_u32 {v(PH+2)}, {v(PH+2)}
v_mul_f32 {v(PH+2)}, {fbits(-0.25)}, {v(PH+2)}
v_add_f32 {v(PH+3)}, {fbits(-0.125)}, {v(PH+2)}
v_add_f32 {v(PH+2)}, {fbits(0.125)}, {v(PH+2)}
v_and_b32 {v(PH+4)}, 2, {v(c_)}
v_lshlrev_b32 {v(PH+4)}, 30, {v(PH+4)}
v_xor_b32 {v(PH+2)}, {v(PH+4)}, {v(PH+2)}
v_xor_b32 {v(PH+3)}, {v(PH+4)}, {v(PH+3)}
v_lshlrev_b32 {v(PH+4)}, 1, {v(g_)}
v_cvt_f32_u32 {v(PH+4)}, {v(PH+4)}
v_add_f32 {v(PH+5)}, 1.0, {v(PH+4)}
v_add_f32 {v(PH+6)}, {fbits(8.0)}, {v(PH+4)}
v_add_f32 {v(PH+7)}, {fbits(9.0)}, {v(PH+4)}
""")
for mt in range(2):
    for j in range(4):
        t = TMP + (mt*4+j)*3
        A(f"v_fma_f32 {v(t)}, {v(PH+mt)}, {v(PH+4+j)}, {v(PH+2+(j&1))}")
        A(f"v_cos_f32 {v(t+1)}, {v(t)}")
        A(f"v_sin_f32 {v(t+2)}, {v(t)}")
for mt in range(2):
    for j in range(4):
        t = TMP + (mt*4+j)*3
        cvt(M3+mt*4+j, t+1, t+2, False, True)
A(f"""
v_lshrrev_b32 {v(PH)}, 3, {v(vL)}
v_and_b32 {v(PH+1)}, 3, {v(PH)}
v_lshlrev_b32 {v(PH+1)}, 6, {v(PH+1)}
v_lshl_add_u32 {v(PH)}, {v(PH)}, 8, {v(PH+1)}
v_and_b32 {v(PH+1)}, 3, {v(vL)}
v_lshl_add_u32 {v(PH)}, {v(PH+1)}, 4, {v(PH)}
v_and_b32 {v(PH+1)}, 4, {v(vL)}
v_lshl_add_u32 {v(PH)}, {v(PH+1)}, 1, {v(PH)}
v_add_u32 {v(aT[0])}, {s(sW12)}, {v(PH)}
v_xor_b32 {v(aT[1])}, 64, {v(aT[0])}
v_xor_b32 {v(aT[2])}, 128, {v(aT[0])}
v_xor_b32 {v(aT[3])}, 192, {v(aT[0])}
v_mul_u32_u24 {v(PH)}, {PS2}, {v(g_)}
s_lshl_b32 {s(sT[0])}, {s(sW)}, 8
s_add_u32 {s(sT[1])}, {s(sT[0])}, {EX2}
s_sub_u32 {s(sT[0])}, {EX2+15*256}, {s(sT[0])}
v_lshl_add_u32 {v(aPw)}, {v(c_)}, 3, {v(PH)}
v_add_u32 {v(aPw)}, {s(sT[1])}, {v(aPw)}
v_sub_u32 {v(PH+1)}, 16, {v(c_)}
v_lshl_add_u32 {v(PH+1)}, {v(PH+1)}, 3, {v(PH)}
v_add_u32 {v(aQp)}, {s(sT[0])}, {v(PH+1)}
v_cmp_eq_u32 vcc, 0, {v(c_)}
v_mov_b32 {v(PH+2)}, 128
v_mov_b32 {v(PH+3)}, 132
v_mov_b32 {v(PH+4)}, -124
v_cndmask_b32 {v(PH+4)}, {v(PH+2)}, {v(PH+4)}, vcc
v_cndmask_b32 {v(PH+3)}, {v(PH+3)}, {v(PH+2)}, vcc
v_add_u32 {v(aQ1)}, {v(aQp)}, {v(PH+4)}
v_add_u32 {v(aQ0)}, {v(aQp)}, {v(PH+3)}
s_mul_i32 {s(sT[0])}, {s(sP)}, {PS2}
s_add_u32 {s(sT[0])}, {s(sT[0])}, {EX2}
v_and_b32 {v(PH+1)}, 31, {v(vL)}
v_lshrrev_b32 {v(PH+2)}, 5, {v(vL)}
v_lshlrev_b32 {v(PH+3)}, 9, {v(PH+2)}
v_lshl_add_u32 {v(PH+3)}, {v(PH+1)}, 3, {v(PH+3)}
v_add_u32 {v(aRd3)}, {s(sT[0])}, {v(PH+3)}
s_lshl_b32 {s(sO[0])}, {s(sP)}, 7
s_add_u32 {s(sO[0])}, {s(sO[0])}, {s(sSB)}
s_lshl_b32 {s(sO[0])}, {s(sO[0])}, 12
s_lshl_b32 {s(sO[1])}, {s(sM)}, 11
s_add_u32 {s(sO[0])}, {s(sO[0])}, {s(sO[1])}
s_add_u32 {s(sO[1])}, {s(sO[0])}, {1024*4096}
s_mov_b32 {s(sPM)}, 0x05040100
s_mov_b32 {s(sPM+1)}, 0x07060302
""")
A(f"""
v_lshlrev_b32 {v(PH)}, 2, {v(g_)}
v_xor_b32 {v(PH)}, {v(PH)}, {v(c_)}
v_lshlrev_b32 {v(PH)}, 4, {v(PH)}
v_lshl_add_u32 {v(aD3)}, {v(g_)}, 8, {v(PH)}
s_lshl_b32 {s(sMR)}, {s(sM)}, 7
s_add_u32 {s(sMR)}, {s(sMR)}, {s(sRHO)}
""")
if S3P:
    A(f"s_cmp_eq_u32 {s(sPH)}, 2")
    A("s_cbranch_scc1 L_ret1")
A(f"""
L_setup3_end:
s_cmp_lg_u32 {s(sPH)}, 0
s_cbranch_scc1 L_nosig2
""")
aR0, aR1, aS2, aPr, aS3 = vT[2:7]
sD = sT[4:5]
A(f"""
v_bfe_u32 {v(aR0)}, {v(vL)}, 2, 2
v_mul_u32_u24 {v(aR0)}, {OS}, {v(aR0)}
v_lshl_add_u32 {v(aR0)}, {v(g_)}, 6, {v(aR0)}
v_and_b32 {v(aR1)}, 3, {v(vL)}
v_mul_u32_u24 {v(aPr)}, 260, {v(aR1)}
v_add_u32 {v(aPr)}, {PGOFF}, {v(aPr)}
v_lshrrev_b32 {v(aS2)}, 5, {v(vL)}
v_xor_b32 {v(aR1)}, {v(aR1)}, {v(aS2)}
v_lshl_add_u32 {v(aR0)}, {v(aR1)}, 4, {v(aR0)}
s_sub_u32 {s(sT[8])}, 7, {s(sW)}
s_lshl_b32 {s(sT[0])}, {s(sT[8])}, 10
s_add_u32 {s(sT[0])}, {s(sT[0])}, {WOFF}
v_add_u32 {v(aR0)}, {s(sT[0])}, {v(aR0)}
v_xor_b32 {v(aR1)}, 32, {v(aR0)}
v_lshlrev_b32 {v(aS2)}, 14, {v(g_)}
v_lshl_add_u32 {v(aS2)}, {v(c_)}, 4, {v(aS2)}
s_lshl3_add_u32 {s(sT[0])}, {s(sGRP)}, {s(sT[8])}
s_mul_i32 {s(sT[0])}, {s(sT[0])}, {CP}
s_add_u32 {s(sT[0])}, {s(sT[0])}, {s(sCM)}
s_add_u32 {s(sT[0])}, {s(sT[0])}, {32*CP}
""")
if OPT['hp'] & 2: A("s_setprio 2")
NR = -(-8 // NST)
for i in range(NR):
    if NST*i + NST > 8:
        A(f"s_cmp_ge_u32 {s(sT[8])}, 8")
        A("s_cbranch_scc1 L_short")
    A(f"""
    s_lshr_b32 {s(sD[0])}, {s(sT[8])}, 1
    s_and_b32 {s(sT[6])}, {s(sT[8])}, 1
    s_lshl_b32 {s(sT[6])}, {s(sT[6])}, 6
    s_add_u32 {s(sD[0])}, {s(sD[0])}, {s(sT[6])}
    s_lshl_b32 {s(sD[0])}, {s(sD[0])}, 12
    s_add_u32 {s(sD[0])}, {s(sD[0])}, {s(sT[10])}
    s_mov_b32 {s(sCNT)}, 0x40000
    L_pg{i}:
    ds_read_b32 {v(vS1)}, {v(aPr)}
    s_sub_u32 {s(sCNT)}, {s(sCNT)}, 1
    s_cbranch_scc1 L_pg{i}_out
    {('s_sleep %d' % OPT['slp']) if i == 0 and OPT['slp'] else ''}
    s_waitcnt lgkmcnt(0)
    v_cmp_ge_u32 vcc, {s(sT[8])}, {v(vS1)}
    s_and_b64 vcc, vcc, vcc
    s_cbranch_scc1 L_pg{i}
    L_pg{i}_out:
    """)
    d = D1R + 16*i
    for j in range(4): A(f"ds_read_b128 {v(d+4*j,4)}, {v(aR1 if j & 1 else aR0)} offset:{i*NST*1024+j*256}")
    A(f"s_add_u32 {s(sT[8])}, {s(sT[8])}, {NST}")
    for j in range(4):
        A(f"s_waitcnt lgkmcnt({3-j})")
        A(f"buffer_store_dwordx4 {v(d+4*j,4)}, {v(aS2)}, {srd(OUT_)}, {s(sD[0])} offen sc1")
        if j < 3:
            A(f"s_add_u32 {s(sD[0])}, {s(sD[0])}, 65536")
            if OPT['px']: A(f"s_xor_b32 {s(sD[0])}, {s(sD[0])}, {4*AROW}")
for i in range(NR):
    A(f"s_waitcnt vmcnt({4*(NR-1-i)})")
    signal(sT[0], NST*i*CP)
if 8 % NST:
    A("s_branch L_nosig2")
    A.label("L_short")
    for i in range(NR-1):
        A(f"s_waitcnt vmcnt({4*(NR-2-i)})")
        signal(sT[0], NST*i*CP)
A.label("L_nosig2")
if OPT['hp'] & 2: A("s_setprio 0")
stamp("fl2")
A("s_barrier")
A(f"s_mov_b32 m0, {s(sW12)}")
poll("L_poll2", sC2, 16, OPT['sl2'])
stamp("pol2")
for j in range(4):
    A(f"buffer_load_dwordx4 {v(aD3)}, {srd(OUT_)}, {s(sO[j>>1])} offen offset:{(j&1)*1024} sc1 lds")
    if j == 1: A("s_add_u32 m0, m0, 2048")
A(f"""
s_cmp_lg_u32 {s(sW)}, 4
s_cbranch_scc1 L_noep
s_cmp_lg_u32 s2, {HB}
s_cbranch_scc1 L_noep
s_mov_b32 {s(sT[4])}, {EW}
s_atomic_swap {s(sTAG)}, {s(WS_,2)}, {s(sT[4])}
s_waitcnt lgkmcnt(0)
L_noep:
""")
GB = [(8, 8), (40, 8), (88, 8), (16, 4), (28, 4)] if OPT['stamp'] else [(60, 16), (76, 16)]
GS = [r + i for r, n in GB for i in range(n)]
def granule_loads():
    off = 0
    for r, n in GB:
        A(f"s_load_dwordx{n} {s(r,n)}, {s(WS_,2)}, {s(sT[4])} offset:{off} glc"); off += 4*n
A(f"""
s_cmp_lg_u32 {s(sW)}, 0
s_cbranch_scc1 L_nosp3a
s_lshl_b32 {s(sT[4])}, {s(sMR)}, 7
s_add_u32 {s(sT[4])}, {s(sT[4])}, {XB}
""")
granule_loads()
A.label("L_nosp3a")
for i in range(16):
    A(f"v_perm_b32 {v(GR+i)}, {v(FN+i//2)}, {v(FC+i//2)}, {s(sPM+(i&1))}")
    A(f"v_perm_b32 {v(GI+i)}, {v(FC+i//2)}, {v(FS+i//2)}, {s(sPM+(i&1))}")
A(f"""
s_cmp_lg_u32 {s(sW)}, 0
s_cbranch_scc1 L_nosp3b
s_mov_b32 {s(sCNT)}, 0x8000
s_branch L_gchk
L_gagain:
s_sub_u32 {s(sCNT)}, {s(sCNT)}, 1
s_cbranch_scc1 L_gok
""")
granule_loads()
A.label("L_gchk")
A("s_waitcnt lgkmcnt(0)")
for i in range(16):
    A(f"s_cmp_lg_u32 {s(GS[2*i+1])}, {s(sTAG)}")
    A("s_cbranch_scc1 L_gagain")
A.label("L_gok")
for h in range(2):
    for g in range(4):
        for q in range(2):
            A(f"v_writelane_b32 {v(TMP+4+2*h+q)}, {s(GS[h*16+g*4+2*q])}, {16*g}")
m16(D2R, M3, TMP+4, None); m16(D2R+4, M3+4, TMP+4, None)
A.label("L_nosp3b")
A("s_waitcnt vmcnt(0)")
stamp("dat2", (1, 3))
for t in (0, 2, 1, 3):
    for jj in range(2):
        A(f"ds_read_b64_tr_b16 {v(XR+4*t+2*jj,2)}, {v(aT[t])} offset:{jj*2048}")
for i, t in enumerate((0, 2, 1, 3)):
    A(f"s_waitcnt lgkmcnt({6-2*i})")
    m16(D1R+8*t, M3, XR+4*t, None); m16(D1R+8*t+4, M3+4, XR+4*t, None)
A(f"""
s_cmp_lg_u32 {s(sW)}, 0
s_cbranch_scc1 L_nofix
s_mov_b32 exec_lo, 0x00010001
s_mov_b32 exec_hi, 0x00010001
""")
for d in (D2R, D1R):
    for mt in range(2):
        for i in range(2):
            A(f"v_add_f32 {v(d+4*mt+i)}, {v(d+4*mt+i)}, {v(d+4*mt+2+i)}")
            A(f"v_mul_f32 {v(d+4*mt+i)}, 0.5, {v(d+4*mt+i)}")
cvt(TMP, D2R, D2R+1); cvt(TMP+1, D2R+4, D2R+5)
A(f"""
ds_write_b32 {v(aPw)}, {v(TMP)} offset:{8*256}
ds_write_b32 {v(aPw)}, {v(TMP+1)} offset:{8*256+4*PS2}
s_mov_b64 exec, -1
L_nofix:
s_nop 1
""")
for tp in range(2):
    for mt in range(2):
        d0 = D1R + 8*tp + 4*mt; d1 = d0 + 16
        o = TMP + 8 + (tp*2+mt)*4
        cvt(o, d0, d0+1); cvt(o+1, d1, d1+1); cvt(o+2, d1+2, d1+3); cvt(o+3, d0+2, d0+3)
for tp in range(2):
    for mt in range(2):
        o = TMP + 8 + (tp*2+mt)*4
        A(f"ds_write_b64 {v(aPw)}, {v(o,2)} offset:{mt*4*PS2+tp*128}")
        if tp == 1:
            A(f"ds_write_b64 {v(aQp)}, {v(o+2,2)} offset:{mt*4*PS2}")
        else:
            A(f"ds_write_b32 {v(aQ1)}, {v(o+2)} offset:{mt*4*PS2}")
            A(f"ds_write_b32 {v(aQ0)}, {v(o+3)} offset:{mt*4*PS2}")
if OPT['p3p']: A("s_setprio 1")
A("s_waitcnt lgkmcnt(0)")
A("s_barrier")
stamp("bar3", (1, 3))
for t in range(4):
    for j in range(2):
        A(f"ds_read_b64 {v(XR+4*t+2*j,2)}, {v(aRd3)} offset:{t*1024+j*256}")
for t in range(4):
    A(f"s_waitcnt lgkmcnt({6-2*t})")
    m32(D1R, XR+4*t, GR+4*t, D1R if t else None)
A("s_nop 4")
tw1 = TW1(D1R, True)
if OPT['p3p']: tw1 = tw1[:12] + ["s_setprio 0"] + tw1[12:]
weave([M32(D1I, XR+4*t, GI+4*t, D1I if t else None) for t in range(4)], ["s_nop 4"] + tw1, [1, 6, 6, 99])
stamp("m3", (3,))
for t_ in TW2(D1I, XR, XI, True, 0, 8): A(t_)
weave([M32(D2R, XR, FC, None), M32(D2R, XI, FN, D2R), M32(D2I, XR, FS, None), M32(D2I, XI, FC, D2I)], TW2(D1I, XR, XI, True, 8, 16), 6)
weave([M32(D2R, XR+4, FC+4, D2R), M32(D2R, XI+4, FN+4, D2R), M32(D2I, XR+4, FS+4, D2I), M32(D2I, XI+4, FC+4, D2I)], [], 0)
stamp("m4", (3,))
for comp, d in ((0, D2R), (1, D2I)):
    o = TMP + comp*8
    for q in (0, 4, 1, 5, 2, 6, 3, 7): cvt(o+q, d+2*q, d+2*q+1)
    for q in range(4): A(f"v_permlane16_swap_b32 {v(o+q)}, {v(o+4+q)}")
    for j in range(2):
        A(f"buffer_store_dwordx4 {v(o+4*j,4)}, {v(aSo)}, {srd(OUT_)}, {s(sO[comp])} offen offset:{j*1024}{OUTM}")
if OPT['stamp']:
    stamp("st3", (3,))
    A("s_waitcnt vmcnt(0)")
    stamp("end")
    A("s_waitcnt lgkmcnt(0)")
    n = len(stamps)
    assert sST + 2*n <= 88, n
    if OPT['diag']:
        da, db = OPT['da'], OPT['db']
        A(f"""
        s_load_dwordx2 s[94:95], s[0:1], 56
        s_and_b32 {s(sT[4])}, s2, 7
        s_lshl_b32 {s(sT[4])}, {s(sT[4])}, 3
        s_not_b32 {s(sT[11])}, {s(sST)}
        s_sleep 100
        s_waitcnt lgkmcnt(0)
        s_cmp_lg_u32 {s(sW)}, {OPT['wa']}
        s_cbranch_scc1 L_dg1
        s_atomic_umax {s(sST+2*da) if da else s(sT[11])}, s[94:95], {s(sT[4])}
        L_dg1:
        s_cmp_lg_u32 {s(sW)}, {OPT['wb']}
        s_cbranch_scc1 L_end
        s_atomic_umax {s(sST+2*db)}, s[94:95], {s(sT[4])} offset:4
        s_cmp_lg_u32 s2, 100
        s_cbranch_scc1 L_end
        s_add_u32 {s(sT[0])}, {s(sST+2*(n-1))}, 900
        L_amp0:
        s_memrealtime {s(sT[2],2)}
        s_waitcnt lgkmcnt(0)
        s_sub_u32 {s(sT[1])}, {s(sT[0])}, {s(sT[2])}
        s_cmp_gt_i32 {s(sT[1])}, 0
        s_cbranch_scc1 L_amp0
        s_load_dwordx16 s[60:75], s[94:95], 0 glc
        s_waitcnt lgkmcnt(0)
        """)
        for i in range(1, 8):
            A(f"s_max_u32 s60, s60, s{60+2*i}")
            A(f"s_max_u32 s61, s61, s{61+2*i}")
        if not da: A("s_not_b32 s60, s60")
        A(f"""
        s_sub_u32 {s(sT[1])}, s61, s60
        s_lshl_b32 {s(sT[1])}, {s(sT[1])}, 4
        s_min_u32 {s(sT[1])}, {s(sT[1])}, 60000
        s_add_u32 {s(sT[0])}, {s(sT[0])}, {s(sT[1])}
        L_amp:
        s_memrealtime {s(sT[2],2)}
        s_waitcnt lgkmcnt(0)
        s_sub_u32 {s(sT[1])}, {s(sT[0])}, {s(sT[2])}
        s_cmp_gt_i32 {s(sT[1])}, 0
        s_cbranch_scc1 L_amp
        s_branch L_end
        """)
    A(f"s_lshl_b32 {s(sT[0])}, s2, 3")
    A(f"s_add_u32 {s(sT[0])}, {s(sT[0])}, {s(sW)}")
    A(f"s_lshl_b32 {s(sT[0])}, {s(sT[0])}, 7")
    A(f"s_add_u32 {s(sT[0])}, {s(sT[0])}, {STAMP}")
    A("v_mov_b32 v3, 0")
    A("s_mov_b64 exec, 1")
    for i in range(n):
        A(f"v_mov_b32 v2, {s(sST+2*i)}")
        A(f"buffer_store_dword v2, v3, {srd(WS_)}, {s(sT[0])} offen offset:{i*4}")
    A.raw("; stamps: " + " ".join(stamps))
A.label("L_end")
A("s_endpgm")
def kd(name, nv, ns):
    A.raw(f""".p2align 6
.amdhsa_kernel {name}
  .amdhsa_next_free_vgpr {nv}
  .amdhsa_next_free_sgpr {ns}
  .amdhsa_accum_offset {nv}
  .amdhsa_group_segment_fixed_size 0
  .amdhsa_kernarg_size 72
  .amdhsa_user_sgpr_count 2
  .amdhsa_user_sgpr_kernarg_segment_ptr 1
  .amdhsa_system_sgpr_workgroup_id_x 1
  .amdhsa_float_denorm_mode_32 3
.end_amdhsa_kernel""")
A.raw('.section .rodata,"a"')
kd(NAME + "_kernel", 256, 102)
if OPT['lst']: kd("empty_kernel", 8, 16)
txt = A.text()
if OPT['al']:
    from align import align
    txt = align(txt, minrun=OPT['al'] if OPT['al'] > 1 else 4)
open(sys.argv[1], "w").write(txt)
print(sys.argv[1], "nops:", A.nops, "stamps:", len(stamps), file=sys.stderr)
```

```python
import sys, struct, re
import numpy as np
from asmlib import Asm, v, s

NAME = "concat_heads__spectral_gfnet__spectral_gfnet__prompt"
OPT = dict(outm=1, xnt=0, wnt=0, px=4, diag=0, da=0, db=0, wa=0, wb=0, ne=3, nea=2, gh=0, xprio=0, slp=0, nst=3, stag=2, tg=1, wp=0, hp=0, p1p=0,
           stamp=0, sl1=0, sl2=0, rm=1, ha=128, hb=161, spw=1, s3p=1, fw=1, al=1, p3p=0, sb=0, s3w=1, bi=1, mb=3, xp=0, lst=0)
for a_ in sys.argv[2:]:
    k_, v_ = a_.split('='); assert k_ in OPT, k_; OPT[k_] = int(v_)

def fbits(x): return "0x%08x" % struct.unpack('<I', struct.pack('<f', x))[0]
def bf16(x):
    u = np.asarray(x, dtype=np.float32).view(np.uint32)
    return ((u + 0x7FFF + ((u >> 16) & 1)) >> 16).astype(np.uint32)

AUX = 0
XB = AUX + 0x30000
CP = 256
CB = AUX + 0x10000
EW = AUX + 0xa0000
STAMP = AUX + 0x100000
WSZ = 2 << 20
EXOFF = 32768
PS = 5184
WOFF = EXOFF + 8 * PS
M2OFF = WOFF + 36864
SYOFF = M2OFF + 32768
PGOFF = SYOFF + 64
T1OFF = PGOFF + 2048
LDSZ = T1OFF + 14336
EX2 = EXOFF
OS = 8320
XOUT = EXOFF + 32768
PS2 = 4160
sW, sM, sRHO, sSB, sA, sGRP = 3, 4, 5, 6, 7, 32
X_, WR_, WI_, OUT_, WS_, TAB_ = 8, 12, 16, 20, 24, 44
sCNT = 33
sT = list(range(34, 48))
sV = 48
sEXP = 50
sTAG = 51
sW12, sM8, sE, sROLE, sC1, sC2 = 52, 53, 54, 55, 56, 57
sPM = 58
sST = 60
sO = [96, 97]
sU = [98, 99, 100, 101]
sONE = sU[2]
sCM = 30
sP = 31
srd = lambda b: s(b, 4)

A = Asm()
AROW = 128 * 4096
HA, HB = OPT['ha'], OPT['hb']
NST = OPT['nst']
XNT = ' nt' if OPT['xnt'] else ''
WNT = ' nt' if OPT['wnt'] else ''
OUTM = ['', ' sc1', ' nt', ' sc0 sc1', ' sc1 nt', ' sc0 sc1 nt'][OPT['outm']]
def M32(d, a, b, c): return f"v_mfma_f32_32x32x16_bf16 {v(d,16)}, {v(a,4)}, {v(b,4)}, {v(c,16) if c is not None else 0}"
def M16(d, a, b, c): return f"v_mfma_f32_16x16x32_bf16 {v(d,4)}, {v(a,4)}, {v(b,4)}, {v(c,4) if c is not None else 0}"
def CVT(d, a, b, na=False, nb=False): return f"v_cvt_pk_bf16_f32 {v(d)}, {'-' if na else ''}{v(a)}, {'-' if nb else ''}{v(b)}"
def m32(*a): A(M32(*a))
def m16(*a): A(M16(*a))
def cvt(*a): A(CVT(*a))
def weave(mf, fill, per):
    fill = list(fill)
    for i, m in enumerate(mf):
        A(m)
        n = per[i] if isinstance(per, (list, tuple)) else per
        for _ in range(n):
            if fill: A(fill.pop(0))
    for f in fill: A(f)
stamps = []
def stamp(name, sets=(1,)):
    st = OPT['stamp']
    if name in ("start", "end"):
        if st: A(f"s_memrealtime {s(sST + 2*len(stamps), 2)}"); stamps.append(name)
        if st > 1: A(f"s_memtime {s(sST + 2*len(stamps), 2)}"); stamps.append("c" + name)
    elif st in sets:
        if name not in stamps: stamps.append(name)
        A(f"{'s_memrealtime' if st == 1 else 's_memtime'} {s(sST + 2*stamps.index(name), 2)}")

vL, c_, g_ = 1, 2, 3
vT = list(range(2, 16))
TC, TS = 16, 32
FC, FS, FN = 48, 56, 64
M3 = 72
GR, GI = 80, 96
XR, XI = 112, 120
D1R, D1I = 128, 144
D2R, D2I = 160, 176
TMP = 192
PH = 224
WRF, WIF = 16, 48
FR = 80
DRE, DIM, DNR = 144, 160, 176
ER, EI = 192, 224

def peek(off, imm=0):
    A(f"s_mov_b64 {s(sV,2)}, 0")
    A(f"s_atomic_or_x2 {s(sV,2)}, {s(WS_,2)}, {s(off)} glc" if not imm else f"s_atomic_or_x2 {s(sV,2)}, {s(WS_,2)}, {s(off)} offset:{imm} glc")
def poll(label, off, count, sleep, imm=0, keep=None):
    A(f"s_mov_b32 {s(sEXP)}, {count}")
    A(f"s_mov_b32 {s(sCNT)}, 0x8000")
    A.label(label)
    peek(off, imm)
    A(f"s_sub_u32 {s(sCNT)}, {s(sCNT)}, 1")
    A(f"s_cbranch_scc1 {label}_out")
    if sleep: A(f"s_sleep {sleep}")
    A("s_waitcnt lgkmcnt(0)")
    if keep is not None:
        A(f"s_mov_b32 {s(keep)}, {s(sV)}")
        A(f"s_and_b32 {s(sV)}, {s(sV)}, 0xffff")
    A(f"s_cmp_eq_u64 {s(sV,2)}, {s(sEXP,2)}")
    A(f"s_cbranch_scc0 {label}")
    A.label(label + "_out")
def validate(label, off, imm=0):
    A(f"s_mov_b32 {s(sCNT)}, 0x8000")
    A.label(label)
    A("s_waitcnt lgkmcnt(0)")
    A(f"s_cmp_eq_u32 {s(sV+1)}, {s(sTAG)}")
    A(f"s_cbranch_scc1 {label}_out")
    peek(off, imm)
    A(f"s_sub_u32 {s(sCNT)}, {s(sCNT)}, 1")
    A(f"s_cbranch_scc0 {label}")
    A("s_waitcnt lgkmcnt(0)")
    A.label(label + "_out")
def signal(off, imm=0):
    A(f"s_atomic_add {s(sONE)}, {s(WS_,2)}, {s(off)}" + (f" offset:{imm}" if imm else ""))

vSY, vS1, vPG = vT[12], vT[13], vT[11]
def lds_wait(label, off, val):
    A(f"s_mov_b32 {s(sCNT)}, 0x40000")
    A.label(label)
    A(f"ds_read_b32 {v(vS1)}, {v(vSY)} offset:{off}")
    A(f"s_sub_u32 {s(sCNT)}, {s(sCNT)}, 1")
    A(f"s_cbranch_scc1 {label}_out")
    A("s_waitcnt lgkmcnt(0)")
    A(f"v_cmp_gt_u32 vcc, {val}, {v(vS1)}")
    A("s_and_b64 vcc, vcc, vcc")
    A(f"s_cbranch_scc1 {label}")
    A.label(label + "_out")
def lds_bit(off, sbit):
    A(f"v_mov_b32 {v(vS1)}, {s(sbit)}")
    A("s_mov_b64 exec, 1")
    A(f"ds_or_b32 {v(vSY)}, {v(vS1)} offset:{off}")
    A("s_mov_b64 exec, -1")
def lds_post(off, rtn=False):
    A(f"v_mov_b32 {v(vS1)}, 1")
    A("s_mov_b64 exec, 1")
    if rtn: A(f"ds_add_rtn_u32 {v(vS1)}, {v(vSY)}, {v(vS1)} offset:{off}")
    else: A(f"ds_add_u32 {v(vSY)}, {v(vS1)} offset:{off}")
    A("s_mov_b64 exec, -1")

sWB, sI = sU[0], sU[3]
aWM, aWT = GR + 4, GR + 5
nlab = [0]
def w_piece(e):
    if e < 4:
        arr, half = e & 1, e >> 1
        A(f"s_add_u32 m0, {s(sT[13])}, {WOFF + (2*arr+half)*9216}")
        if half: A(f"s_add_u32 {s(sI)}, {s(sT[12])}, {64*16416}")
        A(f"buffer_load_dwordx4 {v(aWM)}, {srd(WI_ if arr else WR_)}, {s(sI if half else sT[12])} offen{WNT} lds")
    else:
        n = nlab[0]; nlab[0] += 1
        A(f"""
        s_mul_i32 {s(sI)}, {s(sW)}, 9216
        s_add_u32 m0, {s(sI)}, {WOFF + 8192}
        s_and_b32 {s(sI)}, {s(sW)}, 1
        s_mul_i32 {s(sI)}, {s(sI)}, {64*16416}
        s_add_u32 {s(sI)}, {s(sI)}, {s(sWB)}
        s_bitcmp1_b32 {s(sW)}, 1
        s_cbranch_scc1 L_t1_{n}
        buffer_load_dwordx4 {v(aWT)}, {srd(WR_)}, {s(sI)} offen{WNT} lds
        s_branch L_t2_{n}
        L_t1_{n}:
        buffer_load_dwordx4 {v(aWT)}, {srd(WI_)}, {s(sI)} offen{WNT} lds
        L_t2_{n}:
        """)
def w_base(sw):
    A(f"s_mul_i32 {s(sT[12])}, {s(sw)}, {7*16416}")
    A(f"s_add_u32 {s(sT[12])}, {s(sT[12])}, {s(sWB)}")
    A(f"s_lshl_b32 {s(sT[13])}, {s(sw)}, 10")

def gen_m2(sW):
    G = D2R
    kf, s0, af, bf, ai, bi, ad = G, G+1, G+2, G+3, G+4, G+5, G+6
    P, C_, S_ = D1R, D1R+16, G+8
    A(f"""
    s_and_b32 {s(sT[12])}, {s(sW)}, 1
    s_lshl_b32 {s(sT[12])}, {s(sT[12])}, 4
    s_lshr_b32 {s(sT[13])}, {s(sW)}, 1
    v_add_u32 {v(kf)}, {s(sT[12])}, {v(c_)}
    v_lshl_add_u32 {v(ai)}, {v(kf)}, 2, {s(sT[13])}
    v_lshl_add_u32 {v(s0)}, {v(g_)}, 4, {s(sT[13])}
    v_mul_u32_u24 {v(bf)}, {v(s0)}, {v(kf)}
    v_mul_u32_u24 {v(bi)}, {v(g_)}, {v(ai)}
    v_cvt_f32_u32 {v(af)}, {v(kf)}
    v_cvt_f32_u32 {v(ai)}, {v(ai)}
    v_cvt_f32_u32 {v(bf)}, {v(bf)}
    v_cvt_f32_u32 {v(bi)}, {v(bi)}
    v_mul_f32 {v(bf)}, {fbits(1/128)}, {v(bf)}
    v_mul_f32 {v(bi)}, {fbits(1/32)}, {v(bi)}
    s_lshl_b32 {s(sT[12])}, {s(sW)}, 11
    s_add_u32 {s(sT[12])}, {s(sT[12])}, {M2OFF}
    v_lshl_add_u32 {v(ad)}, {v(vL)}, 4, {s(sT[12])}
    """)
    for d in range(2):
        for i in range(8):
            c = 16*(i >> 2) + (i & 3)
            A(f"v_fmamk_f32 {v(P+8*d+i)}, {v(ai if d else af)}, {fbits(c/128 if d else c/32)}, {v(bi if d else bf)}")
    for i in range(16):
        A(f"v_cos_f32 {v(C_+i)}, {v(P+i)}")
        A(f"v_sin_f32 {v(S_+i)}, {v(P+i)}")
    for d in range(2):
        for j in range(4):
            cvt(P+8*d+j, C_+8*d+2*j, C_+8*d+2*j+1)
            cvt(P+8*d+4+j, S_+8*d+2*j, S_+8*d+2*j+1)
    for d in range(2):
        for cs in range(2):
            A(f"ds_write_b128 {v(ad)}, {v(P+8*d+4*cs,4)} offset:{d*16384+cs*1024}")

def load_tables(addr):
    for i in (8, 9, 10, 11, 12, 13, 0, 4, 1, 5, 2, 6, 3, 7):
        A(f"ds_read_b128 {v(TC+4*i,4)}, {v(addr)} offset:{i*1024}")

def TW1(dr, conj):
    L = []
    for i in range(16):
        L.append(f"v_mul_f32 {v(TMP+i)}, {v(dr+i)}, {v(TC+i)}")
        L.append(f"v_mul_f32 {v(TMP+16+i)}, {v(dr+i)}, {v(TS+i)}" if conj else f"v_mul_f32_e64 {v(TMP+16+i)}, -{v(dr+i)}, {v(TS+i)}")
    return L
def TW2(di, outr, outi, conj, lo, hi):
    L = []
    for i in range(lo, hi, 2):
        for e in range(2):
            L.append(f"v_fma_f32 {v(TMP+i+e)}, -{v(di+i+e)}, {v(TS+i+e)}, {v(TMP+i+e)}" if conj else f"v_fmac_f32 {v(TMP+i+e)}, {v(di+i+e)}, {v(TS+i+e)}")
            L.append(f"v_fmac_f32 {v(TMP+16+i+e)}, {v(di+i+e)}, {v(TC+i+e)}")
        L.append(CVT(outr + i//2, TMP+i, TMP+i+1))
        L.append(CVT(outi + i//2, TMP+16+i, TMP+16+i+1))
    return L

A.raw("; GFNet spectral filter: persistent 3-pass MFMA FFT (generated by a script of the author)")
if OPT['lst'] == 0: A.raw(f"; @launch grid=(256,1,1) block=(512,1,1) lds={LDSZ}")
else:
    A.raw(f"; @launch kernel={NAME}_kernel grid=(256,1,1) block=(512,1,1) lds={LDSZ}")
    A.raw(f"; @launch kernel=empty_kernel grid=(1,1,1) block=(64,1,1) lds=0")
A.raw('.amdgcn_target "amdgcn-amd-amdhsa--gfx950"\n.text')
if OPT['lst']: A.raw(".globl empty_kernel\n.p2align 8\n.type empty_kernel,@function\nempty_kernel:\n s_endpgm")
A.raw(f".globl {NAME}_kernel\n.p2align 8\n.type {NAME}_kernel,@function")
A.label(f"{NAME}_kernel")
aL16 = GR + 1
SPW = OPT['spw']
NE = NEB = OPT['ne']
NEA = OPT['nea']
assert NEA <= NE
STAG = OPT['stag']
A(f"""
s_cmp_ge_u32 s2, 256
s_cbranch_scc1 L_end
s_bfe_u32 {s(sM)}, s2, {0x10000 + OPT['mb']}
s_mul_i32 {s(sT[0])}, {s(sM)}, 24
s_load_dwordx2 {s(X_,2)}, s[0:1], {s(sT[0])}
s_load_dwordx2 {s(WS_,2)}, s[0:1], 64
s_load_dwordx2 {s(WR_,2)}, s[0:1], {s(sT[0])} offset:8
s_load_dwordx2 {s(WI_,2)}, s[0:1], {s(sT[0])} offset:16
s_load_dwordx2 {s(OUT_,2)}, s[0:1], 48
""")
XP_ = OPT['xp']
if XP_:
    A(f"s_sub_u32 {s(sT[0])}, 24, {s(sT[0])}")
    A(f"s_load_dwordx2 s[88:89], s[0:1], {s(sT[0])}")
stamp("start")
if OPT['mb'] != 3:
    A(f"""
    s_bfe_u32 {s(sT[5])}, s2, 0x10003
    s_xor_b32 {s(sT[5])}, {s(sT[5])}, {s(sM)}
    s_mul_i32 {s(sT[5])}, {s(sT[5])}, {8 + (1 << OPT['mb'])}
    s_xor_b32 s2, s2, {s(sT[5])}
    """)
A(f"""
v_lshrrev_b32 v2, 6, v0
s_getpc_b64 {s(TAB_,2)}
L_pc:
s_lshr_b32 {s(sT[2])}, s2, 4
v_readfirstlane_b32 {s(sW)}, v2
s_mov_b32 {s(TAB_+2)}, L_end-L_pc
s_mov_b32 {s(TAB_+3)}, 0x20000
v_lshlrev_b32 v3, 11, v2
s_lshl_b32 {s(sT[6])}, {s(sT[2])}, 7
buffer_load_dword {v(GR)}, v3, {srd(TAB_)}, {s(sT[6])} offen
v_and_b32 {v(vL)}, 63, v0
s_and_b32 {s(sT[1])}, s2, 7
""")
if OPT['rm'] == 0: A(f"s_lshl4_add_u32 {s(sRHO)}, {s(sT[1])}, {s(sT[2])}")
else:
    A(f"""
    s_and_b32 {s(sRHO)}, s2, 0x73
    s_and_b32 {s(sT[5])}, s2, 4
    s_lshl1_add_u32 {s(sRHO)}, {s(sT[5])}, {s(sRHO)}
    s_lshr_b32 {s(sT[5])}, s2, 7
    s_lshl2_add_u32 {s(sRHO)}, {s(sT[5])}, {s(sRHO)}
    """)
    if OPT['rm'] == 2: A(f"s_xor_b32 {s(sRHO)}, {s(sRHO)}, 0x70")
A(f"""
s_and_b32 {s(sSB)}, {s(sRHO)}, 31
s_lshr_b32 {s(sT[5])}, {s(sRHO)}, 5
s_lshl2_add_u32 {s(sSB)}, {s(sSB)}, {s(sT[5])}
v_lshlrev_b32 {v(aL16)}, 4, {v(vL)}
s_mov_b32 {s(X_+2)}, 4194304
s_mov_b32 {s(X_+3)}, 0x20000
s_and_b32 {s(sP)}, {s(sRHO)}, {OPT['px']}
s_xor_b32 {s(sP)}, {s(sP)}, {s(sW)}
s_lshl_b32 {s(sO[0])}, {s(sP)}, 7
s_add_u32 {s(sO[0])}, {s(sO[0])}, {s(sSB)}
s_lshl_b32 {s(sO[0])}, {s(sO[0])}, 11
s_add_u32 {s(sO[1])}, {s(sO[0])}, 0x200000
s_lshl_b32 {s(sW12)}, {s(sW)}, 12
s_mov_b32 m0, {s(sW12)}
""")
XISS = f"""
buffer_load_dwordx4 {v(aL16)}, {srd(X_)}, {s(sO[0])} offen{XNT} lds
buffer_load_dwordx4 {v(aL16)}, {srd(X_)}, {s(sO[0])} offen offset:1024{XNT} lds
s_add_u32 m0, {s(sW12)}, 2048
buffer_load_dwordx4 {v(aL16)}, {srd(X_)}, {s(sO[1])} offen{XNT} lds
buffer_load_dwordx4 {v(aL16)}, {srd(X_)}, {s(sO[1])} offen offset:1024{XNT} lds
"""
if XP_:
    A(f"""
    s_mov_b32 s90, 4194304
    s_mov_b32 s91, 0x20000
    s_xor_b32 s92, {s(sO[0])}, {4 << 18}
    v_and_b32 {v(GR+2)}, 15, {v(vL)}
    v_and_b32 v4, 16, {v(vL)}
    v_lshlrev_b32 v4, 17, v4
    v_lshl_add_u32 {v(GR+2)}, {v(GR+2)}, 7, v4
    """)
YPF = f"""
s_cmp_lt_u32 {s(sW)}, {8 if XP_ & 4 else 4}
s_cselect_b64 exec, 0xffffffff, 1
buffer_load_dword {v(GR)}, {v(GR+2)}, s[88:91], s92 offen
s_mov_b64 exec, -1
"""
def early_x():
    A("s_waitcnt lgkmcnt(0)")
    stamp("karg", (4,))
    if STAG:
        A(f"s_cmp_lg_u32 {s(sM)}, 0")
        A("s_cbranch_scc1 L_xhelp" if XP_ & 1 else "s_cbranch_scc1 L_xlate")
    A(XISS)
    if XP_ & 1:
        A("s_branch L_xlate")
        A.label("L_xhelp")
        A(YPF)
    A.label("L_xlate")
    stamp("xiss", (4,))
if OPT['tg'] == 0: early_x()
A(f"""
s_lshr_b32 {s(sT[3])}, {s(sW)}, 1
s_and_b32 {s(sT[4])}, {s(sW)}, 1
s_lshl2_add_u32 {s(sT[6])}, {s(sT[3])}, {s(sT[4])}
s_lshl_b32 {s(sT[6])}, {s(sT[6])}, 1
v_lshrrev_b32 {v(PH+16)}, 5, {v(vL)}
v_and_b32 {v(PH+17)}, 31, {v(vL)}
v_lshl_add_u32 {v(PH)}, {v(PH+16)}, 2, {s(sT[6])}
v_mul_u32_u24 {v(PH)}, {v(PH)}, {v(PH+17)}
v_add_u32 {v(PH+1)}, {v(PH)}, {v(PH+17)}
v_cvt_f32_u32 {v(PH)}, {v(PH)}
v_cvt_f32_u32 {v(PH+1)}, {v(PH+1)}
s_mov_b32 {s(sT[6])}, {fbits(1/32)}
v_mul_f32 {v(PH+2)}, {s(sT[6])}, {v(PH)}
v_mul_f32 {v(PH+3)}, {s(sT[6])}, {v(PH+1)}
v_cos_f32 {v(PH+8)}, {v(PH+2)}
v_cos_f32 {v(PH+9)}, {v(PH+3)}
v_sin_f32 {v(PH+10)}, {v(PH+2)}
v_sin_f32 {v(PH+11)}, {v(PH+3)}
v_mul_f32 {v(PH)}, {s(sT[6])}, {v(PH+2)}
v_mul_f32 {v(PH+1)}, {s(sT[6])}, {v(PH+3)}
v_cos_f32 {v(PH+4)}, {v(PH)}
v_cos_f32 {v(PH+5)}, {v(PH+1)}
v_sin_f32 {v(PH+6)}, {v(PH)}
v_sin_f32 {v(PH+7)}, {v(PH+1)}
{CVT(PH+12, PH+8, PH+9)}
{CVT(PH+13, PH+10, PH+11)}
{CVT(PH+14, PH+10, PH+11, True, True)}
v_add_u32 {v(vS1)}, {T1OFF}, {v(aL16)}
s_lshl_b32 {s(sT[3])}, {s(sT[3])}, 10
s_lshl3_add_u32 {s(sT[3])}, {s(sT[4])}, {s(sT[3])}
v_add_u32 {v(PH)}, {s(sT[3])}, {v(vS1)}
s_mul_i32 {s(sT[3])}, {s(sW)}, 0x104
s_and_b32 {s(sT[3])}, {s(sT[3])}, 0x40c
v_add_u32 {v(PH+1)}, {s(sT[3])}, {v(vS1)}
""")
if OPT['tg'] == 1: early_x()
A(f"""
ds_write_b64 {v(PH)}, {v(PH+4,2)}
ds_write_b64 {v(PH)}, {v(PH+6,2)} offset:4096
ds_write_b32 {v(PH+1)}, {v(PH+12)} offset:8192
ds_write_b32 {v(PH+1)}, {v(PH+13)} offset:10240
ds_write_b32 {v(PH+1)}, {v(PH+14)} offset:12288
v_and_b32 {v(c_)}, 15, {v(vL)}
v_lshrrev_b32 {v(g_)}, 4, {v(vL)}
s_mov_b32 {s(sT[6])}, {EW}
s_cmp_lg_u32 {s(sW)}, 0
s_waitcnt lgkmcnt(0)
s_cbranch_scc1 L_noe
s_load_dword {s(sE)}, {s(WS_,2)}, {s(sT[6])}
L_noe:
""")
stamp("tgen", (4,))
A("s_barrier")
stamp("tbar", (4,))
if STAG == 3:
    load_tables(vS1)
if STAG:
    A(f"s_cmp_eq_u32 {s(sM)}, 0")
    A("s_cbranch_scc1 L_yhelp" if XP_ & 2 else "s_cbranch_scc1 L_xdone")
    if STAG == 3: A("s_barrier")
    if STAG == 2:
        gen_m2(sW)
        A("s_barrier")
    A(XISS)
    if OPT['bi']:
        A(f"""
        s_cmp_lg_u32 {s(sW)}, 0
        s_cbranch_scc1 L_xdone
        s_lshl_b32 {s(sT[3])}, {s(sRHO)}, 8
        s_add_u32 {s(sT[3])}, {s(sT[3])}, {CB + 128*CP}
        s_mov_b32 {s(sEXP)}, 0
        s_waitcnt lgkmcnt(0)
        s_mul_i32 {s(sTAG)}, {s(sE)}, 0x9E3779B1
        s_add_u32 {s(sTAG)}, {s(sTAG)}, 0x7F4A7C15
        s_atomic_swap_x2 {s(sEXP,2)}, {s(WS_,2)}, {s(sT[3])}
        """)
    if XP_ & 2:
        A("s_branch L_xdone")
        A.label("L_yhelp")
        A(YPF)
    A.label("L_xdone")
if STAG != 3: load_tables(vS1)
stamp("xis2", (4,))
aTR, aP, aQe, aQo, aRD, aST = vT[2:8]
sS1 = sT[8:10]
H_, F_ = PH + 16, PH + 17
A(f"""
s_lshr_b32 {s(sT[3])}, {s(sT[2])}, 3
s_lshl1_add_u32 {s(sA)}, {s(sT[1])}, {s(sT[3])}
s_and_b32 {s(sGRP)}, {s(sT[2])}, 7
s_mov_b32 {s(WR_+2)}, 2101248
s_mov_b32 {s(WR_+3)}, 0x20000
s_mov_b32 {s(WI_+2)}, 2101248
s_mov_b32 {s(WI_+3)}, 0x20000
s_cmp_lg_u32 {s(sW)}, {SPW}
s_cbranch_scc1 L_nogather
v_lshrrev_b32 v9, 2, {v(c_)}
v_and_b32 v10, 1, {v(c_)}
v_lshl_add_u32 v9, v9, 1, v10
v_and_b32 v10, 2, {v(c_)}
v_lshl_add_u32 v9, v10, 2, v9
v_mul_u32_u24 v9, 1026, v9
s_mul_i32 {s(sT[3])}, {s(sRHO)}, 16416
buffer_load_ushort v11, v9, {srd(WR_)}, {s(sT[3])} offen offset:1024
buffer_load_ushort v12, v9, {srd(WI_)}, {s(sT[3])} offen offset:1024
L_nogather:
s_mul_i32 {s(sWB)}, {s(sA)}, 1026
s_lshl_b32 {s(sT[0])}, {s(sGRP)}, 7
s_add_u32 {s(sWB)}, {s(sWB)}, {s(sT[0])}
s_andn2_b32 {s(sWB)}, {s(sWB)}, 15
v_add_u32 {v(PH)}, {s(sW)}, {v(vL)}
v_mul_u32_u24 {v(PH+1)}, 57, {v(PH)}
v_lshrrev_b32 {v(PH+1)}, 9, {v(PH+1)}
v_mul_u32_u24 {v(PH+1)}, {16416-144}, {v(PH+1)}
v_lshl_add_u32 {v(aWM)}, {v(PH)}, 4, {v(PH+1)}
v_bfe_u32 {v(PH)}, {v(vL)}, 2, 2
v_lshl_add_u32 {v(PH)}, {v(H_)}, 2, {v(PH)}
v_lshl_add_u32 {v(PH)}, {v(PH)}, 6, {s(sW12)}
v_and_b32 {v(PH+2)}, 16, {v(vL)}
v_lshl_add_u32 {v(PH)}, {v(PH+2)}, 1, {v(PH)}
v_and_b32 {v(PH+2)}, 3, {v(vL)}
v_lshl_add_u32 {v(aTR)}, {v(PH+2)}, 3, {v(PH)}
""")
stamp('setup', (4,))
WP = OPT['wp']
aWN = GR + 3
def w_pair(es):
    global aWM
    w_base(sW)
    for e in es: w_piece(e)
    A(f"s_add_u32 {s(sT[12])}, {s(sT[12])}, {28*16416}")
    A(f"s_add_u32 {s(sT[13])}, {s(sT[13])}, 4096")
    keep, aWM = aWM, aWN
    for e in es: w_piece(e)
    aWM = keep
WNSET = f"""
v_add_u32 {v(PH+20)}, {s(sW)}, {v(vL)}
v_add_u32 {v(PH+20)}, 4, {v(PH+20)}
v_mul_u32_u24 {v(PH+21)}, 57, {v(PH+20)}
v_lshrrev_b32 {v(PH+21)}, 9, {v(PH+21)}
v_mul_u32_u24 {v(PH+21)}, {16416-144}, {v(PH+21)}
v_lshl_add_u32 {v(aWN)}, {v(PH+20)}, 4, {v(PH+21)}
"""
NX = 0
if WP == 0:
    NX = NE
    w_base(sW)
    for e in range(NE):
        if e == NEA:
            A(f"s_cmp_eq_u32 {s(sM)}, 0")
            A("s_cbranch_scc1 L_noearly")
        w_piece(e)
    A.label("L_noearly")
def wait_m(lbl, add):
    na = NEA + (1 if XP_ & 2 and lbl != "L_wm2" else 0)
    A(f"s_waitcnt vmcnt({max(NE, na)+add})")
    if na != NE:
        A(f"s_cmp_eq_u32 {s(sM)}, {1 if na < NE else 0}")
        A(f"s_cbranch_scc1 {lbl}")
        A(f"s_waitcnt vmcnt({min(NE, na)+add})")
        A.label(lbl)
stamp("wiss", (4,))
L = lambda t: [x.strip() for x in t.strip().split("\n")]
SETA = L(f"""
s_mul_i32 {s(sT[0])}, {s(sP)}, {PS}
s_add_u32 {s(sT[0])}, {s(sT[0])}, {EXOFF}
v_mul_u32_u24 {v(PH+4)}, 20, {v(PH+2)}
v_lshrrev_b32 {v(PH+5)}, 2, {v(F_)}
v_mul_u32_u24 {v(PH+6)}, 160, {v(H_)}
v_add3_u32 {v(PH+4)}, {v(PH+4)}, {v(PH+5)}, {v(PH+6)}
v_lshl_add_u32 {v(aP)}, {v(PH+4)}, 3, {s(sT[0])}
v_sub_u32 {v(PH+3)}, 32, {v(F_)}
v_and_b32 {v(PH+4)}, 3, {v(PH+3)}
v_mul_u32_u24 {v(PH+4)}, 20, {v(PH+4)}
v_lshrrev_b32 {v(PH+5)}, 2, {v(PH+3)}
v_sub_u32 {v(PH+6)}, 160, {v(PH+6)}
v_add3_u32 {v(PH+4)}, {v(PH+4)}, {v(PH+5)}, {v(PH+6)}
v_lshl_add_u32 {v(aQe)}, {v(PH+4)}, 3, {s(sT[0])}
v_and_b32 {v(PH+3)}, 32, {v(PH+3)}
v_lshl_add_u32 {v(aQo)}, {v(PH+3)}, 4, {v(aQe)}
v_lshrrev_b32 {v(PH)}, 1, {v(c_)}
v_and_b32 {v(PH+1)}, 1, {v(PH)}
s_bfe_u32 {s(sT[0])}, {s(sRHO)}, 0x10002
v_and_b32 {v(PH+2)}, 1, {v(c_)}
v_xor_b32 {v(PH+2)}, {s(sT[0])}, {v(PH+2)}
v_sub_u32 {v(PH+2)}, {v(PH+2)}, {v(PH+1)}
v_cvt_f32_i32 {v(PH+2)}, {v(PH+2)}
v_mov_b32 {v(PH+3)}, {fbits(0.125)}
v_fmamk_f32 {v(PH+2)}, {v(PH+2)}, {fbits(0.25)}, {v(PH+3)}
v_mul_u32_u24 {v(PH+1)}, 0x8000, {v(PH+1)}
v_lshl_or_b32 {v(PH+1)}, {v(PH+1)}, 16, {v(PH+1)}
v_cvt_f32_u32 {v(PH)}, {v(PH)}
""")
SETB = L(f"""
v_add_f32 {v(PH+3)}, {fbits(8.0)}, {v(PH)}
v_lshl_add_u32 {v(PH+4)}, {v(g_)}, 8, {s(sSB)}
v_cvt_f32_u32 {v(PH+4)}, {v(PH+4)}
v_mul_f32 {v(PH+4)}, {fbits(1/2048)}, {v(PH+4)}
v_add_f32 {v(PH+5)}, {fbits(1/16)}, {v(PH+4)}
""")
for k in range(4): SETB.append(f"v_fma_f32 {v(PH+8+3*k)}, {v(PH+4+(k&1))}, {v(PH if k < 2 else PH+3)}, {v(PH+2)}")
for k in range(4): SETB += [f"v_cos_f32 {v(PH+9+3*k)}, {v(PH+8+3*k)}", f"v_sin_f32 {v(PH+10+3*k)}, {v(PH+8+3*k)}"]
SETC = []
for k in range(4):
    t = PH + 8 + 3*k
    SETC += [CVT(M3+2*k, t+1, t+2), CVT(M3+2*k+1, t+2, t+1), f"v_xor_b32 {v(M3+2*k+1)}, {v(PH+1)}, {v(M3+2*k+1)}"]
SETD = L(f"""
s_lshl_b32 {s(sM8)}, {s(sM)}, 3
s_mul_i32 {s(sCM)}, {s(sM)}, {128*CP}
s_add_u32 {s(sCM)}, {s(sCM)}, {CB}
s_mov_b32 {s(sEXP)}, 0
s_mov_b32 {s(sONE)}, 1
s_bfe_u32 {s(sC1)}, {s(sRHO)}, 0x20003
s_lshl2_add_u32 {s(sC1)}, {s(sW)}, {s(sC1)}
s_mul_i32 {s(sC1)}, {s(sC1)}, {CP}
s_add_u32 {s(sC1)}, {s(sC1)}, {s(sCM)}
s_lshr_b32 {s(sC2)}, {s(sRHO)}, 4
s_lshl3_add_u32 {s(sC2)}, {s(sW)}, {s(sC2)}
s_mul_i32 {s(sC2)}, {s(sC2)}, {CP}
s_add_u32 {s(sC2)}, {s(sC2)}, {s(sCM)}
s_add_u32 {s(sC2)}, {s(sC2)}, {32*CP}
s_mov_b32 {s(WS_+2)}, {WSZ}
s_mov_b32 {s(WS_+3)}, 0x20000
s_mov_b32 {s(OUT_+2)}, 8388608
s_mov_b32 {s(OUT_+3)}, 0x20000
s_lshl_b32 {s(sS1[0])}, {s(sO[0])}, 1
s_lshl_b32 {s(sT[3])}, {s(sM)}, 11
s_add_u32 {s(sS1[0])}, {s(sS1[0])}, {s(sT[3])}
s_add_u32 {s(sS1[1])}, {s(sS1[0])}, {8*AROW}
s_mul_i32 {s(sT[3])}, {s(sW)}, 640
s_add_u32 {s(sT[3])}, {s(sT[3])}, {EXOFF}
v_mul_u32_u24 {v(aRD)}, {2*PS}, {v(g_)}
v_lshl_add_u32 {v(aRD)}, {v(c_)}, 3, {v(aRD)}
v_add_u32 {v(aRD)}, {s(sT[3])}, {v(aRD)}
v_lshlrev_b32 {v(aST)}, 9, {v(g_)}
v_lshl_add_u32 {v(aST)}, {v(c_)}, 4, {v(aST)}
v_mov_b32 {v(vSY)}, {SYOFF}
v_lshlrev_b32 {v(vPG)}, 2, v0
v_add_u32 {v(vPG)}, {PGOFF}, {v(vPG)}
v_mov_b32 {v(GR+6)}, 0
v_mov_b32 {v(GR+7)}, 0
v_mov_b32 v237, 0
v_mov_b32 v242, 0
""")
for t_ in SETD: A(t_)
if OPT['sb']:
    mv = lambda t: re.sub(r"v(2[23]\d|24[0-3])\b", lambda m_: "v%d" % (int(m_.group(1)) - 32), t)
    for t_ in SETA[16:] + SETB + SETC: A(mv(t_))
    SETA = SETA[:16] + ["s_nop 0"] * 12; SETB = []; SETC = []
A(f"""
ds_write_b64 {v(vSY)}, {v(GR+6,2)}
ds_write_b64 {v(vSY)}, {v(GR+6,2)} offset:8
ds_write_b32 {v(vPG)}, {v(GR+6)}
s_mul_i32 {s(sT[3])}, {s(sRHO)}, {CP}
s_add_u32 {s(sT[3])}, {s(sT[3])}, {s(sCM)}
""")
wait_m("L_wm0", 2)
A(f"s_cmp_eq_u32 {s(sW)}, {SPW}")
A("s_cbranch_scc1 L_xw1")
wait_m("L_wm1", 0)
A.label("L_xw1")
if OPT['p1p'] == 2: A("s_setprio 1")
if OPT['p1p'] == 1:
    A(f"s_cmp_lt_u32 {s(sW)}, 4")
    A("s_cbranch_scc1 L_np")
    A("s_setprio 1")
    A.label("L_np")
stamp("x", (1, 2, 4))
for comp, dst in ((0, XR), (1, XI)):
    for t in range(2):
        for j in range(2):
            A(f"ds_read_b64_tr_b16 {v(dst+4*t+2*j,2)}, {v(aTR)} offset:{comp*2048+t*1024+j*512}")
A(f"s_or_b32 {s(sT[0])}, {s(sW)}, {s(sM)}" if OPT['bi'] and STAG else f"s_cmp_lg_u32 {s(sW)}, 0")
A("s_waitcnt lgkmcnt(0)")
stamp("tr", (2, 4))
TAGI = [f"s_mul_i32 {s(sTAG)}, {s(sE)}, 0x9E3779B1", f"s_add_u32 {s(sTAG)}, {s(sTAG)}, 0x7F4A7C15"]
m32(D1R, XR, FC, None)
A(f"""
s_cbranch_scc1 L_e1
{TAGI[0]}
{TAGI[1]}
s_atomic_swap_x2 {s(sEXP,2)}, {s(WS_,2)}, {s(sT[3])}
s_branch L_e2
L_e1:
s_load_dword {s(sE)}, {s(WS_,2)}, {s(sT[6])}
L_e2:
""")
weave([M32(D1R, XR+4, FC+4, D1R), M32(D1R, XI, FS, D1R), M32(D1R, XI+4, FS+4, D1R), M32(D1I, XR, FN, None)],
      SETA[:24] if not OPT['sb'] else SETA[:16], 6 if not OPT['sb'] else [3, 3, 5, 5])
weave([M32(D1I, XR+4, FN+4, D1I), M32(D1I, XI, FC, D1I), M32(D1I, XI+4, FC+4, D1I)], (lambda t: t[:12] + ["s_setprio 0"] + t[12:] if OPT['p1p'] == 2 else t)(TW1(D1R, False)), [6, 6, 99])
stamp("m1", (2,))
for t_ in TW2(D1I, XR, XI, False, 0, 8): A(t_)
if not OPT['sb']: A(SETA[24])
stamp("tw", (2,))
weave([M32(D2R, FC, XR, None), M32(D2I, FN, XR, None), M32(D2R, FS, XI, D2R), M32(D2I, FC, XI, D2I)], TW2(D1I, XR, XI, False, 8, 16) + (SETA[25:26] if not OPT['sb'] else []), [6, 6, 6, 7])
weave([M32(D2R, FC+4, XR+4, D2R), M32(D2I, FN+4, XR+4, D2I), M32(D2R, FS+4, XI+4, D2R), M32(D2I, FC+4, XI+4, D2I)], SETA[26:] + SETB + SETC[:7] if not OPT['sb'] else [], [6, 5, 3, 99])
stamp("m2", (2,))
for i in range(16):
    cvt(TMP+i, D2R+i, D2I+i)
stamp("cv", (2,))
for i in range(16):
    kd2 = 8*(i >> 2) + (i & 3)
    if i < 8:
        A(f"ds_write_b32 {v(aP)}, {v(TMP+i)} offset:{(80*(kd2>>1)+8*(kd2&1))*8}")
    else:
        e = 31 - kd2 - 4
        A(f"ds_write_b32 {v(aQo if e & 1 else aQe)}, {v(TMP+i)} offset:{(80*(e>>1)+8*(e&1))*8+4}")
A(f"""
s_mov_b64 exec, 1
ds_write_b32 {v(aP)}, {v(TMP)} offset:4
ds_write_b32 {v(aP)}, {v(TMP+8)} offset:{640*8}
s_mov_b64 exec, -1
""")
stamp("wr", (2,))
for t_ in SETC[7:]: A(t_)
if WP == 1:
    A(f"s_cmp_ge_u32 {s(sW)}, 4")
    A("s_cbranch_scc1 L_nowp")
    A(WNSET)
    w_pair(range(NE))
    A.label("L_nowp")
A(f"""
v_mul_u32_u24 {v(PH)}, {2*PS}, {v(g_)}
v_lshlrev_b32 {v(PH+2)}, 4, {v(g_)}
s_cmp_lg_u32 {s(sW)}, {SPW}
s_cbranch_scc1 L_nosp0
s_lshl4_add_u32 {s(sT[0])}, {s(sM8)}, {s(sRHO)}
s_lshl_b32 {s(sT[0])}, {s(sT[0])}, 7
s_add_u32 {s(sT[0])}, {s(sT[0])}, {XB}
v_lshlrev_b32 {v(PH+1)}, 2, {v(vL)}
""")
wait_m("L_wm2", 0)
A(f"""
v_lshl_or_b32 v11, v12, 16, v11
s_mov_b64 exec, 0xffff
buffer_store_dword v11, {v(PH+1)}, {srd(WS_)}, {s(sT[0])} offen offset:64 sc1
s_mov_b64 exec, -1
L_nosp0:
s_waitcnt lgkmcnt(0)
""")
if OPT['p1p'] == 1: A("s_setprio 0")
stamp("wrd", (2,))
A("s_barrier")
stamp("bar1", (1, 2, 4))
for t in range(4):
    for jj in range(2):
        A(f"ds_read_b64 {v(XR+4*t+2*jj,2)}, {v(aRD)} offset:{160*t+PS*jj}")
A(f"ds_read_b64 {v(D2I,2)}, {v(PH)} offset:{EXOFF+640*8}")
A(f"ds_read_b64 {v(D2I+2,2)}, {v(PH)} offset:{EXOFF+640*8+PS}")
for t_ in TAGI: A(t_)
for t in range(4):
    A(f"s_waitcnt lgkmcnt({8-2*t})")
    m16(D1R+8*t, M3, XR+4*t, None)
for t in range(4):
    m16(D1R+8*t+4, M3+4, XR+4*t, None)
A("s_waitcnt lgkmcnt(0)")
peek(sC1)
for mt in range(2):
    for al in range(2):
        o = TMP + 4 + (mt*2+al)*4
        d = D1R + 4*mt + 2*al
        cvt(o, d, d+8); cvt(o+2, d+1, d+9)
        if mt == 0: m16(D2R+4*al, M3+4*al, D2I, None)
        cvt(o+1, d+16, d+24); cvt(o+3, d+17, d+25)
    for al in range(2):
        o = TMP + 4 + (mt*2+al)*4
        A(f"buffer_store_dwordx4 {v(o,4)}, {v(aST)}, {srd(OUT_)}, {s(sS1[mt])} offen offset:{al*256} sc1")
A(f"""
s_cmp_lg_u32 {s(sW)}, {SPW}
s_cbranch_scc1 L_nosp1
""")
cvt(TMP, D2R, D2R+2); cvt(TMP+1, D2R+4, D2R+6); cvt(TMP+2, D2R+1, D2R+3); cvt(TMP+3, D2R+5, D2R+7)
A(f"""
s_mov_b32 exec_lo, 0x00010001
s_mov_b32 exec_hi, 0x00010001
buffer_store_dwordx4 {v(TMP,4)}, {v(PH+2)}, {srd(WS_)}, {s(sT[0])} offen sc1
s_mov_b64 exec, -1
L_nosp1:
""")
stamp("st1", (2,))
sPH = sE
A(f"""
s_barrier
""")
S3P = OPT['s3p']
def early_setup():
    A(f"""
    s_mov_b32 {s(sPH)}, 2
    s_cmp_ge_u32 {s(sW)}, 4
    s_cbranch_scc1 L_setup3
    L_ret1:
    """)
if S3P == 1: early_setup()
A(f"s_mov_b32 {s(sPH)}, 1")
GH = OPT['gh']
if GH:
    A(f"""
    s_cmp_lt_u32 {s(sW)}, 4
    s_cbranch_scc1 L_nogen
    s_sub_u32 {s(sI)}, {s(sW)}, {4 if GH == 2 else 0}
    L_gen:
    """)
    if STAG == 2:
        A(f"s_cmp_lg_u32 {s(sM)}, 0")
        A("s_cbranch_scc1 L_genskip")
    gen_m2(sI)
    A.label("L_genskip")
    if GH == 2:
        A(f"""
        s_add_u32 {s(sI)}, {s(sI)}, 4
        s_cmp_lt_u32 {s(sI)}, 8
        s_cbranch_scc1 L_gen
        """)
    lds_post(12)
    if GH == 1:
        A(f"s_cmp_lt_u32 {s(sW)}, 4")
        A("s_cbranch_scc1 L_genret")
    A.label("L_nogen")
validate("L_val1", sC1)
A("s_waitcnt vmcnt(0)")
signal(sC1)
stamp("fl1")
if S3P == 2:
    early_setup()
    A(f"s_mov_b32 {s(sPH)}, 1")
aW, aF, aRe, aIm, aO, aD = vT[2:8]
sFA, sFB, sFC, sDST, sOI, sDONE, sNEW, sMK = sT[4:12]
A(f"""
s_cmp_ge_u32 {s(sW)}, 4
s_cbranch_scc1 L_helper
""")
A(f"""
v_add_u32 {v(PH)}, 8, {v(vL)}
v_mul_u32_u24 {v(PH+1)}, 57, {v(PH)}
v_lshrrev_b32 {v(PH+1)}, 9, {v(PH+1)}
v_mul_u32_u24 {v(PH+1)}, {16416-144}, {v(PH+1)}
v_lshl_add_u32 {v(aWT)}, {v(PH)}, 4, {v(PH+1)}
v_add_u32 {v(aWT)}, {56*16416}, {v(aWT)}
""")
w_piece(4)
if WP == 0: A(WNSET)
w_pair(range(NE, 4))
if NEA != NE:
    A(f"s_cmp_lg_u32 {s(sM)}, 0")
    A("s_cbranch_scc1 L_nolate")
    w_pair(range(NEA, NE))
    A.label("L_nolate")
if GH == 1:
    A(f"s_mov_b32 {s(sI)}, {s(sW)}")
    A("s_branch L_gen")
    A.label("L_genret")
if GH == 0:
    if STAG == 2:
        A(f"s_cmp_lg_u32 {s(sM)}, 0")
        A("s_cbranch_scc1 L_genskip")
    A(f"s_mov_b32 {s(sI)}, {s(sW)}")
    A.label("L_gen")
    gen_m2(sI)
    A(f"""
    s_add_u32 {s(sI)}, {s(sI)}, 4
    s_cmp_lt_u32 {s(sI)}, 8
    s_cbranch_scc1 L_gen
    L_genskip:
    """)
    lds_post(12)
A(f"""
s_mov_b32 {s(sFA)}, 0
s_and_b32 {s(sFC)}, {s(sA)}, 7
s_mov_b32 {s(sFB)}, 0
s_mul_i32 {s(sOI)}, {s(sW)}, {OS}
s_add_u32 {s(sOI)}, {s(sOI)}, {WOFF}
v_lshrrev_b32 {v(aRe)}, 2, {v(vL)}
v_and_b32 {v(aF)}, 3, {v(aRe)}
v_xor_b32 {v(aF)}, {s(sW)}, {v(aF)}
v_lshlrev_b32 {v(aRe)}, 8, {v(aRe)}
v_lshl_add_u32 {v(aRe)}, {v(aF)}, 6, {v(aRe)}
v_and_b32 {v(aF)}, 3, {v(vL)}
v_lshl_add_u32 {v(aRe)}, {v(aF)}, 4, {v(aRe)}
s_lshl_b32 {s(sT[0])}, {s(sW)}, 5
s_add_u32 {s(sT[0])}, {s(sT[0])}, {WOFF}
v_min_u32 {v(aW)}, 2, {v(g_)}
v_mul_u32_u24 {v(aF)}, 144, {v(c_)}
v_lshl_add_u32 {v(aW)}, {v(aW)}, 4, {v(aF)}
v_add_u32 {v(aW)}, {s(sT[0])}, {v(aW)}
""")
A.label("L_p2common")
A(f"v_lshlrev_b32 {v(aF)}, 4, {v(vL)}")
A(f"v_add_u32 {v(aF)}, {M2OFF}, {v(aF)}")
SEL = DNR
A(f"""
v_lshlrev_b32 {v(DIM)}, {s(sFA)}, {v(c_)}
v_lshlrev_b32 {v(DIM+1)}, 3, {v(g_)}
v_sub_u32 {v(DIM)}, {v(DIM)}, {v(DIM+1)}
v_add_u32 {v(DIM)}, {s(sFC)}, {v(DIM)}
v_add_u32 {v(DIM+1)}, {s(sFB)}, {v(DIM)}
v_mov_b32 {v(DIM+4)}, 0x3500
""")
for q in range(2):
    A(f"v_and_b32 {v(DIM+2)}, 1, {v(DIM+q)}")
    A(f"v_lshlrev_b32 {v(DIM+2)}, 4, {v(DIM+2)}")
    A(f"v_lshlrev_b32 {v(DIM+2)}, {v(DIM+2)}, {v(DIM+4)}")
    A(f"v_ashrrev_i32 {v(DIM+3)}, 1, {v(DIM+q)}")
    for j in range(4):
        A(f"v_cmp_eq_u32 vcc, {j}, {v(DIM+3)}")
        A(f"v_cndmask_b32 {v(SEL+4*q+j)}, 0, {v(DIM+2)}, vcc")
A(f"""
v_and_b32 {v(aIm)}, 1, {v(g_)}
v_lshl_add_u32 {v(aRe)}, {v(aIm)}, 3, {v(aRe)}
v_xor_b32 {v(aIm)}, 8, {v(aRe)}
v_bfe_u32 {v(aO)}, {v(vL)}, 1, 2
v_xor_b32 {v(aO)}, {v(aO)}, {v(g_)}
v_lshlrev_b32 {v(aO)}, 4, {v(aO)}
v_lshl_add_u32 {v(aO)}, {v(c_)}, 6, {v(aO)}
v_add_u32 {v(aO)}, {s(sOI)}, {v(aO)}
v_mov_b32 {v(vT[9])}, 1
s_mov_b32 {s(sT[0])}, 0x80008000
s_mov_b32 {s(sDONE)}, 0
""")
lds_wait("L_fr", 12, 8 if GH == 1 else 4)
for f in range(16):
    A(f"ds_read_b128 {v(FR+4*f,4)}, {v(aF)} offset:{f*1024}")
A(f"""
s_waitcnt vmcnt(0)
s_cmp_lt_u32 {s(sW)}, 4
s_cbranch_scc1 L_wreg
""")
XP = [WR_, WR_+2, WI_, WI_+2]
A(f"""
s_mov_b32 {s(sCNT)}, 0x8000
L_pollx:
""")
for i in range(4):
    A(f"s_mov_b64 {s(XP[i],2)}, 0")
    A(f"s_atomic_or_x2 {s(XP[i],2)}, {s(WS_,2)}, {s(sT[2])} offset:{(SPW*4+i)*CP} glc")
A(f"""
s_sub_u32 {s(sCNT)}, {s(sCNT)}, 1
s_cbranch_scc1 L_pollx_out
s_waitcnt lgkmcnt(0)
""")
for i in range(4):
    A(f"s_cmp_lg_u32 {s(XP[i]+1)}, {s(sTAG)}")
    A("s_cbranch_scc1 L_pollx")
A(f"""
s_and_b32 {s(XP[0])}, {s(XP[0])}, {s(XP[1])}
s_and_b32 {s(XP[2])}, {s(XP[2])}, {s(XP[3])}
s_and_b32 {s(XP[0])}, {s(XP[0])}, {s(XP[2])}
s_cmp_lg_u32 {s(XP[0])}, 32
s_cbranch_scc1 L_pollx
L_pollx_out:
s_mov_b32 {s(sT[2])}, {s(sDST)}
""")
stamp("pol1")
for n in range(8):
    A(f"buffer_load_dwordx4 {v(ER+4*n,4)}, {v(aW)}, {srd(WS_)}, {s(sT[2])} offen offset:64 sc1")
    A(f"buffer_load_dwordx4 {v(aD)}, {srd(WS_)}, {s(sT[2])} offen sc1 lds")
    if n < 7:
        A(f"s_add_u32 m0, m0, 4096")
        A(f"s_add_u32 {s(sT[2])}, {s(sT[2])}, 2048")
A("s_setprio 3" if OPT['xprio'] else "s_setprio 0")
for t in range(8):
    A(f"s_waitcnt vmcnt({14-2*t})")
    m16(WRF+4*t, ER+4*t, SEL, None); m16(WIF+4*t, ER+4*t, SEL+4, None)
A(f"s_mov_b32 {s(sDONE)}, 0x04040404")
A("s_waitcnt lgkmcnt(0)")
A("s_branch L_f0")
A.label("L_wreg")
lds_post(0)

lds_wait("L_wr", 0, 8)
for t in range(16):
    if t == 12: A("s_waitcnt lgkmcnt(8)")
    A(f"ds_read_b128 {v(ER+4*t,4)}, {v(aW)} offset:{t*2304}")
lds_post(8)
for t in range(16):
    if t >= 4: A(f"s_waitcnt lgkmcnt({16-t})")
    m16(WRF+4*t, ER+4*t, SEL, None)
stamp("wcv", (1,))
def TRQ(u):
    for j in range(2): A(f"ds_read_b64_tr_b16 {v(DRE+4*u+2*j,2)}, {v(aRe)} offset:{u*8192+j*4096}")
    for j in range(2): A(f"ds_read_b64_tr_b16 {v(DIM+4*u+2*j,2)}, {v(aIm)} offset:{u*8192+j*4096}")
    A(f"ds_read_b32 {v(vS1)}, {v(vSY)} offset:{4 if u < 3 else 8}")
def spin(u):
    A(f"""
    s_mov_b32 {s(sCNT)}, 0x40000
    L_sp{u}:
    ds_read_b32 {v(vS1)}, {v(vSY)} offset:4
    s_sub_u32 {s(sCNT)}, {s(sCNT)}, 1
    s_cbranch_scc1 L_sp{u}_out
    s_waitcnt lgkmcnt(0)
    v_readfirstlane_b32 {s(sMK)}, {v(vS1)}
    s_bitcmp1_b32 {s(sMK)}, {8*u+2}
    s_cbranch_scc0 L_sp{u}
    L_sp{u}_out:
    """)
IFR = lambda u: [f"ds_read_b128 {v(FR+4*f,4)}, {v(aF)} offset:{16384+f*1024}" for f in range(4*u, 4*u+4)]
if OPT['fw']:
    def TR4(u):
        return [f"ds_read_b64_tr_b16 {v(DRE+4*u+2*j,2)}, {v(aRe)} offset:{u*8192+j*4096}" for j in range(2)] + \
               [f"ds_read_b64_tr_b16 {v(DIM+4*u+2*j,2)}, {v(aIm)} offset:{u*8192+j*4096}" for j in range(2)]
    def BLK(u):
        fc = lambda mt: FR + (u*4 + mt*2) * 4
        fs = lambda mt: FR + (u*4 + mt*2 + 1) * 4
        e = lambda mt: (u*2 + mt) * 4
        return [M16(ER+e(0), fc(0), DRE+4*u, None), M16(ER+e(1), fc(1), DRE+4*u, None),
                M16(EI+e(0), fc(0), DIM+4*u, None), M16(EI+e(1), fc(1), DIM+4*u, None),
                M16(ER+e(0), fs(0), DIM+4*u, ER+e(0)), M16(ER+e(1), fs(1), DIM+4*u, ER+e(1)),
                M16(EI+e(0), fs(0), DNR+4*u, EI+e(0)), M16(EI+e(1), fs(1), DNR+4*u, EI+e(1))]
    XO = lambda u: [f"v_xor_b32 {v(DNR+4*u+j)}, {s(sT[0])}, {v(DRE+4*u+j)}" for j in range(4)]
    if OPT['fw'] == 1:
        lds_wait("L_go", 8, 8)
        A.label("L_f0")
        stamp("dat1", (1, 3))
        for t_ in TR4(0) + TR4(1) + TR4(2): A(t_)
        A("s_waitcnt lgkmcnt(10)")
        weave(BLK(0), XO(0) + ["s_waitcnt lgkmcnt(8)"] + TR4(3), [2, 3, 1, 1, 1, 1, 0, 0])
        A("s_waitcnt lgkmcnt(8)")
        weave(BLK(1), XO(1), 2)
        A("s_waitcnt lgkmcnt(0)")
        weave(BLK(2), XO(2) + IFR(0) + IFR(1)[:2], [2, 2, 1, 1, 1, 1, 1, 1])
        weave(BLK(3), XO(3) + IFR(1)[2:] + IFR(2), [2, 2, 1, 1, 1, 1, 1, 1])
    else:
        lds_wait("L_go", 4, 4)
        A.label("L_f0")
        for t_ in TR4(0) + TR4(1): A(t_)
        A(f"ds_read_b32 {v(vS1)}, {v(vSY)} offset:8")
        A("s_waitcnt lgkmcnt(7)")
        weave(BLK(0)[:2], XO(0), 2)
        A("s_waitcnt lgkmcnt(0)")
        A(f"v_or_b32 {v(vS1)}, {s(sDONE)}, {v(vS1)}")
        A(BLK(0)[2])
        A(f"v_cmp_gt_u32 vcc, 8, {v(vS1)}")
        A(BLK(0)[3])
        A("s_and_b64 vcc, vcc, vcc")
        A("s_cbranch_scc0 L_go2_out")
        lds_wait("L_go2", 8, 8)
        stamp("dat1", (1, 3))
        weave(BLK(0)[4:], TR4(2) + TR4(3), 2)
        weave(BLK(1), XO(1), 2)
        A("s_waitcnt lgkmcnt(0)")
        weave(BLK(2), XO(2) + IFR(0) + IFR(1)[:2], [2, 2, 1, 1, 1, 1, 1, 1])
        weave(BLK(3), XO(3) + IFR(1)[2:] + IFR(2), [2, 2, 1, 1, 1, 1, 1, 1])
    for t_ in IFR(3): A(t_)
    A("s_nop 1")
else:
    spin(0)
    A.label("L_f0")
    TRQ(0)
    for u in range(4):
        A("s_waitcnt lgkmcnt(0)")
        A(f"v_readfirstlane_b32 {s(sMK)}, {v(vS1)}")
        if u == 3: stamp("dat1", (1, 3))
        fc = lambda mt: FR + (u*4 + mt*2) * 4
        fs = lambda mt: FR + (u*4 + mt*2 + 1) * 4
        e = lambda mt: (u*2 + mt) * 4
        m16(ER+e(0), fc(0), DRE+4*u, None)
        A(f"s_or_b32 {s(sMK)}, {s(sMK)}, {s(sDONE)}")
        if u < 3:
            A(f"s_bitcmp1_b32 {s(sMK)}, {8*u+10}")
            A(f"s_cbranch_scc0 L_nt{u}")
            TRQ(u+1)
            A.label(f"L_nt{u}")
        xo = [f"v_xor_b32 {v(DNR+4*u+j)}, {s(sT[0])}, {v(DRE+4*u+j)}" for j in range(4)]
        weave([M16(ER+e(1), fc(1), DRE+4*u, None),
               M16(EI+e(0), fc(0), DIM+4*u, None), M16(EI+e(1), fc(1), DIM+4*u, None),
               M16(ER+e(0), fs(0), DIM+4*u, ER+e(0)), M16(ER+e(1), fs(1), DIM+4*u, ER+e(1)),
               M16(EI+e(0), fs(0), DNR+4*u, EI+e(0)), M16(EI+e(1), fs(1), DNR+4*u, EI+e(1))],
              (IFR(u-1) if u else []) + xo, 2)
        if u < 3:
            A(f"s_cbranch_scc1 L_ok{u}")
            spin(u+1)
            TRQ(u+1)
            A.label(f"L_ok{u}")
    for t_ in IFR(3): A(t_)
    A(f"""
    s_bitcmp1_b32 {s(sMK)}, 2
    s_cbranch_scc1 L_cv_out
    """)
    lds_wait("L_cv", 8, 4)
stamp("fwd", (3,))
A("s_nop 1")
TT = DNR
def pk(op, d, a, b, c=None, na=False, nb=False):
    ops = f"{v(d,2)}, {v(a,2)}, {v(b,2)}" + (f", {v(c,2)}" if c is not None else "")
    n = [int(na), int(nb)] + ([0] if c is not None else [])
    mod = f" neg_lo:{n} neg_hi:{n}".replace(", ", ",") if (na or nb) else ""
    A(f"v_pk_{op}_f32 {ops}{mod}")
add = lambda d, a, b: pk("add", d, a, b)
sub = lambda d, a, b: pk("add", d, a, b, nb=True)
A.raw(".p2align 3")
for mt in range(2):
    for rp in range(2):
        er = lambda u: ER + (u*2+mt)*4 + 2*rp
        ei = lambda u: EI + (u*2+mt)*4 + 2*rp
        wr = lambda q: WRF + (q*2+mt)*4 + 2*rp
        wi = lambda q: WIF + (q*2+mt)*4 + 2*rp
        tr = lambda i: TT + 4*i
        ti = lambda i: TT + 4*i + 2
        add(tr(0), er(0), er(2)); add(ti(0), ei(0), ei(2)); sub(tr(1), er(0), er(2)); sub(ti(1), ei(0), ei(2))
        add(tr(2), er(1), er(3)); add(ti(2), ei(1), ei(3)); sub(tr(3), er(1), er(3)); sub(ti(3), ei(1), ei(3))
        add(er(0), tr(0), tr(2)); add(ei(0), ti(0), ti(2)); sub(er(2), tr(0), tr(2)); sub(ei(2), ti(0), ti(2))
        add(er(1), tr(1), ti(3)); sub(ei(1), ti(1), tr(3)); sub(er(3), tr(1), ti(3)); add(ei(3), ti(1), tr(3))
        for q in range(4):
            pk("mul", tr(q), er(q), wr(q)); pk("mul", ti(q), er(q), wi(q))
        for q in range(4):
            pk("fma", tr(q), ei(q), wi(q), tr(q), na=True); pk("fma", ti(q), ei(q), wr(q), ti(q))
        add(wr(0), tr(0), tr(2)); add(wi(0), ti(0), ti(2)); sub(wr(1), tr(0), tr(2)); sub(wi(1), ti(0), ti(2))
        add(wr(2), tr(1), tr(3)); add(wi(2), ti(1), ti(3)); sub(wr(3), tr(1), tr(3)); sub(wi(3), ti(1), ti(3))
        add(er(0), wr(0), wr(2)); add(ei(0), wi(0), wi(2)); sub(er(2), wr(0), wr(2)); sub(ei(2), wi(0), wi(2))
        sub(er(1), wr(1), wi(3)); add(ei(1), wi(1), wr(3)); add(er(3), wr(1), wi(3)); sub(ei(3), wi(1), wr(3))
def OPS(u):
    L = [CVT(DRE+4*u+j, ER+8*u+2*j, ER+8*u+2*j+1) for j in range(4)]
    L += [CVT(DIM+4*u+j, EI+8*u+2*j, EI+8*u+2*j+1) for j in range(4)]
    L += [CVT(DNR+4*u+j, EI+8*u+2*j, EI+8*u+2*j+1, True, True) for j in range(4)]
    return L
def INV(k):
    e = k*4; o = WRF + e
    return [CVT(o, ER+e, ER+e+1), CVT(o+1, ER+e+2, ER+e+3), CVT(o+2, EI+e, EI+e+1), CVT(o+3, EI+e+2, EI+e+3),
            f"ds_write_b128 {v(aO)}, {v(o,4)} offset:{k*1024}", f"ds_add_u32 {v(vPG)}, {v(vT[9])}"]
for t_ in OPS(0): A(t_)
A("s_waitcnt lgkmcnt(0)")
stamp("mid", (3,))
for k in range(8):
    u, nt = k >> 1, k & 1
    fc, fs, e = FR + (u*4 + nt*2) * 4, FR + (u*4 + nt*2 + 1) * 4, k * 4
    ops = OPS(u+1)[6*nt:6*nt+6] if u < 3 else []
    out = INV(k-1) if k >= 1 else []
    fill = ops + out
    weave([M16(ER+e, DRE+4*u, fc, None), M16(EI+e, DIM+4*u, fc, None), M16(ER+e, DNR+4*u, fs, ER+e), M16(EI+e, DRE+4*u, fs, EI+e)],
          fill, [3, 3, 2, 4] if ops and out else ([2, 2, 2, 0] if ops else [0, 0, 0, 6]))
stamp("inv", (3,))
for t_ in INV(7): A(t_)
stamp("cmp2", (1, 3))
A(f"""
s_cmp_lt_u32 {s(sW)}, 4
s_cbranch_scc1 L_setup3
""")
A(f"""
v_lshlrev_b32 {v(aO)}, 7, {v(c_)}
v_lshl_add_u32 {v(aO)}, {v(g_)}, 4, {v(aO)}
""")
for i in range(8): A(f"v_mov_b32 {v(WIF+2*i+1)}, {s(sTAG)}")
for k in range(8):
    o = WIF + 8*(k & 1)
    for e in range(4): cvt(o+2*e, ER+4*k+e, EI+4*k+e)
    for h in range(2): A(f"buffer_store_dwordx4 {v(o+4*h,4)}, {v(aO)}, {srd(WS_)}, {s(sDST)} offen offset:{(k&1)*2048+h*64} sc1")
    if k & 1: A(f"s_add_u32 {s(sDST)}, {s(sDST)}, 4096")
A(f"""
s_setprio 0
s_branch L_setup3
L_helper:
""")
if OPT['hp'] & 1: A("s_setprio 2")
lds_post(0)
A(f"""
s_cmp_eq_u32 s2, {HA}
s_cselect_b32 {s(sT[3])}, {s(sW)}, 0
s_cmp_eq_u32 s2, {HB}
s_cselect_b32 {s(sT[3])}, {s(sW)}, {s(sT[3])}
s_cmp_lg_u32 {s(sT[3])}, 4
s_cbranch_scc1 L_loader
s_mov_b32 {s(sFA)}, 1
s_mov_b32 {s(sFC)}, 0
s_mov_b32 {s(sFB)}, 1
s_cmp_eq_u32 s2, {HB}
s_cselect_b32 {s(sDST)}, 0x4000, 0
s_lshl1_add_u32 {s(sT[2])}, {s(sDST)}, {CB}
s_add_u32 {s(sDST)}, {s(sDST)}, {XB}
v_lshrrev_b32 {v(aD)}, 2, {v(vL)}
v_and_b32 {v(aW)}, 3, {v(vL)}
v_lshlrev_b32 {v(aW)}, 4, {v(aW)}
v_lshl_add_u32 {v(aD)}, {v(aD)}, 7, {v(aW)}
v_lshlrev_b32 {v(aW)}, 7, {v(c_)}
v_lshl_add_u32 {v(aW)}, {v(g_)}, 4, {v(aW)}
s_mov_b32 {s(sOI)}, {XOUT}
v_lshlrev_b32 {v(aRe)}, 4, {v(vL)}
v_add_u32 {v(aRe)}, {EXOFF}, {v(aRe)}
s_mov_b32 m0, {EXOFF}
s_branch L_p2common
L_loader:
""")
sSRC, sPL, sSG, sBIT = sT[4:8]
A(f"""
s_sub_u32 {s(sT[1])}, {s(sW)}, 4
s_and_b32 {s(sT[10])}, {s(sA)}, 8
s_add_u32 {s(sT[10])}, {s(sT[10])}, {s(sGRP)}
s_lshl_b32 {s(sT[10])}, {s(sT[10])}, 11
s_add_u32 {s(sT[10])}, {s(sT[10])}, {s(sM8)}
s_and_b32 {s(sT[9])}, {s(sA)}, 7
s_add_u32 {s(sT[10])}, {s(sT[10])}, {s(sT[9])}
s_lshl_b32 {s(sT[10])}, {s(sT[10])}, 8
s_lshl_b32 {s(sSRC)}, {s(sT[1])}, 17
s_add_u32 {s(sSRC)}, {s(sSRC)}, {s(sT[10])}
s_lshl2_add_u32 {s(sPL)}, {s(sGRP)}, {s(sT[1])}
s_mul_i32 {s(sPL)}, {s(sPL)}, {CP}
s_add_u32 {s(sPL)}, {s(sPL)}, {s(sCM)}
s_lshl_b32 m0, {s(sT[1])}, 11
s_xor_b32 {s(sSG)}, {s(sSRC)}, {65536 | (OPT['px'] << 19)}
v_lshlrev_b32 {v(aD)}, 2, {v(g_)}
v_xor_b32 {v(aD)}, {v(aD)}, {v(c_)}
v_lshlrev_b32 {v(aD)}, 4, {v(aD)}
v_lshl_add_u32 {v(aD)}, {v(g_)}, 14, {v(aD)}
""")
A(f"""
s_cmp_eq_u32 {s(sT[3])}, 5
s_cselect_b32 {s(sBIT)}, 2, 1
v_mov_b32 {v(vT[2])}, {s(sBIT)}
v_lshlrev_b32 {v(vT[3])}, 8, {v(vT[2])}
v_lshlrev_b32 {v(vT[4])}, 16, {v(vT[2])}
v_lshlrev_b32 {v(vT[5])}, 24, {v(vT[2])}
s_cbranch_scc0 L_single
s_mov_b32 {s(sEXP)}, 32
s_mov_b32 {s(sCNT)}, 0x8000
s_sub_u32 {s(sT[2])}, {s(sPL)}, {CP}
L_dual:
s_mov_b64 {s(XP[0],2)}, 0
s_atomic_or_x2 {s(XP[0],2)}, {s(WS_,2)}, {s(sT[2])} glc
""")
peek(sPL)
A(f"""
s_sub_u32 {s(sCNT)}, {s(sCNT)}, 1
s_cbranch_scc1 L_poll1_out
s_waitcnt lgkmcnt(0)
s_cmp_eq_u64 {s(XP[0],2)}, {s(sEXP,2)}
s_cbranch_scc0 L_dual
s_cmp_eq_u64 {s(sV,2)}, {s(sEXP,2)}
s_cbranch_scc1 L_poll1_out
L_single:
""")
poll("L_poll1", sPL, 32, OPT['sl1'])
stamp("pol1")
for n in range(8):
    r_ = sSG if n & 1 else sSRC
    A(f"buffer_load_dwordx4 {v(aD)}, {srd(OUT_)}, {s(r_)} offen sc1 lds")
    if n < 7: A(f"s_add_u32 m0, m0, {7168 if n & 1 else 1024}")
    if n < 6: A(f"s_add_u32 {s(r_)}, {s(r_)}, 4096")
A(f"""
s_cmp_lg_u32 {s(sT[3])}, 5
s_cbranch_scc1 L_posted
s_mov_b32 {s(sT[3])}, 0
s_mov_b32 m0, 0
s_mov_b32 {s(sSRC)}, {s(sT[10])}
s_xor_b32 {s(sSG)}, {s(sSRC)}, {65536 | (OPT['px'] << 19)}
s_branch L_poll1_out
""")
def post_rows(extra):
    A("s_mov_b64 exec, 1")
    if OPT['fw'] == 1:
        A("s_waitcnt vmcnt(0)")
        A(f"ds_add_u32 {v(vSY)}, {v(vT[2])} offset:8")
    elif OPT['fw'] == 2:
        A("s_waitcnt vmcnt(4)")
        A(f"ds_add_u32 {v(vSY)}, {v(vT[2])} offset:4")
        A("s_waitcnt vmcnt(0)")
        A(f"ds_add_u32 {v(vSY)}, {v(vT[2])} offset:8")
    else:
      for u in range(4):
        A(f"s_waitcnt vmcnt({extra+6-2*u})")
        A(f"ds_add_u32 {v(vSY)}, {v(vT[2]+u)} offset:4")
    A("s_mov_b64 exec, -1")
A.label("L_posted")
A(f"""
s_cmp_lt_u32 {s(sW)}, {8-NST}
s_cselect_b32 {s(sPH)}, 1, 0
""")
post_rows(0)
stamp("ld1")
if OPT['hp'] & 1: A("s_setprio 0")
if S3P: A("s_branch L_setup3_end")
A.label("L_setup3")
A3 = 237
aD3, aPw, aQ1, aQ0, aRd3, aSo, aQp = range(A3, A3+7)
aT = list(range(A3+9, A3+13))
sMR = 29
A(f"""
v_lshrrev_b32 {v(PH)}, 1, {v(vL)}
v_xor_b32 {v(PH)}, {v(PH)}, {v(vL)}
v_and_b32 {v(PH)}, 4, {v(PH)}
v_mul_u32_u24 {v(PH)}, 3, {v(PH)}
v_xor_b32 {v(PH)}, {v(PH)}, {v(vL)}
v_lshlrev_b32 {v(vS1)}, 4, {v(PH)}
v_add_u32 {v(vS1)}, {T1OFF}, {v(vS1)}
v_and_b32 {v(aSo)}, 15, {v(PH)}
v_lshlrev_b32 {v(aSo)}, 6, {v(aSo)}
v_and_b32 {v(PH)}, 1, {v(g_)}
v_lshl_add_u32 {v(aSo)}, {v(PH)}, 5, {v(aSo)}
v_lshrrev_b32 {v(PH)}, 1, {v(g_)}
v_lshl_add_u32 {v(aSo)}, {v(PH)}, 4, {v(aSo)}
""")
load_tables(vS1)
A(f"""
v_lshrrev_b32 {v(PH)}, 2, {v(c_)}
v_lshl_add_u32 {v(PH)}, {v(PH)}, 7, {s(sSB)}
v_cvt_f32_u32 {v(PH)}, {v(PH)}
v_mul_f32 {v(PH)}, {fbits(1/2048)}, {v(PH)}
v_add_f32 {v(PH+1)}, {fbits(0.25)}, {v(PH)}
v_and_b32 {v(PH+2)}, 1, {v(c_)}
v_cvt_f32_u32 {v(PH+2)}, {v(PH+2)}
v_mul_f32 {v(PH+2)}, {fbits(-0.25)}, {v(PH+2)}
v_add_f32 {v(PH+3)}, {fbits(-0.125)}, {v(PH+2)}
v_add_f32 {v(PH+2)}, {fbits(0.125)}, {v(PH+2)}
v_and_b32 {v(PH+4)}, 2, {v(c_)}
v_lshlrev_b32 {v(PH+4)}, 30, {v(PH+4)}
v_xor_b32 {v(PH+2)}, {v(PH+4)}, {v(PH+2)}
v_xor_b32 {v(PH+3)}, {v(PH+4)}, {v(PH+3)}
v_lshlrev_b32 {v(PH+4)}, 1, {v(g_)}
v_cvt_f32_u32 {v(PH+4)}, {v(PH+4)}
v_add_f32 {v(PH+5)}, 1.0, {v(PH+4)}
v_add_f32 {v(PH+6)}, {fbits(8.0)}, {v(PH+4)}
v_add_f32 {v(PH+7)}, {fbits(9.0)}, {v(PH+4)}
""")
for mt in range(2):
    for j in range(4):
        t = TMP + (mt*4+j)*3
        A(f"v_fma_f32 {v(t)}, {v(PH+mt)}, {v(PH+4+j)}, {v(PH+2+(j&1))}")
        A(f"v_cos_f32 {v(t+1)}, {v(t)}")
        A(f"v_sin_f32 {v(t+2)}, {v(t)}")
for mt in range(2):
    for j in range(4):
        t = TMP + (mt*4+j)*3
        cvt(M3+mt*4+j, t+1, t+2, False, True)
A(f"""
v_lshrrev_b32 {v(PH)}, 3, {v(vL)}
v_and_b32 {v(PH+1)}, 3, {v(PH)}
v_lshlrev_b32 {v(PH+1)}, 6, {v(PH+1)}
v_lshl_add_u32 {v(PH)}, {v(PH)}, 8, {v(PH+1)}
v_and_b32 {v(PH+1)}, 3, {v(vL)}
v_lshl_add_u32 {v(PH)}, {v(PH+1)}, 4, {v(PH)}
v_and_b32 {v(PH+1)}, 4, {v(vL)}
v_lshl_add_u32 {v(PH)}, {v(PH+1)}, 1, {v(PH)}
v_add_u32 {v(aT[0])}, {s(sW12)}, {v(PH)}
v_xor_b32 {v(aT[1])}, 64, {v(aT[0])}
v_xor_b32 {v(aT[2])}, 128, {v(aT[0])}
v_xor_b32 {v(aT[3])}, 192, {v(aT[0])}
v_mul_u32_u24 {v(PH)}, {PS2}, {v(g_)}
s_lshl_b32 {s(sT[0])}, {s(sW)}, 8
s_add_u32 {s(sT[1])}, {s(sT[0])}, {EX2}
s_sub_u32 {s(sT[0])}, {EX2+15*256}, {s(sT[0])}
v_lshl_add_u32 {v(aPw)}, {v(c_)}, 3, {v(PH)}
v_add_u32 {v(aPw)}, {s(sT[1])}, {v(aPw)}
v_sub_u32 {v(PH+1)}, 16, {v(c_)}
v_lshl_add_u32 {v(PH+1)}, {v(PH+1)}, 3, {v(PH)}
v_add_u32 {v(aQp)}, {s(sT[0])}, {v(PH+1)}
v_cmp_eq_u32 vcc, 0, {v(c_)}
v_mov_b32 {v(PH+2)}, 128
v_mov_b32 {v(PH+3)}, 132
v_mov_b32 {v(PH+4)}, -124
v_cndmask_b32 {v(PH+4)}, {v(PH+2)}, {v(PH+4)}, vcc
v_cndmask_b32 {v(PH+3)}, {v(PH+3)}, {v(PH+2)}, vcc
v_add_u32 {v(aQ1)}, {v(aQp)}, {v(PH+4)}
v_add_u32 {v(aQ0)}, {v(aQp)}, {v(PH+3)}
s_mul_i32 {s(sT[0])}, {s(sP)}, {PS2}
s_add_u32 {s(sT[0])}, {s(sT[0])}, {EX2}
v_and_b32 {v(PH+1)}, 31, {v(vL)}
v_lshrrev_b32 {v(PH+2)}, 5, {v(vL)}
v_lshlrev_b32 {v(PH+3)}, 9, {v(PH+2)}
v_lshl_add_u32 {v(PH+3)}, {v(PH+1)}, 3, {v(PH+3)}
v_add_u32 {v(aRd3)}, {s(sT[0])}, {v(PH+3)}
s_lshl_b32 {s(sO[0])}, {s(sP)}, 7
s_add_u32 {s(sO[0])}, {s(sO[0])}, {s(sSB)}
s_lshl_b32 {s(sO[0])}, {s(sO[0])}, 12
s_lshl_b32 {s(sO[1])}, {s(sM)}, 11
s_add_u32 {s(sO[0])}, {s(sO[0])}, {s(sO[1])}
s_add_u32 {s(sO[1])}, {s(sO[0])}, {1024*4096}
s_mov_b32 {s(sPM)}, 0x05040100
s_mov_b32 {s(sPM+1)}, 0x07060302
""")
A(f"""
v_lshlrev_b32 {v(PH)}, 2, {v(g_)}
v_xor_b32 {v(PH)}, {v(PH)}, {v(c_)}
v_lshlrev_b32 {v(PH)}, 4, {v(PH)}
v_lshl_add_u32 {v(aD3)}, {v(g_)}, 8, {v(PH)}
s_lshl_b32 {s(sMR)}, {s(sM)}, 7
s_add_u32 {s(sMR)}, {s(sMR)}, {s(sRHO)}
""")
if S3P:
    A(f"s_cmp_eq_u32 {s(sPH)}, 2")
    A("s_cbranch_scc1 L_ret1")
A(f"""
L_setup3_end:
s_cmp_lg_u32 {s(sPH)}, 0
s_cbranch_scc1 L_nosig2
""")
aR0, aR1, aS2, aPr, aS3 = vT[2:7]
sD = sT[4:5]
A(f"""
v_bfe_u32 {v(aR0)}, {v(vL)}, 2, 2
v_mul_u32_u24 {v(aR0)}, {OS}, {v(aR0)}
v_lshl_add_u32 {v(aR0)}, {v(g_)}, 6, {v(aR0)}
v_and_b32 {v(aR1)}, 3, {v(vL)}
v_mul_u32_u24 {v(aPr)}, 260, {v(aR1)}
v_add_u32 {v(aPr)}, {PGOFF}, {v(aPr)}
v_lshrrev_b32 {v(aS2)}, 5, {v(vL)}
v_xor_b32 {v(aR1)}, {v(aR1)}, {v(aS2)}
v_lshl_add_u32 {v(aR0)}, {v(aR1)}, 4, {v(aR0)}
s_sub_u32 {s(sT[8])}, 7, {s(sW)}
s_lshl_b32 {s(sT[0])}, {s(sT[8])}, 10
s_add_u32 {s(sT[0])}, {s(sT[0])}, {WOFF}
v_add_u32 {v(aR0)}, {s(sT[0])}, {v(aR0)}
v_xor_b32 {v(aR1)}, 32, {v(aR0)}
v_lshlrev_b32 {v(aS2)}, 14, {v(g_)}
v_lshl_add_u32 {v(aS2)}, {v(c_)}, 4, {v(aS2)}
s_lshl3_add_u32 {s(sT[0])}, {s(sGRP)}, {s(sT[8])}
s_mul_i32 {s(sT[0])}, {s(sT[0])}, {CP}
s_add_u32 {s(sT[0])}, {s(sT[0])}, {s(sCM)}
s_add_u32 {s(sT[0])}, {s(sT[0])}, {32*CP}
""")
if OPT['hp'] & 2: A("s_setprio 2")
NR = -(-8 // NST)
for i in range(NR):
    if NST*i + NST > 8:
        A(f"s_cmp_ge_u32 {s(sT[8])}, 8")
        A("s_cbranch_scc1 L_short")
    A(f"""
    s_lshr_b32 {s(sD[0])}, {s(sT[8])}, 1
    s_and_b32 {s(sT[6])}, {s(sT[8])}, 1
    s_lshl_b32 {s(sT[6])}, {s(sT[6])}, 6
    s_add_u32 {s(sD[0])}, {s(sD[0])}, {s(sT[6])}
    s_lshl_b32 {s(sD[0])}, {s(sD[0])}, 12
    s_add_u32 {s(sD[0])}, {s(sD[0])}, {s(sT[10])}
    s_mov_b32 {s(sCNT)}, 0x40000
    L_pg{i}:
    ds_read_b32 {v(vS1)}, {v(aPr)}
    s_sub_u32 {s(sCNT)}, {s(sCNT)}, 1
    s_cbranch_scc1 L_pg{i}_out
    {('s_sleep %d' % OPT['slp']) if i == 0 and OPT['slp'] else ''}
    s_waitcnt lgkmcnt(0)
    v_cmp_ge_u32 vcc, {s(sT[8])}, {v(vS1)}
    s_and_b64 vcc, vcc, vcc
    s_cbranch_scc1 L_pg{i}
    L_pg{i}_out:
    """)
    d = D1R + 16*i
    for j in range(4): A(f"ds_read_b128 {v(d+4*j,4)}, {v(aR1 if j & 1 else aR0)} offset:{i*NST*1024+j*256}")
    A(f"s_add_u32 {s(sT[8])}, {s(sT[8])}, {NST}")
    for j in range(4):
        A(f"s_waitcnt lgkmcnt({3-j})")
        A(f"buffer_store_dwordx4 {v(d+4*j,4)}, {v(aS2)}, {srd(OUT_)}, {s(sD[0])} offen sc1")
        if j < 3:
            A(f"s_add_u32 {s(sD[0])}, {s(sD[0])}, 65536")
            if OPT['px']: A(f"s_xor_b32 {s(sD[0])}, {s(sD[0])}, {4*AROW}")
for i in range(NR):
    A(f"s_waitcnt vmcnt({4*(NR-1-i)})")
    signal(sT[0], NST*i*CP)
if 8 % NST:
    A("s_branch L_nosig2")
    A.label("L_short")
    for i in range(NR-1):
        A(f"s_waitcnt vmcnt({4*(NR-2-i)})")
        signal(sT[0], NST*i*CP)
A.label("L_nosig2")
if OPT['hp'] & 2: A("s_setprio 0")
stamp("fl2")
A("s_barrier")
A(f"s_mov_b32 m0, {s(sW12)}")
poll("L_poll2", sC2, 16, OPT['sl2'])
stamp("pol2")
for j in range(4):
    A(f"buffer_load_dwordx4 {v(aD3)}, {srd(OUT_)}, {s(sO[j>>1])} offen offset:{(j&1)*1024} sc1 lds")
    if j == 1: A("s_add_u32 m0, m0, 2048")
A(f"""
s_cmp_lg_u32 {s(sW)}, 4
s_cbranch_scc1 L_noep
s_cmp_lg_u32 s2, {HB}
s_cbranch_scc1 L_noep
s_mov_b32 {s(sT[4])}, {EW}
s_atomic_swap {s(sTAG)}, {s(WS_,2)}, {s(sT[4])}
s_waitcnt lgkmcnt(0)
L_noep:
""")
GB = [(8, 8), (40, 8), (88, 8), (16, 4), (28, 4)] if OPT['stamp'] else [(60, 16), (76, 16)]
GS = [r + i for r, n in GB for i in range(n)]
def granule_loads():
    off = 0
    for r, n in GB:
        A(f"s_load_dwordx{n} {s(r,n)}, {s(WS_,2)}, {s(sT[4])} offset:{off} glc"); off += 4*n
A(f"""
s_cmp_lg_u32 {s(sW)}, 0
s_cbranch_scc1 L_nosp3a
s_lshl_b32 {s(sT[4])}, {s(sMR)}, 7
s_add_u32 {s(sT[4])}, {s(sT[4])}, {XB}
""")
granule_loads()
A.label("L_nosp3a")
for i in range(16):
    A(f"v_perm_b32 {v(GR+i)}, {v(FN+i//2)}, {v(FC+i//2)}, {s(sPM+(i&1))}")
    A(f"v_perm_b32 {v(GI+i)}, {v(FC+i//2)}, {v(FS+i//2)}, {s(sPM+(i&1))}")
A(f"""
s_cmp_lg_u32 {s(sW)}, 0
s_cbranch_scc1 L_nosp3b
s_mov_b32 {s(sCNT)}, 0x8000
s_branch L_gchk
L_gagain:
s_sub_u32 {s(sCNT)}, {s(sCNT)}, 1
s_cbranch_scc1 L_gok
""")
granule_loads()
A.label("L_gchk")
A("s_waitcnt lgkmcnt(0)")
for i in range(16):
    A(f"s_cmp_lg_u32 {s(GS[2*i+1])}, {s(sTAG)}")
    A("s_cbranch_scc1 L_gagain")
A.label("L_gok")
for h in range(2):
    for g in range(4):
        for q in range(2):
            A(f"v_writelane_b32 {v(TMP+4+2*h+q)}, {s(GS[h*16+g*4+2*q])}, {16*g}")
m16(D2R, M3, TMP+4, None); m16(D2R+4, M3+4, TMP+4, None)
A.label("L_nosp3b")
A("s_waitcnt vmcnt(0)")
stamp("dat2", (1, 3))
def CV3(tp):
    L_ = []
    for mt in range(2):
        d0 = D1R + 8*tp + 4*mt; d1 = d0 + 16
        o = TMP + 8 + (tp*2+mt)*4
        L_ += [CVT(o, d0, d0+1), CVT(o+3, d0+2, d0+3), CVT(o+1, d1, d1+1), CVT(o+2, d1+2, d1+3)]
    return L_
def WR3(tp):
    L_ = []
    for mt in range(2):
        o = TMP + 8 + (tp*2+mt)*4
        L_.append(f"ds_write_b64 {v(aPw)}, {v(o,2)} offset:{mt*4*PS2+tp*128}")
        if tp == 1: L_.append(f"ds_write_b64 {v(aQp)}, {v(o+2,2)} offset:{mt*4*PS2}")
        else: L_ += [f"ds_write_b32 {v(aQ1)}, {v(o+2)} offset:{mt*4*PS2}", f"ds_write_b32 {v(aQ0)}, {v(o+3)} offset:{mt*4*PS2}"]
    return L_
ORD = (1, 3, 0, 2) if OPT['s3w'] else (0, 2, 1, 3)
for t in ORD:
    for jj in range(2):
        A(f"ds_read_b64_tr_b16 {v(XR+4*t+2*jj,2)}, {v(aT[t])} offset:{jj*2048}")
for i, t in enumerate(ORD):
    A(f"s_waitcnt lgkmcnt({6-2*i})")
    m16(D1R+8*t, M3, XR+4*t, None); m16(D1R+8*t+4, M3+4, XR+4*t, None)
if OPT['s3w']:
    for t_ in CV3(1) + WR3(1): A(t_)
A(f"""
s_cmp_lg_u32 {s(sW)}, 0
s_cbranch_scc1 L_nofix
s_mov_b32 exec_lo, 0x00010001
s_mov_b32 exec_hi, 0x00010001
""")
for d in (D2R, D1R):
    for mt in range(2):
        for i in range(2):
            A(f"v_add_f32 {v(d+4*mt+i)}, {v(d+4*mt+i)}, {v(d+4*mt+2+i)}")
            A(f"v_mul_f32 {v(d+4*mt+i)}, 0.5, {v(d+4*mt+i)}")
cvt(TMP, D2R, D2R+1); cvt(TMP+1, D2R+4, D2R+5)
A(f"""
ds_write_b32 {v(aPw)}, {v(TMP)} offset:{8*256}
ds_write_b32 {v(aPw)}, {v(TMP+1)} offset:{8*256+4*PS2}
s_mov_b64 exec, -1
L_nofix:
""")
if not OPT['s3w']: A("s_nop 1")
for t_ in (CV3(0) + WR3(0) if OPT['s3w'] else CV3(0) + CV3(1) + WR3(0) + WR3(1)): A(t_)
if OPT['p3p']: A("s_setprio 1")
A("s_waitcnt lgkmcnt(0)")
A("s_barrier")
stamp("bar3", (1, 3))
for t in range(4):
    for j in range(2):
        A(f"ds_read_b64 {v(XR+4*t+2*j,2)}, {v(aRd3)} offset:{t*1024+j*256}")
for t in range(4):
    A(f"s_waitcnt lgkmcnt({6-2*t})")
    m32(D1R, XR+4*t, GR+4*t, D1R if t else None)
A("s_nop 4")
tw1 = TW1(D1R, True)
if OPT['p3p']: tw1 = tw1[:12] + ["s_setprio 0"] + tw1[12:]
weave([M32(D1I, XR+4*t, GI+4*t, D1I if t else None) for t in range(4)], ["s_nop 4"] + tw1, [1, 6, 6, 99])
stamp("m3", (3,))
for t_ in TW2(D1I, XR, XI, True, 0, 8): A(t_)
weave([M32(D2R, XR, FC, None), M32(D2R, XI, FN, D2R), M32(D2I, XR, FS, None), M32(D2I, XI, FC, D2I)], TW2(D1I, XR, XI, True, 8, 16), 6)
weave([M32(D2R, XR+4, FC+4, D2R), M32(D2R, XI+4, FN+4, D2R), M32(D2I, XR+4, FS+4, D2I), M32(D2I, XI+4, FC+4, D2I)], [], 0)
stamp("m4", (3,))
for comp, d in ((0, D2R), (1, D2I)):
    o = TMP + comp*8
    for q in (0, 4, 1, 5, 2, 6, 3, 7): cvt(o+q, d+2*q, d+2*q+1)
    for q in range(4): A(f"v_permlane16_swap_b32 {v(o+q)}, {v(o+4+q)}")
    for j in range(2):
        A(f"buffer_store_dwordx4 {v(o+4*j,4)}, {v(aSo)}, {srd(OUT_)}, {s(sO[comp])} offen offset:{j*1024}{OUTM}")
if OPT['stamp']:
    stamp("st3", (3,))
    A("s_waitcnt vmcnt(0)")
    stamp("end")
    A("s_waitcnt lgkmcnt(0)")
    n = len(stamps)
    assert sST + 2*n <= 88, n
    if OPT['diag']:
        da, db = OPT['da'], OPT['db']
        A(f"""
        s_load_dwordx2 s[94:95], s[0:1], 56
        s_and_b32 {s(sT[4])}, s2, 7
        s_lshl_b32 {s(sT[4])}, {s(sT[4])}, 3
        s_not_b32 {s(sT[11])}, {s(sST)}
        s_sleep 100
        s_waitcnt lgkmcnt(0)
        s_cmp_lg_u32 {s(sW)}, {OPT['wa']}
        s_cbranch_scc1 L_dg1
        s_atomic_umax {s(sST+2*da) if da else s(sT[11])}, s[94:95], {s(sT[4])}
        L_dg1:
        s_cmp_lg_u32 {s(sW)}, {OPT['wb']}
        s_cbranch_scc1 L_end
        s_atomic_umax {s(sST+2*db)}, s[94:95], {s(sT[4])} offset:4
        s_cmp_lg_u32 s2, 100
        s_cbranch_scc1 L_end
        s_add_u32 {s(sT[0])}, {s(sST+2*(n-1))}, 900
        L_amp0:
        s_memrealtime {s(sT[2],2)}
        s_waitcnt lgkmcnt(0)
        s_sub_u32 {s(sT[1])}, {s(sT[0])}, {s(sT[2])}
        s_cmp_gt_i32 {s(sT[1])}, 0
        s_cbranch_scc1 L_amp0
        s_load_dwordx16 s[60:75], s[94:95], 0 glc
        s_waitcnt lgkmcnt(0)
        """)
        for i in range(1, 8):
            A(f"s_max_u32 s60, s60, s{60+2*i}")
            A(f"s_max_u32 s61, s61, s{61+2*i}")
        if not da: A("s_not_b32 s60, s60")
        A(f"""
        s_sub_u32 {s(sT[1])}, s61, s60
        s_lshl_b32 {s(sT[1])}, {s(sT[1])}, 4
        s_min_u32 {s(sT[1])}, {s(sT[1])}, 60000
        s_add_u32 {s(sT[0])}, {s(sT[0])}, {s(sT[1])}
        L_amp:
        s_memrealtime {s(sT[2],2)}
        s_waitcnt lgkmcnt(0)
        s_sub_u32 {s(sT[1])}, {s(sT[0])}, {s(sT[2])}
        s_cmp_gt_i32 {s(sT[1])}, 0
        s_cbranch_scc1 L_amp
        s_branch L_end
        """)
    A(f"s_lshl_b32 {s(sT[0])}, s2, 3")
    A(f"s_add_u32 {s(sT[0])}, {s(sT[0])}, {s(sW)}")
    A(f"s_lshl_b32 {s(sT[0])}, {s(sT[0])}, 7")
    A(f"s_add_u32 {s(sT[0])}, {s(sT[0])}, {STAMP}")
    A("v_mov_b32 v3, 0")
    A("s_mov_b64 exec, 1")
    for i in range(n):
        A(f"v_mov_b32 v2, {s(sST+2*i)}")
        A(f"buffer_store_dword v2, v3, {srd(WS_)}, {s(sT[0])} offen offset:{i*4}")
    A.raw("; stamps: " + " ".join(stamps))
A.label("L_end")
A("s_endpgm")
def kd(name, nv, ns):
    A.raw(f""".p2align 6
.amdhsa_kernel {name}
  .amdhsa_next_free_vgpr {nv}
  .amdhsa_next_free_sgpr {ns}
  .amdhsa_accum_offset {nv}
  .amdhsa_group_segment_fixed_size 0
  .amdhsa_kernarg_size 72
  .amdhsa_user_sgpr_count 2
  .amdhsa_user_sgpr_kernarg_segment_ptr 1
  .amdhsa_system_sgpr_workgroup_id_x 1
  .amdhsa_float_denorm_mode_32 3
.end_amdhsa_kernel""")
A.raw('.section .rodata,"a"')
kd(NAME + "_kernel", 256, 102)
if OPT['lst']: kd("empty_kernel", 8, 16)
txt = A.text()
if OPT['al']:
    from align import align
    txt = align(txt, minrun=OPT['al'] if OPT['al'] > 1 else 4)
open(sys.argv[1], "w").write(txt)
print(sys.argv[1], "nops:", A.nops, "stamps:", len(stamps), file=sys.stderr)
```

```python
import sys, struct, re
import numpy as np
from asmlib import Asm, v, s

NAME = "concat_heads__spectral_gfnet__spectral_gfnet__prompt"
OPT = dict(outm=1, xnt=1, wnt=1, px=4, diag=0, da=0, db=0, wa=0, wb=0, ne=3, nea=3, gh=0, xprio=0, slp=0, nst=3, stag=2, tg=1, wp=0, hp=0, p1p=0,
           stamp=0, sl1=0, sl2=0, rm=1, ha=128, hb=161, spw=1, s3p=3, fw=1, al=1, p3p=0, sb=0, s3w=1, bi=1, mb=3, xp=0, wl=1, nb=0, cut=0, ch=1, g2=0, r2=0, lst=0)
for a_ in sys.argv[2:]:
    k_, v_ = a_.split('='); assert k_ in OPT, k_; OPT[k_] = int(v_)

def fbits(x): return "0x%08x" % struct.unpack('<I', struct.pack('<f', x))[0]
def bf16(x):
    u = np.asarray(x, dtype=np.float32).view(np.uint32)
    return ((u + 0x7FFF + ((u >> 16) & 1)) >> 16).astype(np.uint32)

AUX = 0
XB = AUX + 0x30000
CP = 256
CB = AUX + 0x10000
RO = 0x10000
EW = AUX + 0xa0000
STAMP = AUX + 0x100000
WSZ = 2 << 20
EXOFF = 32768
PS = 5184
WOFF = EXOFF + 8 * PS
M2OFF = WOFF + 36864
SYOFF = M2OFF + 32768
PGOFF = SYOFF + 64
T1OFF = PGOFF + 2048
LDSZ = T1OFF + 14336
EX2 = EXOFF
OS = 8320
XOUT = EXOFF + 33280
PS2 = 4160
sW, sM, sRHO, sSB, sA, sGRP = 3, 4, 5, 6, 7, 32
X_, WR_, WI_, OUT_, WS_, TAB_ = 8, 12, 16, 20, 24, 44
sCNT = 33
sT = list(range(34, 48))
sV = 48
sEXP = 50
sTAG = 51
sW12, sM8, sE, sROLE, sC1, sC2 = 52, 53, 54, 55, 56, 57
sPM = 58
sST = 60
sO = [96, 97]
sU = [98, 99, 100, 101]
sONE = sU[2]
sCM = 30
sP = 31
srd = lambda b: s(b, 4)

A = Asm()
AROW = 128 * 4096
HA, HB = OPT['ha'], OPT['hb']
NST = OPT['nst']
XNT = ' nt' if OPT['xnt'] else ''
WNT = ' nt' if OPT['wnt'] else ''
OUTM = ['', ' sc1', ' nt', ' sc0 sc1', ' sc1 nt', ' sc0 sc1 nt'][OPT['outm']]
def M32(d, a, b, c): return f"v_mfma_f32_32x32x16_bf16 {v(d,16)}, {v(a,4)}, {v(b,4)}, {v(c,16) if c is not None else 0}"
def M16(d, a, b, c): return f"v_mfma_f32_16x16x32_bf16 {v(d,4)}, {v(a,4)}, {v(b,4)}, {v(c,4) if c is not None else 0}"
def CVT(d, a, b, na=False, nb=False): return f"v_cvt_pk_bf16_f32 {v(d)}, {'-' if na else ''}{v(a)}, {'-' if nb else ''}{v(b)}"
def m32(*a): A(M32(*a))
def m16(*a): A(M16(*a))
def cvt(*a): A(CVT(*a))
def weave(mf, fill, per):
    fill = list(fill)
    for i, m in enumerate(mf):
        A(m)
        n = per[i] if isinstance(per, (list, tuple)) else per
        for _ in range(n):
            if fill: A(fill.pop(0))
    for f in fill: A(f)
stamps = []
def stamp(name, sets=(1,)):
    st = OPT['stamp']
    if name in ("start", "end"):
        if st: A(f"s_memrealtime {s(sST + 2*len(stamps), 2)}"); stamps.append(name)
        if st > 1: A(f"s_memtime {s(sST + 2*len(stamps), 2)}"); stamps.append("c" + name)
    elif st in sets:
        if name not in stamps: stamps.append(name)
        A(f"{'s_memrealtime' if st == 1 else 's_memtime'} {s(sST + 2*stamps.index(name), 2)}")

vL, c_, g_ = 1, 2, 3
vT = list(range(2, 16))
TC, TS = 16, 32
FC, FS, FN = 48, 56, 64
M3 = 72
GR, GI = 80, 96
XR, XI = 112, 120
D1R, D1I = 128, 144
D2R, D2I = 160, 176
TMP = 192
PH = 88
M3T = 228
aTB = 244
WRF, WIF = 16, 48
FR = 80
DRE, DIM, DNR = 144, 160, 176
ER, EI = 192, 224

def peek(off, imm=0):
    A(f"s_mov_b64 {s(sV,2)}, 0")
    A(f"s_atomic_or_x2 {s(sV,2)}, {s(WS_,2)}, {s(off)} glc" if not imm else f"s_atomic_or_x2 {s(sV,2)}, {s(WS_,2)}, {s(off)} offset:{imm} glc")
def poll(label, off, count, sleep, imm=0, keep=None):
    A(f"s_mov_b32 {s(sEXP)}, {count}")
    A(f"s_mov_b32 {s(sCNT)}, 0x8000")
    A.label(label)
    peek(off, imm)
    A(f"s_sub_u32 {s(sCNT)}, {s(sCNT)}, 1")
    A(f"s_cbranch_scc1 {label}_out")
    if sleep: A(f"s_sleep {sleep}")
    A("s_waitcnt lgkmcnt(0)")
    if keep is not None:
        A(f"s_mov_b32 {s(keep)}, {s(sV)}")
        A(f"s_and_b32 {s(sV)}, {s(sV)}, 0xffff")
    A(f"s_cmp_eq_u64 {s(sV,2)}, {s(sEXP,2)}")
    A(f"s_cbranch_scc0 {label}")
    A.label(label + "_out")
def validate(label, off, imm=0):
    A(f"s_mov_b32 {s(sCNT)}, 0x8000")
    A.label(label)
    A("s_waitcnt lgkmcnt(0)")
    A(f"s_cmp_eq_u32 {s(sV+1)}, {s(sTAG)}")
    A(f"s_cbranch_scc1 {label}_out")
    peek(off, imm)
    A(f"s_sub_u32 {s(sCNT)}, {s(sCNT)}, 1")
    A(f"s_cbranch_scc0 {label}")
    A("s_waitcnt lgkmcnt(0)")
    A.label(label + "_out")
def signal(off, imm=0):
    A(f"s_atomic_add {s(sONE)}, {s(WS_,2)}, {s(off)}" + (f" offset:{imm}" if imm else ""))

vSY, vS1, vPG = vT[12], vT[13], vT[11]
def lds_wait(label, off, val):
    A(f"s_mov_b32 {s(sCNT)}, 0x40000")
    A.label(label)
    A(f"ds_read_b32 {v(vS1)}, {v(vSY)} offset:{off}")
    A(f"s_sub_u32 {s(sCNT)}, {s(sCNT)}, 1")
    A(f"s_cbranch_scc1 {label}_out")
    A("s_waitcnt lgkmcnt(0)")
    A(f"v_cmp_gt_u32 vcc, {val}, {v(vS1)}" if val <= 64 else f"v_cmp_ne_u32 vcc, {val}, {v(vS1)}")
    A("s_and_b64 vcc, vcc, vcc")
    A(f"s_cbranch_scc1 {label}")
    A.label(label + "_out")
def lds_bit(off, sbit):
    A(f"v_mov_b32 {v(vS1)}, {s(sbit)}")
    A("s_mov_b64 exec, 1")
    A(f"ds_or_b32 {v(vSY)}, {v(vS1)} offset:{off}")
    A("s_mov_b64 exec, -1")
def lds_post(off, rtn=False):
    A(f"v_mov_b32 {v(vS1)}, 1")
    A("s_mov_b64 exec, 1")
    if rtn: A(f"ds_add_rtn_u32 {v(vS1)}, {v(vSY)}, {v(vS1)} offset:{off}")
    else: A(f"ds_add_u32 {v(vSY)}, {v(vS1)} offset:{off}")
    A("s_mov_b64 exec, -1")

sWB, sI = sU[0], sU[3]
aWM, aWT = GR + 4, GR + 5
nlab = [0]
def w_piece(e):
    if e < 4:
        arr, half = e & 1, e >> 1
        A(f"s_add_u32 m0, {s(sT[13])}, {WOFF + (2*arr+half)*9216}")
        if half: A(f"s_add_u32 {s(sI)}, {s(sT[12])}, {64*16416}")
        A(f"buffer_load_dwordx4 {v(aWM)}, {srd(WI_ if arr else WR_)}, {s(sI if half else sT[12])} offen{WNT} lds")
    else:
        n = nlab[0]; nlab[0] += 1
        A(f"""
        s_mul_i32 {s(sI)}, {s(sW)}, 9216
        s_add_u32 m0, {s(sI)}, {WOFF + 8192}
        s_and_b32 {s(sI)}, {s(sW)}, 1
        s_mul_i32 {s(sI)}, {s(sI)}, {64*16416}
        s_add_u32 {s(sI)}, {s(sI)}, {s(sWB)}
        s_bitcmp1_b32 {s(sW)}, 1
        s_cbranch_scc1 L_t1_{n}
        buffer_load_dwordx4 {v(aWT)}, {srd(WR_)}, {s(sI)} offen{WNT} lds
        s_branch L_t2_{n}
        L_t1_{n}:
        buffer_load_dwordx4 {v(aWT)}, {srd(WI_)}, {s(sI)} offen{WNT} lds
        L_t2_{n}:
        """)
def w_base(sw):
    A(f"s_mul_i32 {s(sT[12])}, {s(sw)}, {7*16416}")
    A(f"s_add_u32 {s(sT[12])}, {s(sT[12])}, {s(sWB)}")
    A(f"s_lshl_b32 {s(sT[13])}, {s(sw)}, 10")

def gen_m2(sW):
    G = D2R
    kf, s0, af, bf, ai, bi, ad = G, G+1, G+2, G+3, G+4, G+5, G+6
    P, C_, S_ = D1R, D1R+16, G+8
    A(f"""
    s_and_b32 {s(sT[12])}, {s(sW)}, 1
    s_lshl_b32 {s(sT[12])}, {s(sT[12])}, 4
    s_lshr_b32 {s(sT[13])}, {s(sW)}, 1
    v_add_u32 {v(kf)}, {s(sT[12])}, {v(c_)}
    v_lshl_add_u32 {v(ai)}, {v(kf)}, 2, {s(sT[13])}
    v_lshl_add_u32 {v(s0)}, {v(g_)}, 4, {s(sT[13])}
    v_mul_u32_u24 {v(bf)}, {v(s0)}, {v(kf)}
    v_mul_u32_u24 {v(bi)}, {v(g_)}, {v(ai)}
    v_cvt_f32_u32 {v(af)}, {v(kf)}
    v_cvt_f32_u32 {v(ai)}, {v(ai)}
    v_cvt_f32_u32 {v(bf)}, {v(bf)}
    v_cvt_f32_u32 {v(bi)}, {v(bi)}
    v_mul_f32 {v(bf)}, {fbits(1/128)}, {v(bf)}
    v_mul_f32 {v(bi)}, {fbits(1/32)}, {v(bi)}
    s_lshl_b32 {s(sT[12])}, {s(sW)}, 11
    s_add_u32 {s(sT[12])}, {s(sT[12])}, {M2OFF}
    v_lshl_add_u32 {v(ad)}, {v(vL)}, 4, {s(sT[12])}
    """)
    for d in range(2):
        for i in range(8):
            c = 16*(i >> 2) + (i & 3)
            A(f"v_fmamk_f32 {v(P+8*d+i)}, {v(ai if d else af)}, {fbits(c/128 if d else c/32)}, {v(bi if d else bf)}")
    for i in range(16):
        A(f"v_cos_f32 {v(C_+i)}, {v(P+i)}")
        A(f"v_sin_f32 {v(S_+i)}, {v(P+i)}")
    for d in range(2):
        for j in range(4):
            cvt(P+8*d+j, C_+8*d+2*j, C_+8*d+2*j+1)
            cvt(P+8*d+4+j, S_+8*d+2*j, S_+8*d+2*j+1)
    for d in range(2):
        for cs in range(2):
            A(f"ds_write_b128 {v(ad)}, {v(P+8*d+4*cs,4)} offset:{d*16384+cs*1024}")

def load_tables(addr):
    for i in (8, 9, 10, 11, 12, 13, 0, 4, 1, 5, 2, 6, 3, 7):
        A(f"ds_read_b128 {v(TC+4*i,4)}, {v(addr)} offset:{i*1024}")

def TW1(dr, conj):
    L = []
    for i in range(16):
        L.append(f"v_mul_f32_e64 {v(TMP+i)}, -{v(dr+i)}, {v(TC+i)}" if conj else f"v_mul_f32 {v(TMP+i)}, {v(dr+i)}, {v(TC+i)}")
        L.append(f"v_mul_f32 {v(TMP+16+i)}, {v(dr+i)}, {v(TS+i)}" if conj else f"v_mul_f32_e64 {v(TMP+16+i)}, -{v(dr+i)}, {v(TS+i)}")
    return L
def TW2(di, outr, outi, conj, lo, hi):
    L = []
    for i in range(lo, hi, 2):
        for e in range(2):
            L.append(f"v_fmac_f32 {v(TMP+i+e)}, {v(di+i+e)}, {v(TS+i+e)}")
            L.append(f"v_fmac_f32 {v(TMP+16+i+e)}, {v(di+i+e)}, {v(TC+i+e)}")
        L.append(CVT(outr + i//2, TMP+i, TMP+i+1, conj, conj))
        L.append(CVT(outi + i//2, TMP+16+i, TMP+16+i+1))
    return L

A.raw("; GFNet spectral filter: persistent 3-pass MFMA FFT (generated by a script of the author)")
if OPT['lst'] == 0: A.raw(f"; @launch grid=(256,1,1) block=(512,1,1) lds={LDSZ}")
else:
    A.raw(f"; @launch kernel={NAME}_kernel grid=(256,1,1) block=(512,1,1) lds={LDSZ}")
    A.raw(f"; @launch kernel=empty_kernel grid=(1,1,1) block=(64,1,1) lds=0")
A.raw('.amdgcn_target "amdgcn-amd-amdhsa--gfx950"\n.text')
if OPT['lst']: A.raw(".globl empty_kernel\n.p2align 8\n.type empty_kernel,@function\nempty_kernel:\n s_endpgm")
A.raw(f".globl {NAME}_kernel\n.p2align 8\n.type {NAME}_kernel,@function")
A.label(f"{NAME}_kernel")
aL16 = GR + 1
SPW = OPT['spw']
NE = NEB = OPT['ne']
NEA = OPT['nea']
assert NEA <= NE
STAG = OPT['stag']
A(f"""
s_cmp_ge_u32 s2, 256
s_cbranch_scc1 L_end
s_bfe_u32 {s(sM)}, s2, {0x10000 + OPT['mb']}
s_mul_i32 {s(sT[0])}, {s(sM)}, 24
s_load_dwordx2 {s(X_,2)}, s[0:1], {s(sT[0])}
s_load_dwordx2 {s(WS_,2)}, s[0:1], 64
s_load_dwordx2 {s(WR_,2)}, s[0:1], {s(sT[0])} offset:8
s_load_dwordx2 {s(WI_,2)}, s[0:1], {s(sT[0])} offset:16
s_load_dwordx2 {s(OUT_,2)}, s[0:1], 48
""")
XP_ = OPT['xp']
if XP_:
    A(f"s_sub_u32 {s(sT[0])}, 24, {s(sT[0])}")
    A(f"s_load_dwordx2 s[88:89], s[0:1], {s(sT[0])}")
stamp("start")
if OPT['mb'] != 3:
    A(f"""
    s_bfe_u32 {s(sT[5])}, s2, 0x10003
    s_xor_b32 {s(sT[5])}, {s(sT[5])}, {s(sM)}
    s_mul_i32 {s(sT[5])}, {s(sT[5])}, {8 + (1 << OPT['mb'])}
    s_xor_b32 s2, s2, {s(sT[5])}
    """)
A(f"""
v_lshrrev_b32 v2, 6, v0
s_getpc_b64 {s(TAB_,2)}
L_pc:
s_lshr_b32 {s(sT[2])}, s2, 4
v_readfirstlane_b32 {s(sW)}, v2
s_mov_b32 {s(TAB_+2)}, L_end-L_pc
s_mov_b32 {s(TAB_+3)}, 0x20000
v_lshlrev_b32 v3, 11, v2
s_lshl_b32 {s(sT[6])}, {s(sT[2])}, 7
buffer_load_dword {v(GR)}, v3, {srd(TAB_)}, {s(sT[6])} offen
v_and_b32 {v(vL)}, 63, v0
s_and_b32 {s(sT[1])}, s2, 7
""")
if OPT['rm'] == 0: A(f"s_lshl4_add_u32 {s(sRHO)}, {s(sT[1])}, {s(sT[2])}")
else:
    A(f"""
    s_and_b32 {s(sRHO)}, s2, 0x73
    s_and_b32 {s(sT[5])}, s2, 4
    s_lshl1_add_u32 {s(sRHO)}, {s(sT[5])}, {s(sRHO)}
    s_lshr_b32 {s(sT[5])}, s2, 7
    s_lshl2_add_u32 {s(sRHO)}, {s(sT[5])}, {s(sRHO)}
    """)
    if OPT['rm'] == 2: A(f"s_xor_b32 {s(sRHO)}, {s(sRHO)}, 0x70")
A(f"""
s_and_b32 {s(sSB)}, {s(sRHO)}, 31
s_lshr_b32 {s(sT[5])}, {s(sRHO)}, 5
s_lshl2_add_u32 {s(sSB)}, {s(sSB)}, {s(sT[5])}
v_lshlrev_b32 {v(aL16)}, 4, {v(vL)}
s_mov_b32 {s(X_+2)}, 4194304
s_mov_b32 {s(X_+3)}, 0x20000
s_and_b32 {s(sP)}, {s(sRHO)}, {OPT['px']}
s_xor_b32 {s(sP)}, {s(sP)}, {s(sW)}
s_lshl_b32 {s(sO[0])}, {s(sP)}, 7
s_add_u32 {s(sO[0])}, {s(sO[0])}, {s(sSB)}
s_lshl_b32 {s(sO[0])}, {s(sO[0])}, 11
s_add_u32 {s(sO[1])}, {s(sO[0])}, 0x200000
s_lshl_b32 {s(sW12)}, {s(sW)}, 12
s_mov_b32 m0, {s(sW12)}
""")
XISS = f"""
buffer_load_dwordx4 {v(aL16)}, {srd(X_)}, {s(sO[0])} offen{XNT} lds
buffer_load_dwordx4 {v(aL16)}, {srd(X_)}, {s(sO[0])} offen offset:1024{XNT} lds
s_add_u32 m0, {s(sW12)}, 2048
buffer_load_dwordx4 {v(aL16)}, {srd(X_)}, {s(sO[1])} offen{XNT} lds
buffer_load_dwordx4 {v(aL16)}, {srd(X_)}, {s(sO[1])} offen offset:1024{XNT} lds
"""
if XP_:
    A(f"""
    s_mov_b32 s90, 4194304
    s_mov_b32 s91, 0x20000
    s_xor_b32 s92, {s(sO[0])}, {4 << 18}
    v_and_b32 {v(GR+2)}, 15, {v(vL)}
    v_and_b32 v4, 16, {v(vL)}
    v_lshlrev_b32 v4, 17, v4
    v_lshl_add_u32 {v(GR+2)}, {v(GR+2)}, 7, v4
    """)
YPF = f"""
s_cmp_lt_u32 {s(sW)}, {8 if XP_ & 4 else 4}
s_cselect_b64 exec, 0xffffffff, 1
buffer_load_dword {v(GR)}, {v(GR+2)}, s[88:91], s92 offen
s_mov_b64 exec, -1
"""
def early_x():
    A("s_waitcnt lgkmcnt(0)")
    stamp("karg", (4,))
    if STAG:
        A(f"s_cmp_lg_u32 {s(sM)}, 0")
        A("s_cbranch_scc1 L_xhelp" if XP_ & 1 else "s_cbranch_scc1 L_xlate")
    A(XISS)
    if XP_ & 1:
        A("s_branch L_xlate")
        A.label("L_xhelp")
        A(YPF)
    A.label("L_xlate")
    stamp("xiss", (4,))
if OPT['tg'] == 0: early_x()
A(f"""
s_lshr_b32 {s(sT[3])}, {s(sW)}, 1
s_and_b32 {s(sT[4])}, {s(sW)}, 1
s_lshl2_add_u32 {s(sT[6])}, {s(sT[3])}, {s(sT[4])}
s_lshl_b32 {s(sT[6])}, {s(sT[6])}, 1
v_lshrrev_b32 {v(PH+16)}, 5, {v(vL)}
v_and_b32 {v(PH+17)}, 31, {v(vL)}
v_lshl_add_u32 {v(PH)}, {v(PH+16)}, 2, {s(sT[6])}
v_mul_u32_u24 {v(PH)}, {v(PH)}, {v(PH+17)}
v_add_u32 {v(PH+1)}, {v(PH)}, {v(PH+17)}
v_cvt_f32_u32 {v(PH)}, {v(PH)}
v_cvt_f32_u32 {v(PH+1)}, {v(PH+1)}
s_mov_b32 {s(sT[6])}, {fbits(1/32)}
v_mul_f32 {v(PH+2)}, {s(sT[6])}, {v(PH)}
v_mul_f32 {v(PH+3)}, {s(sT[6])}, {v(PH+1)}
v_cos_f32 {v(PH+8)}, {v(PH+2)}
v_cos_f32 {v(PH+9)}, {v(PH+3)}
v_sin_f32 {v(PH+10)}, {v(PH+2)}
v_sin_f32 {v(PH+11)}, {v(PH+3)}
v_mul_f32 {v(PH)}, {s(sT[6])}, {v(PH+2)}
v_mul_f32 {v(PH+1)}, {s(sT[6])}, {v(PH+3)}
v_cos_f32 {v(PH+4)}, {v(PH)}
v_cos_f32 {v(PH+5)}, {v(PH+1)}
v_sin_f32 {v(PH+6)}, {v(PH)}
v_sin_f32 {v(PH+7)}, {v(PH+1)}
{CVT(PH+12, PH+8, PH+9)}
{CVT(PH+13, PH+10, PH+11)}
{CVT(PH+14, PH+10, PH+11, True, True)}
v_add_u32 {v(vS1)}, {T1OFF}, {v(aL16)}
s_lshl_b32 {s(sT[3])}, {s(sT[3])}, 10
s_lshl3_add_u32 {s(sT[3])}, {s(sT[4])}, {s(sT[3])}
v_add_u32 {v(PH)}, {s(sT[3])}, {v(vS1)}
s_mul_i32 {s(sT[3])}, {s(sW)}, 0x104
s_and_b32 {s(sT[3])}, {s(sT[3])}, 0x40c
v_add_u32 {v(PH+1)}, {s(sT[3])}, {v(vS1)}
""")
if OPT['tg'] == 1: early_x()
A(f"""
ds_write_b64 {v(PH)}, {v(PH+4,2)}
ds_write_b64 {v(PH)}, {v(PH+6,2)} offset:4096
ds_write_b32 {v(PH+1)}, {v(PH+12)} offset:8192
ds_write_b32 {v(PH+1)}, {v(PH+13)} offset:10240
ds_write_b32 {v(PH+1)}, {v(PH+14)} offset:12288
v_and_b32 {v(c_)}, 15, {v(vL)}
v_lshrrev_b32 {v(g_)}, 4, {v(vL)}
s_mov_b32 {s(sT[6])}, {EW}
s_cmp_lg_u32 {s(sW)}, 0
s_waitcnt lgkmcnt(0)
s_cbranch_scc1 L_noe
s_load_dword {s(sE)}, {s(WS_,2)}, {s(sT[6])}
L_noe:
""")
stamp("tgen", (4,))
A("s_barrier")
stamp("tbar", (4,))
if STAG == 3:
    load_tables(vS1)
if STAG:
    A(f"s_cmp_eq_u32 {s(sM)}, 0")
    A("s_cbranch_scc1 L_yhelp" if XP_ & 2 else "s_cbranch_scc1 L_xdone")
    if STAG == 3: A("s_barrier")
    if STAG == 2:
        gen_m2(sW)
        A("s_barrier")
    A(XISS)
    if OPT['bi']:
        A(f"""
        s_cmp_lg_u32 {s(sW)}, 0
        s_cbranch_scc1 L_xdone
        s_lshl_b32 {s(sT[3])}, {s(sRHO)}, 8
        s_add_u32 {s(sT[3])}, {s(sT[3])}, {CB + 128*CP}
        s_mov_b32 {s(sEXP)}, 0
        s_waitcnt lgkmcnt(0)
        s_mul_i32 {s(sTAG)}, {s(sE)}, 0x9E3779B1
        s_add_u32 {s(sTAG)}, {s(sTAG)}, 0x7F4A7C15
        s_atomic_swap_x2 {s(sEXP,2)}, {s(WS_,2)}, {s(sT[3])}
        """)
        if OPT['r2']: A(f"s_atomic_swap_x2 {s(sEXP,2)}, {s(WS_,2)}, {s(sT[3])} offset:{RO}")
    if XP_ & 2:
        A("s_branch L_xdone")
        A.label("L_yhelp")
        A(YPF)
    A.label("L_xdone")
if STAG != 3: load_tables(vS1)
stamp("xis2", (4,))
aTR, aP, aQe, aQo, aRD, aST = vT[2:8]
sS1 = sT[8:10]
H_, F_ = PH + 16, PH + 17
A(f"""
s_lshr_b32 {s(sT[3])}, {s(sT[2])}, 3
s_lshl1_add_u32 {s(sA)}, {s(sT[1])}, {s(sT[3])}
s_and_b32 {s(sGRP)}, {s(sT[2])}, 7
s_mov_b32 {s(WR_+2)}, 2101248
s_mov_b32 {s(WR_+3)}, 0x20000
s_mov_b32 {s(WI_+2)}, 2101248
s_mov_b32 {s(WI_+3)}, 0x20000
s_cmp_lg_u32 {s(sW)}, {SPW}
s_cbranch_scc1 L_nogather
v_lshrrev_b32 v9, 2, {v(c_)}
v_and_b32 v10, 1, {v(c_)}
v_lshl_add_u32 v9, v9, 1, v10
v_and_b32 v10, 2, {v(c_)}
v_lshl_add_u32 v9, v10, 2, v9
v_mul_u32_u24 v9, 1026, v9
s_mul_i32 {s(sT[3])}, {s(sRHO)}, 16416
buffer_load_ushort v11, v9, {srd(WR_)}, {s(sT[3])} offen offset:1024
buffer_load_ushort v12, v9, {srd(WI_)}, {s(sT[3])} offen offset:1024
L_nogather:
s_mul_i32 {s(sWB)}, {s(sA)}, 1026
s_lshl_b32 {s(sT[0])}, {s(sGRP)}, 7
s_add_u32 {s(sWB)}, {s(sWB)}, {s(sT[0])}
s_andn2_b32 {s(sWB)}, {s(sWB)}, 15
v_add_u32 {v(PH)}, {s(sW)}, {v(vL)}
v_mul_u32_u24 {v(PH+1)}, 57, {v(PH)}
v_lshrrev_b32 {v(PH+1)}, 9, {v(PH+1)}
v_mul_u32_u24 {v(PH+1)}, {16416-144}, {v(PH+1)}
v_lshl_add_u32 {v(aWM)}, {v(PH)}, 4, {v(PH+1)}
v_bfe_u32 {v(PH)}, {v(vL)}, 2, 2
v_lshl_add_u32 {v(PH)}, {v(H_)}, 2, {v(PH)}
v_lshl_add_u32 {v(PH)}, {v(PH)}, 6, {s(sW12)}
v_and_b32 {v(PH+2)}, 16, {v(vL)}
v_lshl_add_u32 {v(PH)}, {v(PH+2)}, 1, {v(PH)}
v_and_b32 {v(PH+2)}, 3, {v(vL)}
v_lshl_add_u32 {v(aTR)}, {v(PH+2)}, 3, {v(PH)}
""")
stamp('setup', (4,))
WP = OPT['wp']
aWN = GR + 3
def w_pair(es):
    global aWM
    w_base(sW)
    for e in es: w_piece(e)
    A(f"s_add_u32 {s(sT[12])}, {s(sT[12])}, {28*16416}")
    A(f"s_add_u32 {s(sT[13])}, {s(sT[13])}, 4096")
    keep, aWM = aWM, aWN
    for e in es: w_piece(e)
    aWM = keep
WNSET = f"""
v_add_u32 {v(PH+20)}, {s(sW)}, {v(vL)}
v_add_u32 {v(PH+20)}, 4, {v(PH+20)}
v_mul_u32_u24 {v(PH+21)}, 57, {v(PH+20)}
v_lshrrev_b32 {v(PH+21)}, 9, {v(PH+21)}
v_mul_u32_u24 {v(PH+21)}, {16416-144}, {v(PH+21)}
v_lshl_add_u32 {v(aWN)}, {v(PH+20)}, 4, {v(PH+21)}
"""
def early_w():
    w_base(sW)
    for e in range(NE):
        if e == NEA:
            A(f"s_cmp_eq_u32 {s(sM)}, 0")
            A("s_cbranch_scc1 L_noearly")
        w_piece(e)
    A.label("L_noearly")
if not OPT['wl']: early_w()
def wait_m(lbl, add):
    na = NEA + (1 if XP_ & 2 and lbl != "L_wm2" else 0)
    A(f"s_waitcnt vmcnt({max(NE, na)+add})")
    if na != NE:
        A(f"s_cmp_eq_u32 {s(sM)}, {1 if na < NE else 0}")
        A(f"s_cbranch_scc1 {lbl}")
        A(f"s_waitcnt vmcnt({min(NE, na)+add})")
        A.label(lbl)
stamp("wiss", (4,))
L = lambda t: [x.strip() for x in t.strip().split("\n")]
SETA = L(f"""
s_mul_i32 {s(sT[0])}, {s(sP)}, {PS}
s_add_u32 {s(sT[0])}, {s(sT[0])}, {EXOFF}
v_mul_u32_u24 {v(PH+4)}, 20, {v(PH+2)}
v_lshrrev_b32 {v(PH+5)}, 2, {v(F_)}
v_mul_u32_u24 {v(PH+6)}, 160, {v(H_)}
v_add3_u32 {v(PH+4)}, {v(PH+4)}, {v(PH+5)}, {v(PH+6)}
v_lshl_add_u32 {v(aP)}, {v(PH+4)}, 3, {s(sT[0])}
v_sub_u32 {v(PH+3)}, 32, {v(F_)}
v_and_b32 {v(PH+4)}, 3, {v(PH+3)}
v_mul_u32_u24 {v(PH+4)}, 20, {v(PH+4)}
v_lshrrev_b32 {v(PH+5)}, 2, {v(PH+3)}
v_sub_u32 {v(PH+6)}, 160, {v(PH+6)}
v_add3_u32 {v(PH+4)}, {v(PH+4)}, {v(PH+5)}, {v(PH+6)}
v_lshl_add_u32 {v(aQe)}, {v(PH+4)}, 3, {s(sT[0])}
v_and_b32 {v(PH+3)}, 32, {v(PH+3)}
v_lshl_add_u32 {v(aQo)}, {v(PH+3)}, 4, {v(aQe)}
v_lshrrev_b32 {v(PH)}, 1, {v(c_)}
v_and_b32 {v(PH+1)}, 1, {v(PH)}
s_bfe_u32 {s(sT[0])}, {s(sRHO)}, 0x10002
v_and_b32 {v(PH+2)}, 1, {v(c_)}
v_xor_b32 {v(PH+2)}, {s(sT[0])}, {v(PH+2)}
v_sub_u32 {v(PH+2)}, {v(PH+2)}, {v(PH+1)}
v_cvt_f32_i32 {v(PH+2)}, {v(PH+2)}
v_mov_b32 {v(PH+3)}, {fbits(0.125)}
v_fmamk_f32 {v(PH+2)}, {v(PH+2)}, {fbits(0.25)}, {v(PH+3)}
v_mul_u32_u24 {v(PH+1)}, 0x8000, {v(PH+1)}
v_lshl_or_b32 {v(PH+1)}, {v(PH+1)}, 16, {v(PH+1)}
v_cvt_f32_u32 {v(PH)}, {v(PH)}
""")
SETB = L(f"""
v_add_f32 {v(PH+3)}, {fbits(8.0)}, {v(PH)}
v_lshl_add_u32 {v(PH+4)}, {v(g_)}, 8, {s(sSB)}
v_cvt_f32_u32 {v(PH+4)}, {v(PH+4)}
v_mul_f32 {v(PH+4)}, {fbits(1/2048)}, {v(PH+4)}
v_add_f32 {v(PH+5)}, {fbits(1/16)}, {v(PH+4)}
""")
for k in range(4): SETB.append(f"v_fma_f32 {v(PH+8+3*k)}, {v(PH+4+(k&1))}, {v(PH if k < 2 else PH+3)}, {v(PH+2)}")
for k in range(4): SETB += [f"v_cos_f32 {v(PH+9+3*k)}, {v(PH+8+3*k)}", f"v_sin_f32 {v(PH+10+3*k)}, {v(PH+8+3*k)}"]
SETC = []
for k in range(4):
    t = PH + 8 + 3*k
    SETC += [CVT(M3+2*k, t+1, t+2), CVT(M3+2*k+1, t+2, t+1), f"v_xor_b32 {v(M3+2*k+1)}, {v(PH+1)}, {v(M3+2*k+1)}"]
SETD = L(f"""
s_lshl_b32 {s(sM8)}, {s(sM)}, 3
s_mul_i32 {s(sCM)}, {s(sM)}, {128*CP}
s_add_u32 {s(sCM)}, {s(sCM)}, {CB}
s_mov_b32 {s(sEXP)}, 0
s_mov_b32 {s(sONE)}, 1
s_lshr_b32 {s(sC1)}, {s(sRHO)}, 5
s_lshl2_add_u32 {s(sC1)}, {s(sW)}, {s(sC1)}
s_mul_i32 {s(sC1)}, {s(sC1)}, {CP}
s_add_u32 {s(sC1)}, {s(sC1)}, {s(sCM)}
s_lshr_b32 {s(sC2)}, {s(sRHO)}, 4
s_lshl3_add_u32 {s(sC2)}, {s(sW)}, {s(sC2)}
s_mul_i32 {s(sC2)}, {s(sC2)}, {CP}
s_add_u32 {s(sC2)}, {s(sC2)}, {s(sCM)}
s_add_u32 {s(sC2)}, {s(sC2)}, {32*CP}
s_and_b32 {s(sT[3])}, {s(sRHO)}, {1 if OPT['r2'] else 0}
s_lshl_b32 {s(sT[3])}, {s(sT[3])}, 16
s_add_u32 {s(sC2)}, {s(sC2)}, {s(sT[3])}
s_mov_b32 {s(WS_+2)}, {WSZ}
s_mov_b32 {s(WS_+3)}, 0x20000
s_mov_b32 {s(OUT_+2)}, 8388608
s_mov_b32 {s(OUT_+3)}, 0x20000
s_lshl_b32 {s(sS1[0])}, {s(sO[0])}, 1
s_lshl_b32 {s(sT[3])}, {s(sM)}, 11
s_add_u32 {s(sS1[0])}, {s(sS1[0])}, {s(sT[3])}
s_add_u32 {s(sS1[1])}, {s(sS1[0])}, {8*AROW}
s_mul_i32 {s(sT[3])}, {s(sW)}, 640
s_add_u32 {s(sT[3])}, {s(sT[3])}, {EXOFF}
v_mul_u32_u24 {v(aRD)}, {2*PS}, {v(g_)}
v_lshl_add_u32 {v(aRD)}, {v(c_)}, 3, {v(aRD)}
v_add_u32 {v(aRD)}, {s(sT[3])}, {v(aRD)}
v_lshlrev_b32 {v(aST)}, 9, {v(g_)}
v_lshl_add_u32 {v(aST)}, {v(c_)}, 4, {v(aST)}
v_mov_b32 {v(vSY)}, {SYOFF}
v_lshlrev_b32 {v(vPG)}, 2, v0
v_add_u32 {v(vPG)}, {PGOFF}, {v(vPG)}
v_mov_b32 {v(GR+6)}, 0
v_mov_b32 {v(GR+7)}, 0
v_mov_b32 v237, 0
v_mov_b32 v242, 0
""")
for t_ in SETD: A(t_)
sPH = sROLE
S3P = OPT['s3p']
def early_setup():
    A(f"""
    s_mov_b32 {s(sPH)}, 2
    s_cmp_ge_u32 {s(sW)}, 4
    s_cbranch_scc1 L_setup3
    L_ret1:
    """)
if S3P == 3: early_setup()
if OPT['wl']: early_w()
A(f"""
ds_write_b64 {v(vSY)}, {v(GR+6,2)}
ds_write_b64 {v(vSY)}, {v(GR+6,2)} offset:8
ds_write_b32 {v(vPG)}, {v(GR+6)}
s_mul_i32 {s(sT[3])}, {s(sRHO)}, {CP}
s_add_u32 {s(sT[3])}, {s(sT[3])}, {s(sCM)}
""")
wait_m("L_wm0", 2)
A(f"s_cmp_eq_u32 {s(sW)}, {SPW}")
A("s_cbranch_scc1 L_xw1")
wait_m("L_wm1", 0)
A.label("L_xw1")
if OPT['p1p'] == 2: A("s_setprio 1")
if OPT['p1p'] == 1:
    A(f"s_cmp_lt_u32 {s(sW)}, 4")
    A("s_cbranch_scc1 L_np")
    A("s_setprio 1")
    A.label("L_np")
stamp("x", (1, 2, 4))
for comp, dst in ((0, XR), (1, XI)):
    for t in range(2):
        for j in range(2):
            A(f"ds_read_b64_tr_b16 {v(dst+4*t+2*j,2)}, {v(aTR)} offset:{comp*2048+t*1024+j*512}")
A(f"s_or_b32 {s(sT[0])}, {s(sW)}, {s(sM)}" if OPT['bi'] and STAG else f"s_cmp_lg_u32 {s(sW)}, 0")
A("s_waitcnt lgkmcnt(0)")
stamp("tr", (2, 4))
TAGI = [f"s_mul_i32 {s(sTAG)}, {s(sE)}, 0x9E3779B1", f"s_add_u32 {s(sTAG)}, {s(sTAG)}, 0x7F4A7C15"]
m32(D1R, XR, FC, None)
A(f"""
s_cbranch_scc1 L_e1
{TAGI[0]}
{TAGI[1]}
s_atomic_swap_x2 {s(sEXP,2)}, {s(WS_,2)}, {s(sT[3])}
{f"s_atomic_swap_x2 {s(sEXP,2)}, {s(WS_,2)}, {s(sT[3])} offset:{RO}" if OPT['r2'] else ""}
s_branch L_e2
L_e1:
s_load_dword {s(sE)}, {s(WS_,2)}, {s(sT[6])}
L_e2:
""")
weave([M32(D1R, XR+4, FC+4, D1R), M32(D1R, XI, FS, D1R), M32(D1R, XI+4, FS+4, D1R), M32(D1I, XR, FN, None)],
      SETA[:24] if not OPT['sb'] else SETA[:16], 6 if not OPT['sb'] else [3, 3, 5, 5])
weave([M32(D1I, XR+4, FN+4, D1I), M32(D1I, XI, FC, D1I), M32(D1I, XI+4, FC+4, D1I)], (lambda t: t[:12] + ["s_setprio 0"] + t[12:] if OPT['p1p'] == 2 else t)(TW1(D1R, False)), [6, 6, 99])
stamp("m1", (2,))
for t_ in TW2(D1I, XR, XI, False, 0, 8): A(t_)
if not OPT['sb']: A(SETA[24])
stamp("tw", (2,))
weave([M32(D2R, FC, XR, None), M32(D2I, FN, XR, None), M32(D2R, FS, XI, D2R), M32(D2I, FC, XI, D2I)], TW2(D1I, XR, XI, False, 8, 16) + (SETA[25:26] if not OPT['sb'] else []), [6, 6, 6, 7])
weave([M32(D2R, FC+4, XR+4, D2R), M32(D2I, FN+4, XR+4, D2I), M32(D2R, FS+4, XI+4, D2R), M32(D2I, FC+4, XI+4, D2I)], SETA[26:] + SETB + SETC[:7] if not OPT['sb'] else [], [6, 5, 3, 99])
stamp("m2", (2,))
for i in range(16):
    cvt(TMP+i, D2R+i, D2I+i)
stamp("cv", (2,))
for i in range(16):
    kd2 = 8*(i >> 2) + (i & 3)
    if i < 8:
        A(f"ds_write_b32 {v(aP)}, {v(TMP+i)} offset:{(80*(kd2>>1)+8*(kd2&1))*8}")
    else:
        e = 31 - kd2 - 4
        A(f"ds_write_b32 {v(aQo if e & 1 else aQe)}, {v(TMP+i)} offset:{(80*(e>>1)+8*(e&1))*8+4}")
A(f"""
s_mov_b64 exec, 1
ds_write_b32 {v(aP)}, {v(TMP)} offset:4
ds_write_b32 {v(aP)}, {v(TMP+8)} offset:{640*8}
s_mov_b64 exec, -1
""")
stamp("wr", (2,))
for t_ in SETC[7:]: A(t_)
if WP == 1:
    A(f"s_cmp_ge_u32 {s(sW)}, 4")
    A("s_cbranch_scc1 L_nowp")
    A(WNSET)
    w_pair(range(NE))
    A.label("L_nowp")
A(f"""
v_mul_u32_u24 {v(PH)}, {2*PS}, {v(g_)}
v_lshlrev_b32 {v(PH+2)}, 4, {v(g_)}
s_cmp_lg_u32 {s(sW)}, {SPW}
s_cbranch_scc1 L_nosp0
s_lshl4_add_u32 {s(sT[0])}, {s(sM8)}, {s(sRHO)}
s_lshl_b32 {s(sT[0])}, {s(sT[0])}, 7
s_add_u32 {s(sT[0])}, {s(sT[0])}, {XB}
v_lshlrev_b32 {v(PH+1)}, 2, {v(vL)}
""")
wait_m("L_wm2", 0)
A(f"""
v_lshl_or_b32 v11, v12, 16, v11
s_mov_b64 exec, 0xffff
buffer_store_dword v11, {v(PH+1)}, {srd(WS_)}, {s(sT[0])} offen offset:64 sc1
s_mov_b64 exec, -1
L_nosp0:
s_waitcnt lgkmcnt(0)
""")
if OPT['p1p'] == 1: A("s_setprio 0")
stamp("wrd", (2,))
A("s_barrier")
stamp("bar1", (1, 2, 4))
for t in range(4):
    for jj in range(2):
        A(f"ds_read_b64 {v(XR+4*t+2*jj,2)}, {v(aRD)} offset:{160*t+PS*jj}")
A(f"ds_read_b64 {v(D2I,2)}, {v(PH)} offset:{EXOFF+640*8}")
A(f"ds_read_b64 {v(D2I+2,2)}, {v(PH)} offset:{EXOFF+640*8+PS}")
for t_ in TAGI: A(t_)
for t in range(4):
    A(f"s_waitcnt lgkmcnt({8-2*t})")
    m16(D1R+8*t, M3, XR+4*t, None)
for t in range(4):
    m16(D1R+8*t+4, M3+4, XR+4*t, None)
A("s_waitcnt lgkmcnt(0)")
peek(sC1)
for mt in range(2):
    for al in range(2):
        o = TMP + 4 + (mt*2+al)*4
        d = D1R + 4*mt + 2*al
        cvt(o, d, d+8); cvt(o+2, d+1, d+9)
        if mt == 0: m16(D2R+4*al, M3+4*al, D2I, None)
        cvt(o+1, d+16, d+24); cvt(o+3, d+17, d+25)
    for al in range(2):
        o = TMP + 4 + (mt*2+al)*4
        A(f"buffer_store_dwordx4 {v(o,4)}, {v(aST)}, {srd(OUT_)}, {s(sS1[mt])} offen offset:{al*256} sc1")
A(f"""
s_cmp_lg_u32 {s(sW)}, {SPW}
s_cbranch_scc1 L_nosp1
""")
cvt(TMP, D2R, D2R+2); cvt(TMP+1, D2R+4, D2R+6); cvt(TMP+2, D2R+1, D2R+3); cvt(TMP+3, D2R+5, D2R+7)
A(f"""
s_mov_b32 exec_lo, 0x00010001
s_mov_b32 exec_hi, 0x00010001
buffer_store_dwordx4 {v(TMP,4)}, {v(PH+2)}, {srd(WS_)}, {s(sT[0])} offen sc1
s_mov_b64 exec, -1
L_nosp1:
""")
stamp("st1", (2,))
A(f"""
s_barrier
""")
if S3P == 1: early_setup()
if S3P == 3:
    A(f"s_cmp_lt_u32 {s(sW)}, 4")
    A("s_cbranch_scc1 L_notab2")
    load_tables(aTB)
    A.label("L_notab2")
A(f"s_mov_b32 {s(sPH)}, 1")
GH = OPT['gh']
if GH:
    A(f"""
    s_cmp_lt_u32 {s(sW)}, 4
    s_cbranch_scc1 L_nogen
    s_sub_u32 {s(sI)}, {s(sW)}, {4 if GH == 2 else 0}
    L_gen:
    """)
    if STAG == 2:
        A(f"s_cmp_lg_u32 {s(sM)}, 0")
        A("s_cbranch_scc1 L_genskip")
    gen_m2(sI)
    A.label("L_genskip")
    if GH == 2:
        A(f"""
        s_add_u32 {s(sI)}, {s(sI)}, 4
        s_cmp_lt_u32 {s(sI)}, 8
        s_cbranch_scc1 L_gen
        """)
    lds_post(12)
    if GH == 1:
        A(f"s_cmp_lt_u32 {s(sW)}, 4")
        A("s_cbranch_scc1 L_genret")
    A.label("L_nogen")
validate("L_val1", sC1)
A("s_waitcnt vmcnt(0)")
signal(sC1)
stamp("fl1")
if S3P == 2:
    early_setup()
    A(f"s_mov_b32 {s(sPH)}, 1")
aW, aF, aRe, aIm, aO, aD = vT[2:8]
sFA, sFB, sFC, sDST, sOI, sDONE, sNEW, sMK = sT[4:12]
sTWO = sT[12]
A(f"""
s_cmp_ge_u32 {s(sW)}, 4
s_cbranch_scc1 L_helper
""")
A(f"""
v_add_u32 {v(PH)}, 8, {v(vL)}
v_mul_u32_u24 {v(PH+1)}, 57, {v(PH)}
v_lshrrev_b32 {v(PH+1)}, 9, {v(PH+1)}
v_mul_u32_u24 {v(PH+1)}, {16416-144}, {v(PH+1)}
v_lshl_add_u32 {v(aWT)}, {v(PH)}, 4, {v(PH+1)}
v_add_u32 {v(aWT)}, {56*16416}, {v(aWT)}
""")
w_piece(4)
if WP == 0: A(WNSET)
w_pair(range(NE, 4))
if NEA != NE:
    A(f"s_cmp_lg_u32 {s(sM)}, 0")
    A("s_cbranch_scc1 L_nolate")
    w_pair(range(NEA, NE))
    A.label("L_nolate")
if GH == 1:
    A(f"s_mov_b32 {s(sI)}, {s(sW)}")
    A("s_branch L_gen")
    A.label("L_genret")
if GH == 0:
    if STAG == 2:
        A(f"s_cmp_lg_u32 {s(sM)}, 0")
        A("s_cbranch_scc1 L_genskip")
    A(f"s_mov_b32 {s(sI)}, {s(sW)}")
    A.label("L_gen")
    gen_m2(sI)
    A(f"""
    s_add_u32 {s(sI)}, {s(sI)}, 4
    s_cmp_lt_u32 {s(sI)}, 8
    s_cbranch_scc1 L_gen
    L_genskip:
    """)
    lds_post(12)
A(f"""
s_mov_b32 {s(sFA)}, 0
s_and_b32 {s(sFC)}, {s(sA)}, 7
s_mov_b32 {s(sFB)}, 0
s_mul_i32 {s(sOI)}, {s(sW)}, {OS}
s_add_u32 {s(sOI)}, {s(sOI)}, {WOFF}
v_lshrrev_b32 {v(aRe)}, 2, {v(vL)}
v_and_b32 {v(aF)}, 3, {v(aRe)}
v_xor_b32 {v(aF)}, {s(sW)}, {v(aF)}
v_lshlrev_b32 {v(aRe)}, 8, {v(aRe)}
v_lshl_add_u32 {v(aRe)}, {v(aF)}, 6, {v(aRe)}
v_and_b32 {v(aF)}, 3, {v(vL)}
v_lshl_add_u32 {v(aRe)}, {v(aF)}, 4, {v(aRe)}
s_lshl_b32 {s(sT[0])}, {s(sW)}, 5
s_add_u32 {s(sT[0])}, {s(sT[0])}, {WOFF}
v_min_u32 {v(aW)}, 2, {v(g_)}
v_mul_u32_u24 {v(aF)}, 144, {v(c_)}
v_lshl_add_u32 {v(aW)}, {v(aW)}, 4, {v(aF)}
v_add_u32 {v(aW)}, {s(sT[0])}, {v(aW)}
""")
A.label("L_p2common")
A(f"v_lshlrev_b32 {v(aF)}, 4, {v(vL)}")
A(f"v_add_u32 {v(aF)}, {M2OFF}, {v(aF)}")
SEL = DNR
A(f"""
v_lshlrev_b32 {v(DIM)}, {s(sFA)}, {v(c_)}
v_lshlrev_b32 {v(DIM+1)}, 3, {v(g_)}
v_sub_u32 {v(DIM)}, {v(DIM)}, {v(DIM+1)}
v_add_u32 {v(DIM)}, {s(sFC)}, {v(DIM)}
v_add_u32 {v(DIM+1)}, {s(sFB)}, {v(DIM)}
v_mov_b32 {v(DIM+4)}, 0x3500
""")
for q in range(2):
    A(f"v_and_b32 {v(DIM+2)}, 1, {v(DIM+q)}")
    A(f"v_lshlrev_b32 {v(DIM+2)}, 4, {v(DIM+2)}")
    A(f"v_lshlrev_b32 {v(DIM+2)}, {v(DIM+2)}, {v(DIM+4)}")
    A(f"v_ashrrev_i32 {v(DIM+3)}, 1, {v(DIM+q)}")
    for j in range(4):
        A(f"v_cmp_eq_u32 vcc, {j}, {v(DIM+3)}")
        A(f"v_cndmask_b32 {v(SEL+4*q+j)}, 0, {v(DIM+2)}, vcc")
A(f"""
v_and_b32 {v(aIm)}, 1, {v(g_)}
v_lshl_add_u32 {v(aRe)}, {v(aIm)}, 3, {v(aRe)}
v_xor_b32 {v(aIm)}, 8, {v(aRe)}
v_bfe_u32 {v(aO)}, {v(vL)}, 1, 2
v_xor_b32 {v(aO)}, {v(aO)}, {v(g_)}
v_lshlrev_b32 {v(aO)}, 4, {v(aO)}
v_lshl_add_u32 {v(aO)}, {v(c_)}, 6, {v(aO)}
v_add_u32 {v(aO)}, {s(sOI)}, {v(aO)}
v_mov_b32 {v(vT[9])}, {2 if OPT['g2'] else 1}
s_mov_b32 {s(sT[0])}, 0x80008000
s_mov_b32 {s(sDONE)}, 0
s_mov_b32 {s(sTWO)}, 2.0
s_mov_b32 {s(sTWO+1)}, 2.0
""")
lds_wait("L_fr", 12, 8 if GH == 1 else 4)
for f in range(16):
    A(f"ds_read_b128 {v(FR+4*f,4)}, {v(aF)} offset:{f*1024}")
A(f"""
s_waitcnt vmcnt(0)
s_cmp_lt_u32 {s(sW)}, 4
s_cbranch_scc1 L_wreg
""")
XP = [WR_, WR_+2, WI_, WI_+2]
A(f"""
s_mov_b32 {s(sCNT)}, 0x8000
L_pollx:
""")
for i in range(4):
    A(f"s_mov_b64 {s(XP[i],2)}, 0")
    A(f"s_atomic_or_x2 {s(XP[i],2)}, {s(WS_,2)}, {s(sT[2])} offset:{(SPW*4+i)*CP} glc")
A(f"""
s_sub_u32 {s(sCNT)}, {s(sCNT)}, 1
s_cbranch_scc1 L_pollx_out
s_waitcnt lgkmcnt(0)
""")
for i in range(4):
    A(f"s_cmp_lg_u32 {s(XP[i]+1)}, {s(sTAG)}")
    A("s_cbranch_scc1 L_pollx")
A(f"""
s_and_b32 {s(XP[0])}, {s(XP[0])}, {s(XP[1])}
s_and_b32 {s(XP[2])}, {s(XP[2])}, {s(XP[3])}
s_and_b32 {s(XP[0])}, {s(XP[0])}, {s(XP[2])}
s_cmp_lg_u32 {s(XP[0])}, 32
s_cbranch_scc1 L_pollx
L_pollx_out:
s_mov_b32 {s(sT[2])}, {s(sDST)}
""")
stamp("pol1")
for n in range(8):
    A(f"buffer_load_dwordx4 {v(ER+4*n,4)}, {v(aW)}, {srd(WS_)}, {s(sT[2])} offen offset:64 sc1")
    A(f"buffer_load_dwordx4 {v(aD)}, {srd(WS_)}, {s(sT[2])} offen sc1 lds")
    if n < 7:
        A(f"s_add_u32 m0, m0, 4096")
        A(f"s_add_u32 {s(sT[2])}, {s(sT[2])}, 2048")
A("s_setprio 3" if OPT['xprio'] else "s_setprio 0")
for t in range(8):
    A(f"s_waitcnt vmcnt({14-2*t})")
    m16(WRF+4*t, ER+4*t, SEL, None); m16(WIF+4*t, ER+4*t, SEL+4, None)
A("s_waitcnt lgkmcnt(0)")
A("s_branch L_f0")
A.label("L_wreg")
lds_post(0)

lds_wait("L_wr", 0, 8)
for t in range(16):
    if t == 12: A("s_waitcnt lgkmcnt(8)")
    A(f"ds_read_b128 {v(ER+4*t,4)}, {v(aW)} offset:{t*2304}")
A(f"""
v_mov_b32 {v(vS1)}, 0x100
s_mov_b64 exec, 1
ds_add_u32 {v(vSY)}, {v(vS1)} offset:8
s_mov_b64 exec, -1
""")
for t in range(16):
    if t >= 4: A(f"s_waitcnt lgkmcnt({16-t})")
    m16(WRF+4*t, ER+4*t, SEL, None)
stamp("wcv", (1,))
CH = OPT['ch']
IFR = lambda u: [f"ds_read_b128 {v(FR+4*f,4)}, {v(aF)} offset:{16384+f*1024}" for f in range(4*u, 4*u+4)]
def TR4(u):
    return [f"ds_read_b64_tr_b16 {v(DRE+4*u+2*j,2)}, {v(aRe)} offset:{u*8192+j*4096}" for j in range(2)] + \
           [f"ds_read_b64_tr_b16 {v(DIM+4*u+2*j,2)}, {v(aIm)} offset:{u*8192+j*4096}" for j in range(2)]
def BLK(u):
    fc = lambda mt: FR + (u*4 + mt*2) * 4
    fs = lambda mt: FR + (u*4 + mt*2 + 1) * 4
    e = lambda mt: (u*2 + mt) * 4
    c0 = lambda r: r - 16 if CH and u >= 2 else None
    return [M16(ER+e(0), fc(0), DRE+4*u, c0(ER+e(0))), M16(ER+e(1), fc(1), DRE+4*u, c0(ER+e(1))),
            M16(EI+e(0), fc(0), DIM+4*u, c0(EI+e(0))), M16(EI+e(1), fc(1), DIM+4*u, c0(EI+e(1))),
            M16(ER+e(0), fs(0), DIM+4*u, ER+e(0)), M16(ER+e(1), fs(1), DIM+4*u, ER+e(1)),
            M16(EI+e(0), fs(0), DNR+4*u, EI+e(0)), M16(EI+e(1), fs(1), DNR+4*u, EI+e(1))]
XO = lambda u: [f"v_xor_b32 {v(DNR+4*u+j)}, {s(sT[0])}, {v(DRE+4*u+j)}" for j in range(4)]
ALLB = 0x422
if OPT['fw'] == 3:
    A(f"""
    s_mov_b32 {s(sCNT)}, 0x40000
    L_go:
    ds_read_b32 {v(vS1)}, {v(vSY)} offset:8
    s_sub_u32 {s(sCNT)}, {s(sCNT)}, 1
    s_cbranch_scc1 L_f0
    s_waitcnt lgkmcnt(0)
    v_readfirstlane_b32 {s(sMK)}, {v(vS1)}
    s_and_b32 {s(sNEW)}, {s(sMK)}, 0x22
    s_cbranch_scc0 L_go
    s_cmp_lg_u32 {s(sMK)}, {ALLB}
    s_cbranch_scc1 L_half
    """)
else:
    lds_wait("L_go", 8, ALLB)
A.label("L_f0")
stamp("dat1", (1, 3))
for t_ in TR4(0) + TR4(1) + TR4(2): A(t_)
A("s_waitcnt lgkmcnt(10)")
weave(BLK(0), XO(0) + ["s_waitcnt lgkmcnt(8)"] + TR4(3), [2, 3, 1, 1, 1, 1, 0, 0])
A("s_waitcnt lgkmcnt(8)")
weave(BLK(1), XO(1), 2)
A("s_waitcnt lgkmcnt(0)")
weave(BLK(2), XO(2) + IFR(0) + IFR(1)[:2], [2, 2, 1, 1, 1, 1, 1, 1])
weave(BLK(3), XO(3) + IFR(1)[2:] + IFR(2), [2, 2, 1, 1, 1, 1, 1, 1])
for t_ in IFR(3): A(t_)
A("s_nop 1")
A.label("L_fwd_done")
def half_paths():
    A(f"""
    L_half:
    s_bitcmp1_b32 {s(sMK)}, 1
    s_cbranch_scc0 L_h1
    """)
    for h in range(2):
        A.label(f"L_h{h}")
        stamp("dat1", (1, 3))
        for t_ in TR4(h) + TR4(h+2): A(t_)
        A("s_waitcnt lgkmcnt(6)")
        weave(BLK(h), XO(h) + ["s_waitcnt lgkmcnt(4)"], [2, 3, 0, 0, 0, 0, 0, 0])
        A("s_waitcnt lgkmcnt(0)")
        weave(BLK(h+2), XO(h+2) + IFR(h), [2, 2, 1, 1, 1, 1, 0, 0])
        for t_ in IFR(h+2): A(t_)
        A(f"s_xor_b32 {s(sDONE)}, {s(sDONE)}, 1")
        A("s_cbranch_scc0 L_fwd_done")
        lds_wait(f"L_hw{h}", 8, ALLB)
        if h: A("s_branch L_h0")
stamp("fwd", (3,))
A("s_nop 1")
TT = DNR
def pk(op, d, a, b, c=None, na=False, nb=False):
    ops = f"{v(d,2)}, {v(a,2)}, {v(b,2)}" + (f", {v(c,2)}" if c is not None else "")
    n = [int(na), int(nb)] + ([0] if c is not None else [])
    mod = f" neg_lo:{n} neg_hi:{n}".replace(", ", ",") if (na or nb) else ""
    A(f"v_pk_{op}_f32 {ops}{mod}")
add = lambda d, a, b: pk("add", d, a, b)
sub = lambda d, a, b: pk("add", d, a, b, nb=True)
A.raw(".p2align 3")
for mt in range(2):
    for rp in range(2):
        if mt*2 + rp < OPT['cut']: continue
        er = lambda u: ER + (u*2+mt)*4 + 2*rp
        ei = lambda u: EI + (u*2+mt)*4 + 2*rp
        wr = lambda q: WRF + (q*2+mt)*4 + 2*rp
        wi = lambda q: WIF + (q*2+mt)*4 + 2*rp
        tr = lambda i: TT + 4*i
        ti = lambda i: TT + 4*i + 2
        if CH:
            dif = lambda d, a, c: A(f"v_pk_fma_f32 {v(d,2)}, {v(a,2)}, {s(sTWO,2)}, {v(c,2)} neg_lo:[0,0,1] neg_hi:[0,0,1]")
            dif(tr(1), er(0), er(2)); dif(ti(1), ei(0), ei(2)); dif(tr(3), er(1), er(3)); dif(ti(3), ei(1), ei(3))
            add(er(0), er(2), er(3)); add(ei(0), ei(2), ei(3)); sub(er(2), er(2), er(3)); sub(ei(2), ei(2), ei(3))
        else:
            add(tr(0), er(0), er(2)); add(ti(0), ei(0), ei(2)); sub(tr(1), er(0), er(2)); sub(ti(1), ei(0), ei(2))
            add(tr(2), er(1), er(3)); add(ti(2), ei(1), ei(3)); sub(tr(3), er(1), er(3)); sub(ti(3), ei(1), ei(3))
            add(er(0), tr(0), tr(2)); add(ei(0), ti(0), ti(2)); sub(er(2), tr(0), tr(2)); sub(ei(2), ti(0), ti(2))
        add(er(1), tr(1), ti(3)); sub(ei(1), ti(1), tr(3)); sub(er(3), tr(1), ti(3)); add(ei(3), ti(1), tr(3))
        for q in range(4):
            pk("mul", tr(q), er(q), wr(q)); pk("mul", ti(q), er(q), wi(q))
        for q in range(4):
            pk("fma", tr(q), ei(q), wi(q), tr(q), na=True); pk("fma", ti(q), ei(q), wr(q), ti(q))
        add(wr(0), tr(0), tr(2)); add(wi(0), ti(0), ti(2)); sub(wr(1), tr(0), tr(2)); sub(wi(1), ti(0), ti(2))
        add(wr(2), tr(1), tr(3)); add(wi(2), ti(1), ti(3)); sub(wr(3), tr(1), tr(3)); sub(wi(3), ti(1), ti(3))
        add(er(0), wr(0), wr(2)); add(ei(0), wi(0), wi(2)); sub(er(2), wr(0), wr(2)); sub(ei(2), wi(0), wi(2))
        sub(er(1), wr(1), wi(3)); add(ei(1), wi(1), wr(3)); add(er(3), wr(1), wi(3)); sub(ei(3), wi(1), wr(3))
def OPS(u):
    L = [CVT(DRE+4*u+j, ER+8*u+2*j, ER+8*u+2*j+1) for j in range(4)]
    L += [CVT(DIM+4*u+j, EI+8*u+2*j, EI+8*u+2*j+1) for j in range(4)]
    L += [CVT(DNR+4*u+j, EI+8*u+2*j, EI+8*u+2*j+1, True, True) for j in range(4)]
    return L
def INV(k):
    e = k*4; o = WRF + e
    return [CVT(o, ER+e, ER+e+1), CVT(o+1, ER+e+2, ER+e+3), CVT(o+2, EI+e, EI+e+1), CVT(o+3, EI+e+2, EI+e+3),
            f"ds_write_b128 {v(aO)}, {v(o,4)} offset:{k*1024}", f"ds_add_u32 {v(vPG)}, {v(vT[9])}"]
for t_ in OPS(0): A(t_)
A("s_waitcnt lgkmcnt(0)")
stamp("mid", (3,))
if OPT['g2']:
    for u in range(4):
        mf = []
        for nt in range(2):
            fc, fs, e = FR + (u*4 + nt*2) * 4, FR + (u*4 + nt*2 + 1) * 4, (u*2+nt) * 4
            mf += [M16(ER+e, DRE+4*u, fc, None), M16(EI+e, DIM+4*u, fc, None), M16(ER+e, DNR+4*u, fs, ER+e), M16(EI+e, DRE+4*u, fs, EI+e)]
        ops = OPS(u+1) if u < 3 else []
        if u:
            l0, l1 = INV(2*u-2), INV(2*u-1)
            out = l0[:4] + l1[:4] + [l0[4], l1[4], l1[5]]
            weave(mf, out + ops, [2, 2, 2, 5, 3, 3, 3, 3] if ops else [2, 2, 2, 5, 0, 0, 0, 0])
        else: weave(mf, ops, 2)
    stamp("inv", (3,))
    l0, l1 = INV(6), INV(7)
    for t_ in l0[:4] + l1[:4] + [l0[4], l1[4], l1[5]]: A(t_)
else:
    for k in range(8):
        u, nt = k >> 1, k & 1
        fc, fs, e = FR + (u*4 + nt*2) * 4, FR + (u*4 + nt*2 + 1) * 4, k * 4
        ops = OPS(u+1)[6*nt:6*nt+6] if u < 3 else []
        out = INV(k-1) if k >= 1 else []
        fill = ops + out
        weave([M16(ER+e, DRE+4*u, fc, None), M16(EI+e, DIM+4*u, fc, None), M16(ER+e, DNR+4*u, fs, ER+e), M16(EI+e, DRE+4*u, fs, EI+e)],
              fill, [3, 3, 2, 4] if ops and out else ([2, 2, 2, 0] if ops else [0, 0, 0, 6]))
    stamp("inv", (3,))
    for t_ in INV(7): A(t_)
stamp("cmp2", (1, 3))
A(f"""
s_cmp_lt_u32 {s(sW)}, 4
s_cbranch_scc1 L_setup3
""")
A(f"""
v_lshlrev_b32 {v(aO)}, 7, {v(c_)}
v_lshl_add_u32 {v(aO)}, {v(g_)}, 4, {v(aO)}
""")
for i in range(8): A(f"v_mov_b32 {v(WIF+2*i+1)}, {s(sTAG)}")
for k in range(8):
    o = WIF + 8*(k & 1)
    for e in range(4): cvt(o+2*e, ER+4*k+e, EI+4*k+e)
    for h in range(2): A(f"buffer_store_dwordx4 {v(o+4*h,4)}, {v(aO)}, {srd(WS_)}, {s(sDST)} offen offset:{(k&1)*2048+h*64} sc1")
    if k & 1: A(f"s_add_u32 {s(sDST)}, {s(sDST)}, 4096")
A(f"""
s_setprio 0
s_branch L_setup3
""")
if OPT['fw'] == 3: half_paths()
A(f"""
L_helper:
""")
if OPT['hp'] & 1: A("s_setprio 2")
lds_post(0)
A(f"""
s_cmp_eq_u32 s2, {HA}
s_cselect_b32 {s(sT[3])}, {s(sW)}, 0
s_cmp_eq_u32 s2, {HB}
s_cselect_b32 {s(sT[3])}, {s(sW)}, {s(sT[3])}
s_cmp_lg_u32 {s(sT[3])}, 4
s_cbranch_scc1 L_loader
s_mov_b32 {s(sFA)}, 1
s_mov_b32 {s(sFC)}, 0
s_mov_b32 {s(sFB)}, 1
s_cmp_eq_u32 s2, {HB}
s_cselect_b32 {s(sDST)}, 0x4000, 0
s_lshl1_add_u32 {s(sT[2])}, {s(sDST)}, {CB}
s_add_u32 {s(sDST)}, {s(sDST)}, {XB}
v_lshrrev_b32 {v(aD)}, 2, {v(vL)}
v_and_b32 {v(aW)}, 3, {v(vL)}
v_lshlrev_b32 {v(aW)}, 4, {v(aW)}
v_lshl_add_u32 {v(aD)}, {v(aD)}, 7, {v(aW)}
v_lshlrev_b32 {v(aW)}, 7, {v(c_)}
v_lshl_add_u32 {v(aW)}, {v(g_)}, 4, {v(aW)}
s_mov_b32 {s(sOI)}, {XOUT}
v_lshlrev_b32 {v(aRe)}, 4, {v(vL)}
v_add_u32 {v(aRe)}, {EXOFF}, {v(aRe)}
s_mov_b32 m0, {EXOFF}
s_branch L_p2common
L_loader:
""")
sSRC, sPL, sSG, sBIT = sT[4:8]
A(f"""
s_sub_u32 {s(sT[1])}, {s(sW)}, 4
s_and_b32 {s(sT[10])}, {s(sA)}, 8
s_add_u32 {s(sT[10])}, {s(sT[10])}, {s(sGRP)}
s_lshl_b32 {s(sT[10])}, {s(sT[10])}, 11
s_add_u32 {s(sT[10])}, {s(sT[10])}, {s(sM8)}
s_and_b32 {s(sT[9])}, {s(sA)}, 7
s_add_u32 {s(sT[10])}, {s(sT[10])}, {s(sT[9])}
s_lshl_b32 {s(sT[10])}, {s(sT[10])}, 8
s_lshl_b32 {s(sSRC)}, {s(sT[1])}, 12
s_add_u32 {s(sSRC)}, {s(sSRC)}, {s(sT[10])}
s_lshl2_add_u32 {s(sPL)}, {s(sGRP)}, {s(sT[1])}
s_mul_i32 {s(sPL)}, {s(sPL)}, {CP}
s_add_u32 {s(sPL)}, {s(sPL)}, {s(sCM)}
s_lshl_b32 m0, {s(sT[1])}, 13
s_xor_b32 {s(sSG)}, {s(sSRC)}, {65536 | (OPT['px'] << 19)}
v_lshlrev_b32 {v(aD)}, 2, {v(g_)}
v_xor_b32 {v(aD)}, {v(aD)}, {v(c_)}
v_lshlrev_b32 {v(aD)}, 4, {v(aD)}
v_lshl_add_u32 {v(aD)}, {v(g_)}, 14, {v(aD)}
""")
A(f"""
s_bitcmp1_b32 {s(sW)}, 0
s_cselect_b32 {s(sBIT)}, 16, 1
s_cmp_eq_u32 {s(sT[3])}, 5
s_cselect_b32 {s(sBIT)}, 17, {s(sBIT)}
v_mov_b32 {v(vT[2])}, {s(sBIT)}
s_cbranch_scc0 L_single
s_mov_b32 {s(sEXP)}, 32
s_mov_b32 {s(sCNT)}, 0x8000
s_sub_u32 {s(sT[2])}, {s(sPL)}, {CP}
L_dual:
s_mov_b64 {s(XP[0],2)}, 0
s_atomic_or_x2 {s(XP[0],2)}, {s(WS_,2)}, {s(sT[2])} glc
""")
peek(sPL)
A(f"""
s_sub_u32 {s(sCNT)}, {s(sCNT)}, 1
s_cbranch_scc1 L_poll1_out
s_waitcnt lgkmcnt(0)
s_cmp_eq_u64 {s(XP[0],2)}, {s(sEXP,2)}
s_cbranch_scc0 L_dual
s_cmp_eq_u64 {s(sV,2)}, {s(sEXP,2)}
s_cbranch_scc1 L_poll1_out
L_single:
""")
poll("L_poll1", sPL, 32, OPT['sl1'])
stamp("pol1")
for n in range(8):
    r_ = sSG if n & 1 else sSRC
    A(f"buffer_load_dwordx4 {v(aD)}, {srd(OUT_)}, {s(r_)} offen sc1 lds")
    if n < 7: A(f"s_add_u32 m0, m0, 1024")
    if n < 6: A(f"s_add_u32 {s(r_)}, {s(r_)}, 131072")
A(f"""
s_cmp_lg_u32 {s(sT[3])}, 5
s_cbranch_scc1 L_posted
s_mov_b32 {s(sT[3])}, 0
s_mov_b32 m0, 0
s_mov_b32 {s(sSRC)}, {s(sT[10])}
s_xor_b32 {s(sSG)}, {s(sSRC)}, {65536 | (OPT['px'] << 19)}
s_branch L_poll1_out
""")
def post_rows(extra):
    A("s_mov_b64 exec, 1")
    A("s_waitcnt vmcnt(0)")
    A(f"ds_add_u32 {v(vSY)}, {v(vT[2])} offset:8")
    A("s_mov_b64 exec, -1")
A.label("L_posted")
A(f"""
s_cmp_lt_u32 {s(sW)}, {8-NST}
s_cselect_b32 {s(sPH)}, 1, 0
""")
post_rows(0)
stamp("ld1")
if OPT['hp'] & 1: A("s_setprio 0")
if S3P: A("s_branch L_setup3_end")
A.label("L_setup3")
A3 = 237
QQ = TMP + 24
aD3, aPw, aQ1, aQ0, aRd3, aSo, aQp = range(A3, A3+7)
aT = list(range(A3+9, A3+13))
sMR = 29
A(f"""
v_lshrrev_b32 {v(QQ)}, 1, {v(vL)}
v_xor_b32 {v(QQ)}, {v(QQ)}, {v(vL)}
v_and_b32 {v(QQ)}, 4, {v(QQ)}
v_mul_u32_u24 {v(QQ)}, 3, {v(QQ)}
v_xor_b32 {v(QQ)}, {v(QQ)}, {v(vL)}
v_lshlrev_b32 {v(aTB)}, 4, {v(QQ)}
v_add_u32 {v(aTB)}, {T1OFF}, {v(aTB)}
v_and_b32 {v(aSo)}, 15, {v(QQ)}
v_lshlrev_b32 {v(aSo)}, 6, {v(aSo)}
v_and_b32 {v(QQ)}, 1, {v(g_)}
v_lshl_add_u32 {v(aSo)}, {v(QQ)}, 5, {v(aSo)}
v_lshrrev_b32 {v(QQ)}, 1, {v(g_)}
v_lshl_add_u32 {v(aSo)}, {v(QQ)}, 4, {v(aSo)}
""")
if S3P == 3:
    A(f"s_cmp_eq_u32 {s(sPH)}, 2")
    A("s_cbranch_scc1 L_notab")
load_tables(aTB)
A.label("L_notab")
A(f"""
v_lshrrev_b32 {v(QQ)}, 2, {v(c_)}
v_lshl_add_u32 {v(QQ)}, {v(QQ)}, 7, {s(sSB)}
v_cvt_f32_u32 {v(QQ)}, {v(QQ)}
v_mul_f32 {v(QQ)}, {fbits(1/2048)}, {v(QQ)}
v_add_f32 {v(QQ+1)}, {fbits(0.25)}, {v(QQ)}
v_and_b32 {v(QQ+2)}, 1, {v(c_)}
v_cvt_f32_u32 {v(QQ+2)}, {v(QQ+2)}
v_mul_f32 {v(QQ+2)}, {fbits(-0.25)}, {v(QQ+2)}
v_add_f32 {v(QQ+3)}, {fbits(-0.125)}, {v(QQ+2)}
v_add_f32 {v(QQ+2)}, {fbits(0.125)}, {v(QQ+2)}
v_and_b32 {v(QQ+4)}, 2, {v(c_)}
v_lshlrev_b32 {v(QQ+4)}, 30, {v(QQ+4)}
v_xor_b32 {v(QQ+2)}, {v(QQ+4)}, {v(QQ+2)}
v_xor_b32 {v(QQ+3)}, {v(QQ+4)}, {v(QQ+3)}
v_lshlrev_b32 {v(QQ+4)}, 1, {v(g_)}
v_cvt_f32_u32 {v(QQ+4)}, {v(QQ+4)}
v_add_f32 {v(QQ+5)}, 1.0, {v(QQ+4)}
v_add_f32 {v(QQ+6)}, {fbits(8.0)}, {v(QQ+4)}
v_add_f32 {v(QQ+7)}, {fbits(9.0)}, {v(QQ+4)}
""")
for mt in range(2):
    for j in range(4):
        t = TMP + (mt*4+j)*3
        A(f"v_fma_f32 {v(t)}, {v(QQ+mt)}, {v(QQ+4+j)}, {v(QQ+2+(j&1))}")
        A(f"v_cos_f32 {v(t+1)}, {v(t)}")
        A(f"v_sin_f32 {v(t+2)}, {v(t)}")
for mt in range(2):
    for j in range(4):
        t = TMP + (mt*4+j)*3
        cvt(M3T+mt*4+j, t+1, t+2, False, True)
A(f"""
v_lshrrev_b32 {v(QQ)}, 3, {v(vL)}
v_and_b32 {v(QQ+1)}, 3, {v(QQ)}
v_lshlrev_b32 {v(QQ+1)}, 6, {v(QQ+1)}
v_lshl_add_u32 {v(QQ)}, {v(QQ)}, 8, {v(QQ+1)}
v_and_b32 {v(QQ+1)}, 3, {v(vL)}
v_lshl_add_u32 {v(QQ)}, {v(QQ+1)}, 4, {v(QQ)}
v_and_b32 {v(QQ+1)}, 4, {v(vL)}
v_lshl_add_u32 {v(QQ)}, {v(QQ+1)}, 1, {v(QQ)}
v_add_u32 {v(aT[0])}, {s(sW12)}, {v(QQ)}
v_xor_b32 {v(aT[1])}, 64, {v(aT[0])}
v_xor_b32 {v(aT[2])}, 128, {v(aT[0])}
v_xor_b32 {v(aT[3])}, 192, {v(aT[0])}
v_mul_u32_u24 {v(QQ)}, {PS2}, {v(g_)}
s_lshl_b32 {s(sT[0])}, {s(sW)}, 8
s_add_u32 {s(sT[1])}, {s(sT[0])}, {EX2}
s_sub_u32 {s(sT[0])}, {EX2+15*256}, {s(sT[0])}
v_lshl_add_u32 {v(aPw)}, {v(c_)}, 3, {v(QQ)}
v_add_u32 {v(aPw)}, {s(sT[1])}, {v(aPw)}
v_sub_u32 {v(QQ+1)}, 16, {v(c_)}
v_lshl_add_u32 {v(QQ+1)}, {v(QQ+1)}, 3, {v(QQ)}
v_add_u32 {v(aQp)}, {s(sT[0])}, {v(QQ+1)}
v_cmp_eq_u32 vcc, 0, {v(c_)}
v_mov_b32 {v(QQ+2)}, 128
v_mov_b32 {v(QQ+3)}, 132
v_mov_b32 {v(QQ+4)}, -124
v_cndmask_b32 {v(QQ+4)}, {v(QQ+2)}, {v(QQ+4)}, vcc
v_cndmask_b32 {v(QQ+3)}, {v(QQ+3)}, {v(QQ+2)}, vcc
v_add_u32 {v(aQ1)}, {v(aQp)}, {v(QQ+4)}
v_add_u32 {v(aQ0)}, {v(aQp)}, {v(QQ+3)}
s_mul_i32 {s(sT[0])}, {s(sP)}, {PS2}
s_add_u32 {s(sT[0])}, {s(sT[0])}, {EX2}
v_and_b32 {v(QQ+1)}, 31, {v(vL)}
v_lshrrev_b32 {v(QQ+2)}, 5, {v(vL)}
v_lshlrev_b32 {v(QQ+3)}, 9, {v(QQ+2)}
v_lshl_add_u32 {v(QQ+3)}, {v(QQ+1)}, 3, {v(QQ+3)}
v_add_u32 {v(aRd3)}, {s(sT[0])}, {v(QQ+3)}
s_lshl_b32 {s(sO[0])}, {s(sP)}, 7
s_add_u32 {s(sO[0])}, {s(sO[0])}, {s(sSB)}
s_lshl_b32 {s(sO[0])}, {s(sO[0])}, 12
s_lshl_b32 {s(sO[1])}, {s(sM)}, 11
s_add_u32 {s(sO[0])}, {s(sO[0])}, {s(sO[1])}
s_add_u32 {s(sO[1])}, {s(sO[0])}, {1024*4096}
s_mov_b32 {s(sPM)}, 0x05040100
s_mov_b32 {s(sPM+1)}, 0x07060302
""")
A(f"""
v_lshlrev_b32 {v(QQ)}, 2, {v(g_)}
v_xor_b32 {v(QQ)}, {v(QQ)}, {v(c_)}
v_lshlrev_b32 {v(QQ)}, 4, {v(QQ)}
v_lshl_add_u32 {v(aD3)}, {v(g_)}, 8, {v(QQ)}
s_lshl_b32 {s(sMR)}, {s(sM)}, 7
s_add_u32 {s(sMR)}, {s(sMR)}, {s(sRHO)}
""")
if S3P:
    A(f"s_cmp_eq_u32 {s(sPH)}, 2")
    A("s_cbranch_scc1 L_ret1")
A(f"""
L_setup3_end:
s_cmp_lg_u32 {s(sPH)}, 0
s_cbranch_scc1 L_nosig2
""")
aR0, aR1, aS2, aPr, aS3 = vT[2:7]
sD = sT[4:5]
A(f"""
v_bfe_u32 {v(aR0)}, {v(vL)}, 2, 2
v_mul_u32_u24 {v(aR0)}, {OS}, {v(aR0)}
v_lshl_add_u32 {v(aR0)}, {v(g_)}, 6, {v(aR0)}
v_and_b32 {v(aR1)}, 3, {v(vL)}
v_mul_u32_u24 {v(aPr)}, 260, {v(aR1)}
v_add_u32 {v(aPr)}, {PGOFF}, {v(aPr)}
v_lshrrev_b32 {v(aS2)}, 5, {v(vL)}
v_xor_b32 {v(aR1)}, {v(aR1)}, {v(aS2)}
v_lshl_add_u32 {v(aR0)}, {v(aR1)}, 4, {v(aR0)}
s_sub_u32 {s(sT[8])}, 7, {s(sW)}
s_lshl_b32 {s(sT[0])}, {s(sT[8])}, 10
s_add_u32 {s(sT[0])}, {s(sT[0])}, {WOFF}
v_add_u32 {v(aR0)}, {s(sT[0])}, {v(aR0)}
v_xor_b32 {v(aR1)}, 32, {v(aR0)}
v_lshlrev_b32 {v(aS2)}, 14, {v(g_)}
v_lshl_add_u32 {v(aS2)}, {v(c_)}, 4, {v(aS2)}
s_lshl3_add_u32 {s(sT[0])}, {s(sGRP)}, {s(sT[8])}
s_mul_i32 {s(sT[0])}, {s(sT[0])}, {CP}
s_add_u32 {s(sT[0])}, {s(sT[0])}, {s(sCM)}
s_add_u32 {s(sT[0])}, {s(sT[0])}, {32*CP}
""")
if OPT['hp'] & 2: A("s_setprio 2")
NR = -(-8 // NST)
for i in range(NR):
    if NST*i + NST > 8:
        A(f"s_cmp_ge_u32 {s(sT[8])}, 8")
        A("s_cbranch_scc1 L_short")
    A(f"""
    s_lshr_b32 {s(sD[0])}, {s(sT[8])}, 1
    s_and_b32 {s(sT[6])}, {s(sT[8])}, 1
    s_lshl_b32 {s(sT[6])}, {s(sT[6])}, 6
    s_add_u32 {s(sD[0])}, {s(sD[0])}, {s(sT[6])}
    s_lshl_b32 {s(sD[0])}, {s(sD[0])}, 12
    s_add_u32 {s(sD[0])}, {s(sD[0])}, {s(sT[10])}
    s_mov_b32 {s(sCNT)}, 0x40000
    L_pg{i}:
    ds_read_b32 {v(vS1)}, {v(aPr)}
    s_sub_u32 {s(sCNT)}, {s(sCNT)}, 1
    s_cbranch_scc1 L_pg{i}_out
    {('s_sleep %d' % OPT['slp']) if i == 0 and OPT['slp'] else ''}
    s_waitcnt lgkmcnt(0)
    v_cmp_ge_u32 vcc, {s(sT[8])}, {v(vS1)}
    s_and_b64 vcc, vcc, vcc
    s_cbranch_scc1 L_pg{i}
    L_pg{i}_out:
    """)
    d = D1R + 16*i
    for j in range(4): A(f"ds_read_b128 {v(d+4*j,4)}, {v(aR1 if j & 1 else aR0)} offset:{i*NST*1024+j*256}")
    A(f"s_add_u32 {s(sT[8])}, {s(sT[8])}, {NST}")
    for j in range(4):
        A(f"s_waitcnt lgkmcnt({3-j})")
        A(f"buffer_store_dwordx4 {v(d+4*j,4)}, {v(aS2)}, {srd(OUT_)}, {s(sD[0])} offen sc1")
        if j < 3:
            A(f"s_add_u32 {s(sD[0])}, {s(sD[0])}, 65536")
            if OPT['px']: A(f"s_xor_b32 {s(sD[0])}, {s(sD[0])}, {4*AROW}")
for i in range(NR):
    A(f"s_waitcnt vmcnt({4*(NR-1-i)})")
    signal(sT[0], NST*i*CP)
    if OPT['r2']: signal(sT[0], NST*i*CP + RO)
if 8 % NST:
    A("s_branch L_nosig2")
    A.label("L_short")
    for i in range(NR-1):
        A(f"s_waitcnt vmcnt({4*(NR-2-i)})")
        signal(sT[0], NST*i*CP)
        if OPT['r2']: signal(sT[0], NST*i*CP + RO)
A.label("L_nosig2")
if OPT['hp'] & 2: A("s_setprio 0")
stamp("fl2")
if OPT['nb']:
    A(f"""
    s_cmp_eq_u32 s2, {HA}
    s_cselect_b32 {s(sT[0])}, 4, 3
    s_cmp_eq_u32 s2, {HB}
    s_cselect_b32 {s(sT[0])}, 4, {s(sT[0])}
    s_add_u32 {s(sT[1])}, {s(sT[0])}, {s(sPH)}
    s_cmp_eq_u32 {s(sT[1])}, 3
    s_cbranch_scc1 L_pgx_out
    v_min_u32 {v(vT[2])}, {s(sT[0])}, {v(vL)}
    v_mul_u32_u24 {v(vT[2])}, 260, {v(vT[2])}
    v_add_u32 {v(vT[2])}, {PGOFF}, {v(vT[2])}
    s_mov_b32 {s(sCNT)}, 0x40000
    L_pgx:
    ds_read_b32 {v(vS1)}, {v(vT[2])}
    s_sub_u32 {s(sCNT)}, {s(sCNT)}, 1
    s_cbranch_scc1 L_pgx_out
    s_waitcnt lgkmcnt(0)
    v_cmp_eq_u32 vcc, 0, {v(vS1)}
    s_and_b64 vcc, vcc, vcc
    s_cbranch_scc1 L_pgx
    L_pgx_out:
    """)
else: A("s_barrier")
A(f"s_mov_b32 m0, {s(sW12)}")
poll("L_poll2", sC2, 16, OPT['sl2'])
stamp("pol2")
for j in range(4):
    A(f"buffer_load_dwordx4 {v(aD3)}, {srd(OUT_)}, {s(sO[j>>1])} offen offset:{(j&1)*1024} sc1 lds")
    if j == 1: A("s_add_u32 m0, m0, 2048")
A(f"""
s_cmp_lg_u32 {s(sW)}, 4
s_cbranch_scc1 L_noep
s_cmp_lg_u32 s2, {HB}
s_cbranch_scc1 L_noep
s_mov_b32 {s(sT[4])}, {EW}
s_atomic_swap {s(sTAG)}, {s(WS_,2)}, {s(sT[4])}
s_waitcnt lgkmcnt(0)
L_noep:
""")
GB = [(8, 8), (40, 8), (88, 8), (16, 4), (28, 4)] if OPT['stamp'] else [(60, 16), (76, 16)]
GS = [r + i for r, n in GB for i in range(n)]
def granule_loads():
    off = 0
    for r, n in GB:
        A(f"s_load_dwordx{n} {s(r,n)}, {s(WS_,2)}, {s(sT[4])} offset:{off} glc"); off += 4*n
A(f"""
s_cmp_lg_u32 {s(sW)}, 0
s_cbranch_scc1 L_nosp3a
s_lshl_b32 {s(sT[4])}, {s(sMR)}, 7
s_add_u32 {s(sT[4])}, {s(sT[4])}, {XB}
""")
granule_loads()
A.label("L_nosp3a")
for i in range(16):
    A(f"v_perm_b32 {v(GR+i)}, {v(FN+i//2)}, {v(FC+i//2)}, {s(sPM+(i&1))}")
    A(f"v_perm_b32 {v(GI+i)}, {v(FC+i//2)}, {v(FS+i//2)}, {s(sPM+(i&1))}")
A(f"""
s_cmp_lg_u32 {s(sW)}, 0
s_cbranch_scc1 L_nosp3b
s_mov_b32 {s(sCNT)}, 0x8000
s_branch L_gchk
L_gagain:
s_sub_u32 {s(sCNT)}, {s(sCNT)}, 1
s_cbranch_scc1 L_gok
""")
granule_loads()
A.label("L_gchk")
A("s_waitcnt lgkmcnt(0)")
for i in range(16):
    A(f"s_cmp_lg_u32 {s(GS[2*i+1])}, {s(sTAG)}")
    A("s_cbranch_scc1 L_gagain")
A.label("L_gok")
for h in range(2):
    for g in range(4):
        for q in range(2):
            A(f"v_writelane_b32 {v(TMP+4+2*h+q)}, {s(GS[h*16+g*4+2*q])}, {16*g}")
m16(D2R, M3T, TMP+4, None); m16(D2R+4, M3T+4, TMP+4, None)
A.label("L_nosp3b")
A("s_waitcnt vmcnt(0)")
stamp("dat2", (1, 3))
def CV3(tp):
    L_ = []
    for mt in range(2):
        d0 = D1R + 8*tp + 4*mt; d1 = d0 + 16
        o = TMP + 8 + (tp*2+mt)*4
        L_ += [CVT(o, d0, d0+1), CVT(o+3, d0+2, d0+3), CVT(o+1, d1, d1+1), CVT(o+2, d1+2, d1+3)]
    return L_
def WR3(tp):
    L_ = []
    for mt in range(2):
        o = TMP + 8 + (tp*2+mt)*4
        L_.append(f"ds_write_b64 {v(aPw)}, {v(o,2)} offset:{mt*4*PS2+tp*128}")
        if tp == 1: L_.append(f"ds_write_b64 {v(aQp)}, {v(o+2,2)} offset:{mt*4*PS2}")
        else: L_ += [f"ds_write_b32 {v(aQ1)}, {v(o+2)} offset:{mt*4*PS2}", f"ds_write_b32 {v(aQ0)}, {v(o+3)} offset:{mt*4*PS2}"]
    return L_
ORD = (1, 3, 0, 2) if OPT['s3w'] else (0, 2, 1, 3)
for t in ORD:
    for jj in range(2):
        A(f"ds_read_b64_tr_b16 {v(XR+4*t+2*jj,2)}, {v(aT[t])} offset:{jj*2048}")
for i, t in enumerate(ORD):
    A(f"s_waitcnt lgkmcnt({6-2*i})")
    m16(D1R+8*t, M3T, XR+4*t, None); m16(D1R+8*t+4, M3T+4, XR+4*t, None)
if OPT['s3w']:
    for t_ in CV3(1) + WR3(1): A(t_)
A(f"""
s_cmp_lg_u32 {s(sW)}, 0
s_cbranch_scc1 L_nofix
s_mov_b32 exec_lo, 0x00010001
s_mov_b32 exec_hi, 0x00010001
""")
for d in (D2R, D1R):
    for mt in range(2):
        for i in range(2):
            A(f"v_add_f32 {v(d+4*mt+i)}, {v(d+4*mt+i)}, {v(d+4*mt+2+i)}")
            A(f"v_mul_f32 {v(d+4*mt+i)}, 0.5, {v(d+4*mt+i)}")
cvt(TMP, D2R, D2R+1); cvt(TMP+1, D2R+4, D2R+5)
A(f"""
ds_write_b32 {v(aPw)}, {v(TMP)} offset:{8*256}
ds_write_b32 {v(aPw)}, {v(TMP+1)} offset:{8*256+4*PS2}
s_mov_b64 exec, -1
L_nofix:
""")
if not OPT['s3w']: A("s_nop 1")
for t_ in (CV3(0) + WR3(0) if OPT['s3w'] else CV3(0) + CV3(1) + WR3(0) + WR3(1)): A(t_)
if OPT['p3p']: A("s_setprio 1")
A("s_waitcnt lgkmcnt(0)")
A("s_barrier")
stamp("bar3", (1, 3))
for t in range(4):
    for j in range(2):
        A(f"ds_read_b64 {v(XR+4*t+2*j,2)}, {v(aRd3)} offset:{t*1024+j*256}")
for t in range(4):
    A(f"s_waitcnt lgkmcnt({6-2*t})")
    m32(D1R, XR+4*t, GR+4*t, D1R if t else None)
A("s_nop 4")
tw1 = TW1(D1R, True)
if OPT['p3p']: tw1 = tw1[:12] + ["s_setprio 0"] + tw1[12:]
weave([M32(D1I, XR+4*t, GI+4*t, D1I if t else None) for t in range(4)], ["s_nop 4"] + tw1, [1, 6, 6, 99])
stamp("m3", (3,))
for t_ in TW2(D1I, XR, XI, True, 0, 8): A(t_)
weave([M32(D2R, XR, FC, None), M32(D2R, XI, FN, D2R), M32(D2I, XR, FS, None), M32(D2I, XI, FC, D2I)], TW2(D1I, XR, XI, True, 8, 16), 6)
weave([M32(D2R, XR+4, FC+4, D2R), M32(D2R, XI+4, FN+4, D2R), M32(D2I, XR+4, FS+4, D2I), M32(D2I, XI+4, FC+4, D2I)], ["s_nop 4", "s_nop 4"], [0, 1, 1, 0])
stamp("m4", (3,))
for comp, d in ((0, D2R), (1, D2I)):
    o = TMP + comp*8
    for q in (0, 4, 1, 5, 2, 6, 3, 7): cvt(o+q, d+2*q, d+2*q+1)
    for q in range(4): A(f"v_permlane16_swap_b32 {v(o+q)}, {v(o+4+q)}")
    for j in range(2):
        A(f"buffer_store_dwordx4 {v(o+4*j,4)}, {v(aSo)}, {srd(OUT_)}, {s(sO[comp])} offen offset:{j*1024}{OUTM}")
if OPT['stamp']:
    stamp("st3", (3,))
    A("s_waitcnt vmcnt(0)")
    stamp("end")
    A("s_waitcnt lgkmcnt(0)")
    n = len(stamps)
    assert sST + 2*n <= 88, n
    if OPT['diag']:
        da, db = OPT['da'], OPT['db']
        A(f"""
        s_load_dwordx2 s[94:95], s[0:1], 56
        s_and_b32 {s(sT[4])}, s2, 7
        s_lshl_b32 {s(sT[4])}, {s(sT[4])}, 3
        s_not_b32 {s(sT[11])}, {s(sST)}
        s_sleep 100
        s_waitcnt lgkmcnt(0)
        s_cmp_lg_u32 {s(sW)}, {OPT['wa']}
        s_cbranch_scc1 L_dg1
        s_atomic_umax {s(sST+2*da) if da else s(sT[11])}, s[94:95], {s(sT[4])}
        L_dg1:
        s_cmp_lg_u32 {s(sW)}, {OPT['wb']}
        s_cbranch_scc1 L_end
        s_atomic_umax {s(sST+2*db)}, s[94:95], {s(sT[4])} offset:4
        s_cmp_lg_u32 s2, 100
        s_cbranch_scc1 L_end
        s_add_u32 {s(sT[0])}, {s(sST+2*(n-1))}, 900
        L_amp0:
        s_memrealtime {s(sT[2],2)}
        s_waitcnt lgkmcnt(0)
        s_sub_u32 {s(sT[1])}, {s(sT[0])}, {s(sT[2])}
        s_cmp_gt_i32 {s(sT[1])}, 0
        s_cbranch_scc1 L_amp0
        s_load_dwordx16 s[60:75], s[94:95], 0 glc
        s_waitcnt lgkmcnt(0)
        """)
        for i in range(1, 8):
            A(f"s_max_u32 s60, s60, s{60+2*i}")
            A(f"s_max_u32 s61, s61, s{61+2*i}")
        if not da: A("s_not_b32 s60, s60")
        A(f"""
        s_sub_u32 {s(sT[1])}, s61, s60
        s_lshl_b32 {s(sT[1])}, {s(sT[1])}, 4
        s_min_u32 {s(sT[1])}, {s(sT[1])}, 60000
        s_add_u32 {s(sT[0])}, {s(sT[0])}, {s(sT[1])}
        L_amp:
        s_memrealtime {s(sT[2],2)}
        s_waitcnt lgkmcnt(0)
        s_sub_u32 {s(sT[1])}, {s(sT[0])}, {s(sT[2])}
        s_cmp_gt_i32 {s(sT[1])}, 0
        s_cbranch_scc1 L_amp
        s_branch L_end
        """)
    A(f"s_lshl_b32 {s(sT[0])}, s2, 3")
    A(f"s_add_u32 {s(sT[0])}, {s(sT[0])}, {s(sW)}")
    A(f"s_lshl_b32 {s(sT[0])}, {s(sT[0])}, 7")
    A(f"s_add_u32 {s(sT[0])}, {s(sT[0])}, {STAMP}")
    A("v_mov_b32 v3, 0")
    A("s_mov_b64 exec, 1")
    for i in range(n):
        A(f"v_mov_b32 v2, {s(sST+2*i)}")
        A(f"buffer_store_dword v2, v3, {srd(WS_)}, {s(sT[0])} offen offset:{i*4}")
    A.raw("; stamps: " + " ".join(stamps))
A.label("L_end")
A("s_endpgm")
def kd(name, nv, ns):
    A.raw(f""".p2align 6
.amdhsa_kernel {name}
  .amdhsa_next_free_vgpr {nv}
  .amdhsa_next_free_sgpr {ns}
  .amdhsa_accum_offset {nv}
  .amdhsa_group_segment_fixed_size 0
  .amdhsa_kernarg_size 72
  .amdhsa_user_sgpr_count 2
  .amdhsa_user_sgpr_kernarg_segment_ptr 1
  .amdhsa_system_sgpr_workgroup_id_x 1
  .amdhsa_float_denorm_mode_32 3
.end_amdhsa_kernel""")
A.raw('.section .rodata,"a"')
kd(NAME + "_kernel", 256, 102)
if OPT['lst']: kd("empty_kernel", 8, 16)
txt = A.text()
if OPT['al']:
    from align import align
    txt = align(txt, minrun=OPT['al'] if OPT['al'] > 1 else 4)
open(sys.argv[1], "w").write(txt)
print(sys.argv[1], "nops:", A.nops, "stamps:", len(stamps), file=sys.stderr)
```

```python
import sys, struct, re
import numpy as np
from asmlib import Asm, v, s

NAME = "concat_heads__spectral_gfnet__spectral_gfnet__prompt"
OPT = dict(outm=1, xnt=1, wnt=1, px=4, diag=0, da=0, db=0, wa=0, wb=0, ne=3, nea=3, gh=0, xprio=0, slp=0, nst=3, stag=2, tg=1, wp=0, hp=0, p1p=0,
           stamp=0, sl1=0, sl2=0, rm=1, ha=128, hb=161, spw=1, s3p=3, fw=1, al=1, p3p=0, sb=0, s3w=1, bi=1, mb=3, xp=0, wl=1, nb=0, cut=0, ch=1, g2=0, r2=0, lg=0, lst=0)
for a_ in sys.argv[2:]:
    k_, v_ = a_.split('='); assert k_ in OPT, k_; OPT[k_] = int(v_)

def fbits(x): return "0x%08x" % struct.unpack('<I', struct.pack('<f', x))[0]
def bf16(x):
    u = np.asarray(x, dtype=np.float32).view(np.uint32)
    return ((u + 0x7FFF + ((u >> 16) & 1)) >> 16).astype(np.uint32)

AUX = 0
XB = AUX + 0x30000
CP = 256
CB = AUX + 0x10000
RO = 0x10000
EW = AUX + 0xa0000
STAMP = AUX + 0x100000
WSZ = 2 << 20
EXOFF = 32768
PS = 5184
WOFF = EXOFF + 8 * PS
M2OFF = WOFF + 36864
SYOFF = M2OFF + 32768
PGOFF = SYOFF + 64
T1OFF = PGOFF + 2048
LDSZ = T1OFF + 14336
EX2 = EXOFF
OS = 8320
XOUT = EXOFF + 33280
PS2 = 4160
sW, sM, sRHO, sSB, sA, sGRP = 3, 4, 5, 6, 7, 32
X_, WR_, WI_, OUT_, WS_, TAB_ = 8, 12, 16, 20, 24, 44
sCNT = 33
sT = list(range(34, 48))
sV = 48
sEXP = 50
sTAG = 51
sW12, sM8, sE, sROLE, sC1, sC2 = 52, 53, 54, 55, 56, 57
sPM = 58
sST = 60
sO = [96, 97]
sU = [98, 99, 100, 101]
sONE = sU[2]
sCM = 30
sP = 31
srd = lambda b: s(b, 4)

A = Asm()
AROW = 128 * 4096
HA, HB = OPT['ha'], OPT['hb']
NST = OPT['nst']
XNT = ' nt' if OPT['xnt'] else ''
WNT = ' nt' if OPT['wnt'] else ''
OUTM = ['', ' sc1', ' nt', ' sc0 sc1', ' sc1 nt', ' sc0 sc1 nt'][OPT['outm']]
def M32(d, a, b, c): return f"v_mfma_f32_32x32x16_bf16 {v(d,16)}, {v(a,4)}, {v(b,4)}, {v(c,16) if c is not None else 0}"
def M16(d, a, b, c): return f"v_mfma_f32_16x16x32_bf16 {v(d,4)}, {v(a,4)}, {v(b,4)}, {v(c,4) if c is not None else 0}"
def CVT(d, a, b, na=False, nb=False): return f"v_cvt_pk_bf16_f32 {v(d)}, {'-' if na else ''}{v(a)}, {'-' if nb else ''}{v(b)}"
def m32(*a): A(M32(*a))
def m16(*a): A(M16(*a))
def cvt(*a): A(CVT(*a))
def weave(mf, fill, per):
    fill = list(fill)
    for i, m in enumerate(mf):
        A(m)
        n = per[i] if isinstance(per, (list, tuple)) else per
        for _ in range(n):
            if fill: A(fill.pop(0))
    for f in fill: A(f)
stamps = []
def stamp(name, sets=(1,)):
    st = OPT['stamp']
    if name in ("start", "end"):
        if st: A(f"s_memrealtime {s(sST + 2*len(stamps), 2)}"); stamps.append(name)
        if st > 1: A(f"s_memtime {s(sST + 2*len(stamps), 2)}"); stamps.append("c" + name)
    elif st in sets:
        if name not in stamps: stamps.append(name)
        A(f"{'s_memrealtime' if st == 1 else 's_memtime'} {s(sST + 2*stamps.index(name), 2)}")

vL, c_, g_ = 1, 2, 3
vT = list(range(2, 16))
TC, TS = 16, 32
FC, FS, FN = 48, 56, 64
M3 = 72
GR, GI = 80, 96
XR, XI = 112, 120
D1R, D1I = 128, 144
D2R, D2I = 160, 176
TMP = 192
PH = 88
M3T = 228
aTB = 244
WRF, WIF = 16, 48
FR = 80
DRE, DIM, DNR = 144, 160, 176
ER, EI = 192, 224

def peek(off, imm=0):
    A(f"s_mov_b64 {s(sV,2)}, 0")
    A(f"s_atomic_or_x2 {s(sV,2)}, {s(WS_,2)}, {s(off)} glc" if not imm else f"s_atomic_or_x2 {s(sV,2)}, {s(WS_,2)}, {s(off)} offset:{imm} glc")
def poll(label, off, count, sleep, imm=0, keep=None):
    A(f"s_mov_b32 {s(sEXP)}, {count}")
    A(f"s_mov_b32 {s(sCNT)}, 0x8000")
    A.label(label)
    peek(off, imm)
    A(f"s_sub_u32 {s(sCNT)}, {s(sCNT)}, 1")
    A(f"s_cbranch_scc1 {label}_out")
    if sleep: A(f"s_sleep {sleep}")
    A("s_waitcnt lgkmcnt(0)")
    if keep is not None:
        A(f"s_mov_b32 {s(keep)}, {s(sV)}")
        A(f"s_and_b32 {s(sV)}, {s(sV)}, 0xffff")
    A(f"s_cmp_eq_u64 {s(sV,2)}, {s(sEXP,2)}")
    A(f"s_cbranch_scc0 {label}")
    A.label(label + "_out")
def validate(label, off, imm=0):
    A(f"s_mov_b32 {s(sCNT)}, 0x8000")
    A.label(label)
    A("s_waitcnt lgkmcnt(0)")
    A(f"s_cmp_eq_u32 {s(sV+1)}, {s(sTAG)}")
    A(f"s_cbranch_scc1 {label}_out")
    peek(off, imm)
    A(f"s_sub_u32 {s(sCNT)}, {s(sCNT)}, 1")
    A(f"s_cbranch_scc0 {label}")
    A("s_waitcnt lgkmcnt(0)")
    A.label(label + "_out")
def signal(off, imm=0):
    A(f"s_atomic_add {s(sONE)}, {s(WS_,2)}, {s(off)}" + (f" offset:{imm}" if imm else ""))

vSY, vS1, vPG = vT[12], vT[13], vT[11]
def lds_wait(label, off, val):
    A(f"s_mov_b32 {s(sCNT)}, 0x40000")
    A.label(label)
    A(f"ds_read_b32 {v(vS1)}, {v(vSY)} offset:{off}")
    A(f"s_sub_u32 {s(sCNT)}, {s(sCNT)}, 1")
    A(f"s_cbranch_scc1 {label}_out")
    A("s_waitcnt lgkmcnt(0)")
    A(f"v_cmp_gt_u32 vcc, {val}, {v(vS1)}" if val <= 64 else f"v_cmp_ne_u32 vcc, {val}, {v(vS1)}")
    A("s_and_b64 vcc, vcc, vcc")
    A(f"s_cbranch_scc1 {label}")
    A.label(label + "_out")
def lds_bit(off, sbit):
    A(f"v_mov_b32 {v(vS1)}, {s(sbit)}")
    A("s_mov_b64 exec, 1")
    A(f"ds_or_b32 {v(vSY)}, {v(vS1)} offset:{off}")
    A("s_mov_b64 exec, -1")
def lds_post(off, rtn=False):
    A(f"v_mov_b32 {v(vS1)}, 1")
    A("s_mov_b64 exec, 1")
    if rtn: A(f"ds_add_rtn_u32 {v(vS1)}, {v(vSY)}, {v(vS1)} offset:{off}")
    else: A(f"ds_add_u32 {v(vSY)}, {v(vS1)} offset:{off}")
    A("s_mov_b64 exec, -1")

sWB, sI = sU[0], sU[3]
aWM, aWT = GR + 4, GR + 5
nlab = [0]
def w_piece(e):
    if e < 4:
        arr, half = e & 1, e >> 1
        A(f"s_add_u32 m0, {s(sT[13])}, {WOFF + (2*arr+half)*9216}")
        if half: A(f"s_add_u32 {s(sI)}, {s(sT[12])}, {64*16416}")
        A(f"buffer_load_dwordx4 {v(aWM)}, {srd(WI_ if arr else WR_)}, {s(sI if half else sT[12])} offen{WNT} lds")
    else:
        n = nlab[0]; nlab[0] += 1
        A(f"""
        s_mul_i32 {s(sI)}, {s(sW)}, 9216
        s_add_u32 m0, {s(sI)}, {WOFF + 8192}
        s_and_b32 {s(sI)}, {s(sW)}, 1
        s_mul_i32 {s(sI)}, {s(sI)}, {64*16416}
        s_add_u32 {s(sI)}, {s(sI)}, {s(sWB)}
        s_bitcmp1_b32 {s(sW)}, 1
        s_cbranch_scc1 L_t1_{n}
        buffer_load_dwordx4 {v(aWT)}, {srd(WR_)}, {s(sI)} offen{WNT} lds
        s_branch L_t2_{n}
        L_t1_{n}:
        buffer_load_dwordx4 {v(aWT)}, {srd(WI_)}, {s(sI)} offen{WNT} lds
        L_t2_{n}:
        """)
def w_base(sw):
    A(f"s_mul_i32 {s(sT[12])}, {s(sw)}, {7*16416}")
    A(f"s_add_u32 {s(sT[12])}, {s(sT[12])}, {s(sWB)}")
    A(f"s_lshl_b32 {s(sT[13])}, {s(sw)}, 10")

def gen_m2(sW):
    G = D2R
    kf, s0, af, bf, ai, bi, ad = G, G+1, G+2, G+3, G+4, G+5, G+6
    P, C_, S_ = D1R, D1R+16, G+8
    A(f"""
    s_and_b32 {s(sT[12])}, {s(sW)}, 1
    s_lshl_b32 {s(sT[12])}, {s(sT[12])}, 4
    s_lshr_b32 {s(sT[13])}, {s(sW)}, 1
    v_add_u32 {v(kf)}, {s(sT[12])}, {v(c_)}
    v_lshl_add_u32 {v(ai)}, {v(kf)}, 2, {s(sT[13])}
    v_lshl_add_u32 {v(s0)}, {v(g_)}, 4, {s(sT[13])}
    v_mul_u32_u24 {v(bf)}, {v(s0)}, {v(kf)}
    v_mul_u32_u24 {v(bi)}, {v(g_)}, {v(ai)}
    v_cvt_f32_u32 {v(af)}, {v(kf)}
    v_cvt_f32_u32 {v(ai)}, {v(ai)}
    v_cvt_f32_u32 {v(bf)}, {v(bf)}
    v_cvt_f32_u32 {v(bi)}, {v(bi)}
    v_mul_f32 {v(bf)}, {fbits(1/128)}, {v(bf)}
    v_mul_f32 {v(bi)}, {fbits(1/32)}, {v(bi)}
    s_lshl_b32 {s(sT[12])}, {s(sW)}, 11
    s_add_u32 {s(sT[12])}, {s(sT[12])}, {M2OFF}
    v_lshl_add_u32 {v(ad)}, {v(vL)}, 4, {s(sT[12])}
    """)
    for d in range(2):
        for i in range(8):
            c = 16*(i >> 2) + (i & 3)
            A(f"v_fmamk_f32 {v(P+8*d+i)}, {v(ai if d else af)}, {fbits(c/128 if d else c/32)}, {v(bi if d else bf)}")
    for i in range(16):
        A(f"v_cos_f32 {v(C_+i)}, {v(P+i)}")
        A(f"v_sin_f32 {v(S_+i)}, {v(P+i)}")
    for d in range(2):
        for j in range(4):
            cvt(P+8*d+j, C_+8*d+2*j, C_+8*d+2*j+1)
            cvt(P+8*d+4+j, S_+8*d+2*j, S_+8*d+2*j+1)
    for d in range(2):
        for cs in range(2):
            A(f"ds_write_b128 {v(ad)}, {v(P+8*d+4*cs,4)} offset:{d*16384+cs*1024}")

def load_tables(addr):
    for i in (8, 9, 10, 11, 12, 13, 0, 4, 1, 5, 2, 6, 3, 7):
        A(f"ds_read_b128 {v(TC+4*i,4)}, {v(addr)} offset:{i*1024}")

def TW1(dr, conj):
    L = []
    for i in range(16):
        L.append(f"v_mul_f32_e64 {v(TMP+i)}, -{v(dr+i)}, {v(TC+i)}" if conj else f"v_mul_f32 {v(TMP+i)}, {v(dr+i)}, {v(TC+i)}")
        L.append(f"v_mul_f32 {v(TMP+16+i)}, {v(dr+i)}, {v(TS+i)}" if conj else f"v_mul_f32_e64 {v(TMP+16+i)}, -{v(dr+i)}, {v(TS+i)}")
    return L
def TW2(di, outr, outi, conj, lo, hi):
    L = []
    for i in range(lo, hi, 2):
        for e in range(2):
            L.append(f"v_fmac_f32 {v(TMP+i+e)}, {v(di+i+e)}, {v(TS+i+e)}")
            L.append(f"v_fmac_f32 {v(TMP+16+i+e)}, {v(di+i+e)}, {v(TC+i+e)}")
        L.append(CVT(outr + i//2, TMP+i, TMP+i+1, conj, conj))
        L.append(CVT(outi + i//2, TMP+16+i, TMP+16+i+1))
    return L

A.raw("; GFNet spectral filter: persistent 3-pass MFMA FFT (generated by a script of the author)")
if OPT['lst'] == 0: A.raw(f"; @launch grid=(256,1,1) block=(512,1,1) lds={LDSZ}")
else:
    A.raw(f"; @launch kernel={NAME}_kernel grid=(256,1,1) block=(512,1,1) lds={LDSZ}")
    A.raw(f"; @launch kernel=empty_kernel grid=(1,1,1) block=(64,1,1) lds=0")
A.raw('.amdgcn_target "amdgcn-amd-amdhsa--gfx950"\n.text')
if OPT['lst']: A.raw(".globl empty_kernel\n.p2align 8\n.type empty_kernel,@function\nempty_kernel:\n s_endpgm")
A.raw(f".globl {NAME}_kernel\n.p2align 8\n.type {NAME}_kernel,@function")
A.label(f"{NAME}_kernel")
aL16 = GR + 1
SPW = OPT['spw']
NE = NEB = OPT['ne']
NEA = OPT['nea']
assert NEA <= NE
STAG = OPT['stag']
A(f"""
s_cmp_ge_u32 s2, 256
s_cbranch_scc1 L_end
s_bfe_u32 {s(sM)}, s2, {0x10000 + OPT['mb']}
s_mul_i32 {s(sT[0])}, {s(sM)}, 24
s_load_dwordx2 {s(X_,2)}, s[0:1], {s(sT[0])}
s_load_dwordx2 {s(WS_,2)}, s[0:1], 64
s_load_dwordx2 {s(WR_,2)}, s[0:1], {s(sT[0])} offset:8
s_load_dwordx2 {s(WI_,2)}, s[0:1], {s(sT[0])} offset:16
s_load_dwordx2 {s(OUT_,2)}, s[0:1], 48
""")
XP_ = OPT['xp']
if XP_:
    A(f"s_sub_u32 {s(sT[0])}, 24, {s(sT[0])}")
    A(f"s_load_dwordx2 s[88:89], s[0:1], {s(sT[0])}")
stamp("start")
if OPT['mb'] != 3:
    A(f"""
    s_bfe_u32 {s(sT[5])}, s2, 0x10003
    s_xor_b32 {s(sT[5])}, {s(sT[5])}, {s(sM)}
    s_mul_i32 {s(sT[5])}, {s(sT[5])}, {8 + (1 << OPT['mb'])}
    s_xor_b32 s2, s2, {s(sT[5])}
    """)
A(f"""
v_lshrrev_b32 v2, 6, v0
s_getpc_b64 {s(TAB_,2)}
L_pc:
s_lshr_b32 {s(sT[2])}, s2, 4
v_readfirstlane_b32 {s(sW)}, v2
s_mov_b32 {s(TAB_+2)}, L_end-L_pc
s_mov_b32 {s(TAB_+3)}, 0x20000
v_lshlrev_b32 v3, 11, v2
s_lshl_b32 {s(sT[6])}, {s(sT[2])}, 7
buffer_load_dword {v(GR)}, v3, {srd(TAB_)}, {s(sT[6])} offen
v_and_b32 {v(vL)}, 63, v0
s_and_b32 {s(sT[1])}, s2, 7
""")
if OPT['rm'] == 0: A(f"s_lshl4_add_u32 {s(sRHO)}, {s(sT[1])}, {s(sT[2])}")
else:
    A(f"""
    s_and_b32 {s(sRHO)}, s2, 0x73
    s_and_b32 {s(sT[5])}, s2, 4
    s_lshl1_add_u32 {s(sRHO)}, {s(sT[5])}, {s(sRHO)}
    s_lshr_b32 {s(sT[5])}, s2, 7
    s_lshl2_add_u32 {s(sRHO)}, {s(sT[5])}, {s(sRHO)}
    """)
    if OPT['rm'] == 2: A(f"s_xor_b32 {s(sRHO)}, {s(sRHO)}, 0x70")
A(f"""
s_and_b32 {s(sSB)}, {s(sRHO)}, 31
s_lshr_b32 {s(sT[5])}, {s(sRHO)}, 5
s_lshl2_add_u32 {s(sSB)}, {s(sSB)}, {s(sT[5])}
v_lshlrev_b32 {v(aL16)}, 4, {v(vL)}
s_mov_b32 {s(X_+2)}, 4194304
s_mov_b32 {s(X_+3)}, 0x20000
s_and_b32 {s(sP)}, {s(sRHO)}, {OPT['px']}
s_xor_b32 {s(sP)}, {s(sP)}, {s(sW)}
s_lshl_b32 {s(sO[0])}, {s(sP)}, 7
s_add_u32 {s(sO[0])}, {s(sO[0])}, {s(sSB)}
s_lshl_b32 {s(sO[0])}, {s(sO[0])}, 11
s_add_u32 {s(sO[1])}, {s(sO[0])}, 0x200000
s_lshl_b32 {s(sW12)}, {s(sW)}, 12
s_mov_b32 m0, {s(sW12)}
""")
XISS = f"""
buffer_load_dwordx4 {v(aL16)}, {srd(X_)}, {s(sO[0])} offen{XNT} lds
buffer_load_dwordx4 {v(aL16)}, {srd(X_)}, {s(sO[0])} offen offset:1024{XNT} lds
s_add_u32 m0, {s(sW12)}, 2048
buffer_load_dwordx4 {v(aL16)}, {srd(X_)}, {s(sO[1])} offen{XNT} lds
buffer_load_dwordx4 {v(aL16)}, {srd(X_)}, {s(sO[1])} offen offset:1024{XNT} lds
"""
if XP_:
    A(f"""
    s_mov_b32 s90, 4194304
    s_mov_b32 s91, 0x20000
    s_xor_b32 s92, {s(sO[0])}, {4 << 18}
    v_and_b32 {v(GR+2)}, 15, {v(vL)}
    v_and_b32 v4, 16, {v(vL)}
    v_lshlrev_b32 v4, 17, v4
    v_lshl_add_u32 {v(GR+2)}, {v(GR+2)}, 7, v4
    """)
YPF = f"""
s_cmp_lt_u32 {s(sW)}, {8 if XP_ & 4 else 4}
s_cselect_b64 exec, 0xffffffff, 1
buffer_load_dword {v(GR)}, {v(GR+2)}, s[88:91], s92 offen
s_mov_b64 exec, -1
"""
def early_x():
    A("s_waitcnt lgkmcnt(0)")
    stamp("karg", (4,))
    if STAG:
        A(f"s_cmp_lg_u32 {s(sM)}, 0")
        A("s_cbranch_scc1 L_xhelp" if XP_ & 1 else "s_cbranch_scc1 L_xlate")
    A(XISS)
    if XP_ & 1:
        A("s_branch L_xlate")
        A.label("L_xhelp")
        A(YPF)
    A.label("L_xlate")
    stamp("xiss", (4,))
if OPT['tg'] == 0: early_x()
A(f"""
s_lshr_b32 {s(sT[3])}, {s(sW)}, 1
s_and_b32 {s(sT[4])}, {s(sW)}, 1
s_lshl2_add_u32 {s(sT[6])}, {s(sT[3])}, {s(sT[4])}
s_lshl_b32 {s(sT[6])}, {s(sT[6])}, 1
v_lshrrev_b32 {v(PH+16)}, 5, {v(vL)}
v_and_b32 {v(PH+17)}, 31, {v(vL)}
v_lshl_add_u32 {v(PH)}, {v(PH+16)}, 2, {s(sT[6])}
v_mul_u32_u24 {v(PH)}, {v(PH)}, {v(PH+17)}
v_add_u32 {v(PH+1)}, {v(PH)}, {v(PH+17)}
v_cvt_f32_u32 {v(PH)}, {v(PH)}
v_cvt_f32_u32 {v(PH+1)}, {v(PH+1)}
s_mov_b32 {s(sT[6])}, {fbits(1/32)}
v_mul_f32 {v(PH+2)}, {s(sT[6])}, {v(PH)}
v_mul_f32 {v(PH+3)}, {s(sT[6])}, {v(PH+1)}
v_cos_f32 {v(PH+8)}, {v(PH+2)}
v_cos_f32 {v(PH+9)}, {v(PH+3)}
v_sin_f32 {v(PH+10)}, {v(PH+2)}
v_sin_f32 {v(PH+11)}, {v(PH+3)}
v_mul_f32 {v(PH)}, {s(sT[6])}, {v(PH+2)}
v_mul_f32 {v(PH+1)}, {s(sT[6])}, {v(PH+3)}
v_cos_f32 {v(PH+4)}, {v(PH)}
v_cos_f32 {v(PH+5)}, {v(PH+1)}
v_sin_f32 {v(PH+6)}, {v(PH)}
v_sin_f32 {v(PH+7)}, {v(PH+1)}
{CVT(PH+12, PH+8, PH+9)}
{CVT(PH+13, PH+10, PH+11)}
{CVT(PH+14, PH+10, PH+11, True, True)}
v_add_u32 {v(vS1)}, {T1OFF}, {v(aL16)}
s_lshl_b32 {s(sT[3])}, {s(sT[3])}, 10
s_lshl3_add_u32 {s(sT[3])}, {s(sT[4])}, {s(sT[3])}
v_add_u32 {v(PH)}, {s(sT[3])}, {v(vS1)}
s_mul_i32 {s(sT[3])}, {s(sW)}, 0x104
s_and_b32 {s(sT[3])}, {s(sT[3])}, 0x40c
v_add_u32 {v(PH+1)}, {s(sT[3])}, {v(vS1)}
""")
if OPT['tg'] == 1: early_x()
A(f"""
ds_write_b64 {v(PH)}, {v(PH+4,2)}
ds_write_b64 {v(PH)}, {v(PH+6,2)} offset:4096
ds_write_b32 {v(PH+1)}, {v(PH+12)} offset:8192
ds_write_b32 {v(PH+1)}, {v(PH+13)} offset:10240
ds_write_b32 {v(PH+1)}, {v(PH+14)} offset:12288
v_and_b32 {v(c_)}, 15, {v(vL)}
v_lshrrev_b32 {v(g_)}, 4, {v(vL)}
s_mov_b32 {s(sT[6])}, {EW}
s_cmp_lg_u32 {s(sW)}, 0
s_waitcnt lgkmcnt(0)
s_cbranch_scc1 L_noe
s_load_dword {s(sE)}, {s(WS_,2)}, {s(sT[6])}
L_noe:
""")
stamp("tgen", (4,))
A("s_barrier")
stamp("tbar", (4,))
if STAG == 3:
    load_tables(vS1)
if STAG:
    A(f"s_cmp_eq_u32 {s(sM)}, 0")
    A("s_cbranch_scc1 L_yhelp" if XP_ & 2 else "s_cbranch_scc1 L_xdone")
    if STAG == 3: A("s_barrier")
    if STAG == 2:
        gen_m2(sW)
        if not OPT['lg']: A("s_barrier")
    if not OPT['lg']: A(XISS)
    if OPT['bi']:
        A(f"""
        s_cmp_lg_u32 {s(sW)}, 0
        s_cbranch_scc1 L_xdone
        s_lshl_b32 {s(sT[3])}, {s(sRHO)}, 8
        s_add_u32 {s(sT[3])}, {s(sT[3])}, {CB + 128*CP}
        s_mov_b32 {s(sEXP)}, 0
        s_waitcnt lgkmcnt(0)
        s_mul_i32 {s(sTAG)}, {s(sE)}, 0x9E3779B1
        s_add_u32 {s(sTAG)}, {s(sTAG)}, 0x7F4A7C15
        s_atomic_swap_x2 {s(sEXP,2)}, {s(WS_,2)}, {s(sT[3])}
        """)
        if OPT['r2']: A(f"s_atomic_swap_x2 {s(sEXP,2)}, {s(WS_,2)}, {s(sT[3])} offset:{RO}")
    if XP_ & 2:
        A("s_branch L_xdone")
        A.label("L_yhelp")
        A(YPF)
    A.label("L_xdone")
if STAG != 3: load_tables(vS1)
stamp("xis2", (4,))
aTR, aP, aQe, aQo, aRD, aST = vT[2:8]
sS1 = sT[8:10]
H_, F_ = PH + 16, PH + 17
GATH = f"""
s_cmp_lg_u32 {s(sW)}, {SPW}
s_cbranch_scc1 L_nogather
v_lshrrev_b32 v10, 2, {v(c_)}
v_and_b32 v11, 1, {v(c_)}
v_lshl_add_u32 v10, v10, 1, v11
v_and_b32 v11, 2, {v(c_)}
v_lshl_add_u32 v10, v11, 2, v10
v_mul_u32_u24 v10, 1026, v10
s_mul_i32 {s(sT[3])}, {s(sRHO)}, 16416
buffer_load_ushort v11, v10, {srd(WR_)}, {s(sT[3])} offen offset:1024
buffer_load_ushort v12, v10, {srd(WI_)}, {s(sT[3])} offen offset:1024
L_nogather:
"""
A(f"""
s_lshr_b32 {s(sT[3])}, {s(sT[2])}, 3
s_lshl1_add_u32 {s(sA)}, {s(sT[1])}, {s(sT[3])}
s_and_b32 {s(sGRP)}, {s(sT[2])}, 7
s_mov_b32 {s(WR_+2)}, 2101248
s_mov_b32 {s(WR_+3)}, 0x20000
s_mov_b32 {s(WI_+2)}, 2101248
s_mov_b32 {s(WI_+3)}, 0x20000
s_mul_i32 {s(sWB)}, {s(sA)}, 1026
s_lshl_b32 {s(sT[0])}, {s(sGRP)}, 7
s_add_u32 {s(sWB)}, {s(sWB)}, {s(sT[0])}
s_andn2_b32 {s(sWB)}, {s(sWB)}, 15
v_add_u32 {v(PH)}, {s(sW)}, {v(vL)}
v_mul_u32_u24 {v(PH+1)}, 57, {v(PH)}
v_lshrrev_b32 {v(PH+1)}, 9, {v(PH+1)}
v_mul_u32_u24 {v(PH+1)}, {16416-144}, {v(PH+1)}
v_lshl_add_u32 {v(aWM)}, {v(PH)}, 4, {v(PH+1)}
v_bfe_u32 {v(PH)}, {v(vL)}, 2, 2
v_lshl_add_u32 {v(PH)}, {v(H_)}, 2, {v(PH)}
v_lshl_add_u32 {v(PH)}, {v(PH)}, 6, {s(sW12)}
v_and_b32 {v(PH+2)}, 16, {v(vL)}
v_lshl_add_u32 {v(PH)}, {v(PH+2)}, 1, {v(PH)}
v_and_b32 {v(PH+2)}, 3, {v(vL)}
v_lshl_add_u32 {v(aTR)}, {v(PH+2)}, 3, {v(PH)}
""")
def lag_x():
    A(f"""
    s_cmp_eq_u32 {s(sM)}, 0
    s_cbranch_scc1 L_lagx
    s_barrier
    {XISS.replace(s(sO[0]), 's92').replace(s(sO[1]), 's93')}
    s_barrier
    L_lagx:
    """)
def gather():
    A(GATH)
if OPT['lg']:
    A(f"s_mov_b64 s[92:93], {s(sO[0],2)}")
if OPT['lg'] == 1: lag_x()
if OPT['lg'] < 2: gather()
stamp('setup', (4,))
WP = OPT['wp']
aWN = GR + 3
def w_pair(es):
    global aWM
    w_base(sW)
    for e in es: w_piece(e)
    A(f"s_add_u32 {s(sT[12])}, {s(sT[12])}, {28*16416}")
    A(f"s_add_u32 {s(sT[13])}, {s(sT[13])}, 4096")
    keep, aWM = aWM, aWN
    for e in es: w_piece(e)
    aWM = keep
WNSET = f"""
v_add_u32 {v(PH+20)}, {s(sW)}, {v(vL)}
v_add_u32 {v(PH+20)}, 4, {v(PH+20)}
v_mul_u32_u24 {v(PH+21)}, 57, {v(PH+20)}
v_lshrrev_b32 {v(PH+21)}, 9, {v(PH+21)}
v_mul_u32_u24 {v(PH+21)}, {16416-144}, {v(PH+21)}
v_lshl_add_u32 {v(aWN)}, {v(PH+20)}, 4, {v(PH+21)}
"""
def early_w():
    w_base(sW)
    for e in range(NE):
        if e == NEA:
            A(f"s_cmp_eq_u32 {s(sM)}, 0")
            A("s_cbranch_scc1 L_noearly")
        w_piece(e)
    A.label("L_noearly")
if not OPT['wl']: early_w()
def wait_m(lbl, add):
    na = NEA + (1 if XP_ & 2 and lbl != "L_wm2" else 0)
    A(f"s_waitcnt vmcnt({max(NE, na)+add})")
    if na != NE:
        A(f"s_cmp_eq_u32 {s(sM)}, {1 if na < NE else 0}")
        A(f"s_cbranch_scc1 {lbl}")
        A(f"s_waitcnt vmcnt({min(NE, na)+add})")
        A.label(lbl)
stamp("wiss", (4,))
L = lambda t: [x.strip() for x in t.strip().split("\n")]
SETA = L(f"""
s_mul_i32 {s(sT[0])}, {s(sP)}, {PS}
s_add_u32 {s(sT[0])}, {s(sT[0])}, {EXOFF}
v_mul_u32_u24 {v(PH+4)}, 20, {v(PH+2)}
v_lshrrev_b32 {v(PH+5)}, 2, {v(F_)}
v_mul_u32_u24 {v(PH+6)}, 160, {v(H_)}
v_add3_u32 {v(PH+4)}, {v(PH+4)}, {v(PH+5)}, {v(PH+6)}
v_lshl_add_u32 {v(aP)}, {v(PH+4)}, 3, {s(sT[0])}
v_sub_u32 {v(PH+3)}, 32, {v(F_)}
v_and_b32 {v(PH+4)}, 3, {v(PH+3)}
v_mul_u32_u24 {v(PH+4)}, 20, {v(PH+4)}
v_lshrrev_b32 {v(PH+5)}, 2, {v(PH+3)}
v_sub_u32 {v(PH+6)}, 160, {v(PH+6)}
v_add3_u32 {v(PH+4)}, {v(PH+4)}, {v(PH+5)}, {v(PH+6)}
v_lshl_add_u32 {v(aQe)}, {v(PH+4)}, 3, {s(sT[0])}
v_and_b32 {v(PH+3)}, 32, {v(PH+3)}
v_lshl_add_u32 {v(aQo)}, {v(PH+3)}, 4, {v(aQe)}
v_lshrrev_b32 {v(PH)}, 1, {v(c_)}
v_and_b32 {v(PH+1)}, 1, {v(PH)}
s_bfe_u32 {s(sT[0])}, {s(sRHO)}, 0x10002
v_and_b32 {v(PH+2)}, 1, {v(c_)}
v_xor_b32 {v(PH+2)}, {s(sT[0])}, {v(PH+2)}
v_sub_u32 {v(PH+2)}, {v(PH+2)}, {v(PH+1)}
v_cvt_f32_i32 {v(PH+2)}, {v(PH+2)}
v_mov_b32 {v(PH+3)}, {fbits(0.125)}
v_fmamk_f32 {v(PH+2)}, {v(PH+2)}, {fbits(0.25)}, {v(PH+3)}
v_mul_u32_u24 {v(PH+1)}, 0x8000, {v(PH+1)}
v_lshl_or_b32 {v(PH+1)}, {v(PH+1)}, 16, {v(PH+1)}
v_cvt_f32_u32 {v(PH)}, {v(PH)}
""")
SETB = L(f"""
v_add_f32 {v(PH+3)}, {fbits(8.0)}, {v(PH)}
v_lshl_add_u32 {v(PH+4)}, {v(g_)}, 8, {s(sSB)}
v_cvt_f32_u32 {v(PH+4)}, {v(PH+4)}
v_mul_f32 {v(PH+4)}, {fbits(1/2048)}, {v(PH+4)}
v_add_f32 {v(PH+5)}, {fbits(1/16)}, {v(PH+4)}
""")
for k in range(4): SETB.append(f"v_fma_f32 {v(PH+8+3*k)}, {v(PH+4+(k&1))}, {v(PH if k < 2 else PH+3)}, {v(PH+2)}")
for k in range(4): SETB += [f"v_cos_f32 {v(PH+9+3*k)}, {v(PH+8+3*k)}", f"v_sin_f32 {v(PH+10+3*k)}, {v(PH+8+3*k)}"]
SETC = []
for k in range(4):
    t = PH + 8 + 3*k
    SETC += [CVT(M3+2*k, t+1, t+2), CVT(M3+2*k+1, t+2, t+1), f"v_xor_b32 {v(M3+2*k+1)}, {v(PH+1)}, {v(M3+2*k+1)}"]
SETD = L(f"""
s_lshl_b32 {s(sM8)}, {s(sM)}, 3
s_mul_i32 {s(sCM)}, {s(sM)}, {128*CP}
s_add_u32 {s(sCM)}, {s(sCM)}, {CB}
s_mov_b32 {s(sEXP)}, 0
s_mov_b32 {s(sONE)}, 1
s_lshr_b32 {s(sC1)}, {s(sRHO)}, 5
s_lshl2_add_u32 {s(sC1)}, {s(sW)}, {s(sC1)}
s_mul_i32 {s(sC1)}, {s(sC1)}, {CP}
s_add_u32 {s(sC1)}, {s(sC1)}, {s(sCM)}
s_lshr_b32 {s(sC2)}, {s(sRHO)}, 4
s_lshl3_add_u32 {s(sC2)}, {s(sW)}, {s(sC2)}
s_mul_i32 {s(sC2)}, {s(sC2)}, {CP}
s_add_u32 {s(sC2)}, {s(sC2)}, {s(sCM)}
s_add_u32 {s(sC2)}, {s(sC2)}, {32*CP}
s_and_b32 {s(sT[3])}, {s(sRHO)}, {1 if OPT['r2'] else 0}
s_lshl_b32 {s(sT[3])}, {s(sT[3])}, 16
s_add_u32 {s(sC2)}, {s(sC2)}, {s(sT[3])}
s_mov_b32 {s(WS_+2)}, {WSZ}
s_mov_b32 {s(WS_+3)}, 0x20000
s_mov_b32 {s(OUT_+2)}, 8388608
s_mov_b32 {s(OUT_+3)}, 0x20000
s_lshl_b32 {s(sS1[0])}, {s(sO[0])}, 1
s_lshl_b32 {s(sT[3])}, {s(sM)}, 11
s_add_u32 {s(sS1[0])}, {s(sS1[0])}, {s(sT[3])}
s_add_u32 {s(sS1[1])}, {s(sS1[0])}, {8*AROW}
s_mul_i32 {s(sT[3])}, {s(sW)}, 640
s_add_u32 {s(sT[3])}, {s(sT[3])}, {EXOFF}
v_mul_u32_u24 {v(aRD)}, {2*PS}, {v(g_)}
v_lshl_add_u32 {v(aRD)}, {v(c_)}, 3, {v(aRD)}
v_add_u32 {v(aRD)}, {s(sT[3])}, {v(aRD)}
v_lshlrev_b32 {v(aST)}, 9, {v(g_)}
v_lshl_add_u32 {v(aST)}, {v(c_)}, 4, {v(aST)}
v_mov_b32 {v(vSY)}, {SYOFF}
v_lshlrev_b32 {v(vPG)}, 2, v0
v_add_u32 {v(vPG)}, {PGOFF}, {v(vPG)}
v_mov_b32 {v(GR+6)}, 0
v_mov_b32 {v(GR+7)}, 0
v_mov_b32 v237, 0
v_mov_b32 v242, 0
""")
for t_ in SETD: A(t_)
sPH = sROLE
S3P = OPT['s3p']
def early_setup():
    A(f"""
    s_mov_b32 {s(sPH)}, 2
    s_cmp_ge_u32 {s(sW)}, 4
    s_cbranch_scc1 L_setup3
    L_ret1:
    """)
if S3P == 3: early_setup()
if OPT['lg'] == 2:
    lag_x()
    gather()
if OPT['wl']: early_w()
A(f"""
ds_write_b64 {v(vSY)}, {v(GR+6,2)}
ds_write_b64 {v(vSY)}, {v(GR+6,2)} offset:8
ds_write_b32 {v(vPG)}, {v(GR+6)}
s_mul_i32 {s(sT[3])}, {s(sRHO)}, {CP}
s_add_u32 {s(sT[3])}, {s(sT[3])}, {s(sCM)}
""")
wait_m("L_wm0", 2)
A(f"s_cmp_eq_u32 {s(sW)}, {SPW}")
A("s_cbranch_scc1 L_xw1")
wait_m("L_wm1", 0)
A.label("L_xw1")
if OPT['p1p'] == 2: A("s_setprio 1")
if OPT['p1p'] == 1:
    A(f"s_cmp_lt_u32 {s(sW)}, 4")
    A("s_cbranch_scc1 L_np")
    A("s_setprio 1")
    A.label("L_np")
stamp("x", (1, 2, 4))
for comp, dst in ((0, XR), (1, XI)):
    for t in range(2):
        for j in range(2):
            A(f"ds_read_b64_tr_b16 {v(dst+4*t+2*j,2)}, {v(aTR)} offset:{comp*2048+t*1024+j*512}")
A(f"s_or_b32 {s(sT[0])}, {s(sW)}, {s(sM)}" if OPT['bi'] and STAG else f"s_cmp_lg_u32 {s(sW)}, 0")
A("s_waitcnt lgkmcnt(0)")
stamp("tr", (2, 4))
TAGI = [f"s_mul_i32 {s(sTAG)}, {s(sE)}, 0x9E3779B1", f"s_add_u32 {s(sTAG)}, {s(sTAG)}, 0x7F4A7C15"]
m32(D1R, XR, FC, None)
A(f"""
s_cbranch_scc1 L_e1
{TAGI[0]}
{TAGI[1]}
s_atomic_swap_x2 {s(sEXP,2)}, {s(WS_,2)}, {s(sT[3])}
{f"s_atomic_swap_x2 {s(sEXP,2)}, {s(WS_,2)}, {s(sT[3])} offset:{RO}" if OPT['r2'] else ""}
s_branch L_e2
L_e1:
s_load_dword {s(sE)}, {s(WS_,2)}, {s(sT[6])}
L_e2:
""")
weave([M32(D1R, XR+4, FC+4, D1R), M32(D1R, XI, FS, D1R), M32(D1R, XI+4, FS+4, D1R), M32(D1I, XR, FN, None)],
      SETA[:24] if not OPT['sb'] else SETA[:16], 6 if not OPT['sb'] else [3, 3, 5, 5])
weave([M32(D1I, XR+4, FN+4, D1I), M32(D1I, XI, FC, D1I), M32(D1I, XI+4, FC+4, D1I)], (lambda t: t[:12] + ["s_setprio 0"] + t[12:] if OPT['p1p'] == 2 else t)(TW1(D1R, False)), [6, 6, 99])
stamp("m1", (2,))
for t_ in TW2(D1I, XR, XI, False, 0, 8): A(t_)
if not OPT['sb']: A(SETA[24])
stamp("tw", (2,))
weave([M32(D2R, FC, XR, None), M32(D2I, FN, XR, None), M32(D2R, FS, XI, D2R), M32(D2I, FC, XI, D2I)], TW2(D1I, XR, XI, False, 8, 16) + (SETA[25:26] if not OPT['sb'] else []), [6, 6, 6, 7])
weave([M32(D2R, FC+4, XR+4, D2R), M32(D2I, FN+4, XR+4, D2I), M32(D2R, FS+4, XI+4, D2R), M32(D2I, FC+4, XI+4, D2I)], SETA[26:] + SETB + SETC[:7] if not OPT['sb'] else [], [6, 5, 3, 99])
stamp("m2", (2,))
for i in range(16):
    cvt(TMP+i, D2R+i, D2I+i)
stamp("cv", (2,))
for i in range(16):
    kd2 = 8*(i >> 2) + (i & 3)
    if i < 8:
        A(f"ds_write_b32 {v(aP)}, {v(TMP+i)} offset:{(80*(kd2>>1)+8*(kd2&1))*8}")
    else:
        e = 31 - kd2 - 4
        A(f"ds_write_b32 {v(aQo if e & 1 else aQe)}, {v(TMP+i)} offset:{(80*(e>>1)+8*(e&1))*8+4}")
A(f"""
s_mov_b64 exec, 1
ds_write_b32 {v(aP)}, {v(TMP)} offset:4
ds_write_b32 {v(aP)}, {v(TMP+8)} offset:{640*8}
s_mov_b64 exec, -1
""")
stamp("wr", (2,))
for t_ in SETC[7:]: A(t_)
if WP == 1:
    A(f"s_cmp_ge_u32 {s(sW)}, 4")
    A("s_cbranch_scc1 L_nowp")
    A(WNSET)
    w_pair(range(NE))
    A.label("L_nowp")
A(f"""
v_mul_u32_u24 {v(PH)}, {2*PS}, {v(g_)}
v_lshlrev_b32 {v(PH+2)}, 4, {v(g_)}
s_cmp_lg_u32 {s(sW)}, {SPW}
s_cbranch_scc1 L_nosp0
s_lshl4_add_u32 {s(sT[0])}, {s(sM8)}, {s(sRHO)}
s_lshl_b32 {s(sT[0])}, {s(sT[0])}, 7
s_add_u32 {s(sT[0])}, {s(sT[0])}, {XB}
v_lshlrev_b32 {v(PH+1)}, 2, {v(vL)}
""")
wait_m("L_wm2", 0)
A(f"""
v_lshl_or_b32 v11, v12, 16, v11
s_mov_b64 exec, 0xffff
buffer_store_dword v11, {v(PH+1)}, {srd(WS_)}, {s(sT[0])} offen offset:64 sc1
s_mov_b64 exec, -1
L_nosp0:
s_waitcnt lgkmcnt(0)
""")
if OPT['p1p'] == 1: A("s_setprio 0")
stamp("wrd", (2,))
A("s_barrier")
stamp("bar1", (1, 2, 4))
for t in range(4):
    for jj in range(2):
        A(f"ds_read_b64 {v(XR+4*t+2*jj,2)}, {v(aRD)} offset:{160*t+PS*jj}")
A(f"ds_read_b64 {v(D2I,2)}, {v(PH)} offset:{EXOFF+640*8}")
A(f"ds_read_b64 {v(D2I+2,2)}, {v(PH)} offset:{EXOFF+640*8+PS}")
for t_ in TAGI: A(t_)
for t in range(4):
    A(f"s_waitcnt lgkmcnt({8-2*t})")
    m16(D1R+8*t, M3, XR+4*t, None)
for t in range(4):
    m16(D1R+8*t+4, M3+4, XR+4*t, None)
A("s_waitcnt lgkmcnt(0)")
peek(sC1)
for mt in range(2):
    for al in range(2):
        o = TMP + 4 + (mt*2+al)*4
        d = D1R + 4*mt + 2*al
        cvt(o, d, d+8); cvt(o+2, d+1, d+9)
        if mt == 0: m16(D2R+4*al, M3+4*al, D2I, None)
        cvt(o+1, d+16, d+24); cvt(o+3, d+17, d+25)
    for al in range(2):
        o = TMP + 4 + (mt*2+al)*4
        A(f"buffer_store_dwordx4 {v(o,4)}, {v(aST)}, {srd(OUT_)}, {s(sS1[mt])} offen offset:{al*256} sc1")
A(f"""
s_cmp_lg_u32 {s(sW)}, {SPW}
s_cbranch_scc1 L_nosp1
""")
cvt(TMP, D2R, D2R+2); cvt(TMP+1, D2R+4, D2R+6); cvt(TMP+2, D2R+1, D2R+3); cvt(TMP+3, D2R+5, D2R+7)
A(f"""
s_mov_b32 exec_lo, 0x00010001
s_mov_b32 exec_hi, 0x00010001
buffer_store_dwordx4 {v(TMP,4)}, {v(PH+2)}, {srd(WS_)}, {s(sT[0])} offen sc1
s_mov_b64 exec, -1
L_nosp1:
""")
stamp("st1", (2,))
A(f"""
s_barrier
""")
if S3P == 1: early_setup()
if S3P == 3:
    A(f"s_cmp_lt_u32 {s(sW)}, 4")
    A("s_cbranch_scc1 L_notab2")
    load_tables(aTB)
    A.label("L_notab2")
A(f"s_mov_b32 {s(sPH)}, 1")
GH = OPT['gh']
if GH:
    A(f"""
    s_cmp_lt_u32 {s(sW)}, 4
    s_cbranch_scc1 L_nogen
    s_sub_u32 {s(sI)}, {s(sW)}, {4 if GH == 2 else 0}
    L_gen:
    """)
    if STAG == 2:
        A(f"s_cmp_lg_u32 {s(sM)}, 0")
        A("s_cbranch_scc1 L_genskip")
    gen_m2(sI)
    A.label("L_genskip")
    if GH == 2:
        A(f"""
        s_add_u32 {s(sI)}, {s(sI)}, 4
        s_cmp_lt_u32 {s(sI)}, 8
        s_cbranch_scc1 L_gen
        """)
    lds_post(12)
    if GH == 1:
        A(f"s_cmp_lt_u32 {s(sW)}, 4")
        A("s_cbranch_scc1 L_genret")
    A.label("L_nogen")
validate("L_val1", sC1)
A("s_waitcnt vmcnt(0)")
signal(sC1)
stamp("fl1")
if S3P == 2:
    early_setup()
    A(f"s_mov_b32 {s(sPH)}, 1")
aW, aF, aRe, aIm, aO, aD = vT[2:8]
sFA, sFB, sFC, sDST, sOI, sDONE, sNEW, sMK = sT[4:12]
sTWO = sT[12]
A(f"""
s_cmp_ge_u32 {s(sW)}, 4
s_cbranch_scc1 L_helper
""")
A(f"""
v_add_u32 {v(PH)}, 8, {v(vL)}
v_mul_u32_u24 {v(PH+1)}, 57, {v(PH)}
v_lshrrev_b32 {v(PH+1)}, 9, {v(PH+1)}
v_mul_u32_u24 {v(PH+1)}, {16416-144}, {v(PH+1)}
v_lshl_add_u32 {v(aWT)}, {v(PH)}, 4, {v(PH+1)}
v_add_u32 {v(aWT)}, {56*16416}, {v(aWT)}
""")
w_piece(4)
if WP == 0: A(WNSET)
w_pair(range(NE, 4))
if NEA != NE:
    A(f"s_cmp_lg_u32 {s(sM)}, 0")
    A("s_cbranch_scc1 L_nolate")
    w_pair(range(NEA, NE))
    A.label("L_nolate")
if GH == 1:
    A(f"s_mov_b32 {s(sI)}, {s(sW)}")
    A("s_branch L_gen")
    A.label("L_genret")
if GH == 0:
    if STAG == 2:
        A(f"s_cmp_lg_u32 {s(sM)}, 0")
        A("s_cbranch_scc1 L_genskip")
    A(f"s_mov_b32 {s(sI)}, {s(sW)}")
    A.label("L_gen")
    gen_m2(sI)
    A(f"""
    s_add_u32 {s(sI)}, {s(sI)}, 4
    s_cmp_lt_u32 {s(sI)}, 8
    s_cbranch_scc1 L_gen
    L_genskip:
    """)
    lds_post(12)
A(f"""
s_mov_b32 {s(sFA)}, 0
s_and_b32 {s(sFC)}, {s(sA)}, 7
s_mov_b32 {s(sFB)}, 0
s_mul_i32 {s(sOI)}, {s(sW)}, {OS}
s_add_u32 {s(sOI)}, {s(sOI)}, {WOFF}
v_lshrrev_b32 {v(aRe)}, 2, {v(vL)}
v_and_b32 {v(aF)}, 3, {v(aRe)}
v_xor_b32 {v(aF)}, {s(sW)}, {v(aF)}
v_lshlrev_b32 {v(aRe)}, 8, {v(aRe)}
v_lshl_add_u32 {v(aRe)}, {v(aF)}, 6, {v(aRe)}
v_and_b32 {v(aF)}, 3, {v(vL)}
v_lshl_add_u32 {v(aRe)}, {v(aF)}, 4, {v(aRe)}
s_lshl_b32 {s(sT[0])}, {s(sW)}, 5
s_add_u32 {s(sT[0])}, {s(sT[0])}, {WOFF}
v_min_u32 {v(aW)}, 2, {v(g_)}
v_mul_u32_u24 {v(aF)}, 144, {v(c_)}
v_lshl_add_u32 {v(aW)}, {v(aW)}, 4, {v(aF)}
v_add_u32 {v(aW)}, {s(sT[0])}, {v(aW)}
""")
A.label("L_p2common")
A(f"v_lshlrev_b32 {v(aF)}, 4, {v(vL)}")
A(f"v_add_u32 {v(aF)}, {M2OFF}, {v(aF)}")
SEL = DNR
A(f"""
v_lshlrev_b32 {v(DIM)}, {s(sFA)}, {v(c_)}
v_lshlrev_b32 {v(DIM+1)}, 3, {v(g_)}
v_sub_u32 {v(DIM)}, {v(DIM)}, {v(DIM+1)}
v_add_u32 {v(DIM)}, {s(sFC)}, {v(DIM)}
v_add_u32 {v(DIM+1)}, {s(sFB)}, {v(DIM)}
v_mov_b32 {v(DIM+4)}, 0x3500
""")
for q in range(2):
    A(f"v_and_b32 {v(DIM+2)}, 1, {v(DIM+q)}")
    A(f"v_lshlrev_b32 {v(DIM+2)}, 4, {v(DIM+2)}")
    A(f"v_lshlrev_b32 {v(DIM+2)}, {v(DIM+2)}, {v(DIM+4)}")
    A(f"v_ashrrev_i32 {v(DIM+3)}, 1, {v(DIM+q)}")
    for j in range(4):
        A(f"v_cmp_eq_u32 vcc, {j}, {v(DIM+3)}")
        A(f"v_cndmask_b32 {v(SEL+4*q+j)}, 0, {v(DIM+2)}, vcc")
A(f"""
v_and_b32 {v(aIm)}, 1, {v(g_)}
v_lshl_add_u32 {v(aRe)}, {v(aIm)}, 3, {v(aRe)}
v_xor_b32 {v(aIm)}, 8, {v(aRe)}
v_bfe_u32 {v(aO)}, {v(vL)}, 1, 2
v_xor_b32 {v(aO)}, {v(aO)}, {v(g_)}
v_lshlrev_b32 {v(aO)}, 4, {v(aO)}
v_lshl_add_u32 {v(aO)}, {v(c_)}, 6, {v(aO)}
v_add_u32 {v(aO)}, {s(sOI)}, {v(aO)}
v_mov_b32 {v(vT[9])}, {2 if OPT['g2'] else 1}
s_mov_b32 {s(sT[0])}, 0x80008000
s_mov_b32 {s(sDONE)}, 0
s_mov_b32 {s(sTWO)}, 2.0
s_mov_b32 {s(sTWO+1)}, 2.0
""")
lds_wait("L_fr", 12, 8 if GH == 1 else 4)
for f in range(16):
    A(f"ds_read_b128 {v(FR+4*f,4)}, {v(aF)} offset:{f*1024}")
A(f"""
s_waitcnt vmcnt(0)
s_cmp_lt_u32 {s(sW)}, 4
s_cbranch_scc1 L_wreg
""")
XP = [WR_, WR_+2, WI_, WI_+2]
A(f"""
s_mov_b32 {s(sCNT)}, 0x8000
L_pollx:
""")
for i in range(4):
    A(f"s_mov_b64 {s(XP[i],2)}, 0")
    A(f"s_atomic_or_x2 {s(XP[i],2)}, {s(WS_,2)}, {s(sT[2])} offset:{(SPW*4+i)*CP} glc")
A(f"""
s_sub_u32 {s(sCNT)}, {s(sCNT)}, 1
s_cbranch_scc1 L_pollx_out
s_waitcnt lgkmcnt(0)
""")
for i in range(4):
    A(f"s_cmp_lg_u32 {s(XP[i]+1)}, {s(sTAG)}")
    A("s_cbranch_scc1 L_pollx")
A(f"""
s_and_b32 {s(XP[0])}, {s(XP[0])}, {s(XP[1])}
s_and_b32 {s(XP[2])}, {s(XP[2])}, {s(XP[3])}
s_and_b32 {s(XP[0])}, {s(XP[0])}, {s(XP[2])}
s_cmp_lg_u32 {s(XP[0])}, 32
s_cbranch_scc1 L_pollx
L_pollx_out:
s_mov_b32 {s(sT[2])}, {s(sDST)}
""")
stamp("pol1")
for n in range(8):
    A(f"buffer_load_dwordx4 {v(ER+4*n,4)}, {v(aW)}, {srd(WS_)}, {s(sT[2])} offen offset:64 sc1")
    A(f"buffer_load_dwordx4 {v(aD)}, {srd(WS_)}, {s(sT[2])} offen sc1 lds")
    if n < 7:
        A(f"s_add_u32 m0, m0, 4096")
        A(f"s_add_u32 {s(sT[2])}, {s(sT[2])}, 2048")
A("s_setprio 3" if OPT['xprio'] else "s_setprio 0")
for t in range(8):
    A(f"s_waitcnt vmcnt({14-2*t})")
    m16(WRF+4*t, ER+4*t, SEL, None); m16(WIF+4*t, ER+4*t, SEL+4, None)
A("s_waitcnt lgkmcnt(0)")
A("s_branch L_f0")
A.label("L_wreg")
lds_post(0)

lds_wait("L_wr", 0, 8)
for t in range(16):
    if t == 12: A("s_waitcnt lgkmcnt(8)")
    A(f"ds_read_b128 {v(ER+4*t,4)}, {v(aW)} offset:{t*2304}")
A(f"""
v_mov_b32 {v(vS1)}, 0x100
s_mov_b64 exec, 1
ds_add_u32 {v(vSY)}, {v(vS1)} offset:8
s_mov_b64 exec, -1
""")
for t in range(16):
    if t >= 4: A(f"s_waitcnt lgkmcnt({16-t})")
    m16(WRF+4*t, ER+4*t, SEL, None)
stamp("wcv", (1,))
CH = OPT['ch']
IFR = lambda u: [f"ds_read_b128 {v(FR+4*f,4)}, {v(aF)} offset:{16384+f*1024}" for f in range(4*u, 4*u+4)]
def TR4(u):
    return [f"ds_read_b64_tr_b16 {v(DRE+4*u+2*j,2)}, {v(aRe)} offset:{u*8192+j*4096}" for j in range(2)] + \
           [f"ds_read_b64_tr_b16 {v(DIM+4*u+2*j,2)}, {v(aIm)} offset:{u*8192+j*4096}" for j in range(2)]
def BLK(u):
    fc = lambda mt: FR + (u*4 + mt*2) * 4
    fs = lambda mt: FR + (u*4 + mt*2 + 1) * 4
    e = lambda mt: (u*2 + mt) * 4
    c0 = lambda r: r - 16 if CH and u >= 2 else None
    return [M16(ER+e(0), fc(0), DRE+4*u, c0(ER+e(0))), M16(ER+e(1), fc(1), DRE+4*u, c0(ER+e(1))),
            M16(EI+e(0), fc(0), DIM+4*u, c0(EI+e(0))), M16(EI+e(1), fc(1), DIM+4*u, c0(EI+e(1))),
            M16(ER+e(0), fs(0), DIM+4*u, ER+e(0)), M16(ER+e(1), fs(1), DIM+4*u, ER+e(1)),
            M16(EI+e(0), fs(0), DNR+4*u, EI+e(0)), M16(EI+e(1), fs(1), DNR+4*u, EI+e(1))]
XO = lambda u: [f"v_xor_b32 {v(DNR+4*u+j)}, {s(sT[0])}, {v(DRE+4*u+j)}" for j in range(4)]
ALLB = 0x422
if OPT['fw'] == 3:
    A(f"""
    s_mov_b32 {s(sCNT)}, 0x40000
    L_go:
    ds_read_b32 {v(vS1)}, {v(vSY)} offset:8
    s_sub_u32 {s(sCNT)}, {s(sCNT)}, 1
    s_cbranch_scc1 L_f0
    s_waitcnt lgkmcnt(0)
    v_readfirstlane_b32 {s(sMK)}, {v(vS1)}
    s_and_b32 {s(sNEW)}, {s(sMK)}, 0x22
    s_cbranch_scc0 L_go
    s_cmp_lg_u32 {s(sMK)}, {ALLB}
    s_cbranch_scc1 L_half
    """)
else:
    lds_wait("L_go", 8, ALLB)
A.label("L_f0")
stamp("dat1", (1, 3))
for t_ in TR4(0) + TR4(1) + TR4(2): A(t_)
A("s_waitcnt lgkmcnt(10)")
weave(BLK(0), XO(0) + ["s_waitcnt lgkmcnt(8)"] + TR4(3), [2, 3, 1, 1, 1, 1, 0, 0])
A("s_waitcnt lgkmcnt(8)")
weave(BLK(1), XO(1), 2)
A("s_waitcnt lgkmcnt(0)")
weave(BLK(2), XO(2) + IFR(0) + IFR(1)[:2], [2, 2, 1, 1, 1, 1, 1, 1])
weave(BLK(3), XO(3) + IFR(1)[2:] + IFR(2), [2, 2, 1, 1, 1, 1, 1, 1])
for t_ in IFR(3): A(t_)
A("s_nop 1")
A.label("L_fwd_done")
def half_paths():
    A(f"""
    L_half:
    s_bitcmp1_b32 {s(sMK)}, 1
    s_cbranch_scc0 L_h1
    """)
    for h in range(2):
        A.label(f"L_h{h}")
        stamp("dat1", (1, 3))
        for t_ in TR4(h) + TR4(h+2): A(t_)
        A("s_waitcnt lgkmcnt(6)")
        weave(BLK(h), XO(h) + ["s_waitcnt lgkmcnt(4)"], [2, 3, 0, 0, 0, 0, 0, 0])
        A("s_waitcnt lgkmcnt(0)")
        weave(BLK(h+2), XO(h+2) + IFR(h), [2, 2, 1, 1, 1, 1, 0, 0])
        for t_ in IFR(h+2): A(t_)
        A(f"s_xor_b32 {s(sDONE)}, {s(sDONE)}, 1")
        A("s_cbranch_scc0 L_fwd_done")
        lds_wait(f"L_hw{h}", 8, ALLB)
        if h: A("s_branch L_h0")
stamp("fwd", (3,))
A("s_nop 1")
TT = DNR
def pk(op, d, a, b, c=None, na=False, nb=False):
    ops = f"{v(d,2)}, {v(a,2)}, {v(b,2)}" + (f", {v(c,2)}" if c is not None else "")
    n = [int(na), int(nb)] + ([0] if c is not None else [])
    mod = f" neg_lo:{n} neg_hi:{n}".replace(", ", ",") if (na or nb) else ""
    A(f"v_pk_{op}_f32 {ops}{mod}")
add = lambda d, a, b: pk("add", d, a, b)
sub = lambda d, a, b: pk("add", d, a, b, nb=True)
A.raw(".p2align 3")
for mt in range(2):
    for rp in range(2):
        if mt*2 + rp < OPT['cut']: continue
        er = lambda u: ER + (u*2+mt)*4 + 2*rp
        ei = lambda u: EI + (u*2+mt)*4 + 2*rp
        wr = lambda q: WRF + (q*2+mt)*4 + 2*rp
        wi = lambda q: WIF + (q*2+mt)*4 + 2*rp
        tr = lambda i: TT + 4*i
        ti = lambda i: TT + 4*i + 2
        if CH:
            dif = lambda d, a, c: A(f"v_pk_fma_f32 {v(d,2)}, {v(a,2)}, {s(sTWO,2)}, {v(c,2)} neg_lo:[0,0,1] neg_hi:[0,0,1]")
            dif(tr(1), er(0), er(2)); dif(ti(1), ei(0), ei(2)); dif(tr(3), er(1), er(3)); dif(ti(3), ei(1), ei(3))
            add(er(0), er(2), er(3)); add(ei(0), ei(2), ei(3)); sub(er(2), er(2), er(3)); sub(ei(2), ei(2), ei(3))
        else:
            add(tr(0), er(0), er(2)); add(ti(0), ei(0), ei(2)); sub(tr(1), er(0), er(2)); sub(ti(1), ei(0), ei(2))
            add(tr(2), er(1), er(3)); add(ti(2), ei(1), ei(3)); sub(tr(3), er(1), er(3)); sub(ti(3), ei(1), ei(3))
            add(er(0), tr(0), tr(2)); add(ei(0), ti(0), ti(2)); sub(er(2), tr(0), tr(2)); sub(ei(2), ti(0), ti(2))
        add(er(1), tr(1), ti(3)); sub(ei(1), ti(1), tr(3)); sub(er(3), tr(1), ti(3)); add(ei(3), ti(1), tr(3))
        for q in range(4):
            pk("mul", tr(q), er(q), wr(q)); pk("mul", ti(q), er(q), wi(q))
        for q in range(4):
            pk("fma", tr(q), ei(q), wi(q), tr(q), na=True); pk("fma", ti(q), ei(q), wr(q), ti(q))
        add(wr(0), tr(0), tr(2)); add(wi(0), ti(0), ti(2)); sub(wr(1), tr(0), tr(2)); sub(wi(1), ti(0), ti(2))
        add(wr(2), tr(1), tr(3)); add(wi(2), ti(1), ti(3)); sub(wr(3), tr(1), tr(3)); sub(wi(3), ti(1), ti(3))
        add(er(0), wr(0), wr(2)); add(ei(0), wi(0), wi(2)); sub(er(2), wr(0), wr(2)); sub(ei(2), wi(0), wi(2))
        sub(er(1), wr(1), wi(3)); add(ei(1), wi(1), wr(3)); add(er(3), wr(1), wi(3)); sub(ei(3), wi(1), wr(3))
def OPS(u):
    L = [CVT(DRE+4*u+j, ER+8*u+2*j, ER+8*u+2*j+1) for j in range(4)]
    L += [CVT(DIM+4*u+j, EI+8*u+2*j, EI+8*u+2*j+1) for j in range(4)]
    L += [CVT(DNR+4*u+j, EI+8*u+2*j, EI+8*u+2*j+1, True, True) for j in range(4)]
    return L
def INV(k):
    e = k*4; o = WRF + e
    return [CVT(o, ER+e, ER+e+1), CVT(o+1, ER+e+2, ER+e+3), CVT(o+2, EI+e, EI+e+1), CVT(o+3, EI+e+2, EI+e+3),
            f"ds_write_b128 {v(aO)}, {v(o,4)} offset:{k*1024}", f"ds_add_u32 {v(vPG)}, {v(vT[9])}"]
for t_ in OPS(0): A(t_)
A("s_waitcnt lgkmcnt(0)")
stamp("mid", (3,))
if OPT['g2']:
    for u in range(4):
        mf = []
        for nt in range(2):
            fc, fs, e = FR + (u*4 + nt*2) * 4, FR + (u*4 + nt*2 + 1) * 4, (u*2+nt) * 4
            mf += [M16(ER+e, DRE+4*u, fc, None), M16(EI+e, DIM+4*u, fc, None), M16(ER+e, DNR+4*u, fs, ER+e), M16(EI+e, DRE+4*u, fs, EI+e)]
        ops = OPS(u+1) if u < 3 else []
        if u:
            l0, l1 = INV(2*u-2), INV(2*u-1)
            out = l0[:4] + l1[:4] + [l0[4], l1[4], l1[5]]
            weave(mf, out + ops, [2, 2, 2, 5, 3, 3, 3, 3] if ops else [2, 2, 2, 5, 0, 0, 0, 0])
        else: weave(mf, ops, 2)
    stamp("inv", (3,))
    l0, l1 = INV(6), INV(7)
    for t_ in l0[:4] + l1[:4] + [l0[4], l1[4], l1[5]]: A(t_)
else:
    for k in range(8):
        u, nt = k >> 1, k & 1
        fc, fs, e = FR + (u*4 + nt*2) * 4, FR + (u*4 + nt*2 + 1) * 4, k * 4
        ops = OPS(u+1)[6*nt:6*nt+6] if u < 3 else []
        out = INV(k-1) if k >= 1 else []
        fill = ops + out
        weave([M16(ER+e, DRE+4*u, fc, None), M16(EI+e, DIM+4*u, fc, None), M16(ER+e, DNR+4*u, fs, ER+e), M16(EI+e, DRE+4*u, fs, EI+e)],
              fill, [3, 3, 2, 4] if ops and out else ([2, 2, 2, 0] if ops else [0, 0, 0, 6]))
    stamp("inv", (3,))
    for t_ in INV(7): A(t_)
stamp("cmp2", (1, 3))
A(f"""
s_cmp_lt_u32 {s(sW)}, 4
s_cbranch_scc1 L_setup3
""")
A(f"""
v_lshlrev_b32 {v(aO)}, 7, {v(c_)}
v_lshl_add_u32 {v(aO)}, {v(g_)}, 4, {v(aO)}
""")
for i in range(8): A(f"v_mov_b32 {v(WIF+2*i+1)}, {s(sTAG)}")
for k in range(8):
    o = WIF + 8*(k & 1)
    for e in range(4): cvt(o+2*e, ER+4*k+e, EI+4*k+e)
    for h in range(2): A(f"buffer_store_dwordx4 {v(o+4*h,4)}, {v(aO)}, {srd(WS_)}, {s(sDST)} offen offset:{(k&1)*2048+h*64} sc1")
    if k & 1: A(f"s_add_u32 {s(sDST)}, {s(sDST)}, 4096")
A(f"""
s_setprio 0
s_branch L_setup3
""")
if OPT['fw'] == 3: half_paths()
A(f"""
L_helper:
""")
if OPT['hp'] & 1: A("s_setprio 2")
lds_post(0)
A(f"""
s_cmp_eq_u32 s2, {HA}
s_cselect_b32 {s(sT[3])}, {s(sW)}, 0
s_cmp_eq_u32 s2, {HB}
s_cselect_b32 {s(sT[3])}, {s(sW)}, {s(sT[3])}
s_cmp_lg_u32 {s(sT[3])}, 4
s_cbranch_scc1 L_loader
s_mov_b32 {s(sFA)}, 1
s_mov_b32 {s(sFC)}, 0
s_mov_b32 {s(sFB)}, 1
s_cmp_eq_u32 s2, {HB}
s_cselect_b32 {s(sDST)}, 0x4000, 0
s_lshl1_add_u32 {s(sT[2])}, {s(sDST)}, {CB}
s_add_u32 {s(sDST)}, {s(sDST)}, {XB}
v_lshrrev_b32 {v(aD)}, 2, {v(vL)}
v_and_b32 {v(aW)}, 3, {v(vL)}
v_lshlrev_b32 {v(aW)}, 4, {v(aW)}
v_lshl_add_u32 {v(aD)}, {v(aD)}, 7, {v(aW)}
v_lshlrev_b32 {v(aW)}, 7, {v(c_)}
v_lshl_add_u32 {v(aW)}, {v(g_)}, 4, {v(aW)}
s_mov_b32 {s(sOI)}, {XOUT}
v_lshlrev_b32 {v(aRe)}, 4, {v(vL)}
v_add_u32 {v(aRe)}, {EXOFF}, {v(aRe)}
s_mov_b32 m0, {EXOFF}
s_branch L_p2common
L_loader:
""")
sSRC, sPL, sSG, sBIT = sT[4:8]
A(f"""
s_sub_u32 {s(sT[1])}, {s(sW)}, 4
s_and_b32 {s(sT[10])}, {s(sA)}, 8
s_add_u32 {s(sT[10])}, {s(sT[10])}, {s(sGRP)}
s_lshl_b32 {s(sT[10])}, {s(sT[10])}, 11
s_add_u32 {s(sT[10])}, {s(sT[10])}, {s(sM8)}
s_and_b32 {s(sT[9])}, {s(sA)}, 7
s_add_u32 {s(sT[10])}, {s(sT[10])}, {s(sT[9])}
s_lshl_b32 {s(sT[10])}, {s(sT[10])}, 8
s_lshl_b32 {s(sSRC)}, {s(sT[1])}, 12
s_add_u32 {s(sSRC)}, {s(sSRC)}, {s(sT[10])}
s_lshl2_add_u32 {s(sPL)}, {s(sGRP)}, {s(sT[1])}
s_mul_i32 {s(sPL)}, {s(sPL)}, {CP}
s_add_u32 {s(sPL)}, {s(sPL)}, {s(sCM)}
s_lshl_b32 m0, {s(sT[1])}, 13
s_xor_b32 {s(sSG)}, {s(sSRC)}, {65536 | (OPT['px'] << 19)}
v_lshlrev_b32 {v(aD)}, 2, {v(g_)}
v_xor_b32 {v(aD)}, {v(aD)}, {v(c_)}
v_lshlrev_b32 {v(aD)}, 4, {v(aD)}
v_lshl_add_u32 {v(aD)}, {v(g_)}, 14, {v(aD)}
""")
A(f"""
s_bitcmp1_b32 {s(sW)}, 0
s_cselect_b32 {s(sBIT)}, 16, 1
s_cmp_eq_u32 {s(sT[3])}, 5
s_cselect_b32 {s(sBIT)}, 17, {s(sBIT)}
v_mov_b32 {v(vT[2])}, {s(sBIT)}
s_cbranch_scc0 L_single
s_mov_b32 {s(sEXP)}, 32
s_mov_b32 {s(sCNT)}, 0x8000
s_sub_u32 {s(sT[2])}, {s(sPL)}, {CP}
L_dual:
s_mov_b64 {s(XP[0],2)}, 0
s_atomic_or_x2 {s(XP[0],2)}, {s(WS_,2)}, {s(sT[2])} glc
""")
peek(sPL)
A(f"""
s_sub_u32 {s(sCNT)}, {s(sCNT)}, 1
s_cbranch_scc1 L_poll1_out
s_waitcnt lgkmcnt(0)
s_cmp_eq_u64 {s(XP[0],2)}, {s(sEXP,2)}
s_cbranch_scc0 L_dual
s_cmp_eq_u64 {s(sV,2)}, {s(sEXP,2)}
s_cbranch_scc1 L_poll1_out
L_single:
""")
poll("L_poll1", sPL, 32, OPT['sl1'])
stamp("pol1")
for n in range(8):
    r_ = sSG if n & 1 else sSRC
    A(f"buffer_load_dwordx4 {v(aD)}, {srd(OUT_)}, {s(r_)} offen sc1 lds")
    if n < 7: A(f"s_add_u32 m0, m0, 1024")
    if n < 6: A(f"s_add_u32 {s(r_)}, {s(r_)}, 131072")
A(f"""
s_cmp_lg_u32 {s(sT[3])}, 5
s_cbranch_scc1 L_posted
s_mov_b32 {s(sT[3])}, 0
s_mov_b32 m0, 0
s_mov_b32 {s(sSRC)}, {s(sT[10])}
s_xor_b32 {s(sSG)}, {s(sSRC)}, {65536 | (OPT['px'] << 19)}
s_branch L_poll1_out
""")
def post_rows(extra):
    A("s_mov_b64 exec, 1")
    A("s_waitcnt vmcnt(0)")
    A(f"ds_add_u32 {v(vSY)}, {v(vT[2])} offset:8")
    A("s_mov_b64 exec, -1")
A.label("L_posted")
A(f"""
s_cmp_lt_u32 {s(sW)}, {8-NST}
s_cselect_b32 {s(sPH)}, 1, 0
""")
post_rows(0)
stamp("ld1")
if OPT['hp'] & 1: A("s_setprio 0")
if S3P: A("s_branch L_setup3_end")
A.label("L_setup3")
A3 = 237
QQ = TMP + 24
aD3, aPw, aQ1, aQ0, aRd3, aSo, aQp = range(A3, A3+7)
aT = list(range(A3+9, A3+13))
sMR = 29
A(f"""
v_lshrrev_b32 {v(QQ)}, 1, {v(vL)}
v_xor_b32 {v(QQ)}, {v(QQ)}, {v(vL)}
v_and_b32 {v(QQ)}, 4, {v(QQ)}
v_mul_u32_u24 {v(QQ)}, 3, {v(QQ)}
v_xor_b32 {v(QQ)}, {v(QQ)}, {v(vL)}
v_lshlrev_b32 {v(aTB)}, 4, {v(QQ)}
v_add_u32 {v(aTB)}, {T1OFF}, {v(aTB)}
v_and_b32 {v(aSo)}, 15, {v(QQ)}
v_lshlrev_b32 {v(aSo)}, 6, {v(aSo)}
v_and_b32 {v(QQ)}, 1, {v(g_)}
v_lshl_add_u32 {v(aSo)}, {v(QQ)}, 5, {v(aSo)}
v_lshrrev_b32 {v(QQ)}, 1, {v(g_)}
v_lshl_add_u32 {v(aSo)}, {v(QQ)}, 4, {v(aSo)}
""")
if S3P == 3:
    A(f"s_cmp_eq_u32 {s(sPH)}, 2")
    A("s_cbranch_scc1 L_notab")
load_tables(aTB)
A.label("L_notab")
A(f"""
v_lshrrev_b32 {v(QQ)}, 2, {v(c_)}
v_lshl_add_u32 {v(QQ)}, {v(QQ)}, 7, {s(sSB)}
v_cvt_f32_u32 {v(QQ)}, {v(QQ)}
v_mul_f32 {v(QQ)}, {fbits(1/2048)}, {v(QQ)}
v_add_f32 {v(QQ+1)}, {fbits(0.25)}, {v(QQ)}
v_and_b32 {v(QQ+2)}, 1, {v(c_)}
v_cvt_f32_u32 {v(QQ+2)}, {v(QQ+2)}
v_mul_f32 {v(QQ+2)}, {fbits(-0.25)}, {v(QQ+2)}
v_add_f32 {v(QQ+3)}, {fbits(-0.125)}, {v(QQ+2)}
v_add_f32 {v(QQ+2)}, {fbits(0.125)}, {v(QQ+2)}
v_and_b32 {v(QQ+4)}, 2, {v(c_)}
v_lshlrev_b32 {v(QQ+4)}, 30, {v(QQ+4)}
v_xor_b32 {v(QQ+2)}, {v(QQ+4)}, {v(QQ+2)}
v_xor_b32 {v(QQ+3)}, {v(QQ+4)}, {v(QQ+3)}
v_lshlrev_b32 {v(QQ+4)}, 1, {v(g_)}
v_cvt_f32_u32 {v(QQ+4)}, {v(QQ+4)}
v_add_f32 {v(QQ+5)}, 1.0, {v(QQ+4)}
v_add_f32 {v(QQ+6)}, {fbits(8.0)}, {v(QQ+4)}
v_add_f32 {v(QQ+7)}, {fbits(9.0)}, {v(QQ+4)}
""")
for mt in range(2):
    for j in range(4):
        t = TMP + (mt*4+j)*3
        A(f"v_fma_f32 {v(t)}, {v(QQ+mt)}, {v(QQ+4+j)}, {v(QQ+2+(j&1))}")
        A(f"v_cos_f32 {v(t+1)}, {v(t)}")
        A(f"v_sin_f32 {v(t+2)}, {v(t)}")
for mt in range(2):
    for j in range(4):
        t = TMP + (mt*4+j)*3
        cvt(M3T+mt*4+j, t+1, t+2, False, True)
A(f"""
v_lshrrev_b32 {v(QQ)}, 3, {v(vL)}
v_and_b32 {v(QQ+1)}, 3, {v(QQ)}
v_lshlrev_b32 {v(QQ+1)}, 6, {v(QQ+1)}
v_lshl_add_u32 {v(QQ)}, {v(QQ)}, 8, {v(QQ+1)}
v_and_b32 {v(QQ+1)}, 3, {v(vL)}
v_lshl_add_u32 {v(QQ)}, {v(QQ+1)}, 4, {v(QQ)}
v_and_b32 {v(QQ+1)}, 4, {v(vL)}
v_lshl_add_u32 {v(QQ)}, {v(QQ+1)}, 1, {v(QQ)}
v_add_u32 {v(aT[0])}, {s(sW12)}, {v(QQ)}
v_xor_b32 {v(aT[1])}, 64, {v(aT[0])}
v_xor_b32 {v(aT[2])}, 128, {v(aT[0])}
v_xor_b32 {v(aT[3])}, 192, {v(aT[0])}
v_mul_u32_u24 {v(QQ)}, {PS2}, {v(g_)}
s_lshl_b32 {s(sT[0])}, {s(sW)}, 8
s_add_u32 {s(sT[1])}, {s(sT[0])}, {EX2}
s_sub_u32 {s(sT[0])}, {EX2+15*256}, {s(sT[0])}
v_lshl_add_u32 {v(aPw)}, {v(c_)}, 3, {v(QQ)}
v_add_u32 {v(aPw)}, {s(sT[1])}, {v(aPw)}
v_sub_u32 {v(QQ+1)}, 16, {v(c_)}
v_lshl_add_u32 {v(QQ+1)}, {v(QQ+1)}, 3, {v(QQ)}
v_add_u32 {v(aQp)}, {s(sT[0])}, {v(QQ+1)}
v_cmp_eq_u32 vcc, 0, {v(c_)}
v_mov_b32 {v(QQ+2)}, 128
v_mov_b32 {v(QQ+3)}, 132
v_mov_b32 {v(QQ+4)}, -124
v_cndmask_b32 {v(QQ+4)}, {v(QQ+2)}, {v(QQ+4)}, vcc
v_cndmask_b32 {v(QQ+3)}, {v(QQ+3)}, {v(QQ+2)}, vcc
v_add_u32 {v(aQ1)}, {v(aQp)}, {v(QQ+4)}
v_add_u32 {v(aQ0)}, {v(aQp)}, {v(QQ+3)}
s_mul_i32 {s(sT[0])}, {s(sP)}, {PS2}
s_add_u32 {s(sT[0])}, {s(sT[0])}, {EX2}
v_and_b32 {v(QQ+1)}, 31, {v(vL)}
v_lshrrev_b32 {v(QQ+2)}, 5, {v(vL)}
v_lshlrev_b32 {v(QQ+3)}, 9, {v(QQ+2)}
v_lshl_add_u32 {v(QQ+3)}, {v(QQ+1)}, 3, {v(QQ+3)}
v_add_u32 {v(aRd3)}, {s(sT[0])}, {v(QQ+3)}
s_lshl_b32 {s(sO[0])}, {s(sP)}, 7
s_add_u32 {s(sO[0])}, {s(sO[0])}, {s(sSB)}
s_lshl_b32 {s(sO[0])}, {s(sO[0])}, 12
s_lshl_b32 {s(sO[1])}, {s(sM)}, 11
s_add_u32 {s(sO[0])}, {s(sO[0])}, {s(sO[1])}
s_add_u32 {s(sO[1])}, {s(sO[0])}, {1024*4096}
s_mov_b32 {s(sPM)}, 0x05040100
s_mov_b32 {s(sPM+1)}, 0x07060302
""")
A(f"""
v_lshlrev_b32 {v(QQ)}, 2, {v(g_)}
v_xor_b32 {v(QQ)}, {v(QQ)}, {v(c_)}
v_lshlrev_b32 {v(QQ)}, 4, {v(QQ)}
v_lshl_add_u32 {v(aD3)}, {v(g_)}, 8, {v(QQ)}
s_lshl_b32 {s(sMR)}, {s(sM)}, 7
s_add_u32 {s(sMR)}, {s(sMR)}, {s(sRHO)}
""")
if S3P:
    A(f"s_cmp_eq_u32 {s(sPH)}, 2")
    A("s_cbranch_scc1 L_ret1")
A(f"""
L_setup3_end:
s_cmp_lg_u32 {s(sPH)}, 0
s_cbranch_scc1 L_nosig2
""")
aR0, aR1, aS2, aPr, aS3 = vT[2:7]
sD = sT[4:5]
A(f"""
v_bfe_u32 {v(aR0)}, {v(vL)}, 2, 2
v_mul_u32_u24 {v(aR0)}, {OS}, {v(aR0)}
v_lshl_add_u32 {v(aR0)}, {v(g_)}, 6, {v(aR0)}
v_and_b32 {v(aR1)}, 3, {v(vL)}
v_mul_u32_u24 {v(aPr)}, 260, {v(aR1)}
v_add_u32 {v(aPr)}, {PGOFF}, {v(aPr)}
v_lshrrev_b32 {v(aS2)}, 5, {v(vL)}
v_xor_b32 {v(aR1)}, {v(aR1)}, {v(aS2)}
v_lshl_add_u32 {v(aR0)}, {v(aR1)}, 4, {v(aR0)}
s_sub_u32 {s(sT[8])}, 7, {s(sW)}
s_lshl_b32 {s(sT[0])}, {s(sT[8])}, 10
s_add_u32 {s(sT[0])}, {s(sT[0])}, {WOFF}
v_add_u32 {v(aR0)}, {s(sT[0])}, {v(aR0)}
v_xor_b32 {v(aR1)}, 32, {v(aR0)}
v_lshlrev_b32 {v(aS2)}, 14, {v(g_)}
v_lshl_add_u32 {v(aS2)}, {v(c_)}, 4, {v(aS2)}
s_lshl3_add_u32 {s(sT[0])}, {s(sGRP)}, {s(sT[8])}
s_mul_i32 {s(sT[0])}, {s(sT[0])}, {CP}
s_add_u32 {s(sT[0])}, {s(sT[0])}, {s(sCM)}
s_add_u32 {s(sT[0])}, {s(sT[0])}, {32*CP}
""")
if OPT['hp'] & 2: A("s_setprio 2")
NR = -(-8 // NST)
for i in range(NR):
    if NST*i + NST > 8:
        A(f"s_cmp_ge_u32 {s(sT[8])}, 8")
        A("s_cbranch_scc1 L_short")
    A(f"""
    s_lshr_b32 {s(sD[0])}, {s(sT[8])}, 1
    s_and_b32 {s(sT[6])}, {s(sT[8])}, 1
    s_lshl_b32 {s(sT[6])}, {s(sT[6])}, 6
    s_add_u32 {s(sD[0])}, {s(sD[0])}, {s(sT[6])}
    s_lshl_b32 {s(sD[0])}, {s(sD[0])}, 12
    s_add_u32 {s(sD[0])}, {s(sD[0])}, {s(sT[10])}
    s_mov_b32 {s(sCNT)}, 0x40000
    L_pg{i}:
    ds_read_b32 {v(vS1)}, {v(aPr)}
    s_sub_u32 {s(sCNT)}, {s(sCNT)}, 1
    s_cbranch_scc1 L_pg{i}_out
    {('s_sleep %d' % OPT['slp']) if i == 0 and OPT['slp'] else ''}
    s_waitcnt lgkmcnt(0)
    v_cmp_ge_u32 vcc, {s(sT[8])}, {v(vS1)}
    s_and_b64 vcc, vcc, vcc
    s_cbranch_scc1 L_pg{i}
    L_pg{i}_out:
    """)
    d = D1R + 16*i
    for j in range(4): A(f"ds_read_b128 {v(d+4*j,4)}, {v(aR1 if j & 1 else aR0)} offset:{i*NST*1024+j*256}")
    A(f"s_add_u32 {s(sT[8])}, {s(sT[8])}, {NST}")
    for j in range(4):
        A(f"s_waitcnt lgkmcnt({3-j})")
        A(f"buffer_store_dwordx4 {v(d+4*j,4)}, {v(aS2)}, {srd(OUT_)}, {s(sD[0])} offen sc1")
        if j < 3:
            A(f"s_add_u32 {s(sD[0])}, {s(sD[0])}, 65536")
            if OPT['px']: A(f"s_xor_b32 {s(sD[0])}, {s(sD[0])}, {4*AROW}")
for i in range(NR):
    A(f"s_waitcnt vmcnt({4*(NR-1-i)})")
    signal(sT[0], NST*i*CP)
    if OPT['r2']: signal(sT[0], NST*i*CP + RO)
if 8 % NST:
    A("s_branch L_nosig2")
    A.label("L_short")
    for i in range(NR-1):
        A(f"s_waitcnt vmcnt({4*(NR-2-i)})")
        signal(sT[0], NST*i*CP)
        if OPT['r2']: signal(sT[0], NST*i*CP + RO)
A.label("L_nosig2")
if OPT['hp'] & 2: A("s_setprio 0")
stamp("fl2")
if OPT['nb']:
    A(f"""
    s_cmp_eq_u32 s2, {HA}
    s_cselect_b32 {s(sT[0])}, 4, 3
    s_cmp_eq_u32 s2, {HB}
    s_cselect_b32 {s(sT[0])}, 4, {s(sT[0])}
    s_add_u32 {s(sT[1])}, {s(sT[0])}, {s(sPH)}
    s_cmp_eq_u32 {s(sT[1])}, 3
    s_cbranch_scc1 L_pgx_out
    v_min_u32 {v(vT[2])}, {s(sT[0])}, {v(vL)}
    v_mul_u32_u24 {v(vT[2])}, 260, {v(vT[2])}
    v_add_u32 {v(vT[2])}, {PGOFF}, {v(vT[2])}
    s_mov_b32 {s(sCNT)}, 0x40000
    L_pgx:
    ds_read_b32 {v(vS1)}, {v(vT[2])}
    s_sub_u32 {s(sCNT)}, {s(sCNT)}, 1
    s_cbranch_scc1 L_pgx_out
    s_waitcnt lgkmcnt(0)
    v_cmp_eq_u32 vcc, 0, {v(vS1)}
    s_and_b64 vcc, vcc, vcc
    s_cbranch_scc1 L_pgx
    L_pgx_out:
    """)
else: A("s_barrier")
A(f"s_mov_b32 m0, {s(sW12)}")
poll("L_poll2", sC2, 16, OPT['sl2'])
stamp("pol2")
for j in range(4):
    A(f"buffer_load_dwordx4 {v(aD3)}, {srd(OUT_)}, {s(sO[j>>1])} offen offset:{(j&1)*1024} sc1 lds")
    if j == 1: A("s_add_u32 m0, m0, 2048")
A(f"""
s_cmp_lg_u32 {s(sW)}, 4
s_cbranch_scc1 L_noep
s_cmp_lg_u32 s2, {HB}
s_cbranch_scc1 L_noep
s_mov_b32 {s(sT[4])}, {EW}
s_atomic_swap {s(sTAG)}, {s(WS_,2)}, {s(sT[4])}
s_waitcnt lgkmcnt(0)
L_noep:
""")
GB = [(8, 8), (40, 8), (88, 8), (16, 4), (28, 4)] if OPT['stamp'] else [(60, 16), (76, 16)]
GS = [r + i for r, n in GB for i in range(n)]
def granule_loads():
    off = 0
    for r, n in GB:
        A(f"s_load_dwordx{n} {s(r,n)}, {s(WS_,2)}, {s(sT[4])} offset:{off} glc"); off += 4*n
A(f"""
s_cmp_lg_u32 {s(sW)}, 0
s_cbranch_scc1 L_nosp3a
s_lshl_b32 {s(sT[4])}, {s(sMR)}, 7
s_add_u32 {s(sT[4])}, {s(sT[4])}, {XB}
""")
granule_loads()
A.label("L_nosp3a")
for i in range(16):
    A(f"v_perm_b32 {v(GR+i)}, {v(FN+i//2)}, {v(FC+i//2)}, {s(sPM+(i&1))}")
    A(f"v_perm_b32 {v(GI+i)}, {v(FC+i//2)}, {v(FS+i//2)}, {s(sPM+(i&1))}")
A(f"""
s_cmp_lg_u32 {s(sW)}, 0
s_cbranch_scc1 L_nosp3b
s_mov_b32 {s(sCNT)}, 0x8000
s_branch L_gchk
L_gagain:
s_sub_u32 {s(sCNT)}, {s(sCNT)}, 1
s_cbranch_scc1 L_gok
""")
granule_loads()
A.label("L_gchk")
A("s_waitcnt lgkmcnt(0)")
for i in range(16):
    A(f"s_cmp_lg_u32 {s(GS[2*i+1])}, {s(sTAG)}")
    A("s_cbranch_scc1 L_gagain")
A.label("L_gok")
for h in range(2):
    for g in range(4):
        for q in range(2):
            A(f"v_writelane_b32 {v(TMP+4+2*h+q)}, {s(GS[h*16+g*4+2*q])}, {16*g}")
m16(D2R, M3T, TMP+4, None); m16(D2R+4, M3T+4, TMP+4, None)
A.label("L_nosp3b")
A("s_waitcnt vmcnt(0)")
stamp("dat2", (1, 3))
def CV3(tp):
    L_ = []
    for mt in range(2):
        d0 = D1R + 8*tp + 4*mt; d1 = d0 + 16
        o = TMP + 8 + (tp*2+mt)*4
        L_ += [CVT(o, d0, d0+1), CVT(o+3, d0+2, d0+3), CVT(o+1, d1, d1+1), CVT(o+2, d1+2, d1+3)]
    return L_
def WR3(tp):
    L_ = []
    for mt in range(2):
        o = TMP + 8 + (tp*2+mt)*4
        L_.append(f"ds_write_b64 {v(aPw)}, {v(o,2)} offset:{mt*4*PS2+tp*128}")
        if tp == 1: L_.append(f"ds_write_b64 {v(aQp)}, {v(o+2,2)} offset:{mt*4*PS2}")
        else: L_ += [f"ds_write_b32 {v(aQ1)}, {v(o+2)} offset:{mt*4*PS2}", f"ds_write_b32 {v(aQ0)}, {v(o+3)} offset:{mt*4*PS2}"]
    return L_
ORD = (1, 3, 0, 2) if OPT['s3w'] else (0, 2, 1, 3)
for t in ORD:
    for jj in range(2):
        A(f"ds_read_b64_tr_b16 {v(XR+4*t+2*jj,2)}, {v(aT[t])} offset:{jj*2048}")
for i, t in enumerate(ORD):
    A(f"s_waitcnt lgkmcnt({6-2*i})")
    m16(D1R+8*t, M3T, XR+4*t, None); m16(D1R+8*t+4, M3T+4, XR+4*t, None)
if OPT['s3w']:
    for t_ in CV3(1) + WR3(1): A(t_)
A(f"""
s_cmp_lg_u32 {s(sW)}, 0
s_cbranch_scc1 L_nofix
s_mov_b32 exec_lo, 0x00010001
s_mov_b32 exec_hi, 0x00010001
""")
for d in (D2R, D1R):
    for mt in range(2):
        for i in range(2):
            A(f"v_add_f32 {v(d+4*mt+i)}, {v(d+4*mt+i)}, {v(d+4*mt+2+i)}")
            A(f"v_mul_f32 {v(d+4*mt+i)}, 0.5, {v(d+4*mt+i)}")
cvt(TMP, D2R, D2R+1); cvt(TMP+1, D2R+4, D2R+5)
A(f"""
ds_write_b32 {v(aPw)}, {v(TMP)} offset:{8*256}
ds_write_b32 {v(aPw)}, {v(TMP+1)} offset:{8*256+4*PS2}
s_mov_b64 exec, -1
L_nofix:
""")
if not OPT['s3w']: A("s_nop 1")
for t_ in (CV3(0) + WR3(0) if OPT['s3w'] else CV3(0) + CV3(1) + WR3(0) + WR3(1)): A(t_)
if OPT['p3p']: A("s_setprio 1")
A("s_waitcnt lgkmcnt(0)")
A("s_barrier")
stamp("bar3", (1, 3))
for t in range(4):
    for j in range(2):
        A(f"ds_read_b64 {v(XR+4*t+2*j,2)}, {v(aRd3)} offset:{t*1024+j*256}")
for t in range(4):
    A(f"s_waitcnt lgkmcnt({6-2*t})")
    m32(D1R, XR+4*t, GR+4*t, D1R if t else None)
A("s_nop 4")
tw1 = TW1(D1R, True)
if OPT['p3p']: tw1 = tw1[:12] + ["s_setprio 0"] + tw1[12:]
weave([M32(D1I, XR+4*t, GI+4*t, D1I if t else None) for t in range(4)], ["s_nop 4"] + tw1, [1, 6, 6, 99])
stamp("m3", (3,))
for t_ in TW2(D1I, XR, XI, True, 0, 8): A(t_)
weave([M32(D2R, XR, FC, None), M32(D2R, XI, FN, D2R), M32(D2I, XR, FS, None), M32(D2I, XI, FC, D2I)], TW2(D1I, XR, XI, True, 8, 16), 6)
weave([M32(D2R, XR+4, FC+4, D2R), M32(D2R, XI+4, FN+4, D2R), M32(D2I, XR+4, FS+4, D2I), M32(D2I, XI+4, FC+4, D2I)], ["s_nop 4", "s_nop 4"], [0, 1, 1, 0])
stamp("m4", (3,))
for comp, d in ((0, D2R), (1, D2I)):
    o = TMP + comp*8
    for q in (0, 4, 1, 5, 2, 6, 3, 7): cvt(o+q, d+2*q, d+2*q+1)
    for q in range(4): A(f"v_permlane16_swap_b32 {v(o+q)}, {v(o+4+q)}")
    for j in range(2):
        A(f"buffer_store_dwordx4 {v(o+4*j,4)}, {v(aSo)}, {srd(OUT_)}, {s(sO[comp])} offen offset:{j*1024}{OUTM}")
if OPT['stamp']:
    stamp("st3", (3,))
    A("s_waitcnt vmcnt(0)")
    stamp("end")
    A("s_waitcnt lgkmcnt(0)")
    n = len(stamps)
    assert sST + 2*n <= 88, n
    if OPT['diag']:
        da, db = OPT['da'], OPT['db']
        A(f"""
        s_load_dwordx2 s[94:95], s[0:1], 56
        s_and_b32 {s(sT[4])}, s2, 7
        s_lshl_b32 {s(sT[4])}, {s(sT[4])}, 3
        s_not_b32 {s(sT[11])}, {s(sST)}
        s_sleep 100
        s_waitcnt lgkmcnt(0)
        s_cmp_lg_u32 {s(sW)}, {OPT['wa']}
        s_cbranch_scc1 L_dg1
        s_atomic_umax {s(sST+2*da) if da else s(sT[11])}, s[94:95], {s(sT[4])}
        L_dg1:
        s_cmp_lg_u32 {s(sW)}, {OPT['wb']}
        s_cbranch_scc1 L_end
        s_atomic_umax {s(sST+2*db)}, s[94:95], {s(sT[4])} offset:4
        s_cmp_lg_u32 s2, 100
        s_cbranch_scc1 L_end
        s_add_u32 {s(sT[0])}, {s(sST+2*(n-1))}, 900
        L_amp0:
        s_memrealtime {s(sT[2],2)}
        s_waitcnt lgkmcnt(0)
        s_sub_u32 {s(sT[1])}, {s(sT[0])}, {s(sT[2])}
        s_cmp_gt_i32 {s(sT[1])}, 0
        s_cbranch_scc1 L_amp0
        s_load_dwordx16 s[60:75], s[94:95], 0 glc
        s_waitcnt lgkmcnt(0)
        """)
        for i in range(1, 8):
            A(f"s_max_u32 s60, s60, s{60+2*i}")
            A(f"s_max_u32 s61, s61, s{61+2*i}")
        if not da: A("s_not_b32 s60, s60")
        A(f"""
        s_sub_u32 {s(sT[1])}, s61, s60
        s_lshl_b32 {s(sT[1])}, {s(sT[1])}, 4
        s_min_u32 {s(sT[1])}, {s(sT[1])}, 60000
        s_add_u32 {s(sT[0])}, {s(sT[0])}, {s(sT[1])}
        L_amp:
        s_memrealtime {s(sT[2],2)}
        s_waitcnt lgkmcnt(0)
        s_sub_u32 {s(sT[1])}, {s(sT[0])}, {s(sT[2])}
        s_cmp_gt_i32 {s(sT[1])}, 0
        s_cbranch_scc1 L_amp
        s_branch L_end
        """)
    A(f"s_lshl_b32 {s(sT[0])}, s2, 3")
    A(f"s_add_u32 {s(sT[0])}, {s(sT[0])}, {s(sW)}")
    A(f"s_lshl_b32 {s(sT[0])}, {s(sT[0])}, 7")
    A(f"s_add_u32 {s(sT[0])}, {s(sT[0])}, {STAMP}")
    A("v_mov_b32 v3, 0")
    A("s_mov_b64 exec, 1")
    for i in range(n):
        A(f"v_mov_b32 v2, {s(sST+2*i)}")
        A(f"buffer_store_dword v2, v3, {srd(WS_)}, {s(sT[0])} offen offset:{i*4}")
    A.raw("; stamps: " + " ".join(stamps))
A.label("L_end")
A("s_endpgm")
def kd(name, nv, ns):
    A.raw(f""".p2align 6
.amdhsa_kernel {name}
  .amdhsa_next_free_vgpr {nv}
  .amdhsa_next_free_sgpr {ns}
  .amdhsa_accum_offset {nv}
  .amdhsa_group_segment_fixed_size 0
  .amdhsa_kernarg_size 72
  .amdhsa_user_sgpr_count 2
  .amdhsa_user_sgpr_kernarg_segment_ptr 1
  .amdhsa_system_sgpr_workgroup_id_x 1
  .amdhsa_float_denorm_mode_32 3
.end_amdhsa_kernel""")
A.raw('.section .rodata,"a"')
kd(NAME + "_kernel", 256, 102)
if OPT['lst']: kd("empty_kernel", 8, 16)
txt = A.text()
if OPT['al']:
    from align import align
    txt = align(txt, minrun=OPT['al'] if OPT['al'] > 1 else 4)
open(sys.argv[1], "w").write(txt)
print(sys.argv[1], "nops:", A.nops, "stamps:", len(stamps), file=sys.stderr)
```
